```python
import torch

def _softmax(x, axis=-1):
    return torch.softmax(x, dim=axis)
def _gelu(x):
    return torch.nn.functional.gelu(x, approximate="tanh")
def _silu(x):
    return torch.nn.functional.silu(x)
def _sigmoid(x):
    return torch.sigmoid(x)
def _layernorm(x, axis=-1, eps=1e-5):
    m = x.mean(dim=axis, keepdim=True)
    v = x.var(dim=axis, keepdim=True, unbiased=False)
    return (x - m) / torch.sqrt(v + eps)
def _scatter_add(tgt, idx, src, axis=0):
    return tgt.clone().index_add_(axis, idx, src)
def _segment_sum(src, seg, n):
    out = torch.zeros((n,) + src.shape[1:], dtype=src.dtype)
    return out.index_add_(0, seg, src)
def _pad(x, pw):
    flat = tuple(v for pair in reversed(pw) for v in pair)
    return torch.nn.functional.pad(x, flat)

kernel_name = 'parallel_sum__linear_kernel_hedgehog__glu_gated_bilinear__prompt'

def setup_inputs():

    _w = (lambda a: (lambda t: t.to(torch.bfloat16) if t.is_floating_point() else t)(torch.as_tensor(a)))
    def _A_setup():
        B, S, D, H = 1, 2048, 512, 32
        Dh = D // H
        return {
            "x": _w((lambda *s: torch.randn(*s, dtype=torch.bfloat16) * 0.05)(B, S, D)),
            "wqkv": _w((lambda *s: torch.randn(*s, dtype=torch.bfloat16) * 0.2)(D, 3 * D)),
            "w_phi": _w((lambda *s: torch.randn(*s, dtype=torch.bfloat16) * 0.2)(H, Dh, Dh) * (Dh ** -0.5)),
            "wo": _w((lambda *s: torch.randn(*s, dtype=torch.bfloat16) * 0.05)(D, D)),
        }
    _A_in = _A_setup()

    def _B_setup():
        B, S, D, F = 1, 2048, 512, 1792
        return {
            "x": _w((lambda *s: torch.randn(*s, dtype=torch.bfloat16) * 0.05)(B, S, D)),
            "w_gate": _w((lambda *s: torch.randn(*s, dtype=torch.bfloat16) * 0.4)(D, F) * (D ** -0.5)),
            "w_up": _w((lambda *s: torch.randn(*s, dtype=torch.bfloat16) * 0.4)(D, F) * (D ** -0.5)),
            "w_down": _w((lambda *s: torch.randn(*s, dtype=torch.bfloat16) * 0.4)(F, D) * (F ** -0.5)),
        }
    _B_in = _B_setup()

    return {
        "A_x": _A_in["x"],
        "A_wqkv": _A_in["wqkv"],
        "A_w_phi": _A_in["w_phi"],
        "A_wo": _A_in["wo"],
        "B_x": _B_in["x"],
        "B_w_gate": _B_in["w_gate"],
        "B_w_up": _B_in["w_up"],
        "B_w_down": _B_in["w_down"],
    }

def reference(A_x, A_wqkv, A_w_phi, A_wo, B_x, B_w_gate, B_w_up, B_w_down):
    def _A_ref(x, wqkv, w_phi, wo):
        B, S, D = x.shape
        H = 32; Dh = D // H
        qkv = (lambda x, *d: x.permute(*d))((x @ wqkv).reshape(B, S, 3, H, Dh), 2, 0, 3, 1, 4)
        q, k, v = qkv[0], qkv[1], qkv[2]
        pq = torch.einsum("bhsd,hdf->bhsf", q, w_phi)
        pk = torch.einsum("bhsd,hdf->bhsf", k, w_phi)
        phi_q = torch.concatenate([_softmax(pq, axis=-1), _softmax(-pq, axis=-1)], axis=-1)
        phi_k = torch.concatenate([_softmax(pk, axis=-1), _softmax(-pk, axis=-1)], axis=-1)
        kv = torch.einsum("bhsf,bhsd->bhfd", phi_k, v)
        z  = torch.einsum("bhsf->bhf", phi_k)
        num = torch.einsum("bhqf,bhfd->bhqd", phi_q, kv)
        den = torch.einsum("bhqf,bhf->bhq", phi_q, z)[..., None] + 1e-6
        o = num / den
        return (lambda x, *d: x.permute(*d))(o, 0, 2, 1, 3).reshape(B, S, D) @ wo

    def _B_ref(x, w_gate, w_up, w_down):
        g = torch.einsum("bsd,df->bsf", x, w_gate)
        u = torch.einsum("bsd,df->bsf", x, w_up)
        h = g * u
        return torch.einsum("bsf,fd->bsd", h, w_down)

    x = A_x
    xn = _layernorm(x, axis=-1)
    return x + _A_ref(xn, A_wqkv, A_w_phi, A_wo) + _B_ref(xn, B_w_gate, B_w_up, B_w_down)
```

```python
import re

TRANS = ("v_exp_f32", "v_log_f32", "v_rcp_f32", "v_rsq_f32", "v_sqrt_f32")


def regs_of(tok):
    tok = tok.strip()
    neg = tok.lstrip("-")
    if neg.startswith("abs(") or neg.startswith("|"):
        neg = neg.replace("abs(", "").replace(")", "").replace("|", "")
    m = re.fullmatch(r"([vas])\[(\d+):(\d+)\]", neg)
    if m:
        return [m.group(1) + str(i) for i in range(int(m.group(2)), int(m.group(3)) + 1)]
    m = re.fullmatch(r"([vas])(\d+)", neg)
    if m:
        return [neg]
    if neg in ("vcc", "exec", "m0", "scc"):
        return [neg]
    return []


class I:
    def __init__(self, text, tag=None):
        self.text = text.strip()
        self.tag = tag
        self.rd, self.wr = [], []
        self.kind = None
        self.passes = 0
        self.srcc = []
        self.parse()

    def parse(self):
        t = self.text
        if t.endswith(":"):
            self.kind = "label"; self.cost = 0; self.op = "label"; return
        parts = t.split(None, 1)
        op = parts[0]
        self.op = op
        rest = parts[1] if len(parts) > 1 else ""
        ops = [o.strip() for o in rest.split(",")] if rest else []
        if ops:
            last = ops[-1].split()
            mods = last[1:]
            ops[-1] = last[0]
        else:
            mods = []
        self.mods = mods
        R = lambda k: [r for o in ops[k:] for r in regs_of(o)]
        self.cost = 4
        if op.startswith("v_mfma"):
            self.kind = "mfma"
            self.wr = regs_of(ops[0]); self.srca = regs_of(ops[1]); self.srcb = regs_of(ops[2]); self.srcc = regs_of(ops[3])
            self.rd = self.srca + self.srcb + self.srcc
            self.passes = 8 if "32x32x16" in op else 4 if "16x16x32" in op else 2
            self.cost = 8
        elif op.startswith("ds_read"):
            self.kind = "ds"; self.wr = regs_of(ops[0]); self.rd = R(1)
        elif op.startswith("ds_"):
            self.kind = "ds"; self.rd = R(0)
        elif op.startswith("buffer_load") and "lds" in mods:
            self.kind = "vm"; self.rd = R(0) + ["m0"]; self.dma = True
        elif op.startswith("buffer_load") or op.startswith("global_load"):
            self.kind = "vm"; self.wr = regs_of(ops[0]); self.rd = R(1)
        elif op.startswith("buffer_store") or op.startswith("buffer_atomic"):
            self.kind = "vm"; self.rd = R(0); self.data = regs_of(ops[0])
        elif op.startswith("s_load") or op in ("s_memtime", "s_memrealtime"):
            self.kind = "smem"; self.wr = regs_of(ops[0]); self.rd = R(1)
        elif op in ("s_waitcnt", "s_barrier", "s_nop", "s_endpgm", "s_sleep", "s_setprio"):
            self.kind = op[2:]
        elif op.startswith("s_cbranch") or op == "s_branch":
            self.kind = "branch"
            if "scc" in op: self.rd = ["scc"]
            if "vcc" in op: self.rd = ["vcc"]
            if "exec" in op: self.rd = ["exec"]
        elif op.startswith("s_cmp"):
            self.kind = "salu"; self.rd = R(0); self.wr = ["scc"]
        elif op.startswith("s_"):
            self.kind = "salu"; self.wr = regs_of(ops[0]); self.rd = R(1)
            if not op.startswith(("s_mov", "s_mul_i32", "s_getpc", "s_getreg", "s_cselect")): self.wr = self.wr + ["scc"]
            if op.startswith("s_cselect") or op.startswith("s_addc"): self.rd = self.rd + ["scc"]
        elif op.startswith("v_"):
            self.kind = "valu"
            self.wr = regs_of(ops[0]); self.rd = R(1)
            if op.startswith(("v_fmac", "v_dot2c", "v_writelane")): self.rd = self.rd + self.wr
            if op.startswith("v_permlane"):
                self.wr = regs_of(ops[0]) + regs_of(ops[1]); self.rd = list(self.wr)
            if op.split("_e")[0] in TRANS or op in TRANS:
                self.trans = True; self.cost = 8
        else:
            raise ValueError("cannot parse: " + t)

    def __repr__(self):
        return self.text


class Wait:
    def __init__(self, tag):
        self.tag = tag; self.cost = 2; self.kind = "pseudo_wait"


class Gap:
    def __init__(self, n):
        self.n = n


class Raw:
    def __init__(self, lines, rd=(), wr=()):
        self.lines = lines; self.kind = "raw"; self.cost = 4 * len(lines); self.rd = list(rd); self.wr = list(wr)


def L(text, tag=None):
    out = []
    for x in text.strip("\n").split("\n"):
        x = x.split(";")[0].strip()
        if x: out.append(I(x))
    if tag is not None: out[-1].tag = tag
    return out


class Sched:
    def __init__(self):
        self.beats = []

    def beat(self, main, period=32):
        self.beats.append(dict(pre=[], main=main, post=[], period=period))
        return len(self.beats) - 1

    @staticmethod
    def _cost(item):
        if isinstance(item, list): return sum(x.cost for x in item)
        return item.cost

    def load(self, b):
        bt = self.beats[b]
        return sum(self._cost(x) for x in bt["pre"] + bt["post"]) + (bt["main"].cost if bt["main"] is not None else 0)

    def put(self, b, item, pre=False):
        self.beats[b]["pre" if pre else "post"].append(item)

    def spread(self, items, b0, b1, name=""):
        n = b1 - b0
        total = sum(self._cost(x) for x in items if not isinstance(x, Gap))
        gaps = sum(x.n for x in items if isinstance(x, Gap))
        loads = [self.load(b) - self.beats[b]["period"] for b in range(b0, b1)]
        lo, hi = -64.0, 4096.0
        def run(level, place):
            b = 0; room = level - loads[0]
            last = 0
            for it in items:
                if isinstance(it, Gap):
                    b += it.n
                    if b >= n: b = n - 1; room = 0 if not place else room
                    room = level - loads[b]
                    continue
                c = self._cost(it)
                while room < c * 0.5 and b < n - 1:
                    b += 1; room = min(room, 0) * 0 + level - loads[b]
                if room < c * 0.5 and not place: return None
                if place: self.put(b0 + b, it)
                room -= c; last = b
            return last
        for _ in range(30):
            mid = (lo + hi) / 2
            if run(mid, False) is None: lo = mid
            else: hi = mid
        last = run(hi, True)
        if name: print("  spread %-10s cost %5d over beats %d..%d level %+.0f last %d" % (name, total, b0, b1, hi, b0 + last))
        return b0 + last

    def flat(self):
        out = []
        def add(x):
            if isinstance(x, list): out.extend(x)
            else: out.append(x)
        for bt in self.beats:
            for x in bt["pre"]: add(x)
            if bt["main"] is not None: add(bt["main"])
            for x in bt["post"]: add(x)
        return out


def insert_waits(prog):
    out = []
    vm_seq = 0; vm_done = 0
    ds_seq = 0; ds_done = 0
    pend = {}
    tags = {}
    sm_out = False
    maxvm = 0

    def need(kind, seq, w):
        if kind == "vm" and seq > vm_done: w["vm"] = max(w.get("vm", 0), seq)
        if kind == "ds" and seq > ds_done: w["ds"] = max(w.get("ds", 0), seq)
        if kind == "sm": w["sm"] = 1

    for ins in prog:
        w = {}
        if isinstance(ins, Wait):
            if ins.tag == "lgkm0": need("ds", ds_seq, w)
            elif ins.tag == "vm0": need("vm", vm_seq, w)
            else:
                k, s = tags[ins.tag]; need(k, s, w)
        else:
            for r in list(ins.rd) + list(ins.wr):
                if r in pend: need(pend[r][0], pend[r][1], w)
        if w:
            parts = []
            if "vm" in w:
                n = min(vm_seq - w["vm"], 63); parts.append("vmcnt(%d)" % n); vm_done = vm_seq - n
            if "sm" in w:
                parts.append("lgkmcnt(0)"); ds_done = ds_seq; sm_out = False
                for r in [r for r, v in pend.items() if v[0] == "sm"]: del pend[r]
            elif "ds" in w:
                n = min(ds_seq - w["ds"], 15); parts.append("lgkmcnt(%d)" % n); ds_done = ds_seq - n
            out.append(I("s_waitcnt " + " ".join(parts)))
            for r in [r for r, v in pend.items() if (v[0] == "vm" and v[1] <= vm_done) or (v[0] == "ds" and v[1] <= ds_done)]: del pend[r]
        if isinstance(ins, Wait): continue
        out.append(ins)
        if ins.kind == "vm":
            vm_seq += 1
            for r in ins.wr: pend[r] = ("vm", vm_seq)
            if ins.tag: tags[ins.tag] = ("vm", vm_seq)
            maxvm = max(maxvm, vm_seq - vm_done)
        elif ins.kind == "ds":
            ds_seq += 1
            for r in ins.wr: pend[r] = ("ds", ds_seq)
            if ins.tag: tags[ins.tag] = ("ds", ds_seq)
        elif ins.kind == "smem":
            if not getattr(ins, "nowait", False):
                for r in ins.wr: pend[r] = ("sm", 0)
    return out, maxvm


def states(ins):
    if ins.kind == "label": return 0
    if ins.kind == "nop": return int(ins.text.split()[1]) + 1
    if ins.kind == "raw": return 1
    return 1


def pad_hazards(prog):
    out = []
    nn = 0
    for ins in prog:
        needn = 0
        if ins.kind not in ("label", "nop", "waitcnt", "barrier"):
            rd = set(ins.rd); wr = set(ins.wr)
            dist = 0
            for p in reversed(out):
                if dist >= 20: break
                req = 0
                pw = set(p.wr) if p.kind not in ("label", "nop", "waitcnt", "barrier") else set()
                if p.kind == "valu":
                    vw = {r for r in pw if r[0] in "va" and r != "vcc"}
                    sw = pw - vw
                    if ins.kind == "mfma" and vw & rd: req = max(req, 2)
                    if ins.kind == "valu" and ins.op.startswith("v_permlane") and vw & rd: req = max(req, 2)
                    if ins.kind == "valu" and ins.op.startswith(("v_readfirstlane", "v_readlane")) and vw & rd: req = max(req, 1)
                    if getattr(p, "trans", False) and vw & rd: req = max(req, 1)
                    if "sdwa" in p.op and vw & (rd | wr): req = max(req, 1)
                    if sw & rd:
                        if ins.kind == "valu": req = max(req, 2)
                        elif ins.kind == "vm": req = max(req, 5)
                        elif ins.kind in ("salu", "branch", "raw"): req = max(req, 4)
                elif p.kind == "mfma":
                    k = {2: 0, 4: 1, 8: 2}[p.passes]
                    if ins.kind == "mfma":
                        if pw & set(ins.srcc):
                            if list(p.wr) == list(ins.srcc) and p.passes == ins.passes: req = max(req, [2, 0, 0][k])
                            else: req = max(req, [4, 6, 10][k])
                        if pw & (set(ins.srca) | set(ins.srcb)): req = max(req, [5, 8, 12][k])
                        if pw & wr and not (pw & set(ins.srcc)): req = max(req, [5, 8, 12][k])
                    else:
                        if pw & (rd | wr): req = max(req, [5, 8, 12][k])
                        if set(p.srcc) & wr: req = max(req, [1, 3, 7][k])
                elif p.kind == "salu":
                    if "m0" in pw and ins.kind == "vm" and "m0" in rd: req = max(req, 1)
                elif p.kind in ("vm", "ds"):
                    data = getattr(p, "data", None)
                    if p.kind == "ds" and not p.wr: data = p.rd[1:]
                    if data and len(data) >= 3 and set(data) & wr: req = max(req, 2)
                if req > dist: needn = max(needn, req - dist)
                dist += states(p)
        if needn:
            out.append(I("s_nop %d" % (needn - 1))); nn += needn
        out.append(ins)
    return out, nn


def emit(prog):
    lines = []
    for ins in prog:
        if ins.kind == "raw": lines += ["    " + x if not x.endswith(":") else x for x in ins.lines]
        elif ins.kind == "label": lines.append(ins.text)
        else: lines.append("    " + ins.text)
    return "\n".join(lines) + "\n"


def finalize(prog, name=""):
    p, maxvm = insert_waits(prog)
    p, nn = pad_hazards(p)
    cnt = {}
    for x in p: cnt[x.kind] = cnt.get(x.kind, 0) + 1
    print("  %s: %d instr, max vm in flight %d, nop states %d, %s" % (name, len(p), maxvm, nn, cnt))
    return p
```

```python
import sys
from fw import *

KNAME = "parallel_sum__linear_kernel_hedgehog__glu_gated_bilinear__prompt_kernel"

class Cfg:
    rot = True
    stamps = False
    codepf = False
    spin = 200000
cfg = Cfg()

PITCH = 8224
NSLOT = 16
WREG = NSLOT * PITCH
WREG_SZ = 5632
VOFF = 2304
STAT = WREG + 4 * WREG_SZ
CS = STAT + 2048
LDS_BYTES = 163840
WS_H = 0
WS_KVA = 0xA00000
WS_FL = 0xA40000
WS_KF = 0xA50000
WS_ST = 0xB00000
OOB = 0x40000000

SX, SQ, SG, SU, SD, SO, SW, SOUT, SDBG, SPHI = 4, 8, 12, 16, 20, 24, 28, 32, 36, 40
def srd(b): return "s[%d:%d]" % (b, b + 3)
sWV, sTH, sGR, sRB, sQ, sT4, sAB, sI, sTT, sCT, sIDX, sXCD = range(44, 56)
sKX, sKQ, sKG = 56, 64, 72
sLX, sL2K, sL1K, sT0, sT1, sSPIN = 80, 81, 82, 83, 84, 85
sM1, sM2, sM3, sMB = 86, 88, 90, 92
sWDB, sWOB, sC2, sL2E, sS = 94, 95, 96, 97, 3
sST = 98
SET0, SET1, WF = 0, 64, 128
SEL01, SEL23 = 144, 148
vPW, vPR, vVW, vVR0 = 152, 153, 154, 155
CSD = 156
vVR1, vKVA, vKFL, vEXW, vEXR = 160, 161, 162, 163, 164
vKVL, vKPL = 152, 153
vSTAMP = 166
vNM, vRS, vR2 = 168, 170, 172
XR, WR1, WR3, XD, WR2 = 174, 178, 178, 182, 182
W2R = 174
WQD, WGD, WHD = 186, 188, 190
vHLD, vPOL = 186, 187
vCSA, vCSR, vHST, vFLG, vL, W2D = 191, 193, 195, 196, 197, 198
WPHI = 200
KVD = 208
TMP = 240
RSD, SQD = 64, 68
ACC2 = [96, 112, 208, 224]

def vr(b, n=1): return "v%d" % b if n == 1 else "v[%d:%d]" % (b, b + n - 1)
def ar(b, n): return "a[%d:%d]" % (b, b + n - 1)

stamp_names = []
def stamp(name):
    if not cfg.stamps: return []
    if name not in stamp_names: stamp_names.append(name)
    k = stamp_names.index(name)
    return [I("s_memtime s[%d:%d]" % (sST, sST + 1)), I("v_writelane_b32 v%d, s%d, %d" % (vSTAMP, sST, k + 2))]

def addr_wfull(dst, n, att, swap, t0=TMP):
    a, b = vr(t0), vr(t0 + 1)
    s = """
    v_lshrrev_b32 {a}, 5, v{L}
    v_lshlrev_b32 {a}, 10, {a}
    v_bfe_u32 {b}, v{L}, 2, 2
    v_lshl_add_u32 {a}, {b}, 7, {a}
    v_and_b32 {b}, 3, v{L}
    v_lshl_add_u32 {a}, {b}, 3, {a}
    v_bfe_u32 {b}, v{L}, 3, 1
    v_xor_b32 {b}, s{gr}, {b}
    v_lshl_add_u32 {a}, {b}, 6, {a}
    v_bfe_u32 {b}, v{L}, 4, 1
    """.format(a=a, b=b, L=vL, gr=sGR)
    if att:
        if swap: s += "v_xor_b32 %s, s%d, %s\n" % (b, sTH, b)
        s += "v_lshl_add_u32 %s, %s, 5, %s\n" % (a, b, a)
    else:
        s += "v_mul_u32_u24 %s, %d, %s\nv_add_u32 %s, %s, %s\n" % (b, PITCH, b, a, a, b)
    return L(s) + wr_variants(dst, n, a, 12)

def wr_variants(dst, n, a, sh):
    s = "s_lshl_b32 s%d, s%d, %d\ns_xor_b32 s%d, s%d, %d\n" % (sT0, sS, sh, sT1, sT0, 1 << sh)
    k = dst
    if n == 4:
        s += "v_add_u32 v%d, s%d, %s\nv_add_u32 v%d, s%d, %s\n" % (k, sT0, a, k + 1, sT1, a)
        s += "v_add_u32 v%d, %d, v%d\nv_add_u32 v%d, %d, v%d\n" % (k + 2, 8 * PITCH, k, k + 3, 8 * PITCH, k + 1)
    else:
        s += "v_add_u32 %s, %d, %s\n" % (a, 8 * PITCH, a)
        s += "v_add_u32 v%d, s%d, %s\nv_add_u32 v%d, s%d, %s\n" % (k, sT0, a, k + 1, sT1, a)
    ins = L(s)
    return [ins]

def addr_whalf(dst, t0=TMP):
    a, b = vr(t0), vr(t0 + 1)
    s = """
    v_lshrrev_b32 {a}, 5, v{L}
    v_lshlrev_b32 {a}, 9, {a}
    v_bfe_u32 {b}, v{L}, 2, 2
    v_lshl_add_u32 {a}, {b}, 6, {a}
    v_and_b32 {b}, 3, v{L}
    v_lshl_add_u32 {a}, {b}, 3, {a}
    v_bfe_u32 {b}, v{L}, 4, 1
    v_mul_u32_u24 {b}, 4128, {b}
    v_add_u32 {a}, {a}, {b}
    v_mov_b32 {b}, s{gr}
    v_lshl_add_u32 {a}, {b}, 5, {a}
    """.format(a=a, b=b, L=vL, gr=sGR)
    return L(s) + wr_variants(dst, 4, a, 11)

def addr_cs(swap, t0=TMP):
    a = vr(t0)
    s = "s_lshl_b32 s%d, s%d, 7\ns_add_u32 s%d, s%d, %d\n" % (sT0, sGR, sT0, sT0, CS)
    if swap: s += "s_lshl_b32 s%d, s%d, 6\ns_add_u32 s%d, s%d, s%d\n" % (sT1, sTH, sT0, sT0, sT1)
    s += """
    v_and_b32 {a}, 15, v{L}
    v_lshl_add_u32 v{ca}, {a}, 2, s{t}
    v_xor_b32 v{ca1}, 64, v{ca}
    v_lshrrev_b32 {a}, 5, v{L}
    v_lshl_add_u32 v{cr}, {a}, 4, s{t}
    v_xor_b32 v{cr1}, 64, v{cr}
    """.format(a=a, L=vL, ca=vCSA, ca1=vCSA + 1, cr=vCSR, cr1=vCSR + 1, t=sT0)
    return [L(s)]

def addr_p2(t0=TMP):
    a, b = vr(t0), vr(t0 + 1)
    s = """
    v_lshrrev_b32 {a}, 5, v{L}
    v_lshlrev_b32 {a}, 9, {a}
    v_bfe_u32 {b}, v{L}, 2, 2
    v_lshl_add_u32 {a}, {b}, 7, {a}
    v_and_b32 {b}, 3, v{L}
    v_lshl_add_u32 {a}, {b}, 3, {a}
    v_bfe_u32 {b}, v{L}, 3, 1
    v_lshl_add_u32 {a}, {b}, 6, {a}
    v_bfe_u32 {b}, v{L}, 4, 1
    v_lshl_add_u32 {a}, {b}, 5, {a}
    v_xor_b32 {b}, 64, {a}
    v_add_u32 v{w0}, s{l2k}, {a}
    v_add_u32 v{w1}, s{l2k}, {b}
    v_add_u32 v{w2}, {hi}, v{w0}
    v_add_u32 v{w3}, {hi}, v{w1}
    """.format(a=a, b=b, L=vL, w0=W2R, w1=W2R + 1, w2=W2R + 2, w3=W2R + 3, l2k=sL2K, hi=8 * PITCH)
    ins = L(s)
    ins.append(L("""
    s_mul_i32 s{t0}, s{tt}, {a}
    s_mul_i32 s{t1}, s{wv}, {b}
    s_add_u32 s{t0}, s{t0}, s{t1}
    v_lshl_add_u32 v{h}, v{L}, 4, s{t0}
    """.format(t0=sT0, t1=sT1, tt=sTT, wv=sWV, a=144 * 2048, b=36 * 2048, h=vHLD, L=vL)))
    ins.append(L("""
    s_lshl_b32 s{t0}, s{tt}, 2
    s_add_u32 s{t0}, s{t0}, s{wv}
    s_lshl_b32 s{t0}, s{t0}, 7
    s_add_u32 s{t0}, s{t0}, {fl}
    v_and_b32 {a}, 7, v{L}
    v_lshl_add_u32 v{p}, {a}, 2, s{t0}
    """.format(t0=sT0, tt=sTT, wv=sWV, fl=WS_FL, a=a, L=vL, p=vPOL)))
    return ins

label_n = [0]
def poll(addr, res, need, sr=SW, cmp="gt"):
    label_n[0] += 1
    k = label_n[0]
    ld = "buffer_load_dword v%d, v%d, %s, 0 offen sc1" % (res, addr, srd(sr))
    c = "v_cmp_%s_u32 vcc, %s, v%d" % (cmp, need, res)
    chk = Raw([c, "s_nop 4", "s_cbranch_vccz L_ok%d" % k,
               "s_mov_b32 s%d, %d" % (sSPIN, cfg.spin),
               "L_re%d:" % k, "s_sleep 1", ld, "s_waitcnt vmcnt(0)", c, "s_sub_u32 s%d, s%d, 1" % (sSPIN, sSPIN),
               "s_cbranch_scc1 L_ok%d" % k, "s_nop 2", "s_cbranch_vccnz L_re%d" % k,
               "L_ok%d:" % k],
              rd=["v%d" % res, "v%d" % addr] + regs_of(need), wr=["vcc", "scc", "s%d" % sSPIN])
    chk.cost = 32
    return I(ld), chk

def class_poll(c, res, needr):
    na, nb = [(0, 1), (1, 1), (2, 1), (2, 2), (2, 3)][c]
    iss, chk = poll(vPOL, res, "v%d" % needr)
    return iss, [I("v_cndmask_b32 v%d, %d, %d, s[%d:%d]" % (needr, na, nb, sMB, sMB + 1)), chk]

def set_flag(level, tag, t):
    return [Wait(tag), I("v_mov_b32 v%d, %d" % (t, level)), I("buffer_store_dword v%d, v%d, %s, 0 offen sc1" % (t, vFLG, srd(SW)))]

def t_stat_add():
    a, b, c = TMP, TMP + 1, TMP + 2
    s = """
    s_lshl_b32 s{t0}, s{th}, 10
    s_add_u32 s{t0}, s{t0}, {st}
    v_and_b32 v{a}, 15, v{L}
    v_lshl_add_u32 v{a}, v{a}, 4, s{t0}
    v_and_b32 v{b}, 31, v{L}
    v_lshl_add_u32 v{b}, v{b}, 4, s{t0}
    v_lshrrev_b32 v{c}, 5, v{L}
    v_lshl_add_u32 v{c}, v{c}, 2, v{b}
    """.format(t0=sT0, th=sTH, st=STAT, a=a, b=b, c=c, L=vL)
    pre = [L(s)]
    out = []
    for r in range(4): out += L("ds_add_f32 v%d, v%d offset:%d" % (a, RSD + r, 256 * r))
    for blk in range(2):
        q = SQD + 4 * blk
        for j, m in ((1, sM1), (2, sM2), (3, sM3)):
            out += L("v_cndmask_b32 v%d, v%d, v%d, s[%d:%d]" % (q, q, q + j, m, m + 1))
        out += L("ds_add_f32 v%d, v%d offset:%d" % (c, q, 4 + 512 * blk))
    return pre, out

def t_cs_add(tile0, nt):
    out = []
    for j in range(nt):
        for e in range(2):
            out += L("ds_add_f32 v%d, v%d offset:%d" % (vCSA + e, CSD + 2 * j + e, 256 * (tile0 + j)))
    return out

def t_stat_fin():
    b = TMP + 1; t = TMP + 4
    out = L("ds_read_b128 v[%d:%d], v%d\nds_read_b128 v[%d:%d], v%d offset:512" % (t, t + 3, b, t + 4, t + 7, b))
    out.append(Gap(2))
    for blk in range(2):
        r = t + 4 * blk
        out += L("""
        v_mul_f32 v{nm}, 0xbb000000, v{r}
        v_add_f32 v{r1}, v{r1}, v{r2}
        v_mul_f32 v{r2}, v{nm}, v{nm}
        v_fma_f32 v{r1}, v{r1}, s{c}, -v{r2}
        v_max_f32 v{r1}, 0, v{r1}
        v_add_f32 v{r1}, 0x3727c5ac, v{r1}
        v_rsq_f32 v{rs}, v{r1}
        s_nop 0
        v_mul_f32 v{rr}, v{rs}, v{rs}
        """.format(nm=vNM + blk, r=r, r1=r + 1, r2=r + 2, rs=vRS + blk, rr=vR2 + blk, c=sC2))
    return out

def cs_reads(tile, dst, r4s):
    out = []
    for k, r4 in enumerate(r4s):
        out += L("ds_read_b128 v[%d:%d], v%d offset:%d" % (dst + 4 * k, dst + 4 * k + 3, vCSR + (r4 >> 1), 256 * tile + 32 * (r4 & 1)))
    return out

def t_hepi(acc, tile, soff, imm, tag):
    out = cs_reads(tile, TMP, range(4))
    out.append(Gap(2))
    for blk in range(2):
        g = acc + 16 * blk
        for r in range(8):
            out += L("v_fmac_f32 v%d, v%d, v%d\nv_fmac_f32 v%d, v%d, v%d" % (g + r, vNM + blk, TMP + r, g + 8 + r, vNM + blk, TMP + 8 + r))
            out += L("v_mul_f32 v%d, v%d, v%d" % (g + r, vR2 + blk, g + r))
            out += L("v_mul_f32 v%d, v%d, v%d" % (g + r, g + r, g + 8 + r))
            if r & 1: out += L("v_cvt_pk_bf16_f32 v%d, v%d, v%d" % (g + r // 2, g + r - 1, g + r))
        st = L("buffer_store_dwordx4 v[%d:%d], v%d, %s, s%d offen offset:%d sc1" % (g, g + 3, vHST, srd(SW), sT1, imm + 1024 * blk), tag=tag if blk else None)
        out.append(L(soff) + st)
    return out

def ln_tile(acc, blk, tile):
    out = []
    for half in range(2):
        out += cs_reads(tile, TMP, (2 * half, 2 * half + 1))
        out.append(Gap(2))
        for r in range(8):
            g = acc + 8 * half + r
            out += L("v_fmac_f32 v%d, v%d, v%d\nv_mul_f32 v%d, v%d, v%d" % (g, vNM + blk, TMP + r, g, vRS + blk, g))
            if r & 1: out += L("v_cvt_pk_bf16_f32 v%d, v%d, v%d" % (acc + 4 * half + r // 2, g - 1, g))
    return out

def phi_mfma(acc, tmp8):
    out = []
    for j in range(8): out += L("v_mov_b32 v%d, v%d" % (tmp8 + j, acc + j))
    out += L("v_mfma_f32_32x32x16_bf16 v[%d:%d], v[%d:%d], v[%d:%d], 0" % (acc, acc + 15, WPHI, WPHI + 3, tmp8, tmp8 + 3))
    out += L("v_mfma_f32_32x32x16_bf16 v[%d:%d], v[%d:%d], v[%d:%d], v[%d:%d]" % (acc, acc + 15, WPHI + 4, WPHI + 7, tmp8 + 4, tmp8 + 7, acc, acc + 15))
    out.append(Gap(2))
    return out

def softmax2(p):
    e = TMP; a, b, c, d = TMP + 8, TMP + 9, TMP + 10, TMP + 11
    s = """
    v_max3_f32 v{a}, v{p0}, v{p1}, v{p2}
    v_min3_f32 v{b}, v{p0}, v{p1}, v{p2}
    v_max3_f32 v{a}, v{a}, v{p3}, v{p4}
    v_min3_f32 v{b}, v{b}, v{p3}, v{p4}
    v_max3_f32 v{a}, v{a}, v{p5}, v{p6}
    v_min3_f32 v{b}, v{b}, v{p5}, v{p6}
    v_max_f32 v{a}, v{a}, v{p7}
    v_max_f32_e64 v{b}, -v{b}, -v{p7}
    """.format(a=a, b=b, **{"p%d" % i: p + i for i in range(8)})
    out = L(s)
    out.append(L("v_permlane32_swap_b32 v{a}, v{b}\nv_max_f32 v{a}, v{a}, v{b}\nv_mul_f32 v{a}, 0xbfb8aa3b, v{a}\nv_mov_b32 v{b}, v{a}".format(a=a, b=b)))
    out.append(L("v_permlane32_swap_b32 v{a}, v{b}".format(a=a, b=b)))
    for i in range(8):
        out += L("v_fma_f32 v%d, v%d, s%d, v%d" % (e + i, p + i, sL2E, a))
        out += L("v_fma_f32 v%d, -v%d, s%d, v%d" % (p + i, p + i, sL2E, b))
        out += L("v_exp_f32 v%d, v%d" % (e + i, e + i))
        out += L("v_exp_f32 v%d, v%d" % (p + i, p + i))
        if i == 1: out += L("v_add_f32 v%d, v%d, v%d\nv_add_f32 v%d, v%d, v%d" % (c, e, e + 1, d, p, p + 1))
        elif i > 1: out += L("v_add_f32 v%d, v%d, v%d\nv_add_f32 v%d, v%d, v%d" % (c, c, e + i, d, d, p + i))
    out.append(L("v_permlane32_swap_b32 v{c}, v{d}\nv_add_f32 v{c}, v{c}, v{d}\nv_rcp_f32 v{c}, v{c}".format(c=c, d=d)))
    out.append(L("v_mov_b32 v{d}, v{c}".format(c=c, d=d)))
    out.append(L("v_permlane32_swap_b32 v{c}, v{d}".format(c=c, d=d)))
    for i in range(8):
        out += L("v_mul_f32 v%d, v%d, v%d" % (p + i, d, p + i))
        if i & 1: out += L("v_cvt_pk_bf16_f32 v%d, v%d, v%d" % (p + i // 2, p + i - 1, p + i))
    for i in range(8):
        out += L("v_mul_f32 v%d, v%d, v%d" % (e + i, c, e + i))
        if i & 1: out += L("v_cvt_pk_bf16_f32 v%d, v%d, v%d" % (p + 4 + i // 2, e + i - 1, e + i))
    return out

def t_att_k():
    out = []
    FR = 32
    for blk in range(2):
        va = 32 + 16 * blk; ka = 16 * blk
        out += ln_tile(va, blk, 1)
        for j in range(4): out += L("ds_write_b64 v%d, v[%d:%d] offset:%d" % (vVW, va + 2 * j, va + 2 * j + 1, 16 * j))
        out += ln_tile(ka, blk, 0)
        out += phi_mfma(ka, TMP)
        for hh in range(2):
            p = ka + 8 * hh
            out += softmax2(p)
            for j in range(2):
                out += L("ds_write_b64 v%d, v[%d:%d] offset:%d" % (vPW, p + 4 + 2 * j, p + 5 + 2 * j, 16 * j))
                out += L("ds_write_b64 v%d, v[%d:%d] offset:%d" % (vPW, p + 2 * j, p + 1 + 2 * j, 32 + 16 * j))
            for ks in range(2):
                for j in range(2):
                    out += L("ds_read_b64_tr_b16 v[%d:%d], v%d offset:%d" % (FR + 8 * ks + 2 * j, FR + 8 * ks + 2 * j + 1, vPR, 1152 * ks + 288 * j))
                    out += L("ds_read_b64_tr_b16 v[%d:%d], v%d offset:%d" % (FR + 8 * ks + 4 + 2 * j, FR + 8 * ks + 5 + 2 * j, (vVR0, vVR1)[hh], 1664 * ks + 416 * j))
            out.append(Gap(3))
            d = KVD + 16 * hh
            for ks in range(2):
                c = "0" if (blk == 0 and ks == 0) else vr(d, 16)
                out += L("v_mfma_f32_32x32x16_bf16 %s, %s, %s, %s" % (vr(d, 16), vr(FR + 8 * ks, 4), vr(FR + 8 * ks + 4, 4), c))
    out.append(Gap(2))
    for r4 in range(4): out += L("ds_write_b128 v%d, %s offset:%d" % (vEXW, vr(KVD + 16 + 4 * r4, 4), 1024 * r4))
    return out

def t_kv_pub():
    out = []
    for r4 in range(4): out += L("ds_read_b128 %s, v%d offset:%d" % (vr(KVD + 16 + 4 * r4, 4), vEXR, 1024 * r4))
    out.append(Gap(2))
    for r in range(16):
        out += L("v_add_f32 v%d, v%d, v%d" % (KVD + r, KVD + r, KVD + 16 + r))
        out += L("buffer_atomic_add_f32 v%d, v%d, %s, 0 offen offset:%d" % (KVD + r, vKVA, srd(SW), 256 * r), tag="kvat" if r == 15 else None)
    return out

def t_att_q():
    out = []
    for blk in range(2):
        qa = SET1 + 16 * blk
        out += ln_tile(qa, blk, 2)
        out += phi_mfma(qa, TMP)
        for hh in range(2): out += softmax2(qa + 8 * hh)
    return out

def t_kv_load():
    out = []
    for hh in range(2):
        grp = L("s_mov_b32 s%d, %d" % (sT1, 4096 * hh))
        for r in range(16):
            grp += L("buffer_load_dword v%d, v%d, %s, s%d offen offset:%d sc1" % (16 * hh + r, vKVL, srd(SW), sT1, 256 * r))
        out.append(grp)
    return out

def t_o():
    out = []
    for hh in range(2):
        for j in range(8): out += L("v_cvt_pk_bf16_f32 v%d, v%d, v%d" % (16 * hh + j, 16 * hh + 2 * j, 16 * hh + 2 * j + 1))
    seq = [(hh, blk) for hh in range(2) for blk in range(2)]
    def mm(k):
        hh, blk = seq[k]; d = 32 + 16 * (k & 1); p = SET1 + 16 * blk + 8 * hh
        return L("v_mfma_f32_32x32x16_bf16 %s, %s, %s, 0" % (vr(d, 16), vr(16 * hh, 4), vr(p + 4, 4))) + \
               L("v_mfma_f32_32x32x16_bf16 %s, %s, %s, %s" % (vr(d, 16), vr(16 * hh + 4, 4), vr(p, 4), vr(d, 16)))
    def fin(k):
        hh, blk = seq[k]; d = 32 + 16 * (k & 1)
        o = L("v_add_f32 v%d, 0x358637bd, v%d\nv_rcp_f32 v%d, v%d" % (d + 8, d + 8, d + 8, d + 8))
        for r in range(8):
            o += L("v_mul_f32 v%d, v%d, v%d" % (d + r, d + 8, d + r))
            if r & 1: o += L("v_cvt_pk_bf16_f32 v%d, v%d, v%d" % (d + r // 2, d + r - 1, d + r))
        st = L("s_mov_b32 s%d, %d" % (sT1, 28 * 2048)) + \
             L("buffer_store_dwordx4 %s, v%d, %s, s%d offen offset:%d sc1" % (vr(d, 4), vHST, srd(SW), sT1, 2048 * hh + 1024 * blk), tag="ost" if k == 3 else None)
        return o + [st]
    out += mm(0) + mm(1) + [Gap(1)] + fin(0) + mm(2) + fin(1) + mm(3) + fin(2) + fin(3)
    return out

def dma(vo, sr, so, imm, tag=None):
    return L("buffer_load_dwordx4 v%d, %s, %s offen%s lds" % (vo, srd(sr), so, " offset:%d" % imm if imm else ""), tag=tag)

def m0set(base, lit): return L("s_add_u32 m0, s%d, %d" % (base, lit))

def dma_x(c, slot, tag):
    g = m0set(sLX, slot * PITCH)
    return [g + dma(XD, SX, "s%d" % (sKX + c), 0)] + [dma(XD + i, SX, "s%d" % (sKX + c), 1024 * i, tag if i == 3 else None) for i in range(1, 4)]

def dma_full(vo, sr, kreg, extra, slot, tag):
    g = m0set(sL2K, slot * PITCH)
    so = "s%d" % kreg
    if extra:
        g += L("s_add_u32 s%d, s%d, %d" % (sT0, kreg, extra)); so = "s%d" % sT0
        return [g + dma(vo, sr, so, 0) + dma(vo + 1, sr, so, 1024, tag)]
    return [g + dma(vo, sr, so, 0) + dma(vo + 1, sr, so, 1024, tag)]

def dma_half(c, slot, tag):
    so = "s%d" % (sKG + c)
    return [m0set(sL1K, slot * PITCH) + dma(WHD, SG, so, 0), m0set(sL1K, slot * PITCH + 4128) + dma(WHD, SU, so, 0, tag)]

def slice_src(n):
    if n < 8: return SD, sWDB, 128 * (n >> 2) + 16 * (n & 3)
    if n < 16: return SD, sWDB, 64 * (4 + ((n - 8) >> 2)) + 16 * (n & 3)
    if n < 20: return SD, sWDB, 384 + 16 * (n - 16)
    if n < 28: return SD, sWDB, 64 * (2 * ((n - 20) >> 2) + 1) + 16 * (n & 3)
    return SO, sWOB, 16 * (n - 28)

def dma_w2(n, slot):
    sr, base, row = slice_src(n)
    g = m0set(sL2K, slot * PITCH) + L("s_add_u32 s%d, s%d, %d" % (sT0, base, row * 1024))
    return [g + dma(W2D, sr, "s%d" % sT0, 0) + dma(W2D + 1, sr, "s%d" % sT0, 1024, "w2_%d" % n)]

def h_load(n):
    g = L("s_mov_b32 s%d, %d" % (sT1, n * 2048))
    a = 8 * (n % 32)
    for b in range(2):
        g += L("buffer_load_dwordx4 %s, v%d, %s, s%d offen%s sc1" % (ar(a + 4 * b, 4), vHLD, srd(SW), sT1, " offset:1024" if b else ""))
    return g

def build_type(typ):
    A = typ == "A"
    passes = [("att2", 2, SET0, 0), ("pair", 2, SET1, 2), ("half", 1, SET0, 4)] if A else \
             [("pair", 2, SET0, 0), ("q", 1, SET1, 2), ("pair", 2, SET0, 3)]
    WRs = [WR1, WR2, WR3]
    S = Sched()
    step_beat = {}
    nt = lambda g: passes[g // 32][1]
    wbuf = lambda g, j: WF + (8 * (g & 1) + 4 * j if nt(g) == 2 else 4 * (g & 3))

    slot_of = {}
    for c in range(8):
        slot_of[("x", c)] = 2 * (c % 4); slot_of[("w", 0, c)] = 8 + 2 * (c % 4)
    def item_dma(it):
        if it[0] == "x": return dma_x(it[1], slot_of[it], "x%d" % it[1])
        if it[0] == "s": return dma_w2(it[1], slot_of[it])
        _, p, c = it; kind = passes[p][0]; sl = slot_of[it]; tag = "w%d_%d" % (p, c)
        if kind == "att2": return dma_full(WQD, SQ, sKQ + c, 0, sl, None) + dma_full(WQD, SQ, sKQ + c, 1024, sl + 1, tag)
        if kind == "q": return dma_full(WQD, SQ, sKQ + c, 0, sl, tag)
        if kind == "half": return dma_half(c, sl, tag)
        ex = 128 if (not A and p == 2) else 0
        return dma_full(WGD, SG, sKG + c, ex, sl, None) + dma_full(WGD, SU, sKG + c, ex, sl + 1, tag)
    def item_slots(it):
        if it[0] == "x": return 2
        if it[0] == "s": return 1
        return 2 if passes[it[1]][0] in ("att2", "pair") else 1

    for g in range(96):
        p, c, t = g // 32, (g // 4) % 8, g % 4
        kind, T, acc, tile0 = passes[p]
        step_beat[g] = len(S.beats)
        k = g % 32
        for j in range(T):
            for b in range(2):
                d = vr(acc + 32 * j + 16 * b, 16)
                S.beat(I("v_mfma_f32_32x32x16_bf16 %s, %s, %s, %s" % (d, vr(wbuf(g, j), 4), ar(8 * k + 4 * b, 4), "0" if k == 0 else d)))
        if t < 2:
            def m16(d, sel, src, first): S.beat(I("v_mfma_f32_16x16x32_bf16 %s, %s, %s, %s" % (vr(d, 4), vr(sel, 4), src, "0" if first else vr(d, 4))), 16)
            def m4(b, h): S.beat(I("v_mfma_f32_4x4x4_16b_bf16 %s, %s, %s, %s" % (vr(SQD + 4 * b, 4), ar(8 * k + 4 * b + 2 * h, 2), ar(8 * k + 4 * b + 2 * h, 2), "0" if (k == 0 and h == 0) else vr(SQD + 4 * b, 4))), 8)
            if p == 0:
                m4(0, 0); m4(1, 0); m16(RSD, SEL01, ar(8 * k, 4), k == 0); m4(0, 1); m4(1, 1); m16(RSD, SEL23, ar(8 * k + 4, 4), False)
            for j in range(T): m16(CSD, (SEL01, SEL23)[j], vr(wbuf(g, j), 4), k == 0 and j == 0)
    step_beat[96] = len(S.beats)
    sl_beat = {}
    for n in range(36):
        sl_beat[n] = len(S.beats)
        w = WF + 8 * (n & 1); a = 8 * (n % 32)
        for cb in range(2):
            for tb in range(2):
                d = vr(ACC2[2 * cb + tb], 16)
                S.beat(I("v_mfma_f32_32x32x16_bf16 %s, %s, %s, %s" % (d, vr(w + 4 * cb, 4), ar(a + 4 * tb, 4), "0" if n == 0 else d)), cfg.p2period)
    sl_beat[36] = len(S.beats)
    S.beat(None)

    bar_step = {}
    for cc in range(24):
        T = passes[cc // 8][1]
        bar_step[cc] = 4 * cc + (3 if (T == 2 or cc == 23) else 2)
    last_rd = {}
    def w_reads(g, j):
        p, c, t = g // 32, (g // 4) % 8, g % 4
        kind = passes[p][0]; sl = slot_of[("w", p, c)]
        if p == 0: base, off = WR1 + (t >> 1), (sl - 8) * PITCH
        else: base, off = WRs[p] + 2 * (sl >= 8) + (t >> 1), (sl % 8) * PITCH
        if kind == "att2": off += j * PITCH
        if kind == "pair": off += 32 * j
        st, js = (1024, 256) if kind == "half" else (2048, 512)
        off += (t & 1) * st
        w = wbuf(g, j)
        return [I("ds_read_b64_tr_b16 %s, v%d offset:%d" % (vr(w + 2 * e, 2), base, off + e * js)) for e in range(2)]
    def x_reads(g):
        c, t = g // 4, g % 4
        return [I("ds_read_b128 %s, v%d offset:%d" % (ar(8 * g + 4 * b, 4), XR + t, slot_of[("x", c)] * PITCH + 4096 * b)) for b in range(2)]
    def w2_reads(n):
        sl = slot_of[("s", n)]; w = WF + 8 * (n & 1)
        return [I("ds_read_b64_tr_b16 %s, v%d offset:%d" % (vr(w + 4 * cb + 2 * e, 2), W2R + 2 * (sl >= 8) + cb, (sl % 8) * PITCH + 1024 * e)) for cb in range(2) for e in range(2)]

    queue = []
    for c in range(4, 8): queue += [("x", c), ("w", 0, c)]
    for p in (1, 2): queue += [("w", p, c) for c in range(8)]
    queue += [("s", n) for n in range(36)]
    free = set()
    issue_after = {}
    for cc in range(24):
        p, c = cc // 8, cc % 8
        T = passes[p][1]
        rel = []
        if T == 2 or cc == 23:
            rel.append(cc)
            if cc > 0 and passes[(cc - 1) // 8][1] == 1: rel.append(cc - 1)
        elif cc > 0 and passes[(cc - 1) // 8][1] == 1: rel.append(cc - 1)
        for r in rel:
            it = ("w", r // 8, r % 8)
            free |= set(range(slot_of[it], slot_of[it] + item_slots(it)))
            if r < 8: free |= {slot_of[("x", r)], slot_of[("x", r)] + 1}
        got = []
        while queue:
            it = queue[0]; ns = item_slots(it)
            if it in slot_of: cand = [slot_of[it]] if all(slot_of[it] + i in free for i in range(ns)) else []
            elif ns == 2: cand = [s for s in sorted(free) if s % 2 == 0 and s + 1 in free]
            else: cand = sorted(free)
            if not cand: break
            slot_of[it] = cand[0]
            for i in range(ns): free.discard(cand[0] + i)
            got.append(queue.pop(0))
        issue_after[cc] = (rel, got)
    p2_issue = {}
    for n in range(36):
        if queue:
            it = queue.pop(0); slot_of[it] = slot_of[("s", n)]; p2_issue[n] = it
    print(typ, "prefetched slices before P2:", 36 - len(p2_issue))

    where = {}
    for g in range(1, 96):
        T = nt(g); k = g % 32
        for j in range(T):
            if T == 2: at = g - 1 if not (k == 0 and nt(g - 1) == 1 and j == 0) else g - 2
            else: at = g - 2 if not (k < 2 and nt(g - k - 1) == 2) else g - k - 1
            where.setdefault(at, []).append(("w", g, j))
        if g < 32: where.setdefault(g - 1, []).append(("x", g))
    for at, lst in sorted(where.items()):
        ins = []
        for it in lst:
            r = w_reads(it[1], it[2]) if it[0] == "w" else x_reads(it[1])
            if it[1] % 4 == 3:
                r[-1].tag = "rd%d_%s%d" % (it[1] // 4, it[0], it[2] if it[0] == "w" else 0)
                last_rd[it[1] // 4] = r[-1].tag
            ins += r
        b0 = step_beat[at]; nb = 2 * nt(at)
        for i, x in enumerate(ins): S.put(b0 + min(nb - 1, i * nb // len(ins)), x)

    extra_pre = {}
    def place_barriers():
        for cc in range(24):
            b = step_beat[bar_step[cc]]
            pre = []
            for r in issue_after[cc][0]: pre.append(Wait(last_rd[r]))
            if cc in extra_pre: pre.append(Wait("lgkm0"))
            if cc < 23:
                nx = cc + 1
                if nx < 8: pre.append(Wait("x%d" % nx))
                pre.append(Wait("w%d_%d" % (nx // 8, nx % 8)))
            pre.append(I("s_barrier"))
            S.beats[b]["pre"] = pre + S.beats[b]["pre"]
    bb = lambda cc: step_beat[bar_step[cc]]
    for cc in range(24):
        items = []
        for it in issue_after[cc][1]: items += item_dma(it)
        if items: S.spread(items, bb(cc), bb(cc + 1) if cc < 23 else sl_beat[0] + 2)

    r0 = w2_reads(0)
    S.put(step_beat[95], [Wait("w2_0")] );
    for i, x in enumerate(r0): S.put(step_beat[95] + min(i // 2, 2 * nt(95) - 1), x)
    for n in range(36):
        b = sl_beat[n]
        if n + 1 < 36:
            S.put(b, Wait("w2_%d" % (n + 1)))
            for i, x in enumerate(w2_reads(n + 1)): S.put(b + i, x)
        if n in p2_issue: S.put(b + 2, dma_w2(p2_issue[n][1], slot_of[p2_issue[n]])[0])

    pre, adds = t_stat_add()
    S.spread(pre, step_beat[26], step_beat[28])
    S.spread([Gap(1)] + adds + t_cs_add(0, 2), step_beat[30], step_beat[31]); extra_pre[7] = 1
    S.spread(t_stat_fin(), step_beat[31], step_beat[32])
    S.put(bb(0), L("v_mov_b32 v%d, 1\nbuffer_atomic_add v%d, v%d, %s, 0 offen" % (TMP + 12, TMP + 12, TMP + 13, srd(SDBG))))
    hs_i, hs_c = poll(TMP + 14, TMP + 15, "4", SDBG, "ne")
    S.put(step_beat[24], [I("v_lshlrev_b32 v%d, 2, v%d" % (TMP + 14, vL)), hs_i])
    S.put(step_beat[28], hs_c)
    sp = lambda g: step_beat[g]
    cls_at = {}
    if A:
        S.spread(addr_wfull(WR2, 4, False, False, TMP + 8), sp(17), sp(24))
        e = S.spread(t_att_k(), sp(32), sp(32 + cfg.a_att), "att_k")
        cb = min(cc for cc in range(8, 24) if bb(cc) > e); extra_pre[cb] = 1
        print("  kv exchange barrier chunk", cb)
        S.spread(addr_cs(False, TMP + 12) + addr_whalf(WR3, TMP + 12), bb(cb), bb(cb) + 6)
        e = S.spread(t_kv_pub(), bb(cb), bb(cb) + 10, "kv_pub")
        S.put(e + cfg.a_kvflag, [Wait("kvat"), I("v_mov_b32 v%d, 1" % WHD), I("buffer_store_dword v%d, v%d, %s, 0 offen sc1" % (WHD, vKFL, srd(SW)))])
        assert bb(cb) + 6 <= sp(62), "address set-up too late"
        S.spread([Gap(1)] + t_cs_add(2, 2), sp(62), sp(63)); extra_pre[15] = 1
        so = "s_mov_b32 s%d, %d" % (sT1, 8 * 2048)
        e = S.spread(t_hepi(SET1, 2, so, 0, None) + t_hepi(SET1 + 32, 3, so, 2048, "h1"), sp(64) + 1, sp(64 + cfg.a_h1), "hepi1")
        S.put(e + cfg.flag_delay, set_flag(1, "h1", WHD))
        S.spread(addr_p2(KVD), sp(66), sp(76))
        S.spread([Gap(1)] + t_cs_add(4, 1), sp(94), sp(95)); extra_pre[23] = 1
        so = "s_mov_b32 s%d, s%d" % (sT1, sKX)
        e = S.spread(t_hepi(SET0, 4, so, 0, "h2"), sl_beat[0] + 1, sl_beat[0] + cfg.a_h2, "hepi2")
        S.put(e + cfg.flag_delay2, set_flag(2, "h2", WHD))
        last_task = e
    else:
        S.spread(addr_wfull(WR2, 4, True, False, TMP + 8), sp(17), sp(24))
        so = "s_mov_b32 s%d, 0" % sT1
        e = S.spread(t_hepi(SET0, 0, so, 0, None) + t_hepi(SET0 + 32, 1, so, 2048, "h0"), sp(32) + 1, sp(32 + cfg.b_h0), "hepi0")
        assert e < sp(64)
        S.put(e + cfg.flag_delay, set_flag(1, "h0", WHD))
        S.spread(addr_wfull(WR3, 4, False, False, KVD), sp(36), sp(56))
        S.spread([Gap(1)] + t_cs_add(2, 1), sp(62), sp(64)); extra_pre[16] = 1
        e = S.spread(t_att_q(), bb(16), sp(64 + cfg.b_att), "att_q")
        S.spread(addr_p2(KVD), sp(64), sp(70))
        S.spread([Gap(1)] + t_cs_add(3, 2), sp(94), sp(95)); extra_pre[23] = 1
        so = "s_mov_b32 s%d, %d" % (sT1, 20 * 2048)
        e = S.spread(t_hepi(SET0, 3, so, 0, None) + t_hepi(SET0 + 32, 4, so, 2048, "h3"), sl_beat[0] + 1, sl_beat[0] + cfg.b_h3, "hepi3")
        kp_i, kp_c = poll(vKPL, 165, "1")
        S.put(e - 2, kp_i)
        S.put(e, [kp_c]);
        for x in t_kv_load(): S.put(e, x)
        S.put(e + cfg.flag_delay2, set_flag(2, "h3", WHD))
        e = S.spread(t_o(), e + cfg.b_kvlat, e + cfg.b_kvlat + cfg.b_o, "o")
        S.put(e + cfg.flag_delay2, set_flag(3, "ost", WHD))
        last_task = e
    place_barriers()
    first = [0, 8, 16, 20, 28, 36]
    hb = {}
    p0 = sp(64 + (cfg.a_p0 if A else cfg.b_p0))
    for c in range(5):
        iss, chk = class_poll(c, WGD, WGD + 1) if True else None
        at = p0 if c == 0 else sl_beat[max(0, first[c] - cfg.lead[c])] + 2
        S.put(at - cfg.poll_lead, iss)
        S.put(at, chk)
        nsl = first[c + 1] - first[c]
        for i in range(nsl):
            n = first[c] + i
            b = at + i * cfg.hstep
            if n >= 32: b = max(b, sl_beat[n - 32] + 4)
            if c == 0: assert b >= sp(64 + n + 1)
            b = min(b, sl_beat[n] - 1)
            S.put(b, h_load(n))
    RES = TMP
    rb_ = max(last_task + 2, sl_beat[24])
    S.put(rb_, L("""
    s_lshl_b32 s{t0}, s{tt}, 2
    s_add_u32 s{t0}, s{t0}, s{wv}
    s_lshl_b32 s{t0}, s{t0}, 14
    s_lshl_b32 s{t1}, s{ct}, 7
    s_add_u32 s{t0}, s{t0}, s{t1}
    v_lshrrev_b32 v{a}, 3, v{L}
    v_lshlrev_b32 v{a}, 10, v{a}
    v_and_b32 v{b}, 7, v{L}
    v_lshl_add_u32 v{a}, v{b}, 4, v{a}
    v_add_u32 v{o}, s{t0}, v{a}
    """.format(t0=sT0, t1=sT1, tt=sTT, wv=sWV, ct=sCT, a=TMP + 8, b=TMP + 9, o=WQD - 1, L=vL)))
    vOUT = WQD - 1
    S.put(rb_ + 1, L("s_mov_b32 s%d, 8192\nbuffer_load_dwordx4 %s, v%d, %s, 0 offen\nbuffer_load_dwordx4 %s, v%d, %s, s%d offen" % (sT1, vr(RES, 4), vOUT, srd(SX), vr(RES + 4, 4), vOUT, srd(SX), sT1)))
    S.spread(L("""
    v_bfe_u32 v8, v{L}, 3, 2
    v_mul_u32_u24 v8, {P}, v8
    v_and_b32 v9, 7, v{L}
    v_lshl_add_u32 v8, v9, 8, v8
    v_add_u32 v8, s{l2k}, v8
    v_lshrrev_b32 v10, 5, v{L}
    v_xor_b32 v10, v10, v9
    v_lshl_add_u32 v0, v10, 4, v8
    v_xor_b32 v11, 2, v10
    v_lshl_add_u32 v1, v11, 4, v8
    v_xor_b32 v11, 4, v10
    v_lshl_add_u32 v2, v11, 4, v8
    v_xor_b32 v11, 6, v10
    v_lshl_add_u32 v3, v11, 4, v8
    v_lshrrev_b32 v8, 3, v{L}
    v_and_b32 v10, 3, v{L}
    v_lshlrev_b32 v10, 1, v10
    v_xor_b32 v10, v10, v8
    v_bfe_u32 v11, v{L}, 2, 1
    v_lshlrev_b32 v11, 7, v11
    v_lshl_add_u32 v11, v8, 8, v11
    v_mov_b32 v9, s{wv}
    v_mul_u32_u24 v9, {P2}, v9
    v_add_u32 v11, v11, v9
    v_lshl_add_u32 v4, v10, 4, v11
    v_xor_b32 v10, 1, v10
    v_lshl_add_u32 v5, v10, 4, v11
    """.format(L=vL, P=PITCH, P2=2 * PITCH, l2k=sL2K, wv=sWV)), rb_ + 2, rb_ + 14)
    if cfg.stamps:
        for nm, b in (("p1", sp(32)), ("p2", sp(64)), ("p3", sl_beat[0]), ("s8", sl_beat[8]), ("s16", sl_beat[16]), ("s20", sl_beat[20]), ("s28", sl_beat[28]), ("s36", sl_beat[36]),
                      ("c1", sp(4)), ("c2", sp(8)), ("c4", sp(16))):
            S.put(b, stamp(nm), pre=True)

    pro = []
    if A:
        pro += L("s_lshl_b32 s{t0}, s{i}, 7\ns_add_u32 s{t0}, s{t0}, 1024".format(t0=sT0, i=sI))
        pro += wdma_addr(WQD, 3072, sT0)
        first_w = None
    else:
        pro += L("s_mul_i32 s{t0}, s{q}, 896\ns_lshl_b32 s{t1}, s{ab}, 8\ns_add_u32 s{t0}, s{t0}, s{t1}".format(t0=sT0, t1=sT1, q=sQ, ab=sAB))
        pro += wdma_addr(WGD, 3584, sT0)
    def flat(x):
        o = []
        for y in x: o += y if isinstance(y, list) else [y]
        return o
    for c in range(4):
        pro += flat(item_dma(("x", c))) + flat(item_dma(("w", 0, c)))
        if c == 0: pro += clear_store(A)
    pro += stamp("iss")
    pro += common_setup()
    if A:
        pro += L("s_mul_i32 s{t0}, s{q}, 896\ns_lshl_b32 s{t1}, s{ab}, 7\ns_add_u32 s{t0}, s{t0}, s{t1}\ns_add_u32 s{t0}, s{t0}, 512".format(t0=sT0, t1=sT1, q=sQ, ab=sAB))
        pro += wdma_addr(WGD, 3584, sT0)
        pro += L("""
        s_mul_i32 s{t0}, s{q}, 896
        s_lshl_b32 s{t1}, s{ab}, 6
        s_add_u32 s{t0}, s{t0}, s{t1}
        s_add_u32 s{t0}, s{t0}, 768
        s_mul_i32 s{t1}, s{wv}, {w}
        s_add_u32 s{t0}, s{t0}, s{t1}
        v_lshrrev_b32 v{a}, 2, v{L}
        v_mul_u32_u24 v{a}, 3584, v{a}
        v_and_b32 v{b}, 3, v{L}
        v_lshl_add_u32 v{a}, v{b}, 4, v{a}
        v_add_u32 v{d}, s{t0}, v{a}
        """.format(t0=sT0, t1=sT1, q=sQ, ab=sAB, wv=sWV, w=16 * 3584, a=TMP, b=TMP + 1, d=WHD, L=vL))
        pro += flat(addr_wfull(WR1, 2, True, True)) + flat(addr_cs(True)) + att_setup()
    else:
        pro += L("s_lshl_b32 s{t0}, s{i}, 7".format(t0=sT0, i=sI))
        pro += wdma_addr(WQD, 3072, sT0)
        pro += flat(addr_wfull(WR1, 2, False, False)) + flat(addr_cs(False)) + o_setup()
    pro += wphi_setup(A)
    pro += [Wait("lgkm0"), Wait("x0"), Wait("w0_0"), I("s_barrier")]
    pro += stamp("data")
    pro += x_reads(0) + w_reads(0, 0) + w_reads(0, 1)

    tail = []
    for tb in range(2):
        for cb in range(2):
            for r4 in range(4):
                tail += L("ds_write_b128 v%d, %s offset:%d" % (r4, vr(ACC2[2 * cb + tb] + 4 * r4, 4), 128 * cb + 4 * PITCH * tb))
    tail += [Wait("lgkm0"), I("s_barrier")]
    for i in range(2):
        for e in range(2):
            for w in range(4):
                tail += L("ds_read_b128 %s, v%d offset:%d" % (vr(16 + 32 * i + 16 * e + 4 * w, 4), 4 + e, 2048 * w + PITCH * i))
    for i in range(2):
        for e in range(2):
            b = 16 + 32 * i + 16 * e
            for j in range(4):
                x = RES + 4 * i + 2 * e + j // 2
                tail += L("v_add_f32 v%d, v%d, v%d\nv_add_f32 v%d, v%d, v%d" % (b + j, b + j, b + 4 + j, b + 8 + j, b + 8 + j, b + 12 + j))
                tail += L(("v_and_b32 v%d, 0xffff0000, v%d" if j & 1 else "v_lshlrev_b32 v%d, 16, v%d") % (b + 4 + j, x))
                tail += L("v_add_f32 v%d, v%d, v%d\nv_add_f32 v%d, v%d, v%d" % (b + j, b + j, b + 8 + j, b + j, b + j, b + 4 + j))
            tail += L("v_cvt_pk_bf16_f32 v%d, v%d, v%d\nv_cvt_pk_bf16_f32 v%d, v%d, v%d" % (8 + 4 * i + 2 * e, b, b + 1, 9 + 4 * i + 2 * e, b + 2, b + 3))
        tail += L("s_mov_b32 s%d, %d\nbuffer_store_dwordx4 %s, v%d, %s, s%d offen" % (sT1, 8192 * i, vr(8 + 4 * i, 4), vOUT, srd(SOUT), sT1))
    if cfg.stamps:
        tail += stamp("end")
        tail += L("""
        s_memrealtime s[{a}:{b}]
        v_writelane_b32 v{st}, s{a}, 1
        s_lshl_b32 s{t0}, s2, 2
        s_add_u32 s{t0}, s{t0}, s{wv}
        s_lshl_b32 s{t0}, s{t0}, 8
        s_add_u32 s{t0}, s{t0}, {o}
        v_lshl_add_u32 v0, v{L}, 2, s{t0}
        buffer_store_dword v{st}, v0, {sr}, 0 offen
        """.format(a=sST, b=sST + 1, st=vSTAMP, t0=sT0, wv=sWV, o=WS_ST, L=vL, sr=srd(SW)))
    tail += L("s_endpgm")
    est = sum(max(bt["period"], S.load(i)) for i, bt in enumerate(S.beats[:sl_beat[0]]))
    print("  P1 issue-model cycles:", est, " P2:", sum(max(32, S.load(i)) for i in range(sl_beat[0], sl_beat[36])))
    return pro + S.flat() + tail

def wdma_addr(dst, stride, scol):
    return L("""
    s_mul_i32 s{t1}, s{wv}, {w}
    s_add_u32 s{t1}, s{t1}, s{c}
    v_lshrrev_b32 v{a}, 3, v{L}
    v_mul_u32_u24 v{a}, {st}, v{a}
    v_bfe_u32 v{b}, v{L}, 4, 1
    v_lshlrev_b32 v{b}, 2, v{b}
    v_xor_b32 v{b}, v{b}, v{L}
    v_and_b32 v{b}, 7, v{b}
    v_lshl_add_u32 v{a}, v{b}, 4, v{a}
    v_add_u32 v{d}, s{t1}, v{a}
    v_add_u32 v{d1}, {nx}, v{d}
    """.format(t1=sT1, wv=sWV, w=16 * stride, c=scol, a=TMP, b=TMP + 1, L=vL, st=stride, d=dst, d1=dst + 1, nx=8 * stride - 1024))

def clear_store(A):
    a, b, z = TMP + 4, TMP + 5, TMP + 6
    s = """
    s_lshl_b32 s{t0}, s{rb}, 1
    s_add_u32 s{t0}, s{t0}, s{th}
    s_lshl_b32 s{t1}, s{t0}, 2
    s_add_u32 s{t1}, s{t1}, s{q}
    s_lshl_b32 s{t1}, s{t1}, 4
    s_add_u32 s{t1}, s{t1}, s{t4}
    s_lshl_b32 s{t1}, s{t1}, 1
    s_add_u32 s{t1}, s{t1}, s{gr}
    s_lshl_b32 s{t1}, s{t1}, 2
    s_add_u32 s{t1}, s{t1}, {fl}
    v_mov_b32 v{f}, {oob}
    v_writelane_b32 v{f}, s{t1}, 0
    s_lshl_b32 s{sp}, s2, 2
    s_add_u32 s{sp}, s{sp}, s{wv}
    s_lshl_b32 s{sp}, s{sp}, 7
    s_add_u32 s{sp}, s{sp}, {kva}
    v_and_b32 v{a}, 31, v{L}
    v_lshl_add_u32 v{a}, v{a}, 2, s{sp}
    v_writelane_b32 v{a}, s{t1}, 32
    """.format(t0=sT0, t1=sT1, rb=sRB, th=sTH, q=sQ, t4=sT4, gr=sGR, fl=WS_FL, f=vFLG, oob=OOB, sp=sSPIN, wv=sWV, kva=WS_KVA, a=a, L=vL)
    if A:
        s += """
        s_lshl_b32 s{t1}, s{i}, 1
        s_add_u32 s{t1}, s{t1}, s{gr}
        s_lshl_b32 s{t1}, s{t1}, 5
        s_add_u32 s{t1}, s{t1}, s{t0}
        s_lshl_b32 s{t1}, s{t1}, 2
        s_add_u32 s{t1}, s{t1}, {kf}
        v_mov_b32 v{f}, {oob}
        v_writelane_b32 v{f}, s{t1}, 0
        v_writelane_b32 v{a}, s{t1}, 33
        """.format(t0=sT0, t1=sT1, i=sI, gr=sGR, kf=WS_KF, f=vKFL, oob=OOB, a=a)
    s += "v_mov_b32 v%d, 0\nbuffer_store_dword v%d, v%d, %s, 0 offen sc1\n" % (z, z, a, srd(SW))
    return L(s)

def common_setup():
    a, b, c = TMP, TMP + 1, TMP + 2
    s = """
    v_lshrrev_b32 v{a}, 5, v{L}
    v_bfe_u32 v{b}, v{L}, 1, 3
    v_xor_b32 v{a}, v{a}, v{b}
    v_lshlrev_b32 v{a}, 4, v{a}
    v_and_b32 v{b}, 31, v{L}
    v_lshl_add_u32 v{a}, v{b}, 7, v{a}
    s_lshl_b32 s{t0}, s{s}, 6
    v_xor_b32 v{a}, s{t0}, v{a}
    s_mul_i32 s{t1}, s{th}, {P}
    v_add_u32 v{x0}, s{t1}, v{a}
    v_xor_b32 v{b}, 32, v{a}
    v_add_u32 v{x1}, s{t1}, v{b}
    v_xor_b32 v{b}, 64, v{a}
    v_add_u32 v{x2}, s{t1}, v{b}
    v_xor_b32 v{b}, 0x60, v{a}
    v_add_u32 v{x3}, s{t1}, v{b}
    v_and_b32 v{a}, 31, v{L}
    v_mov_b32 v{b}, 0x3f803f80
    v_cmp_eq_u32 vcc, 0, v{a}
    v_cndmask_b32 v{s0}, 0, v{b}, vcc
    v_cmp_eq_u32 vcc, 17, v{a}
    v_cndmask_b32 v{s0}, v{s0}, v{b}, vcc
    v_cmp_eq_u32 vcc, 2, v{a}
    v_cndmask_b32 v{s2}, 0, v{b}, vcc
    v_cmp_eq_u32 vcc, 19, v{a}
    v_cndmask_b32 v{s2}, v{s2}, v{b}, vcc
    """.format(a=a, b=b, L=vL, t0=sT0, t1=sT1, s=sS, th=sTH, P=PITCH, x0=XR, x1=XR + 1, x2=XR + 2, x3=XR + 3, s0=SEL01, s2=SEL23)
    for j in range(1, 4): s += "v_mov_b32 v%d, v%d\nv_mov_b32 v%d, v%d\n" % (SEL01 + j, SEL01, SEL23 + j, SEL23)
    s += """
    v_and_b32 v{a}, 3, v{L}
    v_cmp_eq_u32 s[{m1}:{m1b}], 1, v{a}
    v_cmp_eq_u32 s[{m2}:{m2b}], 2, v{a}
    v_cmp_eq_u32 s[{m3}:{m3b}], 3, v{a}
    v_and_b32 v{a}, 4, v{L}
    v_cmp_eq_u32 s[{mb}:{mbb}], 4, v{a}
    s_mul_i32 s{wd}, s{wv}, {wdv}
    s_lshl_b32 s{wo}, s{wv}, 17
    s_mov_b32 s{l2e}, 0x3fb8aa3b
    s_mov_b32 s{c2}, 0x3b000000
    """.format(a=a, L=vL, m1=sM1, m1b=sM1 + 1, m2=sM2, m2b=sM2 + 1, m3=sM3, m3b=sM3 + 1, mb=sMB, mbb=sMB + 1,
               wd=sWDB, wo=sWOB, wv=sWV, wdv=448 * 1024, l2e=sL2E, c2=sC2)
    s += """
    v_mov_b32 v{z0}, 0
    v_mov_b32 v{z1}, 0
    v_mov_b32 v{z2}, 0
    v_mov_b32 v{z3}, 0
    s_add_u32 s{t0}, s{l1k}, {st}
    v_lshl_add_u32 v{a}, v{L}, 4, s{t0}
    ds_write_b128 v{a}, v[{z0}:{z3}]
    """.format(z0=TMP + 4, z1=TMP + 5, z2=TMP + 6, z3=TMP + 7, t0=sT0, l1k=sL1K, st=STAT, a=a, L=vL)
    s += """
    s_lshl_b32 s{t0}, s{rb}, 1
    s_add_u32 s{t0}, s{t0}, s{th}
    s_mul_i32 s{t0}, s{t0}, 144
    s_mul_i32 s{t1}, s{q}, 36
    s_add_u32 s{t0}, s{t0}, s{t1}
    s_lshl_b32 s{t1}, s{ab}, 2
    s_add_u32 s{t0}, s{t0}, s{t1}
    s_lshl_b32 s{t1}, s{gr}, 1
    s_add_u32 s{t0}, s{t0}, s{t1}
    s_lshl_b32 s{t0}, s{t0}, 11
    v_lshl_add_u32 v{h}, v{L}, 4, s{t0}
    v_lshrrev_b32 v{a}, 3, v{L}
    v_lshlrev_b32 v{a}, 10, v{a}
    v_bfe_u32 v{b}, v{L}, 4, 1
    v_lshlrev_b32 v{b}, 2, v{b}
    v_xor_b32 v{b}, v{b}, v{L}
    v_and_b32 v{b}, 7, v{b}
    v_lshl_add_u32 v{a}, v{b}, 4, v{a}
    s_lshl_b32 s{t0}, s{ct}, 7
    v_add_u32 v{w}, s{t0}, v{a}
    v_add_u32 v{w1}, 7168, v{w}
    s_and_b32 s{t0}, s2, 63
    s_lshl_b32 s{t0}, s{t0}, 2
    s_cmp_eq_u32 s{wv}, 0
    s_cselect_b32 s{t0}, s{t0}, {oob}
    v_mov_b32 v{hs}, {oob}
    v_writelane_b32 v{hs}, s{t0}, 0
    """.format(t0=sT0, t1=sT1, rb=sRB, th=sTH, q=sQ, ab=sAB, gr=sGR, h=vHST, L=vL, a=a, b=b, ct=sCT, w=W2D, w1=W2D + 1, wv=sWV, oob=OOB, hs=TMP + 13)
    return L(s)

def att_setup():
    a, b, c = TMP, TMP + 1, TMP + 2
    s = """
    s_mul_i32 s{t0}, s{wv}, {wsz}
    s_add_u32 s{t0}, s{t0}, {wreg}
    v_and_b32 v{a}, 31, v{L}
    v_lshrrev_b32 v{b}, 5, v{L}
    v_mul_u32_u24 v{c}, 72, v{a}
    v_lshl_add_u32 v{c}, v{b}, 3, v{c}
    v_add_u32 v{pw}, s{t0}, v{c}
    v_mul_u32_u24 v{c}, 104, v{a}
    v_lshl_add_u32 v{c}, v{b}, 3, v{c}
    s_add_u32 s{t1}, s{t0}, {voff}
    v_add_u32 v{vw}, s{t1}, v{c}
    v_lshl_add_u32 v{c}, v{b}, 3, v{vw}
    v_mov_b32 v{o0}, 0x3f803f80
    v_mov_b32 v{o1}, 0x3f803f80
    ds_write_b64 v{c}, v[{o0}:{o1}] offset:64
    ds_write_b64 v{c}, v[{o0}:{o1}] offset:72
    v_bfe_u32 v{a}, v{L}, 2, 2
    v_lshl_add_u32 v{a}, v{b}, 3, v{a}
    v_and_b32 v{b}, 3, v{L}
    v_mul_u32_u24 v{c}, 72, v{a}
    v_lshl_add_u32 v{c}, v{b}, 3, v{c}
    v_bfe_u32 v{o0}, v{L}, 4, 1
    v_lshl_add_u32 v{c}, v{o0}, 5, v{c}
    v_add_u32 v{pr}, s{t0}, v{c}
    v_mul_u32_u24 v{c}, 104, v{a}
    v_lshl_add_u32 v{c}, v{b}, 3, v{c}
    v_add_u32 v{c}, s{t1}, v{c}
    v_lshl_add_u32 v{v0}, v{o0}, 6, v{c}
    v_add_u32 v{o0}, 1, v{o0}
    v_lshl_add_u32 v{v1}, v{o0}, 5, v{c}
    v_lshl_add_u32 v{exw}, v{L}, 4, s{t0}
    s_xor_b32 s{t1}, s{wv}, 1
    s_mul_i32 s{t1}, s{t1}, {wsz}
    s_add_u32 s{t1}, s{t1}, {wreg}
    v_lshl_add_u32 v{exr}, v{L}, 4, s{t1}
    s_lshl_b32 s{t0}, s{i}, 2
    s_lshl_b32 s{t1}, s{gr}, 1
    s_add_u32 s{t0}, s{t0}, s{t1}
    s_add_u32 s{t0}, s{t0}, s{th}
    s_lshl_b32 s{t0}, s{t0}, 12
    s_add_u32 s{t0}, s{t0}, {kva}
    """.format(t0=sT0, t1=sT1, wv=sWV, wsz=WREG_SZ, wreg=WREG, a=a, b=b, c=c, L=vL, pw=vPW, vw=vVW, voff=VOFF, o0=TMP + 8, o1=TMP + 9,
               pr=vPR, v0=vVR0, v1=vVR1, exw=vEXW, exr=vEXR, i=sI, gr=sGR, th=sTH, kva=WS_KVA)
    s += kv_lane_addr(vKVA, True)
    return L(s)

def kv_lane_addr(dst, mask):
    a, b, c = TMP, TMP + 1, TMP + 2
    s = """
    v_and_b32 v{a}, 31, v{L}
    v_lshrrev_b32 v{b}, 5, v{L}
    v_lshl_add_u32 v{c}, v{b}, 4, v{a}
    v_add_u32 v{b}, 32, v{b}
    v_cmp_gt_u32 vcc, 16, v{a}
    v_cndmask_b32 v{c}, v{b}, v{c}, vcc
    v_lshl_add_u32 v{d}, v{c}, 2, s{t0}
    """.format(a=a, b=b, c=c, L=vL, d=dst, t0=sT0)
    if mask:
        s += "v_mov_b32 v{b}, {oob}\nv_cmp_gt_u32 vcc, 17, v{a}\nv_cndmask_b32 v{d}, v{b}, v{d}, vcc\n".format(a=a, b=b, d=dst, oob=OOB)
    return s

def o_setup():
    s = """
    s_lshl_b32 s{t0}, s{i}, 1
    s_add_u32 s{t0}, s{t0}, s{gr}
    s_lshl_b32 s{t1}, s{t0}, 7
    s_add_u32 s{t1}, s{t1}, {kf}
    v_and_b32 v{a}, 31, v{L}
    v_lshl_add_u32 v{kp}, v{a}, 2, s{t1}
    s_lshl_b32 s{t0}, s{t0}, 13
    s_add_u32 s{t0}, s{t0}, {kva}
    """.format(t0=sT0, t1=sT1, i=sI, gr=sGR, kf=WS_KF, a=TMP, L=vL, kp=vKPL, kva=WS_KVA)
    return L(s + kv_lane_addr(vKVL, False))

def wphi_setup(A):
    a, b = TMP, TMP + 1; t = 64 + 16
    s = """
    s_lshl_b32 s{t0}, s{i}, 2
    s_lshl_b32 s{t1}, s{gr}, 1
    s_add_u32 s{t0}, s{t0}, s{t1}
    s_lshl_b32 s{t0}, s{t0}, 9
    v_bfe_u32 v{a}, v{L}, 4, 1
    """.format(t0=sT0, t1=sT1, i=sI, gr=sGR, a=a, L=vL)
    if A: s += "v_xor_b32 v%d, s%d, v%d\n" % (a, sTH, a)
    s += """
    v_lshlrev_b32 v{a}, 9, v{a}
    v_lshrrev_b32 v{b}, 5, v{L}
    v_lshl_add_u32 v{a}, v{b}, 7, v{a}
    v_and_b32 v{b}, 15, v{L}
    v_lshl_add_u32 v{a}, v{b}, 1, v{a}
    v_add_u32 v{a}, s{t0}, v{a}
    """.format(a=a, b=b, L=vL, t0=sT0)
    for j in range(8):
        s += "buffer_load_ushort v%d, v%d, %s, 0 offen offset:%d\n" % (t + j, a, srd(SPHI), 32 * ((j & 3) + 8 * (j >> 2)))
    return L(s)

def wphi_finish():
    t = 64 + 16
    out = L("v_and_b32 v%d, 16, v%d\nv_cmp_eq_u32 vcc, 0, v%d" % (TMP + 8, vL, TMP + 8))
    g = []
    for j in range(4):
        g += L("v_lshl_or_b32 v{x}, v{y}, 16, v{x}\nv_cndmask_b32 v{a0}, 0, v{x}, vcc\nv_cndmask_b32 v{a1}, v{x}, 0, vcc".format(x=t + 2 * j, y=t + 2 * j + 1, a0=WPHI + j, a1=WPHI + 4 + j))
    return out + g

def entry():
    s = """
    s_cmp_ge_u32 s2, 256
    s_cbranch_scc1 L_exit
    """
    for reg, off in ((SX, 0), (SQ, 8), (SG, 40), (SU, 48), (SW, 80), (SPHI, 16), (SO, 24), (SD, 56), (SOUT, 64), (SDBG, 72)):
        s += "s_load_dwordx2 s[%d:%d], s[0:1], %d\n" % (reg, reg + 1, off)
    if cfg.stamps:
        s += "s_memrealtime s[%d:%d]\nv_mov_b32 v%d, 0\n" % (sST, sST + 1, vSTAMP)
    s += """
    v_lshrrev_b32 v1, 6, v0
    v_and_b32 v{L}, 63, v0
    v_readfirstlane_b32 s{wv}, v1
    s_and_b32 s{xcd}, s2, 7
    s_lshr_b32 s{idx}, s2, 3
    s_and_b32 s{rb}, s{xcd}, 1
    s_lshl_b32 s{rb}, s{rb}, 3
    s_and_b32 s{t0}, s{idx}, 7
    s_add_u32 s{rb}, s{rb}, s{t0}
    s_lshr_b32 s{q}, s{xcd}, 1
    s_lshr_b32 s{t4}, s{idx}, 3
    s_and_b32 s{ab}, s{t4}, 1
    s_lshl_b32 s{i}, s{q}, 1
    s_add_u32 s{i}, s{i}, s{ab}
    s_lshl_b32 s{t1}, s{t4}, 1
    s_add_u32 s{t0}, s{t0}, s{t1}
    s_and_b32 s{th}, s{wv}, 1
    s_lshr_b32 s{gr}, s{wv}, 1
    s_xor_b32 s{s}, s{th}, s{gr}
    s_lshl_b32 s{l2k}, s{wv}, 11
    s_lshl_b32 s{l1k}, s{wv}, 10
    s_mul_i32 s{lx}, s{gr}, {P}
    s_lshl_b32 s{t1}, s{th}, 12
    s_add_u32 s{lx}, s{lx}, s{t1}
    """.format(L=vL, wv=sWV, xcd=sXCD, idx=sIDX, rb=sRB, t0=sT0, t1=sT1, q=sQ, t4=sT4, ab=sAB, i=sI, th=sTH, gr=sGR, s=sS, l2k=sL2K, l1k=sL1K, lx=sLX, P=PITCH)
    if not cfg.rot: s += "s_mov_b32 s%d, 0\n" % sT0
    for c in range(8):
        s += "s_add_u32 s{t1}, s{t0}, {c}\ns_and_b32 s{t1}, s{t1}, 7\ns_lshl_b32 s{kx}, s{t1}, 7\ns_mul_i32 s{kq}, s{t1}, {a}\ns_mul_i32 s{kg}, s{t1}, {b}\n".format(
            t0=sT0, t1=sT1, c=c, kx=sKX + c, kq=sKQ + c, kg=sKG + c, a=64 * 3072, b=64 * 3584)
    s += """
    s_lshl_b32 s{t0}, s{rb}, 2
    s_add_u32 s{t0}, s{t0}, s{wv}
    s_lshl_b32 s{t0}, s{t0}, 15
    v_lshrrev_b32 v2, 3, v{L}
    v_lshlrev_b32 v2, 10, v2
    v_add_u32 v2, s{t0}, v2
    v_lshrrev_b32 v3, 4, v{L}
    v_xor_b32 v3, v3, v{L}
    v_and_b32 v3, 7, v3
    v_lshl_add_u32 v{x0}, v3, 4, v2
    v_add_u32 v{x2}, {d2}, v{x0}
    v_xor_b32 v3, 4, v3
    v_lshl_add_u32 v{x1}, v3, 4, v2
    v_add_u32 v{x1}, 7168, v{x1}
    v_add_u32 v{x3}, {d2}, v{x1}
    s_lshl_b32 s{tt}, s{xcd}, 2
    s_and_b32 s{t0}, s{idx}, 3
    s_add_u32 s{tt}, s{tt}, s{t0}
    s_lshr_b32 s{ct}, s{idx}, 2
    """.format(t0=sT0, rb=sRB, wv=sWV, L=vL, x0=XD, x1=XD + 1, x2=XD + 2, x3=XD + 3, d2=2 * 7168, tt=sTT, xcd=sXCD, idx=sIDX, ct=sCT)
    for reg, sz in ((SX, 0x200000), (SQ, 0x180000), (SG, 0x1C0000), (SU, 0x1C0000), (SD, 0x1C0000), (SO, 0x80000), (SW, 0x10000000), (SOUT, 0x200000), (SDBG, 256), (SPHI, 16384)):
        s += "s_mov_b32 s%d, 0x%x\ns_mov_b32 s%d, 0x20000\n" % (reg + 2, sz, reg + 3)
    s += "s_waitcnt lgkmcnt(0)\n"
    if cfg.stamps: s += "v_writelane_b32 v%d, s%d, 0\n" % (vSTAMP, sST)
    s += "s_cmp_ge_u32 s%d, 2\ns_cbranch_scc1 L_typeB\n" % sT4
    ins = L(s)
    for x in ins:
        if x.kind == "smem": x.nowait = True
    return ins

def defaults():
    cfg.p2period = 72
    cfg.a_att = 26; cfg.a_kvflag = 40; cfg.a_h1 = 24; cfg.a_h2 = 8
    cfg.b_h0 = 26; cfg.b_att = 30; cfg.b_h3 = 12; cfg.b_kvlat = 6; cfg.b_o = 8
    cfg.flag_delay = 24; cfg.flag_delay2 = 10
    cfg.a_p0 = 16; cfg.b_p0 = 24
    cfg.lead = [0, 3, 3, 3, 3]; cfg.poll_lead = 4; cfg.hstep = 2

def generate(path):
    label_n[0] = 0
    e, _ = pad_hazards(entry())
    progs = {}
    for typ in "AB":
        p = build_type(typ)
        k = [i for i, x in enumerate(p) if getattr(x, "kind", "") == "barrier"]
        ins = wphi_finish()
        p = p[:k[4] + 1] + ins + p[k[4] + 1:]
        if typ == "A":
            k = [i for i, x in enumerate(p) if getattr(x, "kind", "") == "barrier"]
            c2 = L("s_lshl_b32 s{t0}, s{ab}, 1\ns_add_u32 s{t0}, s{t0}, s{gr}\ns_sub_u32 s{kx}, 16, s{t0}\ns_lshl_b32 s{kx}, s{kx}, 11".format(t0=sSPIN, ab=sAB, gr=sGR, kx=sKX))
            p = p[:k[10] + 1] + c2 + p[k[10] + 1:]
        progs[typ] = finalize(p, typ)
    body = emit(e) + emit(progs["A"]) + "L_typeB:\n" + emit(progs["B"]) + "L_exit:\n    s_endpgm\n"
    ref = open("parallel_sum__linear_kernel_hedgehog__glu_gated_bilinear__prompt.s.ref").read().split("\n")
    head = [x for x in ref if x.startswith(";") and "@launch" not in x and "Override" not in x and "grid=ceil" not in x]
    txt = "\n".join(head) + "\n; @launch grid=(256,1,1) block=(256,1,1) lds=%d\n" % LDS_BYTES
    txt += """.amdgcn_target "amdgcn-amd-amdhsa--gfx950"
.text
.globl {k}
.p2align 8
.type {k},@function
{k}:
""".format(k=KNAME) + body + """.section .rodata,"a"
.p2align 6
.amdhsa_kernel {k}
  .amdhsa_next_free_vgpr 512
  .amdhsa_next_free_sgpr 102
  .amdhsa_accum_offset 256
  .amdhsa_group_segment_fixed_size 0
  .amdhsa_kernarg_size 88
  .amdhsa_user_sgpr_count 2
  .amdhsa_user_sgpr_kernarg_segment_ptr 1
  .amdhsa_system_sgpr_workgroup_id_x 1
.end_amdhsa_kernel
""".format(k=KNAME)
    open(path, "w").write(txt)
    if cfg.stamps: open(path[:-2] + ".names", "w").write("\n".join(stamp_names))

if __name__ == "__main__":
    defaults()
    path = sys.argv[1]
    for kv in sys.argv[2:]:
        k, v = kv.split("=")
        setattr(cfg, k, eval(v))
    generate(path)
```

```python
import re

TRANS = ("v_exp_f32", "v_log_f32", "v_rcp_f32", "v_rsq_f32", "v_sqrt_f32")


def regs_of(tok):
    tok = tok.strip()
    neg = tok.lstrip("-")
    if neg.startswith("abs(") or neg.startswith("|"):
        neg = neg.replace("abs(", "").replace(")", "").replace("|", "")
    m = re.fullmatch(r"([vas])\[(\d+):(\d+)\]", neg)
    if m:
        return [m.group(1) + str(i) for i in range(int(m.group(2)), int(m.group(3)) + 1)]
    m = re.fullmatch(r"([vas])(\d+)", neg)
    if m:
        return [neg]
    if neg in ("vcc", "exec", "m0", "scc"):
        return [neg]
    return []


class I:
    def __init__(self, text, tag=None):
        self.text = text.strip()
        self.tag = tag
        self.rd, self.wr = [], []
        self.kind = None
        self.passes = 0
        self.srcc = []
        self.parse()

    def parse(self):
        t = self.text
        if t.endswith(":"):
            self.kind = "label"; self.cost = 0; self.op = "label"; return
        parts = t.split(None, 1)
        op = parts[0]
        self.op = op
        rest = parts[1] if len(parts) > 1 else ""
        ops = [o.strip() for o in rest.split(",")] if rest else []
        if ops:
            last = ops[-1].split()
            mods = last[1:]
            ops[-1] = last[0]
        else:
            mods = []
        self.mods = mods
        R = lambda k: [r for o in ops[k:] for r in regs_of(o)]
        self.cost = 4
        if op.startswith("v_mfma"):
            self.kind = "mfma"
            self.wr = regs_of(ops[0]); self.srca = regs_of(ops[1]); self.srcb = regs_of(ops[2]); self.srcc = regs_of(ops[3])
            self.rd = self.srca + self.srcb + self.srcc
            self.passes = 8 if "32x32x16" in op else 4 if "16x16x32" in op else 2
            self.cost = 8
        elif op.startswith("ds_read"):
            self.kind = "ds"; self.wr = regs_of(ops[0]); self.rd = R(1)
        elif op.startswith("ds_"):
            self.kind = "ds"; self.rd = R(0)
        elif op.startswith("buffer_load") and "lds" in mods:
            self.kind = "vm"; self.rd = R(0) + ["m0"]; self.dma = True
        elif op.startswith("buffer_load") or op.startswith("global_load"):
            self.kind = "vm"; self.wr = regs_of(ops[0]); self.rd = R(1)
        elif op.startswith("buffer_store") or op.startswith("buffer_atomic"):
            self.kind = "vm"; self.rd = R(0); self.data = regs_of(ops[0])
        elif op.startswith("s_load") or op in ("s_memtime", "s_memrealtime"):
            self.kind = "smem"; self.wr = regs_of(ops[0]); self.rd = R(1)
        elif op in ("s_waitcnt", "s_barrier", "s_nop", "s_endpgm", "s_sleep", "s_setprio"):
            self.kind = op[2:]
        elif op.startswith("s_cbranch") or op == "s_branch":
            self.kind = "branch"
            if "scc" in op: self.rd = ["scc"]
            if "vcc" in op: self.rd = ["vcc"]
            if "exec" in op: self.rd = ["exec"]
        elif op.startswith("s_cmp"):
            self.kind = "salu"; self.rd = R(0); self.wr = ["scc"]
        elif op.startswith("s_"):
            self.kind = "salu"; self.wr = regs_of(ops[0]); self.rd = R(1)
            if not op.startswith(("s_mov", "s_mul_i32", "s_getpc", "s_getreg", "s_cselect")): self.wr = self.wr + ["scc"]
            if op.startswith("s_cselect") or op.startswith("s_addc"): self.rd = self.rd + ["scc"]
        elif op.startswith("v_"):
            self.kind = "valu"
            self.wr = regs_of(ops[0]); self.rd = R(1)
            if op.startswith(("v_fmac", "v_dot2c", "v_writelane")): self.rd = self.rd + self.wr
            if op.startswith("v_permlane"):
                self.wr = regs_of(ops[0]) + regs_of(ops[1]); self.rd = list(self.wr)
            if op.split("_e")[0] in TRANS or op in TRANS:
                self.trans = True; self.cost = 8
        else:
            raise ValueError("cannot parse: " + t)

    def __repr__(self):
        return self.text


class Wait:
    def __init__(self, tag):
        self.tag = tag; self.cost = 2; self.kind = "pseudo_wait"


class Gap:
    def __init__(self, n):
        self.n = n


class Raw:
    def __init__(self, lines, rd=(), wr=()):
        self.lines = lines; self.kind = "raw"; self.cost = 4 * len(lines); self.rd = list(rd); self.wr = list(wr)


def L(text, tag=None):
    out = []
    for x in text.strip("\n").split("\n"):
        x = x.split(";")[0].strip()
        if x: out.append(I(x))
    if tag is not None: out[-1].tag = tag
    return out


class Sched:
    def __init__(self):
        self.beats = []

    def beat(self, main, period=32):
        self.beats.append(dict(pre=[], main=main, post=[], period=period))
        return len(self.beats) - 1

    @staticmethod
    def _cost(item):
        if isinstance(item, list): return sum(x.cost for x in item)
        return item.cost

    def load(self, b):
        bt = self.beats[b]
        return sum(self._cost(x) for x in bt["pre"] + bt["post"]) + (bt["main"].cost if bt["main"] is not None else 0)

    def put(self, b, item, pre=False):
        self.beats[b]["pre" if pre else "post"].append(item)

    def spread(self, items, b0, b1, name=""):
        n = b1 - b0
        total = sum(self._cost(x) for x in items if not isinstance(x, Gap))
        gaps = sum(x.n for x in items if isinstance(x, Gap))
        loads = [self.load(b) - self.beats[b]["period"] for b in range(b0, b1)]
        lo, hi = -64.0, 4096.0
        def run(level, place):
            b = 0; room = level - loads[0]
            last = 0
            for it in items:
                if isinstance(it, Gap):
                    b += it.n
                    if b >= n: b = n - 1; room = 0 if not place else room
                    room = level - loads[b]
                    continue
                c = self._cost(it)
                while room < c * 0.5 and b < n - 1:
                    b += 1; room = min(room, 0) * 0 + level - loads[b]
                if room < c * 0.5 and not place: return None
                if place: self.put(b0 + b, it)
                room -= c; last = b
            return last
        for _ in range(30):
            mid = (lo + hi) / 2
            if run(mid, False) is None: lo = mid
            else: hi = mid
        last = run(hi, True)
        if name: print("  spread %-10s cost %5d over beats %d..%d level %+.0f last %d" % (name, total, b0, b1, hi, b0 + last))
        return b0 + last

    def flat(self):
        out = []
        def add(x):
            if isinstance(x, list): out.extend(x)
            else: out.append(x)
        for bt in self.beats:
            for x in bt["pre"]: add(x)
            if bt["main"] is not None: add(bt["main"])
            for x in bt["post"]: add(x)
        return out


LOOSE = False
def insert_waits(prog):
    out = []
    vm_seq = 0; vm_done = 0
    ds_seq = 0; ds_done = 0
    pend = {}
    tags = {}
    sm_out = False
    maxvm = 0

    def need(kind, seq, w):
        if kind == "vm" and seq > vm_done: w["vm"] = max(w.get("vm", 0), seq)
        if kind == "ds" and seq > ds_done: w["ds"] = max(w.get("ds", 0), seq)
        if kind == "sm": w["sm"] = 1

    for ins in prog:
        w = {}
        if isinstance(ins, Wait):
            if ins.tag == "lgkm0": need("ds", ds_seq, w)
            elif ins.tag == "vm0": need("vm", vm_seq, w)
            else:
                if ins.tag in tags:
                    k, s = tags[ins.tag]; need(k, s, w)
                else: assert LOOSE, ins.tag
        else:
            for r in list(ins.rd) + list(ins.wr):
                if r in pend: need(pend[r][0], pend[r][1], w)
        if w:
            parts = []
            if "vm" in w:
                n = min(vm_seq - w["vm"], 63); parts.append("vmcnt(%d)" % n); vm_done = vm_seq - n
            if "sm" in w:
                parts.append("lgkmcnt(0)"); ds_done = ds_seq; sm_out = False
                for r in [r for r, v in pend.items() if v[0] == "sm"]: del pend[r]
            elif "ds" in w:
                n = min(ds_seq - w["ds"], 15); parts.append("lgkmcnt(%d)" % n); ds_done = ds_seq - n
            out.append(I("s_waitcnt " + " ".join(parts)))
            for r in [r for r, v in pend.items() if (v[0] == "vm" and v[1] <= vm_done) or (v[0] == "ds" and v[1] <= ds_done)]: del pend[r]
        if isinstance(ins, Wait): continue
        out.append(ins)
        if ins.kind == "vm":
            vm_seq += 1
            for r in ins.wr: pend[r] = ("vm", vm_seq)
            if ins.tag: tags[ins.tag] = ("vm", vm_seq)
            maxvm = max(maxvm, vm_seq - vm_done)
        elif ins.kind == "ds":
            ds_seq += 1
            for r in ins.wr: pend[r] = ("ds", ds_seq)
            if ins.tag: tags[ins.tag] = ("ds", ds_seq)
        elif ins.kind == "smem":
            if not getattr(ins, "nowait", False):
                for r in ins.wr: pend[r] = ("sm", 0)
    return out, maxvm


def states(ins):
    if ins.kind == "label": return 0
    if ins.kind == "nop": return int(ins.text.split()[1]) + 1
    if ins.kind == "raw": return 1
    return 1


def pad_hazards(prog):
    out = []
    nn = 0
    for ins in prog:
        needn = 0
        if ins.kind not in ("label", "nop", "waitcnt", "barrier"):
            rd = set(ins.rd); wr = set(ins.wr)
            dist = 0
            for p in reversed(out):
                if dist >= 20: break
                req = 0
                pw = set(p.wr) if p.kind not in ("label", "nop", "waitcnt", "barrier") else set()
                if p.kind == "valu":
                    vw = {r for r in pw if r[0] in "va" and r != "vcc"}
                    sw = pw - vw
                    if ins.kind == "mfma" and vw & rd: req = max(req, 2)
                    if ins.kind == "valu" and ins.op.startswith("v_permlane") and vw & rd: req = max(req, 2)
                    if ins.kind == "valu" and ins.op.startswith(("v_readfirstlane", "v_readlane")) and vw & rd: req = max(req, 1)
                    if getattr(p, "trans", False) and vw & rd: req = max(req, 1)
                    if "sdwa" in p.op and vw & (rd | wr): req = max(req, 1)
                    if sw & rd:
                        if ins.kind == "valu": req = max(req, 2)
                        elif ins.kind == "vm": req = max(req, 5)
                        elif ins.kind in ("salu", "branch", "raw"): req = max(req, 4)
                elif p.kind == "mfma":
                    k = {2: 0, 4: 1, 8: 2}[p.passes]
                    if ins.kind == "mfma":
                        if pw & set(ins.srcc):
                            if list(p.wr) == list(ins.srcc) and p.passes == ins.passes: req = max(req, [2, 0, 0][k])
                            else: req = max(req, [4, 6, 10][k])
                        if pw & (set(ins.srca) | set(ins.srcb)): req = max(req, [5, 8, 12][k])
                        if pw & wr and not (pw & set(ins.srcc)): req = max(req, [5, 8, 12][k])
                    else:
                        if pw & (rd | wr): req = max(req, [5, 8, 12][k])
                        if set(p.srcc) & wr: req = max(req, [1, 3, 7][k])
                elif p.kind == "salu":
                    if "m0" in pw and ins.kind == "vm" and "m0" in rd: req = max(req, 1)
                elif p.kind in ("vm", "ds"):
                    data = getattr(p, "data", None)
                    if p.kind == "ds" and not p.wr: data = p.rd[1:]
                    if data and len(data) >= 3 and set(data) & wr: req = max(req, 2)
                if req > dist: needn = max(needn, req - dist)
                dist += states(p)
        if needn:
            out.append(I("s_nop %d" % (needn - 1))); nn += needn
        out.append(ins)
    return out, nn


def emit(prog):
    lines = []
    for ins in prog:
        if ins.kind == "raw": lines += ["    " + x if not x.endswith(":") else x for x in ins.lines]
        elif ins.kind == "label": lines.append(ins.text)
        else: lines.append("    " + ins.text)
    return "\n".join(lines) + "\n"


def finalize(prog, name=""):
    p, maxvm = insert_waits(prog)
    p, nn = pad_hazards(p)
    cnt = {}
    for x in p: cnt[x.kind] = cnt.get(x.kind, 0) + 1
    print("  %s: %d instr, max vm in flight %d, nop states %d, %s" % (name, len(p), maxvm, nn, cnt))
    return p
```

```python
import sys
from fw import *

KNAME = "parallel_sum__linear_kernel_hedgehog__glu_gated_bilinear__prompt_kernel"

class Cfg:
    rot = True
    stamps = False
    codepf = False
    spin = 200000
    x_nostat = False; x_notask = False; x_nodma = False; x_nobar = False
cfg = Cfg()

PITCH = 8224
NSLOT = 16
WREG = NSLOT * PITCH
WREG_SZ = 5632
VOFF = 2304
STAT = WREG + 4 * WREG_SZ
CSP = STAT + 2048
CST = CSP + 3072
LDS_BYTES = 163840
WS_H = 0
WS_KVA = 0xA00000
WS_FL = 0xA40000
WS_KF = 0xA50000
WS_ST = 0xB00000
OOB = 0x40000000

SX, SQ, SG, SU, SD, SO, SW, SOUT, SDBG, SPHI = 4, 8, 12, 16, 20, 24, 28, 32, 36, 40
def srd(b): return "s[%d:%d]" % (b, b + 3)
sWV, sTH, sGR, sRB, sQ, sT4, sAB, sI, sTT, sCT, sIDX, sXCD = range(44, 56)
sKX, sKQ, sKG = 56, 64, 72
sLX, sL2K, sL1K, sT0, sT1, sSPIN = 80, 81, 82, 83, 84, 85
sM1, sM2, sM3, sMB = 86, 88, 90, 92
sWDB, sWOB, sC2, sL2E, sS = 94, 95, 96, 97, 3
sST = 98
SET0, SET1, WF = 0, 64, 128
SEL01, SEL23 = 144, 148
vPW, vPR, vVW, vVR0 = 152, 153, 154, 155
CSD = 156
vVR1, vKVA, vKFL, vEXW, vEXR = 160, 161, 162, 163, 164
vKVL, vKPL = 152, 153
vSTAMP = 166
vNM, vRS, vR2 = 168, 170, 172
XR, WR1, WR3, XD, WR2 = 174, 178, 178, 182, 182
W2R = 174
WQD, WGD, WHD = 186, 188, 190
vHLD, vPOL = 186, 187
vCSA, vCSR, vHST, vFLG, vL, W2D = 191, 193, 195, 196, 197, 198
WPHI = 200
KVD = 208
TMP = 240
RSD, SQD = 64, 68
ACC2 = [96, 112, 208, 224]

def vr(b, n=1): return "v%d" % b if n == 1 else "v[%d:%d]" % (b, b + n - 1)
def ar(b, n): return "a[%d:%d]" % (b, b + n - 1)

stamp_names = []
def stamp(name):
    if cfg.stamps != True: return []
    if name not in stamp_names: stamp_names.append(name)
    k = stamp_names.index(name)
    return [I("s_memtime s[%d:%d]" % (sST, sST + 1)), I("v_writelane_b32 v%d, s%d, %d" % (vSTAMP, sST, k + 2))]

def addr_wfull(dst, n, att, swap, t0=TMP):
    a, b = vr(t0), vr(t0 + 1)
    s = """
    v_lshrrev_b32 {a}, 5, v{L}
    v_lshlrev_b32 {a}, 10, {a}
    v_bfe_u32 {b}, v{L}, 2, 2
    v_lshl_add_u32 {a}, {b}, 7, {a}
    v_and_b32 {b}, 3, v{L}
    v_lshl_add_u32 {a}, {b}, 3, {a}
    v_bfe_u32 {b}, v{L}, 3, 1
    v_xor_b32 {b}, s{gr}, {b}
    v_lshl_add_u32 {a}, {b}, 6, {a}
    v_bfe_u32 {b}, v{L}, 4, 1
    """.format(a=a, b=b, L=vL, gr=sGR)
    if att:
        if swap: s += "v_xor_b32 %s, s%d, %s\n" % (b, sTH, b)
        s += "v_lshl_add_u32 %s, %s, 5, %s\n" % (a, b, a)
    else:
        s += "v_mul_u32_u24 %s, %d, %s\nv_add_u32 %s, %s, %s\n" % (b, PITCH, b, a, a, b)
    return L(s) + wr_variants(dst, n, a, 12)

def wr_variants(dst, n, a, sh):
    s = "s_lshl_b32 s%d, s%d, %d\ns_xor_b32 s%d, s%d, %d\n" % (sT0, sS, sh, sT1, sT0, 1 << sh)
    k = dst
    if n == 4:
        s += "v_add_u32 v%d, s%d, %s\nv_add_u32 v%d, s%d, %s\n" % (k, sT0, a, k + 1, sT1, a)
        s += "v_add_u32 v%d, %d, v%d\nv_add_u32 v%d, %d, v%d\n" % (k + 2, 8 * PITCH, k, k + 3, 8 * PITCH, k + 1)
    else:
        s += "v_add_u32 %s, %d, %s\n" % (a, 8 * PITCH, a)
        s += "v_add_u32 v%d, s%d, %s\nv_add_u32 v%d, s%d, %s\n" % (k, sT0, a, k + 1, sT1, a)
    ins = L(s)
    return [ins]

def addr_whalf(dst, t0=TMP):
    a, b = vr(t0), vr(t0 + 1)
    s = """
    v_lshrrev_b32 {a}, 5, v{L}
    v_lshlrev_b32 {a}, 9, {a}
    v_bfe_u32 {b}, v{L}, 2, 2
    v_lshl_add_u32 {a}, {b}, 6, {a}
    v_and_b32 {b}, 3, v{L}
    v_lshl_add_u32 {a}, {b}, 3, {a}
    v_bfe_u32 {b}, v{L}, 4, 1
    v_mul_u32_u24 {b}, 4128, {b}
    v_add_u32 {a}, {a}, {b}
    v_mov_b32 {b}, s{gr}
    v_lshl_add_u32 {a}, {b}, 5, {a}
    """.format(a=a, b=b, L=vL, gr=sGR)
    return L(s) + wr_variants(dst, 4, a, 11)

def addr_cs(swap, t0=TMP):
    a = vr(t0)
    s = "s_lshl_b32 s%d, s%d, 8\ns_lshl_b32 s%d, s%d, 7\ns_add_u32 s%d, s%d, s%d\ns_add_u32 s%d, s%d, %d\n" % (sT0, sGR, sT1, sTH, sT0, sT0, sT1, sT0, sT0, CSP)
    s += "v_and_b32 %s, 31, v%d\n" % (a, vL)
    if swap: s += "s_lshl_b32 s%d, s%d, 4\nv_xor_b32 %s, s%d, %s\n" % (sT1, sTH, a, sT1, a)
    s += """
    v_lshl_add_u32 v{ca}, {a}, 2, s{t}
    v_lshrrev_b32 {a}, 5, v{L}
    v_lshl_add_u32 v{ca}, {a}, 9, v{ca}
    """.format(a=a, L=vL, ca=vCSA, t=sT0)
    return [L(s)]

def addr_cst(t0=TMP):
    a = vr(t0)
    return L("""
    s_mul_i32 s{t}, s{wv}, 768
    s_add_u32 s{t}, s{t}, {cst}
    v_lshl_add_u32 v{cw}, v{L}, 2, s{t}
    v_lshrrev_b32 {a}, 5, v{L}
    v_lshl_add_u32 v{cr}, {a}, 4, s{t}
    """.format(a=a, L=vL, cw=vCSA + 1, cr=vCSR, t=sT0, wv=sWV, cst=CST))

def addr_p2(t0=TMP):
    a, b = vr(t0), vr(t0 + 1)
    s = """
    v_lshrrev_b32 {a}, 5, v{L}
    v_lshlrev_b32 {a}, 9, {a}
    v_bfe_u32 {b}, v{L}, 2, 2
    v_lshl_add_u32 {a}, {b}, 7, {a}
    v_and_b32 {b}, 3, v{L}
    v_lshl_add_u32 {a}, {b}, 3, {a}
    v_bfe_u32 {b}, v{L}, 3, 1
    v_lshl_add_u32 {a}, {b}, 6, {a}
    v_bfe_u32 {b}, v{L}, 4, 1
    v_lshl_add_u32 {a}, {b}, 5, {a}
    v_xor_b32 {b}, 64, {a}
    v_add_u32 v{w0}, s{l2k}, {a}
    v_add_u32 v{w1}, s{l2k}, {b}
    v_add_u32 v{w2}, {hi}, v{w0}
    v_add_u32 v{w3}, {hi}, v{w1}
    """.format(a=a, b=b, L=vL, w0=W2R, w1=W2R + 1, w2=W2R + 2, w3=W2R + 3, l2k=sL2K, hi=8 * PITCH)
    ins = L(s)
    ins.append(L("""
    s_mul_i32 s{t0}, s{tt}, {a}
    s_mul_i32 s{t1}, s{wv}, {b}
    s_add_u32 s{t0}, s{t0}, s{t1}
    v_lshl_add_u32 v{h}, v{L}, 4, s{t0}
    """.format(t0=sT0, t1=sT1, tt=sTT, wv=sWV, a=144 * 2048, b=36 * 2048, h=vHLD, L=vL)))
    ins.append(L("""
    s_lshl_b32 s{t0}, s{tt}, 2
    s_add_u32 s{t0}, s{t0}, s{wv}
    s_lshl_b32 s{t0}, s{t0}, 7
    s_add_u32 s{t0}, s{t0}, {fl}
    v_and_b32 {a}, 7, v{L}
    v_lshl_add_u32 v{p}, {a}, 2, s{t0}
    """.format(t0=sT0, tt=sTT, wv=sWV, fl=WS_FL, a=a, L=vL, p=vPOL)))
    return ins

label_n = [0]
def poll(addr, res, need, sr=SW, cmp="gt"):
    label_n[0] += 1
    k = label_n[0]
    ld = "buffer_load_dword v%d, v%d, %s, 0 offen sc1" % (res, addr, srd(sr))
    c = "v_cmp_%s_u32 vcc, %s, v%d" % (cmp, need, res)
    chk = Raw([c, "s_nop 4", "s_cbranch_vccz L_ok%d" % k,
               "s_mov_b32 s%d, %d" % (sSPIN, cfg.spin),
               "L_re%d:" % k, "s_sleep 1", ld, "s_waitcnt vmcnt(0)", c, "s_sub_u32 s%d, s%d, 1" % (sSPIN, sSPIN),
               "s_cbranch_scc1 L_ok%d" % k, "s_nop 2", "s_cbranch_vccnz L_re%d" % k,
               "L_ok%d:" % k],
              rd=["v%d" % res, "v%d" % addr] + regs_of(need), wr=["vcc", "scc", "s%d" % sSPIN])
    chk.cost = 32
    return I(ld), chk

def class_poll(c, res, needr):
    na, nb = [(0, 1), (1, 1), (2, 1), (2, 2), (2, 3)][c]
    iss, chk = poll(vPOL, res, "v%d" % needr)
    return iss, [I("v_cndmask_b32 v%d, %d, %d, s[%d:%d]" % (needr, na, nb, sMB, sMB + 1)), chk]

def set_flag(level, tag, t):
    return stamp("f%d_0" % level) + [Wait(tag)] + stamp("f%d_1" % level) + [I("v_mov_b32 v%d, %d" % (t, level)), I("buffer_store_dword v%d, v%d, %s, 0 offen sc1" % (t, vFLG, srd(SW)))]

def t_stat_add():
    a, b = TMP, TMP + 1
    s = """
    s_lshl_b32 s{t0}, s{th}, 10
    s_add_u32 s{t0}, s{t0}, {st}
    v_and_b32 v{b}, 31, v{L}
    v_lshl_add_u32 v{b}, v{b}, 4, s{t0}
    s_lshl_b32 s{t1}, s{gr}, 3
    s_add_u32 s{t0}, s{t0}, s{t1}
    v_lshl_add_u32 v{a}, v{L}, 4, s{t0}
    """.format(t0=sT0, t1=sT1, th=sTH, gr=sGR, st=STAT, a=a, b=b, L=vL)
    pre = [L(s)]
    out = []
    for j, m in ((1, sM1), (2, sM2), (3, sM3)):
        for blk in range(2):
            q = SQD + 4 * blk
            out += L("v_cndmask_b32 v%d, v%d, v%d, s[%d:%d]" % (q, q, q + j, m, m + 1))
    out.append(L("v_permlane32_swap_b32 v%d, v%d\nv_add_f32 v%d, v%d, v%d" % (SQD, SQD + 4, RSD + 1, SQD, SQD + 4)))
    out += L("ds_write_b64 v%d, v[%d:%d]" % (a, RSD, RSD + 1))
    return pre, out

def t_cs_add(tile0):
    return L("ds_write_b32 v%d, v%d offset:%d" % (vCSA, CSD, 512 * tile0))

def t_cs_tot(tile0, p):
    t = vCSR + 1
    out = L("v_xor_b32 v%d, 0x80, v%d\nds_read_b32 v%d, v%d offset:%d" % (t, vCSA, t, t, 512 * tile0))
    out.append(Gap(2))
    out += L("v_add_f32 v%d, v%d, v%d\nds_write_b32 v%d, v%d offset:%d" % (t, t, CSD, vCSA + 1, t, 256 * p))
    return out

def t_stat_fin():
    b = TMP + 1; t = TMP + 4
    out = L("ds_read_b128 v[%d:%d], v%d\nds_read_b128 v[%d:%d], v%d offset:512" % (t, t + 3, b, t + 4, t + 7, b))
    out.append(Gap(2))
    for blk in range(2):
        r = t + 4 * blk
        out += L("""
        v_add_f32 v{r}, v{r}, v{r2}
        v_add_f32 v{r1}, v{r1}, v{r3}
        v_mul_f32 v{nm}, 0xbb000000, v{r}
        v_mul_f32 v{r2}, v{nm}, v{nm}
        v_fma_f32 v{r1}, v{r1}, s{c}, -v{r2}
        v_max_f32 v{r1}, 0, v{r1}
        v_add_f32 v{r1}, 0x3727c5ac, v{r1}
        v_rsq_f32 v{rs}, v{r1}
        v_mul_f32 v{rr}, v{rs}, v{rs}
        """.format(nm=vNM + blk, r=r, r1=r + 1, r2=r + 2, r3=r + 3, rs=vRS + blk, rr=vR2 + blk, c=sC2))
    return out

TILE_AT = {}
def cs_reads(tile, dst, r4s):
    out = []
    for k, r4 in enumerate(r4s):
        out += L("ds_read_b128 v[%d:%d], v%d offset:%d" % (dst + 4 * k, dst + 4 * k + 3, vCSR, TILE_AT[tile] + 32 * r4))
    return out

def t_hepi(acc, tile, soff, imm, tag):
    out = cs_reads(tile, TMP, range(4))
    out.append(Gap(2))
    for blk in range(2):
        g = acc + 16 * blk
        for r in range(8 if not cfg.x_notask else 0):
            out += L("v_fmac_f32 v%d, v%d, v%d\nv_fmac_f32 v%d, v%d, v%d" % (g + r, vNM + blk, TMP + r, g + 8 + r, vNM + blk, TMP + 8 + r))
            out += L("v_mul_f32 v%d, v%d, v%d" % (g + r, vR2 + blk, g + r))
            out += L("v_mul_f32 v%d, v%d, v%d" % (g + r, g + r, g + 8 + r))
            if r & 1: out += L("v_cvt_pk_bf16_f32 v%d, v%d, v%d" % (g + r // 2, g + r - 1, g + r))
        st = L("buffer_store_dwordx4 v[%d:%d], v%d, %s, s%d offen offset:%d sc1" % (g, g + 3, vHST, srd(SW), sT1, imm + 1024 * blk), tag=tag if blk else None)
        out.append(L(soff) + st)
    return out

def ln_tile(acc, blk, tile):
    out = []
    for half in range(2):
        out += cs_reads(tile, TMP, (2 * half, 2 * half + 1))
        out.append(Gap(2))
        for r in range(8):
            g = acc + 8 * half + r
            out += L("v_fmac_f32 v%d, v%d, v%d\nv_mul_f32 v%d, v%d, v%d" % (g, vNM + blk, TMP + r, g, vRS + blk, g))
            if r & 1: out += L("v_cvt_pk_bf16_f32 v%d, v%d, v%d" % (acc + 4 * half + r // 2, g - 1, g))
    return out

def phi_mfma(acc, tmp8):
    out = []
    for j in range(8): out += L("v_mov_b32 v%d, v%d" % (tmp8 + j, acc + j))
    out += L("v_mfma_f32_32x32x16_bf16 v[%d:%d], v[%d:%d], v[%d:%d], 0" % (acc, acc + 15, WPHI, WPHI + 3, tmp8, tmp8 + 3))
    out += L("v_mfma_f32_32x32x16_bf16 v[%d:%d], v[%d:%d], v[%d:%d], v[%d:%d]" % (acc, acc + 15, WPHI + 4, WPHI + 7, tmp8 + 4, tmp8 + 7, acc, acc + 15))
    out.append(Gap(2))
    return out

def softmax2(p):
    e = TMP; a, b, c, d = TMP + 8, TMP + 9, TMP + 10, TMP + 11
    s = """
    v_max3_f32 v{a}, v{p0}, v{p1}, v{p2}
    v_min3_f32 v{b}, v{p0}, v{p1}, v{p2}
    v_max3_f32 v{a}, v{a}, v{p3}, v{p4}
    v_min3_f32 v{b}, v{b}, v{p3}, v{p4}
    v_max3_f32 v{a}, v{a}, v{p5}, v{p6}
    v_min3_f32 v{b}, v{b}, v{p5}, v{p6}
    v_max_f32 v{a}, v{a}, v{p7}
    v_max_f32_e64 v{b}, -v{b}, -v{p7}
    """.format(a=a, b=b, **{"p%d" % i: p + i for i in range(8)})
    out = L(s)
    out.append(L("v_permlane32_swap_b32 v{a}, v{b}\nv_max_f32 v{a}, v{a}, v{b}\nv_mul_f32 v{a}, 0xbfb8aa3b, v{a}\nv_mov_b32 v{b}, v{a}".format(a=a, b=b)))
    out.append(L("v_permlane32_swap_b32 v{a}, v{b}".format(a=a, b=b)))
    for i in range(8):
        out += L("v_fma_f32 v%d, v%d, s%d, v%d" % (e + i, p + i, sL2E, a))
        out += L("v_fma_f32 v%d, -v%d, s%d, v%d" % (p + i, p + i, sL2E, b))
        out += L("v_exp_f32 v%d, v%d" % (e + i, e + i))
        out += L("v_exp_f32 v%d, v%d" % (p + i, p + i))
        if i == 1: out += L("v_add_f32 v%d, v%d, v%d\nv_add_f32 v%d, v%d, v%d" % (c, e, e + 1, d, p, p + 1))
        elif i > 1: out += L("v_add_f32 v%d, v%d, v%d\nv_add_f32 v%d, v%d, v%d" % (c, c, e + i, d, d, p + i))
    out.append(L("v_permlane32_swap_b32 v{c}, v{d}\nv_add_f32 v{c}, v{c}, v{d}\nv_rcp_f32 v{c}, v{c}".format(c=c, d=d)))
    out.append(L("v_mov_b32 v{d}, v{c}".format(c=c, d=d)))
    out.append(L("v_permlane32_swap_b32 v{c}, v{d}".format(c=c, d=d)))
    for i in range(8):
        out += L("v_mul_f32 v%d, v%d, v%d" % (p + i, d, p + i))
        if i & 1: out += L("v_cvt_pk_bf16_f32 v%d, v%d, v%d" % (p + i // 2, p + i - 1, p + i))
    for i in range(8):
        out += L("v_mul_f32 v%d, v%d, v%d" % (e + i, c, e + i))
        if i & 1: out += L("v_cvt_pk_bf16_f32 v%d, v%d, v%d" % (p + 4 + i // 2, e + i - 1, e + i))
    return out

def t_att_k():
    out = []
    if cfg.x_notask: return [I("s_nop 0")]
    FR = 32
    for blk in range(2):
        va = 32 + 16 * blk; ka = 16 * blk
        out += ln_tile(va, blk, 1)
        for j in range(4): out += L("ds_write_b64 v%d, v[%d:%d] offset:%d" % (vVW, va + 2 * j, va + 2 * j + 1, 16 * j))
        out += ln_tile(ka, blk, 0)
        out += phi_mfma(ka, TMP)
        for hh in range(2):
            p = ka + 8 * hh
            out += softmax2(p)
            for j in range(2):
                out += L("ds_write_b64 v%d, v[%d:%d] offset:%d" % (vPW, p + 4 + 2 * j, p + 5 + 2 * j, 16 * j))
                out += L("ds_write_b64 v%d, v[%d:%d] offset:%d" % (vPW, p + 2 * j, p + 1 + 2 * j, 32 + 16 * j))
            for ks in range(2):
                for j in range(2):
                    out += L("ds_read_b64_tr_b16 v[%d:%d], v%d offset:%d" % (FR + 8 * ks + 2 * j, FR + 8 * ks + 2 * j + 1, vPR, 1152 * ks + 288 * j))
                    out += L("ds_read_b64_tr_b16 v[%d:%d], v%d offset:%d" % (FR + 8 * ks + 4 + 2 * j, FR + 8 * ks + 5 + 2 * j, (vVR0, vVR1)[hh], 1664 * ks + 416 * j))
            out.append(Gap(3))
            d = KVD + 16 * hh
            for ks in range(2):
                c = "0" if (blk == 0 and ks == 0) else vr(d, 16)
                out += L("v_mfma_f32_32x32x16_bf16 %s, %s, %s, %s" % (vr(d, 16), vr(FR + 8 * ks, 4), vr(FR + 8 * ks + 4, 4), c))
    out.append(Gap(2))
    for r4 in range(4): out += L("ds_write_b128 v%d, %s offset:%d" % (vEXW, vr(KVD + 16 + 4 * r4, 4), 1024 * r4))
    return out

def t_kv_pub():
    out = []
    for r4 in range(4): out += L("ds_read_b128 %s, v%d offset:%d" % (vr(KVD + 16 + 4 * r4, 4), vEXR, 1024 * r4))
    out.append(Gap(2))
    for r in range(16):
        out += L("v_add_f32 v%d, v%d, v%d" % (KVD + r, KVD + r, KVD + 16 + r))
        out += L("buffer_atomic_add_f32 v%d, v%d, %s, 0 offen offset:%d" % (KVD + r, vKVA, srd(SW), 256 * r), tag="kvat" if r == 15 else None)
    return out

def t_att_q():
    out = []
    if cfg.x_notask: return [I("s_nop 0")]
    for blk in range(2):
        qa = SET1 + 16 * blk
        out += ln_tile(qa, blk, 2)
        out += phi_mfma(qa, TMP)
        for hh in range(2): out += softmax2(qa + 8 * hh)
    return out

def t_kv_load():
    out = []
    for hh in range(2):
        grp = L("s_mov_b32 s%d, %d" % (sT1, 4096 * hh))
        for r in range(16):
            grp += L("buffer_load_dword v%d, v%d, %s, s%d offen offset:%d sc1" % (16 * hh + r, vKVL, srd(SW), sT1, 256 * r))
        out.append(grp)
    return out

def t_o():
    out = []
    for hh in range(2):
        for j in range(8): out += L("v_cvt_pk_bf16_f32 v%d, v%d, v%d" % (16 * hh + j, 16 * hh + 2 * j, 16 * hh + 2 * j + 1))
    seq = [(hh, blk) for hh in range(2) for blk in range(2)]
    def mm(k):
        hh, blk = seq[k]; d = 32 + 16 * (k & 1); p = SET1 + 16 * blk + 8 * hh
        return L("v_mfma_f32_32x32x16_bf16 %s, %s, %s, 0" % (vr(d, 16), vr(16 * hh, 4), vr(p + 4, 4))) + \
               L("v_mfma_f32_32x32x16_bf16 %s, %s, %s, %s" % (vr(d, 16), vr(16 * hh + 4, 4), vr(p, 4), vr(d, 16)))
    def fin(k):
        hh, blk = seq[k]; d = 32 + 16 * (k & 1)
        o = L("v_add_f32 v%d, 0x358637bd, v%d\nv_rcp_f32 v%d, v%d" % (d + 8, d + 8, d + 8, d + 8))
        for r in range(8):
            o += L("v_mul_f32 v%d, v%d, v%d" % (d + r, d + 8, d + r))
            if r & 1: o += L("v_cvt_pk_bf16_f32 v%d, v%d, v%d" % (d + r // 2, d + r - 1, d + r))
        st = L("s_mov_b32 s%d, %d" % (sT1, 28 * 2048)) + \
             L("buffer_store_dwordx4 %s, v%d, %s, s%d offen offset:%d sc1" % (vr(d, 4), vHST, srd(SW), sT1, 2048 * hh + 1024 * blk), tag="ost" if k == 3 else None)
        return o + [st]
    out += mm(0) + mm(1) + [Gap(1)] + fin(0) + mm(2) + fin(1) + mm(3) + fin(2) + fin(3)
    return out

def dma(vo, sr, so, imm, tag=None):
    return L("buffer_load_dwordx4 v%d, %s, %s offen%s lds" % (vo, srd(sr), so, " offset:%d" % imm if imm else ""), tag=tag)

def m0set(base, lit): return L("s_add_u32 m0, s%d, %d" % (base, lit))

def dma_x(c, slot, tag):
    g = m0set(sLX, slot * PITCH)
    return [g + dma(XD, SX, "s%d" % (sKX + c), 0)] + [dma(XD + i, SX, "s%d" % (sKX + c), 1024 * i, tag if i == 3 else None) for i in range(1, 4)]

def dma_full(vo, sr, kreg, extra, slot, tag):
    g = m0set(sL2K, slot * PITCH)
    so = "s%d" % kreg
    if extra:
        g += L("s_add_u32 s%d, s%d, %d" % (sT0, kreg, extra)); so = "s%d" % sT0
        return [g + dma(vo, sr, so, 0) + dma(vo + 1, sr, so, 1024, tag)]
    return [g + dma(vo, sr, so, 0) + dma(vo + 1, sr, so, 1024, tag)]

def dma_half(c, slot, tag):
    so = "s%d" % (sKG + c)
    return [m0set(sL1K, slot * PITCH) + dma(WHD, SG, so, 0), m0set(sL1K, slot * PITCH + 4128) + dma(WHD, SU, so, 0, tag)]

def slice_src(n):
    if n < 8: return SD, sWDB, 128 * (n >> 2) + 16 * (n & 3)
    if n < 16: return SD, sWDB, 64 * (4 + ((n - 8) >> 2)) + 16 * (n & 3)
    if n < 20: return SD, sWDB, 384 + 16 * (n - 16)
    if n < 28: return SD, sWDB, 64 * (2 * ((n - 20) >> 2) + 1) + 16 * (n & 3)
    return SO, sWOB, 16 * (n - 28)

def dma_w2(n, slot):
    sr, base, row = slice_src(n)
    g = m0set(sL2K, slot * PITCH) + L("s_add_u32 s%d, s%d, %d" % (sT0, base, row * 1024))
    return [g + dma(W2D, sr, "s%d" % sT0, 0) + dma(W2D + 1, sr, "s%d" % sT0, 1024, "w2_%d" % n)]

def h_load(n):
    g = L("s_mov_b32 s%d, %d" % (sT1, n * 2048))
    a = 8 * (n % 32)
    for b in range(2):
        g += L("buffer_load_dwordx4 %s, v%d, %s, s%d offen%s sc1" % (ar(a + 4 * b, 4), vHLD, srd(SW), sT1, " offset:1024" if b else ""))
    return g

def build_type(typ):
    A = typ == "A"
    passes = [("att2", 2, SET0, 0), ("pair", 2, SET1, 2), ("half", 1, SET0, 4)] if A else \
             [("pair", 2, SET0, 0), ("q", 1, SET1, 2), ("pair", 2, SET0, 3)]
    WRs = [WR1, WR2, WR3]
    for p, (kind, T, acc, tile0) in enumerate(passes):
        for j in range(T): TILE_AT[tile0 + j] = 256 * p + 128 * j
    S = Sched()
    step_beat = {}
    nt = lambda g: passes[g // 32][1]
    wbuf = lambda g, j: WF + (8 * (g & 1) + 4 * j if nt(g) == 2 else 4 * (g & 3))

    slot_of = {}
    for c in range(8):
        slot_of[("x", c)] = 2 * (c % 4); slot_of[("w", 0, c)] = 8 + 2 * (c % 4)
    def item_dma(it):
        if it[0] == "x": return dma_x(it[1], slot_of[it], "x%d" % it[1])
        if it[0] == "s": return dma_w2(it[1], slot_of[it])
        _, p, c = it; kind = passes[p][0]; sl = slot_of[it]; tag = "w%d_%d" % (p, c)
        if kind == "att2": return dma_full(WQD, SQ, sKQ + c, 0, sl, None) + dma_full(WQD, SQ, sKQ + c, 1024, sl + 1, tag)
        if kind == "q": return dma_full(WQD, SQ, sKQ + c, 0, sl, tag)
        if kind == "half": return dma_half(c, sl, tag)
        ex = 128 if (not A and p == 2) else 0
        return dma_full(WGD, SG, sKG + c, ex, sl, None) + dma_full(WGD, SU, sKG + c, ex, sl + 1, tag)
    def item_slots(it):
        if it[0] == "x": return 2
        if it[0] == "s": return 1
        return 2 if passes[it[1]][0] in ("att2", "pair") else 1

    for g in range(96):
        p, c, t = g // 32, (g // 4) % 8, g % 4
        kind, T, acc, tile0 = passes[p]
        step_beat[g] = len(S.beats)
        k = g % 32
        for j in range(T):
            for b in range(2):
                d = vr(acc + 32 * j + 16 * b, 16)
                S.beat(I("v_mfma_f32_32x32x16_bf16 %s, %s, %s, %s" % (d, vr(wbuf(g, j), 4), ar(8 * k + 4 * b, 4), "0" if k == 0 else d)))
        if t < 2 and not cfg.x_nostat:
            def m16(d, sel, src, first): S.beat(I("v_mfma_f32_16x16x32_bf16 %s, %s, %s, %s" % (vr(d, 4), vr(sel, 4), src, "0" if first else vr(d, 4))), 16)
            def m4(b, h): S.beat(I("v_mfma_f32_4x4x4_16b_bf16 %s, %s, %s, %s" % (vr(SQD + 4 * b, 4), ar(8 * k + 4 * b + 2 * h, 2), ar(8 * k + 4 * b + 2 * h, 2), "0" if (k == 0 and h == 0) else vr(SQD + 4 * b, 4))), 8)
            if p == 0:
                m4(0, 0); m4(1, 0); m16(RSD, SEL01, ar(8 * k, 4), k == 0); m4(0, 1); m4(1, 1); m16(RSD, SEL23, ar(8 * k + 4, 4), False)
            for j in range(T): m16(CSD, (SEL01, SEL23)[j], vr(wbuf(g, j), 4), k == 0 and j == 0)
    step_beat[96] = len(S.beats)
    sl_beat = {}
    for n in range(36):
        sl_beat[n] = len(S.beats)
        w = WF + 8 * (n & 1); a = 8 * (n % 32)
        for cb in range(2):
            for tb in range(2):
                d = vr(ACC2[2 * cb + tb], 16)
                S.beat(I("v_mfma_f32_32x32x16_bf16 %s, %s, %s, %s" % (d, vr(w + 4 * cb, 4), ar(a + 4 * tb, 4), "0" if n == 0 else d)), cfg.p2period)
    sl_beat[36] = len(S.beats)
    S.beat(None)

    bar_step = {}
    for cc in range(24):
        T = passes[cc // 8][1]
        bar_step[cc] = 4 * cc + (3 if (T == 2 or cc == 23) else 2)
    last_rd = {}
    def w_reads(g, j):
        p, c, t = g // 32, (g // 4) % 8, g % 4
        kind = passes[p][0]; sl = slot_of[("w", p, c)]
        if p == 0: base, off = WR1 + (t >> 1), (sl - 8) * PITCH
        else: base, off = WRs[p] + 2 * (sl >= 8) + (t >> 1), (sl % 8) * PITCH
        if kind == "att2": off += j * PITCH
        if kind == "pair": off += 32 * j
        st, js = (1024, 256) if kind == "half" else (2048, 512)
        off += (t & 1) * st
        w = wbuf(g, j)
        return [I("ds_read_b64_tr_b16 %s, v%d offset:%d" % (vr(w + 2 * e, 2), base, off + e * js)) for e in range(2)]
    def x_reads(g):
        c, t = g // 4, g % 4
        return [I("ds_read_b128 %s, v%d offset:%d" % (ar(8 * g + 4 * b, 4), XR + t, slot_of[("x", c)] * PITCH + 4096 * b)) for b in range(2)]
    def w2_reads(n):
        sl = slot_of[("s", n)]; w = WF + 8 * (n & 1)
        return [I("ds_read_b64_tr_b16 %s, v%d offset:%d" % (vr(w + 4 * cb + 2 * e, 2), W2R + 2 * (sl >= 8) + cb, (sl % 8) * PITCH + 1024 * e)) for cb in range(2) for e in range(2)]

    queue = []
    for c in range(4, 8): queue += [("x", c), ("w", 0, c)]
    for p in (1, 2): queue += [("w", p, c) for c in range(8)]
    queue += [("s", n) for n in range(36)]
    free = set()
    issue_after = {}
    for cc in range(24):
        p, c = cc // 8, cc % 8
        T = passes[p][1]
        rel = []
        if T == 2 or cc == 23:
            rel.append(cc)
            if cc > 0 and passes[(cc - 1) // 8][1] == 1: rel.append(cc - 1)
        elif cc > 0 and passes[(cc - 1) // 8][1] == 1: rel.append(cc - 1)
        for r in rel:
            it = ("w", r // 8, r % 8)
            free |= set(range(slot_of[it], slot_of[it] + item_slots(it)))
            if r < 8: free |= {slot_of[("x", r)], slot_of[("x", r)] + 1}
        got = []
        while queue:
            it = queue[0]; ns = item_slots(it)
            if it in slot_of: cand = [slot_of[it]] if all(slot_of[it] + i in free for i in range(ns)) else []
            elif ns == 2: cand = [s for s in sorted(free) if s % 2 == 0 and s + 1 in free]
            else: cand = sorted(free)
            if not cand: break
            slot_of[it] = cand[0]
            for i in range(ns): free.discard(cand[0] + i)
            got.append(queue.pop(0))
        issue_after[cc] = (rel, got)
    p2_issue = {}
    for n in range(36):
        if queue:
            it = queue.pop(0); slot_of[it] = slot_of[("s", n)]; p2_issue[n] = it
    print(typ, "prefetched slices before P2:", 36 - len(p2_issue))

    where = {}
    for g in range(1, 96):
        T = nt(g); k = g % 32
        for j in range(T):
            if T == 2: at = g - 1 if not (k == 0 and nt(g - 1) == 1 and j == 0) else g - 2
            else: at = g - 2 if not (k < 2 and nt(g - k - 1) == 2) else g - k - 1
            where.setdefault(at, []).append(("w", g, j))
        if g < 32: where.setdefault(g - 1, []).append(("x", g))
    for at, lst in sorted(where.items()):
        ins = []
        for it in lst:
            r = w_reads(it[1], it[2]) if it[0] == "w" else x_reads(it[1])
            if it[1] % 4 == 3:
                r[-1].tag = "rd%d_%s%d" % (it[1] // 4, it[0], it[2] if it[0] == "w" else 0)
                last_rd[it[1] // 4] = r[-1].tag
            ins += r
        b0 = step_beat[at]; nb = 2 * nt(at)
        if cfg.rd_early and len(ins) == 6: ins = [ins[0], ins[1], ins[4], ins[5], ins[2], ins[3]]
        if cfg.rd_early:
            tg = [x.tag for x in ins if x.tag]
            if tg:
                for x in ins: x.tag = None
                ins[-1].tag = last_rd[lst[-1][1] // 4]
        nbb = 2 if cfg.rd_early else nb
        for i, x in enumerate(ins): S.put(b0 + min(nbb - 1, i * nbb // len(ins)), x)

    extra_pre = {}
    def place_barriers():
        for cc in range(24):
            b = step_beat[bar_step[cc]]
            pre = []
            for r in issue_after[cc][0]: pre.append(Wait(last_rd[r]))
            if cc in extra_pre: pre.append(Wait("lgkm0"))
            if cc < 23:
                nx = cc + 1
                if nx < 8: pre.append(Wait("x%d" % nx))
                pre.append(Wait("w%d_%d" % (nx // 8, nx % 8)))
            pre.append(I("s_barrier"))
            S.beats[b]["pre"] = pre + S.beats[b]["pre"]
    bb = lambda cc: step_beat[bar_step[cc]]
    for cc in range(24):
        items = []
        for it in issue_after[cc][1]: items += item_dma(it)
        if items: S.spread(items, bb(cc), bb(cc + 1) if cc < 23 else sl_beat[0] + 2)

    r0 = w2_reads(0)
    S.put(step_beat[95], [Wait("w2_0")] );
    for i, x in enumerate(r0): S.put(step_beat[95] + min(i // 2, 2 * nt(95) - 1), x)
    for n in range(36):
        b = sl_beat[n]
        if n + 1 < 36:
            S.put(b, Wait("w2_%d" % (n + 1)))
            for i, x in enumerate(w2_reads(n + 1)): S.put(b + i, x)
        if n in p2_issue: S.put(b + 2, dma_w2(p2_issue[n][1], slot_of[p2_issue[n]])[0])

    pre, adds = t_stat_add()
    S.spread(pre, step_beat[26], step_beat[28])
    cs_pub = lambda tile0: [Gap(1)] + t_cs_add(tile0)
    S.spread(cs_pub(0) + adds, step_beat[30], step_beat[31]); extra_pre[7] = 1
    S.spread(t_cs_tot(0, 0), step_beat[31], step_beat[32])
    S.spread(t_stat_fin(), step_beat[31], step_beat[32])
    S.put(bb(0), L("v_mov_b32 v%d, 1\nbuffer_atomic_add v%d, v%d, %s, 0 offen" % (TMP + 12, TMP + 12, TMP + 13, srd(SDBG))))
    hs_i, hs_c = poll(TMP + 14, TMP + 15, "4", SDBG, "gt")
    S.put(step_beat[24], [I("v_lshlrev_b32 v%d, 2, v%d" % (TMP + 14, vL)), hs_i])
    S.put(step_beat[28], stamp("hs0") + [hs_c] + stamp("hs1"))
    sp = lambda g: step_beat[g]
    cls_at = {}
    if A:
        S.spread(addr_wfull(WR2, 4, False, False, TMP + 8), sp(17), sp(24))
        e = S.spread(t_att_k(), sp(32), sp(32 + cfg.a_att), "att_k")
        cb = min(cc for cc in range(8, 24) if bb(cc) > e); extra_pre[cb] = 1
        print("  kv exchange barrier chunk", cb)
        S.spread(addr_cs(False, TMP + 12) + addr_whalf(WR3, TMP + 12), bb(cb), bb(cb) + 6)
        e = S.spread(t_kv_pub(), bb(cb), bb(cb) + 10, "kv_pub")
        S.put(e, stamp("kvi"))
        S.put(e + cfg.a_kvflag, stamp("kvw0") + [Wait("kvat")] + stamp("kvw1") + [I("v_mov_b32 v%d, 1" % WHD), I("buffer_store_dword v%d, v%d, %s, 0 offen sc1" % (WHD, vKFL, srd(SW)))])
        assert bb(cb) + 6 <= sp(62), "address set-up too late"
        S.spread(cs_pub(2), sp(62), sp(63)); extra_pre[15] = 1
        S.spread(t_cs_tot(2, 1), sp(63), sp(64))
        so = "s_mov_b32 s%d, %d" % (sT1, 8 * 2048)
        e = S.spread(t_hepi(SET1, 2, so, 0, None) + t_hepi(SET1 + 32, 3, so, 2048, "h1"), sp(64) + 1, sp(64 + cfg.a_h1), "hepi1")
        S.put(e + cfg.flag_delay, set_flag(1, "h1", WHD))
        S.spread(addr_p2(KVD), sp(66), sp(76))
        S.spread(cs_pub(4), sp(94), sp(95)); extra_pre[23] = 1
        S.spread(t_cs_tot(4, 2), sp(95), sl_beat[0] + 1)
        so = "s_mov_b32 s%d, s%d" % (sT1, sKX)
        e = S.spread(t_hepi(SET0, 4, so, 0, "h2"), sl_beat[0] + 1, sl_beat[0] + cfg.a_h2, "hepi2")
        S.put(e + cfg.flag_delay2, set_flag(2, "h2", WHD))
        last_task = e
    else:
        S.spread(addr_wfull(WR2, 4, True, False, TMP + 8), sp(17), sp(24))
        so = "s_mov_b32 s%d, 0" % sT1
        e = S.spread(t_hepi(SET0, 0, so, 0, None) + t_hepi(SET0 + 32, 1, so, 2048, "h0"), sp(32) + 1, sp(32 + cfg.b_h0), "hepi0")
        assert e < sp(64)
        S.put(e + cfg.flag_delay, set_flag(1, "h0", WHD))
        S.spread(addr_wfull(WR3, 4, False, False, KVD), sp(36), sp(56))
        S.spread(cs_pub(2) + L("v_mov_b32 v%d, v%d" % (165, CSD)), sp(62), sp(64)); extra_pre[16] = 1
        x = t_cs_tot(2, 1); x[3] = I("v_add_f32 v%d, v%d, v165" % (vCSR + 1, vCSR + 1))
        e = S.spread(x + t_att_q(), bb(16), sp(64 + cfg.b_att), "att_q")
        S.spread(addr_p2(KVD), sp(64), sp(70))
        S.spread(cs_pub(3), sp(94), sp(95)); extra_pre[23] = 1
        S.spread(t_cs_tot(3, 2), sp(95), sl_beat[0])
        so = "s_mov_b32 s%d, %d" % (sT1, 20 * 2048)
        e = S.spread(t_hepi(SET0, 3, so, 0, None) + t_hepi(SET0 + 32, 4, so, 2048, "h3"), sl_beat[0] + 1, sl_beat[0] + cfg.b_h3, "hepi3")
        kp_i, kp_c = poll(vKPL, 165, "1")
        S.put(e - 2, kp_i)
        S.put(e, stamp("kp0") + [kp_c] + stamp("kp1"))
        for x in t_kv_load(): S.put(e, x)
        S.put(e + cfg.flag_delay2, set_flag(2, "h3", WHD))
        e = S.spread(t_o(), e + cfg.b_kvlat, e + cfg.b_kvlat + cfg.b_o, "o")
        S.put(e + cfg.flag_delay2, set_flag(3, "ost", WHD))
        last_task = e
    place_barriers()
    first = [0, 8, 16, 20, 28, 36]
    hb = {}
    p0 = sp(64 + (cfg.a_p0 if A else cfg.b_p0))
    for c in range(5):
        iss, chk = class_poll(c, WGD, WGD + 1) if True else None
        at = p0 if c == 0 else sl_beat[max(0, first[c] - cfg.lead[c])] + 2
        S.put(at - cfg.poll_lead, iss)
        S.put(at, stamp("cp%d_0" % c) + chk + stamp("cp%d_1" % c))
        nsl = first[c + 1] - first[c]
        for i in range(nsl):
            n = first[c] + i
            b = at + i * cfg.hstep
            if n >= 32: b = max(b, sl_beat[n - 32] + 4)
            if c == 0: assert b >= sp(64 + n + 1)
            b = min(b, sl_beat[n] - 1)
            S.put(b, h_load(n))
    RES = TMP
    rb_ = max(last_task + 2, sl_beat[24])
    S.put(rb_, L("""
    s_lshl_b32 s{t0}, s{tt}, 2
    s_add_u32 s{t0}, s{t0}, s{wv}
    s_lshl_b32 s{t0}, s{t0}, 14
    s_lshl_b32 s{t1}, s{ct}, 7
    s_add_u32 s{t0}, s{t0}, s{t1}
    v_lshrrev_b32 v{a}, 3, v{L}
    v_lshlrev_b32 v{a}, 10, v{a}
    v_and_b32 v{b}, 7, v{L}
    v_lshl_add_u32 v{a}, v{b}, 4, v{a}
    v_add_u32 v{o}, s{t0}, v{a}
    """.format(t0=sT0, t1=sT1, tt=sTT, wv=sWV, ct=sCT, a=TMP + 8, b=TMP + 9, o=WQD - 1, L=vL)))
    vOUT = WQD - 1
    S.put(rb_ + 1, L("s_mov_b32 s%d, 8192\nbuffer_load_dwordx4 %s, v%d, %s, 0 offen\nbuffer_load_dwordx4 %s, v%d, %s, s%d offen" % (sT1, vr(RES, 4), vOUT, srd(SX), vr(RES + 4, 4), vOUT, srd(SX), sT1)))
    S.spread(L("""
    v_bfe_u32 v8, v{L}, 3, 2
    v_mul_u32_u24 v8, {P}, v8
    v_and_b32 v9, 7, v{L}
    v_lshl_add_u32 v8, v9, 8, v8
    v_add_u32 v8, s{l2k}, v8
    v_lshrrev_b32 v10, 5, v{L}
    v_xor_b32 v10, v10, v9
    v_lshl_add_u32 v0, v10, 4, v8
    v_xor_b32 v11, 2, v10
    v_lshl_add_u32 v1, v11, 4, v8
    v_xor_b32 v11, 4, v10
    v_lshl_add_u32 v2, v11, 4, v8
    v_xor_b32 v11, 6, v10
    v_lshl_add_u32 v3, v11, 4, v8
    v_lshrrev_b32 v8, 3, v{L}
    v_and_b32 v10, 3, v{L}
    v_lshlrev_b32 v10, 1, v10
    v_xor_b32 v10, v10, v8
    v_bfe_u32 v11, v{L}, 2, 1
    v_lshlrev_b32 v11, 7, v11
    v_lshl_add_u32 v11, v8, 8, v11
    v_mov_b32 v9, s{wv}
    v_mul_u32_u24 v9, {P2}, v9
    v_add_u32 v11, v11, v9
    v_lshl_add_u32 v4, v10, 4, v11
    v_xor_b32 v10, 1, v10
    v_lshl_add_u32 v5, v10, 4, v11
    """.format(L=vL, P=PITCH, P2=2 * PITCH, l2k=sL2K, wv=sWV)), rb_ + 2, rb_ + 14)
    if cfg.stamps == 2:
        pts = [("b%d" % cc, bb(cc)) for cc in range(24)] + [("s%d" % n, sl_beat[n]) for n in range(0, 37) if n != 35]
        prev = ("iss", 0)
        for k, (nm, b) in enumerate(pts):
            for x in (prev[0], nm):
                if x not in stamp_names: stamp_names.append(x)
            cur = sST + 2 * ((k + 1) & 1); old = sST + 2 * (k & 1)
            rd = I("v_writelane_b32 v%d, s%d, %d" % (vSTAMP, old, stamp_names.index(prev[0]) + 2))
            mt = I("s_memtime s[%d:%d]" % (cur, cur + 1))
            if nm[0] == "b":
                pre = S.beats[b]["pre"]; pre.insert(len(pre) - 1, rd); pre.append(mt)
            else: S.beats[b]["pre"] = [rd, mt] + S.beats[b]["pre"]
            prev = (nm, b)
        last_stamp = I("v_writelane_b32 v%d, s%d, %d" % (vSTAMP, cur, stamp_names.index(prev[0]) + 2))
    if cfg.stamps == True:
        for nm, b in (("p1", sp(32)), ("p2", sp(64)), ("p3", sl_beat[0]), ("s8", sl_beat[8]), ("s16", sl_beat[16]), ("s20", sl_beat[20]), ("s28", sl_beat[28]), ("s36", sl_beat[36]),
                      ("c1", sp(4)), ("c2", sp(8)), ("c4", sp(16))):
            S.put(b, stamp(nm), pre=True)

    pro = []
    if A:
        pro += L("s_lshl_b32 s{t0}, s{i}, 7\ns_add_u32 s{t0}, s{t0}, 1024".format(t0=sT0, i=sI))
        pro += wdma_addr(WQD, 3072, sT0)
        first_w = None
    else:
        pro += L("s_mul_i32 s{t0}, s{q}, 896\ns_lshl_b32 s{t1}, s{ab}, 8\ns_add_u32 s{t0}, s{t0}, s{t1}".format(t0=sT0, t1=sT1, q=sQ, ab=sAB))
        pro += wdma_addr(WGD, 3584, sT0)
    def flat(x):
        o = []
        for y in x: o += y if isinstance(y, list) else [y]
        return o
    for c in range(4):
        pro += flat(item_dma(("x", c))) + flat(item_dma(("w", 0, c)))
        if c == 0: pro += clear_store(A)
    pro += stamp("iss")
    if cfg.stamps == 2: pro += [I("s_memtime s[%d:%d]" % (sST, sST + 1))]
    pro += common_setup()
    if A:
        pro += L("s_mul_i32 s{t0}, s{q}, 896\ns_lshl_b32 s{t1}, s{ab}, 7\ns_add_u32 s{t0}, s{t0}, s{t1}\ns_add_u32 s{t0}, s{t0}, 512".format(t0=sT0, t1=sT1, q=sQ, ab=sAB))
        pro += wdma_addr(WGD, 3584, sT0)
        pro += L("""
        s_mul_i32 s{t0}, s{q}, 896
        s_lshl_b32 s{t1}, s{ab}, 6
        s_add_u32 s{t0}, s{t0}, s{t1}
        s_add_u32 s{t0}, s{t0}, 768
        s_mul_i32 s{t1}, s{wv}, {w}
        s_add_u32 s{t0}, s{t0}, s{t1}
        v_lshrrev_b32 v{a}, 2, v{L}
        v_mul_u32_u24 v{a}, 3584, v{a}
        v_and_b32 v{b}, 3, v{L}
        v_lshl_add_u32 v{a}, v{b}, 4, v{a}
        v_add_u32 v{d}, s{t0}, v{a}
        """.format(t0=sT0, t1=sT1, q=sQ, ab=sAB, wv=sWV, w=16 * 3584, a=TMP, b=TMP + 1, d=WHD, L=vL))
        pro += flat(addr_wfull(WR1, 2, True, True)) + flat(addr_cs(True)) + addr_cst() + att_setup()
    else:
        pro += L("s_lshl_b32 s{t0}, s{i}, 7".format(t0=sT0, i=sI))
        pro += wdma_addr(WQD, 3072, sT0)
        pro += flat(addr_wfull(WR1, 2, False, False)) + flat(addr_cs(False)) + addr_cst() + o_setup()
    pro += wphi_setup(A)
    pro += [Wait("lgkm0"), Wait("x0"), Wait("w0_0"), I("s_barrier")]
    pro += stamp("data")
    pro += x_reads(0) + w_reads(0, 0) + w_reads(0, 1)

    tail = []
    for tb in range(2):
        for cb in range(2):
            for r4 in range(4):
                tail += L("ds_write_b128 v%d, %s offset:%d" % (r4, vr(ACC2[2 * cb + tb] + 4 * r4, 4), 128 * cb + 4 * PITCH * tb))
    tail += [Wait("lgkm0"), I("s_barrier")]
    for i in range(2):
        for e in range(2):
            for w in range(4):
                tail += L("ds_read_b128 %s, v%d offset:%d" % (vr(16 + 32 * i + 16 * e + 4 * w, 4), 4 + e, 2048 * w + PITCH * i))
    for i in range(2):
        for e in range(2):
            b = 16 + 32 * i + 16 * e
            for j in range(4):
                x = RES + 4 * i + 2 * e + j // 2
                tail += L("v_add_f32 v%d, v%d, v%d\nv_add_f32 v%d, v%d, v%d" % (b + j, b + j, b + 4 + j, b + 8 + j, b + 8 + j, b + 12 + j))
                tail += L(("v_and_b32 v%d, 0xffff0000, v%d" if j & 1 else "v_lshlrev_b32 v%d, 16, v%d") % (b + 4 + j, x))
                tail += L("v_add_f32 v%d, v%d, v%d\nv_add_f32 v%d, v%d, v%d" % (b + j, b + j, b + 8 + j, b + j, b + j, b + 4 + j))
            tail += L("v_cvt_pk_bf16_f32 v%d, v%d, v%d\nv_cvt_pk_bf16_f32 v%d, v%d, v%d" % (8 + 4 * i + 2 * e, b, b + 1, 9 + 4 * i + 2 * e, b + 2, b + 3))
        tail += L("s_mov_b32 s%d, %d\nbuffer_store_dwordx4 %s, v%d, %s, s%d offen" % (sT1, 8192 * i, vr(8 + 4 * i, 4), vOUT, srd(SOUT), sT1))
    if cfg.stamps:
        tail += stamp("end")
        if cfg.stamps == 2:
            if "end" not in stamp_names: stamp_names.append("end")
            tail += [last_stamp, I("s_memtime s[%d:%d]" % (sST, sST + 1)), I("v_writelane_b32 v%d, s%d, %d" % (vSTAMP, sST, stamp_names.index("end") + 2))]
        tail += L("""
        s_memrealtime s[{a}:{b}]
        v_writelane_b32 v{st}, s{a}, 1
        s_lshl_b32 s{t0}, s2, 2
        s_add_u32 s{t0}, s{t0}, s{wv}
        s_lshl_b32 s{t0}, s{t0}, 8
        s_add_u32 s{t0}, s{t0}, {o}
        v_lshl_add_u32 v0, v{L}, 2, s{t0}
        buffer_store_dword v{st}, v0, {sr}, 0 offen
        """.format(a=sST, b=sST + 1, st=vSTAMP, t0=sT0, wv=sWV, o=WS_ST, L=vL, sr=srd(SW)))
    tail += L("s_endpgm")
    est = sum(max(bt["period"], S.load(i)) for i, bt in enumerate(S.beats[:sl_beat[0]]))
    print("  P1 issue-model cycles:", est, " P2:", sum(max(32, S.load(i)) for i in range(sl_beat[0], sl_beat[36])))
    return pro + S.flat() + tail

def wdma_addr(dst, stride, scol):
    return L("""
    s_mul_i32 s{t1}, s{wv}, {w}
    s_add_u32 s{t1}, s{t1}, s{c}
    v_lshrrev_b32 v{a}, 3, v{L}
    v_mul_u32_u24 v{a}, {st}, v{a}
    v_bfe_u32 v{b}, v{L}, 4, 1
    v_lshlrev_b32 v{b}, 2, v{b}
    v_xor_b32 v{b}, v{b}, v{L}
    v_and_b32 v{b}, 7, v{b}
    v_lshl_add_u32 v{a}, v{b}, 4, v{a}
    v_add_u32 v{d}, s{t1}, v{a}
    v_add_u32 v{d1}, {nx}, v{d}
    """.format(t1=sT1, wv=sWV, w=16 * stride, c=scol, a=TMP, b=TMP + 1, L=vL, st=stride, d=dst, d1=dst + 1, nx=8 * stride - 1024))

def clear_store(A):
    a, b, z = TMP + 4, TMP + 5, TMP + 6
    s = """
    s_lshl_b32 s{t0}, s{rb}, 1
    s_add_u32 s{t0}, s{t0}, s{th}
    s_lshl_b32 s{t1}, s{t0}, 2
    s_add_u32 s{t1}, s{t1}, s{q}
    s_lshl_b32 s{t1}, s{t1}, 4
    s_add_u32 s{t1}, s{t1}, s{t4}
    s_lshl_b32 s{t1}, s{t1}, 1
    s_add_u32 s{t1}, s{t1}, s{gr}
    s_lshl_b32 s{t1}, s{t1}, 2
    s_add_u32 s{t1}, s{t1}, {fl}
    v_mov_b32 v{f}, {oob}
    v_writelane_b32 v{f}, s{t1}, 0
    s_lshl_b32 s{sp}, s2, 2
    s_add_u32 s{sp}, s{sp}, s{wv}
    s_lshl_b32 s{sp}, s{sp}, 7
    s_add_u32 s{sp}, s{sp}, {kva}
    v_and_b32 v{a}, 31, v{L}
    v_lshl_add_u32 v{a}, v{a}, 2, s{sp}
    v_writelane_b32 v{a}, s{t1}, 32
    """.format(t0=sT0, t1=sT1, rb=sRB, th=sTH, q=sQ, t4=sT4, gr=sGR, fl=WS_FL, f=vFLG, oob=OOB, sp=sSPIN, wv=sWV, kva=WS_KVA, a=a, L=vL)
    if A:
        s += """
        s_lshl_b32 s{t1}, s{i}, 1
        s_add_u32 s{t1}, s{t1}, s{gr}
        s_lshl_b32 s{t1}, s{t1}, 5
        s_add_u32 s{t1}, s{t1}, s{t0}
        s_lshl_b32 s{t1}, s{t1}, 2
        s_add_u32 s{t1}, s{t1}, {kf}
        v_mov_b32 v{f}, {oob}
        v_writelane_b32 v{f}, s{t1}, 0
        v_writelane_b32 v{a}, s{t1}, 33
        """.format(t0=sT0, t1=sT1, i=sI, gr=sGR, kf=WS_KF, f=vKFL, oob=OOB, a=a)
    s += "v_mov_b32 v%d, 0\nbuffer_store_dword v%d, v%d, %s, 0 offen sc1\n" % (z, z, a, srd(SW))
    return L(s)

def common_setup():
    a, b, c = TMP, TMP + 1, TMP + 2
    s = """
    v_lshrrev_b32 v{a}, 5, v{L}
    v_bfe_u32 v{b}, v{L}, 1, 3
    v_xor_b32 v{a}, v{a}, v{b}
    v_lshlrev_b32 v{a}, 4, v{a}
    v_and_b32 v{b}, 31, v{L}
    v_lshl_add_u32 v{a}, v{b}, 7, v{a}
    s_lshl_b32 s{t0}, s{s}, 6
    v_xor_b32 v{a}, s{t0}, v{a}
    s_mul_i32 s{t1}, s{th}, {P}
    v_add_u32 v{x0}, s{t1}, v{a}
    v_xor_b32 v{b}, 32, v{a}
    v_add_u32 v{x1}, s{t1}, v{b}
    v_xor_b32 v{b}, 64, v{a}
    v_add_u32 v{x2}, s{t1}, v{b}
    v_xor_b32 v{b}, 0x60, v{a}
    v_add_u32 v{x3}, s{t1}, v{b}
    v_and_b32 v{a}, 31, v{L}
    v_mov_b32 v{b}, 0x3f803f80
    v_cmp_eq_u32 vcc, 0, v{a}
    v_cndmask_b32 v{s0}, 0, v{b}, vcc
    v_cmp_eq_u32 vcc, 20, v{a}
    v_cndmask_b32 v{s0}, v{s0}, v{b}, vcc
    v_cmp_eq_u32 vcc, 8, v{a}
    v_cndmask_b32 v{s2}, 0, v{b}, vcc
    v_cmp_eq_u32 vcc, 28, v{a}
    v_cndmask_b32 v{s2}, v{s2}, v{b}, vcc
    """.format(a=a, b=b, L=vL, t0=sT0, t1=sT1, s=sS, th=sTH, P=PITCH, x0=XR, x1=XR + 1, x2=XR + 2, x3=XR + 3, s0=SEL01, s2=SEL23)
    for j in range(1, 4): s += "v_mov_b32 v%d, v%d\nv_mov_b32 v%d, v%d\n" % (SEL01 + j, SEL01, SEL23 + j, SEL23)
    s += """
    v_and_b32 v{a}, 3, v{L}
    v_cmp_eq_u32 s[{m1}:{m1b}], 1, v{a}
    v_cmp_eq_u32 s[{m2}:{m2b}], 2, v{a}
    v_cmp_eq_u32 s[{m3}:{m3b}], 3, v{a}
    v_and_b32 v{a}, 4, v{L}
    v_cmp_eq_u32 s[{mb}:{mbb}], 4, v{a}
    s_mul_i32 s{wd}, s{wv}, {wdv}
    s_lshl_b32 s{wo}, s{wv}, 17
    s_mov_b32 s{l2e}, 0x3fb8aa3b
    s_mov_b32 s{c2}, 0x3b000000
    """.format(a=a, L=vL, m1=sM1, m1b=sM1 + 1, m2=sM2, m2b=sM2 + 1, m3=sM3, m3b=sM3 + 1, mb=sMB, mbb=sMB + 1,
               wd=sWDB, wo=sWOB, wv=sWV, wdv=448 * 1024, l2e=sL2E, c2=sC2)
    s += """
    s_lshl_b32 s{t0}, s{rb}, 1
    s_add_u32 s{t0}, s{t0}, s{th}
    s_mul_i32 s{t0}, s{t0}, 144
    s_mul_i32 s{t1}, s{q}, 36
    s_add_u32 s{t0}, s{t0}, s{t1}
    s_lshl_b32 s{t1}, s{ab}, 2
    s_add_u32 s{t0}, s{t0}, s{t1}
    s_lshl_b32 s{t1}, s{gr}, 1
    s_add_u32 s{t0}, s{t0}, s{t1}
    s_lshl_b32 s{t0}, s{t0}, 11
    v_lshl_add_u32 v{h}, v{L}, 4, s{t0}
    v_lshrrev_b32 v{a}, 3, v{L}
    v_lshlrev_b32 v{a}, 10, v{a}
    v_bfe_u32 v{b}, v{L}, 4, 1
    v_lshlrev_b32 v{b}, 2, v{b}
    v_xor_b32 v{b}, v{b}, v{L}
    v_and_b32 v{b}, 7, v{b}
    v_lshl_add_u32 v{a}, v{b}, 4, v{a}
    s_lshl_b32 s{t0}, s{ct}, 7
    v_add_u32 v{w}, s{t0}, v{a}
    v_add_u32 v{w1}, 7168, v{w}
    s_and_b32 s{t0}, s2, 63
    s_lshl_b32 s{t0}, s{t0}, 2
    s_cmp_eq_u32 s{wv}, 0
    s_cselect_b32 s{t0}, s{t0}, {oob}
    v_mov_b32 v{hs}, {oob}
    v_writelane_b32 v{hs}, s{t0}, 0
    """.format(t0=sT0, t1=sT1, rb=sRB, th=sTH, q=sQ, ab=sAB, gr=sGR, h=vHST, L=vL, a=a, b=b, ct=sCT, w=W2D, w1=W2D + 1, wv=sWV, oob=OOB, hs=TMP + 13)
    return L(s)

def att_setup():
    a, b, c = TMP, TMP + 1, TMP + 2
    s = """
    s_mul_i32 s{t0}, s{wv}, {wsz}
    s_add_u32 s{t0}, s{t0}, {wreg}
    v_and_b32 v{a}, 31, v{L}
    v_lshrrev_b32 v{b}, 5, v{L}
    v_mul_u32_u24 v{c}, 72, v{a}
    v_lshl_add_u32 v{c}, v{b}, 3, v{c}
    v_add_u32 v{pw}, s{t0}, v{c}
    v_mul_u32_u24 v{c}, 104, v{a}
    v_lshl_add_u32 v{c}, v{b}, 3, v{c}
    s_add_u32 s{t1}, s{t0}, {voff}
    v_add_u32 v{vw}, s{t1}, v{c}
    v_lshl_add_u32 v{c}, v{b}, 3, v{vw}
    v_mov_b32 v{o0}, 0x3f803f80
    v_mov_b32 v{o1}, 0x3f803f80
    ds_write_b64 v{c}, v[{o0}:{o1}] offset:64
    ds_write_b64 v{c}, v[{o0}:{o1}] offset:72
    v_bfe_u32 v{a}, v{L}, 2, 2
    v_lshl_add_u32 v{a}, v{b}, 3, v{a}
    v_and_b32 v{b}, 3, v{L}
    v_mul_u32_u24 v{c}, 72, v{a}
    v_lshl_add_u32 v{c}, v{b}, 3, v{c}
    v_bfe_u32 v{o0}, v{L}, 4, 1
    v_lshl_add_u32 v{c}, v{o0}, 5, v{c}
    v_add_u32 v{pr}, s{t0}, v{c}
    v_mul_u32_u24 v{c}, 104, v{a}
    v_lshl_add_u32 v{c}, v{b}, 3, v{c}
    v_add_u32 v{c}, s{t1}, v{c}
    v_lshl_add_u32 v{v0}, v{o0}, 6, v{c}
    v_add_u32 v{o0}, 1, v{o0}
    v_lshl_add_u32 v{v1}, v{o0}, 5, v{c}
    v_lshl_add_u32 v{exw}, v{L}, 4, s{t0}
    s_xor_b32 s{t1}, s{wv}, 1
    s_mul_i32 s{t1}, s{t1}, {wsz}
    s_add_u32 s{t1}, s{t1}, {wreg}
    v_lshl_add_u32 v{exr}, v{L}, 4, s{t1}
    s_lshl_b32 s{t0}, s{i}, 2
    s_lshl_b32 s{t1}, s{gr}, 1
    s_add_u32 s{t0}, s{t0}, s{t1}
    s_add_u32 s{t0}, s{t0}, s{th}
    s_lshl_b32 s{t0}, s{t0}, 12
    s_add_u32 s{t0}, s{t0}, {kva}
    """.format(t0=sT0, t1=sT1, wv=sWV, wsz=WREG_SZ, wreg=WREG, a=a, b=b, c=c, L=vL, pw=vPW, vw=vVW, voff=VOFF, o0=TMP + 8, o1=TMP + 9,
               pr=vPR, v0=vVR0, v1=vVR1, exw=vEXW, exr=vEXR, i=sI, gr=sGR, th=sTH, kva=WS_KVA)
    s += kv_lane_addr(vKVA, True)
    return L(s)

def kv_lane_addr(dst, mask):
    a, b, c = TMP, TMP + 1, TMP + 2
    s = """
    v_and_b32 v{a}, 31, v{L}
    v_lshrrev_b32 v{b}, 5, v{L}
    v_lshl_add_u32 v{c}, v{b}, 4, v{a}
    v_add_u32 v{b}, 32, v{b}
    v_cmp_gt_u32 vcc, 16, v{a}
    v_cndmask_b32 v{c}, v{b}, v{c}, vcc
    v_lshl_add_u32 v{d}, v{c}, 2, s{t0}
    """.format(a=a, b=b, c=c, L=vL, d=dst, t0=sT0)
    if mask:
        s += "v_mov_b32 v{b}, {oob}\nv_cmp_gt_u32 vcc, 17, v{a}\nv_cndmask_b32 v{d}, v{b}, v{d}, vcc\n".format(a=a, b=b, d=dst, oob=OOB)
    return s

def o_setup():
    s = """
    s_lshl_b32 s{t0}, s{i}, 1
    s_add_u32 s{t0}, s{t0}, s{gr}
    s_lshl_b32 s{t1}, s{t0}, 7
    s_add_u32 s{t1}, s{t1}, {kf}
    v_and_b32 v{a}, 31, v{L}
    v_lshl_add_u32 v{kp}, v{a}, 2, s{t1}
    s_lshl_b32 s{t0}, s{t0}, 13
    s_add_u32 s{t0}, s{t0}, {kva}
    """.format(t0=sT0, t1=sT1, i=sI, gr=sGR, kf=WS_KF, a=TMP, L=vL, kp=vKPL, kva=WS_KVA)
    return L(s + kv_lane_addr(vKVL, False))

def wphi_setup(A):
    a, b = TMP, TMP + 1; t = 64 + 16
    s = """
    s_lshl_b32 s{t0}, s{i}, 2
    s_lshl_b32 s{t1}, s{gr}, 1
    s_add_u32 s{t0}, s{t0}, s{t1}
    s_lshl_b32 s{t0}, s{t0}, 9
    v_bfe_u32 v{a}, v{L}, 4, 1
    """.format(t0=sT0, t1=sT1, i=sI, gr=sGR, a=a, L=vL)
    if A: s += "v_xor_b32 v%d, s%d, v%d\n" % (a, sTH, a)
    s += """
    v_lshlrev_b32 v{a}, 9, v{a}
    v_lshrrev_b32 v{b}, 5, v{L}
    v_lshl_add_u32 v{a}, v{b}, 7, v{a}
    v_and_b32 v{b}, 15, v{L}
    v_lshl_add_u32 v{a}, v{b}, 1, v{a}
    v_add_u32 v{a}, s{t0}, v{a}
    """.format(a=a, b=b, L=vL, t0=sT0)
    for j in range(8):
        s += "buffer_load_ushort v%d, v%d, %s, 0 offen offset:%d\n" % (t + j, a, srd(SPHI), 32 * ((j & 3) + 8 * (j >> 2)))
    return L(s)

def wphi_finish():
    t = 64 + 16
    out = L("v_and_b32 v%d, 16, v%d\nv_cmp_eq_u32 vcc, 0, v%d" % (TMP + 8, vL, TMP + 8))
    g = []
    for j in range(4):
        g += L("v_lshl_or_b32 v{x}, v{y}, 16, v{x}\nv_cndmask_b32 v{a0}, 0, v{x}, vcc\nv_cndmask_b32 v{a1}, v{x}, 0, vcc".format(x=t + 2 * j, y=t + 2 * j + 1, a0=WPHI + j, a1=WPHI + 4 + j))
    return out + g

def entry():
    s = """
    s_cmp_ge_u32 s2, 256
    s_cbranch_scc1 L_exit
    """
    for reg, off in ((SX, 0), (SQ, 8), (SG, 40), (SU, 48), (SW, 80), (SPHI, 16), (SO, 24), (SD, 56), (SOUT, 64), (SDBG, 72)):
        s += "s_load_dwordx2 s[%d:%d], s[0:1], %d\n" % (reg, reg + 1, off)
    if cfg.stamps:
        s += "s_memrealtime s[%d:%d]\nv_mov_b32 v%d, 0\n" % (sST, sST + 1, vSTAMP)
    s += """
    v_lshrrev_b32 v1, 6, v0
    v_and_b32 v{L}, 63, v0
    v_readfirstlane_b32 s{wv}, v1
    s_and_b32 s{xcd}, s2, 7
    s_lshr_b32 s{idx}, s2, 3
    s_and_b32 s{rb}, s{xcd}, 1
    s_lshl_b32 s{rb}, s{rb}, 3
    s_and_b32 s{t0}, s{idx}, 7
    s_add_u32 s{rb}, s{rb}, s{t0}
    s_lshr_b32 s{q}, s{xcd}, 1
    s_lshr_b32 s{t4}, s{idx}, 3
    s_and_b32 s{ab}, s{t4}, 1
    s_lshl_b32 s{i}, s{q}, 1
    s_add_u32 s{i}, s{i}, s{ab}
    s_lshl_b32 s{t1}, s{t4}, 1
    s_add_u32 s{t0}, s{t0}, s{t1}
    s_and_b32 s{th}, s{wv}, 1
    s_lshr_b32 s{gr}, s{wv}, 1
    s_xor_b32 s{s}, s{th}, s{gr}
    s_lshl_b32 s{l2k}, s{wv}, 11
    s_lshl_b32 s{l1k}, s{wv}, 10
    s_mul_i32 s{lx}, s{gr}, {P}
    s_lshl_b32 s{t1}, s{th}, 12
    s_add_u32 s{lx}, s{lx}, s{t1}
    """.format(L=vL, wv=sWV, xcd=sXCD, idx=sIDX, rb=sRB, t0=sT0, t1=sT1, q=sQ, t4=sT4, ab=sAB, i=sI, th=sTH, gr=sGR, s=sS, l2k=sL2K, l1k=sL1K, lx=sLX, P=PITCH)
    if not cfg.rot: s += "s_mov_b32 s%d, 0\n" % sT0
    for c in range(8):
        s += "s_add_u32 s{t1}, s{t0}, {c}\ns_and_b32 s{t1}, s{t1}, 7\ns_lshl_b32 s{kx}, s{t1}, 7\ns_mul_i32 s{kq}, s{t1}, {a}\ns_mul_i32 s{kg}, s{t1}, {b}\n".format(
            t0=sT0, t1=sT1, c=c, kx=sKX + c, kq=sKQ + c, kg=sKG + c, a=64 * 3072, b=64 * 3584)
    s += """
    s_lshl_b32 s{t0}, s{rb}, 2
    s_add_u32 s{t0}, s{t0}, s{wv}
    s_lshl_b32 s{t0}, s{t0}, 15
    v_lshrrev_b32 v2, 3, v{L}
    v_lshlrev_b32 v2, 10, v2
    v_add_u32 v2, s{t0}, v2
    v_lshrrev_b32 v3, 4, v{L}
    v_xor_b32 v3, v3, v{L}
    v_and_b32 v3, 7, v3
    v_lshl_add_u32 v{x0}, v3, 4, v2
    v_add_u32 v{x2}, {d2}, v{x0}
    v_xor_b32 v3, 4, v3
    v_lshl_add_u32 v{x1}, v3, 4, v2
    v_add_u32 v{x1}, 7168, v{x1}
    v_add_u32 v{x3}, {d2}, v{x1}
    s_lshl_b32 s{tt}, s{xcd}, 2
    s_and_b32 s{t0}, s{idx}, 3
    s_add_u32 s{tt}, s{tt}, s{t0}
    s_lshr_b32 s{ct}, s{idx}, 2
    """.format(t0=sT0, rb=sRB, wv=sWV, L=vL, x0=XD, x1=XD + 1, x2=XD + 2, x3=XD + 3, d2=2 * 7168, tt=sTT, xcd=sXCD, idx=sIDX, ct=sCT)
    for reg, sz in ((SX, 0x200000), (SQ, 0x180000), (SG, 0x1C0000), (SU, 0x1C0000), (SD, 0x1C0000), (SO, 0x80000), (SW, 0x10000000), (SOUT, 0x200000), (SDBG, 256), (SPHI, 16384)):
        s += "s_mov_b32 s%d, 0x%x\ns_mov_b32 s%d, 0x20000\n" % (reg + 2, sz, reg + 3)
    s += "s_waitcnt lgkmcnt(0)\n"
    if cfg.stamps: s += "v_writelane_b32 v%d, s%d, 0\n" % (vSTAMP, sST)
    s += "s_cmp_ge_u32 s%d, 2\ns_cbranch_scc1 L_typeB\n" % sT4
    ins = L(s)
    for x in ins:
        if x.kind == "smem": x.nowait = True
    return ins

def defaults():
    cfg.p2period = 72; cfg.rd_early = True
    cfg.a_att = 26; cfg.a_kvflag = 40; cfg.a_h1 = 24; cfg.a_h2 = 8
    cfg.b_h0 = 26; cfg.b_att = 30; cfg.b_h3 = 12; cfg.b_kvlat = 6; cfg.b_o = 8
    cfg.flag_delay = 24; cfg.flag_delay2 = 10
    cfg.a_p0 = 16; cfg.b_p0 = 24
    cfg.lead = [0, 3, 3, 3, 3]; cfg.poll_lead = 4; cfg.hstep = 2

def generate(path):
    label_n[0] = 0
    import fw; fw.LOOSE = cfg.x_nodma
    e, _ = pad_hazards(entry())
    progs = {}
    for typ in "AB":
        p = build_type(typ)
        if cfg.x_nodma:
            k0 = [i for i, x in enumerate(p) if getattr(x, "kind", "") == "barrier"][0]
            q = p[:k0]
            for x in p[k0:]:
                if getattr(x, "dma", False):
                    y = I("s_nop 0");
                    q.append(y)
                else: q.append(x)
            p = q
        k = [i for i, x in enumerate(p) if getattr(x, "kind", "") == "barrier"]
        ins = wphi_finish()
        p = p[:k[4] + 1] + ins + p[k[4] + 1:]
        if typ == "A":
            k = [i for i, x in enumerate(p) if getattr(x, "kind", "") == "barrier"]
            c2 = L("s_lshl_b32 s{t0}, s{ab}, 1\ns_add_u32 s{t0}, s{t0}, s{gr}\ns_sub_u32 s{kx}, 16, s{t0}\ns_lshl_b32 s{kx}, s{kx}, 11".format(t0=sSPIN, ab=sAB, gr=sGR, kx=sKX))
            p = p[:k[10] + 1] + c2 + p[k[10] + 1:]
        progs[typ] = finalize(p, typ)
    body = emit(e) + emit(progs["A"]) + "L_typeB:\n" + emit(progs["B"]) + "L_exit:\n    s_endpgm\n"
    ref = open("parallel_sum__linear_kernel_hedgehog__glu_gated_bilinear__prompt.s.ref").read().split("\n")
    head = [x for x in ref if x.startswith(";") and "@launch" not in x and "Override" not in x and "grid=ceil" not in x]
    txt = "\n".join(head) + "\n; @launch grid=(256,1,1) block=(256,1,1) lds=%d\n" % LDS_BYTES
    txt += """.amdgcn_target "amdgcn-amd-amdhsa--gfx950"
.text
.globl {k}
.p2align 8
.type {k},@function
{k}:
""".format(k=KNAME) + body + """.section .rodata,"a"
.p2align 6
.amdhsa_kernel {k}
  .amdhsa_next_free_vgpr 512
  .amdhsa_next_free_sgpr 102
  .amdhsa_accum_offset 256
  .amdhsa_group_segment_fixed_size 0
  .amdhsa_kernarg_size 88
  .amdhsa_user_sgpr_count 2
  .amdhsa_user_sgpr_kernarg_segment_ptr 1
  .amdhsa_system_sgpr_workgroup_id_x 1
.end_amdhsa_kernel
""".format(k=KNAME)
    open(path, "w").write(txt)
    if cfg.stamps: open(path[:-2] + ".names", "w").write("\n".join(stamp_names))

if __name__ == "__main__":
    defaults()
    path = sys.argv[1]
    for kv in sys.argv[2:]:
        k, v = kv.split("=")
        setattr(cfg, k, eval(v))
    generate(path)
```

```python
import sys
from fw import *

KNAME = "parallel_sum__linear_kernel_hedgehog__glu_gated_bilinear__prompt_kernel"

class Cfg:
    rot = True
    stamps = False
    codepf = False
    spin = 200000
    dbgout = False
    x_nostat = False; x_notask = False; x_nodma = False; x_nobar = False
cfg = Cfg()

PITCH = 8224
NSLOT = 16
WREG = NSLOT * PITCH
WREG_SZ = 5632
VOFF = 2304
STAT = WREG + 4 * WREG_SZ
CSP = STAT + 2048
CST = CSP + 3072
LDS_BYTES = 163840
WS_H = 0
WS_KVA = 0xA00000
WS_FL = 0xA40000
WS_KF = 0xA50000
WS_ST = 0xB00000
OOB = 0x40000000

SX, SQ, SG, SU, SD, SO, SW, SOUT, SDBG, SPHI = 4, 8, 12, 16, 20, 24, 28, 32, 36, 40
def srd(b): return "s[%d:%d]" % (b, b + 3)
sWV, sTH, sGR, sRB, sQ, sT4, sAB, sI, sTT, sCT, sIDX, sXCD = range(44, 56)
sKX, sKQ, sKG = 56, 64, 72
sLX, sL2K, sL1K, sT0, sT1, sSPIN = 80, 81, 82, 83, 84, 85
sM1, sM2, sM3, sMB = 86, 88, 90, 92
sWDB, sWOB, sC2, sL2E, sS = 94, 95, 96, 97, 3
sST = 98
SET0, SET1, WF = 0, 64, 128
SEL01, SEL23 = 144, 148
vPW, vPR, vVW, vVR0 = 152, 153, 154, 155
CSD = 156
vVR1, vKVA, vKFL, vEXW, vEXR = 160, 161, 162, 163, 164
vKVL, vKPL = 152, 153
vSTAMP = 166
vNM, vRS, vR2 = 168, 170, 172
XR, WR1, WR3, XD, WR2 = 174, 178, 178, 182, 182
W2R = 174
WQD, WGD, WHD = 186, 188, 190
vHLD, vPOL = 186, 187
vCSA, vCSR, vHST, vFLG, vL, W2D = 191, 193, 195, 196, 197, 198
WPHI = 200
KVD = 208
TMP = 240
RSD, SQD = 64, 68
ACC2 = [96, 112, 208, 224]

def vr(b, n=1): return "v%d" % b if n == 1 else "v[%d:%d]" % (b, b + n - 1)
def ar(b, n): return "a[%d:%d]" % (b, b + n - 1)

stamp_names = []
def stamp(name):
    if cfg.stamps != True: return []
    if name not in stamp_names: stamp_names.append(name)
    k = stamp_names.index(name)
    return [I("s_memtime s[%d:%d]" % (sST, sST + 1)), I("v_writelane_b32 v%d, s%d, %d" % (vSTAMP, sST, k + 2))]

def addr_wfull(dst, n, att, swap, t0=TMP):
    a, b = vr(t0), vr(t0 + 1)
    s = """
    v_lshrrev_b32 {a}, 5, v{L}
    v_lshlrev_b32 {a}, 10, {a}
    v_bfe_u32 {b}, v{L}, 2, 2
    v_lshl_add_u32 {a}, {b}, 7, {a}
    v_and_b32 {b}, 3, v{L}
    v_lshl_add_u32 {a}, {b}, 3, {a}
    v_bfe_u32 {b}, v{L}, 3, 1
    v_xor_b32 {b}, s{gr}, {b}
    v_lshl_add_u32 {a}, {b}, 6, {a}
    v_bfe_u32 {b}, v{L}, 4, 1
    """.format(a=a, b=b, L=vL, gr=sGR)
    if att:
        if swap: s += "v_xor_b32 %s, s%d, %s\n" % (b, sTH, b)
        s += "v_lshl_add_u32 %s, %s, 5, %s\n" % (a, b, a)
    else:
        s += "v_mul_u32_u24 %s, %d, %s\nv_add_u32 %s, %s, %s\n" % (b, PITCH, b, a, a, b)
    return L(s) + wr_variants(dst, n, a, 12)

def wr_variants(dst, n, a, sh):
    s = "s_lshl_b32 s%d, s%d, %d\ns_xor_b32 s%d, s%d, %d\n" % (sT0, sS, sh, sT1, sT0, 1 << sh)
    k = dst
    if n == 4:
        s += "v_add_u32 v%d, s%d, %s\nv_add_u32 v%d, s%d, %s\n" % (k, sT0, a, k + 1, sT1, a)
        s += "v_add_u32 v%d, %d, v%d\nv_add_u32 v%d, %d, v%d\n" % (k + 2, 8 * PITCH, k, k + 3, 8 * PITCH, k + 1)
    else:
        s += "v_add_u32 %s, %d, %s\n" % (a, 8 * PITCH, a)
        s += "v_add_u32 v%d, s%d, %s\nv_add_u32 v%d, s%d, %s\n" % (k, sT0, a, k + 1, sT1, a)
    ins = L(s)
    return [ins]

def addr_whalf(dst, t0=TMP):
    a, b = vr(t0), vr(t0 + 1)
    s = """
    v_lshrrev_b32 {a}, 5, v{L}
    v_lshlrev_b32 {a}, 9, {a}
    v_bfe_u32 {b}, v{L}, 2, 2
    v_lshl_add_u32 {a}, {b}, 6, {a}
    v_and_b32 {b}, 3, v{L}
    v_lshl_add_u32 {a}, {b}, 3, {a}
    v_bfe_u32 {b}, v{L}, 4, 1
    v_mul_u32_u24 {b}, 4128, {b}
    v_add_u32 {a}, {a}, {b}
    v_mov_b32 {b}, s{gr}
    v_lshl_add_u32 {a}, {b}, 5, {a}
    """.format(a=a, b=b, L=vL, gr=sGR)
    return L(s) + wr_variants(dst, 4, a, 11)

def addr_cs(swap, t0=TMP):
    a = vr(t0)
    s = "s_lshl_b32 s%d, s%d, 8\ns_lshl_b32 s%d, s%d, 7\ns_add_u32 s%d, s%d, s%d\ns_add_u32 s%d, s%d, %d\n" % (sT0, sGR, sT1, sTH, sT0, sT0, sT1, sT0, sT0, CSP)
    s += "v_and_b32 %s, 31, v%d\n" % (a, vL)
    if swap: s += "s_lshl_b32 s%d, s%d, 4\nv_xor_b32 %s, s%d, %s\n" % (sT1, sTH, a, sT1, a)
    s += """
    v_lshl_add_u32 v{ca}, {a}, 2, s{t}
    v_lshrrev_b32 {a}, 5, v{L}
    v_lshl_add_u32 v{ca}, {a}, 9, v{ca}
    """.format(a=a, L=vL, ca=vCSA, t=sT0)
    return [L(s)]

def addr_cst(t0=TMP):
    a = vr(t0)
    return L("""
    s_mul_i32 s{t}, s{wv}, 768
    s_add_u32 s{t}, s{t}, {cst}
    v_lshl_add_u32 v{cw}, v{L}, 2, s{t}
    v_lshrrev_b32 {a}, 5, v{L}
    v_lshl_add_u32 v{cr}, {a}, 4, s{t}
    """.format(a=a, L=vL, cw=vCSA + 1, cr=vCSR, t=sT0, wv=sWV, cst=CST))

def addr_p2(t0=TMP):
    a, b = vr(t0), vr(t0 + 1)
    s = """
    v_lshrrev_b32 {a}, 5, v{L}
    v_lshlrev_b32 {a}, 9, {a}
    v_bfe_u32 {b}, v{L}, 2, 2
    v_lshl_add_u32 {a}, {b}, 7, {a}
    v_and_b32 {b}, 3, v{L}
    v_lshl_add_u32 {a}, {b}, 3, {a}
    v_bfe_u32 {b}, v{L}, 3, 1
    v_lshl_add_u32 {a}, {b}, 6, {a}
    v_bfe_u32 {b}, v{L}, 4, 1
    v_lshl_add_u32 {a}, {b}, 5, {a}
    v_xor_b32 {b}, 64, {a}
    v_add_u32 v{w0}, s{l2k}, {a}
    v_add_u32 v{w1}, s{l2k}, {b}
    v_add_u32 v{w2}, {hi}, v{w0}
    v_add_u32 v{w3}, {hi}, v{w1}
    """.format(a=a, b=b, L=vL, w0=W2R, w1=W2R + 1, w2=W2R + 2, w3=W2R + 3, l2k=sL2K, hi=8 * PITCH)
    ins = L(s)
    ins.append(L("""
    s_mul_i32 s{t0}, s{tt}, {a}
    s_mul_i32 s{t1}, s{wv}, {b}
    s_add_u32 s{t0}, s{t0}, s{t1}
    v_lshl_add_u32 v{h}, v{L}, 4, s{t0}
    """.format(t0=sT0, t1=sT1, tt=sTT, wv=sWV, a=144 * 2048, b=36 * 2048, h=vHLD, L=vL)))
    ins.append(L("""
    s_lshl_b32 s{t0}, s{tt}, 2
    s_add_u32 s{t0}, s{t0}, s{wv}
    s_lshl_b32 s{t0}, s{t0}, 7
    s_add_u32 s{t0}, s{t0}, {fl}
    v_and_b32 {a}, 7, v{L}
    v_lshl_add_u32 v{p}, {a}, 2, s{t0}
    """.format(t0=sT0, tt=sTT, wv=sWV, fl=WS_FL, a=a, L=vL, p=vPOL)))
    return ins

label_n = [0]
def poll(addr, res, need, sr=SW, cmp="gt"):
    label_n[0] += 1
    k = label_n[0]
    ld = "buffer_load_dword v%d, v%d, %s, 0 offen sc1" % (res, addr, srd(sr))
    c = "v_cmp_%s_u32 vcc, %s, v%d" % (cmp, need, res)
    chk = Raw([c, "s_nop 4", "s_cbranch_vccz L_ok%d" % k,
               "s_mov_b32 s%d, %d" % (sSPIN, cfg.spin),
               "L_re%d:" % k, "s_sleep 1", ld, "s_waitcnt vmcnt(0)", c, "s_sub_u32 s%d, s%d, 1" % (sSPIN, sSPIN),
               "s_cbranch_scc1 L_ok%d" % k, "s_nop 2", "s_cbranch_vccnz L_re%d" % k,
               "L_ok%d:" % k],
              rd=["v%d" % res, "v%d" % addr] + regs_of(need), wr=["vcc", "scc", "s%d" % sSPIN])
    chk.cost = 32
    return I(ld), chk

def class_poll(c, res, needr):
    na, nb = [(0, 1), (1, 1), (2, 1), (2, 2), (2, 3)][c]
    iss, chk = poll(vPOL, res, "v%d" % needr)
    return iss, [I("v_cndmask_b32 v%d, %d, %d, s[%d:%d]" % (needr, na, nb, sMB, sMB + 1)), chk]

def set_flag(level, tag, t):
    return stamp("f%d_0" % level) + [Wait(tag)] + stamp("f%d_1" % level) + [I("v_mov_b32 v%d, %d" % (t, level)), I("buffer_store_dword v%d, v%d, %s, 0 offen sc1" % (t, vFLG, srd(SW)))]

def t_stat_add():
    a, b = TMP, TMP + 1
    s = """
    s_lshl_b32 s{t0}, s{th}, 10
    s_add_u32 s{t0}, s{t0}, {st}
    v_and_b32 v{b}, 31, v{L}
    v_lshl_add_u32 v{b}, v{b}, 4, s{t0}
    s_lshl_b32 s{t1}, s{gr}, 3
    s_add_u32 s{t0}, s{t0}, s{t1}
    v_lshl_add_u32 v{a}, v{L}, 4, s{t0}
    """.format(t0=sT0, t1=sT1, th=sTH, gr=sGR, st=STAT, a=a, b=b, L=vL)
    pre = [L(s)]
    out = []
    for j, m in ((1, sM1), (2, sM2), (3, sM3)):
        for blk in range(2):
            q = SQD + 4 * blk
            out += L("v_cndmask_b32 v%d, v%d, v%d, s[%d:%d]" % (q, q, q + j, m, m + 1))
    out.append(L("v_permlane32_swap_b32 v%d, v%d\nv_add_f32 v%d, v%d, v%d" % (SQD, SQD + 4, RSD + 1, SQD, SQD + 4)))
    out += L("ds_write_b64 v%d, v[%d:%d]" % (a, RSD, RSD + 1))
    return pre, out

def t_cs_add(tile0):
    return L("ds_write_b32 v%d, v%d offset:%d" % (vCSA, CSD, 512 * tile0))

def t_cs_tot(tile0, p):
    t = vCSR + 1
    out = L("v_xor_b32 v%d, 0x80, v%d\nds_read_b32 v%d, v%d offset:%d" % (t, vCSA, t, t, 512 * tile0))
    out.append(Gap(2))
    out += L("v_add_f32 v%d, v%d, v%d\nds_write_b32 v%d, v%d offset:%d" % (t, t, CSD, vCSA + 1, t, 256 * p))
    return out

def t_stat_fin():
    b = TMP + 1; t = TMP + 4
    out = L("ds_read_b128 v[%d:%d], v%d\nds_read_b128 v[%d:%d], v%d offset:512" % (t, t + 3, b, t + 4, t + 7, b))
    out.append(Gap(2))
    for blk in range(2):
        r = t + 4 * blk
        out += L("""
        v_add_f32 v{r}, v{r}, v{r2}
        v_add_f32 v{r1}, v{r1}, v{r3}
        v_mul_f32 v{nm}, 0xbb000000, v{r}
        v_mul_f32 v{r2}, v{nm}, v{nm}
        v_fma_f32 v{r1}, v{r1}, s{c}, -v{r2}
        v_max_f32 v{r1}, 0, v{r1}
        v_add_f32 v{r1}, 0x3727c5ac, v{r1}
        v_rsq_f32 v{rs}, v{r1}
        v_mul_f32 v{rr}, v{rs}, v{rs}
        """.format(nm=vNM + blk, r=r, r1=r + 1, r2=r + 2, r3=r + 3, rs=vRS + blk, rr=vR2 + blk, c=sC2))
    return out

TILE_AT = {}
def cs_reads(tile, dst, r4s):
    out = []
    for k, r4 in enumerate(r4s):
        out += L("ds_read_b128 v[%d:%d], v%d offset:%d" % (dst + 4 * k, dst + 4 * k + 3, vCSR, TILE_AT[tile] + 32 * r4))
    return out

def t_hepi(acc, tile, soff, imm, tag):
    out = cs_reads(tile, TMP, range(4))
    out.append(Gap(2))
    for blk in range(2):
        g = acc + 16 * blk
        for r in range(8 if not cfg.x_notask else 0):
            out += L("v_fmac_f32 v%d, v%d, v%d\nv_fmac_f32 v%d, v%d, v%d" % (g + r, vNM + blk, TMP + r, g + 8 + r, vNM + blk, TMP + 8 + r))
            out += L("v_mul_f32 v%d, v%d, v%d" % (g + r, vR2 + blk, g + r))
            out += L("v_mul_f32 v%d, v%d, v%d" % (g + r, g + r, g + 8 + r))
            if r & 1: out += L("v_cvt_pk_bf16_f32 v%d, v%d, v%d" % (g + r // 2, g + r - 1, g + r))
        st = L("buffer_store_dwordx4 v[%d:%d], v%d, %s, s%d offen offset:%d sc1" % (g, g + 3, vHST, srd(SW), sT1, imm + 1024 * blk), tag=tag if blk else None)
        out.append(L(soff) + st)
    return out

def ln_tile(acc, blk, tile):
    out = []
    for half in range(2):
        out += cs_reads(tile, TMP, (2 * half, 2 * half + 1))
        out.append(Gap(2))
        for r in range(8):
            g = acc + 8 * half + r
            out += L("v_fmac_f32 v%d, v%d, v%d\nv_mul_f32 v%d, v%d, v%d" % (g, vNM + blk, TMP + r, g, vRS + blk, g))
            if r & 1: out += L("v_cvt_pk_bf16_f32 v%d, v%d, v%d" % (acc + 4 * half + r // 2, g - 1, g))
    return out

def phi_mfma(acc, tmp8):
    out = []
    for j in range(8): out += L("v_mov_b32 v%d, v%d" % (tmp8 + j, acc + j))
    out += L("v_mfma_f32_32x32x16_bf16 v[%d:%d], v[%d:%d], v[%d:%d], 0" % (acc, acc + 15, WPHI, WPHI + 3, tmp8, tmp8 + 3))
    out += L("v_mfma_f32_32x32x16_bf16 v[%d:%d], v[%d:%d], v[%d:%d], v[%d:%d]" % (acc, acc + 15, WPHI + 4, WPHI + 7, tmp8 + 4, tmp8 + 7, acc, acc + 15))
    out.append(Gap(2))
    return out

def softmax2(p):
    e = TMP; a, b, c, d = TMP + 8, TMP + 9, TMP + 10, TMP + 11
    s = """
    v_max3_f32 v{a}, v{p0}, v{p1}, v{p2}
    v_min3_f32 v{b}, v{p0}, v{p1}, v{p2}
    v_max3_f32 v{a}, v{a}, v{p3}, v{p4}
    v_min3_f32 v{b}, v{b}, v{p3}, v{p4}
    v_max3_f32 v{a}, v{a}, v{p5}, v{p6}
    v_min3_f32 v{b}, v{b}, v{p5}, v{p6}
    v_max_f32 v{a}, v{a}, v{p7}
    v_max_f32_e64 v{b}, -v{b}, -v{p7}
    """.format(a=a, b=b, **{"p%d" % i: p + i for i in range(8)})
    out = L(s)
    out.append(L("v_permlane32_swap_b32 v{a}, v{b}\nv_max_f32 v{a}, v{a}, v{b}\nv_mul_f32 v{a}, 0xbfb8aa3b, v{a}\nv_mov_b32 v{b}, v{a}".format(a=a, b=b)))
    out.append(L("v_permlane32_swap_b32 v{a}, v{b}".format(a=a, b=b)))
    for i in range(8):
        out += L("v_fma_f32 v%d, v%d, s%d, v%d" % (e + i, p + i, sL2E, a))
        out += L("v_fma_f32 v%d, -v%d, s%d, v%d" % (p + i, p + i, sL2E, b))
        out += L("v_exp_f32 v%d, v%d" % (e + i, e + i))
        out += L("v_exp_f32 v%d, v%d" % (p + i, p + i))
        if i == 1: out += L("v_add_f32 v%d, v%d, v%d\nv_add_f32 v%d, v%d, v%d" % (c, e, e + 1, d, p, p + 1))
        elif i > 1: out += L("v_add_f32 v%d, v%d, v%d\nv_add_f32 v%d, v%d, v%d" % (c, c, e + i, d, d, p + i))
    out.append(L("v_permlane32_swap_b32 v{c}, v{d}\nv_add_f32 v{c}, v{c}, v{d}\nv_rcp_f32 v{c}, v{c}".format(c=c, d=d)))
    out.append(L("v_mov_b32 v{d}, v{c}".format(c=c, d=d)))
    out.append(L("v_permlane32_swap_b32 v{c}, v{d}".format(c=c, d=d)))
    for i in range(8):
        out += L("v_mul_f32 v%d, v%d, v%d" % (p + i, d, p + i))
        if i & 1: out += L("v_cvt_pk_bf16_f32 v%d, v%d, v%d" % (p + i // 2, p + i - 1, p + i))
    for i in range(8):
        out += L("v_mul_f32 v%d, v%d, v%d" % (e + i, c, e + i))
        if i & 1: out += L("v_cvt_pk_bf16_f32 v%d, v%d, v%d" % (p + 4 + i // 2, e + i - 1, e + i))
    return out

def t_att_k():
    out = []
    if cfg.x_notask: return [I("s_nop 0")]
    FR = 32
    for blk in range(2):
        va = 32 + 16 * blk; ka = 16 * blk
        out += ln_tile(va, blk, 1)
        for j in range(4): out += L("ds_write_b64 v%d, v[%d:%d] offset:%d" % (vVW, va + 2 * j, va + 2 * j + 1, 16 * j))
        out += ln_tile(ka, blk, 0)
        out += phi_mfma(ka, TMP)
        for hh in range(2):
            p = ka + 8 * hh
            out += softmax2(p)
            for j in range(2):
                out += L("ds_write_b64 v%d, v[%d:%d] offset:%d" % (vPW, p + 4 + 2 * j, p + 5 + 2 * j, 16 * j))
                out += L("ds_write_b64 v%d, v[%d:%d] offset:%d" % (vPW, p + 2 * j, p + 1 + 2 * j, 32 + 16 * j))
            for ks in range(2):
                for j in range(2):
                    out += L("ds_read_b64_tr_b16 v[%d:%d], v%d offset:%d" % (FR + 8 * ks + 2 * j, FR + 8 * ks + 2 * j + 1, vPR, 1152 * ks + 288 * j))
                    out += L("ds_read_b64_tr_b16 v[%d:%d], v%d offset:%d" % (FR + 8 * ks + 4 + 2 * j, FR + 8 * ks + 5 + 2 * j, (vVR0, vVR1)[hh], 1664 * ks + 416 * j))
            out.append(Gap(3))
            d = KVD + 16 * hh
            for ks in range(2):
                c = "0" if (blk == 0 and ks == 0) else vr(d, 16)
                out += L("v_mfma_f32_32x32x16_bf16 %s, %s, %s, %s" % (vr(d, 16), vr(FR + 8 * ks, 4), vr(FR + 8 * ks + 4, 4), c))
    out.append(Gap(2))
    for r4 in range(4): out += L("ds_write_b128 v%d, %s offset:%d" % (vEXW, vr(KVD + 16 + 4 * r4, 4), 1024 * r4))
    return out

def t_kv_pub():
    out = []
    for r4 in range(4): out += L("ds_read_b128 %s, v%d offset:%d" % (vr(KVD + 16 + 4 * r4, 4), vEXR, 1024 * r4))
    out.append(Gap(2))
    for r in range(16):
        out += L("v_add_f32 v%d, v%d, v%d" % (KVD + r, KVD + r, KVD + 16 + r))
        out += L("buffer_atomic_add_f32 v%d, v%d, %s, 0 offen offset:%d" % (KVD + r, vKVA, srd(SW), 256 * r), tag="kvat" if r == 15 else None)
    return out

def t_att_q():
    out = []
    if cfg.x_notask: return [I("s_nop 0")]
    for blk in range(2):
        qa = SET1 + 16 * blk
        out += ln_tile(qa, blk, 2)
        out += phi_mfma(qa, TMP)
        for hh in range(2): out += softmax2(qa + 8 * hh)
    return out

def t_kv_load():
    out = []
    for hh in range(2):
        grp = L("s_mov_b32 s%d, %d" % (sT1, 4096 * hh))
        for r in range(16):
            grp += L("buffer_load_dword v%d, v%d, %s, s%d offen offset:%d sc1" % (16 * hh + r, vKVL, srd(SW), sT1, 256 * r))
        out.append(grp)
    return out

def t_o():
    out = []
    for hh in range(2):
        for j in range(8): out += L("v_cvt_pk_bf16_f32 v%d, v%d, v%d" % (16 * hh + j, 16 * hh + 2 * j, 16 * hh + 2 * j + 1))
    seq = [(hh, blk) for hh in range(2) for blk in range(2)]
    def mm(k):
        hh, blk = seq[k]; d = 32 + 16 * (k & 1); p = SET1 + 16 * blk + 8 * hh
        return L("v_mfma_f32_32x32x16_bf16 %s, %s, %s, 0" % (vr(d, 16), vr(16 * hh, 4), vr(p + 4, 4))) + \
               L("v_mfma_f32_32x32x16_bf16 %s, %s, %s, %s" % (vr(d, 16), vr(16 * hh + 4, 4), vr(p, 4), vr(d, 16)))
    def fin(k):
        hh, blk = seq[k]; d = 32 + 16 * (k & 1)
        o = L("v_add_f32 v%d, 0x358637bd, v%d\nv_rcp_f32 v%d, v%d" % (d + 8, d + 8, d + 8, d + 8))
        for r in range(8):
            o += L("v_mul_f32 v%d, v%d, v%d" % (d + r, d + 8, d + r))
            if r & 1: o += L("v_cvt_pk_bf16_f32 v%d, v%d, v%d" % (d + r // 2, d + r - 1, d + r))
        st = L("s_mov_b32 s%d, %d" % (sT1, 28 * 2048)) + \
             L("buffer_store_dwordx4 %s, v%d, %s, s%d offen offset:%d sc1" % (vr(d, 4), vHST, srd(SW), sT1, 2048 * hh + 1024 * blk), tag="ost" if k == 3 else None)
        return o + [st]
    out += mm(0) + mm(1) + [Gap(1)] + fin(0) + mm(2) + fin(1) + mm(3) + fin(2) + fin(3)
    return out

def dma(vo, sr, so, imm, tag=None):
    return L("buffer_load_dwordx4 v%d, %s, %s offen%s lds" % (vo, srd(sr), so, " offset:%d" % imm if imm else ""), tag=tag)

def m0set(base, lit): return L("s_add_u32 m0, s%d, %d" % (base, lit))

def dma_x(c, slot, tag):
    g = m0set(sLX, slot * PITCH)
    return [g + dma(XD, SX, "s%d" % (sKX + c), 0)] + [dma(XD + i, SX, "s%d" % (sKX + c), 1024 * i, tag if i == 3 else None) for i in range(1, 4)]

def dma_full(vo, sr, kreg, extra, slot, tag):
    g = m0set(sL2K, slot * PITCH)
    so = "s%d" % kreg
    if extra:
        g += L("s_add_u32 s%d, s%d, %d" % (sT0, kreg, extra)); so = "s%d" % sT0
        return [g + dma(vo, sr, so, 0) + dma(vo + 1, sr, so, 1024, tag)]
    return [g + dma(vo, sr, so, 0) + dma(vo + 1, sr, so, 1024, tag)]

def dma_half(c, slot, tag):
    so = "s%d" % (sKG + c)
    return [m0set(sL1K, slot * PITCH) + dma(WHD, SG, so, 0), m0set(sL1K, slot * PITCH + 4128) + dma(WHD, SU, so, 0, tag)]

def slice_src(n):
    if n < 8: return SD, sWDB, 128 * (n >> 2) + 16 * (n & 3)
    if n < 16: return SD, sWDB, 64 * (4 + ((n - 8) >> 2)) + 16 * (n & 3)
    if n < 20: return SD, sWDB, 384 + 16 * (n - 16)
    if n < 28: return SD, sWDB, 64 * (2 * ((n - 20) >> 2) + 1) + 16 * (n & 3)
    return SO, sWOB, 16 * (n - 28)

def dma_w2(n, slot):
    sr, base, row = slice_src(n)
    g = m0set(sL2K, slot * PITCH) + L("s_add_u32 s%d, s%d, %d" % (sT0, base, row * 1024))
    return [g + dma(W2D, sr, "s%d" % sT0, 0) + dma(W2D + 1, sr, "s%d" % sT0, 1024, "w2_%d" % n)]

def h_load(n):
    g = L("s_mov_b32 s%d, %d" % (sT1, n * 2048))
    a = 8 * (n % 32)
    for b in range(2):
        g += L("buffer_load_dwordx4 %s, v%d, %s, s%d offen%s sc1" % (ar(a + 4 * b, 4), vHLD, srd(SW), sT1, " offset:1024" if b else ""))
    return g

def build_type(typ):
    A = typ == "A"
    passes = [("att2", 2, SET0, 0), ("pair", 2, SET1, 2), ("half", 1, SET0, 4)] if A else \
             [("pair", 2, SET0, 0), ("q", 1, SET1, 2), ("pair", 2, SET0, 3)]
    WRs = [WR1, WR2, WR3]
    for p, (kind, T, acc, tile0) in enumerate(passes):
        for j in range(T): TILE_AT[tile0 + j] = 256 * p + 128 * j
    S = Sched()
    step_beat = {}
    nt = lambda g: passes[g // 32][1]
    wbuf = lambda g, j: WF + (8 * (g & 1) + 4 * j if nt(g) == 2 else 4 * (g & 3))

    slot_of = {}
    for c in range(8):
        slot_of[("x", c)] = 2 * (c % 4); slot_of[("w", 0, c)] = 8 + 2 * (c % 4)
    def item_dma(it):
        if it[0] == "x": return dma_x(it[1], slot_of[it], "x%d" % it[1])
        if it[0] == "s": return dma_w2(it[1], slot_of[it])
        _, p, c = it; kind = passes[p][0]; sl = slot_of[it]; tag = "w%d_%d" % (p, c)
        if kind == "att2": return dma_full(WQD, SQ, sKQ + c, 0, sl, None) + dma_full(WQD, SQ, sKQ + c, 1024, sl + 1, tag)
        if kind == "q": return dma_full(WQD, SQ, sKQ + c, 0, sl, tag)
        if kind == "half": return dma_half(c, sl, tag)
        ex = 128 if (not A and p == 2) else 0
        return dma_full(WGD, SG, sKG + c, ex, sl, None) + dma_full(WGD, SU, sKG + c, ex, sl + 1, tag)
    def item_slots(it):
        if it[0] == "x": return 2
        if it[0] == "s": return 1
        return 2 if passes[it[1]][0] in ("att2", "pair") else 1

    for g in range(96):
        p, c, t = g // 32, (g // 4) % 8, g % 4
        kind, T, acc, tile0 = passes[p]
        step_beat[g] = len(S.beats)
        k = g % 32
        for j in range(T):
            for b in range(2):
                d = vr(acc + 32 * j + 16 * b, 16)
                S.beat(I("v_mfma_f32_32x32x16_bf16 %s, %s, %s, %s" % (d, vr(wbuf(g, j), 4), ar(8 * k + 4 * b, 4), "0" if k == 0 else d)))
        if t < 2 and not cfg.x_nostat:
            def m16(d, sel, src, first): S.beat(I("v_mfma_f32_16x16x32_bf16 %s, %s, %s, %s" % (vr(d, 4), vr(sel, 4), src, "0" if first else vr(d, 4))), 16)
            def m4(b, h): S.beat(I("v_mfma_f32_4x4x4_16b_bf16 %s, %s, %s, %s" % (vr(SQD + 4 * b, 4), ar(8 * k + 4 * b + 2 * h, 2), ar(8 * k + 4 * b + 2 * h, 2), "0" if (k == 0 and h == 0) else vr(SQD + 4 * b, 4))), 8)
            if p == 0:
                m4(0, 0); m4(1, 0); m16(RSD, SEL01, ar(8 * k, 4), k == 0); m4(0, 1); m4(1, 1); m16(RSD, SEL23, ar(8 * k + 4, 4), False)
            for j in range(T): m16(CSD, (SEL01, SEL23)[j], vr(wbuf(g, j), 4), k == 0 and j == 0)
    step_beat[96] = len(S.beats)
    sl_beat = {}
    for n in range(36):
        sl_beat[n] = len(S.beats)
        w = WF + 8 * (n & 1); a = 8 * (n % 32)
        for cb in range(2):
            for tb in range(2):
                d = vr(ACC2[2 * cb + tb], 16)
                S.beat(I("v_mfma_f32_32x32x16_bf16 %s, %s, %s, %s" % (d, vr(w + 4 * cb, 4), ar(a + 4 * tb, 4), "0" if n == 0 else d)), cfg.p2period)
    sl_beat[36] = len(S.beats)
    S.beat(None)

    bar_step = {}
    for cc in range(24):
        T = passes[cc // 8][1]
        bar_step[cc] = 4 * cc + (3 if (T == 2 or cc == 23) else 2)
    last_rd = {}
    def w_reads(g, j):
        p, c, t = g // 32, (g // 4) % 8, g % 4
        kind = passes[p][0]; sl = slot_of[("w", p, c)]
        if p == 0: base, off = WR1 + (t >> 1), (sl - 8) * PITCH
        else: base, off = WRs[p] + 2 * (sl >= 8) + (t >> 1), (sl % 8) * PITCH
        if kind == "att2": off += j * PITCH
        if kind == "pair": off += 32 * j
        st, js = (1024, 256) if kind == "half" else (2048, 512)
        off += (t & 1) * st
        w = wbuf(g, j)
        return [I("ds_read_b64_tr_b16 %s, v%d offset:%d" % (vr(w + 2 * e, 2), base, off + e * js)) for e in range(2)]
    def x_reads(g):
        c, t = g // 4, g % 4
        return [I("ds_read_b128 %s, v%d offset:%d" % (ar(8 * g + 4 * b, 4), XR + t, slot_of[("x", c)] * PITCH + 4096 * b)) for b in range(2)]
    def w2_reads(n):
        sl = slot_of[("s", n)]; w = WF + 8 * (n & 1)
        return [I("ds_read_b64_tr_b16 %s, v%d offset:%d" % (vr(w + 4 * cb + 2 * e, 2), W2R + 2 * (sl >= 8) + cb, (sl % 8) * PITCH + 1024 * e)) for cb in range(2) for e in range(2)]

    queue = []
    for c in range(4, 8): queue += [("x", c), ("w", 0, c)]
    for p in (1, 2): queue += [("w", p, c) for c in range(8)]
    queue += [("s", n) for n in range(36)]
    free = set()
    issue_after = {}
    for cc in range(24):
        p, c = cc // 8, cc % 8
        T = passes[p][1]
        rel = []
        if T == 2 or cc == 23:
            rel.append(cc)
            if cc > 0 and passes[(cc - 1) // 8][1] == 1: rel.append(cc - 1)
        elif cc > 0 and passes[(cc - 1) // 8][1] == 1: rel.append(cc - 1)
        for r in rel:
            it = ("w", r // 8, r % 8)
            free |= set(range(slot_of[it], slot_of[it] + item_slots(it)))
            if r < 8: free |= {slot_of[("x", r)], slot_of[("x", r)] + 1}
        got = []
        while queue:
            it = queue[0]; ns = item_slots(it)
            if it in slot_of: cand = [slot_of[it]] if all(slot_of[it] + i in free for i in range(ns)) else []
            elif ns == 2: cand = [s for s in sorted(free) if s % 2 == 0 and s + 1 in free]
            else: cand = sorted(free)
            if not cand: break
            slot_of[it] = cand[0]
            for i in range(ns): free.discard(cand[0] + i)
            got.append(queue.pop(0))
        issue_after[cc] = (rel, got)
    p2_issue = {}
    for n in range(36):
        if queue:
            it = queue.pop(0); slot_of[it] = slot_of[("s", n)]; p2_issue[n] = it
    print(typ, "prefetched slices before P2:", 36 - len(p2_issue))

    where = {}
    for g in range(1, 96):
        T = nt(g); k = g % 32
        for j in range(T):
            if T == 2: at = g - 1 if not (k == 0 and nt(g - 1) == 1 and j == 0) else g - 2
            else: at = g - 2 if not (k < 2 and nt(g - k - 1) == 2) else g - k - 1
            where.setdefault(at, []).append(("w", g, j))
        if g < 32: where.setdefault(g - 1, []).append(("x", g))
    for at, lst in sorted(where.items()):
        ins = []
        for it in lst:
            r = w_reads(it[1], it[2]) if it[0] == "w" else x_reads(it[1])
            if it[1] % 4 == 3:
                r[-1].tag = "rd%d_%s%d" % (it[1] // 4, it[0], it[2] if it[0] == "w" else 0)
                last_rd[it[1] // 4] = r[-1].tag
            ins += r
        b0 = step_beat[at]; nb = 2 * nt(at)
        if cfg.rd_early and len(ins) == 6: ins = [ins[0], ins[1], ins[4], ins[5], ins[2], ins[3]]
        if cfg.rd_early:
            tg = [x.tag for x in ins if x.tag]
            if tg:
                for x in ins: x.tag = None
                ins[-1].tag = last_rd[lst[-1][1] // 4]
        nbb = 2 if cfg.rd_early else nb
        for i, x in enumerate(ins): S.put(b0 + min(nbb - 1, i * nbb // len(ins)), x)

    extra_pre = {}
    def place_barriers():
        for cc in range(24):
            b = step_beat[bar_step[cc]]
            pre = []
            for r in issue_after[cc][0]: pre.append(Wait(last_rd[r]))
            if cc in extra_pre: pre.append(Wait("lgkm0"))
            if cc < 23:
                nx = cc + 1
                if nx < 8: pre.append(Wait("x%d" % nx))
                pre.append(Wait("w%d_%d" % (nx // 8, nx % 8)))
            pre.append(I("s_barrier"))
            S.beats[b]["pre"] = pre + S.beats[b]["pre"]
    bb = lambda cc: step_beat[bar_step[cc]]
    for cc in range(24):
        items = []
        for it in issue_after[cc][1]: items += item_dma(it)
        if items: S.spread(items, bb(cc), bb(cc + 1) if cc < 23 else sl_beat[0] + 2)

    r0 = w2_reads(0)
    S.put(step_beat[95], [Wait("w2_0")] );
    for i, x in enumerate(r0): S.put(step_beat[95] + min(i // 2, 2 * nt(95) - 1), x)
    for n in range(36):
        b = sl_beat[n]
        if n + 1 < 36:
            S.put(b, Wait("w2_%d" % (n + 1)))
            for i, x in enumerate(w2_reads(n + 1)): S.put(b + i, x)
        if n in p2_issue: S.put(b + 2, dma_w2(p2_issue[n][1], slot_of[p2_issue[n]])[0])

    pre, adds = t_stat_add()
    S.spread(pre, step_beat[26], step_beat[28])
    cs_pub = lambda tile0: [Gap(1)] + t_cs_add(tile0)
    S.spread(cs_pub(0) + adds, step_beat[30], step_beat[31]); extra_pre[7] = 1
    S.spread(t_cs_tot(0, 0), step_beat[31], step_beat[32])
    S.spread(t_stat_fin(), step_beat[31], step_beat[32])
    S.put(bb(0), L("v_mov_b32 v%d, 1\nbuffer_atomic_add v%d, v%d, %s, 0 offen" % (TMP + 12, TMP + 12, TMP + 13, srd(SDBG))))
    hs_i, hs_c = poll(TMP + 14, TMP + 15, "8" if cfg.dbgout else "4", SDBG, "gt")
    if cfg.dbgout: S.put(step_beat[24], L("v_and_b32 v%d, 31, v%d\nv_lshlrev_b32 v%d, 2, v%d\nv_add_u32 v%d, 64, v%d" % (TMP + 14, vL, TMP + 14, TMP + 14, TMP + 14, TMP + 14)) + [hs_i])
    else: S.put(step_beat[24], [I("v_lshlrev_b32 v%d, 2, v%d" % (TMP + 14, vL)), hs_i])
    S.put(step_beat[28], stamp("hs0") + [hs_c] + stamp("hs1"))
    sp = lambda g: step_beat[g]
    cls_at = {}
    if A:
        S.spread(addr_wfull(WR2, 4, False, False, TMP + 8), sp(17), sp(24))
        e = S.spread(t_att_k(), sp(32), sp(32 + cfg.a_att), "att_k")
        cb = min(cc for cc in range(8, 24) if bb(cc) > e); extra_pre[cb] = 1
        print("  kv exchange barrier chunk", cb)
        S.spread(addr_cs(False, TMP + 12) + addr_whalf(WR3, TMP + 12), bb(cb), bb(cb) + 6)
        e = S.spread(t_kv_pub(), bb(cb), bb(cb) + 10, "kv_pub")
        S.put(e, stamp("kvi"))
        S.put(e + cfg.a_kvflag, stamp("kvw0") + [Wait("kvat")] + stamp("kvw1") + [I("v_mov_b32 v%d, 1" % WHD), I("buffer_store_dword v%d, v%d, %s, 0 offen sc1" % (WHD, vKFL, srd(SW)))])
        assert bb(cb) + 6 <= sp(62), "address set-up too late"
        S.spread(cs_pub(2), sp(62), sp(63)); extra_pre[15] = 1
        S.spread(t_cs_tot(2, 1), sp(63), sp(64))
        so = "s_mov_b32 s%d, %d" % (sT1, 8 * 2048)
        e = S.spread(t_hepi(SET1, 2, so, 0, None) + t_hepi(SET1 + 32, 3, so, 2048, "h1"), sp(64) + 1, sp(64 + cfg.a_h1), "hepi1")
        S.put(e + cfg.flag_delay, set_flag(1, "h1", WHD))
        S.spread(addr_p2(KVD), sp(66), sp(76))
        S.spread(cs_pub(4), sp(94), sp(95)); extra_pre[23] = 1
        S.spread(t_cs_tot(4, 2), sp(95), sl_beat[0] + 1)
        so = "s_mov_b32 s%d, s%d" % (sT1, sKX)
        e = S.spread(t_hepi(SET0, 4, so, 0, "h2"), sl_beat[0] + 1, sl_beat[0] + cfg.a_h2, "hepi2")
        S.put(e + cfg.flag_delay2, set_flag(2, "h2", WHD))
        last_task = e
    else:
        S.spread(addr_wfull(WR2, 4, True, False, TMP + 8), sp(17), sp(24))
        so = "s_mov_b32 s%d, 0" % sT1
        e = S.spread(t_hepi(SET0, 0, so, 0, None) + t_hepi(SET0 + 32, 1, so, 2048, "h0"), sp(32) + 1, sp(32 + cfg.b_h0), "hepi0")
        assert e < sp(64)
        S.put(e + cfg.flag_delay, set_flag(1, "h0", WHD))
        S.spread(addr_wfull(WR3, 4, False, False, KVD), sp(36), sp(56))
        S.spread(cs_pub(2) + L("v_mov_b32 v%d, v%d" % (165, CSD)), sp(62), sp(64)); extra_pre[16] = 1
        x = t_cs_tot(2, 1); x[3] = I("v_add_f32 v%d, v%d, v165" % (vCSR + 1, vCSR + 1))
        e = S.spread(x + t_att_q(), bb(16), sp(64 + cfg.b_att), "att_q")
        S.spread(addr_p2(KVD), sp(64), sp(70))
        S.spread(cs_pub(3), sp(94), sp(95)); extra_pre[23] = 1
        S.spread(t_cs_tot(3, 2), sp(95), sl_beat[0])
        so = "s_mov_b32 s%d, %d" % (sT1, 20 * 2048)
        e = S.spread(t_hepi(SET0, 3, so, 0, None) + t_hepi(SET0 + 32, 4, so, 2048, "h3"), sl_beat[0] + 1, sl_beat[0] + cfg.b_h3, "hepi3")
        kp_i, kp_c = poll(vKPL, 165, "1")
        S.put(e - 2, kp_i)
        S.put(e, stamp("kp0") + [kp_c] + stamp("kp1"))
        for x in t_kv_load(): S.put(e, x)
        S.put(e + cfg.flag_delay2, set_flag(2, "h3", WHD))
        e = S.spread(t_o(), e + cfg.b_kvlat, e + cfg.b_kvlat + cfg.b_o, "o")
        S.put(e + cfg.flag_delay2, set_flag(3, "ost", WHD))
        last_task = e
    place_barriers()
    first = [0, 8, 16, 20, 28, 36]
    hb = {}
    p0 = sp(64 + (cfg.a_p0 if A else cfg.b_p0))
    for c in range(5):
        iss, chk = class_poll(c, WGD, WGD + 1) if True else None
        at = p0 if c == 0 else sl_beat[max(0, first[c] - cfg.lead[c])] + 2
        S.put(at - cfg.poll_lead, iss)
        S.put(at, stamp("cp%d_0" % c) + chk + stamp("cp%d_1" % c))
        nsl = first[c + 1] - first[c]
        for i in range(nsl):
            n = first[c] + i
            b = at + i * cfg.hstep
            if n >= 32: b = max(b, sl_beat[n - 32] + 4)
            if c == 0: assert b >= sp(64 + n + 1)
            b = min(b, sl_beat[n] - 1)
            S.put(b, h_load(n))
    RES = TMP
    rb_ = max(last_task + 2, sl_beat[24])
    S.put(rb_, L("""
    s_lshl_b32 s{t0}, s{tt}, 2
    s_add_u32 s{t0}, s{t0}, s{wv}
    s_lshl_b32 s{t0}, s{t0}, 14
    s_lshl_b32 s{t1}, s{ct}, 7
    s_add_u32 s{t0}, s{t0}, s{t1}
    v_lshrrev_b32 v{a}, 3, v{L}
    v_lshlrev_b32 v{a}, 10, v{a}
    v_and_b32 v{b}, 7, v{L}
    v_lshl_add_u32 v{a}, v{b}, 4, v{a}
    v_add_u32 v{o}, s{t0}, v{a}
    """.format(t0=sT0, t1=sT1, tt=sTT, wv=sWV, ct=sCT, a=TMP + 8, b=TMP + 9, o=WQD - 1, L=vL)))
    vOUT = WQD - 1
    S.put(rb_ + 1, L("s_mov_b32 s%d, 8192\nbuffer_load_dwordx4 %s, v%d, %s, 0 offen\nbuffer_load_dwordx4 %s, v%d, %s, s%d offen" % (sT1, vr(RES, 4), vOUT, srd(SX), vr(RES + 4, 4), vOUT, srd(SX), sT1)))
    S.spread(L("""
    v_bfe_u32 v8, v{L}, 3, 2
    v_mul_u32_u24 v8, {P}, v8
    v_and_b32 v9, 7, v{L}
    v_lshl_add_u32 v8, v9, 8, v8
    v_add_u32 v8, s{l2k}, v8
    v_lshrrev_b32 v10, 5, v{L}
    v_xor_b32 v10, v10, v9
    v_lshl_add_u32 v0, v10, 4, v8
    v_xor_b32 v11, 2, v10
    v_lshl_add_u32 v1, v11, 4, v8
    v_xor_b32 v11, 4, v10
    v_lshl_add_u32 v2, v11, 4, v8
    v_xor_b32 v11, 6, v10
    v_lshl_add_u32 v3, v11, 4, v8
    v_lshrrev_b32 v8, 3, v{L}
    v_and_b32 v10, 3, v{L}
    v_lshlrev_b32 v10, 1, v10
    v_xor_b32 v10, v10, v8
    v_bfe_u32 v11, v{L}, 2, 1
    v_lshlrev_b32 v11, 7, v11
    v_lshl_add_u32 v11, v8, 8, v11
    v_mov_b32 v9, s{wv}
    v_mul_u32_u24 v9, {P2}, v9
    v_add_u32 v11, v11, v9
    v_lshl_add_u32 v4, v10, 4, v11
    v_xor_b32 v10, 1, v10
    v_lshl_add_u32 v5, v10, 4, v11
    """.format(L=vL, P=PITCH, P2=2 * PITCH, l2k=sL2K, wv=sWV)), rb_ + 2, rb_ + 14)
    if cfg.stamps == 2:
        pts = [("b%d" % cc, bb(cc)) for cc in range(24)] + [("s%d" % n, sl_beat[n]) for n in range(0, 37) if n != 35]
        prev = ("iss", 0)
        for k, (nm, b) in enumerate(pts):
            for x in (prev[0], nm):
                if x not in stamp_names: stamp_names.append(x)
            cur = sST + 2 * ((k + 1) & 1); old = sST + 2 * (k & 1)
            rd = I("v_writelane_b32 v%d, s%d, %d" % (vSTAMP, old, stamp_names.index(prev[0]) + 2))
            mt = I("s_memtime s[%d:%d]" % (cur, cur + 1))
            if nm[0] == "b":
                pre = S.beats[b]["pre"]; pre.insert(len(pre) - 1, rd); pre.append(mt)
            else: S.beats[b]["pre"] = [rd, mt] + S.beats[b]["pre"]
            prev = (nm, b)
        last_stamp = I("v_writelane_b32 v%d, s%d, %d" % (vSTAMP, cur, stamp_names.index(prev[0]) + 2))
    if cfg.stamps == True:
        for nm, b in (("p1", sp(32)), ("p2", sp(64)), ("p3", sl_beat[0]), ("s8", sl_beat[8]), ("s16", sl_beat[16]), ("s20", sl_beat[20]), ("s28", sl_beat[28]), ("s36", sl_beat[36]),
                      ("c1", sp(4)), ("c2", sp(8)), ("c4", sp(16))):
            S.put(b, stamp(nm), pre=True)

    pro = []
    if A:
        pro += L("s_lshl_b32 s{t0}, s{i}, 7\ns_add_u32 s{t0}, s{t0}, 1024".format(t0=sT0, i=sI))
        pro += wdma_addr(WQD, 3072, sT0)
        first_w = None
    else:
        pro += L("s_mul_i32 s{t0}, s{q}, 896\ns_lshl_b32 s{t1}, s{ab}, 8\ns_add_u32 s{t0}, s{t0}, s{t1}".format(t0=sT0, t1=sT1, q=sQ, ab=sAB))
        pro += wdma_addr(WGD, 3584, sT0)
    def flat(x):
        o = []
        for y in x: o += y if isinstance(y, list) else [y]
        return o
    for c in range(4):
        pro += flat(item_dma(("x", c))) + flat(item_dma(("w", 0, c)))
        if c == 0: pro += clear_store(A)
    pro += stamp("iss")
    if cfg.stamps == 2: pro += [I("s_memtime s[%d:%d]" % (sST, sST + 1))]
    pro += common_setup()
    if A:
        pro += L("s_mul_i32 s{t0}, s{q}, 896\ns_lshl_b32 s{t1}, s{ab}, 7\ns_add_u32 s{t0}, s{t0}, s{t1}\ns_add_u32 s{t0}, s{t0}, 512".format(t0=sT0, t1=sT1, q=sQ, ab=sAB))
        pro += wdma_addr(WGD, 3584, sT0)
        pro += L("""
        s_mul_i32 s{t0}, s{q}, 896
        s_lshl_b32 s{t1}, s{ab}, 6
        s_add_u32 s{t0}, s{t0}, s{t1}
        s_add_u32 s{t0}, s{t0}, 768
        s_mul_i32 s{t1}, s{wv}, {w}
        s_add_u32 s{t0}, s{t0}, s{t1}
        v_lshrrev_b32 v{a}, 2, v{L}
        v_mul_u32_u24 v{a}, 3584, v{a}
        v_and_b32 v{b}, 3, v{L}
        v_lshl_add_u32 v{a}, v{b}, 4, v{a}
        v_add_u32 v{d}, s{t0}, v{a}
        """.format(t0=sT0, t1=sT1, q=sQ, ab=sAB, wv=sWV, w=16 * 3584, a=TMP, b=TMP + 1, d=WHD, L=vL))
        pro += flat(addr_wfull(WR1, 2, True, True)) + flat(addr_cs(True)) + addr_cst() + att_setup()
    else:
        pro += L("s_lshl_b32 s{t0}, s{i}, 7".format(t0=sT0, i=sI))
        pro += wdma_addr(WQD, 3072, sT0)
        pro += flat(addr_wfull(WR1, 2, False, False)) + flat(addr_cs(False)) + addr_cst() + o_setup()
    pro += wphi_setup(A)
    pro += [Wait("lgkm0"), Wait("x0"), Wait("w0_0"), I("s_barrier")]
    pro += stamp("data")
    pro += x_reads(0) + w_reads(0, 0) + w_reads(0, 1)

    tail = []
    for tb in range(2):
        for cb in range(2):
            for r4 in range(4):
                tail += L("ds_write_b128 v%d, %s offset:%d" % (r4, vr(ACC2[2 * cb + tb] + 4 * r4, 4), 128 * cb + 4 * PITCH * tb))
    tail += [Wait("lgkm0"), I("s_barrier")]
    for i in range(2):
        for e in range(2):
            for w in range(4):
                tail += L("ds_read_b128 %s, v%d offset:%d" % (vr(16 + 32 * i + 16 * e + 4 * w, 4), 4 + e, 2048 * w + PITCH * i))
    for i in range(2):
        for e in range(2):
            b = 16 + 32 * i + 16 * e
            for j in range(4):
                x = RES + 4 * i + 2 * e + j // 2
                tail += L("v_add_f32 v%d, v%d, v%d\nv_add_f32 v%d, v%d, v%d" % (b + j, b + j, b + 4 + j, b + 8 + j, b + 8 + j, b + 12 + j))
                tail += L(("v_and_b32 v%d, 0xffff0000, v%d" if j & 1 else "v_lshlrev_b32 v%d, 16, v%d") % (b + 4 + j, x))
                tail += L("v_add_f32 v%d, v%d, v%d\nv_add_f32 v%d, v%d, v%d" % (b + j, b + j, b + 8 + j, b + j, b + j, b + 4 + j))
            tail += L("v_cvt_pk_bf16_f32 v%d, v%d, v%d\nv_cvt_pk_bf16_f32 v%d, v%d, v%d" % (8 + 4 * i + 2 * e, b, b + 1, 9 + 4 * i + 2 * e, b + 2, b + 3))
        tail += L("s_mov_b32 s%d, %d\nbuffer_store_dwordx4 %s, v%d, %s, s%d offen" % (sT1, 8192 * i, vr(8 + 4 * i, 4), vOUT, srd(SOUT), sT1) + " sc1")
    if cfg.stamps:
        tail += stamp("end")
        if cfg.stamps == 2:
            if "end" not in stamp_names: stamp_names.append("end")
            tail += [last_stamp, I("s_memtime s[%d:%d]" % (sST, sST + 1)), I("v_writelane_b32 v%d, s%d, %d" % (vSTAMP, sST, stamp_names.index("end") + 2))]
        tail += L("""
        s_memrealtime s[{a}:{b}]
        v_writelane_b32 v{st}, s{a}, 1
        s_lshl_b32 s{t0}, s2, 2
        s_add_u32 s{t0}, s{t0}, s{wv}
        s_lshl_b32 s{t0}, s{t0}, 8
        s_add_u32 s{t0}, s{t0}, {o}
        v_lshl_add_u32 v0, v{L}, 2, s{t0}
        buffer_store_dword v{st}, v0, {sr}, 0 offen
        """.format(a=sST, b=sST + 1, st=vSTAMP, t0=sT0, wv=sWV, o=WS_ST, L=vL, sr=srd(SW)))
    if cfg.dbgout:
        ix = lambda n: stamp_names.index(n) + 2
        t = """
        v_readlane_b32 s56, v{st}, 0
        v_readlane_b32 s57, v{st}, 1
        v_readlane_b32 s58, v{st}, {iss}
        s_nop 4
        v_mov_b32 v2, {oob}
        v_mov_b32 v1, 0
        v_writelane_b32 v2, 32, 0
        v_writelane_b32 v2, 40, 1
        v_writelane_b32 v2, 36, 2
        v_writelane_b32 v1, s57, 0
        v_writelane_b32 v1, s56, 1
        s_not_b32 s59, s56
        v_writelane_b32 v1, s59, 2
        buffer_atomic_umax v1, v2, {sd}, 0 offen
        s_sub_u32 s57, s57, s56
        v_mov_b32 v3, 0
        v_writelane_b32 v3, s57, 0
        """.format(st=vSTAMP, iss=ix("iss"), oob=OOB, sd=srd(SDBG))
        for k, nm in enumerate(("b0", "b3", "b7", "b15", "s0", "s28", "end")):
            t += "v_readlane_b32 s59, v%d, %d\ns_nop 4\ns_sub_u32 s59, s59, s58\nv_writelane_b32 v3, s59, %d\n" % (vSTAMP, ix(nm), k + 1)
        t += """
        v_lshlrev_b32 v2, 2, v{L}
        v_mov_b32 v4, {oob}
        v_cmp_gt_u32 vcc, 8, v{L}
        v_cndmask_b32 v2, v4, v2, vcc
        s_or_b32 s59, s2, s{wv}
        s_cmp_eq_u32 s59, 0
        s_cselect_b32 s59, 0, {oob}
        buffer_store_dword v3, v2, {sd}, s59 offen
        """.format(L=vL, oob=OOB, wv=sWV, sd=srd(SDBG))
        tail += L(t)
    tail += L("s_endpgm")
    est = sum(max(bt["period"], S.load(i)) for i, bt in enumerate(S.beats[:sl_beat[0]]))
    print("  P1 issue-model cycles:", est, " P2:", sum(max(32, S.load(i)) for i in range(sl_beat[0], sl_beat[36])))
    return pro + S.flat() + tail

def wdma_addr(dst, stride, scol):
    return L("""
    s_mul_i32 s{t1}, s{wv}, {w}
    s_add_u32 s{t1}, s{t1}, s{c}
    v_lshrrev_b32 v{a}, 3, v{L}
    v_mul_u32_u24 v{a}, {st}, v{a}
    v_bfe_u32 v{b}, v{L}, 4, 1
    v_lshlrev_b32 v{b}, 2, v{b}
    v_xor_b32 v{b}, v{b}, v{L}
    v_and_b32 v{b}, 7, v{b}
    v_lshl_add_u32 v{a}, v{b}, 4, v{a}
    v_add_u32 v{d}, s{t1}, v{a}
    v_add_u32 v{d1}, {nx}, v{d}
    """.format(t1=sT1, wv=sWV, w=16 * stride, c=scol, a=TMP, b=TMP + 1, L=vL, st=stride, d=dst, d1=dst + 1, nx=8 * stride - 1024))

def clear_store(A):
    a, b, z = TMP + 4, TMP + 5, TMP + 6
    s = """
    s_lshl_b32 s{t0}, s{rb}, 1
    s_add_u32 s{t0}, s{t0}, s{th}
    s_lshl_b32 s{t1}, s{t0}, 2
    s_add_u32 s{t1}, s{t1}, s{q}
    s_lshl_b32 s{t1}, s{t1}, 4
    s_add_u32 s{t1}, s{t1}, s{t4}
    s_lshl_b32 s{t1}, s{t1}, 1
    s_add_u32 s{t1}, s{t1}, s{gr}
    s_lshl_b32 s{t1}, s{t1}, 2
    s_add_u32 s{t1}, s{t1}, {fl}
    v_mov_b32 v{f}, {oob}
    v_writelane_b32 v{f}, s{t1}, 0
    s_lshl_b32 s{sp}, s2, 2
    s_add_u32 s{sp}, s{sp}, s{wv}
    s_lshl_b32 s{sp}, s{sp}, 7
    s_add_u32 s{sp}, s{sp}, {kva}
    v_and_b32 v{a}, 31, v{L}
    v_lshl_add_u32 v{a}, v{a}, 2, s{sp}
    v_writelane_b32 v{a}, s{t1}, 32
    """.format(t0=sT0, t1=sT1, rb=sRB, th=sTH, q=sQ, t4=sT4, gr=sGR, fl=WS_FL, f=vFLG, oob=OOB, sp=sSPIN, wv=sWV, kva=WS_KVA, a=a, L=vL)
    if A:
        s += """
        s_lshl_b32 s{t1}, s{i}, 1
        s_add_u32 s{t1}, s{t1}, s{gr}
        s_lshl_b32 s{t1}, s{t1}, 5
        s_add_u32 s{t1}, s{t1}, s{t0}
        s_lshl_b32 s{t1}, s{t1}, 2
        s_add_u32 s{t1}, s{t1}, {kf}
        v_mov_b32 v{f}, {oob}
        v_writelane_b32 v{f}, s{t1}, 0
        v_writelane_b32 v{a}, s{t1}, 33
        """.format(t0=sT0, t1=sT1, i=sI, gr=sGR, kf=WS_KF, f=vKFL, oob=OOB, a=a)
    s += "v_mov_b32 v%d, 0\nbuffer_store_dword v%d, v%d, %s, 0 offen sc1\n" % (z, z, a, srd(SW))
    return L(s)

def common_setup():
    a, b, c = TMP, TMP + 1, TMP + 2
    s = """
    v_lshrrev_b32 v{a}, 5, v{L}
    v_bfe_u32 v{b}, v{L}, 1, 3
    v_xor_b32 v{a}, v{a}, v{b}
    v_lshlrev_b32 v{a}, 4, v{a}
    v_and_b32 v{b}, 31, v{L}
    v_lshl_add_u32 v{a}, v{b}, 7, v{a}
    s_lshl_b32 s{t0}, s{s}, 6
    v_xor_b32 v{a}, s{t0}, v{a}
    s_mul_i32 s{t1}, s{th}, {P}
    v_add_u32 v{x0}, s{t1}, v{a}
    v_xor_b32 v{b}, 32, v{a}
    v_add_u32 v{x1}, s{t1}, v{b}
    v_xor_b32 v{b}, 64, v{a}
    v_add_u32 v{x2}, s{t1}, v{b}
    v_xor_b32 v{b}, 0x60, v{a}
    v_add_u32 v{x3}, s{t1}, v{b}
    v_and_b32 v{a}, 31, v{L}
    v_mov_b32 v{b}, 0x3f803f80
    v_cmp_eq_u32 vcc, 0, v{a}
    v_cndmask_b32 v{s0}, 0, v{b}, vcc
    v_cmp_eq_u32 vcc, 20, v{a}
    v_cndmask_b32 v{s0}, v{s0}, v{b}, vcc
    v_cmp_eq_u32 vcc, 8, v{a}
    v_cndmask_b32 v{s2}, 0, v{b}, vcc
    v_cmp_eq_u32 vcc, 28, v{a}
    v_cndmask_b32 v{s2}, v{s2}, v{b}, vcc
    """.format(a=a, b=b, L=vL, t0=sT0, t1=sT1, s=sS, th=sTH, P=PITCH, x0=XR, x1=XR + 1, x2=XR + 2, x3=XR + 3, s0=SEL01, s2=SEL23)
    for j in range(1, 4): s += "v_mov_b32 v%d, v%d\nv_mov_b32 v%d, v%d\n" % (SEL01 + j, SEL01, SEL23 + j, SEL23)
    s += """
    v_and_b32 v{a}, 3, v{L}
    v_cmp_eq_u32 s[{m1}:{m1b}], 1, v{a}
    v_cmp_eq_u32 s[{m2}:{m2b}], 2, v{a}
    v_cmp_eq_u32 s[{m3}:{m3b}], 3, v{a}
    v_and_b32 v{a}, 4, v{L}
    v_cmp_eq_u32 s[{mb}:{mbb}], 4, v{a}
    s_mul_i32 s{wd}, s{wv}, {wdv}
    s_lshl_b32 s{wo}, s{wv}, 17
    s_mov_b32 s{l2e}, 0x3fb8aa3b
    s_mov_b32 s{c2}, 0x3b000000
    """.format(a=a, L=vL, m1=sM1, m1b=sM1 + 1, m2=sM2, m2b=sM2 + 1, m3=sM3, m3b=sM3 + 1, mb=sMB, mbb=sMB + 1,
               wd=sWDB, wo=sWOB, wv=sWV, wdv=448 * 1024, l2e=sL2E, c2=sC2)
    s += """
    s_lshl_b32 s{t0}, s{rb}, 1
    s_add_u32 s{t0}, s{t0}, s{th}
    s_mul_i32 s{t0}, s{t0}, 144
    s_mul_i32 s{t1}, s{q}, 36
    s_add_u32 s{t0}, s{t0}, s{t1}
    s_lshl_b32 s{t1}, s{ab}, 2
    s_add_u32 s{t0}, s{t0}, s{t1}
    s_lshl_b32 s{t1}, s{gr}, 1
    s_add_u32 s{t0}, s{t0}, s{t1}
    s_lshl_b32 s{t0}, s{t0}, 11
    v_lshl_add_u32 v{h}, v{L}, 4, s{t0}
    v_lshrrev_b32 v{a}, 3, v{L}
    v_lshlrev_b32 v{a}, 10, v{a}
    v_bfe_u32 v{b}, v{L}, 4, 1
    v_lshlrev_b32 v{b}, 2, v{b}
    v_xor_b32 v{b}, v{b}, v{L}
    v_and_b32 v{b}, 7, v{b}
    v_lshl_add_u32 v{a}, v{b}, 4, v{a}
    s_lshl_b32 s{t0}, s{ct}, 7
    v_add_u32 v{w}, s{t0}, v{a}
    v_add_u32 v{w1}, 7168, v{w}
    s_and_b32 s{t0}, s2, {hm}
    s_lshl_b32 s{t0}, s{t0}, 2
    s_add_u32 s{t0}, s{t0}, {ho}
    s_cmp_eq_u32 s{wv}, 0
    s_cselect_b32 s{t0}, s{t0}, {oob}
    v_mov_b32 v{hs}, {oob}
    v_writelane_b32 v{hs}, s{t0}, 0
    """.format(t0=sT0, t1=sT1, rb=sRB, th=sTH, q=sQ, ab=sAB, gr=sGR, h=vHST, L=vL, a=a, b=b, ct=sCT, w=W2D, w1=W2D + 1, wv=sWV, oob=OOB, hs=TMP + 13, hm=31 if cfg.dbgout else 63, ho=64 if cfg.dbgout else 0)
    return L(s)

def att_setup():
    a, b, c = TMP, TMP + 1, TMP + 2
    s = """
    s_mul_i32 s{t0}, s{wv}, {wsz}
    s_add_u32 s{t0}, s{t0}, {wreg}
    v_and_b32 v{a}, 31, v{L}
    v_lshrrev_b32 v{b}, 5, v{L}
    v_mul_u32_u24 v{c}, 72, v{a}
    v_lshl_add_u32 v{c}, v{b}, 3, v{c}
    v_add_u32 v{pw}, s{t0}, v{c}
    v_mul_u32_u24 v{c}, 104, v{a}
    v_lshl_add_u32 v{c}, v{b}, 3, v{c}
    s_add_u32 s{t1}, s{t0}, {voff}
    v_add_u32 v{vw}, s{t1}, v{c}
    v_lshl_add_u32 v{c}, v{b}, 3, v{vw}
    v_mov_b32 v{o0}, 0x3f803f80
    v_mov_b32 v{o1}, 0x3f803f80
    ds_write_b64 v{c}, v[{o0}:{o1}] offset:64
    ds_write_b64 v{c}, v[{o0}:{o1}] offset:72
    v_bfe_u32 v{a}, v{L}, 2, 2
    v_lshl_add_u32 v{a}, v{b}, 3, v{a}
    v_and_b32 v{b}, 3, v{L}
    v_mul_u32_u24 v{c}, 72, v{a}
    v_lshl_add_u32 v{c}, v{b}, 3, v{c}
    v_bfe_u32 v{o0}, v{L}, 4, 1
    v_lshl_add_u32 v{c}, v{o0}, 5, v{c}
    v_add_u32 v{pr}, s{t0}, v{c}
    v_mul_u32_u24 v{c}, 104, v{a}
    v_lshl_add_u32 v{c}, v{b}, 3, v{c}
    v_add_u32 v{c}, s{t1}, v{c}
    v_lshl_add_u32 v{v0}, v{o0}, 6, v{c}
    v_add_u32 v{o0}, 1, v{o0}
    v_lshl_add_u32 v{v1}, v{o0}, 5, v{c}
    v_lshl_add_u32 v{exw}, v{L}, 4, s{t0}
    s_xor_b32 s{t1}, s{wv}, 1
    s_mul_i32 s{t1}, s{t1}, {wsz}
    s_add_u32 s{t1}, s{t1}, {wreg}
    v_lshl_add_u32 v{exr}, v{L}, 4, s{t1}
    s_lshl_b32 s{t0}, s{i}, 2
    s_lshl_b32 s{t1}, s{gr}, 1
    s_add_u32 s{t0}, s{t0}, s{t1}
    s_add_u32 s{t0}, s{t0}, s{th}
    s_lshl_b32 s{t0}, s{t0}, 12
    s_add_u32 s{t0}, s{t0}, {kva}
    """.format(t0=sT0, t1=sT1, wv=sWV, wsz=WREG_SZ, wreg=WREG, a=a, b=b, c=c, L=vL, pw=vPW, vw=vVW, voff=VOFF, o0=TMP + 8, o1=TMP + 9,
               pr=vPR, v0=vVR0, v1=vVR1, exw=vEXW, exr=vEXR, i=sI, gr=sGR, th=sTH, kva=WS_KVA)
    s += kv_lane_addr(vKVA, True)
    return L(s)

def kv_lane_addr(dst, mask):
    a, b, c = TMP, TMP + 1, TMP + 2
    s = """
    v_and_b32 v{a}, 31, v{L}
    v_lshrrev_b32 v{b}, 5, v{L}
    v_lshl_add_u32 v{c}, v{b}, 4, v{a}
    v_add_u32 v{b}, 32, v{b}
    v_cmp_gt_u32 vcc, 16, v{a}
    v_cndmask_b32 v{c}, v{b}, v{c}, vcc
    v_lshl_add_u32 v{d}, v{c}, 2, s{t0}
    """.format(a=a, b=b, c=c, L=vL, d=dst, t0=sT0)
    if mask:
        s += "v_mov_b32 v{b}, {oob}\nv_cmp_gt_u32 vcc, 17, v{a}\nv_cndmask_b32 v{d}, v{b}, v{d}, vcc\n".format(a=a, b=b, d=dst, oob=OOB)
    return s

def o_setup():
    s = """
    s_lshl_b32 s{t0}, s{i}, 1
    s_add_u32 s{t0}, s{t0}, s{gr}
    s_lshl_b32 s{t1}, s{t0}, 7
    s_add_u32 s{t1}, s{t1}, {kf}
    v_and_b32 v{a}, 31, v{L}
    v_lshl_add_u32 v{kp}, v{a}, 2, s{t1}
    s_lshl_b32 s{t0}, s{t0}, 13
    s_add_u32 s{t0}, s{t0}, {kva}
    """.format(t0=sT0, t1=sT1, i=sI, gr=sGR, kf=WS_KF, a=TMP, L=vL, kp=vKPL, kva=WS_KVA)
    return L(s + kv_lane_addr(vKVL, False))

def wphi_setup(A):
    a, b = TMP, TMP + 1; t = 64 + 16
    s = """
    s_lshl_b32 s{t0}, s{i}, 2
    s_lshl_b32 s{t1}, s{gr}, 1
    s_add_u32 s{t0}, s{t0}, s{t1}
    s_lshl_b32 s{t0}, s{t0}, 9
    v_bfe_u32 v{a}, v{L}, 4, 1
    """.format(t0=sT0, t1=sT1, i=sI, gr=sGR, a=a, L=vL)
    if A: s += "v_xor_b32 v%d, s%d, v%d\n" % (a, sTH, a)
    s += """
    v_lshlrev_b32 v{a}, 9, v{a}
    v_lshrrev_b32 v{b}, 5, v{L}
    v_lshl_add_u32 v{a}, v{b}, 7, v{a}
    v_and_b32 v{b}, 15, v{L}
    v_lshl_add_u32 v{a}, v{b}, 1, v{a}
    v_add_u32 v{a}, s{t0}, v{a}
    """.format(a=a, b=b, L=vL, t0=sT0)
    for j in range(8):
        s += "buffer_load_ushort v%d, v%d, %s, 0 offen offset:%d\n" % (t + j, a, srd(SPHI), 32 * ((j & 3) + 8 * (j >> 2)))
    return L(s)

def wphi_finish():
    t = 64 + 16
    out = L("v_and_b32 v%d, 16, v%d\nv_cmp_eq_u32 vcc, 0, v%d" % (TMP + 8, vL, TMP + 8))
    g = []
    for j in range(4):
        g += L("v_lshl_or_b32 v{x}, v{y}, 16, v{x}\nv_cndmask_b32 v{a0}, 0, v{x}, vcc\nv_cndmask_b32 v{a1}, v{x}, 0, vcc".format(x=t + 2 * j, y=t + 2 * j + 1, a0=WPHI + j, a1=WPHI + 4 + j))
    return out + g

def entry():
    s = """
    s_cmp_ge_u32 s2, 256
    s_cbranch_scc1 L_exit
    """
    for reg, off in ((SX, 0), (SQ, 8), (SG, 40), (SU, 48), (SW, 80), (SPHI, 16), (SO, 24), (SD, 56), (SOUT, 64), (SDBG, 72)):
        s += "s_load_dwordx2 s[%d:%d], s[0:1], %d\n" % (reg, reg + 1, off)
    if cfg.stamps:
        s += "s_memrealtime s[%d:%d]\nv_mov_b32 v%d, 0\n" % (sST, sST + 1, vSTAMP)
    s += """
    v_lshrrev_b32 v1, 6, v0
    v_and_b32 v{L}, 63, v0
    v_readfirstlane_b32 s{wv}, v1
    s_and_b32 s{xcd}, s2, 7
    s_lshr_b32 s{idx}, s2, 3
    s_and_b32 s{rb}, s{xcd}, 1
    s_lshl_b32 s{rb}, s{rb}, 3
    s_and_b32 s{t0}, s{idx}, 7
    s_add_u32 s{rb}, s{rb}, s{t0}
    s_lshr_b32 s{q}, s{xcd}, 1
    s_lshr_b32 s{t4}, s{idx}, 3
    s_and_b32 s{ab}, s{t4}, 1
    s_lshl_b32 s{i}, s{q}, 1
    s_add_u32 s{i}, s{i}, s{ab}
    s_lshl_b32 s{t1}, s{t4}, 1
    s_add_u32 s{t0}, s{t0}, s{t1}
    s_and_b32 s{th}, s{wv}, 1
    s_lshr_b32 s{gr}, s{wv}, 1
    s_xor_b32 s{s}, s{th}, s{gr}
    s_lshl_b32 s{l2k}, s{wv}, 11
    s_lshl_b32 s{l1k}, s{wv}, 10
    s_mul_i32 s{lx}, s{gr}, {P}
    s_lshl_b32 s{t1}, s{th}, 12
    s_add_u32 s{lx}, s{lx}, s{t1}
    """.format(L=vL, wv=sWV, xcd=sXCD, idx=sIDX, rb=sRB, t0=sT0, t1=sT1, q=sQ, t4=sT4, ab=sAB, i=sI, th=sTH, gr=sGR, s=sS, l2k=sL2K, l1k=sL1K, lx=sLX, P=PITCH)
    if not cfg.rot: s += "s_mov_b32 s%d, 0\n" % sT0
    for c in range(8):
        s += "s_add_u32 s{t1}, s{t0}, {c}\ns_and_b32 s{t1}, s{t1}, 7\ns_lshl_b32 s{kx}, s{t1}, 7\ns_mul_i32 s{kq}, s{t1}, {a}\ns_mul_i32 s{kg}, s{t1}, {b}\n".format(
            t0=sT0, t1=sT1, c=c, kx=sKX + c, kq=sKQ + c, kg=sKG + c, a=64 * 3072, b=64 * 3584)
    s += """
    s_lshl_b32 s{t0}, s{rb}, 2
    s_add_u32 s{t0}, s{t0}, s{wv}
    s_lshl_b32 s{t0}, s{t0}, 15
    v_lshrrev_b32 v2, 3, v{L}
    v_lshlrev_b32 v2, 10, v2
    v_add_u32 v2, s{t0}, v2
    v_lshrrev_b32 v3, 4, v{L}
    v_xor_b32 v3, v3, v{L}
    v_and_b32 v3, 7, v3
    v_lshl_add_u32 v{x0}, v3, 4, v2
    v_add_u32 v{x2}, {d2}, v{x0}
    v_xor_b32 v3, 4, v3
    v_lshl_add_u32 v{x1}, v3, 4, v2
    v_add_u32 v{x1}, 7168, v{x1}
    v_add_u32 v{x3}, {d2}, v{x1}
    s_lshl_b32 s{tt}, s{xcd}, 2
    s_and_b32 s{t0}, s{idx}, 3
    s_add_u32 s{tt}, s{tt}, s{t0}
    s_lshr_b32 s{ct}, s{idx}, 2
    """.format(t0=sT0, rb=sRB, wv=sWV, L=vL, x0=XD, x1=XD + 1, x2=XD + 2, x3=XD + 3, d2=2 * 7168, tt=sTT, xcd=sXCD, idx=sIDX, ct=sCT)
    for reg, sz in ((SX, 0x200000), (SQ, 0x180000), (SG, 0x1C0000), (SU, 0x1C0000), (SD, 0x1C0000), (SO, 0x80000), (SW, 0x10000000), (SOUT, 0x200000), (SDBG, 256), (SPHI, 16384)):
        s += "s_mov_b32 s%d, 0x%x\ns_mov_b32 s%d, 0x20000\n" % (reg + 2, sz, reg + 3)
    s += "s_waitcnt lgkmcnt(0)\n"
    if cfg.stamps: s += "v_writelane_b32 v%d, s%d, 0\n" % (vSTAMP, sST)
    s += "s_cmp_ge_u32 s%d, 2\ns_cbranch_scc1 L_typeB\n" % sT4
    ins = L(s)
    for x in ins:
        if x.kind == "smem": x.nowait = True
    return ins

def defaults():
    cfg.p2period = 72; cfg.rd_early = True
    cfg.a_att = 26; cfg.a_kvflag = 40; cfg.a_h1 = 24; cfg.a_h2 = 8
    cfg.b_h0 = 26; cfg.b_att = 30; cfg.b_h3 = 12; cfg.b_kvlat = 6; cfg.b_o = 8
    cfg.flag_delay = 24; cfg.flag_delay2 = 10
    cfg.a_p0 = 16; cfg.b_p0 = 24
    cfg.lead = [0, 3, 3, 3, 3]; cfg.poll_lead = 4; cfg.hstep = 2

def generate(path):
    label_n[0] = 0
    import fw; fw.LOOSE = cfg.x_nodma
    e, _ = pad_hazards(entry())
    progs = {}
    for typ in "AB":
        p = build_type(typ)
        if cfg.x_nodma:
            k0 = [i for i, x in enumerate(p) if getattr(x, "kind", "") == "barrier"][0]
            q = p[:k0]
            for x in p[k0:]:
                if getattr(x, "dma", False):
                    y = I("s_nop 0");
                    q.append(y)
                else: q.append(x)
            p = q
        k = [i for i, x in enumerate(p) if getattr(x, "kind", "") == "barrier"]
        ins = wphi_finish()
        p = p[:k[4] + 1] + ins + p[k[4] + 1:]
        if typ == "A":
            k = [i for i, x in enumerate(p) if getattr(x, "kind", "") == "barrier"]
            c2 = L("s_lshl_b32 s{t0}, s{ab}, 1\ns_add_u32 s{t0}, s{t0}, s{gr}\ns_sub_u32 s{kx}, 16, s{t0}\ns_lshl_b32 s{kx}, s{kx}, 11".format(t0=sSPIN, ab=sAB, gr=sGR, kx=sKX))
            p = p[:k[10] + 1] + c2 + p[k[10] + 1:]
        progs[typ] = finalize(p, typ)
    body = emit(e) + emit(progs["A"]) + "L_typeB:\n" + emit(progs["B"]) + "L_exit:\n    s_endpgm\n"
    ref = open("parallel_sum__linear_kernel_hedgehog__glu_gated_bilinear__prompt.s.ref").read().split("\n")
    head = [x for x in ref if x.startswith(";") and "@launch" not in x and "Override" not in x and "grid=ceil" not in x]
    txt = "\n".join(head) + "\n; @launch grid=(256,1,1) block=(256,1,1) lds=%d\n" % LDS_BYTES
    txt += """.amdgcn_target "amdgcn-amd-amdhsa--gfx950"
.text
.globl {k}
.p2align 8
.type {k},@function
{k}:
""".format(k=KNAME) + body + """.section .rodata,"a"
.p2align 6
.amdhsa_kernel {k}
  .amdhsa_next_free_vgpr 512
  .amdhsa_next_free_sgpr 102
  .amdhsa_accum_offset 256
  .amdhsa_group_segment_fixed_size 0
  .amdhsa_kernarg_size 88
  .amdhsa_user_sgpr_count 2
  .amdhsa_user_sgpr_kernarg_segment_ptr 1
  .amdhsa_system_sgpr_workgroup_id_x 1
.end_amdhsa_kernel
""".format(k=KNAME)
    open(path, "w").write(txt)
    if cfg.stamps: open(path[:-2] + ".names", "w").write("\n".join(stamp_names))

if __name__ == "__main__":
    defaults()
    path = sys.argv[1]
    for kv in sys.argv[2:]:
        k, v = kv.split("=")
        setattr(cfg, k, eval(v))
    generate(path)
```

```python
import re

TRANS = ("v_exp_f32", "v_log_f32", "v_rcp_f32", "v_rsq_f32", "v_sqrt_f32")


def regs_of(tok):
    tok = tok.strip()
    neg = tok.lstrip("-")
    if neg.startswith("abs(") or neg.startswith("|"):
        neg = neg.replace("abs(", "").replace(")", "").replace("|", "")
    m = re.fullmatch(r"([vas])\[(\d+):(\d+)\]", neg)
    if m:
        return [m.group(1) + str(i) for i in range(int(m.group(2)), int(m.group(3)) + 1)]
    m = re.fullmatch(r"([vas])(\d+)", neg)
    if m:
        return [neg]
    if neg in ("vcc", "exec", "m0", "scc"):
        return [neg]
    return []


class I:
    def __init__(self, text, tag=None):
        self.text = text.strip()
        self.tag = tag
        self.rd, self.wr = [], []
        self.kind = None
        self.passes = 0
        self.srcc = []
        self.parse()

    def parse(self):
        t = self.text
        if t.endswith(":"):
            self.kind = "label"; self.cost = 0; self.op = "label"; return
        parts = t.split(None, 1)
        op = parts[0]
        self.op = op
        rest = parts[1] if len(parts) > 1 else ""
        ops = [o.strip() for o in rest.split(",")] if rest else []
        if ops:
            last = ops[-1].split()
            mods = last[1:]
            ops[-1] = last[0]
        else:
            mods = []
        self.mods = mods
        R = lambda k: [r for o in ops[k:] for r in regs_of(o)]
        self.cost = 4
        if op.startswith("v_mfma"):
            self.kind = "mfma"
            self.wr = regs_of(ops[0]); self.srca = regs_of(ops[1]); self.srcb = regs_of(ops[2]); self.srcc = regs_of(ops[3])
            self.rd = self.srca + self.srcb + self.srcc
            self.passes = 8 if "32x32x16" in op else 4 if "16x16x32" in op else 2
            self.cost = 8
        elif op.startswith("ds_read"):
            self.kind = "ds"; self.wr = regs_of(ops[0]); self.rd = R(1)
        elif op.startswith("ds_"):
            self.kind = "ds"; self.rd = R(0)
        elif op.startswith("buffer_load") and "lds" in mods:
            self.kind = "vm"; self.rd = R(0) + ["m0"]; self.dma = True
        elif op.startswith("buffer_load") or op.startswith("global_load"):
            self.kind = "vm"; self.wr = regs_of(ops[0]); self.rd = R(1)
        elif op.startswith("buffer_store") or op.startswith("buffer_atomic"):
            self.kind = "vm"; self.rd = R(0); self.data = regs_of(ops[0])
        elif op.startswith("s_load") or op in ("s_memtime", "s_memrealtime"):
            self.kind = "smem"; self.wr = regs_of(ops[0]); self.rd = R(1)
        elif op in ("s_waitcnt", "s_barrier", "s_nop", "s_endpgm", "s_sleep", "s_setprio"):
            self.kind = op[2:]
        elif op.startswith("s_cbranch") or op == "s_branch":
            self.kind = "branch"
            if "scc" in op: self.rd = ["scc"]
            if "vcc" in op: self.rd = ["vcc"]
            if "exec" in op: self.rd = ["exec"]
        elif op.startswith("s_cmp"):
            self.kind = "salu"; self.rd = R(0); self.wr = ["scc"]
        elif op.startswith("s_"):
            self.kind = "salu"; self.wr = regs_of(ops[0]); self.rd = R(1)
            if not op.startswith(("s_mov", "s_mul_i32", "s_getpc", "s_getreg", "s_cselect")): self.wr = self.wr + ["scc"]
            if op.startswith("s_cselect") or op.startswith("s_addc"): self.rd = self.rd + ["scc"]
        elif op.startswith("v_"):
            self.kind = "valu"
            self.wr = regs_of(ops[0]); self.rd = R(1)
            if op.startswith(("v_fmac", "v_dot2c", "v_writelane")): self.rd = self.rd + self.wr
            if op.startswith("v_permlane"):
                self.wr = regs_of(ops[0]) + regs_of(ops[1]); self.rd = list(self.wr)
            if op.split("_e")[0] in TRANS or op in TRANS:
                self.trans = True; self.cost = 8
        else:
            raise ValueError("cannot parse: " + t)

    def __repr__(self):
        return self.text


class Wait:
    def __init__(self, tag):
        self.tag = tag; self.cost = 2; self.kind = "pseudo_wait"


class Gap:
    def __init__(self, n):
        self.n = n


class Raw:
    def __init__(self, lines, rd=(), wr=()):
        self.lines = lines; self.kind = "raw"; self.cost = 4 * len(lines); self.rd = list(rd); self.wr = list(wr)


def L(text, tag=None):
    out = []
    for x in text.strip("\n").split("\n"):
        x = x.split(";")[0].strip()
        if x: out.append(I(x))
    if tag is not None: out[-1].tag = tag
    return out


class Sched:
    def __init__(self):
        self.beats = []

    def beat(self, main, period=32):
        self.beats.append(dict(pre=[], main=main, post=[], period=period))
        return len(self.beats) - 1

    @staticmethod
    def _cost(item):
        if isinstance(item, list): return sum(x.cost for x in item)
        return item.cost

    def load(self, b):
        bt = self.beats[b]
        return sum(self._cost(x) for x in bt["pre"] + bt["post"]) + (bt["main"].cost if bt["main"] is not None else 0)

    def put(self, b, item, pre=False):
        self.beats[b]["pre" if pre else "post"].append(item)

    def spread(self, items, b0, b1, name=""):
        n = b1 - b0
        total = sum(self._cost(x) for x in items if not isinstance(x, Gap))
        gaps = sum(x.n for x in items if isinstance(x, Gap))
        loads = [self.load(b) - self.beats[b]["period"] for b in range(b0, b1)]
        lo, hi = -64.0, 4096.0
        def run(level, place):
            b = 0; room = max(0.0, level - loads[0])
            last = 0
            for it in items:
                if isinstance(it, Gap):
                    b = min(n - 1, b + it.n)
                    room = min(room, 0) + max(0.0, level - loads[b])
                    continue
                c = self._cost(it)
                while room < min(c, 8) * 0.5 and b < n - 1:
                    b += 1; room = min(room, 0) + max(0.0, level - loads[b])
                if room < min(c, 8) * 0.5 and not place: return None
                if place: self.put(b0 + b, it)
                room -= c; last = b
            return last
        for _ in range(30):
            mid = (lo + hi) / 2
            if run(mid, False) is None: lo = mid
            else: hi = mid
        last = run(hi, True)
        if name: print("  spread %-10s cost %5d over beats %d..%d level %+.0f last %d" % (name, total, b0, b1, hi, b0 + last))
        return b0 + last

    def flat(self):
        out = []
        def add(x):
            if isinstance(x, list): out.extend(x)
            else: out.append(x)
        for bt in self.beats:
            for x in bt["pre"]: add(x)
            if bt["main"] is not None: add(bt["main"])
            for x in bt["post"]: add(x)
        return out


LOOSE = False
def insert_waits(prog):
    out = []
    vm_seq = 0; vm_done = 0
    ds_seq = 0; ds_done = 0
    pend = {}
    tags = {}
    sm_out = False
    maxvm = 0

    def need(kind, seq, w):
        if kind == "vm" and seq > vm_done: w["vm"] = max(w.get("vm", 0), seq)
        if kind == "ds" and seq > ds_done: w["ds"] = max(w.get("ds", 0), seq)
        if kind == "sm": w["sm"] = 1

    for ins in prog:
        w = {}
        if isinstance(ins, Wait):
            if ins.tag == "lgkm0": need("ds", ds_seq, w)
            elif ins.tag == "vm0": need("vm", vm_seq, w)
            else:
                if ins.tag in tags:
                    k, s = tags[ins.tag]; need(k, s, w)
                else: assert LOOSE, ins.tag
        else:
            for r in list(ins.rd) + list(ins.wr):
                if r in pend: need(pend[r][0], pend[r][1], w)
        if w:
            parts = []
            if "vm" in w:
                n = min(vm_seq - w["vm"], 63); parts.append("vmcnt(%d)" % n); vm_done = vm_seq - n
            if "sm" in w:
                parts.append("lgkmcnt(0)"); ds_done = ds_seq; sm_out = False
                for r in [r for r, v in pend.items() if v[0] == "sm"]: del pend[r]
            elif "ds" in w:
                n = min(ds_seq - w["ds"], 15); parts.append("lgkmcnt(%d)" % n); ds_done = ds_seq - n
            out.append(I("s_waitcnt " + " ".join(parts)))
            for r in [r for r, v in pend.items() if (v[0] == "vm" and v[1] <= vm_done) or (v[0] == "ds" and v[1] <= ds_done)]: del pend[r]
        if isinstance(ins, Wait): continue
        out.append(ins)
        if ins.kind == "vm":
            vm_seq += 1
            for r in ins.wr: pend[r] = ("vm", vm_seq)
            if ins.tag: tags[ins.tag] = ("vm", vm_seq)
            maxvm = max(maxvm, vm_seq - vm_done)
        elif ins.kind == "ds":
            ds_seq += 1
            for r in ins.wr: pend[r] = ("ds", ds_seq)
            if ins.tag: tags[ins.tag] = ("ds", ds_seq)
        elif ins.kind == "smem":
            if not getattr(ins, "nowait", False):
                for r in ins.wr: pend[r] = ("sm", 0)
    return out, maxvm


def states(ins):
    if ins.kind == "label": return 0
    if ins.kind == "nop": return int(ins.text.split()[1]) + 1
    if ins.kind == "raw": return 1
    return 1


def pad_hazards(prog):
    out = []
    nn = 0
    for ins in prog:
        needn = 0
        if ins.kind not in ("label", "nop", "waitcnt", "barrier"):
            rd = set(ins.rd); wr = set(ins.wr)
            dist = 0
            for p in reversed(out):
                if dist >= 20: break
                req = 0
                pw = set(p.wr) if p.kind not in ("label", "nop", "waitcnt", "barrier") else set()
                if p.kind == "valu":
                    vw = {r for r in pw if r[0] in "va" and r != "vcc"}
                    sw = pw - vw
                    if ins.kind == "mfma" and vw & rd: req = max(req, 2)
                    if ins.kind == "valu" and ins.op.startswith("v_permlane") and vw & rd: req = max(req, 2)
                    if ins.kind == "valu" and ins.op.startswith(("v_readfirstlane", "v_readlane")) and vw & rd: req = max(req, 1)
                    if getattr(p, "trans", False) and vw & rd: req = max(req, 1)
                    if "sdwa" in p.op and vw & (rd | wr): req = max(req, 1)
                    if sw & rd:
                        if ins.kind == "valu": req = max(req, 2)
                        elif ins.kind == "vm": req = max(req, 5)
                        elif ins.kind in ("salu", "branch", "raw"): req = max(req, 4)
                elif p.kind == "mfma":
                    k = {2: 0, 4: 1, 8: 2}[p.passes]
                    if ins.kind == "mfma":
                        if pw & set(ins.srcc):
                            if list(p.wr) == list(ins.srcc) and p.passes == ins.passes: req = max(req, [2, 0, 0][k])
                            else: req = max(req, [4, 6, 10][k])
                        if pw & (set(ins.srca) | set(ins.srcb)): req = max(req, [5, 8, 12][k])
                        if pw & wr and not (pw & set(ins.srcc)): req = max(req, [5, 8, 12][k])
                    else:
                        if pw & (rd | wr): req = max(req, [5, 8, 12][k])
                        if set(p.srcc) & wr: req = max(req, [1, 3, 7][k])
                elif p.kind == "salu":
                    if "m0" in pw and ins.kind == "vm" and "m0" in rd: req = max(req, 1)
                elif p.kind in ("vm", "ds"):
                    data = getattr(p, "data", None)
                    if p.kind == "ds" and not p.wr: data = p.rd[1:]
                    if data and len(data) >= 3 and set(data) & wr: req = max(req, 2)
                if req > dist: needn = max(needn, req - dist)
                dist += states(p)
        if needn:
            out.append(I("s_nop %d" % (needn - 1))); nn += needn
        out.append(ins)
    return out, nn


def emit(prog):
    lines = []
    for ins in prog:
        if ins.kind == "raw": lines += ["    " + x if not x.endswith(":") else x for x in ins.lines]
        elif ins.kind == "label": lines.append(ins.text)
        else: lines.append("    " + ins.text)
    return "\n".join(lines) + "\n"


def finalize(prog, name=""):
    p, maxvm = insert_waits(prog)
    p, nn = pad_hazards(p)
    cnt = {}
    for x in p: cnt[x.kind] = cnt.get(x.kind, 0) + 1
    print("  %s: %d instr, max vm in flight %d, nop states %d, %s" % (name, len(p), maxvm, nn, cnt))
    return p
```

```python
import sys
from fw import *

KNAME = "parallel_sum__linear_kernel_hedgehog__glu_gated_bilinear__prompt_kernel"

class Cfg:
    rot = True
    stamps = False
    codepf = False
    wpf = False
    w2pf = False
    spin = 200000
    dbgout = False
    x_drop = ''
    x_nostat = False; x_notask = False; x_nodma = False; x_nobar = False
cfg = Cfg()

PITCH = 8224
NSLOT = 16
WREG = NSLOT * PITCH
WREG_SZ = 5632
VOFF = 2304
STAT = WREG + 4 * WREG_SZ
CSP = STAT + 2048
CST = CSP + 3072
LDS_BYTES = 163840
WS_H = 0
WS_KVP = 0xC00000
WS_KVF = 0xA00000
WS_FL = 0xA40000
WS_ST = 0xB00000
OOB = 0x40000000

SX, SQ, SG, SU, SD, SO, SW, SOUT, SDBG, SPHI = 4, 8, 12, 16, 20, 24, 28, 32, 36, 40
def srd(b): return "s[%d:%d]" % (b, b + 3)
sWV, sTH, sGR, sRB, sQ, sT4, sAB, sI, sTT, sCT, sIDX, sXCD = range(44, 56)
sKX, sKQ, sKG = 56, 64, 72
sLX, sL2K, sL1K, sT0, sT1, sSPIN = 80, 81, 82, 83, 84, 85
sM1, sM2, sM3, sMB = 86, 88, 90, 92
sWDB, sWOB, sC2, sH2, sS = 94, 95, 96, 97, 3
sMH = 54
sST = 98
SET0, SET1, WF = 0, 64, 128
SEL01, SEL23 = 144, 148
vPW, vPR, vVW, vVR0 = 152, 153, 154, 155
vKVL, vKRL, vKRS = 152, 153, 154
CSD = 156
MB = 160
CA = 168
vSL = 172
XR, WR1, WR3, XD, WR2 = 174, 178, 178, 182, 182
W2R = 174
WQD, WGD, WHD = 186, 188, 190
vHLD, vPOL = 186, 187
vCSA, vRS, vR2, vHST, vL, W2D = 191, 192, 194, 196, 197, 198
WPHI = 200
KVD = 208
TMP = 240
vFLG, vVR1, vKVA, vSTAMP = 252, 253, 254, 255
RSD, SQD = 64, 68
ACC2 = [96, 112, 208, 224]

def vr(b, n=1): return "v%d" % b if n == 1 else "v[%d:%d]" % (b, b + n - 1)
def ar(b, n): return "a[%d:%d]" % (b, b + n - 1)

stamp_names = []
def stamp(name):
    if cfg.stamps != True: return []
    if name not in stamp_names: stamp_names.append(name)
    k = stamp_names.index(name)
    return [I("s_memtime s[%d:%d]" % (sST, sST + 1)), I("v_writelane_b32 v%d, s%d, %d" % (vSTAMP, sST, k + 2))]

def addr_wfull(dst, n, att, swap, t0=TMP):
    a, b = vr(t0), vr(t0 + 1)
    s = """
    v_lshrrev_b32 {a}, 5, v{L}
    v_lshlrev_b32 {a}, 10, {a}
    v_bfe_u32 {b}, v{L}, 2, 2
    v_lshl_add_u32 {a}, {b}, 7, {a}
    v_and_b32 {b}, 3, v{L}
    v_lshl_add_u32 {a}, {b}, 3, {a}
    v_bfe_u32 {b}, v{L}, 3, 1
    v_xor_b32 {b}, s{gr}, {b}
    v_lshl_add_u32 {a}, {b}, 6, {a}
    v_bfe_u32 {b}, v{L}, 4, 1
    """.format(a=a, b=b, L=vL, gr=sGR)
    if att:
        if swap: s += "v_xor_b32 %s, s%d, %s\n" % (b, sTH, b)
        s += "v_lshl_add_u32 %s, %s, 5, %s\n" % (a, b, a)
    else:
        s += "v_mul_u32_u24 %s, %d, %s\nv_add_u32 %s, %s, %s\n" % (b, PITCH, b, a, a, b)
    return L(s) + wr_variants(dst, n, a, 12)

def wr_variants(dst, n, a, sh):
    s = "s_lshl_b32 s%d, s%d, %d\ns_xor_b32 s%d, s%d, %d\n" % (sT0, sS, sh, sT1, sT0, 1 << sh)
    k = dst
    if n == 4:
        s += "v_add_u32 v%d, s%d, %s\nv_add_u32 v%d, s%d, %s\n" % (k, sT0, a, k + 1, sT1, a)
        s += "v_add_u32 v%d, %d, v%d\nv_add_u32 v%d, %d, v%d\n" % (k + 2, 8 * PITCH, k, k + 3, 8 * PITCH, k + 1)
    else:
        s += "v_add_u32 %s, %d, %s\n" % (a, 8 * PITCH, a)
        s += "v_add_u32 v%d, s%d, %s\nv_add_u32 v%d, s%d, %s\n" % (k, sT0, a, k + 1, sT1, a)
    ins = L(s)
    return [ins]

def addr_whalf(dst, t0=TMP):
    a, b = vr(t0), vr(t0 + 1)
    s = """
    v_lshrrev_b32 {a}, 5, v{L}
    v_lshlrev_b32 {a}, 9, {a}
    v_bfe_u32 {b}, v{L}, 2, 2
    v_lshl_add_u32 {a}, {b}, 6, {a}
    v_and_b32 {b}, 3, v{L}
    v_lshl_add_u32 {a}, {b}, 3, {a}
    v_bfe_u32 {b}, v{L}, 4, 1
    v_mul_u32_u24 {b}, 4128, {b}
    v_add_u32 {a}, {a}, {b}
    v_mov_b32 {b}, s{gr}
    v_lshl_add_u32 {a}, {b}, 5, {a}
    """.format(a=a, b=b, L=vL, gr=sGR)
    return L(s) + wr_variants(dst, 4, a, 11)

def addr_cs(swap, t0=TMP):
    a = vr(t0)
    s = "s_lshl_b32 s%d, s%d, 8\ns_lshl_b32 s%d, s%d, 7\ns_add_u32 s%d, s%d, s%d\ns_add_u32 s%d, s%d, %d\n" % (sT0, sGR, sT1, sTH, sT0, sT0, sT1, sT0, sT0, CSP)
    s += "v_and_b32 %s, 31, v%d\n" % (a, vL)
    if swap: s += "s_lshl_b32 s%d, s%d, 4\nv_xor_b32 %s, s%d, %s\n" % (sT1, sTH, a, sT1, a)
    s += """
    v_lshl_add_u32 v{ca}, {a}, 2, s{t}
    v_lshrrev_b32 {a}, 5, v{L}
    v_lshl_add_u32 v{ca}, {a}, 9, v{ca}
    """.format(a=a, L=vL, ca=vCSA, t=sT0)
    return [L(s)]

def addr_p2(t0=TMP):
    a, b = vr(t0), vr(t0 + 1)
    s = """
    v_lshrrev_b32 {a}, 5, v{L}
    v_lshlrev_b32 {a}, 9, {a}
    v_bfe_u32 {b}, v{L}, 2, 2
    v_lshl_add_u32 {a}, {b}, 7, {a}
    v_and_b32 {b}, 3, v{L}
    v_lshl_add_u32 {a}, {b}, 3, {a}
    v_bfe_u32 {b}, v{L}, 3, 1
    v_lshl_add_u32 {a}, {b}, 6, {a}
    v_bfe_u32 {b}, v{L}, 4, 1
    v_lshl_add_u32 {a}, {b}, 5, {a}
    v_xor_b32 {b}, 64, {a}
    v_add_u32 v{w0}, s{l2k}, {a}
    v_add_u32 v{w1}, s{l2k}, {b}
    v_add_u32 v{w2}, {hi}, v{w0}
    v_add_u32 v{w3}, {hi}, v{w1}
    """.format(a=a, b=b, L=vL, w0=W2R, w1=W2R + 1, w2=W2R + 2, w3=W2R + 3, l2k=sL2K, hi=8 * PITCH)
    ins = L(s)
    ins.append(L("""
    s_mul_i32 s{t0}, s{tt}, {a}
    s_mul_i32 s{t1}, s{wv}, {b}
    s_add_u32 s{t0}, s{t0}, s{t1}
    v_lshl_add_u32 v{h}, v{L}, 4, s{t0}
    """.format(t0=sT0, t1=sT1, tt=sTT, wv=sWV, a=144 * 2048, b=36 * 2048, h=vHLD, L=vL)))
    ins.append(L("""
    s_lshl_b32 s{t0}, s{tt}, 2
    s_add_u32 s{t0}, s{t0}, s{wv}
    s_lshl_b32 s{t0}, s{t0}, 7
    s_add_u32 s{t0}, s{t0}, {fl}
    v_and_b32 {a}, 7, v{L}
    v_lshl_add_u32 v{p}, {a}, 2, s{t0}
    """.format(t0=sT0, tt=sTT, wv=sWV, fl=WS_FL, a=a, L=vL, p=vPOL)))
    return ins

label_n = [0]
def poll(addr, res, need, sr=SW, cmp="gt"):
    label_n[0] += 1
    k = label_n[0]
    ld = "buffer_load_dword v%d, v%d, %s, 0 offen sc1" % (res, addr, srd(sr))
    c = "v_cmp_%s_u32 vcc, %s, v%d" % (cmp, need, res)
    chk = Raw([c, "s_nop 4", "s_cbranch_vccz L_ok%d" % k,
               "s_mov_b32 s%d, %d" % (sSPIN, cfg.spin),
               "L_re%d:" % k, "s_sleep 1", ld, "s_waitcnt vmcnt(0)", c, "s_sub_u32 s%d, s%d, 1" % (sSPIN, sSPIN),
               "s_cbranch_scc1 L_ok%d" % k, "s_nop 2", "s_cbranch_vccnz L_re%d" % k,
               "L_ok%d:" % k],
              rd=["v%d" % res, "v%d" % addr] + regs_of(need), wr=["vcc", "scc", "s%d" % sSPIN])
    chk.cost = 32
    return I(ld), chk

def class_poll(c, res, needr):
    na, nb = [(0, 1), (0, 2), (1, 2), (2, 2), (2, 3)][c]
    iss, chk = poll(vPOL, res, "v%d" % needr)
    return iss, [I("v_cndmask_b32 v%d, %d, %d, s[%d:%d]" % (needr, na, nb, sMB, sMB + 1)), chk]

def set_flag(level, tag, t):
    return stamp("f%d_0" % level) + [Wait(tag)] + stamp("f%d_1" % level) + [I("v_mov_b32 v%d, %d" % (t, level)), I("buffer_store_dword v%d, v%d, %s, 0 offen sc1" % (t, vFLG, srd(SW)))]

def t_stat_add():
    a, b = TMP, TMP + 1
    s = """
    s_lshl_b32 s{t0}, s{th}, 10
    s_add_u32 s{t0}, s{t0}, {st}
    v_and_b32 v{b}, 31, v{L}
    v_lshl_add_u32 v{b}, v{b}, 4, s{t0}
    s_lshl_b32 s{t1}, s{gr}, 3
    s_add_u32 s{t0}, s{t0}, s{t1}
    v_lshl_add_u32 v{a}, v{L}, 4, s{t0}
    """.format(t0=sT0, t1=sT1, th=sTH, gr=sGR, st=STAT, a=a, b=b, L=vL)
    pre = [L(s)]
    out = []
    for j, m in ((1, sM1), (2, sM2), (3, sM3)):
        for blk in range(2):
            q = SQD + 4 * blk
            out += L("v_cndmask_b32 v%d, v%d, v%d, s[%d:%d]" % (q, q, q + j, m, m + 1))
    out.append(L("v_permlane32_swap_b32 v%d, v%d\nv_add_f32 v%d, v%d, v%d" % (SQD, SQD + 4, RSD + 1, SQD, SQD + 4)))
    out += L("ds_write_b64 v%d, v[%d:%d]" % (a, RSD, RSD + 1))
    return pre, out

def t_cs_add(tile0):
    return L("ds_write_b32 v%d, v%d offset:%d" % (vCSA, CSD, 512 * tile0))

def t_cs_tot(tile0, t):
    out = L("v_xor_b32 v%d, 0x80, v%d\nds_read_b32 v%d, v%d offset:%d" % (t, vCSA, t, t, 512 * tile0))
    out.append(Gap(2))
    out += L("""
    v_add_f32 v{t}, v{t}, v{cs}
    v_cvt_pk_bf16_f32 v{a}, v{t}, v{t}
    v_lshlrev_b32 v{a1}, 16, v{a}
    v_sub_f32 v{t}, v{t}, v{a1}
    v_cvt_pk_bf16_f32 v{a1}, v{t}, 0
    """.format(t=t, cs=CSD, a=CA, a1=CA + 1))
    return out

def t_corr(acc, T):
    out = []
    for j in range(T):
        for b in range(2):
            d = vr(acc + 32 * j + 16 * b, 16)
            x = I("v_mfma_f32_32x32x16_bf16 %s, %s, %s, %s" % (d, vr(CA, 4), vr(MB + 4 * b + 2 * j, 4), d)); x.cost = 24
            out.append(x)
    return out

def t_stat_fin():
    b = TMP + 1; t = TMP + 4
    out = L("ds_read_b128 v[%d:%d], v%d\nds_read_b128 v[%d:%d], v%d offset:512" % (t, t + 3, b, t + 4, t + 7, b))
    out.append(Gap(2))
    late = []
    for blk in range(2):
        r = t + 4 * blk; m = MB + 4 * blk
        out += L("""
        v_add_f32 v{r}, v{r}, v{r2}
        v_mul_f32 v{r}, 0xbb000000, v{r}
        v_cvt_pk_bf16_f32 v{m1}, v{r}, 0
        v_lshlrev_b32 v{r2}, 16, v{m1}
        v_sub_f32 v{r2}, v{r}, v{r2}
        v_cvt_pk_bf16_f32 v{m0}, v{r}, v{r2}
        v_cndmask_b32 v{m2}, 0, v{m0}, s[{h}:{h1}]
        v_cndmask_b32 v{m3}, 0, v{m1}, s[{h}:{h1}]
        v_cndmask_b32 v{m0}, v{m0}, 0, s[{h}:{h1}]
        v_cndmask_b32 v{m1}, v{m1}, 0, s[{h}:{h1}]
        """.format(r=r, r2=r + 2, m0=m, m1=m + 1, m2=m + 2, m3=m + 3, h=sMH, h1=sMH + 1))
        late += L("""
        v_add_f32 v{r1}, v{r1}, v{r3}
        v_mul_f32 v{r2}, v{r}, v{r}
        v_fma_f32 v{r1}, v{r1}, s{c}, -v{r2}
        v_max_f32 v{r1}, 0, v{r1}
        v_add_f32 v{r1}, 0x3727c5ac, v{r1}
        v_rsq_f32 v{rs}, v{r1}
        v_rcp_f32 v{rr}, v{r1}
        v_mul_f32 v{sl}, 0x3fb8aa3b, v{rs}
        """.format(r=r, r1=r + 1, r2=r + 2, r3=r + 3, rs=vRS + blk, rr=vR2 + blk, sl=vSL + blk, c=sC2))
    return out, late

def t_hepi(acc, soff, imm, tag):
    out = []
    for blk in range(2):
        g = acc + 16 * blk
        for r in range(0, 8 if not cfg.x_notask else 0, 2):
            out += L("v_mul_f32 v%d, v%d, v%d\nv_mul_f32 v%d, v%d, v%d" % (g + r, vR2 + blk, g + r, g + r + 1, vR2 + blk, g + r + 1))
            out += L("v_mul_f32 v%d, v%d, v%d\nv_mul_f32 v%d, v%d, v%d" % (g + r, g + r, g + 8 + r, g + r + 1, g + r + 1, g + 9 + r))
            out += L("v_cvt_pk_bf16_f32 v%d, v%d, v%d" % (g + r // 2, g + r, g + r + 1))
        st = L("buffer_store_dwordx4 v[%d:%d], v%d, %s, s%d offen offset:%d sc1" % (g, g + 3, vHST, srd(SW), sT1, imm + 1024 * blk), tag=tag if blk else None)
        out.append(L(soff) + st)
    return out

def phi_mfma(acc, TMP=TMP):
    out = []
    for j in range(8): out += L("v_cvt_pk_bf16_f32 v%d, v%d, v%d" % (TMP + j, acc + 2 * j, acc + 2 * j + 1))
    out += L("v_mfma_f32_32x32x16_bf16 v[%d:%d], v[%d:%d], v[%d:%d], 0" % (acc, acc + 15, WPHI, WPHI + 3, TMP, TMP + 3))
    out += L("v_mfma_f32_32x32x16_bf16 v[%d:%d], v[%d:%d], v[%d:%d], v[%d:%d]" % (acc, acc + 15, WPHI + 4, WPHI + 7, TMP + 4, TMP + 7, acc, acc + 15))
    out[-1].cost = 24; out[-2].cost = 24
    return out

def softmax2(p, blk):
    e = TMP; a, b, c, d = TMP + 8, TMP + 9, TMP + 10, TMP + 11; sl = vSL + blk
    s = """
    v_max3_f32 v{a}, v{p0}, v{p1}, v{p2}
    v_min3_f32 v{b}, v{p0}, v{p1}, v{p2}
    v_max3_f32 v{a}, v{a}, v{p3}, v{p4}
    v_min3_f32 v{b}, v{b}, v{p3}, v{p4}
    v_max3_f32 v{a}, v{a}, v{p5}, v{p6}
    v_min3_f32 v{b}, v{b}, v{p5}, v{p6}
    v_max_f32 v{a}, v{a}, v{p7}
    v_max_f32_e64 v{b}, -v{b}, -v{p7}
    """.format(a=a, b=b, **{"p%d" % i: p + i for i in range(8)})
    out = L(s)
    out += L("v_permlane32_swap_b32 v{a}, v{b}\nv_max_f32 v{a}, v{a}, v{b}\nv_mul_f32_e64 v{a}, -v{a}, v{sl}\nv_mov_b32 v{b}, v{a}".format(a=a, b=b, sl=sl))
    out += L("v_permlane32_swap_b32 v{a}, v{b}".format(a=a, b=b))
    for i in range(8):
        out += L("v_fma_f32 v%d, v%d, v%d, v%d" % (e + i, p + i, sl, a))
        out += L("v_fma_f32 v%d, -v%d, v%d, v%d" % (p + i, p + i, sl, b))
        if i > 1: out += L("v_add_f32 v%d, v%d, v%d" % (c, c if i > 2 else e, e + i - 1))
        out += L("v_exp_f32 v%d, v%d" % (e + i, e + i))
        if i > 1: out += L("v_add_f32 v%d, v%d, v%d" % (d, d if i > 2 else p, p + i - 1))
        out += L("v_exp_f32 v%d, v%d" % (p + i, p + i))
    out += L("v_add_f32 v%d, v%d, v%d\nv_add_f32 v%d, v%d, v%d" % (c, c, e + 7, d, d, p + 7))
    out += L("v_permlane32_swap_b32 v{c}, v{d}\nv_add_f32 v{c}, v{c}, v{d}\nv_rcp_f32 v{c}, v{c}".format(c=c, d=d))
    out += L("v_mov_b32 v{d}, v{c}".format(c=c, d=d))
    out += L("v_permlane32_swap_b32 v{c}, v{d}".format(c=c, d=d))
    for i in range(8):
        out += L("v_mul_f32 v%d, v%d, v%d" % (p + i, d, p + i))
        if i & 1: out += L("v_cvt_pk_bf16_f32 v%d, v%d, v%d" % (p + i // 2, p + i - 1, p + i))
    for i in range(8):
        out += L("v_mul_f32 v%d, v%d, v%d" % (e + i, c, e + i))
        if i & 1: out += L("v_cvt_pk_bf16_f32 v%d, v%d, v%d" % (p + 4 + i // 2, e + i - 1, e + i))
    return out

def v_out(va, blk):
    out = []
    for r in range(0, 16, 2):
        out += L("v_mul_f32 v%d, v%d, v%d\nv_mul_f32 v%d, v%d, v%d" % (va + r, vRS + blk, va + r, va + r + 1, vRS + blk, va + r + 1))
        out += L("v_cvt_pk_bf16_f32 v%d, v%d, v%d" % (va + r // 2, va + r, va + r + 1))
        if r % 4 == 2: out += L("ds_write_b64 v%d, v[%d:%d] offset:%d" % (vVW, va + r // 2 - 1, va + r // 2, 4 * (r - 2)))
    return out

def t_att_k():
    out = []
    if cfg.x_notask: return [I("s_nop 0")]
    FR = 32
    pend = []
    for blk in range(2):
        va = 32 + 16 * blk; ka = 16 * blk
        out += phi_mfma(ka)
        out += pend; pend = []
        out += v_out(va, blk)
        for hh in range(2):
            p = ka + 8 * hh
            sm = softmax2(p, blk)
            out += sm[:24] + pend + sm[24:]; pend = []
            for j in range(2):
                out += L("ds_write_b64 v%d, v[%d:%d] offset:%d" % (vPW, p + 4 + 2 * j, p + 5 + 2 * j, 16 * j))
                out += L("ds_write_b64 v%d, v[%d:%d] offset:%d" % (vPW, p + 2 * j, p + 1 + 2 * j, 32 + 16 * j))
            for ks in range(2):
                for j in range(2):
                    out += L("ds_read_b64_tr_b16 v[%d:%d], v%d offset:%d" % (FR + 8 * ks + 2 * j, FR + 8 * ks + 2 * j + 1, vPR, 1152 * ks + 288 * j))
                    out += L("ds_read_b64_tr_b16 v[%d:%d], v%d offset:%d" % (FR + 8 * ks + 4 + 2 * j, FR + 8 * ks + 5 + 2 * j, (vVR0, vVR1)[hh], 1664 * ks + 416 * j))
            d = KVD + 16 * hh
            for ks in range(2):
                c = "0" if (blk == 0 and ks == 0) else vr(d, 16)
                x = I("v_mfma_f32_32x32x16_bf16 %s, %s, %s, %s" % (vr(d, 16), vr(FR + 8 * ks, 4), vr(FR + 8 * ks + 4, 4), c)); x.cost = 24
                pend.append(x)
    out.append(L("""
    s_mul_i32 s{t0}, s{wv}, {wsz}
    s_add_u32 s{t0}, s{t0}, {wreg}
    v_lshl_add_u32 v{a}, v{L}, 4, s{t0}
    s_xor_b32 s{t0}, s{wv}, 1
    s_mul_i32 s{t0}, s{t0}, {wsz}
    s_add_u32 s{t0}, s{t0}, {wreg}
    v_lshl_add_u32 v{b}, v{L}, 4, s{t0}
    """.format(t0=sT0, wv=sWV, wsz=WREG_SZ, wreg=WREG, a=TMP, b=TMP + 1, L=vL)))
    out += [Gap(2)] + pend + [Gap(2)]
    for r4 in range(4): out += L("ds_write_b128 v%d, %s offset:%d" % (TMP, vr(KVD + 16 + 4 * r4, 4), 1024 * r4))
    return out

def t_kv_pub():
    out = []
    for r4 in range(4): out += L("ds_read_b128 %s, v%d offset:%d" % (vr(KVD + 16 + 4 * r4, 4), TMP + 1, 1024 * r4))
    out.append(Gap(2))
    for r in range(16):
        out += L("v_add_f32 v%d, v%d, v%d" % (KVD + r, KVD + r, KVD + 16 + r))
        if r % 4 == 3: out += L("buffer_store_dwordx4 %s, v%d, %s, 0 offen offset:%d sc1" % (vr(KVD + r - 3, 4), vKVA, srd(SW), 256 * (r - 3)))
    return out

def data_poll(loads, regs, t):
    label_n[0] += 1
    k = label_n[0]
    chk = ["v_max3_u32 v%d, v%d, v%d, v%d" % (t, regs[0], regs[1], regs[2])]
    rest = regs[3:]
    while len(rest) > 1:
        chk.append("v_max3_u32 v%d, v%d, v%d, v%d" % (t, t, rest[0], rest[1])); rest = rest[2:]
    if rest: chk.append("v_max_u32 v%d, v%d, v%d" % (t, t, rest[0]))
    fast = L("\n".join(chk))
    c = "v_cmp_eq_u32 vcc, -1, v%d" % t
    raw = Raw([c, "s_nop 4", "s_cbranch_vccz L_ok%d" % k, "s_mov_b32 s%d, %d" % (sSPIN, cfg.spin), "L_re%d:" % k, "s_sleep 1"] + loads +
              ["s_waitcnt vmcnt(0)"] + chk + [c, "s_sub_u32 s%d, s%d, 1" % (sSPIN, sSPIN), "s_cbranch_scc1 L_ok%d" % k, "s_nop 2",
               "s_cbranch_vccnz L_re%d" % k, "L_ok%d:" % k],
              rd=["v%d" % t], wr=["vcc", "scc", "s%d" % sSPIN, "s%d" % sT1] + ["v%d" % r for r in regs])
    raw.cost = 32
    return fast + [raw]

RR = 80
def t_kv_red():
    ld = []
    for k in range(4):
        ld += ["s_mov_b32 s%d, %d" % (sT1, 16384 * k), "buffer_load_dwordx4 %s, v%d, %s, s%d offen sc1" % (vr(RR + 4 * k, 4), vKRL, srd(SW), sT1)]
    iss = [L("\n".join(ld[2 * k:2 * k + 2])) for k in range(4)]
    out = data_poll(ld, list(range(RR, RR + 16)), vKVA)
    for j in range(4):
        out += L("v_add_f32 v%d, v%d, v%d\nv_add_f32 v%d, v%d, v%d" % (RR + j, RR + j, RR + 4 + j, RR + 8 + j, RR + 8 + j, RR + 12 + j))
    for j in range(4): out += L("v_add_f32 v%d, v%d, v%d" % (RR + j, RR + j, RR + 8 + j))
    out += L("""
    v_permlane16_swap_b32 v{a}, v{b}
    v_permlane16_swap_b32 v{c}, v{d}
    v_add_f32 v{a}, v{a}, v{b}
    v_add_f32 v{c}, v{c}, v{d}
    v_permlane32_swap_b32 v{a}, v{c}
    v_add_f32 v{a}, v{a}, v{c}
    buffer_store_dword v{a}, v{s}, {sr}, 0 offen sc1
    """.format(a=RR, b=RR + 1, c=RR + 2, d=RR + 3, s=vKRS, sr=srd(SW)))
    return iss, out

def t_att_q():
    out = []
    if cfg.x_notask: return [I("s_nop 0")]
    out += phi_mfma(SET0, 64) + phi_mfma(SET0 + 16, 72)
    out += softmax2(SET0, 0) + softmax2(SET0 + 8, 0) + softmax2(SET0 + 16, 1) + softmax2(SET0 + 24, 1)
    return out

KR = 32
def t_kv_load():
    ld = []
    for hh in range(2):
        ld += ["s_mov_b32 s%d, %d" % (sT1, 4096 * hh)]
        for r4 in range(4):
            ld += ["buffer_load_dwordx4 %s, v%d, %s, s%d offen offset:%d sc1" % (vr(KR + 16 * hh + 4 * r4, 4), vKVL, srd(SW), sT1, 1024 * r4)]
    iss = [L("\n".join(ld[:5])), L("\n".join(ld[5:]))]
    return iss, data_poll(ld, list(range(KR, KR + 32)), vKVA)

def t_o():
    out = []
    for hh in range(2):
        for j in range(8): out += L("v_cvt_pk_bf16_f32 v%d, v%d, v%d" % (KR + 16 * hh + j, KR + 16 * hh + 2 * j, KR + 16 * hh + 2 * j + 1))
    seq = [(hh, blk) for hh in range(2) for blk in range(2)]
    def mm(k):
        hh, blk = seq[k]; d = 64 + 16 * (k & 1); p = SET0 + 16 * blk + 8 * hh
        return L("v_mfma_f32_32x32x16_bf16 %s, %s, %s, 0" % (vr(d, 16), vr(KR + 16 * hh, 4), vr(p + 4, 4))) + \
               L("v_mfma_f32_32x32x16_bf16 %s, %s, %s, %s" % (vr(d, 16), vr(KR + 16 * hh + 4, 4), vr(p, 4), vr(d, 16)))
    def fin(k):
        hh, blk = seq[k]; d = 64 + 16 * (k & 1)
        o = L("v_add_f32 v%d, 0x358637bd, v%d\nv_rcp_f32 v%d, v%d" % (d + 8, d + 8, d + 8, d + 8))
        for r in range(8):
            o += L("v_mul_f32 v%d, v%d, v%d" % (d + r, d + 8, d + r))
            if r & 1: o += L("v_cvt_pk_bf16_f32 v%d, v%d, v%d" % (d + r // 2, d + r - 1, d + r))
        st = L("s_mov_b32 s%d, %d" % (sT1, 28 * 2048)) + \
             L("buffer_store_dwordx4 %s, v%d, %s, s%d offen offset:%d sc1" % (vr(d, 4), vHST, srd(SW), sT1, 2048 * hh + 1024 * blk), tag="ost" if k == 3 else None)
        return o + [st]
    out += mm(0) + mm(1) + fin(0) + mm(2) + fin(1) + mm(3) + fin(2) + fin(3)
    return out

def dma(vo, sr, so, imm, tag=None):
    return L("buffer_load_dwordx4 v%d, %s, %s offen%s lds" % (vo, srd(sr), so, " offset:%d" % imm if imm else ""), tag=tag)

def m0set(base, lit): return L("s_add_u32 m0, s%d, %d" % (base, lit))

def dma_x(c, slot, tag):
    g = m0set(sLX, slot * PITCH)
    return [g + dma(XD, SX, "s%d" % (sKX + c), 0)] + [dma(XD + i, SX, "s%d" % (sKX + c), 1024 * i, tag if i == 3 else None) for i in range(1, 4)]

def dma_full(vo, sr, kreg, extra, slot, tag):
    g = m0set(sL2K, slot * PITCH)
    so = "s%d" % kreg
    if extra:
        g += L("s_add_u32 s%d, s%d, %d" % (sT0, kreg, extra)); so = "s%d" % sT0
        return [g + dma(vo, sr, so, 0) + dma(vo + 1, sr, so, 1024, tag)]
    return [g + dma(vo, sr, so, 0) + dma(vo + 1, sr, so, 1024, tag)]

def dma_half(c, slot, tag):
    so = "s%d" % (sKG + c)
    return [m0set(sL1K, slot * PITCH) + dma(WHD, SG, so, 0), m0set(sL1K, slot * PITCH + 4128) + dma(WHD, SU, so, 0, tag)]

def slice_src(n):
    if n < 8: return SD, sWDB, 128 * (n >> 2) + 16 * (n & 3)
    if n < 16: return SD, sWDB, 128 * ((n - 8) >> 2) + 64 + 16 * (n & 3)
    if n < 24: return SD, sWDB, 64 * (4 + ((n - 16) >> 2)) + 16 * (n & 3)
    if n < 28: return SD, sWDB, 384 + 16 * (n - 24)
    return SO, sWOB, 16 * (n - 28)

def dma_w2(n, slot):
    sr, base, row = slice_src(n)
    g = m0set(sL2K, slot * PITCH) + L("s_add_u32 s%d, s%d, %d" % (sT0, base, row * 1024))
    return [g + dma(W2D, sr, "s%d" % sT0, 0) + dma(W2D + 1, sr, "s%d" % sT0, 1024, "w2_%d" % n)]

def h_load(n):
    g = L("s_mov_b32 s%d, %d" % (sT1, n * 2048))
    a = 8 * (n % 32)
    for b in range(2):
        g += L("buffer_load_dwordx4 %s, v%d, %s, s%d offen%s sc1" % (ar(a + 4 * b, 4), vHLD, srd(SW), sT1, " offset:1024" if b else ""))
    return g

def build_type(typ):
    A = typ == "A"
    passes = [("att2", 2, SET0, 0), ("pair", 2, SET1, 2), ("half", 1, SET0, 4)] if A else \
             [("pair", 2, SET0, 0), ("pair", 2, SET1, 2), ("q", 1, SET0, 4)]
    WRs = [WR1, WR2, WR3]
    S = Sched()
    step_beat = {}
    nt = lambda g: passes[g // 32][1]
    wbuf = lambda g, j: WF + (8 * (g & 1) + 4 * j if nt(g) == 2 else 4 * (g & 3))

    slot_of = {}
    for c in range(8):
        slot_of[("x", c)] = 2 * (c % 4); slot_of[("w", 0, c)] = 8 + 2 * (c % 4)
    def item_dma(it):
        if it[0] == "x": return dma_x(it[1], slot_of[it], "x%d" % it[1])
        if it[0] == "s": return dma_w2(it[1], slot_of[it])
        _, p, c = it; kind = passes[p][0]; sl = slot_of[it]; tag = "w%d_%d" % (p, c)
        if kind == "att2": return dma_full(WQD, SQ, sKQ + c, 0, sl, None) + dma_full(WQD, SQ, sKQ + c, 1024, sl + 1, tag)
        if kind == "q": return dma_full(WQD, SQ, sKQ + c, 0, sl, tag)
        if kind == "half": return dma_half(c, sl, tag)
        ex = 128 if (not A and p == 1) else 0
        return dma_full(WGD, SG, sKG + c, ex, sl, None) + dma_full(WGD, SU, sKG + c, ex, sl + 1, tag)
    def item_slots(it):
        if it[0] == "x": return 2
        if it[0] == "s": return 1
        return 2 if passes[it[1]][0] in ("att2", "pair") else 1

    for g in range(96):
        p, c, t = g // 32, (g // 4) % 8, g % 4
        kind, T, acc, tile0 = passes[p]
        step_beat[g] = len(S.beats)
        k = g % 32
        for j in range(T):
            for b in range(2):
                d = vr(acc + 32 * j + 16 * b, 16)
                S.beat(I("v_mfma_f32_32x32x16_bf16 %s, %s, %s, %s" % (d, vr(wbuf(g, j), 4), ar(8 * k + 4 * b, 4), "0" if k == 0 else d)))
        if t < 2 and not cfg.x_nostat:
            def m16(d, sel, src, first): S.beat(I("v_mfma_f32_16x16x32_bf16 %s, %s, %s, %s" % (vr(d, 4), vr(sel, 4), src, "0" if first else vr(d, 4))), 16)
            def m4(b, h): S.beat(I("v_mfma_f32_4x4x4_16b_bf16 %s, %s, %s, %s" % (vr(SQD + 4 * b, 4), ar(8 * k + 4 * b + 2 * h, 2), ar(8 * k + 4 * b + 2 * h, 2), "0" if (k == 0 and h == 0) else vr(SQD + 4 * b, 4))), 8)
            if p == 0:
                m4(0, 0); m4(1, 0); m16(RSD, SEL01, ar(8 * k, 4), k == 0); m4(0, 1); m4(1, 1); m16(RSD, SEL23, ar(8 * k + 4, 4), False)
            for j in range(T): m16(CSD, (SEL01, SEL23)[j], vr(wbuf(g, j), 4), k == 0 and j == 0)
    step_beat[96] = len(S.beats)
    sl_beat = {}
    for n in range(36):
        sl_beat[n] = len(S.beats)
        w = WF + 8 * (n & 1); a = 8 * (n % 32)
        for cb in range(2):
            for tb in range(2):
                d = vr(ACC2[2 * cb + tb], 16)
                S.beat(I("v_mfma_f32_32x32x16_bf16 %s, %s, %s, %s" % (d, vr(w + 4 * cb, 4), ar(a + 4 * tb, 4), "0" if n == 0 else d)), cfg.p2period)
    sl_beat[36] = len(S.beats)
    S.beat(None)

    bar_step = {}
    for cc in range(24):
        T = passes[cc // 8][1]
        bar_step[cc] = 4 * cc + (3 if (T == 2 or cc == 23) else 2)
    last_rd = {}
    def w_reads(g, j):
        p, c, t = g // 32, (g // 4) % 8, g % 4
        kind = passes[p][0]; sl = slot_of[("w", p, c)]
        if p == 0: base, off = WR1 + (t >> 1), (sl - 8) * PITCH
        else: base, off = WRs[p] + 2 * (sl >= 8) + (t >> 1), (sl % 8) * PITCH
        if kind == "att2": off += j * PITCH
        if kind == "pair": off += 32 * j
        st, js = (1024, 256) if kind == "half" else (2048, 512)
        off += (t & 1) * st
        w = wbuf(g, j)
        return [I("ds_read_b64_tr_b16 %s, v%d offset:%d" % (vr(w + 2 * e, 2), base, off + e * js)) for e in range(2)]
    def x_reads(g):
        c, t = g // 4, g % 4
        return [I("ds_read_b128 %s, v%d offset:%d" % (ar(8 * g + 4 * b, 4), XR + t, slot_of[("x", c)] * PITCH + 4096 * b)) for b in range(2)]
    def w2_reads(n):
        sl = slot_of[("s", n)]; w = WF + 8 * (n & 1)
        return [I("ds_read_b64_tr_b16 %s, v%d offset:%d" % (vr(w + 4 * cb + 2 * e, 2), W2R + 2 * (sl >= 8) + cb, (sl % 8) * PITCH + 1024 * e)) for cb in range(2) for e in range(2)]

    queue = []
    for c in range(4, 8): queue += [("x", c), ("w", 0, c)]
    for p in (1, 2): queue += [("w", p, c) for c in range(8)]
    queue += [("s", n) for n in range(36)]
    free = set()
    issue_after = {}
    for cc in range(24):
        p, c = cc // 8, cc % 8
        T = passes[p][1]
        rel = []
        if T == 2 or cc == 23:
            rel.append(cc)
            if cc > 0 and passes[(cc - 1) // 8][1] == 1: rel.append(cc - 1)
        elif cc > 0 and passes[(cc - 1) // 8][1] == 1: rel.append(cc - 1)
        for r in rel:
            it = ("w", r // 8, r % 8)
            free |= set(range(slot_of[it], slot_of[it] + item_slots(it)))
            if r < 8: free |= {slot_of[("x", r)], slot_of[("x", r)] + 1}
        got = []
        while queue:
            it = queue[0]; ns = item_slots(it)
            if it in slot_of: cand = [slot_of[it]] if all(slot_of[it] + i in free for i in range(ns)) else []
            elif ns == 2: cand = [s for s in sorted(free) if s % 2 == 0 and s + 1 in free]
            else: cand = sorted(free)
            if not cand: break
            slot_of[it] = cand[0]
            for i in range(ns): free.discard(cand[0] + i)
            got.append(queue.pop(0))
        issue_after[cc] = (rel, got)
    p2_issue = {}
    for n in range(36):
        if queue:
            it = queue.pop(0); slot_of[it] = slot_of[("s", n)]; p2_issue[n] = it
    print(typ, "prefetched slices before P2:", 36 - len(p2_issue))

    where = {}
    for g in range(1, 96):
        T = nt(g); k = g % 32
        for j in range(T):
            if T == 2: at = g - 1 if not (k == 0 and nt(g - 1) == 1 and j == 0) else g - 2
            else: at = g - 2 if not (k < 2 and nt(g - k - 1) == 2) else g - k - 1
            where.setdefault(at, []).append(("w", g, j))
        if g < 32: where.setdefault(g - 1, []).append(("x", g))
    for at, lst in sorted(where.items()):
        ins = []
        for it in lst:
            r = w_reads(it[1], it[2]) if it[0] == "w" else x_reads(it[1])
            if it[1] % 4 == 3:
                r[-1].tag = "rd%d_%s%d" % (it[1] // 4, it[0], it[2] if it[0] == "w" else 0)
                last_rd[it[1] // 4] = r[-1].tag
            ins += r
        b0 = step_beat[at]; nb = 2 * nt(at)
        if cfg.rd_early and len(ins) == 6: ins = [ins[0], ins[1], ins[4], ins[5], ins[2], ins[3]]
        if cfg.rd_early:
            tg = [x.tag for x in ins if x.tag]
            if tg:
                for x in ins: x.tag = None
                ins[-1].tag = last_rd[lst[-1][1] // 4]
        nbb = 2 if cfg.rd_early else nb
        for i, x in enumerate(ins): S.put(b0 + min(nbb - 1, i * nbb // len(ins)), x)

    extra_pre = {}
    def place_barriers():
        for cc in range(24):
            b = step_beat[bar_step[cc]]
            pre = []
            for r in issue_after[cc][0]: pre.append(Wait(last_rd[r]))
            if cc in extra_pre: pre.append(Wait("lgkm0"))
            if cc in extra_wait: pre.append(Wait(extra_wait[cc]))
            if cc < 23:
                nx = cc + 1
                if nx < 8: pre.append(Wait("x%d" % nx))
                pre.append(Wait("w%d_%d" % (nx // 8, nx % 8)))
            pre.append(I("s_barrier"))
            S.beats[b]["pre"] = pre + S.beats[b]["pre"]
    bb = lambda cc: step_beat[bar_step[cc]]
    for cc in range(24):
        items = []
        for it in issue_after[cc][1]: items += item_dma(it)
        if items: S.spread(items, bb(cc), bb(cc + 1) if cc < 23 else sl_beat[0] + 2)

    r0 = w2_reads(0)
    S.put(step_beat[95], [Wait("w2_0")] );
    for i, x in enumerate(r0): S.put(step_beat[95] + min(i // 2, 2 * nt(95) - 1), x)
    for n in range(36):
        b = sl_beat[n]
        if n + 1 < 36:
            S.put(b, Wait("w2_%d" % (n + 1)))
            for i, x in enumerate(w2_reads(n + 1)): S.put(b + i, x)
        if n in p2_issue: S.put(b + 2, dma_w2(p2_issue[n][1], slot_of[p2_issue[n]])[0])

    sp = lambda g: step_beat[g]
    sl0 = sl_beat[0]
    S.spread(late_setup(A), sp(1), sp(cfg.setup_end), "setup")
    extra_wait = {4: "clr"}
    S.put(bb(4), L("v_mov_b32 v%d, 1\nbuffer_atomic_add v%d, v%d, %s, 0 offen" % (KVD + 1, KVD + 1, KVD, srd(SDBG))))
    S.spread(addr_wfull(WR2, 4, False, False, TMP + 8) + [wphi_finish()], sp(17), sp(26))
    pre, adds = t_stat_add()
    S.spread(pre, sp(26), sp(28))
    cs_pub = lambda tile0: [Gap(1)] + t_cs_add(tile0)
    S.spread(cs_pub(0) + adds, sp(30), sp(31)); extra_pre[7] = 1
    fin, late = t_stat_fin()
    S.spread(t_cs_tot(0, TMP + 2), sp(31), sp(32))
    S.spread(fin, sp(31), sp(32))
    hs_i, hs_c = poll(XR, XR + 1, "8" if cfg.dbgout else "4", SDBG, "gt")
    if cfg.dbgout: S.put(sp(36), L("v_and_b32 v%d, 31, v%d\nv_lshlrev_b32 v%d, 2, v%d\nv_add_u32 v%d, 64, v%d" % (XR, vL, XR, XR, XR, XR)) + [hs_i])
    else: S.put(sp(36), [I("v_lshlrev_b32 v%d, 2, v%d" % (XR, vL)), hs_i])
    S.put(sp(44), stamp("hs0") + [hs_c] + stamp("hs1"))
    if cfg.w2pf:
        x = w2_touch(WGD); S.put(sp(cfg.w2pf), x[0]); S.put(sp(cfg.w2pf + 4), x[1])
    S.spread(cs_pub(2), sp(62), sp(63)); extra_pre[15] = 1
    S.spread(t_cs_tot(2, XR + 2), sp(63), sp(64))
    S.spread(cs_pub(4), sp(94), sp(95)); extra_pre[23] = 1
    S.spread(t_cs_tot(4, TMP + 2), sp(95), sl0)
    S.spread(addr_p2(TMP + 8), sp(66), sp(72))
    so2 = "s_mov_b32 s%d, %d" % (sT1, (16 if A else 8) * 2048)
    if A:
        e = S.spread(t_corr(SET0, 2) + late + t_att_k(), sp(32), sp(32 + cfg.a_att), "att_k")
        cb = min(cc for cc in range(8, 24) if bb(cc) > e); extra_pre[cb] = 1
        print("  kv exchange barrier chunk", cb)
        S.spread(addr_whalf(WR3, XR + 2) + addr_cs(False, XR + 2), sp(46), sp(58))
        e = S.spread(t_kv_pub(), bb(cb), bb(cb) + cfg.a_pub, "kv_pub")
        S.put(e, stamp("kvi"))
        ekv = e
    else:
        so = "s_mov_b32 s%d, 0" % sT1
        e = S.spread(t_corr(SET0, 2) + late + t_hepi(SET0, so, 0, None) + t_hepi(SET0 + 32, so, 2048, "h0"), sp(32), sp(32 + cfg.b_h0), "hepi0")
        S.put(e + cfg.flag_delay, set_flag(1, "h0", WHD))
        S.spread(addr_wfull(WR3, 4, True, False, XR + 2), sp(46), sp(58))
        ekv = 0
    b0 = max(sp(64), ekv + 1)
    e = S.spread(t_corr(SET1, 2) + t_hepi(SET1, so2, 0, None) + t_hepi(SET1 + 32, so2, 2048, "h1"), b0, max(b0 + 8, sp(64 + cfg.h1)), "hepi1")
    S.put(e + cfg.flag_delay, set_flag(1 if A else 2, "h1", WHD))
    if A:
        so = "s_mov_b32 s%d, s%d" % (sT1, sH2)
        e = S.spread(t_corr(SET0, 1) + [Gap(1)] + t_hepi(SET0, so, 0, "h2"), sl0, sl0 + cfg.a_h2, "hepi2")
        S.put(e + cfg.flag_delay2, set_flag(2, "h2", WHD))
        last_task = e
    else:
        att = t_corr(SET0, 1) + [Gap(1)] + t_att_q()
        ri, rc = t_kv_red()
        li, lc = t_kv_load()
        S.spread(ri, sl0 + cfg.b_ri, sl0 + cfg.b_ri + 4)
        k1 = int(len(att) * cfg.b_rc); k2 = int(len(att) * cfg.b_li)
        att = att[:k1] + stamp("kr0") + rc + stamp("kr1") + att[k1:k2] + li + att[k2:] + stamp("kp0") + lc + stamp("kp1") + t_o()
        e = S.spread(att, sl0, sl0 + cfg.b_att, "att_q+o")
        S.put(e + cfg.flag_delay2, set_flag(3, "ost", WHD))
        last_task = e
    place_barriers()
    first = [0, 8, 16, 24, 28, 36]
    for c in range(5):
        iss, chk = class_poll(c, WGD, WGD + 1)
        at = sp(64 + cfg.p0) if c == 0 else sl0 + cfg.cpos[c]
        S.put(at - (cfg.poll_lead0 if c == 0 else cfg.poll_lead), iss)
        S.put(at, stamp("cp%d_0" % c) + chk + stamp("cp%d_1" % c))
        nsl = first[c + 1] - first[c]
        for i in range(nsl):
            n = first[c] + i
            b = at + i * (cfg.hstep0 if c == 0 else cfg.hstep)
            if c == 0: assert b >= sp(64 + n + 1)
            assert b < sl_beat[n], (c, n)
            S.put(b, h_load(n))
    RES = TMP
    rb_ = max(last_task + 2, sl_beat[24])
    S.put(rb_, L("""
    s_lshl_b32 s{t0}, s{tt}, 2
    s_add_u32 s{t0}, s{t0}, s{wv}
    s_lshl_b32 s{t0}, s{t0}, 14
    s_lshl_b32 s{t1}, s{ct}, 7
    s_add_u32 s{t0}, s{t0}, s{t1}
    v_lshrrev_b32 v{a}, 3, v{L}
    v_lshlrev_b32 v{a}, 10, v{a}
    v_and_b32 v{b}, 7, v{L}
    v_lshl_add_u32 v{a}, v{b}, 4, v{a}
    v_add_u32 v{o}, s{t0}, v{a}
    """.format(t0=sT0, t1=sT1, tt=sTT, wv=sWV, ct=sCT, a=TMP + 8, b=TMP + 9, o=WQD - 1, L=vL)))
    vOUT = WQD - 1
    S.put(rb_ + 1, L("s_mov_b32 s%d, 8192\nbuffer_load_dwordx4 %s, v%d, %s, 0 offen\nbuffer_load_dwordx4 %s, v%d, %s, s%d offen" % (sT1, vr(RES, 4), vOUT, srd(SX), vr(RES + 4, 4), vOUT, srd(SX), sT1)))
    S.spread(L("""
    v_bfe_u32 v8, v{L}, 3, 2
    v_mul_u32_u24 v8, {P}, v8
    v_and_b32 v9, 7, v{L}
    v_lshl_add_u32 v8, v9, 8, v8
    v_add_u32 v8, s{l2k}, v8
    v_lshrrev_b32 v10, 5, v{L}
    v_xor_b32 v10, v10, v9
    v_lshl_add_u32 v0, v10, 4, v8
    v_xor_b32 v11, 2, v10
    v_lshl_add_u32 v1, v11, 4, v8
    v_xor_b32 v11, 4, v10
    v_lshl_add_u32 v2, v11, 4, v8
    v_xor_b32 v11, 6, v10
    v_lshl_add_u32 v3, v11, 4, v8
    v_lshrrev_b32 v8, 3, v{L}
    v_and_b32 v10, 3, v{L}
    v_lshlrev_b32 v10, 1, v10
    v_xor_b32 v10, v10, v8
    v_bfe_u32 v11, v{L}, 2, 1
    v_lshlrev_b32 v11, 7, v11
    v_lshl_add_u32 v11, v8, 8, v11
    v_mov_b32 v9, s{wv}
    v_mul_u32_u24 v9, {P2}, v9
    v_add_u32 v11, v11, v9
    v_lshl_add_u32 v4, v10, 4, v11
    v_xor_b32 v10, 1, v10
    v_lshl_add_u32 v5, v10, 4, v11
    """.format(L=vL, P=PITCH, P2=2 * PITCH, l2k=sL2K, wv=sWV)), rb_ + 2, rb_ + 14)
    if cfg.stamps == 2:
        pts = [("b%d" % cc, bb(cc)) for cc in range(24)] + [("s%d" % n, sl_beat[n]) for n in range(0, 37) if n != 35]
        prev = ("iss", 0)
        for k, (nm, b) in enumerate(pts):
            for x in (prev[0], nm):
                if x not in stamp_names: stamp_names.append(x)
            cur = sST + 2 * ((k + 1) & 1); old = sST + 2 * (k & 1)
            rd = I("v_writelane_b32 v%d, s%d, %d" % (vSTAMP, old, stamp_names.index(prev[0]) + 2))
            mt = I("s_memtime s[%d:%d]" % (cur, cur + 1))
            if nm[0] == "b":
                pre = S.beats[b]["pre"]; pre.insert(len(pre) - 1, rd); pre.append(mt)
            else: S.beats[b]["pre"] = [rd, mt] + S.beats[b]["pre"]
            prev = (nm, b)
        last_stamp = I("v_writelane_b32 v%d, s%d, %d" % (vSTAMP, cur, stamp_names.index(prev[0]) + 2))
    if cfg.stamps == True:
        for nm, b in (("p1", sp(32)), ("p2", sp(64)), ("p3", sl_beat[0]), ("s8", sl_beat[8]), ("s16", sl_beat[16]), ("s20", sl_beat[20]), ("s28", sl_beat[28]), ("s36", sl_beat[36]),
                      ("c1", sp(4)), ("c2", sp(8)), ("c4", sp(16))):
            S.put(b, stamp(nm), pre=True)

    pro = []
    if A:
        pro += L("s_lshl_b32 s{t0}, s{i}, 7\ns_add_u32 s{t0}, s{t0}, 1024".format(t0=sT0, i=sI))
        pro += wdma_addr(WQD, 3072, sT0)
    else:
        pro += L("s_mul_i32 s{t0}, s{q}, 896\ns_lshl_b32 s{t1}, s{ab}, 8\ns_add_u32 s{t0}, s{t0}, s{t1}".format(t0=sT0, t1=sT1, q=sQ, ab=sAB))
        pro += wdma_addr(WGD, 3584, sT0)
    for c in range(4):
        pro += flat(item_dma(("x", c))) + flat(item_dma(("w", 0, c)))
    if cfg.codepf: pro = code_touch() + pro if cfg.codepf == 2 else pro + code_touch()
    if cfg.wpf: pro += w_touch()
    pro += stamp("iss")
    if cfg.stamps == 2: pro += [I("s_memtime s[%d:%d]" % (sST, sST + 1))]
    pro += early_setup() + flat(addr_wfull(WR1, 2, A, A))
    pro += [Wait("x0"), Wait("w0_0"), I("s_barrier")]
    pro += stamp("data")
    pro += x_reads(0) + w_reads(0, 0) + w_reads(0, 1)

    tail = []
    for tb in range(2):
        for cb in range(2):
            for r4 in range(4):
                tail += L("ds_write_b128 v%d, %s offset:%d" % (r4, vr(ACC2[2 * cb + tb] + 4 * r4, 4), 128 * cb + 4 * PITCH * tb))
    tail += [Wait("lgkm0"), I("s_barrier")]
    for i in range(2):
        for e in range(2):
            for w in range(4):
                tail += L("ds_read_b128 %s, v%d offset:%d" % (vr(16 + 32 * i + 16 * e + 4 * w, 4), 4 + e, 2048 * w + PITCH * i))
    for i in range(2):
        for e in range(2):
            b = 16 + 32 * i + 16 * e
            for j in range(4):
                x = RES + 4 * i + 2 * e + j // 2
                tail += L("v_add_f32 v%d, v%d, v%d\nv_add_f32 v%d, v%d, v%d" % (b + j, b + j, b + 4 + j, b + 8 + j, b + 8 + j, b + 12 + j))
                tail += L(("v_and_b32 v%d, 0xffff0000, v%d" if j & 1 else "v_lshlrev_b32 v%d, 16, v%d") % (b + 4 + j, x))
                tail += L("v_add_f32 v%d, v%d, v%d\nv_add_f32 v%d, v%d, v%d" % (b + j, b + j, b + 8 + j, b + j, b + j, b + 4 + j))
            tail += L("v_cvt_pk_bf16_f32 v%d, v%d, v%d\nv_cvt_pk_bf16_f32 v%d, v%d, v%d" % (8 + 4 * i + 2 * e, b, b + 1, 9 + 4 * i + 2 * e, b + 2, b + 3))
        tail += L("s_mov_b32 s%d, %d\nbuffer_store_dwordx4 %s, v%d, %s, s%d offen" % (sT1, 8192 * i, vr(8 + 4 * i, 4), vOUT, srd(SOUT), sT1) + " sc1")
    if cfg.stamps:
        tail += stamp("end")
        if cfg.stamps == 2:
            if "end" not in stamp_names: stamp_names.append("end")
            tail += [last_stamp, I("s_memtime s[%d:%d]" % (sST, sST + 1)), I("v_writelane_b32 v%d, s%d, %d" % (vSTAMP, sST, stamp_names.index("end") + 2))]
        tail += L("""
        s_memrealtime s[{a}:{b}]
        v_writelane_b32 v{st}, s{a}, 1
        s_lshl_b32 s{t0}, s2, 2
        s_add_u32 s{t0}, s{t0}, s{wv}
        s_lshl_b32 s{t0}, s{t0}, 8
        s_add_u32 s{t0}, s{t0}, {o}
        v_lshl_add_u32 v0, v{L}, 2, s{t0}
        buffer_store_dword v{st}, v0, {sr}, 0 offen
        """.format(a=sST, b=sST + 1, st=vSTAMP, t0=sT0, wv=sWV, o=WS_ST, L=vL, sr=srd(SW)))
    if cfg.dbgout:
        ix = lambda n: stamp_names.index(n) + 2
        t = """
        v_readlane_b32 s56, v{st}, 0
        v_readlane_b32 s57, v{st}, 1
        v_readlane_b32 s58, v{st}, {iss}
        s_nop 4
        v_mov_b32 v2, {oob}
        v_mov_b32 v1, 0
        v_writelane_b32 v2, 32, 0
        v_writelane_b32 v2, 40, 1
        v_writelane_b32 v2, 36, 2
        v_writelane_b32 v1, s57, 0
        v_writelane_b32 v1, s56, 1
        s_not_b32 s59, s56
        v_writelane_b32 v1, s59, 2
        buffer_atomic_umax v1, v2, {sd}, 0 offen
        s_sub_u32 s57, s57, s56
        v_mov_b32 v3, 0
        v_writelane_b32 v3, s57, 0
        """.format(st=vSTAMP, iss=ix("iss"), oob=OOB, sd=srd(SDBG))
        for k, nm in enumerate(("b0", "b3", "b7", "b15", "s0", "s28", "end")):
            t += "v_readlane_b32 s59, v%d, %d\ns_nop 4\ns_sub_u32 s59, s59, s58\nv_writelane_b32 v3, s59, %d\n" % (vSTAMP, ix(nm), k + 1)
        t += """
        v_lshlrev_b32 v2, 2, v{L}
        v_mov_b32 v4, {oob}
        v_cmp_gt_u32 vcc, 8, v{L}
        v_cndmask_b32 v2, v4, v2, vcc
        s_or_b32 s59, s2, s{wv}
        s_cmp_eq_u32 s59, 0
        s_cselect_b32 s59, 0, {oob}
        buffer_store_dword v3, v2, {sd}, s59 offen
        """.format(L=vL, oob=OOB, wv=sWV, sd=srd(SDBG))
        tail += L(t)
    tail += L("s_endpgm")
    est = sum(max(bt["period"], S.load(i)) for i, bt in enumerate(S.beats[:sl_beat[0]]))
    print("  P1 issue-model cycles:", est, " P2:", sum(max(32, S.load(i)) for i in range(sl_beat[0], sl_beat[36])))
    return pro + S.flat() + tail

def code_touch():
    ins = L("""
    s_getpc_b64 s[{a}:{b}]
    s_and_b32 s{a}, s{a}, 0xffffff00
    s_bfe_u32 s{t0}, s2, 0x40003
    s_lshl_b32 s{t0}, s{t0}, 2
    s_add_u32 s{t0}, s{t0}, s{wv}
    s_lshl_b32 s{t0}, s{t0}, 9
    v_and_b32 v{x}, 3, v{L}
    v_lshl_add_u32 v{x}, v{x}, 7, s{t0}
    v_min_u32 v{x}, {lim}, v{x}
    global_load_dword v{y}, v{x}, s[{a}:{b}]
    """.format(a=sM1, b=sM1 + 1, t0=sT0, wv=sWV, x=100, y=101, L=vL, lim=cfg.code_lim))
    return ins

def w_touch():
    s = """
    s_lshl_b32 s{t0}, s2, 2
    s_add_u32 s{t0}, s{t0}, s{wv}
    s_mul_i32 s{t1}, s{t0}, {n14}
    v_lshl_add_u32 v102, v{L}, 7, s{t1}
    v_mov_b32 v104, {oob}
    v_cmp_gt_u32 vcc, 14, v{L}
    v_cndmask_b32 v102, v104, v102, vcc
    s_lshl_b32 s{t1}, s{t0}, 9
    v_lshl_add_u32 v103, v{L}, 7, s{t1}
    v_cmp_gt_u32 vcc, 4, v{L}
    v_cndmask_b32 v103, v104, v103, vcc
    buffer_load_dword v105, v102, {g}, 0 offen
    buffer_load_dword v106, v102, {u}, 0 offen
    s_lshr_b32 s{t1}, s{t0}, 1
    s_mul_i32 s{t1}, s{t1}, 3072
    s_and_b32 s{t0}, s{t0}, 1
    s_lshl_b32 s{t0}, s{t0}, 9
    s_add_u32 s{t1}, s{t1}, s{t0}
    v_lshl_add_u32 v109, v{L}, 7, s{t1}
    v_cndmask_b32 v109, v104, v109, vcc
    buffer_load_dword v110, v109, {q}, 0 offen
    buffer_load_dword v107, v102, {d}, 0 offen
    buffer_load_dword v108, v103, {o}, 0 offen
    """.format(t0=sT0, t1=sT1, wv=sWV, n14=14 * 128, L=vL, oob=OOB, g=srd(SG), u=srd(SU), d=srd(SD), o=srd(SO), q=srd(SQ))
    return L(s)

def w2_touch(t):
    out = []
    out.append(L("""
    s_and_b32 s{t0}, s{tt}, 3
    s_mul_i32 s{t1}, s{t0}, {a}
    s_add_u32 s{t1}, s{t1}, s{wd}
    s_lshl_b32 s{t0}, s{ct}, 7
    s_add_u32 s{t1}, s{t1}, s{t0}
    s_add_u32 s{t1}, s{t1}, {b}
    v_min_u32 v{x}, 47, v{L}
    v_lshl_add_u32 v{x}, v{x}, 10, s{t1}
    buffer_load_dword v{x}, v{x}, {d}, 0 offen
    """.format(t0=sT0, t1=sT1, tt=sTT, ct=sCT, wd=sWDB, a=48 * 1024, b=256 * 1024, x=t, L=vL, d=srd(SD))))
    out.append(L("""
    s_and_b32 s{t0}, s{tt}, 3
    s_lshl_b32 s{t1}, s{t0}, 15
    s_add_u32 s{t1}, s{t1}, s{wo}
    s_lshl_b32 s{t0}, s{ct}, 7
    s_add_u32 s{t1}, s{t1}, s{t0}
    v_and_b32 v{x}, 31, v{L}
    v_lshl_add_u32 v{x}, v{x}, 10, s{t1}
    buffer_load_dword v{x}, v{x}, {o}, 0 offen
    """.format(t0=sT0, t1=sT1, tt=sTT, ct=sCT, wo=sWOB, x=t + 1, L=vL, o=srd(SO))))
    return out

def flat(x):
    o = []
    for y in x: o += y if isinstance(y, list) else [y]
    return o

def groups(ins):
    out = []; cur = []
    tmp = {"s%d" % sT0, "s%d" % sT1, "vcc", "scc"}
    for k, x in enumerate(ins):
        cur.append(x)
        live = set()
        written = {r for y in ins[:k + 1] for r in y.wr} & tmp
        seen = set()
        for y in ins[k + 1:]:
            live |= (set(y.rd) & written) - seen
            seen |= set(y.wr)
        if not live: out.append(cur); cur = []
    if cur: out.append(cur)
    return out

def late_setup(A):
    ins = []
    if A:
        ins += L("s_mul_i32 s{t0}, s{q}, 896\ns_lshl_b32 s{t1}, s{ab}, 7\ns_add_u32 s{t0}, s{t0}, s{t1}\ns_add_u32 s{t0}, s{t0}, 512".format(t0=sT0, t1=sT1, q=sQ, ab=sAB))
        ins += wdma_addr(WGD, 3584, sT0)
    ins += clear_store(A) + common_setup() + wphi_setup(A) + flat(addr_cs(A))
    if A:
        ins += L("""
        v_lshrrev_b32 v{a}, 2, v{L}
        v_mul_u32_u24 v{a}, 3584, v{a}
        v_and_b32 v{b}, 3, v{L}
        v_lshl_add_u32 v{a}, v{b}, 4, v{a}
        s_mul_i32 s{t0}, s{q}, 896
        s_lshl_b32 s{t1}, s{ab}, 6
        s_add_u32 s{t0}, s{t0}, s{t1}
        s_add_u32 s{t0}, s{t0}, 768
        s_mul_i32 s{t1}, s{wv}, {w}
        s_add_u32 s{t0}, s{t0}, s{t1}
        v_add_u32 v{d}, s{t0}, v{a}
        s_lshl_b32 s{t0}, s{ab}, 1
        s_add_u32 s{t0}, s{t0}, s{gr}
        s_sub_u32 s{h2}, 24, s{t0}
        s_lshl_b32 s{h2}, s{h2}, 11
        """.format(t0=sT0, t1=sT1, q=sQ, ab=sAB, wv=sWV, gr=sGR, w=16 * 3584, a=TMP, b=TMP + 1, d=WHD, L=vL, h2=sH2))
        ins += att_setup()
    else:
        ins += L("s_lshl_b32 s{t0}, s{i}, 7".format(t0=sT0, i=sI))
        ins += wdma_addr(WQD, 3072, sT0)
        ins += o_setup()
    return groups(ins)

def wdma_addr(dst, stride, scol):
    return L("""
    s_mul_i32 s{t1}, s{wv}, {w}
    s_add_u32 s{t1}, s{t1}, s{c}
    v_lshrrev_b32 v{a}, 3, v{L}
    v_mul_u32_u24 v{a}, {st}, v{a}
    v_bfe_u32 v{b}, v{L}, 4, 1
    v_lshlrev_b32 v{b}, 2, v{b}
    v_xor_b32 v{b}, v{b}, v{L}
    v_and_b32 v{b}, 7, v{b}
    v_lshl_add_u32 v{a}, v{b}, 4, v{a}
    v_add_u32 v{d}, s{t1}, v{a}
    v_add_u32 v{d1}, {nx}, v{d}
    """.format(t1=sT1, wv=sWV, w=16 * stride, c=scol, a=TMP, b=TMP + 1, L=vL, st=stride, d=dst, d1=dst + 1, nx=8 * stride - 1024))

def clear_store(A):
    z = TMP + 4
    s = """
    s_lshl_b32 s{t0}, s{rb}, 1
    s_add_u32 s{t0}, s{t0}, s{th}
    s_lshl_b32 s{t1}, s{t0}, 2
    s_add_u32 s{t1}, s{t1}, s{q}
    s_lshl_b32 s{t1}, s{t1}, 4
    s_add_u32 s{t1}, s{t1}, s{t4}
    s_lshl_b32 s{t1}, s{t1}, 1
    s_add_u32 s{t1}, s{t1}, s{gr}
    s_lshl_b32 s{t1}, s{t1}, 2
    s_add_u32 s{t1}, s{t1}, {fl}
    v_mov_b32 v{f}, {oob}
    v_writelane_b32 v{f}, s{t1}, 0
    v_mov_b32 v{z}, 0
    buffer_store_dword v{z}, v{f}, {sr}, 0 offen sc1
    s_lshl_b32 s{t0}, s{i}, 2
    s_lshl_b32 s{t1}, s{gr}, 1
    s_add_u32 s{t0}, s{t0}, s{t1}
    s_add_u32 s{t0}, s{t0}, s{th}
    """.format(t0=sT0, t1=sT1, rb=sRB, th=sTH, q=sQ, t4=sT4, gr=sGR, fl=WS_FL, f=vFLG, oob=OOB, z=z, sr=srd(SW), i=sI)
    if A:
        s += """
        s_lshl_b32 s{t0}, s{t0}, 4
        s_add_u32 s{t0}, s{t0}, s{rb}
        s_lshl_b32 s{t0}, s{t0}, 12
        s_add_u32 s{t0}, s{t0}, {kvp}
        v_lshl_add_u32 v{d}, v{L}, 4, s{t0}
        """.format(t0=sT0, rb=sRB, kvp=WS_KVP, d=vKVA, L=vL)
        for j in range(4): s += "v_mov_b32 v%d, -1\n" % (z + j)
        ins = L(s)
        for j in range(4): ins += L("buffer_store_dwordx4 %s, v%d, %s, 0 offen offset:%d sc1" % (vr(z, 4), vKVA, srd(SW), 1024 * j), tag="clr" if j == 3 else None)
        return ins
    s += """
    s_lshl_b32 s{t1}, s{t0}, 16
    s_lshl_b32 s{t0}, s{t0}, 12
    s_lshl_b32 s{sp}, s{rb}, 8
    s_add_u32 s{t0}, s{t0}, s{sp}
    s_add_u32 s{t1}, s{t1}, s{sp}
    s_add_u32 s{t0}, s{t0}, {kvf}
    s_add_u32 s{t1}, s{t1}, {kvp}
    v_and_b32 v{a}, 15, v{L}
    v_lshlrev_b32 v{a}, 4, v{a}
    v_lshrrev_b32 v{b}, 4, v{L}
    v_lshl_add_u32 v{rs}, v{b}, 2, v{a}
    v_add_u32 v{rs}, s{t0}, v{rs}
    v_lshl_add_u32 v{rl}, v{b}, 12, v{a}
    v_add_u32 v{rl}, s{t1}, v{rl}
    v_mov_b32 v{z}, -1
    """.format(t0=sT0, t1=sT1, sp=sH2, rb=sRB, kvf=WS_KVF, kvp=WS_KVP, a=TMP, b=TMP + 1, L=vL, rs=vKRS, rl=vKRL, z=z + 1)
    return L(s) + L("buffer_store_dword v%d, v%d, %s, 0 offen sc1" % (z + 1, vKRS, srd(SW)), tag="clr")

def early_setup():
    a, b, c = TMP, TMP + 1, TMP + 2
    s = """
    v_lshrrev_b32 v{a}, 5, v{L}
    v_bfe_u32 v{b}, v{L}, 1, 3
    v_xor_b32 v{a}, v{a}, v{b}
    v_lshlrev_b32 v{a}, 4, v{a}
    v_and_b32 v{b}, 31, v{L}
    v_lshl_add_u32 v{a}, v{b}, 7, v{a}
    s_lshl_b32 s{t0}, s{s}, 6
    v_xor_b32 v{a}, s{t0}, v{a}
    s_mul_i32 s{t1}, s{th}, {P}
    v_add_u32 v{x0}, s{t1}, v{a}
    v_xor_b32 v{b}, 32, v{a}
    v_add_u32 v{x1}, s{t1}, v{b}
    v_xor_b32 v{b}, 64, v{a}
    v_add_u32 v{x2}, s{t1}, v{b}
    v_xor_b32 v{b}, 0x60, v{a}
    v_add_u32 v{x3}, s{t1}, v{b}
    v_and_b32 v{a}, 31, v{L}
    v_mov_b32 v{b}, 0x3f803f80
    v_cmp_eq_u32 vcc, 0, v{a}
    v_cndmask_b32 v{s0}, 0, v{b}, vcc
    v_cmp_eq_u32 vcc, 20, v{a}
    v_cndmask_b32 v{s0}, v{s0}, v{b}, vcc
    v_cmp_eq_u32 vcc, 8, v{a}
    v_cndmask_b32 v{s2}, 0, v{b}, vcc
    v_cmp_eq_u32 vcc, 28, v{a}
    v_cndmask_b32 v{s2}, v{s2}, v{b}, vcc
    """.format(a=a, b=b, L=vL, t0=sT0, t1=sT1, s=sS, th=sTH, P=PITCH, x0=XR, x1=XR + 1, x2=XR + 2, x3=XR + 3, s0=SEL01, s2=SEL23)
    for j in range(1, 4): s += "v_mov_b32 v%d, v%d\nv_mov_b32 v%d, v%d\n" % (SEL01 + j, SEL01, SEL23 + j, SEL23)
    return L(s)

def common_setup():
    a, b, c = TMP, TMP + 1, TMP + 2
    s = "s_mov_b32 s%d, 0\ns_mov_b32 s%d, -1\nv_mov_b32 v%d, 0\nv_mov_b32 v%d, 0\n" % (sMH, sMH + 1, CA + 2, CA + 3)
    s += """
    v_and_b32 v{a}, 3, v{L}
    v_cmp_eq_u32 s[{m1}:{m1b}], 1, v{a}
    v_cmp_eq_u32 s[{m2}:{m2b}], 2, v{a}
    v_cmp_eq_u32 s[{m3}:{m3b}], 3, v{a}
    v_and_b32 v{a}, 4, v{L}
    v_cmp_eq_u32 s[{mb}:{mbb}], 4, v{a}
    s_mul_i32 s{wd}, s{wv}, {wdv}
    s_lshl_b32 s{wo}, s{wv}, 17
    s_mov_b32 s{c2}, 0x3b000000
    """.format(a=a, L=vL, m1=sM1, m1b=sM1 + 1, m2=sM2, m2b=sM2 + 1, m3=sM3, m3b=sM3 + 1, mb=sMB, mbb=sMB + 1,
               wd=sWDB, wo=sWOB, wv=sWV, wdv=448 * 1024, c2=sC2)
    s += """
    s_lshl_b32 s{t0}, s{rb}, 1
    s_add_u32 s{t0}, s{t0}, s{th}
    s_mul_i32 s{t0}, s{t0}, 144
    s_mul_i32 s{t1}, s{q}, 36
    s_add_u32 s{t0}, s{t0}, s{t1}
    s_lshl_b32 s{t1}, s{ab}, 2
    s_add_u32 s{t0}, s{t0}, s{t1}
    s_lshl_b32 s{t1}, s{gr}, 1
    s_add_u32 s{t0}, s{t0}, s{t1}
    s_lshl_b32 s{t0}, s{t0}, 11
    v_lshl_add_u32 v{h}, v{L}, 4, s{t0}
    v_lshrrev_b32 v{a}, 3, v{L}
    v_lshlrev_b32 v{a}, 10, v{a}
    v_bfe_u32 v{b}, v{L}, 4, 1
    v_lshlrev_b32 v{b}, 2, v{b}
    v_xor_b32 v{b}, v{b}, v{L}
    v_and_b32 v{b}, 7, v{b}
    v_lshl_add_u32 v{a}, v{b}, 4, v{a}
    s_lshl_b32 s{t0}, s{ct}, 7
    v_add_u32 v{w}, s{t0}, v{a}
    v_add_u32 v{w1}, 7168, v{w}
    s_and_b32 s{t0}, s2, {hm}
    s_lshl_b32 s{t0}, s{t0}, 2
    s_add_u32 s{t0}, s{t0}, {ho}
    s_cmp_eq_u32 s{wv}, 0
    s_cselect_b32 s{t0}, s{t0}, {oob}
    v_mov_b32 v{hs}, {oob}
    v_writelane_b32 v{hs}, s{t0}, 0
    """.format(t0=sT0, t1=sT1, rb=sRB, th=sTH, q=sQ, ab=sAB, gr=sGR, h=vHST, L=vL, a=a, b=b, ct=sCT, w=W2D, w1=W2D + 1, wv=sWV, oob=OOB, hs=KVD, hm=31 if cfg.dbgout else 63, ho=64 if cfg.dbgout else 0)
    return L(s)

def att_setup():
    a, b, c = TMP, TMP + 1, TMP + 2
    s = """
    s_mul_i32 s{t0}, s{wv}, {wsz}
    s_add_u32 s{t0}, s{t0}, {wreg}
    v_and_b32 v{a}, 31, v{L}
    v_lshrrev_b32 v{b}, 5, v{L}
    v_mul_u32_u24 v{c}, 72, v{a}
    v_lshl_add_u32 v{c}, v{b}, 3, v{c}
    v_add_u32 v{pw}, s{t0}, v{c}
    v_mul_u32_u24 v{c}, 104, v{a}
    v_lshl_add_u32 v{c}, v{b}, 3, v{c}
    s_add_u32 s{t1}, s{t0}, {voff}
    v_add_u32 v{vw}, s{t1}, v{c}
    v_lshl_add_u32 v{c}, v{b}, 3, v{vw}
    v_mov_b32 v{o0}, 0x3f803f80
    v_mov_b32 v{o1}, 0x3f803f80
    ds_write_b64 v{c}, v[{o0}:{o1}] offset:64
    ds_write_b64 v{c}, v[{o0}:{o1}] offset:72
    v_bfe_u32 v{a}, v{L}, 2, 2
    v_lshl_add_u32 v{a}, v{b}, 3, v{a}
    v_and_b32 v{b}, 3, v{L}
    v_mul_u32_u24 v{c}, 72, v{a}
    v_lshl_add_u32 v{c}, v{b}, 3, v{c}
    v_bfe_u32 v{o0}, v{L}, 4, 1
    v_lshl_add_u32 v{c}, v{o0}, 5, v{c}
    v_add_u32 v{pr}, s{t0}, v{c}
    v_mul_u32_u24 v{c}, 104, v{a}
    v_lshl_add_u32 v{c}, v{b}, 3, v{c}
    v_add_u32 v{c}, s{t1}, v{c}
    v_lshl_add_u32 v{v0}, v{o0}, 6, v{c}
    v_add_u32 v{o0}, 1, v{o0}
    v_lshl_add_u32 v{v1}, v{o0}, 5, v{c}
    """.format(t0=sT0, t1=sT1, wv=sWV, wsz=WREG_SZ, wreg=WREG, a=a, b=b, c=c, L=vL, pw=vPW, vw=vVW, voff=VOFF, o0=TMP + 8, o1=TMP + 9,
               pr=vPR, v0=vVR0, v1=vVR1, i=sI, gr=sGR, th=sTH)
    return L(s)

def o_setup():
    return L("""
    s_lshl_b32 s{t0}, s{i}, 1
    s_add_u32 s{t0}, s{t0}, s{gr}
    s_lshl_b32 s{t0}, s{t0}, 13
    s_add_u32 s{t0}, s{t0}, {kvf}
    v_lshl_add_u32 v{d}, v{L}, 4, s{t0}
    """.format(t0=sT0, i=sI, gr=sGR, kvf=WS_KVF, d=vKVL, L=vL))

def wphi_setup(A):
    a, b = TMP, TMP + 1; t = 64 + 16
    s = """
    s_lshl_b32 s{t0}, s{i}, 2
    s_lshl_b32 s{t1}, s{gr}, 1
    s_add_u32 s{t0}, s{t0}, s{t1}
    s_lshl_b32 s{t0}, s{t0}, 9
    v_bfe_u32 v{a}, v{L}, 4, 1
    """.format(t0=sT0, t1=sT1, i=sI, gr=sGR, a=a, L=vL)
    if A: s += "v_xor_b32 v%d, s%d, v%d\n" % (a, sTH, a)
    s += """
    v_lshlrev_b32 v{a}, 9, v{a}
    v_lshrrev_b32 v{b}, 5, v{L}
    v_lshl_add_u32 v{a}, v{b}, 7, v{a}
    v_and_b32 v{b}, 15, v{L}
    v_lshl_add_u32 v{a}, v{b}, 1, v{a}
    v_add_u32 v{a}, s{t0}, v{a}
    """.format(a=a, b=b, L=vL, t0=sT0)
    for j in range(8):
        s += "buffer_load_ushort v%d, v%d, %s, 0 offen offset:%d\n" % (t + j, a, srd(SPHI), 32 * ((j & 3) + 8 * (j >> 2)))
    return L(s)

def wphi_finish():
    t = 64 + 16
    out = L("v_and_b32 v%d, 16, v%d\nv_cmp_eq_u32 vcc, 0, v%d" % (TMP + 8, vL, TMP + 8))
    g = []
    for j in range(4):
        g += L("v_lshl_or_b32 v{x}, v{y}, 16, v{x}\nv_cndmask_b32 v{a0}, 0, v{x}, vcc\nv_cndmask_b32 v{a1}, v{x}, 0, vcc".format(x=t + 2 * j, y=t + 2 * j + 1, a0=WPHI + j, a1=WPHI + 4 + j))
    return out + g

def entry():
    s = """
    s_cmp_ge_u32 s2, 256
    s_cbranch_scc1 L_exit
    """
    for reg, off in ((SX, 0), (SQ, 8), (SG, 40), (SU, 48), (SW, 80), (SPHI, 16), (SO, 24), (SD, 56), (SOUT, 64), (SDBG, 72)):
        s += "s_load_dwordx2 s[%d:%d], s[0:1], %d\n" % (reg, reg + 1, off)
    if cfg.stamps:
        s += "s_memrealtime s[%d:%d]\nv_mov_b32 v%d, 0\n" % (sST, sST + 1, vSTAMP)
    s += """
    v_lshrrev_b32 v1, 6, v0
    v_and_b32 v{L}, 63, v0
    v_readfirstlane_b32 s{wv}, v1
    s_and_b32 s{xcd}, s2, 7
    s_lshr_b32 s{idx}, s2, 3
    s_and_b32 s{rb}, s{xcd}, 1
    s_lshl_b32 s{rb}, s{rb}, 3
    s_and_b32 s{t0}, s{idx}, 7
    s_add_u32 s{rb}, s{rb}, s{t0}
    s_lshr_b32 s{q}, s{xcd}, 1
    s_lshr_b32 s{t4}, s{idx}, 3
    s_and_b32 s{ab}, s{t4}, 1
    s_lshl_b32 s{i}, s{q}, 1
    s_add_u32 s{i}, s{i}, s{ab}
    s_lshl_b32 s{t1}, s{t4}, 1
    s_add_u32 s{t0}, s{t0}, s{t1}
    s_and_b32 s{th}, s{wv}, 1
    s_lshr_b32 s{gr}, s{wv}, 1
    s_xor_b32 s{s}, s{th}, s{gr}
    s_lshl_b32 s{l2k}, s{wv}, 11
    s_lshl_b32 s{l1k}, s{wv}, 10
    s_mul_i32 s{lx}, s{gr}, {P}
    s_lshl_b32 s{t1}, s{th}, 12
    s_add_u32 s{lx}, s{lx}, s{t1}
    """.format(L=vL, wv=sWV, xcd=sXCD, idx=sIDX, rb=sRB, t0=sT0, t1=sT1, q=sQ, t4=sT4, ab=sAB, i=sI, th=sTH, gr=sGR, s=sS, l2k=sL2K, l1k=sL1K, lx=sLX, P=PITCH)
    if not cfg.rot: s += "s_mov_b32 s%d, 0\n" % sT0
    for c in range(8):
        s += "s_add_u32 s{t1}, s{t0}, {c}\ns_and_b32 s{t1}, s{t1}, 7\ns_lshl_b32 s{kx}, s{t1}, 7\ns_mul_i32 s{kq}, s{t1}, {a}\ns_mul_i32 s{kg}, s{t1}, {b}\n".format(
            t0=sT0, t1=sT1, c=c, kx=sKX + c, kq=sKQ + c, kg=sKG + c, a=64 * 3072, b=64 * 3584)
    s += """
    s_lshl_b32 s{t0}, s{rb}, 2
    s_add_u32 s{t0}, s{t0}, s{wv}
    s_lshl_b32 s{t0}, s{t0}, 15
    v_lshrrev_b32 v2, 3, v{L}
    v_lshlrev_b32 v2, 10, v2
    v_add_u32 v2, s{t0}, v2
    v_lshrrev_b32 v3, 4, v{L}
    v_xor_b32 v3, v3, v{L}
    v_and_b32 v3, 7, v3
    v_lshl_add_u32 v{x0}, v3, 4, v2
    v_add_u32 v{x2}, {d2}, v{x0}
    v_xor_b32 v3, 4, v3
    v_lshl_add_u32 v{x1}, v3, 4, v2
    v_add_u32 v{x1}, 7168, v{x1}
    v_add_u32 v{x3}, {d2}, v{x1}
    s_lshl_b32 s{tt}, s{xcd}, 2
    s_and_b32 s{t0}, s{idx}, 3
    s_add_u32 s{tt}, s{tt}, s{t0}
    s_lshr_b32 s{ct}, s{idx}, 2
    """.format(t0=sT0, rb=sRB, wv=sWV, L=vL, x0=XD, x1=XD + 1, x2=XD + 2, x3=XD + 3, d2=2 * 7168, tt=sTT, xcd=sXCD, idx=sIDX, ct=sCT)
    for reg, sz in ((SX, 0x200000), (SQ, 0x180000), (SG, 0x1C0000), (SU, 0x1C0000), (SD, 0x1C0000), (SO, 0x80000), (SW, 0x10000000), (SOUT, 0x200000), (SDBG, 256), (SPHI, 16384)):
        s += "s_mov_b32 s%d, 0x%x\ns_mov_b32 s%d, 0x20000\n" % (reg + 2, sz, reg + 3)
    s += "s_waitcnt lgkmcnt(0)\n"
    if cfg.stamps: s += "v_writelane_b32 v%d, s%d, 0\n" % (vSTAMP, sST)
    s += "s_cmp_ge_u32 s%d, 2\ns_cbranch_scc1 L_typeB\n" % sT4
    ins = L(s)
    for x in ins:
        if x.kind == "smem": x.nowait = True
    return ins

def defaults():
    cfg.code_lim = 21504
    cfg.p2period = 72; cfg.rd_early = True; cfg.setup_end = 14
    cfg.a_att = 27; cfg.a_pub = 12; cfg.a_kvflag = 30; cfg.h1 = 18; cfg.a_h2 = 4
    cfg.b_h0 = 12; cfg.b_att = 22; cfg.b_ri = -8; cfg.b_rc = 0.1; cfg.b_li = 0.75
    cfg.flag_delay = 28; cfg.flag_delay2 = 14
    cfg.p0 = 10; cfg.poll_lead0 = 16; cfg.hstep0 = 5
    cfg.cpos = [0, 14, 24, 60, 84]; cfg.poll_lead = 8; cfg.hstep = 1

def generate(path):
    label_n[0] = 0
    import fw; fw.LOOSE = cfg.x_nodma or cfg.x_drop
    e, _ = pad_hazards(entry())
    progs = {}
    for typ in "AB":
        p = build_type(typ)
        if cfg.x_nodma:
            k0 = [i for i, x in enumerate(p) if getattr(x, "kind", "") == "barrier"][0]
            q = p[:k0]
            for x in p[k0:]:
                if getattr(x, "dma", False):
                    y = I("s_nop 0");
                    q.append(y)
                else: q.append(x)
            p = q
        if cfg.x_drop:
            q = []
            for x in p:
                t = getattr(x, "text", "")
                d = ("h" in cfg.x_drop and t.startswith("buffer_load_dwordx4 a[")) or \
                    ("s" in cfg.x_drop and t.startswith("buffer_store_dwordx4") and "s[28:31]" in t) or \
                    ("w" in cfg.x_drop and getattr(x, "dma", False) and ("s[20:23]" in t or "s[24:27]" in t)) or \
                    ("p" in cfg.x_drop and x.kind == "raw")
                q.append(I("s_nop 0") if d else x)
            p = q
        progs[typ] = finalize(p, typ)
    body = emit(e) + emit(progs["A"]) + "L_typeB:\n" + emit(progs["B"]) + "L_exit:\n    s_endpgm\n"
    ref = open("parallel_sum__linear_kernel_hedgehog__glu_gated_bilinear__prompt.s.ref").read().split("\n")
    head = [x for x in ref if x.startswith(";") and "@launch" not in x and "Override" not in x and "grid=ceil" not in x]
    txt = "\n".join(head) + "\n; @launch grid=(256,1,1) block=(256,1,1) lds=%d\n" % LDS_BYTES
    txt += """.amdgcn_target "amdgcn-amd-amdhsa--gfx950"
.text
.globl {k}
.p2align 8
.type {k},@function
{k}:
""".format(k=KNAME) + body + """.section .rodata,"a"
.p2align 6
.amdhsa_kernel {k}
  .amdhsa_next_free_vgpr 512
  .amdhsa_next_free_sgpr 102
  .amdhsa_accum_offset 256
  .amdhsa_group_segment_fixed_size 0
  .amdhsa_kernarg_size 88
  .amdhsa_user_sgpr_count 2
  .amdhsa_user_sgpr_kernarg_segment_ptr 1
  .amdhsa_system_sgpr_workgroup_id_x 1
.end_amdhsa_kernel
""".format(k=KNAME)
    open(path, "w").write(txt)
    if cfg.stamps: open(path[:-2] + ".names", "w").write("\n".join(stamp_names))

if __name__ == "__main__":
    defaults()
    path = sys.argv[1]
    for kv in sys.argv[2:]:
        k, v = kv.split("=")
        setattr(cfg, k, eval(v))
    generate(path)
```

```python
import sys
from fw import *

KNAME = "parallel_sum__linear_kernel_hedgehog__glu_gated_bilinear__prompt_kernel"

class Cfg:
    rot = True
    stamps = False
    codepf = False
    wpf = False
    w2pf = False
    spin = 200000
    dbgout = False
    x_drop = ''
    x_nostat = False; x_notask = False; x_nodma = False; x_nobar = False
cfg = Cfg()

PITCH = 8224
NSLOT = 16
WREG = NSLOT * PITCH
WREG_SZ = 5632
VOFF = 2304
STAT = WREG + 4 * WREG_SZ
CSP = STAT + 2048
CST = CSP + 3072
LDS_BYTES = 163840
WS_H = 0
WS_KVP = 0xC00000
WS_KVF = 0xA00000
WS_FL = 0xA40000
WS_ST = 0xB00000
OOB = 0x40000000

SX, SQ, SG, SU, SD, SO, SW, SOUT, SDBG, SPHI = 4, 8, 12, 16, 20, 24, 28, 32, 36, 40
def srd(b): return "s[%d:%d]" % (b, b + 3)
sWV, sTH, sGR, sRB, sQ, sT4, sAB, sI, sTT, sCT, sIDX, sXCD = range(44, 56)
sKX, sKQ, sKG = 56, 64, 72
sLX, sL2K, sL1K, sT0, sT1, sSPIN = 80, 81, 82, 83, 84, 85
sM1, sM2, sM3, sMB = 86, 88, 90, 92
sWDB, sWOB, sC2, sH2, sS = 94, 95, 96, 97, 3
sMH = 54
sST = 98
SET0, SET1, WF = 0, 64, 128
SEL01, SEL23 = 144, 148
vPW, vPR, vVW, vVR0 = 152, 153, 154, 155
vKVL, vKRL, vKRS = 152, 153, 154
CSD = 156
MB = 160
CA = 168
vSL = 172
XR, WR1, WR3, XD, WR2 = 174, 178, 178, 182, 182
W2R = 174
WQD, WGD, WHD = 186, 188, 190
vHLD, vPOL = 186, 187
vCSA, vRS, vR2, vHST, vL, W2D = 191, 192, 194, 196, 197, 198
WPHI = 200
KVD = 208
TMP = 240
vFLG, vVR1, vKVA, vSTAMP = 252, 253, 254, 255
RSD, SQD = 64, 68
ACC2 = [96, 112, 208, 224]

def vr(b, n=1): return "v%d" % b if n == 1 else "v[%d:%d]" % (b, b + n - 1)
def ar(b, n): return "a[%d:%d]" % (b, b + n - 1)

stamp_names = []
def stamp(name):
    if cfg.stamps != True: return []
    if name not in stamp_names: stamp_names.append(name)
    k = stamp_names.index(name)
    return [I("s_memtime s[%d:%d]" % (sST, sST + 1)), I("v_writelane_b32 v%d, s%d, %d" % (vSTAMP, sST, k + 2))]

def addr_wfull(dst, n, att, swap, t0=TMP):
    a, b = vr(t0), vr(t0 + 1)
    s = """
    v_lshrrev_b32 {a}, 5, v{L}
    v_lshlrev_b32 {a}, 10, {a}
    v_bfe_u32 {b}, v{L}, 2, 2
    v_lshl_add_u32 {a}, {b}, 7, {a}
    v_and_b32 {b}, 3, v{L}
    v_lshl_add_u32 {a}, {b}, 3, {a}
    v_bfe_u32 {b}, v{L}, 3, 1
    v_xor_b32 {b}, s{gr}, {b}
    v_lshl_add_u32 {a}, {b}, 6, {a}
    v_bfe_u32 {b}, v{L}, 4, 1
    """.format(a=a, b=b, L=vL, gr=sGR)
    if att:
        if swap: s += "v_xor_b32 %s, s%d, %s\n" % (b, sTH, b)
        s += "v_lshl_add_u32 %s, %s, 5, %s\n" % (a, b, a)
    else:
        s += "v_mul_u32_u24 %s, %d, %s\nv_add_u32 %s, %s, %s\n" % (b, PITCH, b, a, a, b)
    return L(s) + wr_variants(dst, n, a, 12)

def wr_variants(dst, n, a, sh):
    s = "s_lshl_b32 s%d, s%d, %d\ns_xor_b32 s%d, s%d, %d\n" % (sT0, sS, sh, sT1, sT0, 1 << sh)
    k = dst
    if n == 4:
        s += "v_add_u32 v%d, s%d, %s\nv_add_u32 v%d, s%d, %s\n" % (k, sT0, a, k + 1, sT1, a)
        s += "v_add_u32 v%d, %d, v%d\nv_add_u32 v%d, %d, v%d\n" % (k + 2, 8 * PITCH, k, k + 3, 8 * PITCH, k + 1)
    else:
        s += "v_add_u32 %s, %d, %s\n" % (a, 8 * PITCH, a)
        s += "v_add_u32 v%d, s%d, %s\nv_add_u32 v%d, s%d, %s\n" % (k, sT0, a, k + 1, sT1, a)
    ins = L(s)
    return [ins]

def addr_whalf(dst, t0=TMP):
    a, b = vr(t0), vr(t0 + 1)
    s = """
    v_lshrrev_b32 {a}, 5, v{L}
    v_lshlrev_b32 {a}, 9, {a}
    v_bfe_u32 {b}, v{L}, 2, 2
    v_lshl_add_u32 {a}, {b}, 6, {a}
    v_and_b32 {b}, 3, v{L}
    v_lshl_add_u32 {a}, {b}, 3, {a}
    v_bfe_u32 {b}, v{L}, 4, 1
    v_mul_u32_u24 {b}, 4128, {b}
    v_add_u32 {a}, {a}, {b}
    v_mov_b32 {b}, s{gr}
    v_lshl_add_u32 {a}, {b}, 5, {a}
    """.format(a=a, b=b, L=vL, gr=sGR)
    return L(s) + wr_variants(dst, 4, a, 11)

def addr_cs(swap, t0=TMP):
    a = vr(t0)
    s = "s_lshl_b32 s%d, s%d, 8\ns_lshl_b32 s%d, s%d, 7\ns_add_u32 s%d, s%d, s%d\ns_add_u32 s%d, s%d, %d\n" % (sT0, sGR, sT1, sTH, sT0, sT0, sT1, sT0, sT0, CSP)
    s += "v_and_b32 %s, 31, v%d\n" % (a, vL)
    if swap: s += "s_lshl_b32 s%d, s%d, 4\nv_xor_b32 %s, s%d, %s\n" % (sT1, sTH, a, sT1, a)
    s += """
    v_lshl_add_u32 v{ca}, {a}, 2, s{t}
    v_lshrrev_b32 {a}, 5, v{L}
    v_lshl_add_u32 v{ca}, {a}, 9, v{ca}
    """.format(a=a, L=vL, ca=vCSA, t=sT0)
    return [L(s)]

def addr_p2(t0=TMP):
    a, b = vr(t0), vr(t0 + 1)
    s = """
    v_lshrrev_b32 {a}, 5, v{L}
    v_lshlrev_b32 {a}, 9, {a}
    v_bfe_u32 {b}, v{L}, 2, 2
    v_lshl_add_u32 {a}, {b}, 7, {a}
    v_and_b32 {b}, 3, v{L}
    v_lshl_add_u32 {a}, {b}, 3, {a}
    v_bfe_u32 {b}, v{L}, 3, 1
    v_lshl_add_u32 {a}, {b}, 6, {a}
    v_bfe_u32 {b}, v{L}, 4, 1
    v_lshl_add_u32 {a}, {b}, 5, {a}
    v_xor_b32 {b}, 64, {a}
    v_add_u32 v{w0}, s{l2k}, {a}
    v_add_u32 v{w1}, s{l2k}, {b}
    v_add_u32 v{w2}, {hi}, v{w0}
    v_add_u32 v{w3}, {hi}, v{w1}
    """.format(a=a, b=b, L=vL, w0=W2R, w1=W2R + 1, w2=W2R + 2, w3=W2R + 3, l2k=sL2K, hi=8 * PITCH)
    ins = L(s)
    ins.append(L("""
    s_mul_i32 s{t0}, s{tt}, {a}
    s_mul_i32 s{t1}, s{wv}, {b}
    s_add_u32 s{t0}, s{t0}, s{t1}
    v_lshl_add_u32 v{h}, v{L}, 4, s{t0}
    """.format(t0=sT0, t1=sT1, tt=sTT, wv=sWV, a=144 * 2048, b=36 * 2048, h=vHLD, L=vL)))
    ins.append(L("""
    s_lshl_b32 s{t0}, s{tt}, 2
    s_add_u32 s{t0}, s{t0}, s{wv}
    s_lshl_b32 s{t0}, s{t0}, 7
    s_add_u32 s{t0}, s{t0}, {fl}
    v_and_b32 {a}, 7, v{L}
    v_lshl_add_u32 v{p}, {a}, 2, s{t0}
    """.format(t0=sT0, tt=sTT, wv=sWV, fl=WS_FL, a=a, L=vL, p=vPOL)))
    return ins

label_n = [0]
def poll(addr, res, need, sr=SW, cmp="gt"):
    label_n[0] += 1
    k = label_n[0]
    ld = "buffer_load_dword v%d, v%d, %s, 0 offen sc1" % (res, addr, srd(sr))
    c = "v_cmp_%s_u32 vcc, %s, v%d" % (cmp, need, res)
    chk = Raw([c, "s_nop 4", "s_cbranch_vccz L_ok%d" % k,
               "s_mov_b32 s%d, %d" % (sSPIN, cfg.spin),
               "L_re%d:" % k, "s_sleep 1", ld, "s_waitcnt vmcnt(0)", c, "s_sub_u32 s%d, s%d, 1" % (sSPIN, sSPIN),
               "s_cbranch_scc1 L_ok%d" % k, "s_nop 2", "s_cbranch_vccnz L_re%d" % k,
               "L_ok%d:" % k],
              rd=["v%d" % res, "v%d" % addr] + regs_of(need), wr=["vcc", "scc", "s%d" % sSPIN])
    chk.cost = 32
    return I(ld), chk

def class_poll(c, res, needr):
    na, nb = [(0, 1), (0, 2), (1, 2), (2, 2), (2, 3)][c]
    iss, chk = poll(vPOL, res, "v%d" % needr)
    return iss, [I("v_cndmask_b32 v%d, %d, %d, s[%d:%d]" % (needr, na, nb, sMB, sMB + 1)), chk]

def set_flag(level, tag, t):
    return stamp("f%d_0" % level) + [Wait(tag)] + stamp("f%d_1" % level) + [I("v_mov_b32 v%d, %d" % (t, level)), I("buffer_store_dword v%d, v%d, %s, 0 offen sc1" % (t, vFLG, srd(SW)))]

def t_stat_add():
    a, b = TMP, TMP + 1
    s = """
    s_lshl_b32 s{t0}, s{th}, 10
    s_add_u32 s{t0}, s{t0}, {st}
    v_and_b32 v{b}, 31, v{L}
    v_lshl_add_u32 v{b}, v{b}, 4, s{t0}
    s_lshl_b32 s{t1}, s{gr}, 3
    s_add_u32 s{t0}, s{t0}, s{t1}
    v_lshl_add_u32 v{a}, v{L}, 4, s{t0}
    """.format(t0=sT0, t1=sT1, th=sTH, gr=sGR, st=STAT, a=a, b=b, L=vL)
    pre = [L(s)]
    out = []
    for j, m in ((1, sM1), (2, sM2), (3, sM3)):
        for blk in range(2):
            q = SQD + 4 * blk
            out += L("v_cndmask_b32 v%d, v%d, v%d, s[%d:%d]" % (q, q, q + j, m, m + 1))
    out.append(L("v_permlane32_swap_b32 v%d, v%d\nv_add_f32 v%d, v%d, v%d" % (SQD, SQD + 4, RSD + 1, SQD, SQD + 4)))
    out += L("ds_write_b64 v%d, v[%d:%d]" % (a, RSD, RSD + 1))
    return pre, out

def t_cs_add(tile0):
    return L("ds_write_b32 v%d, v%d offset:%d" % (vCSA, CSD, 512 * tile0))

def t_cs_tot(tile0, t):
    out = L("v_xor_b32 v%d, 0x80, v%d\nds_read_b32 v%d, v%d offset:%d" % (t, vCSA, t, t, 512 * tile0))
    out.append(Gap(2))
    out += L("""
    v_add_f32 v{t}, v{t}, v{cs}
    v_cvt_pk_bf16_f32 v{a}, v{t}, v{t}
    v_lshlrev_b32 v{a1}, 16, v{a}
    v_sub_f32 v{t}, v{t}, v{a1}
    v_cvt_pk_bf16_f32 v{a1}, v{t}, 0
    """.format(t=t, cs=CSD, a=CA, a1=CA + 1))
    return out

def t_corr(acc, T):
    out = []
    for j in range(T):
        for b in range(2):
            d = vr(acc + 32 * j + 16 * b, 16)
            x = I("v_mfma_f32_32x32x16_bf16 %s, %s, %s, %s" % (d, vr(CA, 4), vr(MB + 4 * b + 2 * j, 4), d)); x.cost = 24
            out.append(x)
    return out

def t_stat_fin():
    b = TMP + 1; t = TMP + 4
    out = L("ds_read_b128 v[%d:%d], v%d\nds_read_b128 v[%d:%d], v%d offset:512" % (t, t + 3, b, t + 4, t + 7, b))
    out.append(Gap(2))
    late = []
    for blk in range(2):
        r = t + 4 * blk; m = MB + 4 * blk
        out += L("""
        v_add_f32 v{r}, v{r}, v{r2}
        v_mul_f32 v{r}, 0xbb000000, v{r}
        v_cvt_pk_bf16_f32 v{m1}, v{r}, 0
        v_lshlrev_b32 v{r2}, 16, v{m1}
        v_sub_f32 v{r2}, v{r}, v{r2}
        v_cvt_pk_bf16_f32 v{m0}, v{r}, v{r2}
        v_cndmask_b32 v{m2}, 0, v{m0}, s[{h}:{h1}]
        v_cndmask_b32 v{m3}, 0, v{m1}, s[{h}:{h1}]
        v_cndmask_b32 v{m0}, v{m0}, 0, s[{h}:{h1}]
        v_cndmask_b32 v{m1}, v{m1}, 0, s[{h}:{h1}]
        """.format(r=r, r2=r + 2, m0=m, m1=m + 1, m2=m + 2, m3=m + 3, h=sMH, h1=sMH + 1))
        late += L("""
        v_add_f32 v{r1}, v{r1}, v{r3}
        v_mul_f32 v{r2}, v{r}, v{r}
        v_fma_f32 v{r1}, v{r1}, s{c}, -v{r2}
        v_max_f32 v{r1}, 0, v{r1}
        v_add_f32 v{r1}, 0x3727c5ac, v{r1}
        v_rsq_f32 v{rs}, v{r1}
        v_rcp_f32 v{rr}, v{r1}
        v_mul_f32 v{sl}, 0x3fb8aa3b, v{rs}
        """.format(r=r, r1=r + 1, r2=r + 2, r3=r + 3, rs=vRS + blk, rr=vR2 + blk, sl=vSL + blk, c=sC2))
    return out, late

def t_hepi(acc, soff, imm, tag):
    out = []
    for blk in range(2):
        g = acc + 16 * blk
        for r in range(0, 8 if not cfg.x_notask else 0, 2):
            out += L("v_mul_f32 v%d, v%d, v%d\nv_mul_f32 v%d, v%d, v%d" % (g + r, vR2 + blk, g + r, g + r + 1, vR2 + blk, g + r + 1))
            out += L("v_mul_f32 v%d, v%d, v%d\nv_mul_f32 v%d, v%d, v%d" % (g + r, g + r, g + 8 + r, g + r + 1, g + r + 1, g + 9 + r))
            out += L("v_cvt_pk_bf16_f32 v%d, v%d, v%d" % (g + r // 2, g + r, g + r + 1))
        st = L("buffer_store_dwordx4 v[%d:%d], v%d, %s, s%d offen offset:%d sc1" % (g, g + 3, vHST, srd(SW), sT1, imm + 1024 * blk), tag=tag if blk else None)
        out.append(L(soff) + st)
    return out

def phi_mfma(acc, TMP=TMP):
    out = []
    for j in range(8): out += L("v_cvt_pk_bf16_f32 v%d, v%d, v%d" % (TMP + j, acc + 2 * j, acc + 2 * j + 1))
    out += L("v_mfma_f32_32x32x16_bf16 v[%d:%d], v[%d:%d], v[%d:%d], 0" % (acc, acc + 15, WPHI, WPHI + 3, TMP, TMP + 3))
    out += L("v_mfma_f32_32x32x16_bf16 v[%d:%d], v[%d:%d], v[%d:%d], v[%d:%d]" % (acc, acc + 15, WPHI + 4, WPHI + 7, TMP + 4, TMP + 7, acc, acc + 15))
    out[-1].cost = 24; out[-2].cost = 24
    return out

def softmax2(p, blk):
    e = TMP; a, b, c, d = TMP + 8, TMP + 9, TMP + 10, TMP + 11; sl = vSL + blk
    s = """
    v_max3_f32 v{a}, v{p0}, v{p1}, v{p2}
    v_min3_f32 v{b}, v{p0}, v{p1}, v{p2}
    v_max3_f32 v{a}, v{a}, v{p3}, v{p4}
    v_min3_f32 v{b}, v{b}, v{p3}, v{p4}
    v_max3_f32 v{a}, v{a}, v{p5}, v{p6}
    v_min3_f32 v{b}, v{b}, v{p5}, v{p6}
    v_max_f32 v{a}, v{a}, v{p7}
    v_max_f32_e64 v{b}, -v{b}, -v{p7}
    """.format(a=a, b=b, **{"p%d" % i: p + i for i in range(8)})
    out = L(s)
    out += L("v_permlane32_swap_b32 v{a}, v{b}\nv_max_f32 v{a}, v{a}, v{b}\nv_mul_f32_e64 v{a}, -v{a}, v{sl}\nv_mov_b32 v{b}, v{a}".format(a=a, b=b, sl=sl))
    out += L("v_permlane32_swap_b32 v{a}, v{b}".format(a=a, b=b))
    for i in range(8):
        out += L("v_fma_f32 v%d, v%d, v%d, v%d" % (e + i, p + i, sl, a))
        out += L("v_fma_f32 v%d, -v%d, v%d, v%d" % (p + i, p + i, sl, b))
        if i > 1: out += L("v_add_f32 v%d, v%d, v%d" % (c, c if i > 2 else e, e + i - 1))
        out += L("v_exp_f32 v%d, v%d" % (e + i, e + i))
        if i > 1: out += L("v_add_f32 v%d, v%d, v%d" % (d, d if i > 2 else p, p + i - 1))
        out += L("v_exp_f32 v%d, v%d" % (p + i, p + i))
    out += L("v_add_f32 v%d, v%d, v%d\nv_add_f32 v%d, v%d, v%d" % (c, c, e + 7, d, d, p + 7))
    out += L("v_permlane32_swap_b32 v{c}, v{d}\nv_add_f32 v{c}, v{c}, v{d}\nv_rcp_f32 v{c}, v{c}".format(c=c, d=d))
    out += L("v_mov_b32 v{d}, v{c}".format(c=c, d=d))
    out += L("v_permlane32_swap_b32 v{c}, v{d}".format(c=c, d=d))
    for i in range(8):
        out += L("v_mul_f32 v%d, v%d, v%d" % (p + i, d, p + i))
        if i & 1: out += L("v_cvt_pk_bf16_f32 v%d, v%d, v%d" % (p + i // 2, p + i - 1, p + i))
    for i in range(8):
        out += L("v_mul_f32 v%d, v%d, v%d" % (e + i, c, e + i))
        if i & 1: out += L("v_cvt_pk_bf16_f32 v%d, v%d, v%d" % (p + 4 + i // 2, e + i - 1, e + i))
    return out

def v_out(va, blk):
    out = []
    for r in range(0, 16, 2):
        out += L("v_mul_f32 v%d, v%d, v%d\nv_mul_f32 v%d, v%d, v%d" % (va + r, vRS + blk, va + r, va + r + 1, vRS + blk, va + r + 1))
        out += L("v_cvt_pk_bf16_f32 v%d, v%d, v%d" % (va + r // 2, va + r, va + r + 1))
        if r % 4 == 2: out += L("ds_write_b64 v%d, v[%d:%d] offset:%d" % (vVW, va + r // 2 - 1, va + r // 2, 4 * (r - 2)))
    return out

def t_att_k():
    out = []
    if cfg.x_notask: return [I("s_nop 0")]
    FR = 32
    pend = []
    for blk in range(2):
        va = 32 + 16 * blk; ka = 16 * blk
        out += phi_mfma(ka)
        out += pend; pend = []
        out += v_out(va, blk)
        for hh in range(2):
            p = ka + 8 * hh
            sm = softmax2(p, blk)
            out += sm[:24] + pend + sm[24:]; pend = []
            for j in range(2):
                out += L("ds_write_b64 v%d, v[%d:%d] offset:%d" % (vPW, p + 4 + 2 * j, p + 5 + 2 * j, 16 * j))
                out += L("ds_write_b64 v%d, v[%d:%d] offset:%d" % (vPW, p + 2 * j, p + 1 + 2 * j, 32 + 16 * j))
            for ks in range(2):
                for j in range(2):
                    out += L("ds_read_b64_tr_b16 v[%d:%d], v%d offset:%d" % (FR + 8 * ks + 2 * j, FR + 8 * ks + 2 * j + 1, vPR, 1152 * ks + 288 * j))
                    out += L("ds_read_b64_tr_b16 v[%d:%d], v%d offset:%d" % (FR + 8 * ks + 4 + 2 * j, FR + 8 * ks + 5 + 2 * j, (vVR0, vVR1)[hh], 1664 * ks + 416 * j))
            d = KVD + 16 * hh
            for ks in range(2):
                c = "0" if (blk == 0 and ks == 0) else vr(d, 16)
                x = I("v_mfma_f32_32x32x16_bf16 %s, %s, %s, %s" % (vr(d, 16), vr(FR + 8 * ks, 4), vr(FR + 8 * ks + 4, 4), c)); x.cost = 24
                pend.append(x)
    out.append(L("""
    s_mul_i32 s{t0}, s{wv}, {wsz}
    s_add_u32 s{t0}, s{t0}, {wreg}
    v_lshl_add_u32 v{a}, v{L}, 4, s{t0}
    s_xor_b32 s{t0}, s{wv}, 1
    s_mul_i32 s{t0}, s{t0}, {wsz}
    s_add_u32 s{t0}, s{t0}, {wreg}
    v_lshl_add_u32 v{b}, v{L}, 4, s{t0}
    """.format(t0=sT0, wv=sWV, wsz=WREG_SZ, wreg=WREG, a=TMP, b=TMP + 1, L=vL)))
    out += [Gap(2)] + pend + [Gap(2)]
    for r4 in range(4): out += L("ds_write_b128 v%d, %s offset:%d" % (TMP, vr(KVD + 16 + 4 * r4, 4), 1024 * r4))
    return out

def t_kv_pub():
    out = []
    for r4 in range(4): out += L("ds_read_b128 %s, v%d offset:%d" % (vr(KVD + 16 + 4 * r4, 4), TMP + 1, 1024 * r4))
    out.append(Gap(2))
    for r in range(16):
        out += L("v_add_f32 v%d, v%d, v%d" % (KVD + r, KVD + r, KVD + 16 + r))
        if r % 4 == 3: out += L("buffer_store_dwordx4 %s, v%d, %s, 0 offen offset:%d sc1" % (vr(KVD + r - 3, 4), vKVA, srd(SW), 256 * (r - 3)))
    return out

def data_poll(loads, regs, t):
    label_n[0] += 1
    k = label_n[0]
    chk = ["v_max3_u32 v%d, v%d, v%d, v%d" % (t, regs[0], regs[1], regs[2])]
    rest = regs[3:]
    while len(rest) > 1:
        chk.append("v_max3_u32 v%d, v%d, v%d, v%d" % (t, t, rest[0], rest[1])); rest = rest[2:]
    if rest: chk.append("v_max_u32 v%d, v%d, v%d" % (t, t, rest[0]))
    fast = L("\n".join(chk))
    c = "v_cmp_eq_u32 vcc, -1, v%d" % t
    raw = Raw([c, "s_nop 4", "s_cbranch_vccz L_ok%d" % k, "s_mov_b32 s%d, %d" % (sSPIN, cfg.spin), "L_re%d:" % k, "s_sleep 1"] + loads +
              ["s_waitcnt vmcnt(0)"] + chk + [c, "s_sub_u32 s%d, s%d, 1" % (sSPIN, sSPIN), "s_cbranch_scc1 L_ok%d" % k, "s_nop 2",
               "s_cbranch_vccnz L_re%d" % k, "L_ok%d:" % k],
              rd=["v%d" % t], wr=["vcc", "scc", "s%d" % sSPIN, "s%d" % sT1] + ["v%d" % r for r in regs])
    raw.cost = 32
    return fast + [raw]

RR = 80
def t_kv_red():
    ld = []
    for k in range(4):
        ld += ["s_mov_b32 s%d, %d" % (sT1, 16384 * k), "buffer_load_dwordx4 %s, v%d, %s, s%d offen sc1" % (vr(RR + 4 * k, 4), vKRL, srd(SW), sT1)]
    iss = [L("\n".join(ld[2 * k:2 * k + 2])) for k in range(4)]
    out = data_poll(ld, list(range(RR, RR + 16)), vKVA)
    for j in range(4):
        out += L("v_add_f32 v%d, v%d, v%d\nv_add_f32 v%d, v%d, v%d" % (RR + j, RR + j, RR + 4 + j, RR + 8 + j, RR + 8 + j, RR + 12 + j))
    for j in range(4): out += L("v_add_f32 v%d, v%d, v%d" % (RR + j, RR + j, RR + 8 + j))
    out += L("""
    v_permlane16_swap_b32 v{a}, v{b}
    v_permlane16_swap_b32 v{c}, v{d}
    v_add_f32 v{a}, v{a}, v{b}
    v_add_f32 v{c}, v{c}, v{d}
    v_permlane32_swap_b32 v{a}, v{c}
    v_add_f32 v{a}, v{a}, v{c}
    buffer_store_dword v{a}, v{s}, {sr}, 0 offen sc1
    """.format(a=RR, b=RR + 1, c=RR + 2, d=RR + 3, s=vKRS, sr=srd(SW)))
    return iss, out

def t_att_q():
    out = []
    if cfg.x_notask: return [I("s_nop 0")]
    out += phi_mfma(SET0, 64) + phi_mfma(SET0 + 16, 72)
    out += softmax2(SET0, 0) + softmax2(SET0 + 8, 0) + softmax2(SET0 + 16, 1) + softmax2(SET0 + 24, 1)
    return out

KR = 32
def t_kv_load():
    ld = []
    for hh in range(2):
        ld += ["s_mov_b32 s%d, %d" % (sT1, 4096 * hh)]
        for r4 in range(4):
            ld += ["buffer_load_dwordx4 %s, v%d, %s, s%d offen offset:%d sc1" % (vr(KR + 16 * hh + 4 * r4, 4), vKVL, srd(SW), sT1, 1024 * r4)]
    iss = [L("\n".join(ld[:5])), L("\n".join(ld[5:]))]
    return iss, data_poll(ld, list(range(KR, KR + 32)), vKVA)

def t_o():
    out = []
    for hh in range(2):
        for j in range(8): out += L("v_cvt_pk_bf16_f32 v%d, v%d, v%d" % (KR + 16 * hh + j, KR + 16 * hh + 2 * j, KR + 16 * hh + 2 * j + 1))
    seq = [(hh, blk) for hh in range(2) for blk in range(2)]
    def mm(k):
        hh, blk = seq[k]; d = 64 + 16 * (k & 1); p = SET0 + 16 * blk + 8 * hh
        return L("v_mfma_f32_32x32x16_bf16 %s, %s, %s, 0" % (vr(d, 16), vr(KR + 16 * hh, 4), vr(p + 4, 4))) + \
               L("v_mfma_f32_32x32x16_bf16 %s, %s, %s, %s" % (vr(d, 16), vr(KR + 16 * hh + 4, 4), vr(p, 4), vr(d, 16)))
    def fin(k):
        hh, blk = seq[k]; d = 64 + 16 * (k & 1)
        o = L("v_add_f32 v%d, 0x358637bd, v%d\nv_rcp_f32 v%d, v%d" % (d + 8, d + 8, d + 8, d + 8))
        for r in range(8):
            o += L("v_mul_f32 v%d, v%d, v%d" % (d + r, d + 8, d + r))
            if r & 1: o += L("v_cvt_pk_bf16_f32 v%d, v%d, v%d" % (d + r // 2, d + r - 1, d + r))
        st = L("s_mov_b32 s%d, %d" % (sT1, 28 * 2048)) + \
             L("buffer_store_dwordx4 %s, v%d, %s, s%d offen offset:%d sc1" % (vr(d, 4), vHST, srd(SW), sT1, 2048 * hh + 1024 * blk), tag="ost" if k == 3 else None)
        return o + [st]
    out += mm(0) + mm(1) + fin(0) + mm(2) + fin(1) + mm(3) + fin(2) + fin(3)
    return out

def dma(vo, sr, so, imm, tag=None):
    return L("buffer_load_dwordx4 v%d, %s, %s offen%s lds" % (vo, srd(sr), so, " offset:%d" % imm if imm else ""), tag=tag)

def m0set(base, lit): return L("s_add_u32 m0, s%d, %d" % (base, lit))

def dma_x(c, slot, tag):
    g = m0set(sLX, slot * PITCH)
    return [g + dma(XD, SX, "s%d" % (sKX + c), 0)] + [dma(XD + i, SX, "s%d" % (sKX + c), 1024 * i, tag if i == 3 else None) for i in range(1, 4)]

def dma_full(vo, sr, kreg, extra, slot, tag):
    g = m0set(sL2K, slot * PITCH)
    so = "s%d" % kreg
    if extra:
        g += L("s_add_u32 s%d, s%d, %d" % (sT0, kreg, extra)); so = "s%d" % sT0
        return [g + dma(vo, sr, so, 0) + dma(vo + 1, sr, so, 1024, tag)]
    return [g + dma(vo, sr, so, 0) + dma(vo + 1, sr, so, 1024, tag)]

def dma_half(c, slot, tag):
    so = "s%d" % (sKG + c)
    return [m0set(sL1K, slot * PITCH) + dma(WHD, SG, so, 0), m0set(sL1K, slot * PITCH + 4128) + dma(WHD, SU, so, 0, tag)]

def slice_src(n):
    if n < 8: return SD, sWDB, 128 * (n >> 2) + 16 * (n & 3)
    if n < 16: return SD, sWDB, 128 * ((n - 8) >> 2) + 64 + 16 * (n & 3)
    if n < 24: return SD, sWDB, 64 * (4 + ((n - 16) >> 2)) + 16 * (n & 3)
    if n < 28: return SD, sWDB, 384 + 16 * (n - 24)
    return SO, sWOB, 16 * (n - 28)

def dma_w2(n, slot):
    sr, base, row = slice_src(n)
    g = m0set(sL2K, slot * PITCH) + L("s_add_u32 s%d, s%d, %d" % (sT0, base, row * 1024))
    return [g + dma(W2D, sr, "s%d" % sT0, 0) + dma(W2D + 1, sr, "s%d" % sT0, 1024, "w2_%d" % n)]

def h_load(n):
    g = L("s_mov_b32 s%d, %d" % (sT1, n * 2048))
    a = 8 * (n % 32)
    for b in range(2):
        g += L("buffer_load_dwordx4 %s, v%d, %s, s%d offen%s sc1" % (ar(a + 4 * b, 4), vHLD, srd(SW), sT1, " offset:1024" if b else ""))
    return g

def build_type(typ):
    A = typ == "A"
    passes = [("att2", 2, SET0, 0), ("pair", 2, SET1, 2), ("half", 1, SET0, 4)] if A else \
             [("pair", 2, SET0, 0), ("pair", 2, SET1, 2), ("q", 1, SET0, 4)]
    WRs = [WR1, WR2, WR3]
    S = Sched()
    step_beat = {}
    nt = lambda g: passes[g // 32][1]
    wbuf = lambda g, j: WF + (8 * (g & 1) + 4 * j if nt(g) == 2 else 4 * (g & 3))

    slot_of = {}
    for c in range(8):
        slot_of[("x", c)] = 2 * (c % 4); slot_of[("w", 0, c)] = 8 + 2 * (c % 4)
    def item_dma(it):
        if it[0] == "x": return dma_x(it[1], slot_of[it], "x%d" % it[1])
        if it[0] == "s": return dma_w2(it[1], slot_of[it])
        _, p, c = it; kind = passes[p][0]; sl = slot_of[it]; tag = "w%d_%d" % (p, c)
        if kind == "att2": return dma_full(WQD, SQ, sKQ + c, 0, sl, None) + dma_full(WQD, SQ, sKQ + c, 1024, sl + 1, tag)
        if kind == "q": return dma_full(WQD, SQ, sKQ + c, 0, sl, tag)
        if kind == "half": return dma_half(c, sl, tag)
        ex = 128 if (not A and p == 1) else 0
        return dma_full(WGD, SG, sKG + c, ex, sl, None) + dma_full(WGD, SU, sKG + c, ex, sl + 1, tag)
    def item_slots(it):
        if it[0] == "x": return 2
        if it[0] == "s": return 1
        return 2 if passes[it[1]][0] in ("att2", "pair") else 1

    for g in range(96):
        p, c, t = g // 32, (g // 4) % 8, g % 4
        kind, T, acc, tile0 = passes[p]
        step_beat[g] = len(S.beats)
        k = g % 32
        for j in range(T):
            for b in range(2):
                d = vr(acc + 32 * j + 16 * b, 16)
                S.beat(I("v_mfma_f32_32x32x16_bf16 %s, %s, %s, %s" % (d, vr(wbuf(g, j), 4), ar(8 * k + 4 * b, 4), "0" if k == 0 else d)))
        if t < 2 and not cfg.x_nostat:
            def m16(d, sel, src, first): S.beat(I("v_mfma_f32_16x16x32_bf16 %s, %s, %s, %s" % (vr(d, 4), vr(sel, 4), src, "0" if first else vr(d, 4))), 16)
            def m4(b, h): S.beat(I("v_mfma_f32_4x4x4_16b_bf16 %s, %s, %s, %s" % (vr(SQD + 4 * b, 4), ar(8 * k + 4 * b + 2 * h, 2), ar(8 * k + 4 * b + 2 * h, 2), "0" if (k == 0 and h == 0) else vr(SQD + 4 * b, 4))), 8)
            if p == 0:
                m4(0, 0); m4(1, 0); m16(RSD, SEL01, ar(8 * k, 4), k == 0); m4(0, 1); m4(1, 1); m16(RSD, SEL23, ar(8 * k + 4, 4), False)
            for j in range(T): m16(CSD, (SEL01, SEL23)[j], vr(wbuf(g, j), 4), k == 0 and j == 0)
    step_beat[96] = len(S.beats)
    sl_beat = {}
    for n in range(36):
        sl_beat[n] = len(S.beats)
        w = WF + 8 * (n & 1); a = 8 * (n % 32)
        for cb in range(2):
            for tb in range(2):
                d = vr(ACC2[2 * cb + tb], 16)
                S.beat(I("v_mfma_f32_32x32x16_bf16 %s, %s, %s, %s" % (d, vr(w + 4 * cb, 4), ar(a + 4 * tb, 4), "0" if n == 0 else d)), cfg.p2period)
    sl_beat[36] = len(S.beats)
    S.beat(None)

    bar_step = {}
    for cc in range(24):
        T = passes[cc // 8][1]
        bar_step[cc] = 4 * cc + (3 if (T == 2 or cc == 23) else 2)
    last_rd = {}
    def w_reads(g, j):
        p, c, t = g // 32, (g // 4) % 8, g % 4
        kind = passes[p][0]; sl = slot_of[("w", p, c)]
        if p == 0: base, off = WR1 + (t >> 1), (sl - 8) * PITCH
        else: base, off = WRs[p] + 2 * (sl >= 8) + (t >> 1), (sl % 8) * PITCH
        if kind == "att2": off += j * PITCH
        if kind == "pair": off += 32 * j
        st, js = (1024, 256) if kind == "half" else (2048, 512)
        off += (t & 1) * st
        w = wbuf(g, j)
        return [I("ds_read_b64_tr_b16 %s, v%d offset:%d" % (vr(w + 2 * e, 2), base, off + e * js)) for e in range(2)]
    def x_reads(g):
        c, t = g // 4, g % 4
        return [I("ds_read_b128 %s, v%d offset:%d" % (ar(8 * g + 4 * b, 4), XR + t, slot_of[("x", c)] * PITCH + 4096 * b)) for b in range(2)]
    def w2_reads(n):
        sl = slot_of[("s", n)]; w = WF + 8 * (n & 1)
        return [I("ds_read_b64_tr_b16 %s, v%d offset:%d" % (vr(w + 4 * cb + 2 * e, 2), W2R + 2 * (sl >= 8) + cb, (sl % 8) * PITCH + 1024 * e)) for cb in range(2) for e in range(2)]

    queue = []
    for c in range(cfg.npro, 8): queue += [("x", c), ("w", 0, c)]
    for p in (1, 2): queue += [("w", p, c) for c in range(8)]
    queue += [("s", n) for n in range(36)]
    free = set()
    for c in range(cfg.npro, 4): free |= {2 * c, 2 * c + 1, 8 + 2 * c, 9 + 2 * c}
    issue_after = {}
    n_ins = lambda it: 4 if item_slots(it) == 2 else 2
    for cc in range(-1, 24):
        p, c = max(cc, 0) // 8, cc % 8
        T = passes[p][1] if cc >= 0 else 0
        rel = []
        budget = cfg.pace[p] if cc >= 0 else cfg.pace0
        if T == 2 or cc == 23:
            rel.append(cc)
            if cc > 0 and passes[(cc - 1) // 8][1] == 1: rel.append(cc - 1)
        elif cc > 0 and passes[(cc - 1) // 8][1] == 1: rel.append(cc - 1)
        for r in rel:
            it = ("w", r // 8, r % 8)
            free |= set(range(slot_of[it], slot_of[it] + item_slots(it)))
            if r < 8: free |= {slot_of[("x", r)], slot_of[("x", r)] + 1}
        got = []
        while queue:
            it = queue[0]; ns = item_slots(it)
            if it in slot_of: cand = [slot_of[it]] if all(slot_of[it] + i in free for i in range(ns)) else []
            elif ns == 2: cand = [s for s in sorted(free) if s % 2 == 0 and s + 1 in free]
            else: cand = sorted(free)
            if not cand or budget < n_ins(it): break
            budget -= n_ins(it)
            slot_of[it] = cand[0]
            for i in range(ns): free.discard(cand[0] + i)
            got.append(queue.pop(0))
        issue_after[cc] = (rel, got)
    p2_issue = {}
    for n in range(36):
        free.add(slot_of[("s", n)])
        for k in range(cfg.p2pace):
            if queue and free:
                it = queue.pop(0); slot_of[it] = min(free); free.discard(slot_of[it]); p2_issue.setdefault(n, []).append(it)
    print(typ, "prefetched slices before P2:", 36 - sum(len(x) for x in p2_issue.values()))

    where = {}
    for g in range(1, 96):
        T = nt(g); k = g % 32
        for j in range(T):
            if T == 2: at = g - 1 if not (k == 0 and nt(g - 1) == 1 and j == 0) else g - 2
            else: at = g - 2 if not (k < 2 and nt(g - k - 1) == 2) else g - k - 1
            where.setdefault(at, []).append(("w", g, j))
        if g < 32: where.setdefault(g - 1, []).append(("x", g))
    for at, lst in sorted(where.items()):
        ins = []
        for it in lst:
            r = w_reads(it[1], it[2]) if it[0] == "w" else x_reads(it[1])
            if it[1] % 4 == 3:
                r[-1].tag = "rd%d_%s%d" % (it[1] // 4, it[0], it[2] if it[0] == "w" else 0)
                last_rd[it[1] // 4] = r[-1].tag
            ins += r
        b0 = step_beat[at]; nb = 2 * nt(at)
        if cfg.rd_early and len(ins) == 6: ins = [ins[0], ins[1], ins[4], ins[5], ins[2], ins[3]]
        if cfg.rd_early:
            tg = [x.tag for x in ins if x.tag]
            if tg:
                for x in ins: x.tag = None
                ins[-1].tag = last_rd[lst[-1][1] // 4]
        nbb = 2 if cfg.rd_early else nb
        for i, x in enumerate(ins): S.put(b0 + min(nbb - 1, i * nbb // len(ins)), x)

    extra_pre = {}
    def place_barriers():
        for cc in range(24):
            b = step_beat[bar_step[cc]]
            pre = []
            for r in issue_after[cc][0]: pre.append(Wait(last_rd[r]))
            if cc in extra_pre: pre.append(Wait("lgkm0"))
            if cc in extra_wait: pre.append(Wait(extra_wait[cc]))
            if cc < 23:
                nx = cc + 1
                if nx < 8: pre.append(Wait("x%d" % nx))
                pre.append(Wait("w%d_%d" % (nx // 8, nx % 8)))
            pre.append(I("s_barrier"))
            S.beats[b]["pre"] = pre + S.beats[b]["pre"]
    bb = lambda cc: step_beat[bar_step[cc]]
    for cc in range(-1, 24):
        items = []
        for it in issue_after[cc][1]: items += item_dma(it)
        if items: S.spread(items, bb(cc) if cc >= 0 else 0, bb(cc + 1) if cc < 23 else sl_beat[0] + 2)

    r0 = w2_reads(0)
    S.put(step_beat[95], [Wait("w2_0")] );
    for i, x in enumerate(r0): S.put(step_beat[95] + min(i // 2, 2 * nt(95) - 1), x)
    for n in range(36):
        b = sl_beat[n]
        if n + 1 < 36:
            S.put(b, Wait("w2_%d" % (n + 1)))
            for i, x in enumerate(w2_reads(n + 1)): S.put(b + i, x)
        for k, it in enumerate(p2_issue.get(n, [])): S.put(b + 2 + k, dma_w2(it[1], slot_of[it])[0])

    sp = lambda g: step_beat[g]
    sl0 = sl_beat[0]
    def end_of(it):
        cc = [c for c in issue_after if it in issue_after[c][1]][0]
        return bb(cc + 1)
    def start_of(it):
        cc = [c for c in issue_after if it in issue_after[c][1]][0]
        return bb(cc)
    assert start_of(("w", 1, 0)) >= sp(cfg.setup_end) and end_of(("x", 7)) < sp(28) and end_of(("w", 2, 7)) <= sp(64)
    S.spread(late_setup(A), sp(1), sp(cfg.setup_end), "setup")
    if cfg.wpf: S.put(sp(cfg.wpf), w_touch(cfg.wpf1, 110))
    extra_wait = {4: "clr"}
    S.put(bb(4), L("v_mov_b32 v%d, 1\nbuffer_atomic_add v%d, v%d, %s, 0 offen" % (KVD + 1, KVD + 1, KVD, srd(SDBG))))
    S.put(sp(21), wphi_finish())
    S.spread(addr_wfull(WR2, 4, False, False, TMP + 8), max(end_of(("x", 7)), sp(22)), sp(30))
    pre, adds = t_stat_add()
    S.spread(pre, sp(26), sp(28))
    cs_pub = lambda tile0: [Gap(1)] + t_cs_add(tile0)
    S.spread(cs_pub(0) + adds, sp(30), sp(31)); extra_pre[7] = 1
    fin, late = t_stat_fin()
    S.spread(t_cs_tot(0, TMP + 2), sp(31), sp(32))
    S.spread(fin, sp(31), sp(32))
    hs_i, hs_c = poll(XR, XR + 1, "8" if cfg.dbgout else "4", SDBG, "gt")
    if cfg.dbgout: S.put(sp(36), L("v_and_b32 v%d, 31, v%d\nv_lshlrev_b32 v%d, 2, v%d\nv_add_u32 v%d, 64, v%d" % (XR, vL, XR, XR, XR, XR)) + [hs_i])
    else: S.put(sp(36), [I("v_lshlrev_b32 v%d, 2, v%d" % (XR, vL)), hs_i])
    S.put(sp(44), stamp("hs0") + [hs_c] + stamp("hs1"))
    if cfg.w2pf:
        assert sp(cfg.w2pf) >= end_of(("w", 1, 7))
        x = w2_touch(WGD); S.put(sp(cfg.w2pf), x[0]); S.put(sp(cfg.w2pf + 4), x[1])
    S.spread(cs_pub(2), sp(62), sp(63)); extra_pre[15] = 1
    S.spread(t_cs_tot(2, XR + 2), sp(63), sp(64))
    S.spread(cs_pub(4), sp(94), sp(95)); extra_pre[23] = 1
    S.spread(t_cs_tot(4, TMP + 2), sp(95), sl0)
    S.spread(addr_p2(TMP + 8), sp(66), sp(72))
    so2 = "s_mov_b32 s%d, %d" % (sT1, (16 if A else 8) * 2048)
    if A:
        e = S.spread(t_corr(SET0, 2) + late + t_att_k(), sp(32), sp(32 + cfg.a_att), "att_k")
        cb = min(cc for cc in range(8, 24) if bb(cc) > e); extra_pre[cb] = 1
        print("  kv exchange barrier chunk", cb)
        S.spread(addr_whalf(WR3, XR + 2) + addr_cs(False, XR + 2), sp(46), sp(58))
        e = S.spread(t_kv_pub(), bb(cb), bb(cb) + cfg.a_pub, "kv_pub")
        S.put(e, stamp("kvi"))
        ekv = e
    else:
        so = "s_mov_b32 s%d, 0" % sT1
        e = S.spread(t_corr(SET0, 2) + late + t_hepi(SET0, so, 0, None) + t_hepi(SET0 + 32, so, 2048, "h0"), sp(32), sp(32 + cfg.b_h0), "hepi0")
        S.put(e + cfg.flag_delay, set_flag(1, "h0", WHD))
        S.spread(addr_wfull(WR3, 4, True, False, XR + 2), sp(46), sp(58))
        ekv = 0
    b0 = max(sp(64), ekv + 1)
    e = S.spread(t_corr(SET1, 2) + t_hepi(SET1, so2, 0, None) + t_hepi(SET1 + 32, so2, 2048, "h1"), b0, max(b0 + 8, sp(64 + cfg.h1)), "hepi1")
    S.put(e + cfg.flag_delay, set_flag(1 if A else 2, "h1", WHD))
    if A:
        so = "s_mov_b32 s%d, s%d" % (sT1, sH2)
        e = S.spread(t_corr(SET0, 1) + [Gap(1)] + t_hepi(SET0, so, 0, "h2"), sl0, sl0 + cfg.a_h2, "hepi2")
        S.put(e + cfg.flag_delay2, set_flag(2, "h2", WHD))
        last_task = e
    else:
        att = t_corr(SET0, 1) + [Gap(1)] + t_att_q()
        ri, rc = t_kv_red()
        li, lc = t_kv_load()
        S.spread(ri, sl0 + cfg.b_ri, sl0 + cfg.b_ri + 4)
        k1 = int(len(att) * cfg.b_rc); k2 = int(len(att) * cfg.b_li)
        att = att[:k1] + stamp("kr0") + rc + stamp("kr1") + att[k1:k2] + li + att[k2:] + stamp("kp0") + lc + stamp("kp1") + t_o()
        e = S.spread(att, sl0, sl0 + cfg.b_att, "att_q+o")
        S.put(e + cfg.flag_delay2, set_flag(3, "ost", WHD))
        last_task = e
    place_barriers()
    first = [0, 8, 16, 24, 28, 36]
    for c in range(5):
        iss, chk = class_poll(c, WGD, WGD + 1)
        at = sp(64 + cfg.p0) if c == 0 else sl0 + cfg.cpos[c]
        S.put(at - (cfg.poll_lead0 if c == 0 else cfg.poll_lead), iss)
        S.put(at, stamp("cp%d_0" % c) + chk + stamp("cp%d_1" % c))
        nsl = first[c + 1] - first[c]
        for i in range(nsl):
            n = first[c] + i
            b = at + i * (cfg.hstep0 if c == 0 else cfg.hstep)
            if c == 0: assert b >= sp(64 + n + 1)
            assert b < sl_beat[n], (c, n)
            S.put(b, h_load(n))
    RES = TMP
    rb_ = max(last_task + 2, sl_beat[24])
    S.put(rb_, L("""
    s_lshl_b32 s{t0}, s{tt}, 2
    s_add_u32 s{t0}, s{t0}, s{wv}
    s_lshl_b32 s{t0}, s{t0}, 14
    s_lshl_b32 s{t1}, s{ct}, 7
    s_add_u32 s{t0}, s{t0}, s{t1}
    v_lshrrev_b32 v{a}, 3, v{L}
    v_lshlrev_b32 v{a}, 10, v{a}
    v_and_b32 v{b}, 7, v{L}
    v_lshl_add_u32 v{a}, v{b}, 4, v{a}
    v_add_u32 v{o}, s{t0}, v{a}
    """.format(t0=sT0, t1=sT1, tt=sTT, wv=sWV, ct=sCT, a=TMP + 8, b=TMP + 9, o=WQD - 1, L=vL)))
    vOUT = WQD - 1
    S.put(rb_ + 1, L("s_mov_b32 s%d, 8192\nbuffer_load_dwordx4 %s, v%d, %s, 0 offen\nbuffer_load_dwordx4 %s, v%d, %s, s%d offen" % (sT1, vr(RES, 4), vOUT, srd(SX), vr(RES + 4, 4), vOUT, srd(SX), sT1)))
    S.spread(L("""
    v_bfe_u32 v8, v{L}, 3, 2
    v_mul_u32_u24 v8, {P}, v8
    v_and_b32 v9, 7, v{L}
    v_lshl_add_u32 v8, v9, 8, v8
    v_add_u32 v8, s{l2k}, v8
    v_lshrrev_b32 v10, 5, v{L}
    v_xor_b32 v10, v10, v9
    v_lshl_add_u32 v0, v10, 4, v8
    v_xor_b32 v11, 2, v10
    v_lshl_add_u32 v1, v11, 4, v8
    v_xor_b32 v11, 4, v10
    v_lshl_add_u32 v2, v11, 4, v8
    v_xor_b32 v11, 6, v10
    v_lshl_add_u32 v3, v11, 4, v8
    v_lshrrev_b32 v8, 3, v{L}
    v_and_b32 v10, 3, v{L}
    v_lshlrev_b32 v10, 1, v10
    v_xor_b32 v10, v10, v8
    v_bfe_u32 v11, v{L}, 2, 1
    v_lshlrev_b32 v11, 7, v11
    v_lshl_add_u32 v11, v8, 8, v11
    v_mov_b32 v9, s{wv}
    v_mul_u32_u24 v9, {P2}, v9
    v_add_u32 v11, v11, v9
    v_lshl_add_u32 v4, v10, 4, v11
    v_xor_b32 v10, 1, v10
    v_lshl_add_u32 v5, v10, 4, v11
    """.format(L=vL, P=PITCH, P2=2 * PITCH, l2k=sL2K, wv=sWV)), rb_ + 2, rb_ + 14)
    if cfg.stamps == 2:
        pts = [("b%d" % cc, bb(cc)) for cc in range(24)] + [("s%d" % n, sl_beat[n]) for n in range(0, 37) if n not in (34, 35)]
        prev = ("iss", 0)
        for k, (nm, b) in enumerate(pts):
            for x in (prev[0], nm):
                if x not in stamp_names: stamp_names.append(x)
            cur = sST + 2 * ((k + 1) & 1); old = sST + 2 * (k & 1)
            rd = I("v_writelane_b32 v%d, s%d, %d" % (vSTAMP, old, stamp_names.index(prev[0]) + 2))
            mt = I("s_memtime s[%d:%d]" % (cur, cur + 1))
            if nm[0] == "b":
                pre = S.beats[b]["pre"]; pre.insert(len(pre) - 1, rd); pre.append(mt)
            else: S.beats[b]["pre"] = [rd, mt] + S.beats[b]["pre"]
            prev = (nm, b)
        last_stamp = I("v_writelane_b32 v%d, s%d, %d" % (vSTAMP, cur, stamp_names.index(prev[0]) + 2))
    if cfg.stamps == True:
        for nm, b in (("p1", sp(32)), ("p2", sp(64)), ("p3", sl_beat[0]), ("s8", sl_beat[8]), ("s16", sl_beat[16]), ("s20", sl_beat[20]), ("s28", sl_beat[28]), ("s36", sl_beat[36]),
                      ("c1", sp(4)), ("c2", sp(8)), ("c4", sp(16))):
            S.put(b, stamp(nm), pre=True)

    pro = entry_x(item_dma)
    n_common = len(pro)
    if A:
        pro += L("s_lshl_b32 s{t0}, s{i}, 7\ns_add_u32 s{t0}, s{t0}, 1024".format(t0=sT0, i=sI))
        pro += wdma_addr(WQD, 3072, sT0)
    else:
        pro += L("s_mul_i32 s{t0}, s{q}, 896\ns_lshl_b32 s{t1}, s{ab}, 8\ns_add_u32 s{t0}, s{t0}, s{t1}".format(t0=sT0, t1=sT1, q=sQ, ab=sAB))
        pro += wdma_addr(WGD, 3584, sT0)
    pro += flat(item_dma(("w", 0, 0))) + stamp("iw0")
    pro += entry_rest()
    for c in range(1, cfg.npro):
        pro += flat(item_dma(("x", c))) + flat(item_dma(("w", 0, c))) + stamp("iw%d" % c)
    if cfg.wpf0: pro += w_touch(cfg.wpf0, 102)
    pro += stamp("iss")
    if cfg.stamps == 2: pro += [I("s_memtime s[%d:%d]" % (sST, sST + 1))]
    pro += [I("s_branch L_main%s" % typ), I("L_main%s:" % typ)]
    if cfg.codepf: pro += code_touch()
    pro += early_setup() + flat(addr_wfull(WR1, 2, A, A))
    pro += [Wait("x0"), Wait("w0_0"), I("s_barrier")]
    pro += stamp("data")
    pro += x_reads(0) + w_reads(0, 0) + w_reads(0, 1)

    tail = []
    for tb in range(2):
        for cb in range(2):
            for r4 in range(4):
                tail += L("ds_write_b128 v%d, %s offset:%d" % (r4, vr(ACC2[2 * cb + tb] + 4 * r4, 4), 128 * cb + 4 * PITCH * tb))
    tail += [Wait("lgkm0"), I("s_barrier")]
    for i in range(2):
        for e in range(2):
            for w in range(4):
                tail += L("ds_read_b128 %s, v%d offset:%d" % (vr(16 + 32 * i + 16 * e + 4 * w, 4), 4 + e, 2048 * w + PITCH * i))
    for i in range(2):
        for e in range(2):
            b = 16 + 32 * i + 16 * e
            for j in range(4):
                x = RES + 4 * i + 2 * e + j // 2
                tail += L("v_add_f32 v%d, v%d, v%d\nv_add_f32 v%d, v%d, v%d" % (b + j, b + j, b + 4 + j, b + 8 + j, b + 8 + j, b + 12 + j))
                tail += L(("v_and_b32 v%d, 0xffff0000, v%d" if j & 1 else "v_lshlrev_b32 v%d, 16, v%d") % (b + 4 + j, x))
                tail += L("v_add_f32 v%d, v%d, v%d\nv_add_f32 v%d, v%d, v%d" % (b + j, b + j, b + 8 + j, b + j, b + j, b + 4 + j))
            tail += L("v_cvt_pk_bf16_f32 v%d, v%d, v%d\nv_cvt_pk_bf16_f32 v%d, v%d, v%d" % (8 + 4 * i + 2 * e, b, b + 1, 9 + 4 * i + 2 * e, b + 2, b + 3))
        tail += L("s_mov_b32 s%d, %d\nbuffer_store_dwordx4 %s, v%d, %s, s%d offen" % (sT1, 8192 * i, vr(8 + 4 * i, 4), vOUT, srd(SOUT), sT1) + " sc1")
    if cfg.stamps:
        tail += stamp("end")
        if cfg.stamps == 2:
            if "end" not in stamp_names: stamp_names.append("end")
            tail += [last_stamp, I("s_memtime s[%d:%d]" % (sST, sST + 1)), I("v_writelane_b32 v%d, s%d, %d" % (vSTAMP, sST, stamp_names.index("end") + 2))]
        tail += L("""
        s_memrealtime s[{a}:{b}]
        v_writelane_b32 v{st}, s{a}, 1
        s_lshl_b32 s{t0}, s2, 2
        s_add_u32 s{t0}, s{t0}, s{wv}
        s_lshl_b32 s{t0}, s{t0}, 8
        s_add_u32 s{t0}, s{t0}, {o}
        v_lshl_add_u32 v0, v{L}, 2, s{t0}
        buffer_store_dword v{st}, v0, {sr}, 0 offen
        """.format(a=sST, b=sST + 1, st=vSTAMP, t0=sT0, wv=sWV, o=WS_ST, L=vL, sr=srd(SW)))
    if cfg.dbgout:
        ix = lambda n: stamp_names.index(n) + 2
        t = """
        v_readlane_b32 s56, v{st}, 0
        v_readlane_b32 s57, v{st}, 1
        v_readlane_b32 s58, v{st}, {iss}
        s_nop 4
        v_mov_b32 v2, {oob}
        v_mov_b32 v1, 0
        v_writelane_b32 v2, 32, 0
        v_writelane_b32 v2, 40, 1
        v_writelane_b32 v2, 36, 2
        v_writelane_b32 v1, s57, 0
        v_writelane_b32 v1, s56, 1
        s_not_b32 s59, s56
        v_writelane_b32 v1, s59, 2
        buffer_atomic_umax v1, v2, {sd}, 0 offen
        s_sub_u32 s57, s57, s56
        v_mov_b32 v3, 0
        v_writelane_b32 v3, s57, 0
        """.format(st=vSTAMP, iss=ix("iss"), oob=OOB, sd=srd(SDBG))
        for k, nm in enumerate(("b0", "b3", "b7", "b15", "s0", "s28", "end")):
            t += "v_readlane_b32 s59, v%d, %d\ns_nop 4\ns_sub_u32 s59, s59, s58\nv_writelane_b32 v3, s59, %d\n" % (vSTAMP, ix(nm), k + 1)
        t += """
        v_lshlrev_b32 v2, 2, v{L}
        v_mov_b32 v4, {oob}
        v_cmp_gt_u32 vcc, 8, v{L}
        v_cndmask_b32 v2, v4, v2, vcc
        s_or_b32 s59, s2, s{wv}
        s_cmp_eq_u32 s59, 0
        s_cselect_b32 s59, 0, {oob}
        buffer_store_dword v3, v2, {sd}, s59 offen
        """.format(L=vL, oob=OOB, wv=sWV, sd=srd(SDBG))
        tail += L(t)
    tail += L("s_endpgm")
    est = sum(max(bt["period"], S.load(i)) for i, bt in enumerate(S.beats[:sl_beat[0]]))
    print("  P1 issue-model cycles:", est, " P2:", sum(max(32, S.load(i)) for i in range(sl_beat[0], sl_beat[36])))
    return n_common, pro + S.flat() + tail

def code_touch():
    ins = L("""
    s_getpc_b64 s[{a}:{b}]
    s_and_b32 s{a}, s{a}, 0xffffff00
    s_bfe_u32 s{t0}, s2, 0x40003
    s_lshl_b32 s{t0}, s{t0}, 2
    s_add_u32 s{t0}, s{t0}, s{wv}
    s_lshl_b32 s{t0}, s{t0}, 9
    v_and_b32 v{x}, 3, v{L}
    v_lshl_add_u32 v{x}, v{x}, 7, s{t0}
    v_min_u32 v{x}, {lim}, v{x}
    global_load_dword v{y}, v{x}, s[{a}:{b}]
    """.format(a=sM1, b=sM1 + 1, t0=sT0, wv=sWV, x=100, y=101, L=vL, lim=cfg.code_lim))
    return ins

def w_touch(which, d0):
    s = "s_lshl_b32 s{t0}, s2, 2\ns_add_u32 s{t0}, s{t0}, s{wv}\n".format(t0=sT0, wv=sWV)
    last = None
    for k, (sr, n) in enumerate(which):
        if n != last:
            s += "s_mul_i32 s{t1}, s{t0}, {b}\nv_min_u32 v{a}, {m}, v{L}\nv_lshl_add_u32 v{a}, v{a}, 7, s{t1}\n".format(t0=sT0, t1=sT1, b=128 * n, a=d0, m=n - 1, L=vL)
            last = n
        s += "buffer_load_dword v%d, v%d, %s, 0 offen\n" % (d0 + 1 + k, d0, srd(sr))
    return L(s)

def w2_touch(t):
    out = []
    out.append(L("""
    s_and_b32 s{t0}, s{tt}, 3
    s_mul_i32 s{t1}, s{t0}, {a}
    s_add_u32 s{t1}, s{t1}, s{wd}
    s_lshl_b32 s{t0}, s{ct}, 7
    s_add_u32 s{t1}, s{t1}, s{t0}
    s_add_u32 s{t1}, s{t1}, {b}
    v_min_u32 v{x}, 47, v{L}
    v_lshl_add_u32 v{x}, v{x}, 10, s{t1}
    buffer_load_dword v{x}, v{x}, {d}, 0 offen
    """.format(t0=sT0, t1=sT1, tt=sTT, ct=sCT, wd=sWDB, a=48 * 1024, b=256 * 1024, x=t, L=vL, d=srd(SD))))
    out.append(L("""
    s_and_b32 s{t0}, s{tt}, 3
    s_lshl_b32 s{t1}, s{t0}, 15
    s_add_u32 s{t1}, s{t1}, s{wo}
    s_lshl_b32 s{t0}, s{ct}, 7
    s_add_u32 s{t1}, s{t1}, s{t0}
    v_and_b32 v{x}, 31, v{L}
    v_lshl_add_u32 v{x}, v{x}, 10, s{t1}
    buffer_load_dword v{x}, v{x}, {o}, 0 offen
    """.format(t0=sT0, t1=sT1, tt=sTT, ct=sCT, wo=sWOB, x=t + 1, L=vL, o=srd(SO))))
    return out

def flat(x):
    o = []
    for y in x: o += y if isinstance(y, list) else [y]
    return o

def groups(ins):
    out = []; cur = []
    tmp = {"s%d" % sT0, "s%d" % sT1, "vcc", "scc"}
    for k, x in enumerate(ins):
        cur.append(x)
        live = set()
        written = {r for y in ins[:k + 1] for r in y.wr} & tmp
        seen = set()
        for y in ins[k + 1:]:
            live |= (set(y.rd) & written) - seen
            seen |= set(y.wr)
        if not live: out.append(cur); cur = []
    if cur: out.append(cur)
    return out

def late_setup(A):
    ins = []
    if A:
        ins += L("s_mul_i32 s{t0}, s{q}, 896\ns_lshl_b32 s{t1}, s{ab}, 7\ns_add_u32 s{t0}, s{t0}, s{t1}\ns_add_u32 s{t0}, s{t0}, 512".format(t0=sT0, t1=sT1, q=sQ, ab=sAB))
        ins += wdma_addr(WGD, 3584, sT0)
    ins += clear_store(A) + common_setup() + wphi_setup(A) + flat(addr_cs(A))
    if A:
        ins += L("""
        v_lshrrev_b32 v{a}, 2, v{L}
        v_mul_u32_u24 v{a}, 3584, v{a}
        v_and_b32 v{b}, 3, v{L}
        v_lshl_add_u32 v{a}, v{b}, 4, v{a}
        s_mul_i32 s{t0}, s{q}, 896
        s_lshl_b32 s{t1}, s{ab}, 6
        s_add_u32 s{t0}, s{t0}, s{t1}
        s_add_u32 s{t0}, s{t0}, 768
        s_mul_i32 s{t1}, s{wv}, {w}
        s_add_u32 s{t0}, s{t0}, s{t1}
        v_add_u32 v{d}, s{t0}, v{a}
        s_lshl_b32 s{t0}, s{ab}, 1
        s_add_u32 s{t0}, s{t0}, s{gr}
        s_sub_u32 s{h2}, 24, s{t0}
        s_lshl_b32 s{h2}, s{h2}, 11
        """.format(t0=sT0, t1=sT1, q=sQ, ab=sAB, wv=sWV, gr=sGR, w=16 * 3584, a=TMP, b=TMP + 1, d=WHD, L=vL, h2=sH2))
        ins += att_setup()
    else:
        ins += L("s_lshl_b32 s{t0}, s{i}, 7".format(t0=sT0, i=sI))
        ins += wdma_addr(WQD, 3072, sT0)
        ins += o_setup()
    return groups(ins)

def wdma_addr(dst, stride, scol):
    return L("""
    s_mul_i32 s{t1}, s{wv}, {w}
    s_add_u32 s{t1}, s{t1}, s{c}
    v_lshrrev_b32 v{a}, 3, v{L}
    v_mul_u32_u24 v{a}, {st}, v{a}
    v_bfe_u32 v{b}, v{L}, 4, 1
    v_lshlrev_b32 v{b}, 2, v{b}
    v_xor_b32 v{b}, v{b}, v{L}
    v_and_b32 v{b}, 7, v{b}
    v_lshl_add_u32 v{a}, v{b}, 4, v{a}
    v_add_u32 v{d}, s{t1}, v{a}
    v_add_u32 v{d1}, {nx}, v{d}
    """.format(t1=sT1, wv=sWV, w=16 * stride, c=scol, a=TMP, b=TMP + 1, L=vL, st=stride, d=dst, d1=dst + 1, nx=8 * stride - 1024))

def clear_store(A):
    z = TMP + 4
    s = """
    s_lshl_b32 s{t0}, s{rb}, 1
    s_add_u32 s{t0}, s{t0}, s{th}
    s_lshl_b32 s{t1}, s{t0}, 2
    s_add_u32 s{t1}, s{t1}, s{q}
    s_lshl_b32 s{t1}, s{t1}, 4
    s_add_u32 s{t1}, s{t1}, s{t4}
    s_lshl_b32 s{t1}, s{t1}, 1
    s_add_u32 s{t1}, s{t1}, s{gr}
    s_lshl_b32 s{t1}, s{t1}, 2
    s_add_u32 s{t1}, s{t1}, {fl}
    v_mov_b32 v{f}, {oob}
    v_writelane_b32 v{f}, s{t1}, 0
    v_mov_b32 v{z}, 0
    buffer_store_dword v{z}, v{f}, {sr}, 0 offen sc1
    s_lshl_b32 s{t0}, s{i}, 2
    s_lshl_b32 s{t1}, s{gr}, 1
    s_add_u32 s{t0}, s{t0}, s{t1}
    s_add_u32 s{t0}, s{t0}, s{th}
    """.format(t0=sT0, t1=sT1, rb=sRB, th=sTH, q=sQ, t4=sT4, gr=sGR, fl=WS_FL, f=vFLG, oob=OOB, z=z, sr=srd(SW), i=sI)
    if A:
        s += """
        s_lshl_b32 s{t0}, s{t0}, 4
        s_add_u32 s{t0}, s{t0}, s{rb}
        s_lshl_b32 s{t0}, s{t0}, 12
        s_add_u32 s{t0}, s{t0}, {kvp}
        v_lshl_add_u32 v{d}, v{L}, 4, s{t0}
        """.format(t0=sT0, rb=sRB, kvp=WS_KVP, d=vKVA, L=vL)
        for j in range(4): s += "v_mov_b32 v%d, -1\n" % (z + j)
        ins = L(s)
        for j in range(4): ins += L("buffer_store_dwordx4 %s, v%d, %s, 0 offen offset:%d sc1" % (vr(z, 4), vKVA, srd(SW), 1024 * j), tag="clr" if j == 3 else None)
        return ins
    s += """
    s_lshl_b32 s{t1}, s{t0}, 16
    s_lshl_b32 s{t0}, s{t0}, 12
    s_lshl_b32 s{sp}, s{rb}, 8
    s_add_u32 s{t0}, s{t0}, s{sp}
    s_add_u32 s{t1}, s{t1}, s{sp}
    s_add_u32 s{t0}, s{t0}, {kvf}
    s_add_u32 s{t1}, s{t1}, {kvp}
    v_and_b32 v{a}, 15, v{L}
    v_lshlrev_b32 v{a}, 4, v{a}
    v_lshrrev_b32 v{b}, 4, v{L}
    v_lshl_add_u32 v{rs}, v{b}, 2, v{a}
    v_add_u32 v{rs}, s{t0}, v{rs}
    v_lshl_add_u32 v{rl}, v{b}, 12, v{a}
    v_add_u32 v{rl}, s{t1}, v{rl}
    v_mov_b32 v{z}, -1
    """.format(t0=sT0, t1=sT1, sp=sH2, rb=sRB, kvf=WS_KVF, kvp=WS_KVP, a=TMP, b=TMP + 1, L=vL, rs=vKRS, rl=vKRL, z=z + 1)
    return L(s) + L("buffer_store_dword v%d, v%d, %s, 0 offen sc1" % (z + 1, vKRS, srd(SW)), tag="clr")

def early_setup():
    a, b, c = TMP, TMP + 1, TMP + 2
    s = """
    v_lshrrev_b32 v{a}, 5, v{L}
    v_bfe_u32 v{b}, v{L}, 1, 3
    v_xor_b32 v{a}, v{a}, v{b}
    v_lshlrev_b32 v{a}, 4, v{a}
    v_and_b32 v{b}, 31, v{L}
    v_lshl_add_u32 v{a}, v{b}, 7, v{a}
    s_lshl_b32 s{t0}, s{s}, 6
    v_xor_b32 v{a}, s{t0}, v{a}
    s_mul_i32 s{t1}, s{th}, {P}
    v_add_u32 v{x0}, s{t1}, v{a}
    v_xor_b32 v{b}, 32, v{a}
    v_add_u32 v{x1}, s{t1}, v{b}
    v_xor_b32 v{b}, 64, v{a}
    v_add_u32 v{x2}, s{t1}, v{b}
    v_xor_b32 v{b}, 0x60, v{a}
    v_add_u32 v{x3}, s{t1}, v{b}
    v_and_b32 v{a}, 31, v{L}
    v_mov_b32 v{b}, 0x3f803f80
    v_cmp_eq_u32 vcc, 0, v{a}
    v_cndmask_b32 v{s0}, 0, v{b}, vcc
    v_cmp_eq_u32 vcc, 20, v{a}
    v_cndmask_b32 v{s0}, v{s0}, v{b}, vcc
    v_cmp_eq_u32 vcc, 8, v{a}
    v_cndmask_b32 v{s2}, 0, v{b}, vcc
    v_cmp_eq_u32 vcc, 28, v{a}
    v_cndmask_b32 v{s2}, v{s2}, v{b}, vcc
    """.format(a=a, b=b, L=vL, t0=sT0, t1=sT1, s=sS, th=sTH, P=PITCH, x0=XR, x1=XR + 1, x2=XR + 2, x3=XR + 3, s0=SEL01, s2=SEL23)
    for j in range(1, 4): s += "v_mov_b32 v%d, v%d\nv_mov_b32 v%d, v%d\n" % (SEL01 + j, SEL01, SEL23 + j, SEL23)
    return L(s)

def common_setup():
    a, b, c = TMP, TMP + 1, TMP + 2
    s = "s_mov_b32 s%d, 0\ns_mov_b32 s%d, -1\nv_mov_b32 v%d, 0\nv_mov_b32 v%d, 0\n" % (sMH, sMH + 1, CA + 2, CA + 3)
    s += """
    v_and_b32 v{a}, 3, v{L}
    v_cmp_eq_u32 s[{m1}:{m1b}], 1, v{a}
    v_cmp_eq_u32 s[{m2}:{m2b}], 2, v{a}
    v_cmp_eq_u32 s[{m3}:{m3b}], 3, v{a}
    v_and_b32 v{a}, 4, v{L}
    v_cmp_eq_u32 s[{mb}:{mbb}], 4, v{a}
    s_mul_i32 s{wd}, s{wv}, {wdv}
    s_lshl_b32 s{wo}, s{wv}, 17
    s_mov_b32 s{c2}, 0x3b000000
    """.format(a=a, L=vL, m1=sM1, m1b=sM1 + 1, m2=sM2, m2b=sM2 + 1, m3=sM3, m3b=sM3 + 1, mb=sMB, mbb=sMB + 1,
               wd=sWDB, wo=sWOB, wv=sWV, wdv=448 * 1024, c2=sC2)
    s += """
    s_lshl_b32 s{t0}, s{rb}, 1
    s_add_u32 s{t0}, s{t0}, s{th}
    s_mul_i32 s{t0}, s{t0}, 144
    s_mul_i32 s{t1}, s{q}, 36
    s_add_u32 s{t0}, s{t0}, s{t1}
    s_lshl_b32 s{t1}, s{ab}, 2
    s_add_u32 s{t0}, s{t0}, s{t1}
    s_lshl_b32 s{t1}, s{gr}, 1
    s_add_u32 s{t0}, s{t0}, s{t1}
    s_lshl_b32 s{t0}, s{t0}, 11
    v_lshl_add_u32 v{h}, v{L}, 4, s{t0}
    v_lshrrev_b32 v{a}, 3, v{L}
    v_lshlrev_b32 v{a}, 10, v{a}
    v_bfe_u32 v{b}, v{L}, 4, 1
    v_lshlrev_b32 v{b}, 2, v{b}
    v_xor_b32 v{b}, v{b}, v{L}
    v_and_b32 v{b}, 7, v{b}
    v_lshl_add_u32 v{a}, v{b}, 4, v{a}
    s_lshl_b32 s{t0}, s{ct}, 7
    v_add_u32 v{w}, s{t0}, v{a}
    v_add_u32 v{w1}, 7168, v{w}
    s_and_b32 s{t0}, s2, {hm}
    s_lshl_b32 s{t0}, s{t0}, 2
    s_add_u32 s{t0}, s{t0}, {ho}
    s_cmp_eq_u32 s{wv}, 0
    s_cselect_b32 s{t0}, s{t0}, {oob}
    v_mov_b32 v{hs}, {oob}
    v_writelane_b32 v{hs}, s{t0}, 0
    """.format(t0=sT0, t1=sT1, rb=sRB, th=sTH, q=sQ, ab=sAB, gr=sGR, h=vHST, L=vL, a=a, b=b, ct=sCT, w=W2D, w1=W2D + 1, wv=sWV, oob=OOB, hs=KVD, hm=31 if cfg.dbgout else 63, ho=64 if cfg.dbgout else 0)
    return L(s)

def att_setup():
    a, b, c = TMP, TMP + 1, TMP + 2
    s = """
    s_mul_i32 s{t0}, s{wv}, {wsz}
    s_add_u32 s{t0}, s{t0}, {wreg}
    v_and_b32 v{a}, 31, v{L}
    v_lshrrev_b32 v{b}, 5, v{L}
    v_mul_u32_u24 v{c}, 72, v{a}
    v_lshl_add_u32 v{c}, v{b}, 3, v{c}
    v_add_u32 v{pw}, s{t0}, v{c}
    v_mul_u32_u24 v{c}, 104, v{a}
    v_lshl_add_u32 v{c}, v{b}, 3, v{c}
    s_add_u32 s{t1}, s{t0}, {voff}
    v_add_u32 v{vw}, s{t1}, v{c}
    v_lshl_add_u32 v{c}, v{b}, 3, v{vw}
    v_mov_b32 v{o0}, 0x3f803f80
    v_mov_b32 v{o1}, 0x3f803f80
    ds_write_b64 v{c}, v[{o0}:{o1}] offset:64
    ds_write_b64 v{c}, v[{o0}:{o1}] offset:72
    v_bfe_u32 v{a}, v{L}, 2, 2
    v_lshl_add_u32 v{a}, v{b}, 3, v{a}
    v_and_b32 v{b}, 3, v{L}
    v_mul_u32_u24 v{c}, 72, v{a}
    v_lshl_add_u32 v{c}, v{b}, 3, v{c}
    v_bfe_u32 v{o0}, v{L}, 4, 1
    v_lshl_add_u32 v{c}, v{o0}, 5, v{c}
    v_add_u32 v{pr}, s{t0}, v{c}
    v_mul_u32_u24 v{c}, 104, v{a}
    v_lshl_add_u32 v{c}, v{b}, 3, v{c}
    v_add_u32 v{c}, s{t1}, v{c}
    v_lshl_add_u32 v{v0}, v{o0}, 6, v{c}
    v_add_u32 v{o0}, 1, v{o0}
    v_lshl_add_u32 v{v1}, v{o0}, 5, v{c}
    """.format(t0=sT0, t1=sT1, wv=sWV, wsz=WREG_SZ, wreg=WREG, a=a, b=b, c=c, L=vL, pw=vPW, vw=vVW, voff=VOFF, o0=TMP + 8, o1=TMP + 9,
               pr=vPR, v0=vVR0, v1=vVR1, i=sI, gr=sGR, th=sTH)
    return L(s)

def o_setup():
    return L("""
    s_lshl_b32 s{t0}, s{i}, 1
    s_add_u32 s{t0}, s{t0}, s{gr}
    s_lshl_b32 s{t0}, s{t0}, 13
    s_add_u32 s{t0}, s{t0}, {kvf}
    v_lshl_add_u32 v{d}, v{L}, 4, s{t0}
    """.format(t0=sT0, i=sI, gr=sGR, kvf=WS_KVF, d=vKVL, L=vL))

def wphi_setup(A):
    a, b = TMP, TMP + 1; t = 64 + 16
    s = """
    s_lshl_b32 s{t0}, s{i}, 2
    s_lshl_b32 s{t1}, s{gr}, 1
    s_add_u32 s{t0}, s{t0}, s{t1}
    s_lshl_b32 s{t0}, s{t0}, 9
    v_bfe_u32 v{a}, v{L}, 4, 1
    """.format(t0=sT0, t1=sT1, i=sI, gr=sGR, a=a, L=vL)
    if A: s += "v_xor_b32 v%d, s%d, v%d\n" % (a, sTH, a)
    s += """
    v_lshlrev_b32 v{a}, 9, v{a}
    v_lshrrev_b32 v{b}, 5, v{L}
    v_lshl_add_u32 v{a}, v{b}, 7, v{a}
    v_and_b32 v{b}, 15, v{L}
    v_lshl_add_u32 v{a}, v{b}, 1, v{a}
    v_add_u32 v{a}, s{t0}, v{a}
    """.format(a=a, b=b, L=vL, t0=sT0)
    for j in range(8):
        s += "buffer_load_ushort v%d, v%d, %s, 0 offen offset:%d\n" % (t + j, a, srd(SPHI), 32 * ((j & 3) + 8 * (j >> 2)))
    return L(s)

def wphi_finish():
    t = 64 + 16
    out = L("v_and_b32 v%d, 16, v%d\nv_cmp_eq_u32 vcc, 0, v%d" % (TMP + 8, vL, TMP + 8))
    g = []
    for j in range(4):
        g += L("v_lshl_or_b32 v{x}, v{y}, 16, v{x}\nv_cndmask_b32 v{a0}, 0, v{x}, vcc\nv_cndmask_b32 v{a1}, v{x}, 0, vcc".format(x=t + 2 * j, y=t + 2 * j + 1, a0=WPHI + j, a1=WPHI + 4 + j))
    return out + g

def rot_regs(c):
    return "s_add_u32 s{t1}, s{r}, {c}\ns_and_b32 s{t1}, s{t1}, 7\ns_lshl_b32 s{kx}, s{t1}, 7\ns_mul_i32 s{kq}, s{t1}, {a}\ns_mul_i32 s{kg}, s{t1}, {b}\n".format(
        r=sSPIN, t1=sT1, c=c, kx=sKX + c, kq=sKQ + c, kg=sKG + c, a=64 * 3072, b=64 * 3584)

def srd_consts(lst):
    return "".join("s_mov_b32 s%d, 0x%x\ns_mov_b32 s%d, 0x20000\n" % (reg + 2, sz, reg + 3) for reg, sz in lst)

def entry_x(item_dma):
    s = """
    s_cmp_ge_u32 s2, 256
    s_cbranch_scc1 L_exit
    """
    for reg, off in ((SX, 0), (SQ, 8), (SG, 40), (SU, 48), (SW, 80), (SPHI, 16), (SO, 24), (SD, 56), (SOUT, 64), (SDBG, 72)):
        s += "s_load_dwordx2 s[%d:%d], s[0:1], %d\n" % (reg, reg + 1, off)
    if cfg.stamps:
        s += "s_memrealtime s[%d:%d]\ns_memtime s[%d:%d]\nv_mov_b32 v%d, 0\n" % (sST, sST + 1, sST + 2, sST + 3, vSTAMP)
    s += """
    v_lshrrev_b32 v1, 6, v0
    v_and_b32 v{L}, 63, v0
    v_readfirstlane_b32 s{wv}, v1
    s_and_b32 s{xcd}, s2, 7
    s_lshr_b32 s{idx}, s2, 3
    s_and_b32 s{rb}, s{xcd}, 1
    s_lshl_b32 s{rb}, s{rb}, 3
    s_and_b32 s{t0}, s{idx}, 7
    s_add_u32 s{rb}, s{rb}, s{t0}
    s_lshr_b32 s{q}, s{xcd}, 1
    s_lshr_b32 s{t4}, s{idx}, 3
    s_and_b32 s{ab}, s{t4}, 1
    s_lshl_b32 s{i}, s{q}, 1
    s_add_u32 s{i}, s{i}, s{ab}
    s_lshl_b32 s{t1}, s{t4}, 1
    s_add_u32 s{r}, s{t0}, s{t1}
    s_and_b32 s{r}, s{r}, {rm}
    s_and_b32 s{th}, s{wv}, 1
    s_lshr_b32 s{gr}, s{wv}, 1
    s_xor_b32 s{s}, s{th}, s{gr}
    s_lshl_b32 s{l2k}, s{wv}, 11
    s_mul_i32 s{lx}, s{gr}, {P}
    s_lshl_b32 s{t1}, s{th}, 12
    s_add_u32 s{lx}, s{lx}, s{t1}
    """.format(L=vL, wv=sWV, xcd=sXCD, idx=sIDX, rb=sRB, t0=sT0, t1=sT1, q=sQ, t4=sT4, ab=sAB, i=sI, th=sTH, gr=sGR, s=sS, l2k=sL2K, lx=sLX, P=PITCH,
               r=sSPIN, rm=(7 if cfg.rot is True else int(cfg.rot)))
    s += rot_regs(0)
    s += """
    s_lshl_b32 s{t0}, s{rb}, 2
    s_add_u32 s{t0}, s{t0}, s{wv}
    s_lshl_b32 s{t0}, s{t0}, 15
    v_lshrrev_b32 v2, 3, v{L}
    v_lshlrev_b32 v2, 10, v2
    v_add_u32 v2, s{t0}, v2
    v_lshrrev_b32 v3, 4, v{L}
    v_xor_b32 v3, v3, v{L}
    v_and_b32 v3, 7, v3
    v_lshl_add_u32 v{x0}, v3, 4, v2
    v_add_u32 v{x2}, {d2}, v{x0}
    v_xor_b32 v3, 4, v3
    v_lshl_add_u32 v{x1}, v3, 4, v2
    v_add_u32 v{x1}, 7168, v{x1}
    v_add_u32 v{x3}, {d2}, v{x1}
    """.format(t0=sT0, rb=sRB, wv=sWV, L=vL, x0=XD, x1=XD + 1, x2=XD + 2, x3=XD + 3, d2=2 * 7168)
    s += srd_consts(((SX, 0x200000), (SQ, 0x180000), (SG, 0x1C0000), (SU, 0x1C0000)))
    s += "s_waitcnt lgkmcnt(0)\n"
    if cfg.stamps: s += "v_writelane_b32 v%d, s%d, 0\nv_writelane_b32 v%d, s%d, 63\n" % (vSTAMP, sST, vSTAMP, sST + 2)
    ins = L(s)
    for x in ins:
        if x.kind == "smem": x.nowait = True
    ins += stamp("karg") + flat(item_dma(("x", 0)))
    ins += L("s_cmp_ge_u32 s%d, 2\ns_cbranch_scc1 L_proB" % sT4)
    return ins

def entry_rest():
    s = "".join(rot_regs(c) for c in range(1, 8))
    s += """
    s_lshl_b32 s{l1k}, s{wv}, 10
    s_lshl_b32 s{tt}, s{xcd}, 2
    s_and_b32 s{t0}, s{idx}, 3
    s_add_u32 s{tt}, s{tt}, s{t0}
    s_lshr_b32 s{ct}, s{idx}, 2
    """.format(t0=sT0, wv=sWV, tt=sTT, xcd=sXCD, idx=sIDX, ct=sCT, l1k=sL1K)
    s += srd_consts(((SD, 0x1C0000), (SO, 0x80000), (SW, 0x10000000), (SOUT, 0x200000), (SDBG, 256), (SPHI, 16384)))
    return L(s)

def defaults():
    cfg.code_lim = 20480
    cfg.npro = 2; cfg.pace0 = 8; cfg.pace = [8, 8, 4]; cfg.p2pace = 1
    cfg.wpf0 = None; cfg.wpf = 4; cfg.wpf1 = [(SG, 14), (SU, 14), (SD, 14), (SQ, 12), (SO, 4)]; cfg.codepf = 1; cfg.w2pf = 44
    cfg.p2period = 72; cfg.rd_early = True; cfg.setup_end = 14
    cfg.a_att = 27; cfg.a_pub = 12; cfg.a_kvflag = 30; cfg.h1 = 18; cfg.a_h2 = 4
    cfg.b_h0 = 12; cfg.b_att = 22; cfg.b_ri = -8; cfg.b_rc = 0.1; cfg.b_li = 0.75
    cfg.flag_delay = 28; cfg.flag_delay2 = 14
    cfg.p0 = 10; cfg.poll_lead0 = 16; cfg.hstep0 = 5
    cfg.cpos = [0, 14, 24, 60, 84]; cfg.poll_lead = 8; cfg.hstep = 1

def generate(path):
    label_n[0] = 0
    import fw; fw.LOOSE = cfg.x_nodma or cfg.x_drop
    progs = {}; cut = {}
    for typ in "AB":
        nc, p = build_type(typ)
        mark = p[nc]
        if cfg.x_nodma:
            k0 = [i for i, x in enumerate(p) if getattr(x, "kind", "") == "barrier"][0]
            q = p[:k0]
            for x in p[k0:]:
                if getattr(x, "dma", False):
                    y = I("s_nop 0");
                    q.append(y)
                else: q.append(x)
            p = q
        if cfg.x_drop:
            q = []
            for x in p:
                t = getattr(x, "text", "")
                d = ("h" in cfg.x_drop and t.startswith("buffer_load_dwordx4 a[")) or \
                    ("s" in cfg.x_drop and t.startswith("buffer_store_dwordx4") and "s[28:31]" in t) or \
                    ("w" in cfg.x_drop and getattr(x, "dma", False) and ("s[20:23]" in t or "s[24:27]" in t)) or \
                    ("p" in cfg.x_drop and x.kind == "raw")
                q.append(I("s_nop 0") if d else x)
            p = q
        progs[typ] = finalize(p, typ)
        cut[typ] = (progs[typ].index(mark), [i for i, x in enumerate(progs[typ]) if x.kind == "label"][0])
    body = emit(progs["A"][:cut["A"][1]]) + "L_proB:\n" + emit(progs["B"][cut["B"][0]:cut["B"][1]]) + "L_exit:\n    s_endpgm\n" + \
           emit(progs["A"][cut["A"][1]:]) + emit(progs["B"][cut["B"][1]:])
    ref = open("parallel_sum__linear_kernel_hedgehog__glu_gated_bilinear__prompt.s.ref").read().split("\n")
    head = [x for x in ref if x.startswith(";") and "@launch" not in x and "Override" not in x and "grid=ceil" not in x]
    txt = "\n".join(head) + "\n; @launch grid=(256,1,1) block=(256,1,1) lds=%d\n" % LDS_BYTES
    txt += """.amdgcn_target "amdgcn-amd-amdhsa--gfx950"
.text
.globl {k}
.p2align 8
.type {k},@function
{k}:
""".format(k=KNAME) + body + """.section .rodata,"a"
.p2align 6
.amdhsa_kernel {k}
  .amdhsa_next_free_vgpr 512
  .amdhsa_next_free_sgpr 102
  .amdhsa_accum_offset 256
  .amdhsa_group_segment_fixed_size 0
  .amdhsa_kernarg_size 88
  .amdhsa_user_sgpr_count 2
  .amdhsa_user_sgpr_kernarg_segment_ptr 1
  .amdhsa_system_sgpr_workgroup_id_x 1
.end_amdhsa_kernel
""".format(k=KNAME)
    open(path, "w").write(txt)
    if cfg.stamps: open(path[:-2] + ".names", "w").write("\n".join(stamp_names))

if __name__ == "__main__":
    defaults()
    path = sys.argv[1]
    for kv in sys.argv[2:]:
        k, v = kv.split("=")
        setattr(cfg, k, eval(v))
    generate(path)
```

```python
import re

TRANS = ("v_exp_f32", "v_log_f32", "v_rcp_f32", "v_rsq_f32", "v_sqrt_f32")


def regs_of(tok):
    tok = tok.strip()
    neg = tok.lstrip("-")
    if neg.startswith("abs(") or neg.startswith("|"):
        neg = neg.replace("abs(", "").replace(")", "").replace("|", "")
    m = re.fullmatch(r"([vas])\[(\d+):(\d+)\]", neg)
    if m:
        return [m.group(1) + str(i) for i in range(int(m.group(2)), int(m.group(3)) + 1)]
    m = re.fullmatch(r"([vas])(\d+)", neg)
    if m:
        return [neg]
    if neg in ("vcc", "exec", "m0", "scc"):
        return [neg]
    return []


class I:
    def __init__(self, text, tag=None):
        self.text = text.strip()
        self.tag = tag
        self.rd, self.wr = [], []
        self.kind = None
        self.passes = 0
        self.srcc = []
        self.parse()

    def parse(self):
        t = self.text
        if t.endswith(":"):
            self.kind = "label"; self.cost = 0; self.op = "label"; return
        parts = t.split(None, 1)
        op = parts[0]
        self.op = op
        rest = parts[1] if len(parts) > 1 else ""
        ops = [o.strip() for o in rest.split(",")] if rest else []
        if ops:
            last = ops[-1].split()
            mods = last[1:]
            ops[-1] = last[0]
        else:
            mods = []
        self.mods = mods
        R = lambda k: [r for o in ops[k:] for r in regs_of(o)]
        self.cost = 4
        if op.startswith("v_mfma"):
            self.kind = "mfma"
            self.wr = regs_of(ops[0]); self.srca = regs_of(ops[1]); self.srcb = regs_of(ops[2]); self.srcc = regs_of(ops[3])
            self.rd = self.srca + self.srcb + self.srcc
            self.passes = 8 if "32x32x16" in op else 4 if "16x16x32" in op else 2
            self.cost = 8
        elif op.startswith("ds_read"):
            self.kind = "ds"; self.wr = regs_of(ops[0]); self.rd = R(1)
        elif op.startswith("ds_"):
            self.kind = "ds"; self.rd = R(0)
        elif op.startswith("buffer_load") and "lds" in mods:
            self.kind = "vm"; self.rd = R(0) + ["m0"]; self.dma = True
        elif op.startswith("buffer_load") or op.startswith("global_load"):
            self.kind = "vm"; self.wr = regs_of(ops[0]); self.rd = R(1)
        elif op.startswith("buffer_store") or op.startswith("buffer_atomic"):
            self.kind = "vm"; self.rd = R(0); self.data = regs_of(ops[0])
        elif op.startswith("s_load") or op in ("s_memtime", "s_memrealtime"):
            self.kind = "smem"; self.wr = regs_of(ops[0]); self.rd = R(1)
        elif op in ("s_waitcnt", "s_barrier", "s_nop", "s_endpgm", "s_sleep", "s_setprio"):
            self.kind = op[2:]
        elif op.startswith("s_cbranch") or op == "s_branch":
            self.kind = "branch"
            if "scc" in op: self.rd = ["scc"]
            if "vcc" in op: self.rd = ["vcc"]
            if "exec" in op: self.rd = ["exec"]
        elif op.startswith("s_cmp"):
            self.kind = "salu"; self.rd = R(0); self.wr = ["scc"]
        elif op.startswith("s_"):
            self.kind = "salu"; self.wr = regs_of(ops[0]); self.rd = R(1)
            if not op.startswith(("s_mov", "s_mul_i32", "s_getpc", "s_getreg", "s_cselect")): self.wr = self.wr + ["scc"]
            if op.startswith("s_cselect") or op.startswith("s_addc"): self.rd = self.rd + ["scc"]
        elif op.startswith("v_"):
            self.kind = "valu"
            self.wr = regs_of(ops[0]); self.rd = R(1)
            if op.startswith(("v_fmac", "v_dot2c", "v_writelane")): self.rd = self.rd + self.wr
            if op.startswith("v_permlane"):
                self.wr = regs_of(ops[0]) + regs_of(ops[1]); self.rd = list(self.wr)
            if op.split("_e")[0] in TRANS or op in TRANS:
                self.trans = True; self.cost = 8
        else:
            raise ValueError("cannot parse: " + t)

    def __repr__(self):
        return self.text


class Wait:
    def __init__(self, tag):
        self.tag = tag; self.cost = 2; self.kind = "pseudo_wait"


class Gap:
    def __init__(self, n):
        self.n = n


class Raw:
    def __init__(self, lines, rd=(), wr=()):
        self.lines = lines; self.kind = "raw"; self.cost = 4 * len(lines); self.rd = list(rd); self.wr = list(wr)


def L(text, tag=None):
    out = []
    for x in text.strip("\n").split("\n"):
        x = x.split(";")[0].strip()
        if x: out.append(I(x))
    if tag is not None: out[-1].tag = tag
    return out


class Sched:
    def __init__(self):
        self.beats = []

    def beat(self, main, period=32):
        self.beats.append(dict(pre=[], main=main, post=[], period=period))
        return len(self.beats) - 1

    @staticmethod
    def _cost(item):
        if isinstance(item, list): return sum(x.cost for x in item)
        return item.cost

    def load(self, b):
        bt = self.beats[b]
        return sum(self._cost(x) for x in bt["pre"] + bt["post"]) + (bt["main"].cost if bt["main"] is not None else 0)

    def put(self, b, item, pre=False):
        self.beats[b]["pre" if pre else "post"].append(item)

    def spread(self, items, b0, b1, name=""):
        n = b1 - b0
        total = sum(self._cost(x) for x in items if not isinstance(x, Gap))
        gaps = sum(x.n for x in items if isinstance(x, Gap))
        loads = [self.load(b) - self.beats[b]["period"] for b in range(b0, b1)]
        lo, hi = -64.0, 4096.0
        def run(level, place):
            b = 0; room = max(0.0, level - loads[0])
            last = 0
            for it in items:
                if isinstance(it, Gap):
                    b = min(n - 1, b + it.n)
                    room = min(room, 0) + max(0.0, level - loads[b])
                    continue
                c = self._cost(it)
                while room < min(c, 8) * 0.5 and b < n - 1:
                    b += 1; room = min(room, 0) + max(0.0, level - loads[b])
                if room < min(c, 8) * 0.5 and not place: return None
                if place: self.put(b0 + b, it)
                room -= c; last = b
            return last
        for _ in range(30):
            mid = (lo + hi) / 2
            if run(mid, False) is None: lo = mid
            else: hi = mid
        last = run(hi, True)
        if name: print("  spread %-10s cost %5d over beats %d..%d level %+.0f last %d" % (name, total, b0, b1, hi, b0 + last))
        return b0 + last

    def flat(self):
        out = []
        def add(x):
            if isinstance(x, list): out.extend(x)
            else: out.append(x)
        for bt in self.beats:
            for x in bt["pre"]: add(x)
            if bt["main"] is not None: add(bt["main"])
            for x in bt["post"]: add(x)
        return out


LOOSE = False
def insert_waits(prog):
    out = []
    vm_seq = 0; vm_done = 0
    ds_seq = 0; ds_done = 0
    pend = {}
    tags = {}
    sm_out = False
    maxvm = 0

    def need(kind, seq, w):
        if kind == "vm" and seq > vm_done: w["vm"] = max(w.get("vm", 0), seq)
        if kind == "ds" and seq > ds_done: w["ds"] = max(w.get("ds", 0), seq)
        if kind == "sm": w["sm"] = 1

    for ins in prog:
        w = {}
        if isinstance(ins, Wait):
            if ins.tag == "lgkm0": need("ds", ds_seq, w)
            elif ins.tag == "vm0": need("vm", vm_seq, w)
            else:
                if ins.tag in tags:
                    k, s = tags[ins.tag]; need(k, s, w)
                else: assert LOOSE, ins.tag
        else:
            for r in list(ins.rd) + list(ins.wr):
                if r in pend: need(pend[r][0], pend[r][1], w)
        if w:
            parts = []
            if "vm" in w:
                n = min(vm_seq - w["vm"], 63); parts.append("vmcnt(%d)" % n); vm_done = vm_seq - n
            if "sm" in w:
                parts.append("lgkmcnt(0)"); ds_done = ds_seq; sm_out = False
                for r in [r for r, v in pend.items() if v[0] == "sm"]: del pend[r]
            elif "ds" in w:
                n = min(ds_seq - w["ds"], 15); parts.append("lgkmcnt(%d)" % n); ds_done = ds_seq - n
            out.append(I("s_waitcnt " + " ".join(parts)))
            for r in [r for r, v in pend.items() if (v[0] == "vm" and v[1] <= vm_done) or (v[0] == "ds" and v[1] <= ds_done)]: del pend[r]
        if isinstance(ins, Wait): continue
        out.append(ins)
        if ins.kind == "vm":
            vm_seq += 1
            for r in ins.wr: pend[r] = ("vm", vm_seq)
            if ins.tag: tags[ins.tag] = ("vm", vm_seq)
            maxvm = max(maxvm, vm_seq - vm_done)
        elif ins.kind == "ds":
            ds_seq += 1
            for r in ins.wr: pend[r] = ("ds", ds_seq)
            if ins.tag: tags[ins.tag] = ("ds", ds_seq)
        elif ins.kind == "smem":
            if not getattr(ins, "nowait", False):
                for r in ins.wr: pend[r] = ("sm", 0)
    return out, maxvm


def states(ins):
    if ins.kind == "label": return 0
    if ins.kind == "nop": return int(ins.text.split()[1]) + 1
    if ins.kind == "raw": return 1
    return 1


def pad_hazards(prog):
    out = []
    nn = 0
    for ins in prog:
        needn = 0
        if ins.kind not in ("label", "nop", "waitcnt", "barrier"):
            rd = set(ins.rd); wr = set(ins.wr)
            dist = 0
            for p in reversed(out):
                if dist >= 20: break
                req = 0
                pw = set(p.wr) if p.kind not in ("label", "nop", "waitcnt", "barrier") else set()
                if p.kind == "valu":
                    vw = {r for r in pw if r[0] in "va" and r != "vcc"}
                    sw = pw - vw
                    if ins.kind == "mfma" and vw & rd: req = max(req, 2)
                    if ins.kind == "valu" and ins.op.startswith("v_permlane") and vw & rd: req = max(req, 2)
                    if ins.kind == "valu" and ins.op.startswith(("v_readfirstlane", "v_readlane")) and vw & rd: req = max(req, 1)
                    if getattr(p, "trans", False) and vw & rd: req = max(req, 1)
                    if "sdwa" in p.op and vw & (rd | wr): req = max(req, 1)
                    if sw & rd:
                        if ins.kind == "valu": req = max(req, 2)
                        elif ins.kind == "vm": req = max(req, 5)
                        elif ins.kind in ("salu", "branch", "raw"): req = max(req, 4)
                elif p.kind == "mfma":
                    k = {2: 0, 4: 1, 8: 2}[p.passes]
                    if ins.kind == "mfma":
                        if pw & set(ins.srcc):
                            if list(p.wr) == list(ins.srcc) and p.passes == ins.passes: req = max(req, [2, 0, 0][k])
                            else: req = max(req, [4, 6, 10][k])
                        if pw & (set(ins.srca) | set(ins.srcb)): req = max(req, [5, 8, 12][k])
                        if pw & wr and not (pw & set(ins.srcc)): req = max(req, [5, 8, 12][k])
                    else:
                        if pw & (rd | wr): req = max(req, [5, 8, 12][k])
                        if set(p.srcc) & wr: req = max(req, [1, 3, 7][k])
                elif p.kind == "salu":
                    if "m0" in pw and ins.kind == "vm" and "m0" in rd: req = max(req, 1)
                elif p.kind in ("vm", "ds"):
                    data = getattr(p, "data", None)
                    if p.kind == "ds" and not p.wr: data = p.rd[1:]
                    if data and len(data) >= 3 and set(data) & wr: req = max(req, 2)
                if req > dist: needn = max(needn, req - dist)
                dist += states(p)
        if needn:
            out.append(I("s_nop %d" % (needn - 1))); nn += needn
        out.append(ins)
    return out, nn


def emit(prog):
    lines = []
    for ins in prog:
        if ins.kind == "raw": lines += ["    " + x if not x.endswith(":") else x for x in ins.lines]
        elif ins.kind == "label": lines.append(ins.text)
        else: lines.append("    " + ins.text)
    return "\n".join(lines) + "\n"


def finalize(prog, name=""):
    p, maxvm = insert_waits(prog)
    q = []
    for x in p:
        if x.kind == "waitcnt" and q and q[-1].kind == "waitcnt":
            d = dict(re.findall(r"(\w+)\((\d+)\)", q[-1].text))
            for k, v in re.findall(r"(\w+)\((\d+)\)", x.text): d[k] = str(min(int(v), int(d.get(k, 99))))
            q[-1] = I("s_waitcnt " + " ".join("%s(%s)" % (k, d[k]) for k in ("vmcnt", "lgkmcnt") if k in d))
        else: q.append(x)
    p = q
    p, nn = pad_hazards(p)
    cnt = {}
    for x in p: cnt[x.kind] = cnt.get(x.kind, 0) + 1
    print("  %s: %d instr, max vm in flight %d, nop states %d, %s" % (name, len(p), maxvm, nn, cnt))
    return p
```

```python
import sys
from fw import *

KNAME = "parallel_sum__linear_kernel_hedgehog__glu_gated_bilinear__prompt_kernel"

class Cfg:
    rot = True
    stamps = False
    codepf = False
    wpf = False
    w2pf = False
    spin = 200000
    dbgout = False
    x_drop = ''
    x_nostat = False; x_notask = False; x_nodma = False; x_nobar = False
cfg = Cfg()

PITCH = 8224
NSLOT = 16
WREG = NSLOT * PITCH
WREG_SZ = 5632
VOFF = 2304
STAT = WREG + 4 * WREG_SZ
CSP = STAT + 2048
CST = CSP + 3072
LDS_BYTES = 163840
WS_H = 0
WS_KVP = 0xC00000
WS_KVF = 0xA00000
WS_FL = 0xA40000
WS_ST = 0xB00000
OOB = 0x40000000

SX, SQ, SG, SU, SD, SO, SW, SOUT, SDBG, SPHI = 4, 8, 12, 16, 20, 24, 28, 32, 36, 40
def srd(b): return "s[%d:%d]" % (b, b + 3)
sWV, sTH, sGR, sRB, sQ, sT4, sAB, sI, sTT, sCT, sIDX, sXCD = range(44, 56)
sKX, sKQ, sKG = 56, 64, 72
sLX, sL2K, sL1K, sT0, sT1, sSPIN = 80, 81, 82, 83, 84, 85
sM1, sM2, sM3, sMB = 86, 88, 90, 92
sWDB, sWOB, sC2, sH2, sS = 94, 95, 96, 97, 3
sMH = 54
sST = 98
SET0, SET1, WF = 0, 64, 128
SEL01, SEL23 = 144, 148
vPW, vPR, vVW, vVR0 = 152, 153, 154, 155
vKVL, vKRL, vKRS = 152, 153, 154
CSD = 156
MB = 160
CA = 168
vSL = 172
XR, WR1, WR3, XD, WR2 = 174, 178, 178, 182, 182
W2R = 174
WQD, WGD, WHD = 186, 188, 190
vHLD, vPOL = 186, 187
vCSA, vRS, vR2, vHST, vL, W2D = 191, 192, 194, 196, 197, 198
WPHI = 200
KVD = 208
TMP = 240
vFLG, vVR1, vKVA, vSTAMP = 252, 253, 254, 255
RSD, SQD = 64, 68
ACC2 = [96, 112, 208, 224]

def vr(b, n=1): return "v%d" % b if n == 1 else "v[%d:%d]" % (b, b + n - 1)
def ar(b, n): return "a[%d:%d]" % (b, b + n - 1)

stamp_names = []
def stamp(name):
    if cfg.stamps != True: return []
    if name not in stamp_names: stamp_names.append(name)
    k = stamp_names.index(name)
    return [I("s_memtime s[%d:%d]" % (sST, sST + 1)), I("v_writelane_b32 v%d, s%d, %d" % (vSTAMP, sST, k + 2))]

def addr_wfull(dst, n, att, swap, t0=TMP):
    a, b = vr(t0), vr(t0 + 1)
    s = """
    v_lshrrev_b32 {a}, 5, v{L}
    v_lshlrev_b32 {a}, 10, {a}
    v_bfe_u32 {b}, v{L}, 2, 2
    v_lshl_add_u32 {a}, {b}, 7, {a}
    v_and_b32 {b}, 3, v{L}
    v_lshl_add_u32 {a}, {b}, 3, {a}
    v_bfe_u32 {b}, v{L}, 3, 1
    v_xor_b32 {b}, s{gr}, {b}
    v_lshl_add_u32 {a}, {b}, 6, {a}
    v_bfe_u32 {b}, v{L}, 4, 1
    """.format(a=a, b=b, L=vL, gr=sGR)
    if att:
        if swap: s += "v_xor_b32 %s, s%d, %s\n" % (b, sTH, b)
        s += "v_lshl_add_u32 %s, %s, 5, %s\n" % (a, b, a)
    else:
        s += "v_mul_u32_u24 %s, %d, %s\nv_add_u32 %s, %s, %s\n" % (b, PITCH, b, a, a, b)
    return L(s) + wr_variants(dst, n, a, 12)

def wr_variants(dst, n, a, sh):
    s = "s_lshl_b32 s%d, s%d, %d\ns_xor_b32 s%d, s%d, %d\n" % (sT0, sS, sh, sT1, sT0, 1 << sh)
    k = dst
    if n == 4:
        s += "v_add_u32 v%d, s%d, %s\nv_add_u32 v%d, s%d, %s\n" % (k, sT0, a, k + 1, sT1, a)
        s += "v_add_u32 v%d, %d, v%d\nv_add_u32 v%d, %d, v%d\n" % (k + 2, 8 * PITCH, k, k + 3, 8 * PITCH, k + 1)
    else:
        s += "v_add_u32 %s, %d, %s\n" % (a, 8 * PITCH, a)
        s += "v_add_u32 v%d, s%d, %s\nv_add_u32 v%d, s%d, %s\n" % (k, sT0, a, k + 1, sT1, a)
    ins = L(s)
    return [ins]

def addr_whalf(dst, t0=TMP):
    a, b = vr(t0), vr(t0 + 1)
    s = """
    v_lshrrev_b32 {a}, 5, v{L}
    v_lshlrev_b32 {a}, 9, {a}
    v_bfe_u32 {b}, v{L}, 2, 2
    v_lshl_add_u32 {a}, {b}, 6, {a}
    v_and_b32 {b}, 3, v{L}
    v_lshl_add_u32 {a}, {b}, 3, {a}
    v_bfe_u32 {b}, v{L}, 4, 1
    v_mul_u32_u24 {b}, 4128, {b}
    v_add_u32 {a}, {a}, {b}
    v_mov_b32 {b}, s{gr}
    v_lshl_add_u32 {a}, {b}, 5, {a}
    """.format(a=a, b=b, L=vL, gr=sGR)
    return L(s) + wr_variants(dst, 4, a, 11)

def addr_cs(swap, t0=TMP):
    a = vr(t0)
    s = "s_lshl_b32 s%d, s%d, 8\ns_lshl_b32 s%d, s%d, 7\ns_add_u32 s%d, s%d, s%d\ns_add_u32 s%d, s%d, %d\n" % (sT0, sGR, sT1, sTH, sT0, sT0, sT1, sT0, sT0, CSP)
    s += "v_and_b32 %s, 31, v%d\n" % (a, vL)
    if swap: s += "s_lshl_b32 s%d, s%d, 4\nv_xor_b32 %s, s%d, %s\n" % (sT1, sTH, a, sT1, a)
    s += """
    v_lshl_add_u32 v{ca}, {a}, 2, s{t}
    v_lshrrev_b32 {a}, 5, v{L}
    v_lshl_add_u32 v{ca}, {a}, 9, v{ca}
    """.format(a=a, L=vL, ca=vCSA, t=sT0)
    return [L(s)]

def addr_p2(t0=TMP):
    a, b = vr(t0), vr(t0 + 1)
    s = """
    v_lshrrev_b32 {a}, 5, v{L}
    v_lshlrev_b32 {a}, 9, {a}
    v_bfe_u32 {b}, v{L}, 2, 2
    v_lshl_add_u32 {a}, {b}, 7, {a}
    v_and_b32 {b}, 3, v{L}
    v_lshl_add_u32 {a}, {b}, 3, {a}
    v_bfe_u32 {b}, v{L}, 3, 1
    v_lshl_add_u32 {a}, {b}, 6, {a}
    v_bfe_u32 {b}, v{L}, 4, 1
    v_lshl_add_u32 {a}, {b}, 5, {a}
    v_xor_b32 {b}, 64, {a}
    v_add_u32 v{w0}, s{l2k}, {a}
    v_add_u32 v{w1}, s{l2k}, {b}
    v_add_u32 v{w2}, {hi}, v{w0}
    v_add_u32 v{w3}, {hi}, v{w1}
    """.format(a=a, b=b, L=vL, w0=W2R, w1=W2R + 1, w2=W2R + 2, w3=W2R + 3, l2k=sL2K, hi=8 * PITCH)
    ins = L(s)
    ins.append(L("""
    s_mul_i32 s{t0}, s{tt}, {a}
    s_mul_i32 s{t1}, s{wv}, {b}
    s_add_u32 s{t0}, s{t0}, s{t1}
    v_lshl_add_u32 v{h}, v{L}, 4, s{t0}
    """.format(t0=sT0, t1=sT1, tt=sTT, wv=sWV, a=144 * 2048, b=36 * 2048, h=vHLD, L=vL)))
    ins.append(L("""
    s_lshl_b32 s{t0}, s{tt}, 2
    s_add_u32 s{t0}, s{t0}, s{wv}
    s_lshl_b32 s{t0}, s{t0}, 7
    s_add_u32 s{t0}, s{t0}, {fl}
    v_and_b32 {a}, 7, v{L}
    v_lshl_add_u32 v{p}, {a}, 2, s{t0}
    """.format(t0=sT0, tt=sTT, wv=sWV, fl=WS_FL, a=a, L=vL, p=vPOL)))
    return ins

label_n = [0]
def poll(addr, res, need, sr=SW, cmp="gt"):
    label_n[0] += 1
    k = label_n[0]
    ld = "buffer_load_dword v%d, v%d, %s, 0 offen sc1" % (res, addr, srd(sr))
    c = "v_cmp_%s_u32 vcc, %s, v%d" % (cmp, need, res)
    chk = Raw([c, "s_nop 4", "s_cbranch_vccz L_ok%d" % k,
               "s_mov_b32 s%d, %d" % (sSPIN, cfg.spin),
               "L_re%d:" % k, "s_sleep 1", ld, "s_waitcnt vmcnt(0)", c, "s_sub_u32 s%d, s%d, 1" % (sSPIN, sSPIN),
               "s_cbranch_scc1 L_ok%d" % k, "s_nop 2", "s_cbranch_vccnz L_re%d" % k,
               "L_ok%d:" % k],
              rd=["v%d" % res, "v%d" % addr] + regs_of(need), wr=["vcc", "scc", "s%d" % sSPIN])
    chk.cost = 32
    return I(ld), chk

def class_poll(c, res, needr):
    na, nb = [(0, 1), (0, 2), (1, 2), (2, 2), (2, 3)][c]
    iss, chk = poll(vPOL, res, "v%d" % needr)
    return iss, [I("v_cndmask_b32 v%d, %d, %d, s[%d:%d]" % (needr, na, nb, sMB, sMB + 1)), chk]

def set_flag(level, tag, t):
    return stamp("f%d_0" % level) + [Wait(tag)] + stamp("f%d_1" % level) + [I("v_mov_b32 v%d, %d" % (t, level)), I("buffer_store_dword v%d, v%d, %s, 0 offen sc1" % (t, vFLG, srd(SW)))]

def t_stat_add():
    a, b = TMP, TMP + 1
    s = """
    s_lshl_b32 s{t0}, s{th}, 10
    s_add_u32 s{t0}, s{t0}, {st}
    v_and_b32 v{b}, 31, v{L}
    v_lshl_add_u32 v{b}, v{b}, 4, s{t0}
    s_lshl_b32 s{t1}, s{gr}, 3
    s_add_u32 s{t0}, s{t0}, s{t1}
    v_lshl_add_u32 v{a}, v{L}, 4, s{t0}
    """.format(t0=sT0, t1=sT1, th=sTH, gr=sGR, st=STAT, a=a, b=b, L=vL)
    pre = [L(s)]
    out = []
    for j, m in ((1, sM1), (2, sM2), (3, sM3)):
        for blk in range(2):
            q = SQD + 4 * blk
            out += L("v_cndmask_b32 v%d, v%d, v%d, s[%d:%d]" % (q, q, q + j, m, m + 1))
    out.append(L("v_permlane32_swap_b32 v%d, v%d\nv_add_f32 v%d, v%d, v%d" % (SQD, SQD + 4, RSD + 1, SQD, SQD + 4)))
    out += L("ds_write_b64 v%d, v[%d:%d]" % (a, RSD, RSD + 1))
    return pre, out

def t_cs_add(tile0):
    return L("ds_write_b32 v%d, v%d offset:%d" % (vCSA, CSD, 512 * tile0))

def t_cs_tot(tile0, t):
    out = L("v_xor_b32 v%d, 0x80, v%d\nds_read_b32 v%d, v%d offset:%d" % (t, vCSA, t, t, 512 * tile0))
    out.append(Gap(2))
    out += L("""
    v_add_f32 v{t}, v{t}, v{cs}
    v_cvt_pk_bf16_f32 v{a}, v{t}, v{t}
    v_lshlrev_b32 v{a1}, 16, v{a}
    v_sub_f32 v{t}, v{t}, v{a1}
    v_cvt_pk_bf16_f32 v{a1}, v{t}, 0
    """.format(t=t, cs=CSD, a=CA, a1=CA + 1))
    return out

def t_corr(acc, T):
    out = []
    for j in range(T):
        for b in range(2):
            d = vr(acc + 32 * j + 16 * b, 16)
            x = I("v_mfma_f32_32x32x16_bf16 %s, %s, %s, %s" % (d, vr(CA, 4), vr(MB + 4 * b + 2 * j, 4), d)); x.cost = 24
            out.append(x)
    return out

def t_stat_fin():
    b = TMP + 1; t = TMP + 4
    out = L("ds_read_b128 v[%d:%d], v%d\nds_read_b128 v[%d:%d], v%d offset:512" % (t, t + 3, b, t + 4, t + 7, b))
    out.append(Gap(2))
    late = []
    for blk in range(2):
        r = t + 4 * blk; m = MB + 4 * blk
        out += L("""
        v_add_f32 v{r}, v{r}, v{r2}
        v_mul_f32 v{r}, 0xbb000000, v{r}
        v_cvt_pk_bf16_f32 v{m1}, v{r}, 0
        v_lshlrev_b32 v{r2}, 16, v{m1}
        v_sub_f32 v{r2}, v{r}, v{r2}
        v_cvt_pk_bf16_f32 v{m0}, v{r}, v{r2}
        v_cndmask_b32 v{m2}, 0, v{m0}, s[{h}:{h1}]
        v_cndmask_b32 v{m3}, 0, v{m1}, s[{h}:{h1}]
        v_cndmask_b32 v{m0}, v{m0}, 0, s[{h}:{h1}]
        v_cndmask_b32 v{m1}, v{m1}, 0, s[{h}:{h1}]
        """.format(r=r, r2=r + 2, m0=m, m1=m + 1, m2=m + 2, m3=m + 3, h=sMH, h1=sMH + 1))
        late += L("""
        v_add_f32 v{r1}, v{r1}, v{r3}
        v_mul_f32 v{r2}, v{r}, v{r}
        v_fma_f32 v{r1}, v{r1}, s{c}, -v{r2}
        v_max_f32 v{r1}, 0, v{r1}
        v_add_f32 v{r1}, 0x3727c5ac, v{r1}
        v_rsq_f32 v{rs}, v{r1}
        v_rcp_f32 v{rr}, v{r1}
        v_mul_f32 v{sl}, 0x3fb8aa3b, v{rs}
        """.format(r=r, r1=r + 1, r2=r + 2, r3=r + 3, rs=vRS + blk, rr=vR2 + blk, sl=vSL + blk, c=sC2))
    return out, late

def t_hepi(acc, soff, imm, tag):
    out = []
    for blk in range(2):
        g = acc + 16 * blk
        for r in range(0, 8 if not cfg.x_notask else 0, 2):
            out += L("v_mul_f32 v%d, v%d, v%d\nv_mul_f32 v%d, v%d, v%d" % (g + r, vR2 + blk, g + r, g + r + 1, vR2 + blk, g + r + 1))
            out += L("v_mul_f32 v%d, v%d, v%d\nv_mul_f32 v%d, v%d, v%d" % (g + r, g + r, g + 8 + r, g + r + 1, g + r + 1, g + 9 + r))
            out += L("v_cvt_pk_bf16_f32 v%d, v%d, v%d" % (g + r // 2, g + r, g + r + 1))
        st = L("buffer_store_dwordx4 v[%d:%d], v%d, %s, s%d offen offset:%d sc1" % (g, g + 3, vHST, srd(SW), sT1, imm + 1024 * blk), tag=tag if blk else None)
        out.append(L(soff) + st)
    return out

def phi_mfma(acc, TMP=TMP):
    out = []
    for j in range(8): out += L("v_cvt_pk_bf16_f32 v%d, v%d, v%d" % (TMP + j, acc + 2 * j, acc + 2 * j + 1))
    out += L("v_mfma_f32_32x32x16_bf16 v[%d:%d], v[%d:%d], v[%d:%d], 0" % (acc, acc + 15, WPHI, WPHI + 3, TMP, TMP + 3))
    out += L("v_mfma_f32_32x32x16_bf16 v[%d:%d], v[%d:%d], v[%d:%d], v[%d:%d]" % (acc, acc + 15, WPHI + 4, WPHI + 7, TMP + 4, TMP + 7, acc, acc + 15))
    out[-1].cost = 24; out[-2].cost = 24
    return out

def softmax2(p, blk):
    e = TMP; a, b, c, d = TMP + 8, TMP + 9, TMP + 10, TMP + 11; sl = vSL + blk
    s = """
    v_max3_f32 v{a}, v{p0}, v{p1}, v{p2}
    v_min3_f32 v{b}, v{p0}, v{p1}, v{p2}
    v_max3_f32 v{a}, v{a}, v{p3}, v{p4}
    v_min3_f32 v{b}, v{b}, v{p3}, v{p4}
    v_max3_f32 v{a}, v{a}, v{p5}, v{p6}
    v_min3_f32 v{b}, v{b}, v{p5}, v{p6}
    v_max_f32 v{a}, v{a}, v{p7}
    v_max_f32_e64 v{b}, -v{b}, -v{p7}
    """.format(a=a, b=b, **{"p%d" % i: p + i for i in range(8)})
    out = L(s)
    out += L("v_permlane32_swap_b32 v{a}, v{b}\nv_max_f32 v{a}, v{a}, v{b}\nv_mul_f32_e64 v{a}, -v{a}, v{sl}\nv_mov_b32 v{b}, v{a}".format(a=a, b=b, sl=sl))
    out += L("v_permlane32_swap_b32 v{a}, v{b}".format(a=a, b=b))
    for i in range(8):
        out += L("v_fma_f32 v%d, v%d, v%d, v%d" % (e + i, p + i, sl, a))
        out += L("v_fma_f32 v%d, -v%d, v%d, v%d" % (p + i, p + i, sl, b))
        if i > 1: out += L("v_add_f32 v%d, v%d, v%d" % (c, c if i > 2 else e, e + i - 1))
        out += L("v_exp_f32 v%d, v%d" % (e + i, e + i))
        if i > 1: out += L("v_add_f32 v%d, v%d, v%d" % (d, d if i > 2 else p, p + i - 1))
        out += L("v_exp_f32 v%d, v%d" % (p + i, p + i))
    out += L("v_add_f32 v%d, v%d, v%d\nv_add_f32 v%d, v%d, v%d" % (c, c, e + 7, d, d, p + 7))
    out += L("v_permlane32_swap_b32 v{c}, v{d}\nv_add_f32 v{c}, v{c}, v{d}\nv_rcp_f32 v{c}, v{c}".format(c=c, d=d))
    out += L("v_mov_b32 v{d}, v{c}".format(c=c, d=d))
    out += L("v_permlane32_swap_b32 v{c}, v{d}".format(c=c, d=d))
    for i in range(8):
        out += L("v_mul_f32 v%d, v%d, v%d" % (p + i, d, p + i))
        if i & 1: out += L("v_cvt_pk_bf16_f32 v%d, v%d, v%d" % (p + i // 2, p + i - 1, p + i))
    for i in range(8):
        out += L("v_mul_f32 v%d, v%d, v%d" % (e + i, c, e + i))
        if i & 1: out += L("v_cvt_pk_bf16_f32 v%d, v%d, v%d" % (p + 4 + i // 2, e + i - 1, e + i))
    return out

def v_out(va, blk):
    out = []
    for r in range(0, 16, 2):
        out += L("v_mul_f32 v%d, v%d, v%d\nv_mul_f32 v%d, v%d, v%d" % (va + r, vRS + blk, va + r, va + r + 1, vRS + blk, va + r + 1))
        out += L("v_cvt_pk_bf16_f32 v%d, v%d, v%d" % (va + r // 2, va + r, va + r + 1))
        if r % 4 == 2: out += L("ds_write_b64 v%d, v[%d:%d] offset:%d" % (vVW, va + r // 2 - 1, va + r // 2, 4 * (r - 2)))
    return out

def weave(main, extra, pos):
    out = []; k = 0
    for n, x in enumerate(main):
        while k < len(extra) and pos[k] <= n: out.append(extra[k]); k += 1
        out.append(x)
    return out + extra[k:]

def t_att_k():
    out = []
    if cfg.x_notask: return [I("s_nop 0")]
    FR = 32
    rds, mms = [], []
    for blk in range(2):
        va = 32 + 16 * blk; ka = 16 * blk
        pm = phi_mfma(ka)
        out += weave(pm, rds, range(0, 8)); rds = []
        vo = v_out(va, blk)
        out += weave(vo, mms, (10, 18)); mms = []
        for hh in range(2):
            p = ka + 8 * hh
            sm = softmax2(p, blk)
            n = len(sm)
            wr = [I("ds_write_b64 v%d, v[%d:%d] offset:%d" % (vPW, p + 2 * j, p + 1 + 2 * j, 32 + 16 * j)) for j in range(2)] + \
                 [I("ds_write_b64 v%d, v[%d:%d] offset:%d" % (vPW, p + 4 + 2 * j, p + 5 + 2 * j, 16 * j)) for j in range(2)]
            sm = weave(sm, rds + mms + wr, [2, 5, 8, 8, 12, 12, 16, 20][:len(rds)] + [44, 56][:len(mms)] + [n - 17, n - 11, n - 5, n])
            out += sm
            rds, mms = [], []
            for ks in range(2):
                for j in range(2):
                    rds += L("ds_read_b64_tr_b16 v[%d:%d], v%d offset:%d" % (FR + 8 * ks + 4 + 2 * j, FR + 8 * ks + 5 + 2 * j, (vVR0, vVR1)[hh], 1664 * ks + 416 * j))
                for j in range(2):
                    rds += L("ds_read_b64_tr_b16 v[%d:%d], v%d offset:%d" % (FR + 8 * ks + 2 * j, FR + 8 * ks + 2 * j + 1, vPR, 1152 * ks + 288 * j))
            d = KVD + 16 * hh
            for ks in range(2):
                c = "0" if (blk == 0 and ks == 0) else vr(d, 16)
                x = I("v_mfma_f32_32x32x16_bf16 %s, %s, %s, %s" % (vr(d, 16), vr(FR + 8 * ks, 4), vr(FR + 8 * ks + 4, 4), c)); x.cost = 24
                mms.append(x)
    for x in rds: x.cost = 8
    out += rds
    pend = mms
    out.append(L("""
    s_mul_i32 s{t0}, s{wv}, {wsz}
    s_add_u32 s{t0}, s{t0}, {wreg}
    v_lshl_add_u32 v{a}, v{L}, 4, s{t0}
    s_xor_b32 s{t0}, s{wv}, 1
    s_mul_i32 s{t0}, s{t0}, {wsz}
    s_add_u32 s{t0}, s{t0}, {wreg}
    v_lshl_add_u32 v{b}, v{L}, 4, s{t0}
    """.format(t0=sT0, wv=sWV, wsz=WREG_SZ, wreg=WREG, a=TMP, b=TMP + 1, L=vL)))
    out += [Gap(2)] + pend + [Gap(2)]
    for r4 in range(4): out += L("ds_write_b128 v%d, %s offset:%d" % (TMP, vr(KVD + 16 + 4 * r4, 4), 1024 * r4))
    return out

def t_kv_pub():
    out = []
    for r4 in range(4): out += L("ds_read_b128 %s, v%d offset:%d" % (vr(KVD + 16 + 4 * r4, 4), TMP + 1, 1024 * r4))
    out.append(Gap(2))
    for r in range(16):
        out += L("v_add_f32 v%d, v%d, v%d" % (KVD + r, KVD + r, KVD + 16 + r))
        if r % 4 == 3: out += L("buffer_store_dwordx4 %s, v%d, %s, 0 offen offset:%d sc1" % (vr(KVD + r - 3, 4), vKVA, srd(SW), 256 * (r - 3)))
    return out

def data_poll(loads, regs, t):
    label_n[0] += 1
    k = label_n[0]
    chk = ["v_max3_u32 v%d, v%d, v%d, v%d" % (t, regs[0], regs[1], regs[2])]
    rest = regs[3:]
    while len(rest) > 1:
        chk.append("v_max3_u32 v%d, v%d, v%d, v%d" % (t, t, rest[0], rest[1])); rest = rest[2:]
    if rest: chk.append("v_max_u32 v%d, v%d, v%d" % (t, t, rest[0]))
    fast = L("\n".join(chk))
    c = "v_cmp_eq_u32 vcc, -1, v%d" % t
    raw = Raw([c, "s_nop 4", "s_cbranch_vccz L_ok%d" % k, "s_mov_b32 s%d, %d" % (sSPIN, cfg.spin), "L_re%d:" % k, "s_sleep 1"] + loads +
              ["s_waitcnt vmcnt(0)"] + chk + [c, "s_sub_u32 s%d, s%d, 1" % (sSPIN, sSPIN), "s_cbranch_scc1 L_ok%d" % k, "s_nop 2",
               "s_cbranch_vccnz L_re%d" % k, "L_ok%d:" % k],
              rd=["v%d" % t], wr=["vcc", "scc", "s%d" % sSPIN, "s%d" % sT1] + ["v%d" % r for r in regs])
    raw.cost = 32
    return fast + [raw]

RR = 80
def t_kv_red():
    ld = []
    for k in range(4):
        ld += ["s_mov_b32 s%d, %d" % (sT1, 16384 * k), "buffer_load_dwordx4 %s, v%d, %s, s%d offen sc1" % (vr(RR + 4 * k, 4), vKRL, srd(SW), sT1)]
    iss = [L("\n".join(ld[2 * k:2 * k + 2])) for k in range(4)]
    out = data_poll(ld, list(range(RR, RR + 16)), vKVA)
    for j in range(4):
        out += L("v_add_f32 v%d, v%d, v%d\nv_add_f32 v%d, v%d, v%d" % (RR + j, RR + j, RR + 4 + j, RR + 8 + j, RR + 8 + j, RR + 12 + j))
    for j in range(4): out += L("v_add_f32 v%d, v%d, v%d" % (RR + j, RR + j, RR + 8 + j))
    out += L("""
    v_permlane16_swap_b32 v{a}, v{b}
    v_permlane16_swap_b32 v{c}, v{d}
    v_add_f32 v{a}, v{a}, v{b}
    v_add_f32 v{c}, v{c}, v{d}
    v_permlane32_swap_b32 v{a}, v{c}
    v_add_f32 v{a}, v{a}, v{c}
    buffer_store_dword v{a}, v{s}, {sr}, 0 offen sc1
    """.format(a=RR, b=RR + 1, c=RR + 2, d=RR + 3, s=vKRS, sr=srd(SW)))
    return iss, out

def t_att_q():
    out = []
    if cfg.x_notask: return [I("s_nop 0")]
    out += phi_mfma(SET0, 64) + phi_mfma(SET0 + 16, 72)
    out += softmax2(SET0, 0) + softmax2(SET0 + 8, 0) + softmax2(SET0 + 16, 1) + softmax2(SET0 + 24, 1)
    return out

KR = 32
def t_kv_load():
    ld = []
    for hh in range(2):
        ld += ["s_mov_b32 s%d, %d" % (sT1, 4096 * hh)]
        for r4 in range(4):
            ld += ["buffer_load_dwordx4 %s, v%d, %s, s%d offen offset:%d sc1" % (vr(KR + 16 * hh + 4 * r4, 4), vKVL, srd(SW), sT1, 1024 * r4)]
    iss = [L("\n".join(ld[:5])), L("\n".join(ld[5:]))]
    return iss, data_poll(ld, list(range(KR, KR + 32)), vKVA)

def t_o():
    out = []
    for hh in range(2):
        for j in range(8): out += L("v_cvt_pk_bf16_f32 v%d, v%d, v%d" % (KR + 16 * hh + j, KR + 16 * hh + 2 * j, KR + 16 * hh + 2 * j + 1))
    seq = [(hh, blk) for hh in range(2) for blk in range(2)]
    def mm(k):
        hh, blk = seq[k]; d = 64 + 16 * (k & 1); p = SET0 + 16 * blk + 8 * hh
        return L("v_mfma_f32_32x32x16_bf16 %s, %s, %s, 0" % (vr(d, 16), vr(KR + 16 * hh, 4), vr(p + 4, 4))) + \
               L("v_mfma_f32_32x32x16_bf16 %s, %s, %s, %s" % (vr(d, 16), vr(KR + 16 * hh + 4, 4), vr(p, 4), vr(d, 16)))
    def fin(k):
        hh, blk = seq[k]; d = 64 + 16 * (k & 1)
        o = L("v_add_f32 v%d, 0x358637bd, v%d\nv_rcp_f32 v%d, v%d" % (d + 8, d + 8, d + 8, d + 8))
        for r in range(8):
            o += L("v_mul_f32 v%d, v%d, v%d" % (d + r, d + 8, d + r))
            if r & 1: o += L("v_cvt_pk_bf16_f32 v%d, v%d, v%d" % (d + r // 2, d + r - 1, d + r))
        st = L("s_mov_b32 s%d, %d" % (sT1, 28 * 2048)) + \
             L("buffer_store_dwordx4 %s, v%d, %s, s%d offen offset:%d sc1" % (vr(d, 4), vHST, srd(SW), sT1, 2048 * hh + 1024 * blk), tag="ost" if k == 3 else None)
        return o + [st]
    out += mm(0) + mm(1) + fin(0) + mm(2) + fin(1) + mm(3) + fin(2) + fin(3)
    return out

def dma(vo, sr, so, imm, tag=None):
    return L("buffer_load_dwordx4 v%d, %s, %s offen%s lds" % (vo, srd(sr), so, " offset:%d" % imm if imm else ""), tag=tag)

def m0set(base, lit): return L("s_add_u32 m0, s%d, %d" % (base, lit))

def dma_x(c, slot, tag):
    if not cfg.rot:
        g = m0set(sLX, slot * PITCH) + L("s_movk_i32 s%d, %d" % (sH2 + 0 if False else 79, 128 * c))
        return [g + dma(XD, SX, "s79", 0)] + [dma(XD + i, SX, "s79", 1024 * i, tag if i == 3 else None) for i in range(1, 4)]
    g = m0set(sLX, slot * PITCH)
    return [g + dma(XD, SX, "s%d" % (sKX + c), 0)] + [dma(XD + i, SX, "s%d" % (sKX + c), 1024 * i, tag if i == 3 else None) for i in range(1, 4)]

def dma_full(vo, sr, kreg, extra, slot, tag):
    g = m0set(sL2K, slot * PITCH)
    so = "s%d" % kreg
    if not cfg.rot:
        lit = extra + ((kreg - sKQ) * 64 * 3072 if kreg < sKG else (kreg - sKG) * 64 * 3584)
        g += L("s_mov_b32 s%d, %d" % (sT0, lit)); so = "s%d" % sT0
        return [g + dma(vo, sr, so, 0) + dma(vo + 1, sr, so, 1024, tag)]
    if extra:
        g += L("s_add_u32 s%d, s%d, %d" % (sT0, kreg, extra)); so = "s%d" % sT0
        return [g + dma(vo, sr, so, 0) + dma(vo + 1, sr, so, 1024, tag)]
    return [g + dma(vo, sr, so, 0) + dma(vo + 1, sr, so, 1024, tag)]

def dma_half(c, slot, tag):
    so = "s%d" % (sKG + c)
    if not cfg.rot:
        mv = lambda: L("s_mov_b32 s%d, %d" % (sT0, c * 64 * 3584)); so = "s%d" % sT0
        return [m0set(sL1K, slot * PITCH) + mv() + dma(WHD, SG, so, 0), m0set(sL1K, slot * PITCH + 4128) + mv() + dma(WHD, SU, so, 0, tag)]
    return [m0set(sL1K, slot * PITCH) + dma(WHD, SG, so, 0), m0set(sL1K, slot * PITCH + 4128) + dma(WHD, SU, so, 0, tag)]

def slice_src(n):
    if n < 8: return SD, sWDB, 128 * (n >> 2) + 16 * (n & 3)
    if n < 16: return SD, sWDB, 128 * ((n - 8) >> 2) + 64 + 16 * (n & 3)
    if n < 24: return SD, sWDB, 64 * (4 + ((n - 16) >> 2)) + 16 * (n & 3)
    if n < 28: return SD, sWDB, 384 + 16 * (n - 24)
    return SO, sWOB, 16 * (n - 28)

def dma_w2(n, slot):
    sr, base, row = slice_src(n)
    g = m0set(sL2K, slot * PITCH) + L("s_add_u32 s%d, s%d, %d" % (sT0, base, row * 1024))
    return [g + dma(W2D, sr, "s%d" % sT0, 0) + dma(W2D + 1, sr, "s%d" % sT0, 1024, "w2_%d" % n)]

def h_load(n):
    g = L("s_mov_b32 s%d, %d" % (sT1, n * 2048))
    a = 8 * (n % 32)
    for b in range(2):
        g += L("buffer_load_dwordx4 %s, v%d, %s, s%d offen%s sc1" % (ar(a + 4 * b, 4), vHLD, srd(SW), sT1, " offset:1024" if b else ""))
    return g

def build_type(typ):
    A = typ == "A"
    passes = [("att2", 2, SET0, 0), ("pair", 2, SET1, 2), ("half", 1, SET0, 4)] if A else \
             [("pair", 2, SET0, 0), ("pair", 2, SET1, 2), ("q", 1, SET0, 4)]
    WRs = [WR1, WR2, WR3]
    S = Sched()
    step_beat = {}
    nt = lambda g: passes[g // 32][1]
    wbuf = lambda g, j: WF + (8 * (g & 1) + 4 * j if nt(g) == 2 else 4 * (g & 3))

    slot_of = {}
    for c in range(8):
        slot_of[("x", c)] = 2 * (c % 4); slot_of[("w", 0, c)] = 8 + 2 * (c % 4)
    def item_dma(it):
        if it[0] == "x": return dma_x(it[1], slot_of[it], "x%d" % it[1])
        if it[0] == "s": return dma_w2(it[1], slot_of[it])
        _, p, c = it; kind = passes[p][0]; sl = slot_of[it]; tag = "w%d_%d" % (p, c)
        if kind == "att2": return dma_full(WQD, SQ, sKQ + c, 0, sl, None) + dma_full(WQD, SQ, sKQ + c, 1024, sl + 1, tag)
        if kind == "q": return dma_full(WQD, SQ, sKQ + c, 0, sl, tag)
        if kind == "half": return dma_half(c, sl, tag)
        ex = 128 if (not A and p == 1) else 0
        return dma_full(WGD, SG, sKG + c, ex, sl, None) + dma_full(WGD, SU, sKG + c, ex, sl + 1, tag)
    def item_slots(it):
        if it[0] == "x": return 2
        if it[0] == "s": return 1
        return 2 if passes[it[1]][0] in ("att2", "pair") else 1

    for g in range(96):
        p, c, t = g // 32, (g // 4) % 8, g % 4
        kind, T, acc, tile0 = passes[p]
        step_beat[g] = len(S.beats)
        k = g % 32
        for j in range(T):
            for b in range(2):
                d = vr(acc + 32 * j + 16 * b, 16)
                S.beat(I("v_mfma_f32_32x32x16_bf16 %s, %s, %s, %s" % (d, vr(wbuf(g, j), 4), ar(8 * k + 4 * b, 4), "0" if k == 0 else d)))
        if t < 2 and not cfg.x_nostat:
            def m16(d, sel, src, first): S.beat(I("v_mfma_f32_16x16x32_bf16 %s, %s, %s, %s" % (vr(d, 4), vr(sel, 4), src, "0" if first else vr(d, 4))), 16)
            def m4(b, h): S.beat(I("v_mfma_f32_4x4x4_16b_bf16 %s, %s, %s, %s" % (vr(SQD + 4 * b, 4), ar(8 * k + 4 * b + 2 * h, 2), ar(8 * k + 4 * b + 2 * h, 2), "0" if (k == 0 and h == 0) else vr(SQD + 4 * b, 4))), 8)
            if p == 0:
                m4(0, 0); m4(1, 0); m16(RSD, SEL01, ar(8 * k, 4), k == 0); m4(0, 1); m4(1, 1); m16(RSD, SEL23, ar(8 * k + 4, 4), False)
            for j in range(T): m16(CSD, (SEL01, SEL23)[j], vr(wbuf(g, j), 4), k == 0 and j == 0)
    step_beat[96] = len(S.beats)
    sl_beat = {}
    for n in range(36):
        sl_beat[n] = len(S.beats)
        w = WF + 8 * (n & 1); a = 8 * (n % 32)
        for cb in range(2):
            for tb in range(2):
                d = vr(ACC2[2 * cb + tb], 16)
                S.beat(I("v_mfma_f32_32x32x16_bf16 %s, %s, %s, %s" % (d, vr(w + 4 * cb, 4), ar(a + 4 * tb, 4), "0" if n == 0 else d)), cfg.p2period)
    sl_beat[36] = len(S.beats)
    S.beat(None)

    bar_step = {}
    for cc in range(24):
        T = passes[cc // 8][1]
        bar_step[cc] = 4 * cc + (3 if (T == 2 or cc == 23) else 2)
    last_rd = {}
    def w_reads(g, j):
        p, c, t = g // 32, (g // 4) % 8, g % 4
        kind = passes[p][0]; sl = slot_of[("w", p, c)]
        if p == 0: base, off = WR1 + (t >> 1), (sl - 8) * PITCH
        else: base, off = WRs[p] + 2 * (sl >= 8) + (t >> 1), (sl % 8) * PITCH
        if kind == "att2": off += j * PITCH
        if kind == "pair": off += 32 * j
        st, js = (1024, 256) if kind == "half" else (2048, 512)
        off += (t & 1) * st
        w = wbuf(g, j)
        return [I("ds_read_b64_tr_b16 %s, v%d offset:%d" % (vr(w + 2 * e, 2), base, off + e * js)) for e in range(2)]
    def x_reads(g):
        c, t = g // 4, g % 4
        return [I("ds_read_b128 %s, v%d offset:%d" % (ar(8 * g + 4 * b, 4), XR + t, slot_of[("x", c)] * PITCH + 4096 * b)) for b in range(2)]
    def w2_reads(n):
        sl = slot_of[("s", n)]; w = WF + 8 * (n & 1)
        return [I("ds_read_b64_tr_b16 %s, v%d offset:%d" % (vr(w + 4 * cb + 2 * e, 2), W2R + 2 * (sl >= 8) + cb, (sl % 8) * PITCH + 1024 * e)) for cb in range(2) for e in range(2)]

    queue = []
    for c in range(cfg.npro, 8): queue += [("x", c), ("w", 0, c)]
    for p in (1, 2): queue += [("w", p, c) for c in range(8)]
    queue += [("s", n) for n in range(36)]
    free = set()
    for c in range(cfg.npro, 4): free |= {2 * c, 2 * c + 1, 8 + 2 * c, 9 + 2 * c}
    issue_after = {}
    n_ins = lambda it: 4 if item_slots(it) == 2 else 2
    for cc in range(-1, 24):
        p, c = max(cc, 0) // 8, cc % 8
        T = passes[p][1] if cc >= 0 else 0
        rel = []
        budget = cfg.pacew.get(cc, cfg.pace[p] if cc >= 0 else cfg.pace0)
        if T == 2 or cc == 23:
            rel.append(cc)
            if cc > 0 and passes[(cc - 1) // 8][1] == 1: rel.append(cc - 1)
        elif cc > 0 and passes[(cc - 1) // 8][1] == 1: rel.append(cc - 1)
        for r in rel:
            it = ("w", r // 8, r % 8)
            free |= set(range(slot_of[it], slot_of[it] + item_slots(it)))
            if r < 8: free |= {slot_of[("x", r)], slot_of[("x", r)] + 1}
        got = []
        while queue:
            it = queue[0]; ns = item_slots(it)
            if it in slot_of: cand = [slot_of[it]] if all(slot_of[it] + i in free for i in range(ns)) else []
            elif ns == 2: cand = [s for s in sorted(free) if s % 2 == 0 and s + 1 in free]
            else: cand = sorted(free)
            if not cand or budget < n_ins(it): break
            budget -= n_ins(it)
            slot_of[it] = cand[0]
            for i in range(ns): free.discard(cand[0] + i)
            got.append(queue.pop(0))
        issue_after[cc] = (rel, got)
    p2_issue = {}
    for n in range(36):
        free.add(slot_of[("s", n)])
        for k in range(cfg.p2pace):
            if queue and free:
                it = queue.pop(0); slot_of[it] = min(free); free.discard(slot_of[it]); p2_issue.setdefault(n, []).append(it)
    print(typ, "prefetched slices before P2:", 36 - sum(len(x) for x in p2_issue.values()))

    where = {}
    for g in range(1, 96):
        T = nt(g); k = g % 32
        for j in range(T):
            if T == 2: at = g - 1 if not (k == 0 and nt(g - 1) == 1 and j == 0) else g - 2
            else: at = g - 2 if not (k < 2 and nt(g - k - 1) == 2) else g - k - 1
            where.setdefault(at, []).append(("w", g, j))
        if g < 32: where.setdefault(g - 1, []).append(("x", g))
    for at, lst in sorted(where.items()):
        ins = []
        for it in lst:
            r = w_reads(it[1], it[2]) if it[0] == "w" else x_reads(it[1])
            if it[1] % 4 == 3:
                r[-1].tag = "rd%d_%s%d" % (it[1] // 4, it[0], it[2] if it[0] == "w" else 0)
                last_rd[it[1] // 4] = r[-1].tag
            ins += r
        b0 = step_beat[at]; nb = 2 * nt(at)
        if cfg.rd_early and len(ins) == 6: ins = [ins[0], ins[1], ins[4], ins[5], ins[2], ins[3]]
        if cfg.rd_early:
            tg = [x.tag for x in ins if x.tag]
            if tg:
                for x in ins: x.tag = None
                ins[-1].tag = last_rd[lst[-1][1] // 4]
        if cfg.one_wait and nt(at) == 2 and at + 1 in step_beat and all(it[1] == at + 1 for it in lst):
            if not ins[-1].tag: ins[-1].tag = "stp%d" % at
            S.put(step_beat[at + 1], Wait(ins[-1].tag), pre=True)
        nbb = 2 if cfg.rd_early else nb
        for i, x in enumerate(ins): S.put(b0 + min(nbb - 1, i * nbb // len(ins)), x)

    extra_pre = {}
    def place_barriers():
        for cc in range(24):
            b = step_beat[bar_step[cc]]
            pre = []
            for r in issue_after[cc][0]: pre.append(Wait(last_rd[r]))
            if cc in extra_pre: pre.append(Wait("lgkm0"))
            if cc in extra_wait: pre.append(Wait(extra_wait[cc]))
            if cc < 23:
                nx = cc + 1
                if nx < 8: pre.append(Wait("x%d" % nx))
                pre.append(Wait("w%d_%d" % (nx // 8, nx % 8)))
            pre.append(I("s_barrier"))
            S.beats[b]["pre"] = pre + S.beats[b]["pre"]
    bb = lambda cc: step_beat[bar_step[cc]]
    for cc in range(-1, 24):
        items = []
        for it in issue_after[cc][1]: items += item_dma(it)
        if items: S.spread(items, bb(cc) if cc >= 0 else 0, bb(cc + 1) if cc < 23 else sl_beat[0] + 2)

    r0 = w2_reads(0)
    S.put(step_beat[95], [Wait("w2_0")] );
    for i, x in enumerate(r0): S.put(step_beat[95] + min(i // 2, 2 * nt(95) - 1), x)
    for n in range(36):
        b = sl_beat[n]
        if n + 1 < 36:
            S.put(b, Wait("w2_%d" % (n + 1)))
            for i, x in enumerate(w2_reads(n + 1)): S.put(b + i, x)
        for k, it in enumerate(p2_issue.get(n, [])): S.put(b + 2 + k, dma_w2(it[1], slot_of[it])[0])

    sp = lambda g: step_beat[g]
    sl0 = sl_beat[0]
    def end_of(it):
        cc = [c for c in issue_after if it in issue_after[c][1]][0]
        return bb(cc + 1)
    def start_of(it):
        cc = [c for c in issue_after if it in issue_after[c][1]][0]
        return bb(cc)
    assert start_of(("w", 1, 0)) >= sp(cfg.setup_end) and end_of(("x", 7)) < sp(28) and end_of(("w", 2, 7)) <= sp(64)
    S.spread(late_setup(A), sp(1), sp(cfg.setup_end), "setup")
    if cfg.wpf: S.put(sp(cfg.wpf), w_touch(cfg.wpf1, 110))
    if cfg.p3t: S.put(sp(cfg.p3t), p3_touch(116))
    if cfg.wpfd: S.put(sp(cfg.wpfd), w_touch([(SD, 14), (SO, 4)], XR + 1))
    extra_wait = {4: "clr"}
    S.put(bb(4), L("v_mov_b32 v%d, 1\nbuffer_atomic_add v%d, v%d, %s, 0 offen" % (KVD + 1, KVD + 1, KVD, srd(SDBG))))
    S.put(sp(21), wphi_finish())
    S.spread(addr_wfull(WR2, 4, False, False, TMP + 8), max(end_of(("x", 7)), sp(22)), sp(30))
    pre, adds = t_stat_add()
    S.spread(pre, sp(26), sp(28))
    cs_pub = lambda tile0: [Gap(1)] + t_cs_add(tile0)
    S.spread(cs_pub(0) + adds, sp(30), sp(31)); extra_pre[7] = 1
    fin, late = t_stat_fin()
    S.spread(t_cs_tot(0, TMP + 2), sp(31), sp(32))
    S.spread(fin, sp(31), sp(32))
    hs_i, hs_c = poll(XR, XR + 1, "8" if cfg.dbgout else "4", SDBG, "gt")
    if cfg.dbgout: S.put(sp(36), L("v_and_b32 v%d, 31, v%d\nv_lshlrev_b32 v%d, 2, v%d\nv_add_u32 v%d, 64, v%d" % (XR, vL, XR, XR, XR, XR)) + [hs_i])
    else: S.put(sp(36), [I("v_lshlrev_b32 v%d, 2, v%d" % (XR, vL)), hs_i])
    S.put(sp(44), stamp("hs0") + [hs_c] + stamp("hs1"))
    for k, (st, n0, ns) in enumerate(cfg.w2pf):
        assert sp(st) >= end_of(("w", 1, 7))
        S.put(sp(st) + 2, w2_touch(WGD + (k & 1), n0, ns))
    S.spread(cs_pub(2), sp(62), sp(63)); extra_pre[15] = 1
    S.spread(t_cs_tot(2, XR + 2), sp(63), sp(64))
    S.spread(cs_pub(4), sp(94), sp(95)); extra_pre[23] = 1
    S.spread(t_cs_tot(4, TMP + 2), sp(95), sl0)
    S.spread(addr_p2(TMP + 8), sp(66), sp(72))
    so2 = "s_mov_b32 s%d, %d" % (sT1, (16 if A else 8) * 2048)
    if A:
        e = S.spread(t_corr(SET0, 2) + late + t_att_k(), sp(32), sp(32 + cfg.a_att), "att_k")
        cb = min(cc for cc in range(8, 24) if bb(cc) > e); extra_pre[cb] = 1
        print("  kv exchange barrier chunk", cb)
        S.spread(addr_whalf(WR3, XR + 2) + addr_cs(False, XR + 2), sp(52), sp(60))
        e = S.spread(t_kv_pub(), bb(cb), bb(cb) + cfg.a_pub, "kv_pub")
        S.put(e, stamp("kvi"))
        ekv = e
    else:
        so = "s_mov_b32 s%d, 0" % sT1
        e = S.spread(t_corr(SET0, 2) + late + t_hepi(SET0, so, 0, None) + t_hepi(SET0 + 32, so, 2048, "h0"), sp(32), sp(32 + cfg.b_h0), "hepi0")
        S.put(e + cfg.flag_delay, set_flag(1, "h0", WHD))
        S.spread(addr_wfull(WR3, 4, True, False, XR + 2), sp(52), sp(60))
        ekv = 0
    b0 = max(sp(64), ekv + 1)
    e = S.spread(t_corr(SET1, 2) + t_hepi(SET1, so2, 0, None) + t_hepi(SET1 + 32, so2, 2048, "h1"), b0, max(b0 + 8, sp(64 + cfg.h1)), "hepi1")
    S.put(e + cfg.flag_delay, set_flag(1 if A else 2, "h1", WHD))
    if A:
        so = "s_mov_b32 s%d, s%d" % (sT1, sH2)
        e = S.spread(t_corr(SET0, 1) + [Gap(1)] + t_hepi(SET0, so, 0, "h2"), sl0, sl0 + cfg.a_h2, "hepi2")
        S.put(e + cfg.flag_delay2, set_flag(2, "h2", WHD))
        last_task = e
    else:
        att = t_corr(SET0, 1) + [Gap(1)] + t_att_q()
        ri, rc = t_kv_red()
        li, lc = t_kv_load()
        S.spread(ri, sl0 + cfg.b_ri, sl0 + cfg.b_ri + 4)
        k1 = int(len(att) * cfg.b_rc); k2 = int(len(att) * cfg.b_li)
        att = att[:k1] + stamp("kr0") + rc + stamp("kr1") + att[k1:k2] + li + att[k2:] + stamp("kp0") + lc + stamp("kp1") + t_o()
        e = S.spread(att, sl0, sl0 + cfg.b_att, "att_q+o")
        S.put(e + cfg.flag_delay2, set_flag(3, "ost", WHD))
        last_task = e
    place_barriers()
    first = [0, 8, 16, 24, 28, 36]
    hl = cfg.hlA if A else cfg.hlB
    for c in range(5):
        iss, chk = class_poll(c, (WGD, WR2)[c & 1], WGD + 1)
        pos = [sp(64 + cfg.p0) + i * cfg.hstep0 if c == 0 else sl0 + hl[first[c] + i] for i in range(first[c + 1] - first[c])]
        S.put(pos[0] - cfg.poll_lead[c], iss)
        S.put(pos[0], stamp("cp%d_0" % c) + chk + stamp("cp%d_1" % c))
        for i, b in enumerate(pos):
            n = first[c] + i
            if b < sl0: assert b >= sp(64 + n + 1)
            assert b < sl_beat[n], (c, n)
            S.put(b, h_load(n))
    RES = TMP
    rb_ = max(last_task + 2, sl_beat[24])
    S.put(rb_, L("""
    s_lshl_b32 s{t0}, s{tt}, 2
    s_add_u32 s{t0}, s{t0}, s{wv}
    s_lshl_b32 s{t0}, s{t0}, 14
    s_lshl_b32 s{t1}, s{ct}, 7
    s_add_u32 s{t0}, s{t0}, s{t1}
    v_lshrrev_b32 v{a}, 3, v{L}
    v_lshlrev_b32 v{a}, 10, v{a}
    v_and_b32 v{b}, 7, v{L}
    v_lshl_add_u32 v{a}, v{b}, 4, v{a}
    v_add_u32 v{o}, s{t0}, v{a}
    """.format(t0=sT0, t1=sT1, tt=sTT, wv=sWV, ct=sCT, a=TMP + 8, b=TMP + 9, o=WQD - 1, L=vL)))
    vOUT = WQD - 1
    S.put(rb_ + 1, L("s_mov_b32 s%d, 8192\nbuffer_load_dwordx4 %s, v%d, %s, 0 offen\nbuffer_load_dwordx4 %s, v%d, %s, s%d offen" % (sT1, vr(RES, 4), vOUT, srd(SX), vr(RES + 4, 4), vOUT, srd(SX), sT1)))
    S.spread(L("""
    v_bfe_u32 v8, v{L}, 3, 2
    v_mul_u32_u24 v8, {P}, v8
    v_and_b32 v9, 7, v{L}
    v_lshl_add_u32 v8, v9, 8, v8
    v_add_u32 v8, s{l2k}, v8
    v_lshrrev_b32 v10, 5, v{L}
    v_xor_b32 v10, v10, v9
    v_lshl_add_u32 v0, v10, 4, v8
    v_xor_b32 v11, 2, v10
    v_lshl_add_u32 v1, v11, 4, v8
    v_xor_b32 v11, 4, v10
    v_lshl_add_u32 v2, v11, 4, v8
    v_xor_b32 v11, 6, v10
    v_lshl_add_u32 v3, v11, 4, v8
    v_lshrrev_b32 v8, 3, v{L}
    v_and_b32 v10, 3, v{L}
    v_lshlrev_b32 v10, 1, v10
    v_xor_b32 v10, v10, v8
    v_bfe_u32 v11, v{L}, 2, 1
    v_lshlrev_b32 v11, 7, v11
    v_lshl_add_u32 v11, v8, 8, v11
    v_mov_b32 v9, s{wv}
    v_mul_u32_u24 v9, {P2}, v9
    v_add_u32 v11, v11, v9
    v_lshl_add_u32 v4, v10, 4, v11
    v_xor_b32 v10, 1, v10
    v_lshl_add_u32 v5, v10, 4, v11
    """.format(L=vL, P=PITCH, P2=2 * PITCH, l2k=sL2K, wv=sWV)), rb_ + 2, rb_ + 14)
    if cfg.stamps == 2:
        pts = [("b%d" % cc, bb(cc)) for cc in range(24)] + [("s%d" % n, sl_beat[n]) for n in range(0, 37) if n not in (34, 35)]
        prev = ("iss", 0)
        for k, (nm, b) in enumerate(pts):
            for x in (prev[0], nm):
                if x not in stamp_names: stamp_names.append(x)
            cur = sST + 2 * ((k + 1) & 1); old = sST + 2 * (k & 1)
            rd = I("v_writelane_b32 v%d, s%d, %d" % (vSTAMP, old, stamp_names.index(prev[0]) + 2))
            mt = I("s_memtime s[%d:%d]" % (cur, cur + 1))
            if nm[0] == "b":
                pre = S.beats[b]["pre"]; pre.insert(len(pre) - 1, rd); pre.append(mt)
            else: S.beats[b]["pre"] = [rd, mt] + S.beats[b]["pre"]
            prev = (nm, b)
        last_stamp = I("v_writelane_b32 v%d, s%d, %d" % (vSTAMP, cur, stamp_names.index(prev[0]) + 2))
    if cfg.stamps == 3:
        lane = 2
        fine = []
        for cc in range(cfg.fine0, cfg.fine0 + 7):
            b0_, b1_ = bb(cc), bb(cc + 1)
            pts = [b0_ + (b1_ - b0_) * k // 8 for k in range(8)]
            rd = []
            for k, b in enumerate(pts):
                mt = I("s_memtime s[%d:%d]" % (56 + 2 * k, 57 + 2 * k))
                S.beats[b]["pre"].append(mt)
                rd.append(I("v_writelane_b32 v%d, s%d, %d" % (vSTAMP, 56 + 2 * k, lane))); lane += 1
                fine.append(mt)
            pre = S.beats[b1_]["pre"]
            k = [i for i, x in enumerate(pre) if getattr(x, "kind", "") == "barrier"][0]
            S.beats[b1_]["pre"] = pre[:k] + rd + pre[k:]
        if "f0" not in stamp_names: stamp_names.extend("f%d" % k for k in range(56))
    if cfg.stamps == True:
        for nm, b in (("p1", sp(32)), ("p2", sp(64)), ("p3", sl_beat[0]), ("s8", sl_beat[8]), ("s16", sl_beat[16]), ("s20", sl_beat[20]), ("s28", sl_beat[28]), ("s36", sl_beat[36]),
                      ("c1", sp(4)), ("c2", sp(8)), ("c4", sp(16))):
            S.put(b, stamp(nm), pre=True)

    pro = entry_x(item_dma)
    n_common = len(pro)
    if A:
        pro += L("s_lshl_b32 s{t0}, s{i}, 7\ns_add_u32 s{t0}, s{t0}, 1024".format(t0=sT0, i=sI))
        pro += wdma_addr(WQD, 3072, sT0)
    else:
        pro += L("s_mul_i32 s{t0}, s{q}, 896\ns_lshl_b32 s{t1}, s{ab}, 8\ns_add_u32 s{t0}, s{t0}, s{t1}".format(t0=sT0, t1=sT1, q=sQ, ab=sAB))
        pro += wdma_addr(WGD, 3584, sT0)
    pro += flat(item_dma(("w", 0, 0))) + stamp("iw0")
    pro += entry_rest()
    for k, w in enumerate(cfg.order):
        if w in "123": pro += flat(item_dma(("x", int(w)))) + flat(item_dma(("w", 0, int(w))))
        elif w == "p": pro += p1_touch(112)
        elif w == "g": pro += w_touch([(SG, 14), (SU, 14), (SQ, 12)], 102)
        elif w == "d": pro += w_touch([(SD, 14), (SO, 4)], 108)
        elif w == "r": pro += L("".join(rot_regs(c) for c in range(cfg.npro, 8)))
        elif w == "u": pro += p3_touch(116)
        elif w == "t": pro += tlb_touch(120)
        elif w == "f": pro += wphi_setup(A)
        elif w == "c": pro += code_touch()
        elif w == "s": pro += early_setup() + flat(addr_wfull(WR1, 2, A, A))
        elif w == "j": pro += [I("s_branch L_main%s" % typ), I("L_main%s:" % typ)]
    assert cfg.npro == 1 + sum(w in "123" for w in cfg.order)
    pro += stamp("iss")
    if cfg.stamps == 2: pro += [I("s_memtime s[%d:%d]" % (sST, sST + 1))]
    pro += [Wait("x0"), Wait("w0_0"), I("s_barrier")]
    pro += stamp("data")
    pro += x_reads(0) + w_reads(0, 0) + w_reads(0, 1)

    tail = []
    for tb in range(2):
        for cb in range(2):
            for r4 in range(4):
                tail += L("ds_write_b128 v%d, %s offset:%d" % (r4, vr(ACC2[2 * cb + tb] + 4 * r4, 4), 128 * cb + 4 * PITCH * tb))
    tail += [Wait("lgkm0"), I("s_barrier")]
    for i in range(2):
        for e in range(2):
            for w in range(4):
                tail += L("ds_read_b128 %s, v%d offset:%d" % (vr(16 + 32 * i + 16 * e + 4 * w, 4), 4 + e, 2048 * w + PITCH * i))
    for i in range(2):
        for e in range(2):
            b = 16 + 32 * i + 16 * e
            for j in range(4):
                x = RES + 4 * i + 2 * e + j // 2
                tail += L("v_add_f32 v%d, v%d, v%d\nv_add_f32 v%d, v%d, v%d" % (b + j, b + j, b + 4 + j, b + 8 + j, b + 8 + j, b + 12 + j))
                tail += L(("v_and_b32 v%d, 0xffff0000, v%d" if j & 1 else "v_lshlrev_b32 v%d, 16, v%d") % (b + 4 + j, x))
                tail += L("v_add_f32 v%d, v%d, v%d\nv_add_f32 v%d, v%d, v%d" % (b + j, b + j, b + 8 + j, b + j, b + j, b + 4 + j))
            tail += L("v_cvt_pk_bf16_f32 v%d, v%d, v%d\nv_cvt_pk_bf16_f32 v%d, v%d, v%d" % (8 + 4 * i + 2 * e, b, b + 1, 9 + 4 * i + 2 * e, b + 2, b + 3))
        tail += L("s_mov_b32 s%d, %d\nbuffer_store_dwordx4 %s, v%d, %s, s%d offen" % (sT1, 8192 * i, vr(8 + 4 * i, 4), vOUT, srd(SOUT), sT1) + " sc1")
    if cfg.stamps:
        tail += stamp("end")
        if cfg.stamps == 2:
            if "end" not in stamp_names: stamp_names.append("end")
            tail += [last_stamp, I("s_memtime s[%d:%d]" % (sST, sST + 1)), I("v_writelane_b32 v%d, s%d, %d" % (vSTAMP, sST, stamp_names.index("end") + 2))]
        tail += L("""
        s_memrealtime s[{a}:{b}]
        v_writelane_b32 v{st}, s{a}, 1
        s_lshl_b32 s{t0}, s2, 2
        s_add_u32 s{t0}, s{t0}, s{wv}
        s_lshl_b32 s{t0}, s{t0}, 8
        s_add_u32 s{t0}, s{t0}, {o}
        v_lshl_add_u32 v0, v{L}, 2, s{t0}
        buffer_store_dword v{st}, v0, {sr}, 0 offen
        """.format(a=sST, b=sST + 1, st=vSTAMP, t0=sT0, wv=sWV, o=WS_ST, L=vL, sr=srd(SW)))
    if cfg.dbgout:
        ix = lambda n: stamp_names.index(n) + 2
        t = """
        v_readlane_b32 s56, v{st}, 0
        v_readlane_b32 s57, v{st}, 1
        v_readlane_b32 s58, v{st}, {iss}
        s_nop 4
        v_mov_b32 v2, {oob}
        v_mov_b32 v1, 0
        v_writelane_b32 v2, 32, 0
        v_writelane_b32 v2, 40, 1
        v_writelane_b32 v2, 36, 2
        v_writelane_b32 v1, s57, 0
        v_writelane_b32 v1, s56, 1
        s_not_b32 s59, s56
        v_writelane_b32 v1, s59, 2
        buffer_atomic_umax v1, v2, {sd}, 0 offen
        s_sub_u32 s57, s57, s56
        v_mov_b32 v3, 0
        v_writelane_b32 v3, s57, 0
        """.format(st=vSTAMP, iss=ix("iss"), oob=OOB, sd=srd(SDBG))
        for k, nm in enumerate(("b0", "b3", "b7", "b15", "s0", "s28", "end")):
            t += "v_readlane_b32 s59, v%d, %d\ns_nop 4\ns_sub_u32 s59, s59, s58\nv_writelane_b32 v3, s59, %d\n" % (vSTAMP, ix(nm), k + 1)
        t += """
        v_lshlrev_b32 v2, 2, v{L}
        v_mov_b32 v4, {oob}
        v_cmp_gt_u32 vcc, 8, v{L}
        v_cndmask_b32 v2, v4, v2, vcc
        s_or_b32 s59, s2, s{wv}
        s_cmp_eq_u32 s59, 0
        s_cselect_b32 s59, 0, {oob}
        buffer_store_dword v3, v2, {sd}, s59 offen
        """.format(L=vL, oob=OOB, wv=sWV, sd=srd(SDBG))
        tail += L(t)
    tail += L("s_endpgm")
    est = sum(max(bt["period"], S.load(i)) for i, bt in enumerate(S.beats[:sl_beat[0]]))
    print("  P1 issue-model cycles:", est, " P2:", sum(max(32, S.load(i)) for i in range(sl_beat[0], sl_beat[36])))
    return n_common, pro + S.flat() + tail

def code_touch():
    ins = L("""
    s_getpc_b64 s[{a}:{b}]
    s_and_b32 s{a}, s{a}, 0xffffff00
    s_bfe_u32 s{t0}, s2, 0x40003
    s_lshl_b32 s{t0}, s{t0}, 2
    s_add_u32 s{t0}, s{t0}, s{wv}
    s_lshl_b32 s{t0}, s{t0}, 9
    v_and_b32 v{x}, 3, v{L}
    v_lshl_add_u32 v{x}, v{x}, 7, s{t0}
    v_min_u32 v{x}, {lim}, v{x}
    global_load_dword v{y}, v{x}, s[{a}:{b}]
    """.format(a=sM1, b=sM1 + 1, t0=sT0, wv=sWV, x=100, y=101, L=vL, lim=cfg.code_lim))
    return ins

def w_touch(which, d0):
    s = "s_lshl_b32 s{t0}, s2, 2\ns_add_u32 s{t0}, s{t0}, s{wv}\n".format(t0=sT0, wv=sWV)
    last = None
    for k, (sr, n) in enumerate(which):
        if n != last:
            s += "s_mul_i32 s{t1}, s{t0}, {b}\nv_min_u32 v{a}, {m}, v{L}\nv_lshl_add_u32 v{a}, v{a}, 7, s{t1}\n".format(t0=sT0, t1=sT1, b=128 * n, a=d0, m=n - 1, L=vL)
            last = n
        s += "buffer_load_dword v%d, v%d, %s, 0 offen\n" % (d0 + 1 + k, d0, srd(sr))
    return L(s)

def tlb_touch(d0):
    s = "v_and_b32 v{a}, 15, v{L}\nv_lshlrev_b32 v{a}, 20, v{a}\nv_add_u32 v{a}, 0x7ff00, v{a}\n".format(a=d0, L=vL)
    for k, sr in enumerate((SD, SO, SW, SOUT, SG, SU, SQ)):
        s += "buffer_load_dword v%d, v%d, %s, 0 offen\n" % (d0 + 1 + k, d0, srd(sr))
    return L(s)

def p3_touch(d0):
    return L("""
    s_lshl_b32 s{t0}, s2, 2
    s_add_u32 s{t0}, s{t0}, s{wv}
    s_lshr_b32 s{t1}, s{t0}, 1
    s_and_b32 s{t0}, s{t0}, 1
    v_and_b32 v{b}, 3, v{L}
    v_lshl_add_u32 v{b}, s{t0}, 2, v{b}
    v_and_b32 v{c}, 1, v{L}
    v_lshl_add_u32 v{c}, s{t0}, 1, v{c}
    s_mul_i32 s{t0}, s{t1}, 3072
    v_lshl_add_u32 v{b}, v{b}, 7, s{t0}
    buffer_load_dword v{b}, v{b}, {q}, 0 offen
    s_mul_i32 s{t0}, s{t1}, 3584
    s_add_u32 s{t0}, s{t0}, 768
    v_mul_u32_u24 v{c}, 896, v{c}
    v_add_u32 v{c}, s{t0}, v{c}
    buffer_load_dword v{r2}, v{c}, {g}, 0 offen
    buffer_load_dword v{c}, v{c}, {u}, 0 offen
    """.format(t0=sT0, t1=sT1, wv=sWV, L=vL, b=d0, c=d0 + 1, r2=d0 + 2, q=srd(SQ), g=srd(SG), u=srd(SU)))

def p1_touch(d0):
    return L("""
    s_lshl_b32 s{t0}, s2, 2
    s_add_u32 s{t0}, s{t0}, s{wv}
    s_lshl_b32 s{t1}, s{t0}, 11
    v_and_b32 v{a}, 15, v{L}
    v_lshl_add_u32 v{a}, v{a}, 7, s{t1}
    buffer_load_dword v{r0}, v{a}, {x}, 0 offen
    s_lshr_b32 s{t1}, s{t0}, 1
    s_and_b32 s{t0}, s{t0}, 1
    s_mul_i32 s{sp}, s{t1}, 3072
    s_lshl_b32 s{m}, s{t0}, 10
    s_add_u32 s{sp}, s{sp}, s{m}
    s_add_u32 s{sp}, s{sp}, 1024
    v_and_b32 v{b}, 7, v{L}
    v_lshl_add_u32 v{b}, v{b}, 7, s{sp}
    buffer_load_dword v{r1}, v{b}, {q}, 0 offen
    s_mul_i32 s{sp}, s{t1}, 3584
    s_mul_i32 s{m}, s{t0}, 1792
    s_add_u32 s{sp}, s{sp}, s{m}
    v_bfe_u32 v{c}, v{L}, 1, 1
    v_mul_u32_u24 v{c}, 896, v{c}
    v_and_b32 v{d}, 1, v{L}
    v_lshl_add_u32 v{c}, v{d}, 8, v{c}
    v_add_u32 v{c}, s{sp}, v{c}
    buffer_load_dword v{r2}, v{c}, {g}, 0 offen
    buffer_load_dword v{r3}, v{c}, {u}, 0 offen
    """.format(t0=sT0, t1=sT1, sp=sH2, m=sM2, wv=sWV, L=vL, a=d0, b=d0 + 1, c=d0 + 2, d=d0 + 3, r0=d0 + 4, r1=d0 + 5, r2=d0 + 6, r3=d0 + 7,
               x=srd(SX), q=srd(SQ), g=srd(SG), u=srd(SU)))

def w2_touch(t, n0, ns):
    sr, base, row = slice_src(n0)
    nr = 4 * ns
    return L("""
    s_and_b32 s{t0}, s{tt}, 3
    s_mul_i32 s{t1}, s{t0}, {a}
    s_add_u32 s{t1}, s{t1}, s{wd}
    s_lshl_b32 s{t0}, s{ct}, 7
    s_add_u32 s{t1}, s{t1}, s{t0}
    s_add_u32 s{t1}, s{t1}, {b}
    v_min_u32 v{x}, {m}, v{L}
    v_lshl_add_u32 v{x}, v{x}, 10, s{t1}
    buffer_load_dword v{x}, v{x}, {d}, 0 offen
    """.format(t0=sT0, t1=sT1, tt=sTT, ct=sCT, wd=base, a=nr * 1024, b=row * 1024, x=t, m=nr - 1, L=vL, d=srd(sr)))

def flat(x):
    o = []
    for y in x: o += y if isinstance(y, list) else [y]
    return o

def groups(ins):
    out = []; cur = []
    tmp = {"s%d" % sT0, "s%d" % sT1, "vcc", "scc"}
    for k, x in enumerate(ins):
        cur.append(x)
        live = set()
        written = {r for y in ins[:k + 1] for r in y.wr} & tmp
        seen = set()
        for y in ins[k + 1:]:
            live |= (set(y.rd) & written) - seen
            seen |= set(y.wr)
        if not live: out.append(cur); cur = []
    if cur: out.append(cur)
    return out

def late_setup(A):
    ins = []
    if A:
        ins += L("s_mul_i32 s{t0}, s{q}, 896\ns_lshl_b32 s{t1}, s{ab}, 7\ns_add_u32 s{t0}, s{t0}, s{t1}\ns_add_u32 s{t0}, s{t0}, 512".format(t0=sT0, t1=sT1, q=sQ, ab=sAB))
        ins += wdma_addr(WGD, 3584, sT0)
    ins += clear_store(A) + common_setup() + flat(addr_cs(A))
    if A:
        ins += L("""
        v_lshrrev_b32 v{a}, 2, v{L}
        v_mul_u32_u24 v{a}, 3584, v{a}
        v_and_b32 v{b}, 3, v{L}
        v_lshl_add_u32 v{a}, v{b}, 4, v{a}
        s_mul_i32 s{t0}, s{q}, 896
        s_lshl_b32 s{t1}, s{ab}, 6
        s_add_u32 s{t0}, s{t0}, s{t1}
        s_add_u32 s{t0}, s{t0}, 768
        s_mul_i32 s{t1}, s{wv}, {w}
        s_add_u32 s{t0}, s{t0}, s{t1}
        v_add_u32 v{d}, s{t0}, v{a}
        s_lshl_b32 s{t0}, s{ab}, 1
        s_add_u32 s{t0}, s{t0}, s{gr}
        s_sub_u32 s{h2}, 24, s{t0}
        s_lshl_b32 s{h2}, s{h2}, 11
        """.format(t0=sT0, t1=sT1, q=sQ, ab=sAB, wv=sWV, gr=sGR, w=16 * 3584, a=TMP, b=TMP + 1, d=WHD, L=vL, h2=sH2))
        ins += att_setup()
    else:
        ins += L("s_lshl_b32 s{t0}, s{i}, 7".format(t0=sT0, i=sI))
        ins += wdma_addr(WQD, 3072, sT0)
        ins += o_setup()
    return groups(ins)

def wdma_addr(dst, stride, scol):
    return L("""
    s_mul_i32 s{t1}, s{wv}, {w}
    s_add_u32 s{t1}, s{t1}, s{c}
    v_lshrrev_b32 v{a}, 3, v{L}
    v_mul_u32_u24 v{a}, {st}, v{a}
    v_bfe_u32 v{b}, v{L}, 4, 1
    v_lshlrev_b32 v{b}, 2, v{b}
    v_xor_b32 v{b}, v{b}, v{L}
    v_and_b32 v{b}, 7, v{b}
    v_lshl_add_u32 v{a}, v{b}, 4, v{a}
    v_add_u32 v{d}, s{t1}, v{a}
    v_add_u32 v{d1}, {nx}, v{d}
    """.format(t1=sT1, wv=sWV, w=16 * stride, c=scol, a=TMP, b=TMP + 1, L=vL, st=stride, d=dst, d1=dst + 1, nx=8 * stride - 1024))

def clear_store(A):
    z = TMP + 4
    s = """
    s_lshl_b32 s{t0}, s{rb}, 1
    s_add_u32 s{t0}, s{t0}, s{th}
    s_lshl_b32 s{t1}, s{t0}, 2
    s_add_u32 s{t1}, s{t1}, s{q}
    s_lshl_b32 s{t1}, s{t1}, 4
    s_add_u32 s{t1}, s{t1}, s{t4}
    s_lshl_b32 s{t1}, s{t1}, 1
    s_add_u32 s{t1}, s{t1}, s{gr}
    s_lshl_b32 s{t1}, s{t1}, 2
    s_add_u32 s{t1}, s{t1}, {fl}
    v_mov_b32 v{f}, {oob}
    v_writelane_b32 v{f}, s{t1}, 0
    v_mov_b32 v{z}, 0
    buffer_store_dword v{z}, v{f}, {sr}, 0 offen sc1
    s_lshl_b32 s{t0}, s{i}, 2
    s_lshl_b32 s{t1}, s{gr}, 1
    s_add_u32 s{t0}, s{t0}, s{t1}
    s_add_u32 s{t0}, s{t0}, s{th}
    """.format(t0=sT0, t1=sT1, rb=sRB, th=sTH, q=sQ, t4=sT4, gr=sGR, fl=WS_FL, f=vFLG, oob=OOB, z=z, sr=srd(SW), i=sI)
    if A:
        s += """
        s_lshl_b32 s{t0}, s{t0}, 4
        s_add_u32 s{t0}, s{t0}, s{rb}
        s_lshl_b32 s{t0}, s{t0}, 12
        s_add_u32 s{t0}, s{t0}, {kvp}
        v_lshl_add_u32 v{d}, v{L}, 4, s{t0}
        """.format(t0=sT0, rb=sRB, kvp=WS_KVP, d=vKVA, L=vL)
        for j in range(4): s += "v_mov_b32 v%d, -1\n" % (z + j)
        ins = L(s)
        for j in range(4): ins += L("buffer_store_dwordx4 %s, v%d, %s, 0 offen offset:%d sc1" % (vr(z, 4), vKVA, srd(SW), 1024 * j), tag="clr" if j == 3 else None)
        return ins
    s += """
    s_lshl_b32 s{t1}, s{t0}, 16
    s_lshl_b32 s{t0}, s{t0}, 12
    s_lshl_b32 s{sp}, s{rb}, 8
    s_add_u32 s{t0}, s{t0}, s{sp}
    s_add_u32 s{t1}, s{t1}, s{sp}
    s_add_u32 s{t0}, s{t0}, {kvf}
    s_add_u32 s{t1}, s{t1}, {kvp}
    v_and_b32 v{a}, 15, v{L}
    v_lshlrev_b32 v{a}, 4, v{a}
    v_lshrrev_b32 v{b}, 4, v{L}
    v_lshl_add_u32 v{rs}, v{b}, 2, v{a}
    v_add_u32 v{rs}, s{t0}, v{rs}
    v_lshl_add_u32 v{rl}, v{b}, 12, v{a}
    v_add_u32 v{rl}, s{t1}, v{rl}
    v_mov_b32 v{z}, -1
    """.format(t0=sT0, t1=sT1, sp=sH2, rb=sRB, kvf=WS_KVF, kvp=WS_KVP, a=TMP, b=TMP + 1, L=vL, rs=vKRS, rl=vKRL, z=z + 1)
    return L(s) + L("buffer_store_dword v%d, v%d, %s, 0 offen sc1" % (z + 1, vKRS, srd(SW)), tag="clr")

def early_setup():
    a, b, c = TMP, TMP + 1, TMP + 2
    s = """
    v_lshrrev_b32 v{a}, 5, v{L}
    v_bfe_u32 v{b}, v{L}, 1, 3
    v_xor_b32 v{a}, v{a}, v{b}
    v_lshlrev_b32 v{a}, 4, v{a}
    v_and_b32 v{b}, 31, v{L}
    v_lshl_add_u32 v{a}, v{b}, 7, v{a}
    s_lshl_b32 s{t0}, s{s}, 6
    v_xor_b32 v{a}, s{t0}, v{a}
    s_mul_i32 s{t1}, s{th}, {P}
    v_add_u32 v{x0}, s{t1}, v{a}
    v_xor_b32 v{b}, 32, v{a}
    v_add_u32 v{x1}, s{t1}, v{b}
    v_xor_b32 v{b}, 64, v{a}
    v_add_u32 v{x2}, s{t1}, v{b}
    v_xor_b32 v{b}, 0x60, v{a}
    v_add_u32 v{x3}, s{t1}, v{b}
    v_and_b32 v{a}, 31, v{L}
    v_mov_b32 v{b}, 0x3f803f80
    v_cmp_eq_u32 vcc, 0, v{a}
    v_cndmask_b32 v{s0}, 0, v{b}, vcc
    v_cmp_eq_u32 vcc, 20, v{a}
    v_cndmask_b32 v{s0}, v{s0}, v{b}, vcc
    v_cmp_eq_u32 vcc, 8, v{a}
    v_cndmask_b32 v{s2}, 0, v{b}, vcc
    v_cmp_eq_u32 vcc, 28, v{a}
    v_cndmask_b32 v{s2}, v{s2}, v{b}, vcc
    """.format(a=a, b=b, L=vL, t0=sT0, t1=sT1, s=sS, th=sTH, P=PITCH, x0=XR, x1=XR + 1, x2=XR + 2, x3=XR + 3, s0=SEL01, s2=SEL23)
    for j in range(1, 4): s += "v_mov_b32 v%d, v%d\nv_mov_b32 v%d, v%d\n" % (SEL01 + j, SEL01, SEL23 + j, SEL23)
    return L(s)

def common_setup():
    a, b, c = TMP, TMP + 1, TMP + 2
    s = "s_mov_b32 s%d, 0\ns_mov_b32 s%d, -1\nv_mov_b32 v%d, 0\nv_mov_b32 v%d, 0\n" % (sMH, sMH + 1, CA + 2, CA + 3)
    s += """
    v_and_b32 v{a}, 3, v{L}
    v_cmp_eq_u32 s[{m1}:{m1b}], 1, v{a}
    v_cmp_eq_u32 s[{m2}:{m2b}], 2, v{a}
    v_cmp_eq_u32 s[{m3}:{m3b}], 3, v{a}
    v_and_b32 v{a}, 4, v{L}
    v_cmp_eq_u32 s[{mb}:{mbb}], 4, v{a}
    s_mul_i32 s{wd}, s{wv}, {wdv}
    s_lshl_b32 s{wo}, s{wv}, 17
    s_mov_b32 s{c2}, 0x3b000000
    """.format(a=a, L=vL, m1=sM1, m1b=sM1 + 1, m2=sM2, m2b=sM2 + 1, m3=sM3, m3b=sM3 + 1, mb=sMB, mbb=sMB + 1,
               wd=sWDB, wo=sWOB, wv=sWV, wdv=448 * 1024, c2=sC2)
    s += """
    s_lshl_b32 s{t0}, s{rb}, 1
    s_add_u32 s{t0}, s{t0}, s{th}
    s_mul_i32 s{t0}, s{t0}, 144
    s_mul_i32 s{t1}, s{q}, 36
    s_add_u32 s{t0}, s{t0}, s{t1}
    s_lshl_b32 s{t1}, s{ab}, 2
    s_add_u32 s{t0}, s{t0}, s{t1}
    s_lshl_b32 s{t1}, s{gr}, 1
    s_add_u32 s{t0}, s{t0}, s{t1}
    s_lshl_b32 s{t0}, s{t0}, 11
    v_lshl_add_u32 v{h}, v{L}, 4, s{t0}
    v_lshrrev_b32 v{a}, 3, v{L}
    v_lshlrev_b32 v{a}, 10, v{a}
    v_bfe_u32 v{b}, v{L}, 4, 1
    v_lshlrev_b32 v{b}, 2, v{b}
    v_xor_b32 v{b}, v{b}, v{L}
    v_and_b32 v{b}, 7, v{b}
    v_lshl_add_u32 v{a}, v{b}, 4, v{a}
    s_lshl_b32 s{t0}, s{ct}, 7
    v_add_u32 v{w}, s{t0}, v{a}
    v_add_u32 v{w1}, 7168, v{w}
    s_and_b32 s{t0}, s2, {hm}
    s_lshl_b32 s{t0}, s{t0}, 2
    s_add_u32 s{t0}, s{t0}, {ho}
    s_cmp_eq_u32 s{wv}, 0
    s_cselect_b32 s{t0}, s{t0}, {oob}
    v_mov_b32 v{hs}, {oob}
    v_writelane_b32 v{hs}, s{t0}, 0
    """.format(t0=sT0, t1=sT1, rb=sRB, th=sTH, q=sQ, ab=sAB, gr=sGR, h=vHST, L=vL, a=a, b=b, ct=sCT, w=W2D, w1=W2D + 1, wv=sWV, oob=OOB, hs=KVD, hm=31 if cfg.dbgout else 63, ho=64 if cfg.dbgout else 0)
    return L(s)

def att_setup():
    a, b, c = TMP, TMP + 1, TMP + 2
    s = """
    s_mul_i32 s{t0}, s{wv}, {wsz}
    s_add_u32 s{t0}, s{t0}, {wreg}
    v_and_b32 v{a}, 31, v{L}
    v_lshrrev_b32 v{b}, 5, v{L}
    v_mul_u32_u24 v{c}, 72, v{a}
    v_lshl_add_u32 v{c}, v{b}, 3, v{c}
    v_add_u32 v{pw}, s{t0}, v{c}
    v_mul_u32_u24 v{c}, 104, v{a}
    v_lshl_add_u32 v{c}, v{b}, 3, v{c}
    s_add_u32 s{t1}, s{t0}, {voff}
    v_add_u32 v{vw}, s{t1}, v{c}
    v_lshl_add_u32 v{c}, v{b}, 3, v{vw}
    v_mov_b32 v{o0}, 0x3f803f80
    v_mov_b32 v{o1}, 0x3f803f80
    ds_write_b64 v{c}, v[{o0}:{o1}] offset:64
    ds_write_b64 v{c}, v[{o0}:{o1}] offset:72
    v_bfe_u32 v{a}, v{L}, 2, 2
    v_lshl_add_u32 v{a}, v{b}, 3, v{a}
    v_and_b32 v{b}, 3, v{L}
    v_mul_u32_u24 v{c}, 72, v{a}
    v_lshl_add_u32 v{c}, v{b}, 3, v{c}
    v_bfe_u32 v{o0}, v{L}, 4, 1
    v_lshl_add_u32 v{c}, v{o0}, 5, v{c}
    v_add_u32 v{pr}, s{t0}, v{c}
    v_mul_u32_u24 v{c}, 104, v{a}
    v_lshl_add_u32 v{c}, v{b}, 3, v{c}
    v_add_u32 v{c}, s{t1}, v{c}
    v_lshl_add_u32 v{v0}, v{o0}, 6, v{c}
    v_add_u32 v{o0}, 1, v{o0}
    v_lshl_add_u32 v{v1}, v{o0}, 5, v{c}
    """.format(t0=sT0, t1=sT1, wv=sWV, wsz=WREG_SZ, wreg=WREG, a=a, b=b, c=c, L=vL, pw=vPW, vw=vVW, voff=VOFF, o0=TMP + 8, o1=TMP + 9,
               pr=vPR, v0=vVR0, v1=vVR1, i=sI, gr=sGR, th=sTH)
    return L(s)

def o_setup():
    return L("""
    s_lshl_b32 s{t0}, s{i}, 1
    s_add_u32 s{t0}, s{t0}, s{gr}
    s_lshl_b32 s{t0}, s{t0}, 13
    s_add_u32 s{t0}, s{t0}, {kvf}
    v_lshl_add_u32 v{d}, v{L}, 4, s{t0}
    """.format(t0=sT0, i=sI, gr=sGR, kvf=WS_KVF, d=vKVL, L=vL))

def wphi_setup(A):
    a, b = TMP, TMP + 1; t = 64 + 16
    s = """
    s_lshl_b32 s{t0}, s{i}, 2
    s_lshl_b32 s{t1}, s{gr}, 1
    s_add_u32 s{t0}, s{t0}, s{t1}
    s_lshl_b32 s{t0}, s{t0}, 9
    v_bfe_u32 v{a}, v{L}, 4, 1
    """.format(t0=sT0, t1=sT1, i=sI, gr=sGR, a=a, L=vL)
    if A: s += "v_xor_b32 v%d, s%d, v%d\n" % (a, sTH, a)
    s += """
    v_lshlrev_b32 v{a}, 9, v{a}
    v_lshrrev_b32 v{b}, 5, v{L}
    v_lshl_add_u32 v{a}, v{b}, 7, v{a}
    v_and_b32 v{b}, 15, v{L}
    v_lshl_add_u32 v{a}, v{b}, 1, v{a}
    v_add_u32 v{a}, s{t0}, v{a}
    """.format(a=a, b=b, L=vL, t0=sT0)
    for j in range(8):
        s += "buffer_load_ushort v%d, v%d, %s, 0 offen offset:%d\n" % (t + j, a, srd(SPHI), 32 * ((j & 3) + 8 * (j >> 2)))
    return L(s)

def wphi_finish():
    t = 64 + 16
    out = L("v_and_b32 v%d, 16, v%d\nv_cmp_eq_u32 vcc, 0, v%d" % (TMP + 8, vL, TMP + 8))
    g = []
    for j in range(4):
        g += L("v_lshl_or_b32 v{x}, v{y}, 16, v{x}\nv_cndmask_b32 v{a0}, 0, v{x}, vcc\nv_cndmask_b32 v{a1}, v{x}, 0, vcc".format(x=t + 2 * j, y=t + 2 * j + 1, a0=WPHI + j, a1=WPHI + 4 + j))
    return out + g

def rot_regs(c):
    if cfg.rot == "z":
        if c == 0: return "s_mov_b32 s%d, 0\ns_mov_b32 s%d, 0\ns_mov_b32 s%d, 0\n" % (sKX, sKQ, sKG)
        return "s_add_u32 s{t1}, s{r}, {c}\ns_sub_u32 s{t0}, s{t1}, 7\ns_cmp_gt_u32 s{t1}, 7\ns_cselect_b32 s{t1}, s{t0}, s{t1}\ns_lshl_b32 s{kx}, s{t1}, 7\ns_mul_i32 s{kq}, s{t1}, {a}\ns_mul_i32 s{kg}, s{t1}, {b}\n".format(
            r=sSPIN, t0=sT0, t1=sT1, c=c, kx=sKX + c, kq=sKQ + c, kg=sKG + c, a=64 * 3072, b=64 * 3584)
    return "s_add_u32 s{t1}, s{r}, {c}\ns_and_b32 s{t1}, s{t1}, 7\ns_lshl_b32 s{kx}, s{t1}, 7\ns_mul_i32 s{kq}, s{t1}, {a}\ns_mul_i32 s{kg}, s{t1}, {b}\n".format(
        r=sSPIN, t1=sT1, c=c, kx=sKX + c, kq=sKQ + c, kg=sKG + c, a=64 * 3072, b=64 * 3584)

def srd_consts(lst):
    return "".join("s_mov_b32 s%d, 0x%x\ns_mov_b32 s%d, 0x20000\n" % (reg + 2, sz, reg + 3) for reg, sz in lst)

def entry_x(item_dma):
    s = """
    s_cmp_ge_u32 s2, 256
    s_cbranch_scc1 L_exit
    """
    for reg, off in ((SX, 0), (SQ, 8), (SG, 40), (SU, 48), (SW, 80), (SPHI, 16), (SO, 24), (SD, 56), (SOUT, 64), (SDBG, 72)):
        s += "s_load_dwordx2 s[%d:%d], s[0:1], %d\n" % (reg, reg + 1, off)
    if cfg.stamps:
        s += "s_memrealtime s[%d:%d]\ns_memtime s[%d:%d]\nv_mov_b32 v%d, 0\n" % (sST, sST + 1, sST + 2, sST + 3, vSTAMP)
    s += """
    v_lshrrev_b32 v1, 6, v0
    v_and_b32 v{L}, 63, v0
    v_readfirstlane_b32 s{wv}, v1
    s_and_b32 s{xcd}, s2, 7
    s_lshr_b32 s{idx}, s2, 3
    s_and_b32 s{rb}, s{xcd}, 1
    s_lshl_b32 s{rb}, s{rb}, 3
    s_and_b32 s{t0}, s{idx}, 7
    s_add_u32 s{rb}, s{rb}, s{t0}
    s_lshr_b32 s{q}, s{xcd}, 1
    s_lshr_b32 s{t4}, s{idx}, 3
    s_and_b32 s{ab}, s{t4}, 1
    s_lshl_b32 s{i}, s{q}, 1
    s_add_u32 s{i}, s{i}, s{ab}
    {rotc}    s_and_b32 s{th}, s{wv}, 1
    s_lshr_b32 s{gr}, s{wv}, 1
    s_xor_b32 s{s}, s{th}, s{gr}
    s_lshl_b32 s{l2k}, s{wv}, 11
    s_mul_i32 s{lx}, s{gr}, {P}
    s_lshl_b32 s{t1}, s{th}, 12
    s_add_u32 s{lx}, s{lx}, s{t1}
    """.format(L=vL, wv=sWV, xcd=sXCD, idx=sIDX, rb=sRB, t0=sT0, t1=sT1, q=sQ, t4=sT4, ab=sAB, i=sI, th=sTH, gr=sGR, s=sS, l2k=sL2K, lx=sLX, P=PITCH,
               rotc=("s_lshl_b32 s%d, s%d, 1\ns_add_u32 s%d, s%d, s%d\ns_and_b32 s%d, s%d, %d\n" % (sT1, sT4, sSPIN, sT0, sT1, sSPIN, sSPIN, 7 if cfg.rot is True else int(cfg.rot))) if cfg.rot and cfg.rot != "z" else "")
    if cfg.rot: s += rot_regs(0)
    s += """
    s_lshl_b32 s{t0}, s{rb}, 2
    s_add_u32 s{t0}, s{t0}, s{wv}
    s_lshl_b32 s{t0}, s{t0}, 15
    v_lshrrev_b32 v2, 3, v{L}
    v_lshlrev_b32 v2, 10, v2
    v_add_u32 v2, s{t0}, v2
    v_lshrrev_b32 v3, 4, v{L}
    v_xor_b32 v3, v3, v{L}
    v_and_b32 v3, 7, v3
    v_lshl_add_u32 v{x0}, v3, 4, v2
    v_add_u32 v{x2}, {d2}, v{x0}
    v_xor_b32 v3, 4, v3
    v_lshl_add_u32 v{x1}, v3, 4, v2
    v_add_u32 v{x1}, 7168, v{x1}
    v_add_u32 v{x3}, {d2}, v{x1}
    """.format(t0=sT0, rb=sRB, wv=sWV, L=vL, x0=XD, x1=XD + 1, x2=XD + 2, x3=XD + 3, d2=2 * 7168)
    s += srd_consts(((SX, 0x200000), (SQ, 0x180000), (SG, 0x1C0000), (SU, 0x1C0000)))
    s += "s_waitcnt lgkmcnt(0)\n"
    if cfg.stamps: s += "v_writelane_b32 v%d, s%d, 0\nv_writelane_b32 v%d, s%d, 63\n" % (vSTAMP, sST, vSTAMP, sST + 2)
    ins = L(s)
    for x in ins:
        if x.kind == "smem": x.nowait = True
    ins += stamp("karg") + flat(item_dma(("x", 0)))
    ins += L("s_cmp_ge_u32 s%d, 2\ns_cbranch_scc1 L_proB" % sT4)
    return ins

def entry_rest():
    s = ""
    if cfg.rot == "z":
        s += """
        s_lshl_b32 s{t0}, s{q}, 1
        s_add_u32 s{t0}, s{t0}, s{t4}
        s_lshl_b32 s{t0}, s{t0}, 1
        s_add_u32 s{t0}, s{t0}, s{rb}
        s_mul_i32 s{t1}, s{t0}, 37
        s_lshr_b32 s{t1}, s{t1}, 8
        s_mul_i32 s{t1}, s{t1}, 7
        s_sub_u32 s{r}, s{t0}, s{t1}
        """.format(t0=sT0, t1=sT1, q=sQ, t4=sT4, rb=sRB, r=sSPIN)
    s += "".join(rot_regs(c) for c in range(1, cfg.npro)) if cfg.rot else ""
    s += """
    s_lshl_b32 s{l1k}, s{wv}, 10
    s_lshl_b32 s{tt}, s{xcd}, 2
    s_and_b32 s{t0}, s{idx}, 3
    s_add_u32 s{tt}, s{tt}, s{t0}
    s_lshr_b32 s{ct}, s{idx}, 2
    """.format(t0=sT0, wv=sWV, tt=sTT, xcd=sXCD, idx=sIDX, ct=sCT, l1k=sL1K)
    s += srd_consts(((SD, 0x1C0000), (SO, 0x80000), (SW, 0x10000000), (SOUT, 0x200000), (SDBG, 256), (SPHI, 16384)))
    return L(s)

def defaults():
    cfg.code_lim = 20480
    cfg.p3t = 0; cfg.pacew = {}; cfg.wpfd = 0; cfg.npro = 2; cfg.pace0 = 8; cfg.pace = [8, 8, 4]; cfg.p2pace = 1
    cfg.order = '1jrcsfd'; cfg.rot = 'z'; cfg.wpf0 = None; cfg.wpf = 0; cfg.wpf1 = [(SD, 14), (SO, 4)]; cfg.codepf = 1; cfg.w2pf = [(44, 16, 4), (48, 20, 4), (52, 24, 4), (56, 28, 4), (60, 32, 4)]
    cfg.p2period = 72; cfg.rd_early = True; cfg.one_wait = True; cfg.setup_end = 14
    cfg.a_att = 27; cfg.a_pub = 12; cfg.a_kvflag = 30; cfg.h1 = 18; cfg.a_h2 = 4
    cfg.b_h0 = 12; cfg.b_att = 22; cfg.b_ri = -8; cfg.b_rc = 0.1; cfg.b_li = 0.75
    cfg.flag_delay = 28; cfg.flag_delay2 = 14
    cfg.p0 = 10; cfg.poll_lead0 = 16; cfg.hstep0 = 5
    cfg.hlA = cfg.hlB = [4 * (n - 6) + 1 for n in range(36)]; cfg.poll_lead = [16, 16, 20, 20, 16]

def generate(path):
    label_n[0] = 0
    import fw; fw.LOOSE = cfg.x_nodma or cfg.x_drop
    progs = {}; cut = {}
    for typ in "AB":
        nc, p = build_type(typ)
        mark = p[nc]
        if cfg.x_nodma:
            k0 = [i for i, x in enumerate(p) if getattr(x, "kind", "") == "barrier"][0]
            q = p[:k0]
            for x in p[k0:]:
                if getattr(x, "dma", False):
                    y = I("s_nop 0");
                    q.append(y)
                else: q.append(x)
            p = q
        if cfg.x_drop:
            q = []
            for x in p:
                t = getattr(x, "text", "")
                d = ("h" in cfg.x_drop and t.startswith("buffer_load_dwordx4 a[")) or \
                    ("s" in cfg.x_drop and t.startswith("buffer_store_dwordx4") and "s[28:31]" in t) or \
                    ("w" in cfg.x_drop and getattr(x, "dma", False) and ("s[20:23]" in t or "s[24:27]" in t)) or \
                    ("p" in cfg.x_drop and x.kind == "raw")
                q.append(I("s_nop 0") if d else x)
            p = q
        progs[typ] = finalize(p, typ)
        cut[typ] = (progs[typ].index(mark), [i for i, x in enumerate(progs[typ]) if x.kind == "label"][0])
    body = emit(progs["A"][:cut["A"][1]]) + "L_proB:\n" + emit(progs["B"][cut["B"][0]:cut["B"][1]]) + "L_exit:\n    s_endpgm\n" + \
           emit(progs["A"][cut["A"][1]:]) + emit(progs["B"][cut["B"][1]:])
    ref = open("parallel_sum__linear_kernel_hedgehog__glu_gated_bilinear__prompt.s.ref").read().split("\n")
    head = [x for x in ref if x.startswith(";") and "@launch" not in x and "Override" not in x and "grid=ceil" not in x]
    txt = "\n".join(head) + "\n; @launch grid=(256,1,1) block=(256,1,1) lds=%d\n" % LDS_BYTES
    txt += """.amdgcn_target "amdgcn-amd-amdhsa--gfx950"
.text
.globl {k}
.p2align 8
.type {k},@function
{k}:
""".format(k=KNAME) + body + """.section .rodata,"a"
.p2align 6
.amdhsa_kernel {k}
  .amdhsa_next_free_vgpr 512
  .amdhsa_next_free_sgpr 102
  .amdhsa_accum_offset 256
  .amdhsa_group_segment_fixed_size 0
  .amdhsa_kernarg_size 88
  .amdhsa_user_sgpr_count 2
  .amdhsa_user_sgpr_kernarg_segment_ptr 1
  .amdhsa_system_sgpr_workgroup_id_x 1
.end_amdhsa_kernel
""".format(k=KNAME)
    open(path, "w").write(txt)
    if cfg.stamps: open(path[:-2] + ".names", "w").write("\n".join(stamp_names))

if __name__ == "__main__":
    defaults()
    path = sys.argv[1]
    for kv in sys.argv[2:]:
        k, v = kv.split("=")
        setattr(cfg, k, eval(v))
    generate(path)
```

```python
import re

TRANS = ("v_exp_f32", "v_log_f32", "v_rcp_f32", "v_rsq_f32", "v_sqrt_f32")


def regs_of(tok):
    tok = tok.strip()
    neg = tok.lstrip("-")
    if neg.startswith("abs(") or neg.startswith("|"):
        neg = neg.replace("abs(", "").replace(")", "").replace("|", "")
    m = re.fullmatch(r"([vas])\[(\d+):(\d+)\]", neg)
    if m:
        return [m.group(1) + str(i) for i in range(int(m.group(2)), int(m.group(3)) + 1)]
    m = re.fullmatch(r"([vas])(\d+)", neg)
    if m:
        return [neg]
    if neg in ("vcc", "exec", "m0", "scc"):
        return [neg]
    return []


class I:
    def __init__(self, text, tag=None):
        self.text = text.strip()
        self.tag = tag
        self.rd, self.wr = [], []
        self.kind = None
        self.passes = 0
        self.srcc = []
        self.parse()

    def parse(self):
        t = self.text
        if t.endswith(":"):
            self.kind = "label"; self.cost = 0; self.op = "label"; return
        parts = t.split(None, 1)
        op = parts[0]
        self.op = op
        rest = parts[1] if len(parts) > 1 else ""
        ops = [o.strip() for o in rest.split(",")] if rest else []
        if ops:
            last = ops[-1].split()
            mods = last[1:]
            ops[-1] = last[0]
        else:
            mods = []
        self.mods = mods
        R = lambda k: [r for o in ops[k:] for r in regs_of(o)]
        self.cost = 4
        if op.startswith("v_mfma"):
            self.kind = "mfma"
            self.wr = regs_of(ops[0]); self.srca = regs_of(ops[1]); self.srcb = regs_of(ops[2]); self.srcc = regs_of(ops[3])
            self.rd = self.srca + self.srcb + self.srcc
            self.passes = 8 if "32x32x16" in op else 4 if "16x16x32" in op else 2
            self.cost = 8
        elif op.startswith("ds_read"):
            self.kind = "ds"; self.wr = regs_of(ops[0]); self.rd = R(1)
        elif op.startswith("ds_"):
            self.kind = "ds"; self.rd = R(0)
        elif op.startswith("buffer_load") and "lds" in mods:
            self.kind = "vm"; self.rd = R(0) + ["m0"]; self.dma = True
        elif op.startswith("buffer_load") or op.startswith("global_load"):
            self.kind = "vm"; self.wr = regs_of(ops[0]); self.rd = R(1)
        elif op.startswith("buffer_store") or op.startswith("buffer_atomic"):
            self.kind = "vm"; self.rd = R(0); self.data = regs_of(ops[0])
        elif op.startswith("s_load") or op in ("s_memtime", "s_memrealtime"):
            self.kind = "smem"; self.wr = regs_of(ops[0]); self.rd = R(1)
        elif op in ("s_waitcnt", "s_barrier", "s_nop", "s_endpgm", "s_sleep", "s_setprio"):
            self.kind = op[2:]
        elif op.startswith("s_cbranch") or op == "s_branch":
            self.kind = "branch"
            if "scc" in op: self.rd = ["scc"]
            if "vcc" in op: self.rd = ["vcc"]
            if "exec" in op: self.rd = ["exec"]
        elif op.startswith("s_cmp"):
            self.kind = "salu"; self.rd = R(0); self.wr = ["scc"]
        elif op.startswith("s_"):
            self.kind = "salu"; self.wr = regs_of(ops[0]); self.rd = R(1)
            if not op.startswith(("s_mov", "s_mul_i32", "s_getpc", "s_getreg", "s_cselect")): self.wr = self.wr + ["scc"]
            if op.startswith("s_cselect") or op.startswith("s_addc"): self.rd = self.rd + ["scc"]
        elif op.startswith("v_"):
            self.kind = "valu"
            self.wr = regs_of(ops[0]); self.rd = R(1)
            if op.startswith(("v_fmac", "v_dot2c", "v_writelane")): self.rd = self.rd + self.wr
            if op.startswith("v_permlane"):
                self.wr = regs_of(ops[0]) + regs_of(ops[1]); self.rd = list(self.wr)
            if op.split("_e")[0] in TRANS or op in TRANS:
                self.trans = True; self.cost = 8
        else:
            raise ValueError("cannot parse: " + t)

    def __repr__(self):
        return self.text


class Wait:
    def __init__(self, tag):
        self.tag = tag; self.cost = 2; self.kind = "pseudo_wait"


class Gap:
    def __init__(self, n):
        self.n = n


class Raw:
    def __init__(self, lines, rd=(), wr=()):
        self.lines = lines; self.kind = "raw"; self.cost = 4 * len(lines); self.rd = list(rd); self.wr = list(wr)


def L(text, tag=None):
    out = []
    for x in text.strip("\n").split("\n"):
        x = x.split(";")[0].strip()
        if x: out.append(I(x))
    if tag is not None: out[-1].tag = tag
    return out


class Sched:
    def __init__(self):
        self.beats = []

    def beat(self, main, period=32):
        self.beats.append(dict(pre=[], main=main, post=[], period=period))
        return len(self.beats) - 1

    @staticmethod
    def _cost(item):
        if isinstance(item, list): return sum(x.cost for x in item)
        return item.cost

    def load(self, b):
        bt = self.beats[b]
        return sum(self._cost(x) for x in bt["pre"] + bt["post"]) + (bt["main"].cost if bt["main"] is not None else 0)

    def put(self, b, item, pre=False):
        self.beats[b]["pre" if pre else "post"].append(item)

    def spread(self, items, b0, b1, name=""):
        n = b1 - b0
        total = sum(self._cost(x) for x in items if not isinstance(x, Gap))
        gaps = sum(x.n for x in items if isinstance(x, Gap))
        loads = [self.load(b) - self.beats[b]["period"] + (1000 if self.beats[b].get("quiet") and n > 12 else 0) for b in range(b0, b1)]
        lo, hi = -64.0, 4096.0
        def run(level, place):
            b = 0; room = max(0.0, level - loads[0])
            last = 0
            for it in items:
                if isinstance(it, Gap):
                    b = min(n - 1, b + it.n)
                    room = min(room, 0) + max(0.0, level - loads[b])
                    continue
                c = self._cost(it)
                while room < min(c, 8) * 0.5 and b < n - 1:
                    b += 1; room = min(room, 0) + max(0.0, level - loads[b])
                if room < min(c, 8) * 0.5 and not place: return None
                if place: self.put(b0 + b, it)
                room -= c; last = b
            return last
        for _ in range(30):
            mid = (lo + hi) / 2
            if run(mid, False) is None: lo = mid
            else: hi = mid
        last = run(hi, True)
        if name: print("  spread %-10s cost %5d over beats %d..%d level %+.0f last %d" % (name, total, b0, b1, hi, b0 + last))
        return b0 + last

    def flat(self):
        out = []
        def add(x):
            if isinstance(x, list): out.extend(x)
            else: out.append(x)
        for bt in self.beats:
            for x in bt["pre"]: add(x)
            if bt["main"] is not None: add(bt["main"])
            for x in bt["post"]: add(x)
        return out


LOOSE = False
def insert_waits(prog):
    out = []
    vm_seq = 0; vm_done = 0
    ds_seq = 0; ds_done = 0
    pend = {}
    tags = {}
    sm_out = False
    maxvm = 0

    def need(kind, seq, w):
        if kind == "vm" and seq > vm_done: w["vm"] = max(w.get("vm", 0), seq)
        if kind == "ds" and seq > ds_done: w["ds"] = max(w.get("ds", 0), seq)
        if kind == "sm": w["sm"] = 1

    for ins in prog:
        w = {}
        if isinstance(ins, Wait):
            if ins.tag == "lgkm0": need("ds", ds_seq, w)
            elif ins.tag == "vm0": need("vm", vm_seq, w)
            else:
                if ins.tag in tags:
                    k, s = tags[ins.tag]; need(k, s, w)
                else: assert LOOSE, ins.tag
        else:
            for r in list(ins.rd) + list(ins.wr):
                if r in pend: need(pend[r][0], pend[r][1], w)
        if w:
            parts = []
            if "vm" in w:
                n = min(vm_seq - w["vm"], 63); parts.append("vmcnt(%d)" % n); vm_done = vm_seq - n
            if "sm" in w:
                parts.append("lgkmcnt(0)"); ds_done = ds_seq; sm_out = False
                for r in [r for r, v in pend.items() if v[0] == "sm"]: del pend[r]
            elif "ds" in w:
                n = min(ds_seq - w["ds"], 15); parts.append("lgkmcnt(%d)" % n); ds_done = ds_seq - n
            out.append(I("s_waitcnt " + " ".join(parts)))
            for r in [r for r, v in pend.items() if (v[0] == "vm" and v[1] <= vm_done) or (v[0] == "ds" and v[1] <= ds_done)]: del pend[r]
        if isinstance(ins, Wait): continue
        out.append(ins)
        if ins.kind == "vm":
            vm_seq += 1
            for r in ins.wr: pend[r] = ("vm", vm_seq)
            if ins.tag: tags[ins.tag] = ("vm", vm_seq)
            maxvm = max(maxvm, vm_seq - vm_done)
        elif ins.kind == "ds":
            ds_seq += 1
            for r in ins.wr: pend[r] = ("ds", ds_seq)
            if ins.tag: tags[ins.tag] = ("ds", ds_seq)
        elif ins.kind == "smem":
            if not getattr(ins, "nowait", False):
                for r in ins.wr: pend[r] = ("sm", 0)
    return out, maxvm


def states(ins):
    if ins.kind == "label": return 0
    if ins.kind == "nop": return int(ins.text.split()[1]) + 1
    if ins.kind == "raw": return 1
    return 1


def pad_hazards(prog):
    out = []
    nn = 0
    for ins in prog:
        needn = 0
        if ins.kind not in ("label", "nop", "waitcnt", "barrier"):
            rd = set(ins.rd); wr = set(ins.wr)
            dist = 0
            for p in reversed(out):
                if dist >= 20: break
                req = 0
                pw = set(p.wr) if p.kind not in ("label", "nop", "waitcnt", "barrier") else set()
                if p.kind == "valu":
                    vw = {r for r in pw if r[0] in "va" and r != "vcc"}
                    sw = pw - vw
                    if ins.kind == "mfma" and vw & rd: req = max(req, 2)
                    if ins.kind == "valu" and ins.op.startswith("v_permlane") and vw & rd: req = max(req, 2)
                    if ins.kind == "valu" and ins.op.startswith(("v_readfirstlane", "v_readlane")) and vw & rd: req = max(req, 1)
                    if getattr(p, "trans", False) and vw & rd: req = max(req, 1)
                    if "sdwa" in p.op and vw & (rd | wr): req = max(req, 1)
                    if sw & rd:
                        if ins.kind == "valu": req = max(req, 2)
                        elif ins.kind == "vm": req = max(req, 5)
                        elif ins.kind in ("salu", "branch", "raw"): req = max(req, 4)
                elif p.kind == "mfma":
                    k = {2: 0, 4: 1, 8: 2}[p.passes]
                    if ins.kind == "mfma":
                        if pw & set(ins.srcc):
                            if list(p.wr) == list(ins.srcc) and p.passes == ins.passes: req = max(req, [2, 0, 0][k])
                            else: req = max(req, [4, 6, 10][k])
                        if pw & (set(ins.srca) | set(ins.srcb)): req = max(req, [5, 8, 12][k])
                        if pw & wr and not (pw & set(ins.srcc)): req = max(req, [5, 8, 12][k])
                    else:
                        if pw & (rd | wr): req = max(req, [5, 8, 12][k])
                        if set(p.srcc) & wr: req = max(req, [1, 3, 7][k])
                elif p.kind == "salu":
                    if "m0" in pw and ins.kind == "vm" and "m0" in rd: req = max(req, 1)
                elif p.kind in ("vm", "ds"):
                    data = getattr(p, "data", None)
                    if p.kind == "ds" and not p.wr: data = p.rd[1:]
                    if data and len(data) >= 3 and set(data) & wr: req = max(req, 2)
                if req > dist: needn = max(needn, req - dist)
                dist += states(p)
        if needn:
            out.append(I("s_nop %d" % (needn - 1))); nn += needn
        out.append(ins)
    return out, nn


def emit(prog):
    lines = []
    for ins in prog:
        if ins.kind == "raw": lines += ["    " + x if not x.endswith(":") else x for x in ins.lines]
        elif ins.kind == "label": lines.append(ins.text)
        else: lines.append("    " + ins.text)
    return "\n".join(lines) + "\n"


def _flat(x):
    o = []
    for y in x: o += _flat(y) if isinstance(y, list) else [y]
    return o

def defines(ins, **roles):
    fl = [x for x in _flat(ins) if isinstance(x, I)]
    for name, regs in roles.items():
        for r in (regs if isinstance(regs, (list, tuple, range)) else [regs]):
            w = [x for x in fl if r_name(r) in x.wr]
            assert w, (name, r)
            w[-1].__dict__.setdefault("role", {})[r_name(r)] = name
    return ins

def needs(ins, **roles):
    fl = [x for x in _flat(ins if isinstance(ins, list) else [ins]) if isinstance(x, (I, Raw))]
    for name, regs in roles.items():
        for r in (regs if isinstance(regs, (list, tuple, range)) else [regs]):
            for x in fl:
                if r_name(r) in x.rd:
                    x.__dict__.setdefault("need", {})[r_name(r)] = name
                    if r_name(r) in x.wr: break
    return ins

def r_name(r): return r if isinstance(r, str) else "v%d" % r

def check_roles(prog, name):
    cur = {}
    for k, x in enumerate(prog):
        if isinstance(x, Wait): continue
        for r, n in getattr(x, "need", {}).items():
            assert cur.get(r) == n, "%s: %s needs %s=%s but holds %s" % (name, getattr(x, "text", "raw"), r, n, cur.get(r))
        for r in getattr(x, "wr", []):
            cur[r] = getattr(x, "role", {}).get(r)

def finalize(prog, name=""):
    check_roles(prog, name)
    p, maxvm = insert_waits(prog)
    q = []
    for x in p:
        if x.kind == "waitcnt" and q and q[-1].kind == "waitcnt":
            d = dict(re.findall(r"(\w+)\((\d+)\)", q[-1].text))
            for k, v in re.findall(r"(\w+)\((\d+)\)", x.text): d[k] = str(min(int(v), int(d.get(k, 99))))
            q[-1] = I("s_waitcnt " + " ".join("%s(%s)" % (k, d[k]) for k in ("vmcnt", "lgkmcnt") if k in d))
        else: q.append(x)
    p = q
    p, nn = pad_hazards(p)
    cnt = {}
    for x in p: cnt[x.kind] = cnt.get(x.kind, 0) + 1
    print("  %s: %d instr, max vm in flight %d, nop states %d, %s" % (name, len(p), maxvm, nn, cnt))
    return p
```

```python
import sys
from fw import *

KNAME = "parallel_sum__linear_kernel_hedgehog__glu_gated_bilinear__prompt_kernel"

class Cfg:
    rot = True
    stamps = False
    codepf = False
    wpf = False
    w2pf = False
    spin = 200000
    dbgout = False
    x_drop = ''
    x_nostat = False; x_notask = False; x_nodma = False; x_nobar = False
cfg = Cfg()

PITCH = 8224
NSLOT = 16
WREG = NSLOT * PITCH
WREG_SZ = 5632
VOFF = 2304
STAT = WREG + 4 * WREG_SZ
CSP = STAT + 2048
CST = CSP + 3072
LDS_BYTES = 163840
WS_H = 0
WS_KVP = 0xC00000
WS_KVF = 0xA00000
WS_FL = 0xA40000
WS_ST = 0xB00000
OOB = 0x40000000

SX, SQ, SG, SU, SD, SO, SW, SOUT, SDBG, SPHI = 4, 8, 12, 16, 20, 24, 28, 32, 36, 40
def srd(b): return "s[%d:%d]" % (b, b + 3)
sWV, sTH, sGR, sRB, sQ, sT4, sAB, sI, sTT, sCT, sIDX, sXCD = range(44, 56)
sKX, sKQ, sKG = 56, 64, 72
sLX, sL2K, sL1K, sT0, sT1, sSPIN = 80, 81, 82, 83, 84, 85
sM1, sM2, sM3, sMB = 86, 88, 90, 92
sWDB, sWOB, sC2, sH2, sS = 94, 95, 96, 97, 3
sMH = 54
sST = 98
SET0, SET1, WF = 0, 64, 128
SEL01, SEL23 = 144, 148
vPW, vPR, vVW, vVR0 = 152, 153, 154, 155
vKVL, vKRL, vKRS = 152, 153, 154
CSD = 156
MB = 160
CA = 168
vSL = 172
XR, WR1, WR3, XD, WR2 = 174, 178, 178, 182, 182
W2R = 174
WQD, WGD, WHD = 186, 188, 190
vHLD, vPOL = 186, 187
vCSA, vRS, vR2, vHST, vL, W2D = 191, 192, 194, 196, 197, 198
WPHI = 200
KVD = 208
TMP = 240
vFLG, vVR1, vKVA, vSTAMP = 252, 253, 254, 255
RSD, SQD = 64, 68
ACC2 = [96, 112, 208, 224]

def vr(b, n=1): return "v%d" % b if n == 1 else "v[%d:%d]" % (b, b + n - 1)
def ar(b, n): return "a[%d:%d]" % (b, b + n - 1)

stamp_names = []
def stamp(name):
    if cfg.stamps != True: return []
    if name not in stamp_names: stamp_names.append(name)
    k = stamp_names.index(name)
    return [I("s_memtime s[%d:%d]" % (sST, sST + 1)), I("v_writelane_b32 v%d, s%d, %d" % (vSTAMP, sST, k + 2))]

def addr_wfull(dst, n, att, swap, t0=TMP):
    a, b = vr(t0), vr(t0 + 1)
    s = """
    v_lshrrev_b32 {a}, 5, v{L}
    v_lshlrev_b32 {a}, 10, {a}
    v_bfe_u32 {b}, v{L}, 2, 2
    v_lshl_add_u32 {a}, {b}, 7, {a}
    v_and_b32 {b}, 3, v{L}
    v_lshl_add_u32 {a}, {b}, 3, {a}
    v_bfe_u32 {b}, v{L}, 3, 1
    v_xor_b32 {b}, s{gr}, {b}
    v_lshl_add_u32 {a}, {b}, 6, {a}
    v_bfe_u32 {b}, v{L}, 4, 1
    """.format(a=a, b=b, L=vL, gr=sGR)
    if att:
        if swap: s += "v_xor_b32 %s, s%d, %s\n" % (b, sTH, b)
        s += "v_lshl_add_u32 %s, %s, 5, %s\n" % (a, b, a)
    else:
        s += "v_mul_u32_u24 %s, %d, %s\nv_add_u32 %s, %s, %s\n" % (b, PITCH, b, a, a, b)
    return L(s) + wr_variants(dst, n, a, 12, 'Watt' if att else 'Wpair')

def wr_variants(dst, n, a, sh, role):
    s = "s_lshl_b32 s%d, s%d, %d\ns_xor_b32 s%d, s%d, %d\n" % (sT0, sS, sh, sT1, sT0, 1 << sh)
    k = dst
    if n == 4:
        s += "v_add_u32 v%d, s%d, %s\nv_add_u32 v%d, s%d, %s\n" % (k, sT0, a, k + 1, sT1, a)
        s += "v_add_u32 v%d, %d, v%d\nv_add_u32 v%d, %d, v%d\n" % (k + 2, 8 * PITCH, k, k + 3, 8 * PITCH, k + 1)
    else:
        s += "v_add_u32 %s, %d, %s\n" % (a, 8 * PITCH, a)
        s += "v_add_u32 v%d, s%d, %s\nv_add_u32 v%d, s%d, %s\n" % (k, sT0, a, k + 1, sT1, a)
    ins = L(s)
    return [defines(ins, **{role: range(dst, dst + n)})]

def addr_whalf(dst, t0=TMP):
    a, b = vr(t0), vr(t0 + 1)
    s = """
    v_lshrrev_b32 {a}, 5, v{L}
    v_lshlrev_b32 {a}, 9, {a}
    v_bfe_u32 {b}, v{L}, 2, 2
    v_lshl_add_u32 {a}, {b}, 6, {a}
    v_and_b32 {b}, 3, v{L}
    v_lshl_add_u32 {a}, {b}, 3, {a}
    v_bfe_u32 {b}, v{L}, 4, 1
    v_mul_u32_u24 {b}, 4128, {b}
    v_add_u32 {a}, {a}, {b}
    v_mov_b32 {b}, s{gr}
    v_lshl_add_u32 {a}, {b}, 5, {a}
    """.format(a=a, b=b, L=vL, gr=sGR)
    return L(s) + wr_variants(dst, 4, a, 11, 'Whalf')

def addr_cs(swap, t0=TMP):
    a = vr(t0)
    s = "s_lshl_b32 s%d, s%d, 8\ns_lshl_b32 s%d, s%d, 7\ns_add_u32 s%d, s%d, s%d\ns_add_u32 s%d, s%d, %d\n" % (sT0, sGR, sT1, sTH, sT0, sT0, sT1, sT0, sT0, CSP)
    s += "v_and_b32 %s, 31, v%d\n" % (a, vL)
    if swap: s += "s_lshl_b32 s%d, s%d, 4\nv_xor_b32 %s, s%d, %s\n" % (sT1, sTH, a, sT1, a)
    s += """
    v_lshl_add_u32 v{ca}, {a}, 2, s{t}
    v_lshrrev_b32 {a}, 5, v{L}
    v_lshl_add_u32 v{ca}, {a}, 9, v{ca}
    """.format(a=a, L=vL, ca=vCSA, t=sT0)
    return [defines(L(s), **{"CSs" if swap else "CS": vCSA})]

def addr_p2(t0=TMP):
    a, b = vr(t0), vr(t0 + 1)
    s = """
    v_lshrrev_b32 {a}, 5, v{L}
    v_lshlrev_b32 {a}, 9, {a}
    v_bfe_u32 {b}, v{L}, 2, 2
    v_lshl_add_u32 {a}, {b}, 7, {a}
    v_and_b32 {b}, 3, v{L}
    v_lshl_add_u32 {a}, {b}, 3, {a}
    v_bfe_u32 {b}, v{L}, 3, 1
    v_lshl_add_u32 {a}, {b}, 6, {a}
    v_bfe_u32 {b}, v{L}, 4, 1
    v_lshl_add_u32 {a}, {b}, 5, {a}
    v_xor_b32 {b}, 64, {a}
    v_add_u32 v{w0}, s{l2k}, {a}
    v_add_u32 v{w1}, s{l2k}, {b}
    v_add_u32 v{w2}, {hi}, v{w0}
    v_add_u32 v{w3}, {hi}, v{w1}
    """.format(a=a, b=b, L=vL, w0=W2R, w1=W2R + 1, w2=W2R + 2, w3=W2R + 3, l2k=sL2K, hi=8 * PITCH)
    ins = L(s)
    ins.append(L("""
    s_mul_i32 s{t0}, s{tt}, {a}
    s_mul_i32 s{t1}, s{wv}, {b}
    s_add_u32 s{t0}, s{t0}, s{t1}
    v_lshl_add_u32 v{h}, v{L}, 4, s{t0}
    """.format(t0=sT0, t1=sT1, tt=sTT, wv=sWV, a=144 * 2048, b=36 * 2048, h=vHLD, L=vL)))
    ins.append(L("""
    s_lshl_b32 s{t0}, s{tt}, 2
    s_add_u32 s{t0}, s{t0}, s{wv}
    s_lshl_b32 s{t0}, s{t0}, 7
    s_add_u32 s{t0}, s{t0}, {fl}
    v_and_b32 {a}, 7, v{L}
    v_lshl_add_u32 v{p}, {a}, 2, s{t0}
    """.format(t0=sT0, tt=sTT, wv=sWV, fl=WS_FL, a=a, L=vL, p=vPOL)))
    return defines(ins, W2R=range(W2R, W2R + 4), HLD=vHLD, POL=vPOL)

label_n = [0]
def poll(addr, res, need, sr=SW, cmp="gt"):
    label_n[0] += 1
    k = label_n[0]
    ld = "buffer_load_dword v%d, v%d, %s, 0 offen sc1" % (res, addr, srd(sr))
    c = "v_cmp_%s_u32 vcc, %s, v%d" % (cmp, need, res)
    chk = Raw([c, "s_nop 4", "s_cbranch_vccz L_ok%d" % k,
               "s_mov_b32 s%d, %d" % (sSPIN, cfg.spin),
               "L_re%d:" % k, "s_sleep 1", ld, "s_waitcnt vmcnt(0)", c, "s_sub_u32 s%d, s%d, 1" % (sSPIN, sSPIN),
               "s_cbranch_scc1 L_ok%d" % k, "s_nop 2", "s_cbranch_vccnz L_re%d" % k,
               "L_ok%d:" % k],
              rd=["v%d" % res, "v%d" % addr] + regs_of(need), wr=["vcc", "scc", "s%d" % sSPIN])
    chk.cost = 32
    return I(ld), chk

def class_poll(c, res, needr):
    na, nb = [(0, 1), (0, 2), (1, 2), (2, 2), (2, 3)][c]
    iss, chk = poll(vPOL, res, "v%d" % needr)
    needs([iss, chk], POL=vPOL); defines([iss], **{"cp%d" % c: res}); needs([chk], **{"cp%d" % c: res})
    return iss, [I("v_cndmask_b32 v%d, %d, %d, s[%d:%d]" % (needr, na, nb, sMB, sMB + 1)), chk]

def set_flag(level, tag, t):
    if cfg.strict: tag = "vm0"
    return stamp("f%d_0" % level) + [Wait(tag)] + stamp("f%d_1" % level) + [I("v_mov_b32 v%d, %d" % (t, level)), needs(I("buffer_store_dword v%d, v%d, %s, 0 offen sc1" % (t, vFLG, srd(SW))), FLG=vFLG)]

def t_stat_add():
    a, b = TMP, TMP + 1
    s = """
    s_lshl_b32 s{t0}, s{th}, 10
    s_add_u32 s{t0}, s{t0}, {st}
    v_and_b32 v{b}, 31, v{L}
    v_lshl_add_u32 v{b}, v{b}, 4, s{t0}
    s_lshl_b32 s{t1}, s{gr}, 3
    s_add_u32 s{t0}, s{t0}, s{t1}
    v_lshl_add_u32 v{a}, v{L}, 4, s{t0}
    """.format(t0=sT0, t1=sT1, th=sTH, gr=sGR, st=STAT, a=a, b=b, L=vL)
    pre = [L(s)]
    out = []
    for j, m in ((1, sM1), (2, sM2), (3, sM3)):
        for blk in range(2):
            q = SQD + 4 * blk
            out += L("v_cndmask_b32 v%d, v%d, v%d, s[%d:%d]" % (q, q, q + j, m, m + 1))
    out.append(L("v_permlane32_swap_b32 v%d, v%d\nv_add_f32 v%d, v%d, v%d" % (SQD, SQD + 4, RSD + 1, SQD, SQD + 4)))
    out += L("ds_write_b64 v%d, v[%d:%d]" % (a, RSD, RSD + 1))
    return pre, out

def t_cs_add(tile0, role="CS"):
    return needs(L("ds_write_b32 v%d, v%d offset:%d" % (vCSA, CSD, 512 * tile0)), **{role: vCSA})

def t_cs_tot(tile0, t):
    out = L("v_xor_b32 v%d, 0x80, v%d\nds_read_b32 v%d, v%d offset:%d" % (t, vCSA, t, t, 512 * tile0))
    out.append(Gap(2))
    out += L("""
    v_add_f32 v{t}, v{t}, v{cs}
    v_cvt_pk_bf16_f32 v{a}, v{t}, v{t}
    v_lshlrev_b32 v{a1}, 16, v{a}
    v_sub_f32 v{t}, v{t}, v{a1}
    v_cvt_pk_bf16_f32 v{a1}, v{t}, 0
    """.format(t=t, cs=CSD, a=CA, a1=CA + 1))
    return defines(out, **{"CA%d" % tile0: (CA, CA + 1)})

def t_corr(acc, T, tile0):
    out = []
    for j in range(T):
        for b in range(2):
            d = vr(acc + 32 * j + 16 * b, 16)
            x = I("v_mfma_f32_32x32x16_bf16 %s, %s, %s, %s" % (d, vr(CA, 4), vr(MB + 4 * b + 2 * j, 4), d)); x.cost = 24
            out.append(x)
    return needs(out, MB=range(MB, MB + 8), Z=(CA + 2, CA + 3), **{"CA%d" % tile0: (CA, CA + 1)})

def t_stat_fin():
    b = TMP + 1; t = TMP + 4
    out = L("ds_read_b128 v[%d:%d], v%d\nds_read_b128 v[%d:%d], v%d offset:512" % (t, t + 3, b, t + 4, t + 7, b))
    out.append(Gap(2))
    late = []
    for blk in range(2):
        r = t + 4 * blk; m = MB + 4 * blk
        out += L("""
        v_add_f32 v{r}, v{r}, v{r2}
        v_mul_f32 v{r}, 0xbb000000, v{r}
        v_cvt_pk_bf16_f32 v{m1}, v{r}, 0
        v_lshlrev_b32 v{r2}, 16, v{m1}
        v_sub_f32 v{r2}, v{r}, v{r2}
        v_cvt_pk_bf16_f32 v{m0}, v{r}, v{r2}
        v_cndmask_b32 v{m2}, 0, v{m0}, s[{h}:{h1}]
        v_cndmask_b32 v{m3}, 0, v{m1}, s[{h}:{h1}]
        v_cndmask_b32 v{m0}, v{m0}, 0, s[{h}:{h1}]
        v_cndmask_b32 v{m1}, v{m1}, 0, s[{h}:{h1}]
        """.format(r=r, r2=r + 2, m0=m, m1=m + 1, m2=m + 2, m3=m + 3, h=sMH, h1=sMH + 1))
        late += L("""
        v_add_f32 v{r1}, v{r1}, v{r3}
        v_mul_f32 v{r2}, v{r}, v{r}
        v_fma_f32 v{r1}, v{r1}, s{c}, -v{r2}
        v_max_f32 v{r1}, 0, v{r1}
        v_add_f32 v{r1}, 0x3727c5ac, v{r1}
        v_rsq_f32 v{rs}, v{r1}
        v_rcp_f32 v{rr}, v{r1}
        v_mul_f32 v{sl}, 0x3fb8aa3b, v{rs}
        """.format(r=r, r1=r + 1, r2=r + 2, r3=r + 3, rs=vRS + blk, rr=vR2 + blk, sl=vSL + blk, c=sC2))
    defines(out, MB=range(MB, MB + 8)); defines(late, R2=(vR2, vR2 + 1), RS=(vRS, vRS + 1), SL=(vSL, vSL + 1))
    return out, late

def t_hepi(acc, soff, imm, tag):
    out = []
    for blk in range(2):
        g = acc + 16 * blk
        for r in range(0, 8 if not cfg.x_notask else 0, 2):
            out += L("v_mul_f32 v%d, v%d, v%d\nv_mul_f32 v%d, v%d, v%d" % (g + r, vR2 + blk, g + r, g + r + 1, vR2 + blk, g + r + 1))
            out += L("v_mul_f32 v%d, v%d, v%d\nv_mul_f32 v%d, v%d, v%d" % (g + r, g + r, g + 8 + r, g + r + 1, g + r + 1, g + 9 + r))
            out += L("v_cvt_pk_bf16_f32 v%d, v%d, v%d" % (g + r // 2, g + r, g + r + 1))
        st = L("buffer_store_dwordx4 v[%d:%d], v%d, %s, s%d offen offset:%d sc1" % (g, g + 3, vHST, srd(SW), sT1, imm + 1024 * blk), tag=tag if blk else None)
        out.append(L(soff) + st)
    return needs(out, HST=vHST, R2=(vR2, vR2 + 1))

def phi_mfma(acc, TMP=TMP):
    out = []
    for j in range(8): out += L("v_cvt_pk_bf16_f32 v%d, v%d, v%d" % (TMP + j, acc + 2 * j, acc + 2 * j + 1))
    out += L("v_mfma_f32_32x32x16_bf16 v[%d:%d], v[%d:%d], v[%d:%d], 0" % (acc, acc + 15, WPHI, WPHI + 3, TMP, TMP + 3))
    out += L("v_mfma_f32_32x32x16_bf16 v[%d:%d], v[%d:%d], v[%d:%d], v[%d:%d]" % (acc, acc + 15, WPHI + 4, WPHI + 7, TMP + 4, TMP + 7, acc, acc + 15))
    out[-1].cost = 24; out[-2].cost = 24
    return needs(out, WPHI=range(WPHI, WPHI + 8))

def softmax2(p, blk):
    e = TMP; a, b, c, d = TMP + 8, TMP + 9, TMP + 10, TMP + 11; sl = vSL + blk
    s = """
    v_max3_f32 v{a}, v{p0}, v{p1}, v{p2}
    v_min3_f32 v{b}, v{p0}, v{p1}, v{p2}
    v_max3_f32 v{a}, v{a}, v{p3}, v{p4}
    v_min3_f32 v{b}, v{b}, v{p3}, v{p4}
    v_max3_f32 v{a}, v{a}, v{p5}, v{p6}
    v_min3_f32 v{b}, v{b}, v{p5}, v{p6}
    v_max_f32 v{a}, v{a}, v{p7}
    v_max_f32_e64 v{b}, -v{b}, -v{p7}
    """.format(a=a, b=b, **{"p%d" % i: p + i for i in range(8)})
    out = L(s)
    out += L("v_permlane32_swap_b32 v{a}, v{b}\nv_max_f32 v{a}, v{a}, v{b}\nv_mul_f32_e64 v{a}, -v{a}, v{sl}\nv_mov_b32 v{b}, v{a}".format(a=a, b=b, sl=sl))
    out += L("v_permlane32_swap_b32 v{a}, v{b}".format(a=a, b=b))
    for i in range(8):
        out += L("v_fma_f32 v%d, v%d, v%d, v%d" % (e + i, p + i, sl, a))
        out += L("v_fma_f32 v%d, -v%d, v%d, v%d" % (p + i, p + i, sl, b))
        if i > 1: out += L("v_add_f32 v%d, v%d, v%d" % (c, c if i > 2 else e, e + i - 1))
        out += L("v_exp_f32 v%d, v%d" % (e + i, e + i))
        if i > 1: out += L("v_add_f32 v%d, v%d, v%d" % (d, d if i > 2 else p, p + i - 1))
        out += L("v_exp_f32 v%d, v%d" % (p + i, p + i))
    out += L("v_add_f32 v%d, v%d, v%d\nv_add_f32 v%d, v%d, v%d" % (c, c, e + 7, d, d, p + 7))
    out += L("v_permlane32_swap_b32 v{c}, v{d}\nv_add_f32 v{c}, v{c}, v{d}\nv_rcp_f32 v{c}, v{c}".format(c=c, d=d))
    out += L("v_mov_b32 v{d}, v{c}".format(c=c, d=d))
    out += L("v_permlane32_swap_b32 v{c}, v{d}".format(c=c, d=d))
    for i in range(8):
        out += L("v_mul_f32 v%d, v%d, v%d" % (p + i, d, p + i))
        if i & 1: out += L("v_cvt_pk_bf16_f32 v%d, v%d, v%d" % (p + i // 2, p + i - 1, p + i))
    for i in range(8):
        out += L("v_mul_f32 v%d, v%d, v%d" % (e + i, c, e + i))
        if i & 1: out += L("v_cvt_pk_bf16_f32 v%d, v%d, v%d" % (p + 4 + i // 2, e + i - 1, e + i))
    return out

def v_out(va, blk):
    out = []
    for r in range(0, 16, 2):
        out += L("v_mul_f32 v%d, v%d, v%d\nv_mul_f32 v%d, v%d, v%d" % (va + r, vRS + blk, va + r, va + r + 1, vRS + blk, va + r + 1))
        out += L("v_cvt_pk_bf16_f32 v%d, v%d, v%d" % (va + r // 2, va + r, va + r + 1))
        if r % 4 == 2: out += L("ds_write_b64 v%d, v[%d:%d] offset:%d" % (vVW, va + r // 2 - 1, va + r // 2, 4 * (r - 2)))
    return out

def weave(main, extra, pos):
    out = []; k = 0
    for n, x in enumerate(main):
        while k < len(extra) and pos[k] <= n: out.append(extra[k]); k += 1
        out.append(x)
    return out + extra[k:]

def t_att_k():
    out = []
    if cfg.x_notask: return [I("s_nop 0")]
    FR = 32
    rds, mms = [], []
    for blk in range(2):
        va = 32 + 16 * blk; ka = 16 * blk
        pm = phi_mfma(ka)
        out += weave(pm, rds, range(0, 8)); rds = []
        vo = v_out(va, blk)
        out += weave(vo, mms, (10, 18)); mms = []
        for hh in range(2):
            p = ka + 8 * hh
            sm = softmax2(p, blk)
            n = len(sm)
            wr = [I("ds_write_b64 v%d, v[%d:%d] offset:%d" % (vPW, p + 2 * j, p + 1 + 2 * j, 32 + 16 * j)) for j in range(2)] + \
                 [I("ds_write_b64 v%d, v[%d:%d] offset:%d" % (vPW, p + 4 + 2 * j, p + 5 + 2 * j, 16 * j)) for j in range(2)]
            sm = weave(sm, rds + mms + wr, [2, 5, 8, 8, 12, 12, 16, 20][:len(rds)] + [44, 56][:len(mms)] + [n - 17, n - 11, n - 5, n])
            out += sm
            rds, mms = [], []
            for ks in range(2):
                for j in range(2):
                    rds += L("ds_read_b64_tr_b16 v[%d:%d], v%d offset:%d" % (FR + 8 * ks + 4 + 2 * j, FR + 8 * ks + 5 + 2 * j, (vVR0, vVR1)[hh], 1664 * ks + 416 * j))
                for j in range(2):
                    rds += L("ds_read_b64_tr_b16 v[%d:%d], v%d offset:%d" % (FR + 8 * ks + 2 * j, FR + 8 * ks + 2 * j + 1, vPR, 1152 * ks + 288 * j))
            d = KVD + 16 * hh
            for ks in range(2):
                c = "0" if (blk == 0 and ks == 0) else vr(d, 16)
                x = I("v_mfma_f32_32x32x16_bf16 %s, %s, %s, %s" % (vr(d, 16), vr(FR + 8 * ks, 4), vr(FR + 8 * ks + 4, 4), c)); x.cost = 24
                mms.append(x)
    for x in rds: x.cost = 8
    out += rds
    pend = mms
    out.append(L("""
    s_mul_i32 s{t0}, s{wv}, {wsz}
    s_add_u32 s{t0}, s{t0}, {wreg}
    v_lshl_add_u32 v{a}, v{L}, 4, s{t0}
    s_xor_b32 s{t0}, s{wv}, 1
    s_mul_i32 s{t0}, s{t0}, {wsz}
    s_add_u32 s{t0}, s{t0}, {wreg}
    v_lshl_add_u32 v{b}, v{L}, 4, s{t0}
    """.format(t0=sT0, wv=sWV, wsz=WREG_SZ, wreg=WREG, a=TMP, b=TMP + 1, L=vL)))
    out += [Gap(2)] + pend + [Gap(2)]
    for r4 in range(4): out += L("ds_write_b128 v%d, %s offset:%d" % (TMP, vr(KVD + 16 + 4 * r4, 4), 1024 * r4))
    defines(out, EXR=TMP + 1)
    return needs(out, PW=vPW, PR=vPR, VW=vVW, VR0=vVR0, VR1=vVR1, RS=(vRS, vRS + 1), SL=(vSL, vSL + 1))

def t_kv_pub():
    out = []
    for r4 in range(4): out += L("ds_read_b128 %s, v%d offset:%d" % (vr(KVD + 16 + 4 * r4, 4), TMP + 1, 1024 * r4))
    out.append(Gap(2))
    for r in range(16):
        out += L("v_add_f32 v%d, v%d, v%d" % (KVD + r, KVD + r, KVD + 16 + r))
        if r % 4 == 3: out += L("buffer_store_dwordx4 %s, v%d, %s, 0 offen offset:%d sc1" % (vr(KVD + r - 3, 4), vKVA, srd(SW), 256 * (r - 3)))
    return needs(out, EXR=TMP + 1, KVA=vKVA)

def data_poll(loads, regs, t):
    label_n[0] += 1
    k = label_n[0]
    chk = ["v_max3_u32 v%d, v%d, v%d, v%d" % (t, regs[0], regs[1], regs[2])]
    rest = regs[3:]
    while len(rest) > 1:
        chk.append("v_max3_u32 v%d, v%d, v%d, v%d" % (t, t, rest[0], rest[1])); rest = rest[2:]
    if rest: chk.append("v_max_u32 v%d, v%d, v%d" % (t, t, rest[0]))
    fast = L("\n".join(chk))
    c = "v_cmp_eq_u32 vcc, -1, v%d" % t
    raw = Raw([c, "s_nop 4", "s_cbranch_vccz L_ok%d" % k, "s_mov_b32 s%d, %d" % (sSPIN, cfg.spin), "L_re%d:" % k, "s_sleep 1"] + loads +
              ["s_waitcnt vmcnt(0)"] + chk + [c, "s_sub_u32 s%d, s%d, 1" % (sSPIN, sSPIN), "s_cbranch_scc1 L_ok%d" % k, "s_nop 2",
               "s_cbranch_vccnz L_re%d" % k, "L_ok%d:" % k],
              rd=["v%d" % t], wr=["vcc", "scc", "s%d" % sSPIN, "s%d" % sT1] + ["v%d" % r for r in regs])
    raw.cost = 32
    return fast + [raw]

RR = 80
def t_kv_red():
    ld = []
    for k in range(4):
        ld += ["s_mov_b32 s%d, %d" % (sT1, 16384 * k), "buffer_load_dwordx4 %s, v%d, %s, s%d offen sc1" % (vr(RR + 4 * k, 4), vKRL, srd(SW), sT1)]
    iss = [L("\n".join(ld[2 * k:2 * k + 2])) for k in range(4)]
    out = data_poll(ld, list(range(RR, RR + 16)), vKVA)
    for j in range(4):
        out += L("v_add_f32 v%d, v%d, v%d\nv_add_f32 v%d, v%d, v%d" % (RR + j, RR + j, RR + 4 + j, RR + 8 + j, RR + 8 + j, RR + 12 + j))
    for j in range(4): out += L("v_add_f32 v%d, v%d, v%d" % (RR + j, RR + j, RR + 8 + j))
    out += L("""
    v_permlane16_swap_b32 v{a}, v{b}
    v_permlane16_swap_b32 v{c}, v{d}
    v_add_f32 v{a}, v{a}, v{b}
    v_add_f32 v{c}, v{c}, v{d}
    v_permlane32_swap_b32 v{a}, v{c}
    v_add_f32 v{a}, v{a}, v{c}
    buffer_store_dword v{a}, v{s}, {sr}, 0 offen sc1
    """.format(a=RR, b=RR + 1, c=RR + 2, d=RR + 3, s=vKRS, sr=srd(SW)))
    needs(iss, KRL=vKRL); needs(out, KRS=vKRS)
    return iss, out

def t_att_q():
    out = []
    if cfg.x_notask: return [I("s_nop 0")]
    out += phi_mfma(SET0, 64) + phi_mfma(SET0 + 16, 72)
    out += softmax2(SET0, 0) + softmax2(SET0 + 8, 0) + softmax2(SET0 + 16, 1) + softmax2(SET0 + 24, 1)
    return out

KR = 32
def t_kv_load():
    ld = []
    for hh in range(2):
        ld += ["s_mov_b32 s%d, %d" % (sT1, 4096 * hh)]
        for r4 in range(4):
            ld += ["buffer_load_dwordx4 %s, v%d, %s, s%d offen offset:%d sc1" % (vr(KR + 16 * hh + 4 * r4, 4), vKVL, srd(SW), sT1, 1024 * r4)]
    iss = [L("\n".join(ld[:5])), L("\n".join(ld[5:]))]
    return needs(iss, KVL=vKVL), data_poll(ld, list(range(KR, KR + 32)), vKVA)

def t_o():
    out = []
    for hh in range(2):
        for j in range(8): out += L("v_cvt_pk_bf16_f32 v%d, v%d, v%d" % (KR + 16 * hh + j, KR + 16 * hh + 2 * j, KR + 16 * hh + 2 * j + 1))
    seq = [(hh, blk) for hh in range(2) for blk in range(2)]
    def mm(k):
        hh, blk = seq[k]; d = 64 + 16 * (k & 1); p = SET0 + 16 * blk + 8 * hh
        return L("v_mfma_f32_32x32x16_bf16 %s, %s, %s, 0" % (vr(d, 16), vr(KR + 16 * hh, 4), vr(p + 4, 4))) + \
               L("v_mfma_f32_32x32x16_bf16 %s, %s, %s, %s" % (vr(d, 16), vr(KR + 16 * hh + 4, 4), vr(p, 4), vr(d, 16)))
    def fin(k):
        hh, blk = seq[k]; d = 64 + 16 * (k & 1)
        o = L("v_add_f32 v%d, 0x358637bd, v%d\nv_rcp_f32 v%d, v%d" % (d + 8, d + 8, d + 8, d + 8))
        for r in range(8):
            o += L("v_mul_f32 v%d, v%d, v%d" % (d + r, d + 8, d + r))
            if r & 1: o += L("v_cvt_pk_bf16_f32 v%d, v%d, v%d" % (d + r // 2, d + r - 1, d + r))
        st = L("s_mov_b32 s%d, %d" % (sT1, 28 * 2048)) + \
             L("buffer_store_dwordx4 %s, v%d, %s, s%d offen offset:%d sc1" % (vr(d, 4), vHST, srd(SW), sT1, 2048 * hh + 1024 * blk), tag="ost" if k == 3 else None)
        return o + [st]
    out += mm(0) + mm(1) + fin(0) + mm(2) + fin(1) + mm(3) + fin(2) + fin(3)
    return out

def dma(vo, sr, so, imm, tag=None):
    role = "XD" if sr == SX else "WQD" if sr == SQ else "W2D" if sr in (SD, SO) else "WHD" if vo == WHD else "WGD"
    return needs(dma_(vo, sr, so, imm, tag), **{role: vo})

def dma_(vo, sr, so, imm, tag=None):
    return L("buffer_load_dwordx4 v%d, %s, %s offen%s lds" % (vo, srd(sr), so, " offset:%d" % imm if imm else ""), tag=tag)

def m0set(base, lit): return L("s_add_u32 m0, s%d, %d" % (base, lit))

def dma_x(c, slot, tag):
    if not cfg.rot:
        g = m0set(sLX, slot * PITCH) + L("s_movk_i32 s%d, %d" % (sH2 + 0 if False else 79, 128 * c))
        return [g + dma(XD, SX, "s79", 0)] + [dma(XD + i, SX, "s79", 1024 * i, tag if i == 3 else None) for i in range(1, 4)]
    g = m0set(sLX, slot * PITCH)
    return [g + dma(XD, SX, "s%d" % (sKX + c), 0)] + [dma(XD + i, SX, "s%d" % (sKX + c), 1024 * i, tag if i == 3 else None) for i in range(1, 4)]

def dma_full(vo, sr, kreg, extra, slot, tag):
    g = m0set(sL2K, slot * PITCH)
    so = "s%d" % kreg
    if not cfg.rot:
        lit = extra + ((kreg - sKQ) * 64 * 3072 if kreg < sKG else (kreg - sKG) * 64 * 3584)
        g += L("s_mov_b32 s%d, %d" % (sT0, lit)); so = "s%d" % sT0
        return [g + dma(vo, sr, so, 0) + dma(vo + 1, sr, so, 1024, tag)]
    if extra:
        g += L("s_add_u32 s%d, s%d, %d" % (sT0, kreg, extra)); so = "s%d" % sT0
        return [g + dma(vo, sr, so, 0) + dma(vo + 1, sr, so, 1024, tag)]
    return [g + dma(vo, sr, so, 0) + dma(vo + 1, sr, so, 1024, tag)]

def dma_half(c, slot, tag):
    so = "s%d" % (sKG + c)
    if not cfg.rot:
        mv = lambda: L("s_mov_b32 s%d, %d" % (sT0, c * 64 * 3584)); so = "s%d" % sT0
        return [m0set(sL1K, slot * PITCH) + mv() + dma(WHD, SG, so, 0), m0set(sL1K, slot * PITCH + 4128) + mv() + dma(WHD, SU, so, 0, tag)]
    return [m0set(sL1K, slot * PITCH) + dma(WHD, SG, so, 0), m0set(sL1K, slot * PITCH + 4128) + dma(WHD, SU, so, 0, tag)]

def slice_src(n):
    if n < 8: return SD, sWDB, 128 * (n >> 2) + 16 * (n & 3)
    if n < 16: return SD, sWDB, 128 * ((n - 8) >> 2) + 64 + 16 * (n & 3)
    if n < 24: return SD, sWDB, 64 * (4 + ((n - 16) >> 2)) + 16 * (n & 3)
    if n < 28: return SD, sWDB, 384 + 16 * (n - 24)
    return SO, sWOB, 16 * (n - 28)

def dma_w2(n, slot):
    sr, base, row = slice_src(n)
    g = m0set(sL2K, slot * PITCH) + L("s_add_u32 s%d, s%d, %d" % (sT0, base, row * 1024))
    return [g + dma(W2D, sr, "s%d" % sT0, 0) + dma(W2D + 1, sr, "s%d" % sT0, 1024, "w2_%d" % n)]

def h_load(n):
    g = L("s_mov_b32 s%d, %d" % (sT1, n * 2048))
    a = 8 * (n % 32)
    for b in range(2):
        g += L("buffer_load_dwordx4 %s, v%d, %s, s%d offen%s sc1" % (ar(a + 4 * b, 4), vHLD, srd(SW), sT1, " offset:1024" if b else ""))
    return needs(g, HLD=vHLD)

def build_type(typ):
    A = typ == "A"
    passes = [("att2", 2, SET0, 0), ("pair", 2, SET1, 2), ("half", 1, SET0, 4)] if A else \
             [("pair", 2, SET0, 0), ("pair", 2, SET1, 2), ("q", 1, SET0, 4)]
    WRs = [WR1, WR2, WR3]
    S = Sched()
    step_beat = {}
    nt = lambda g: passes[g // 32][1]
    wbuf = lambda g, j: WF + (8 * (g & 1) + 4 * j if nt(g) == 2 else 4 * (g & 3))

    slot_of = {}
    for c in range(8):
        slot_of[("x", c)] = 2 * (c % 4); slot_of[("w", 0, c)] = 8 + 2 * (c % 4)
    def item_dma(it):
        if it[0] == "x": return dma_x(it[1], slot_of[it], "x%d" % it[1])
        if it[0] == "s": return dma_w2(it[1], slot_of[it])
        _, p, c = it; kind = passes[p][0]; sl = slot_of[it]; tag = "w%d_%d" % (p, c)
        if kind == "att2": return dma_full(WQD, SQ, sKQ + c, 0, sl, None) + dma_full(WQD, SQ, sKQ + c, 1024, sl + 1, tag)
        if kind == "q": return dma_full(WQD, SQ, sKQ + c, 0, sl, tag)
        if kind == "half": return dma_half(c, sl, tag)
        ex = 128 if (not A and p == 1) else 0
        return dma_full(WGD, SG, sKG + c, ex, sl, None) + dma_full(WGD, SU, sKG + c, ex, sl + 1, tag)
    def item_slots(it):
        if it[0] == "x": return 2
        if it[0] == "s": return 1
        return 2 if passes[it[1]][0] in ("att2", "pair") else 1

    for g in range(96):
        p, c, t = g // 32, (g // 4) % 8, g % 4
        kind, T, acc, tile0 = passes[p]
        step_beat[g] = len(S.beats)
        k = g % 32
        for j in range(T):
            for b in range(2):
                d = vr(acc + 32 * j + 16 * b, 16)
                S.beat(I("v_mfma_f32_32x32x16_bf16 %s, %s, %s, %s" % (d, vr(wbuf(g, j), 4), ar(8 * k + 4 * b, 4), "0" if k == 0 else d)))
        if t < 2 and not cfg.x_nostat:
            def m16(d, sel, src, first): S.beat(I("v_mfma_f32_16x16x32_bf16 %s, %s, %s, %s" % (vr(d, 4), vr(sel, 4), src, "0" if first else vr(d, 4))), 16)
            def m4(b, h): S.beat(I("v_mfma_f32_4x4x4_16b_bf16 %s, %s, %s, %s" % (vr(SQD + 4 * b, 4), ar(8 * k + 4 * b + 2 * h, 2), ar(8 * k + 4 * b + 2 * h, 2), "0" if (k == 0 and h == 0) else vr(SQD + 4 * b, 4))), 8)
            if p == 0:
                m4(0, 0); m4(1, 0); m16(RSD, SEL01, ar(8 * k, 4), k == 0); m4(0, 1); m4(1, 1); m16(RSD, SEL23, ar(8 * k + 4, 4), False)
            for j in range(T): m16(CSD, (SEL01, SEL23)[j], vr(wbuf(g, j), 4), k == 0 and j == 0)
    step_beat[96] = len(S.beats)
    sl_beat = {}
    for n in range(36):
        sl_beat[n] = len(S.beats)
        w = WF + 8 * (n & 1); a = 8 * (n % 32)
        for cb in range(2):
            for tb in range(2):
                d = vr(ACC2[2 * cb + tb], 16)
                S.beat(I("v_mfma_f32_32x32x16_bf16 %s, %s, %s, %s" % (d, vr(w + 4 * cb, 4), ar(a + 4 * tb, 4), "0" if n == 0 else d)), cfg.p2period)
    sl_beat[36] = len(S.beats)
    S.beat(None)

    bar_step = {}
    for cc in range(24):
        T = passes[cc // 8][1]
        bar_step[cc] = 4 * cc + (3 if (T == 2 or cc == 23) else 2)
    last_rd = {}
    def w_reads(g, j):
        p, c, t = g // 32, (g // 4) % 8, g % 4
        kind = passes[p][0]; sl = slot_of[("w", p, c)]
        if p == 0: base, off = WR1 + (t >> 1), (sl - 8) * PITCH
        else: base, off = WRs[p] + 2 * (sl >= 8) + (t >> 1), (sl % 8) * PITCH
        if kind == "att2": off += j * PITCH
        if kind == "pair": off += 32 * j
        st, js = (1024, 256) if kind == "half" else (2048, 512)
        off += (t & 1) * st
        w = wbuf(g, j)
        role = {"att2": "Watt", "q": "Watt", "pair": "Wpair", "half": "Whalf"}[kind]
        return needs([I("ds_read_b64_tr_b16 %s, v%d offset:%d" % (vr(w + 2 * e, 2), base, off + e * js)) for e in range(2)], **{role: base})
    def x_reads(g):
        c, t = g // 4, g % 4
        return needs([I("ds_read_b128 %s, v%d offset:%d" % (ar(8 * g + 4 * b, 4), XR + t, slot_of[("x", c)] * PITCH + 4096 * b)) for b in range(2)], XR=XR + t)
    def w2_reads(n):
        sl = slot_of[("s", n)]; w = WF + 8 * (n & 1)
        return needs([I("ds_read_b64_tr_b16 %s, v%d offset:%d" % (vr(w + 4 * cb + 2 * e, 2), W2R + 2 * (sl >= 8) + cb, (sl % 8) * PITCH + 1024 * e)) for cb in range(2) for e in range(2)], W2R=range(W2R, W2R + 4))

    queue = []
    for c in range(cfg.npro, 8): queue += [("x", c), ("w", 0, c)]
    for p in (1, 2): queue += [("w", p, c) for c in range(8)]
    queue += [("s", n) for n in range(36)]
    free = set()
    for c in range(cfg.npro, 4): free |= {2 * c, 2 * c + 1, 8 + 2 * c, 9 + 2 * c}
    issue_after = {}
    n_ins = lambda it: 4 if item_slots(it) == 2 else 2
    for cc in range(-1, 24):
        p, c = max(cc, 0) // 8, cc % 8
        T = passes[p][1] if cc >= 0 else 0
        rel = []
        budget = cfg.pacew.get(cc, cfg.pace[p] if cc >= 0 else cfg.pace0)
        if T == 2 or cc == 23:
            rel.append(cc)
            if cc > 0 and passes[(cc - 1) // 8][1] == 1: rel.append(cc - 1)
        elif cc > 0 and passes[(cc - 1) // 8][1] == 1: rel.append(cc - 1)
        for r in rel:
            it = ("w", r // 8, r % 8)
            free |= set(range(slot_of[it], slot_of[it] + item_slots(it)))
            if r < 8: free |= {slot_of[("x", r)], slot_of[("x", r)] + 1}
        got = []
        while queue:
            it = queue[0]; ns = item_slots(it)
            if it in slot_of: cand = [slot_of[it]] if all(slot_of[it] + i in free for i in range(ns)) else []
            elif ns == 2: cand = [s for s in sorted(free) if s % 2 == 0 and s + 1 in free]
            else: cand = sorted(free)
            if not cand or budget < n_ins(it): break
            budget -= n_ins(it)
            slot_of[it] = cand[0]
            for i in range(ns): free.discard(cand[0] + i)
            got.append(queue.pop(0))
        issue_after[cc] = (rel, got)
    p2_issue = {}
    for n in range(36):
        free.add(slot_of[("s", n)])
        for k in range(cfg.p2pace):
            if queue and free:
                it = queue.pop(0); slot_of[it] = min(free); free.discard(slot_of[it]); p2_issue.setdefault(n, []).append(it)
    print(typ, "prefetched slices before P2:", 36 - sum(len(x) for x in p2_issue.values()))

    where = {}
    for g in range(1, 96):
        T = nt(g); k = g % 32
        for j in range(T):
            if T == 2: at = g - 1 if not (k == 0 and nt(g - 1) == 1 and j == 0) else g - 2
            else: at = g - 2 if not (k < 2 and nt(g - k - 1) == 2) else g - k - 1
            where.setdefault(at, []).append(("w", g, j))
        if g < 32: where.setdefault(g - 1, []).append(("x", g))
    for at, lst in sorted(where.items()):
        ins = []
        for it in lst:
            r = w_reads(it[1], it[2]) if it[0] == "w" else x_reads(it[1])
            if it[1] % 4 == 3:
                r[-1].tag = "rd%d_%s%d" % (it[1] // 4, it[0], it[2] if it[0] == "w" else 0)
                last_rd[it[1] // 4] = r[-1].tag
            ins += r
        b0 = step_beat[at]; nb = 2 * nt(at)
        if cfg.rd_early and len(ins) == 6: ins = [ins[0], ins[1], ins[4], ins[5], ins[2], ins[3]]
        if cfg.rd_early:
            tg = [x.tag for x in ins if x.tag]
            if tg:
                for x in ins: x.tag = None
                ins[-1].tag = last_rd[lst[-1][1] // 4]
        if cfg.one_wait and nt(at) == 2 and at + 1 in step_beat and all(it[1] == at + 1 for it in lst):
            if not ins[-1].tag: ins[-1].tag = "stp%d" % at
            S.put(step_beat[at + 1], Wait(ins[-1].tag), pre=True)
        nbb = 2 if cfg.rd_early else nb
        for i, x in enumerate(ins): S.put(b0 + min(nbb - 1, i * nbb // len(ins)), x)

    extra_pre = {}
    def place_barriers():
        for cc in range(24):
            b = step_beat[bar_step[cc]]
            pre = []
            for r in issue_after[cc][0]: pre.append(Wait(last_rd[r]))
            if cc in extra_pre: pre.append(Wait("lgkm0"))
            if cc in extra_wait: pre.append(Wait(extra_wait[cc]))
            if cc < 23:
                nx = cc + 1
                if nx < 8: pre.append(Wait("x%d" % nx))
                pre.append(Wait("w%d_%d" % (nx // 8, nx % 8)))
            pre.append(I("s_barrier"))
            S.beats[b]["pre"] = pre + S.beats[b]["pre"]
    bb = lambda cc: step_beat[bar_step[cc]]
    for cc in range(-1, 24):
        items = []
        for it in issue_after[cc][1]: items += item_dma(it)
        if items: S.spread(items, bb(cc) if cc >= 0 else 0, bb(cc + 1) if cc < 23 else sl_beat[0] + 2)

    r0 = w2_reads(0)
    S.put(step_beat[95], [Wait("w2_0")] );
    for i, x in enumerate(r0): S.put(step_beat[95] + min(i // 2, 2 * nt(95) - 1), x)
    for n in range(36):
        b = sl_beat[n]
        if n + 1 < 36:
            S.put(b, Wait("w2_%d" % (n + 1)))
            for i, x in enumerate(w2_reads(n + 1)): S.put(b + i, x)
        for k, it in enumerate(p2_issue.get(n, [])): S.put(b + 2 + k, dma_w2(it[1], slot_of[it])[0])

    sp = lambda g: step_beat[g]
    sl0 = sl_beat[0]
    def end_of(it):
        cc = [c for c in issue_after if it in issue_after[c][1]][0]
        return bb(cc + 1)
    def start_of(it):
        cc = [c for c in issue_after if it in issue_after[c][1]][0]
        return bb(cc)
    assert start_of(("w", 1, 0)) >= sp(cfg.setup_end) and end_of(("x", 7)) < sp(28) and end_of(("w", 2, 7)) <= sp(64)
    S.spread(late_setup(A), sp(1), sp(cfg.setup_end), "setup")
    if cfg.wpf: S.put(sp(cfg.wpf), w_touch(cfg.wpf1, 110))
    if cfg.p3t: S.put(sp(cfg.p3t), p3_touch(116))
    if cfg.wpfd: S.put(sp(cfg.wpfd), w_touch([(SD, 14), (SO, 4)], XR + 1))
    extra_wait = {4: "clr"}
    S.put(bb(4), needs(L("v_mov_b32 v%d, 1\nbuffer_atomic_add v%d, v%d, %s, 0 offen" % (KVD + 1, KVD + 1, KVD, srd(SDBG))), HSA=KVD))
    S.put(sp(21), wphi_finish())
    S.spread(addr_wfull(WR2, 4, False, False, TMP + 8), max(end_of(("x", 7)), sp(22)), sp(30))
    pre, adds = t_stat_add()
    S.spread(pre, sp(26), sp(28))
    cs_pub = lambda tile0: [Gap(1)] + t_cs_add(tile0, 'CSs' if A and tile0 == 0 else 'CS')
    S.spread(cs_pub(0) + adds, sp(30), sp(31)); extra_pre[7] = 1
    fin, late = t_stat_fin()
    S.spread(t_cs_tot(0, TMP + 2), sp(31), sp(32))
    S.spread(fin, sp(31), sp(32))
    hs_i, hs_c = poll(XR, XR + 1, "8" if cfg.dbgout else "4", SDBG, "gt")
    if cfg.dbgout: S.put(sp(36), L("v_and_b32 v%d, 31, v%d\nv_lshlrev_b32 v%d, 2, v%d\nv_add_u32 v%d, 64, v%d" % (XR, vL, XR, XR, XR, XR)) + [hs_i])
    else: S.put(sp(36), [I("v_lshlrev_b32 v%d, 2, v%d" % (XR, vL)), hs_i])
    S.put(sp(44), stamp("hs0") + [hs_c] + stamp("hs1"))
    for k, (st, n0, ns) in enumerate(cfg.w2pf):
        assert sp(st) >= end_of(("w", 1, 7))
        S.put(sp(st) + 2, w2_touch(WGD + (k & 1), n0, ns))
    S.spread(cs_pub(2), sp(62), sp(63)); extra_pre[15] = 1
    S.spread(t_cs_tot(2, XR + 2), sp(63), sp(64))
    S.spread(cs_pub(4), sp(94), sp(95)); extra_pre[23] = 1
    S.spread(t_cs_tot(4, TMP + 2), sp(95), sl0)
    x = addr_p2(TMP + 8)
    S.spread(x[-2:], sp(64), sp(66)); S.spread(x[:-2], sp(76), sp(90))
    so2 = "s_mov_b32 s%d, %d" % (sT1, (16 if A else 8) * 2048)
    if A:
        e = S.spread(t_corr(SET0, 2, 0) + late + t_att_k(), sp(32), sp(32 + cfg.a_att), "att_k")
        cb = min(cc for cc in range(8, 24) if bb(cc) > e); extra_pre[cb] = 1
        print("  kv exchange barrier chunk", cb)
        S.spread(addr_whalf(WR3, XR + 2) + addr_cs(False, XR + 2), sp(52), sp(60))
        e = S.spread(t_kv_pub(), bb(cb), bb(cb) + cfg.a_pub, "kv_pub")
        S.put(e, stamp("kvi"))
        ekv = e
    else:
        so = "s_mov_b32 s%d, 0" % sT1
        e = S.spread(t_corr(SET0, 2, 0) + late + t_hepi(SET0, so, 0, None) + t_hepi(SET0 + 32, so, 2048, "h0"), sp(32), sp(32 + cfg.b_h0), "hepi0")
        S.put(e + cfg.flag_delay, set_flag(1, "h0", WHD))
        S.spread(addr_wfull(WR3, 4, True, False, XR + 2), sp(52), sp(60))
        ekv = 0
    b0 = max(sp(64), ekv + 1)
    e = S.spread(t_corr(SET1, 2, 2) + t_hepi(SET1, so2, 0, None) + t_hepi(SET1 + 32, so2, 2048, "h1"), b0, max(b0 + 8, sp(64 + cfg.h1)), "hepi1")
    S.put(e + cfg.flag_delay, set_flag(1 if A else 2, "h1", WHD))
    if A:
        so = "s_mov_b32 s%d, s%d" % (sT1, sH2)
        e = S.spread(t_corr(SET0, 1, 4) + [Gap(1)] + t_hepi(SET0, so, 0, "h2"), sl0, sl0 + cfg.a_h2, "hepi2")
        S.put(e + cfg.flag_delay2, set_flag(2, "h2", WHD))
        last_task = e
    else:
        att = t_corr(SET0, 1, 4) + [Gap(1)] + t_att_q()
        ri, rc = t_kv_red()
        li, lc = t_kv_load()
        S.spread(ri, sl0 + cfg.b_ri, sl0 + cfg.b_ri + 4)
        k1 = int(len(att) * cfg.b_rc); k2 = int(len(att) * cfg.b_li)
        att = att[:k1] + stamp("kr0") + rc + stamp("kr1") + att[k1:k2] + li + att[k2:] + stamp("kp0") + lc + stamp("kp1") + t_o()
        e = S.spread(att, sl0, sl0 + cfg.b_att, "att_q+o")
        S.put(e + cfg.flag_delay2, set_flag(3, "ost", WHD))
        last_task = e
    place_barriers()
    first = [0, 8, 16, 24, 28, 36]
    hl = cfg.hlA if A else cfg.hlB
    for c in range(5):
        iss, chk = class_poll(c, (WGD, WR2)[c & 1], WGD + 1)
        pos = [sp(64 + cfg.p0) + i * cfg.hstep0 if c == 0 else sl0 + hl[first[c] + i] for i in range(first[c + 1] - first[c])]
        S.put(pos[0] - cfg.poll_lead[c], iss)
        S.put(pos[0], stamp("cp%d_0" % c) + chk + stamp("cp%d_1" % c))
        for i, b in enumerate(pos):
            n = first[c] + i
            if b < sl0: assert b >= sp(64 + n + 1)
            assert b < sl_beat[n], (c, n)
            S.put(b, h_load(n))
    RES = TMP
    rb_ = max(last_task + 2, sl_beat[24])
    S.put(rb_, L("""
    s_lshl_b32 s{t0}, s{tt}, 2
    s_add_u32 s{t0}, s{t0}, s{wv}
    s_lshl_b32 s{t0}, s{t0}, 14
    s_lshl_b32 s{t1}, s{ct}, 7
    s_add_u32 s{t0}, s{t0}, s{t1}
    v_lshrrev_b32 v{a}, 3, v{L}
    v_lshlrev_b32 v{a}, 10, v{a}
    v_and_b32 v{b}, 7, v{L}
    v_lshl_add_u32 v{a}, v{b}, 4, v{a}
    v_add_u32 v{o}, s{t0}, v{a}
    """.format(t0=sT0, t1=sT1, tt=sTT, wv=sWV, ct=sCT, a=TMP + 8, b=TMP + 9, o=WQD - 1, L=vL)))
    vOUT = WQD - 1
    S.put(rb_ + 1, L("s_mov_b32 s%d, 8192\nbuffer_load_dwordx4 %s, v%d, %s, 0 offen\nbuffer_load_dwordx4 %s, v%d, %s, s%d offen" % (sT1, vr(RES, 4), vOUT, srd(SX), vr(RES + 4, 4), vOUT, srd(SX), sT1)))
    S.spread(L("""
    v_bfe_u32 v8, v{L}, 3, 2
    v_mul_u32_u24 v8, {P}, v8
    v_and_b32 v9, 7, v{L}
    v_lshl_add_u32 v8, v9, 8, v8
    v_add_u32 v8, s{l2k}, v8
    v_lshrrev_b32 v10, 5, v{L}
    v_xor_b32 v10, v10, v9
    v_lshl_add_u32 v0, v10, 4, v8
    v_xor_b32 v11, 2, v10
    v_lshl_add_u32 v1, v11, 4, v8
    v_xor_b32 v11, 4, v10
    v_lshl_add_u32 v2, v11, 4, v8
    v_xor_b32 v11, 6, v10
    v_lshl_add_u32 v3, v11, 4, v8
    v_lshrrev_b32 v8, 3, v{L}
    v_and_b32 v10, 3, v{L}
    v_lshlrev_b32 v10, 1, v10
    v_xor_b32 v10, v10, v8
    v_bfe_u32 v11, v{L}, 2, 1
    v_lshlrev_b32 v11, 7, v11
    v_lshl_add_u32 v11, v8, 8, v11
    v_mov_b32 v9, s{wv}
    v_mul_u32_u24 v9, {P2}, v9
    v_add_u32 v11, v11, v9
    v_lshl_add_u32 v4, v10, 4, v11
    v_xor_b32 v10, 1, v10
    v_lshl_add_u32 v5, v10, 4, v11
    """.format(L=vL, P=PITCH, P2=2 * PITCH, l2k=sL2K, wv=sWV)), rb_ + 2, rb_ + 14)
    if cfg.stamps == 2:
        pts = [("b%d" % cc, bb(cc)) for cc in range(24)] + [("s%d" % n, sl_beat[n]) for n in range(0, 37) if n not in (34, 35)]
        prev = ("iss", 0)
        for k, (nm, b) in enumerate(pts):
            for x in (prev[0], nm):
                if x not in stamp_names: stamp_names.append(x)
            cur = sST + 2 * ((k + 1) & 1); old = sST + 2 * (k & 1)
            rd = I("v_writelane_b32 v%d, s%d, %d" % (vSTAMP, old, stamp_names.index(prev[0]) + 2))
            mt = I("s_memtime s[%d:%d]" % (cur, cur + 1))
            if nm[0] == "b":
                pre = S.beats[b]["pre"]; pre.insert(len(pre) - 1, rd); pre.append(mt)
            else: S.beats[b]["pre"] = [rd, mt] + S.beats[b]["pre"]
            prev = (nm, b)
        last_stamp = I("v_writelane_b32 v%d, s%d, %d" % (vSTAMP, cur, stamp_names.index(prev[0]) + 2))
    if cfg.stamps == 3:
        lane = 2
        fine = []
        for cc in range(cfg.fine0, cfg.fine0 + 7):
            b0_, b1_ = bb(cc), bb(cc + 1)
            pts = [b0_ + (b1_ - b0_) * k // 8 for k in range(8)]
            rd = []
            for k, b in enumerate(pts):
                mt = I("s_memtime s[%d:%d]" % (56 + 2 * k, 57 + 2 * k))
                S.beats[b]["pre"].append(mt)
                rd.append(I("v_writelane_b32 v%d, s%d, %d" % (vSTAMP, 56 + 2 * k, lane))); lane += 1
                fine.append(mt)
            pre = S.beats[b1_]["pre"]
            k = [i for i, x in enumerate(pre) if getattr(x, "kind", "") == "barrier"][0]
            S.beats[b1_]["pre"] = pre[:k] + rd + pre[k:]
        if "f0" not in stamp_names: stamp_names.extend("f%d" % k for k in range(56))
    if cfg.stamps == True:
        for nm, b in (("p1", sp(32)), ("p2", sp(64)), ("p3", sl_beat[0]), ("s8", sl_beat[8]), ("s16", sl_beat[16]), ("s20", sl_beat[20]), ("s28", sl_beat[28]), ("s36", sl_beat[36]),
                      ("c1", sp(4)), ("c2", sp(8)), ("c4", sp(16))):
            S.put(b, stamp(nm), pre=True)

    pro = entry_x(item_dma)
    n_common = len(pro)
    if A:
        pro += L("s_lshl_b32 s{t0}, s{i}, 7\ns_add_u32 s{t0}, s{t0}, 1024".format(t0=sT0, i=sI))
        pro += wdma_addr(WQD, 3072, sT0)
    else:
        pro += L("s_mul_i32 s{t0}, s{q}, 896\ns_lshl_b32 s{t1}, s{ab}, 8\ns_add_u32 s{t0}, s{t0}, s{t1}".format(t0=sT0, t1=sT1, q=sQ, ab=sAB))
        pro += wdma_addr(WGD, 3584, sT0)
    pro += flat(item_dma(("w", 0, 0))) + stamp("iw0")
    pro += entry_rest()
    for k, w in enumerate(cfg.order):
        if w in "123": pro += flat(item_dma(("x", int(w)))) + flat(item_dma(("w", 0, int(w))))
        elif w == "p": pro += p1_touch(112)
        elif w == "g": pro += w_touch([(SG, 14), (SU, 14), (SQ, 12)], 102)
        elif w == "d": pro += w_touch([(SD, 14), (SO, 4)], 108)
        elif w == "r": pro += L("".join(rot_regs(c) for c in range(cfg.npro, 8)))
        elif w == "u": pro += p3_touch(116)
        elif w == "t": pro += tlb_touch(120)
        elif w == "f": pro += wphi_setup(A)
        elif w == "c": pro += code_touch()
        elif w == "s": pro += early_setup() + flat(addr_wfull(WR1, 2, A, A))
        elif w == "j": pro += [I("s_branch L_main%s" % typ), I("L_main%s:" % typ)]
    assert cfg.npro == 1 + sum(w in "123" for w in cfg.order)
    pro += stamp("iss")
    if cfg.stamps == 2: pro += [I("s_memtime s[%d:%d]" % (sST, sST + 1))]
    pro += [Wait("x0"), Wait("w0_0"), I("s_barrier")]
    pro += stamp("data")
    pro += x_reads(0) + w_reads(0, 0) + w_reads(0, 1)

    tail = []
    for tb in range(2):
        for cb in range(2):
            for r4 in range(4):
                tail += L("ds_write_b128 v%d, %s offset:%d" % (r4, vr(ACC2[2 * cb + tb] + 4 * r4, 4), 128 * cb + 4 * PITCH * tb))
    tail += [Wait("lgkm0"), I("s_barrier")]
    for i in range(2):
        for e in range(2):
            for w in range(4):
                tail += L("ds_read_b128 %s, v%d offset:%d" % (vr(16 + 32 * i + 16 * e + 4 * w, 4), 4 + e, 2048 * w + PITCH * i))
    for i in range(2):
        for e in range(2):
            b = 16 + 32 * i + 16 * e
            for j in range(4):
                x = RES + 4 * i + 2 * e + j // 2
                tail += L("v_add_f32 v%d, v%d, v%d\nv_add_f32 v%d, v%d, v%d" % (b + j, b + j, b + 4 + j, b + 8 + j, b + 8 + j, b + 12 + j))
                tail += L(("v_and_b32 v%d, 0xffff0000, v%d" if j & 1 else "v_lshlrev_b32 v%d, 16, v%d") % (b + 4 + j, x))
                tail += L("v_add_f32 v%d, v%d, v%d\nv_add_f32 v%d, v%d, v%d" % (b + j, b + j, b + 8 + j, b + j, b + j, b + 4 + j))
            tail += L("v_cvt_pk_bf16_f32 v%d, v%d, v%d\nv_cvt_pk_bf16_f32 v%d, v%d, v%d" % (8 + 4 * i + 2 * e, b, b + 1, 9 + 4 * i + 2 * e, b + 2, b + 3))
        tail += L("s_mov_b32 s%d, %d\nbuffer_store_dwordx4 %s, v%d, %s, s%d offen" % (sT1, 8192 * i, vr(8 + 4 * i, 4), vOUT, srd(SOUT), sT1) + " sc1")
    if cfg.stamps:
        tail += stamp("end")
        if cfg.stamps == 2:
            if "end" not in stamp_names: stamp_names.append("end")
            tail += [last_stamp, I("s_memtime s[%d:%d]" % (sST, sST + 1)), I("v_writelane_b32 v%d, s%d, %d" % (vSTAMP, sST, stamp_names.index("end") + 2))]
        tail += L("""
        s_memrealtime s[{a}:{b}]
        v_writelane_b32 v{st}, s{a}, 1
        s_lshl_b32 s{t0}, s2, 2
        s_add_u32 s{t0}, s{t0}, s{wv}
        s_lshl_b32 s{t0}, s{t0}, 8
        s_add_u32 s{t0}, s{t0}, {o}
        v_lshl_add_u32 v0, v{L}, 2, s{t0}
        buffer_store_dword v{st}, v0, {sr}, 0 offen
        """.format(a=sST, b=sST + 1, st=vSTAMP, t0=sT0, wv=sWV, o=WS_ST, L=vL, sr=srd(SW)))
    if cfg.dbgout:
        ix = lambda n: stamp_names.index(n) + 2
        t = """
        v_readlane_b32 s56, v{st}, 0
        v_readlane_b32 s57, v{st}, 1
        v_readlane_b32 s58, v{st}, {iss}
        s_nop 4
        v_mov_b32 v2, {oob}
        v_mov_b32 v1, 0
        v_writelane_b32 v2, 32, 0
        v_writelane_b32 v2, 40, 1
        v_writelane_b32 v2, 36, 2
        v_writelane_b32 v1, s57, 0
        v_writelane_b32 v1, s56, 1
        s_not_b32 s59, s56
        v_writelane_b32 v1, s59, 2
        buffer_atomic_umax v1, v2, {sd}, 0 offen
        s_sub_u32 s57, s57, s56
        v_mov_b32 v3, 0
        v_writelane_b32 v3, s57, 0
        """.format(st=vSTAMP, iss=ix("iss"), oob=OOB, sd=srd(SDBG))
        for k, nm in enumerate(("b0", "b3", "b7", "b15", "s0", "s28", "end")):
            t += "v_readlane_b32 s59, v%d, %d\ns_nop 4\ns_sub_u32 s59, s59, s58\nv_writelane_b32 v3, s59, %d\n" % (vSTAMP, ix(nm), k + 1)
        t += """
        v_lshlrev_b32 v2, 2, v{L}
        v_mov_b32 v4, {oob}
        v_cmp_gt_u32 vcc, 8, v{L}
        v_cndmask_b32 v2, v4, v2, vcc
        s_or_b32 s59, s2, s{wv}
        s_cmp_eq_u32 s59, 0
        s_cselect_b32 s59, 0, {oob}
        buffer_store_dword v3, v2, {sd}, s59 offen
        """.format(L=vL, oob=OOB, wv=sWV, sd=srd(SDBG))
        tail += L(t)
    tail += L("s_endpgm")
    est = sum(max(bt["period"], S.load(i)) for i, bt in enumerate(S.beats[:sl_beat[0]]))
    print("  P1 issue-model cycles:", est, " P2:", sum(max(32, S.load(i)) for i in range(sl_beat[0], sl_beat[36])))
    return n_common, pro + S.flat() + tail

def code_touch():
    ins = L("""
    s_getpc_b64 s[{a}:{b}]
    s_and_b32 s{a}, s{a}, 0xffffff00
    s_bfe_u32 s{t0}, s2, 0x40003
    s_lshl_b32 s{t0}, s{t0}, 2
    s_add_u32 s{t0}, s{t0}, s{wv}
    s_lshl_b32 s{t0}, s{t0}, 9
    v_and_b32 v{x}, 3, v{L}
    v_lshl_add_u32 v{x}, v{x}, 7, s{t0}
    v_min_u32 v{x}, {lim}, v{x}
    global_load_dword v{y}, v{x}, s[{a}:{b}]
    """.format(a=sM1, b=sM1 + 1, t0=sT0, wv=sWV, x=100, y=101, L=vL, lim=cfg.code_lim))
    return ins

def w_touch(which, d0):
    s = "s_lshl_b32 s{t0}, s2, 2\ns_add_u32 s{t0}, s{t0}, s{wv}\n".format(t0=sT0, wv=sWV)
    last = None
    for k, (sr, n) in enumerate(which):
        if n != last:
            s += "s_mul_i32 s{t1}, s{t0}, {b}\nv_min_u32 v{a}, {m}, v{L}\nv_lshl_add_u32 v{a}, v{a}, 7, s{t1}\n".format(t0=sT0, t1=sT1, b=128 * n, a=d0, m=n - 1, L=vL)
            last = n
        s += "buffer_load_dword v%d, v%d, %s, 0 offen\n" % (d0 + 1 + k, d0, srd(sr))
    return L(s)

def tlb_touch(d0):
    s = "v_and_b32 v{a}, 15, v{L}\nv_lshlrev_b32 v{a}, 20, v{a}\nv_add_u32 v{a}, 0x7ff00, v{a}\n".format(a=d0, L=vL)
    for k, sr in enumerate((SD, SO, SW, SOUT, SG, SU, SQ)):
        s += "buffer_load_dword v%d, v%d, %s, 0 offen\n" % (d0 + 1 + k, d0, srd(sr))
    return L(s)

def p3_touch(d0):
    return L("""
    s_lshl_b32 s{t0}, s2, 2
    s_add_u32 s{t0}, s{t0}, s{wv}
    s_lshr_b32 s{t1}, s{t0}, 1
    s_and_b32 s{t0}, s{t0}, 1
    v_and_b32 v{b}, 3, v{L}
    v_lshl_add_u32 v{b}, s{t0}, 2, v{b}
    v_and_b32 v{c}, 1, v{L}
    v_lshl_add_u32 v{c}, s{t0}, 1, v{c}
    s_mul_i32 s{t0}, s{t1}, 3072
    v_lshl_add_u32 v{b}, v{b}, 7, s{t0}
    buffer_load_dword v{b}, v{b}, {q}, 0 offen
    s_mul_i32 s{t0}, s{t1}, 3584
    s_add_u32 s{t0}, s{t0}, 768
    v_mul_u32_u24 v{c}, 896, v{c}
    v_add_u32 v{c}, s{t0}, v{c}
    buffer_load_dword v{r2}, v{c}, {g}, 0 offen
    buffer_load_dword v{c}, v{c}, {u}, 0 offen
    """.format(t0=sT0, t1=sT1, wv=sWV, L=vL, b=d0, c=d0 + 1, r2=d0 + 2, q=srd(SQ), g=srd(SG), u=srd(SU)))

def p1_touch(d0):
    return L("""
    s_lshl_b32 s{t0}, s2, 2
    s_add_u32 s{t0}, s{t0}, s{wv}
    s_lshl_b32 s{t1}, s{t0}, 11
    v_and_b32 v{a}, 15, v{L}
    v_lshl_add_u32 v{a}, v{a}, 7, s{t1}
    buffer_load_dword v{r0}, v{a}, {x}, 0 offen
    s_lshr_b32 s{t1}, s{t0}, 1
    s_and_b32 s{t0}, s{t0}, 1
    s_mul_i32 s{sp}, s{t1}, 3072
    s_lshl_b32 s{m}, s{t0}, 10
    s_add_u32 s{sp}, s{sp}, s{m}
    s_add_u32 s{sp}, s{sp}, 1024
    v_and_b32 v{b}, 7, v{L}
    v_lshl_add_u32 v{b}, v{b}, 7, s{sp}
    buffer_load_dword v{r1}, v{b}, {q}, 0 offen
    s_mul_i32 s{sp}, s{t1}, 3584
    s_mul_i32 s{m}, s{t0}, 1792
    s_add_u32 s{sp}, s{sp}, s{m}
    v_bfe_u32 v{c}, v{L}, 1, 1
    v_mul_u32_u24 v{c}, 896, v{c}
    v_and_b32 v{d}, 1, v{L}
    v_lshl_add_u32 v{c}, v{d}, 8, v{c}
    v_add_u32 v{c}, s{sp}, v{c}
    buffer_load_dword v{r2}, v{c}, {g}, 0 offen
    buffer_load_dword v{r3}, v{c}, {u}, 0 offen
    """.format(t0=sT0, t1=sT1, sp=sH2, m=sM2, wv=sWV, L=vL, a=d0, b=d0 + 1, c=d0 + 2, d=d0 + 3, r0=d0 + 4, r1=d0 + 5, r2=d0 + 6, r3=d0 + 7,
               x=srd(SX), q=srd(SQ), g=srd(SG), u=srd(SU)))

def w2_touch(t, n0, ns):
    sr, base, row = slice_src(n0)
    nr = 4 * ns
    return L("""
    s_and_b32 s{t0}, s{tt}, 3
    s_mul_i32 s{t1}, s{t0}, {a}
    s_add_u32 s{t1}, s{t1}, s{wd}
    s_lshl_b32 s{t0}, s{ct}, 7
    s_add_u32 s{t1}, s{t1}, s{t0}
    s_add_u32 s{t1}, s{t1}, {b}
    v_min_u32 v{x}, {m}, v{L}
    v_lshl_add_u32 v{x}, v{x}, 10, s{t1}
    buffer_load_dword v{x}, v{x}, {d}, 0 offen
    """.format(t0=sT0, t1=sT1, tt=sTT, ct=sCT, wd=base, a=nr * 1024, b=row * 1024, x=t, m=nr - 1, L=vL, d=srd(sr)))

def flat(x):
    o = []
    for y in x: o += y if isinstance(y, list) else [y]
    return o

def groups(ins):
    out = []; cur = []
    tmp = {"s%d" % sT0, "s%d" % sT1, "vcc", "scc"}
    for k, x in enumerate(ins):
        cur.append(x)
        live = set()
        written = {r for y in ins[:k + 1] for r in y.wr} & tmp
        seen = set()
        for y in ins[k + 1:]:
            live |= (set(y.rd) & written) - seen
            seen |= set(y.wr)
        if not live: out.append(cur); cur = []
    if cur: out.append(cur)
    return out

def late_setup(A):
    ins = []
    if A:
        ins += L("s_mul_i32 s{t0}, s{q}, 896\ns_lshl_b32 s{t1}, s{ab}, 7\ns_add_u32 s{t0}, s{t0}, s{t1}\ns_add_u32 s{t0}, s{t0}, 512".format(t0=sT0, t1=sT1, q=sQ, ab=sAB))
        ins += wdma_addr(WGD, 3584, sT0)
    ins += clear_store(A) + common_setup() + flat(addr_cs(A))
    if A:
        ins += L("""
        v_lshrrev_b32 v{a}, 2, v{L}
        v_mul_u32_u24 v{a}, 3584, v{a}
        v_and_b32 v{b}, 3, v{L}
        v_lshl_add_u32 v{a}, v{b}, 4, v{a}
        s_mul_i32 s{t0}, s{q}, 896
        s_lshl_b32 s{t1}, s{ab}, 6
        s_add_u32 s{t0}, s{t0}, s{t1}
        s_add_u32 s{t0}, s{t0}, 768
        s_mul_i32 s{t1}, s{wv}, {w}
        s_add_u32 s{t0}, s{t0}, s{t1}
        v_add_u32 v{d}, s{t0}, v{a}
        s_lshl_b32 s{t0}, s{ab}, 1
        s_add_u32 s{t0}, s{t0}, s{gr}
        s_sub_u32 s{h2}, 24, s{t0}
        s_lshl_b32 s{h2}, s{h2}, 11
        """.format(t0=sT0, t1=sT1, q=sQ, ab=sAB, wv=sWV, gr=sGR, w=16 * 3584, a=TMP, b=TMP + 1, d=WHD, L=vL, h2=sH2))
        ins += att_setup()
    else:
        ins += L("s_lshl_b32 s{t0}, s{i}, 7".format(t0=sT0, i=sI))
        ins += wdma_addr(WQD, 3072, sT0)
        ins += o_setup()
    defines(ins, FLG=vFLG, HST=vHST, W2D=(W2D, W2D + 1), Z=(CA + 2, CA + 3), HSA=KVD)
    if A: defines(ins, WHD=WHD, KVA=vKVA, PW=vPW, PR=vPR, VW=vVW, VR0=vVR0, VR1=vVR1)
    else: defines(ins, KRL=vKRL, KRS=vKRS, KVL=vKVL)
    return groups(ins)

def wdma_addr(dst, stride, scol):
    return defines(L("""
    s_mul_i32 s{t1}, s{wv}, {w}
    s_add_u32 s{t1}, s{t1}, s{c}
    v_lshrrev_b32 v{a}, 3, v{L}
    v_mul_u32_u24 v{a}, {st}, v{a}
    v_bfe_u32 v{b}, v{L}, 4, 1
    v_lshlrev_b32 v{b}, 2, v{b}
    v_xor_b32 v{b}, v{b}, v{L}
    v_and_b32 v{b}, 7, v{b}
    v_lshl_add_u32 v{a}, v{b}, 4, v{a}
    v_add_u32 v{d}, s{t1}, v{a}
    v_add_u32 v{d1}, {nx}, v{d}
    """.format(t1=sT1, wv=sWV, w=16 * stride, c=scol, a=TMP, b=TMP + 1, L=vL, st=stride, d=dst, d1=dst + 1, nx=8 * stride - 1024)), **{'WQD' if dst == WQD else 'WGD': (dst, dst + 1)})

def clear_store(A):
    z = TMP + 4
    s = """
    s_lshl_b32 s{t0}, s{rb}, 1
    s_add_u32 s{t0}, s{t0}, s{th}
    s_lshl_b32 s{t1}, s{t0}, 2
    s_add_u32 s{t1}, s{t1}, s{q}
    s_lshl_b32 s{t1}, s{t1}, 4
    s_add_u32 s{t1}, s{t1}, s{t4}
    s_lshl_b32 s{t1}, s{t1}, 1
    s_add_u32 s{t1}, s{t1}, s{gr}
    s_lshl_b32 s{t1}, s{t1}, 2
    s_add_u32 s{t1}, s{t1}, {fl}
    v_mov_b32 v{f}, {oob}
    v_writelane_b32 v{f}, s{t1}, 0
    v_mov_b32 v{z}, 0
    buffer_store_dword v{z}, v{f}, {sr}, 0 offen sc1
    s_lshl_b32 s{t0}, s{i}, 2
    s_lshl_b32 s{t1}, s{gr}, 1
    s_add_u32 s{t0}, s{t0}, s{t1}
    s_add_u32 s{t0}, s{t0}, s{th}
    """.format(t0=sT0, t1=sT1, rb=sRB, th=sTH, q=sQ, t4=sT4, gr=sGR, fl=WS_FL, f=vFLG, oob=OOB, z=z, sr=srd(SW), i=sI)
    if A:
        s += """
        s_lshl_b32 s{t0}, s{t0}, 4
        s_add_u32 s{t0}, s{t0}, s{rb}
        s_lshl_b32 s{t0}, s{t0}, 12
        s_add_u32 s{t0}, s{t0}, {kvp}
        v_lshl_add_u32 v{d}, v{L}, 4, s{t0}
        """.format(t0=sT0, rb=sRB, kvp=WS_KVP, d=vKVA, L=vL)
        for j in range(4): s += "v_mov_b32 v%d, -1\n" % (z + j)
        ins = L(s)
        for j in range(4): ins += L("buffer_store_dwordx4 %s, v%d, %s, 0 offen offset:%d sc1" % (vr(z, 4), vKVA, srd(SW), 1024 * j), tag="clr" if j == 3 else None)
        return ins
    s += """
    s_lshl_b32 s{t1}, s{t0}, 16
    s_lshl_b32 s{t0}, s{t0}, 12
    s_lshl_b32 s{sp}, s{rb}, 8
    s_add_u32 s{t0}, s{t0}, s{sp}
    s_add_u32 s{t1}, s{t1}, s{sp}
    s_add_u32 s{t0}, s{t0}, {kvf}
    s_add_u32 s{t1}, s{t1}, {kvp}
    v_and_b32 v{a}, 15, v{L}
    v_lshlrev_b32 v{a}, 4, v{a}
    v_lshrrev_b32 v{b}, 4, v{L}
    v_lshl_add_u32 v{rs}, v{b}, 2, v{a}
    v_add_u32 v{rs}, s{t0}, v{rs}
    v_lshl_add_u32 v{rl}, v{b}, 12, v{a}
    v_add_u32 v{rl}, s{t1}, v{rl}
    v_mov_b32 v{z}, -1
    """.format(t0=sT0, t1=sT1, sp=sH2, rb=sRB, kvf=WS_KVF, kvp=WS_KVP, a=TMP, b=TMP + 1, L=vL, rs=vKRS, rl=vKRL, z=z + 1)
    return L(s) + L("buffer_store_dword v%d, v%d, %s, 0 offen sc1" % (z + 1, vKRS, srd(SW)), tag="clr")

def early_setup():
    a, b, c = TMP, TMP + 1, TMP + 2
    s = """
    v_lshrrev_b32 v{a}, 5, v{L}
    v_bfe_u32 v{b}, v{L}, 1, 3
    v_xor_b32 v{a}, v{a}, v{b}
    v_lshlrev_b32 v{a}, 4, v{a}
    v_and_b32 v{b}, 31, v{L}
    v_lshl_add_u32 v{a}, v{b}, 7, v{a}
    s_lshl_b32 s{t0}, s{s}, 6
    v_xor_b32 v{a}, s{t0}, v{a}
    s_mul_i32 s{t1}, s{th}, {P}
    v_add_u32 v{x0}, s{t1}, v{a}
    v_xor_b32 v{b}, 32, v{a}
    v_add_u32 v{x1}, s{t1}, v{b}
    v_xor_b32 v{b}, 64, v{a}
    v_add_u32 v{x2}, s{t1}, v{b}
    v_xor_b32 v{b}, 0x60, v{a}
    v_add_u32 v{x3}, s{t1}, v{b}
    v_and_b32 v{a}, 31, v{L}
    v_mov_b32 v{b}, 0x3f803f80
    v_cmp_eq_u32 vcc, 0, v{a}
    v_cndmask_b32 v{s0}, 0, v{b}, vcc
    v_cmp_eq_u32 vcc, 20, v{a}
    v_cndmask_b32 v{s0}, v{s0}, v{b}, vcc
    v_cmp_eq_u32 vcc, 8, v{a}
    v_cndmask_b32 v{s2}, 0, v{b}, vcc
    v_cmp_eq_u32 vcc, 28, v{a}
    v_cndmask_b32 v{s2}, v{s2}, v{b}, vcc
    """.format(a=a, b=b, L=vL, t0=sT0, t1=sT1, s=sS, th=sTH, P=PITCH, x0=XR, x1=XR + 1, x2=XR + 2, x3=XR + 3, s0=SEL01, s2=SEL23)
    for j in range(1, 4): s += "v_mov_b32 v%d, v%d\nv_mov_b32 v%d, v%d\n" % (SEL01 + j, SEL01, SEL23 + j, SEL23)
    return defines(L(s), XR=range(XR, XR + 4))

def common_setup():
    a, b, c = TMP, TMP + 1, TMP + 2
    s = "s_mov_b32 s%d, 0\ns_mov_b32 s%d, -1\nv_mov_b32 v%d, 0\nv_mov_b32 v%d, 0\n" % (sMH, sMH + 1, CA + 2, CA + 3)
    s += """
    v_and_b32 v{a}, 3, v{L}
    v_cmp_eq_u32 s[{m1}:{m1b}], 1, v{a}
    v_cmp_eq_u32 s[{m2}:{m2b}], 2, v{a}
    v_cmp_eq_u32 s[{m3}:{m3b}], 3, v{a}
    v_and_b32 v{a}, 4, v{L}
    v_cmp_eq_u32 s[{mb}:{mbb}], 4, v{a}
    s_mul_i32 s{wd}, s{wv}, {wdv}
    s_lshl_b32 s{wo}, s{wv}, 17
    s_mov_b32 s{c2}, 0x3b000000
    """.format(a=a, L=vL, m1=sM1, m1b=sM1 + 1, m2=sM2, m2b=sM2 + 1, m3=sM3, m3b=sM3 + 1, mb=sMB, mbb=sMB + 1,
               wd=sWDB, wo=sWOB, wv=sWV, wdv=448 * 1024, c2=sC2)
    s += """
    s_lshl_b32 s{t0}, s{rb}, 1
    s_add_u32 s{t0}, s{t0}, s{th}
    s_mul_i32 s{t0}, s{t0}, 144
    s_mul_i32 s{t1}, s{q}, 36
    s_add_u32 s{t0}, s{t0}, s{t1}
    s_lshl_b32 s{t1}, s{ab}, 2
    s_add_u32 s{t0}, s{t0}, s{t1}
    s_lshl_b32 s{t1}, s{gr}, 1
    s_add_u32 s{t0}, s{t0}, s{t1}
    s_lshl_b32 s{t0}, s{t0}, 11
    v_lshl_add_u32 v{h}, v{L}, 4, s{t0}
    v_lshrrev_b32 v{a}, 3, v{L}
    v_lshlrev_b32 v{a}, 10, v{a}
    v_bfe_u32 v{b}, v{L}, 4, 1
    v_lshlrev_b32 v{b}, 2, v{b}
    v_xor_b32 v{b}, v{b}, v{L}
    v_and_b32 v{b}, 7, v{b}
    v_lshl_add_u32 v{a}, v{b}, 4, v{a}
    s_lshl_b32 s{t0}, s{ct}, 7
    v_add_u32 v{w}, s{t0}, v{a}
    v_add_u32 v{w1}, 7168, v{w}
    s_and_b32 s{t0}, s2, {hm}
    s_lshl_b32 s{t0}, s{t0}, 2
    s_add_u32 s{t0}, s{t0}, {ho}
    s_cmp_eq_u32 s{wv}, 0
    s_cselect_b32 s{t0}, s{t0}, {oob}
    v_mov_b32 v{hs}, {oob}
    v_writelane_b32 v{hs}, s{t0}, 0
    """.format(t0=sT0, t1=sT1, rb=sRB, th=sTH, q=sQ, ab=sAB, gr=sGR, h=vHST, L=vL, a=a, b=b, ct=sCT, w=W2D, w1=W2D + 1, wv=sWV, oob=OOB, hs=KVD, hm=31 if cfg.dbgout else 63, ho=64 if cfg.dbgout else 0)
    return L(s)

def att_setup():
    a, b, c = TMP, TMP + 1, TMP + 2
    s = """
    s_mul_i32 s{t0}, s{wv}, {wsz}
    s_add_u32 s{t0}, s{t0}, {wreg}
    v_and_b32 v{a}, 31, v{L}
    v_lshrrev_b32 v{b}, 5, v{L}
    v_mul_u32_u24 v{c}, 72, v{a}
    v_lshl_add_u32 v{c}, v{b}, 3, v{c}
    v_add_u32 v{pw}, s{t0}, v{c}
    v_mul_u32_u24 v{c}, 104, v{a}
    v_lshl_add_u32 v{c}, v{b}, 3, v{c}
    s_add_u32 s{t1}, s{t0}, {voff}
    v_add_u32 v{vw}, s{t1}, v{c}
    v_lshl_add_u32 v{c}, v{b}, 3, v{vw}
    v_mov_b32 v{o0}, 0x3f803f80
    v_mov_b32 v{o1}, 0x3f803f80
    ds_write_b64 v{c}, v[{o0}:{o1}] offset:64
    ds_write_b64 v{c}, v[{o0}:{o1}] offset:72
    v_bfe_u32 v{a}, v{L}, 2, 2
    v_lshl_add_u32 v{a}, v{b}, 3, v{a}
    v_and_b32 v{b}, 3, v{L}
    v_mul_u32_u24 v{c}, 72, v{a}
    v_lshl_add_u32 v{c}, v{b}, 3, v{c}
    v_bfe_u32 v{o0}, v{L}, 4, 1
    v_lshl_add_u32 v{c}, v{o0}, 5, v{c}
    v_add_u32 v{pr}, s{t0}, v{c}
    v_mul_u32_u24 v{c}, 104, v{a}
    v_lshl_add_u32 v{c}, v{b}, 3, v{c}
    v_add_u32 v{c}, s{t1}, v{c}
    v_lshl_add_u32 v{v0}, v{o0}, 6, v{c}
    v_add_u32 v{o0}, 1, v{o0}
    v_lshl_add_u32 v{v1}, v{o0}, 5, v{c}
    """.format(t0=sT0, t1=sT1, wv=sWV, wsz=WREG_SZ, wreg=WREG, a=a, b=b, c=c, L=vL, pw=vPW, vw=vVW, voff=VOFF, o0=TMP + 8, o1=TMP + 9,
               pr=vPR, v0=vVR0, v1=vVR1, i=sI, gr=sGR, th=sTH)
    return L(s)

def o_setup():
    return L("""
    s_lshl_b32 s{t0}, s{i}, 1
    s_add_u32 s{t0}, s{t0}, s{gr}
    s_lshl_b32 s{t0}, s{t0}, 13
    s_add_u32 s{t0}, s{t0}, {kvf}
    v_lshl_add_u32 v{d}, v{L}, 4, s{t0}
    """.format(t0=sT0, i=sI, gr=sGR, kvf=WS_KVF, d=vKVL, L=vL))

def wphi_setup(A):
    a, b = TMP, TMP + 1; t = 64 + 16
    s = """
    s_lshl_b32 s{t0}, s{i}, 2
    s_lshl_b32 s{t1}, s{gr}, 1
    s_add_u32 s{t0}, s{t0}, s{t1}
    s_lshl_b32 s{t0}, s{t0}, 9
    v_bfe_u32 v{a}, v{L}, 4, 1
    """.format(t0=sT0, t1=sT1, i=sI, gr=sGR, a=a, L=vL)
    if A: s += "v_xor_b32 v%d, s%d, v%d\n" % (a, sTH, a)
    s += """
    v_lshlrev_b32 v{a}, 9, v{a}
    v_lshrrev_b32 v{b}, 5, v{L}
    v_lshl_add_u32 v{a}, v{b}, 7, v{a}
    v_and_b32 v{b}, 15, v{L}
    v_lshl_add_u32 v{a}, v{b}, 1, v{a}
    v_add_u32 v{a}, s{t0}, v{a}
    """.format(a=a, b=b, L=vL, t0=sT0)
    for j in range(8):
        s += "buffer_load_ushort v%d, v%d, %s, 0 offen offset:%d\n" % (t + j, a, srd(SPHI), 32 * ((j & 3) + 8 * (j >> 2)))
    return L(s)

def wphi_finish():
    t = 64 + 16
    out = L("v_and_b32 v%d, 16, v%d\nv_cmp_eq_u32 vcc, 0, v%d" % (TMP + 8, vL, TMP + 8))
    g = []
    for j in range(4):
        g += L("v_lshl_or_b32 v{x}, v{y}, 16, v{x}\nv_cndmask_b32 v{a0}, 0, v{x}, vcc\nv_cndmask_b32 v{a1}, v{x}, 0, vcc".format(x=t + 2 * j, y=t + 2 * j + 1, a0=WPHI + j, a1=WPHI + 4 + j))
    return defines(out + g, WPHI=range(WPHI, WPHI + 8))

def rot_regs(c):
    if cfg.rot == "z":
        if c == 0: return "s_mov_b32 s%d, 0\ns_mov_b32 s%d, 0\ns_mov_b32 s%d, 0\n" % (sKX, sKQ, sKG)
        return "s_add_u32 s{t1}, s{r}, {c}\ns_sub_u32 s{t0}, s{t1}, 7\ns_cmp_gt_u32 s{t1}, 7\ns_cselect_b32 s{t1}, s{t0}, s{t1}\ns_lshl_b32 s{kx}, s{t1}, 7\ns_mul_i32 s{kq}, s{t1}, {a}\ns_mul_i32 s{kg}, s{t1}, {b}\n".format(
            r=sSPIN, t0=sT0, t1=sT1, c=c, kx=sKX + c, kq=sKQ + c, kg=sKG + c, a=64 * 3072, b=64 * 3584)
    return "s_add_u32 s{t1}, s{r}, {c}\ns_and_b32 s{t1}, s{t1}, 7\ns_lshl_b32 s{kx}, s{t1}, 7\ns_mul_i32 s{kq}, s{t1}, {a}\ns_mul_i32 s{kg}, s{t1}, {b}\n".format(
        r=sSPIN, t1=sT1, c=c, kx=sKX + c, kq=sKQ + c, kg=sKG + c, a=64 * 3072, b=64 * 3584)

def srd_consts(lst):
    return "".join("s_mov_b32 s%d, 0x%x\ns_mov_b32 s%d, 0x20000\n" % (reg + 2, sz, reg + 3) for reg, sz in lst)

def entry_x(item_dma):
    s = """
    s_cmp_ge_u32 s2, 256
    s_cbranch_scc1 L_exit
    """
    for reg, off in ((SX, 0), (SQ, 8), (SG, 40), (SU, 48), (SW, 80), (SPHI, 16), (SO, 24), (SD, 56), (SOUT, 64), (SDBG, 72)):
        s += "s_load_dwordx2 s[%d:%d], s[0:1], %d\n" % (reg, reg + 1, off)
    if cfg.stamps:
        s += "s_memrealtime s[%d:%d]\ns_memtime s[%d:%d]\nv_mov_b32 v%d, 0\n" % (sST, sST + 1, sST + 2, sST + 3, vSTAMP)
    s += """
    v_lshrrev_b32 v1, 6, v0
    v_and_b32 v{L}, 63, v0
    v_readfirstlane_b32 s{wv}, v1
    s_and_b32 s{xcd}, s2, 7
    s_lshr_b32 s{idx}, s2, 3
    s_and_b32 s{rb}, s{xcd}, 1
    s_lshl_b32 s{rb}, s{rb}, 3
    s_and_b32 s{t0}, s{idx}, 7
    s_add_u32 s{rb}, s{rb}, s{t0}
    s_lshr_b32 s{q}, s{xcd}, 1
    s_lshr_b32 s{t4}, s{idx}, 3
    s_and_b32 s{ab}, s{t4}, 1
    s_lshl_b32 s{i}, s{q}, 1
    s_add_u32 s{i}, s{i}, s{ab}
    {rotc}    s_and_b32 s{th}, s{wv}, 1
    s_lshr_b32 s{gr}, s{wv}, 1
    s_xor_b32 s{s}, s{th}, s{gr}
    s_lshl_b32 s{l2k}, s{wv}, 11
    s_mul_i32 s{lx}, s{gr}, {P}
    s_lshl_b32 s{t1}, s{th}, 12
    s_add_u32 s{lx}, s{lx}, s{t1}
    """.format(L=vL, wv=sWV, xcd=sXCD, idx=sIDX, rb=sRB, t0=sT0, t1=sT1, q=sQ, t4=sT4, ab=sAB, i=sI, th=sTH, gr=sGR, s=sS, l2k=sL2K, lx=sLX, P=PITCH,
               rotc=("s_lshl_b32 s%d, s%d, 1\ns_add_u32 s%d, s%d, s%d\ns_and_b32 s%d, s%d, %d\n" % (sT1, sT4, sSPIN, sT0, sT1, sSPIN, sSPIN, 7 if cfg.rot is True else int(cfg.rot))) if cfg.rot and cfg.rot != "z" else "")
    if cfg.rot: s += rot_regs(0)
    s += """
    s_lshl_b32 s{t0}, s{rb}, 2
    s_add_u32 s{t0}, s{t0}, s{wv}
    s_lshl_b32 s{t0}, s{t0}, 15
    v_lshrrev_b32 v2, 3, v{L}
    v_lshlrev_b32 v2, 10, v2
    v_add_u32 v2, s{t0}, v2
    v_lshrrev_b32 v3, 4, v{L}
    v_xor_b32 v3, v3, v{L}
    v_and_b32 v3, 7, v3
    v_lshl_add_u32 v{x0}, v3, 4, v2
    v_add_u32 v{x2}, {d2}, v{x0}
    v_xor_b32 v3, 4, v3
    v_lshl_add_u32 v{x1}, v3, 4, v2
    v_add_u32 v{x1}, 7168, v{x1}
    v_add_u32 v{x3}, {d2}, v{x1}
    """.format(t0=sT0, rb=sRB, wv=sWV, L=vL, x0=XD, x1=XD + 1, x2=XD + 2, x3=XD + 3, d2=2 * 7168)
    s += srd_consts(((SX, 0x200000), (SQ, 0x180000), (SG, 0x1C0000), (SU, 0x1C0000)))
    s += "s_waitcnt lgkmcnt(0)\n"
    if cfg.stamps: s += "v_writelane_b32 v%d, s%d, 0\nv_writelane_b32 v%d, s%d, 63\n" % (vSTAMP, sST, vSTAMP, sST + 2)
    ins = L(s)
    for x in ins:
        if x.kind == "smem": x.nowait = True
    defines(ins, XD=range(XD, XD + 4))
    ins += stamp("karg") + flat(item_dma(("x", 0)))
    ins += L("s_cmp_ge_u32 s%d, 2\ns_cbranch_scc1 L_proB" % sT4)
    return ins

def entry_rest():
    s = ""
    if cfg.rot == "z":
        s += """
        s_lshl_b32 s{t0}, s{q}, 1
        s_add_u32 s{t0}, s{t0}, s{t4}
        s_lshl_b32 s{t0}, s{t0}, 1
        s_add_u32 s{t0}, s{t0}, s{rb}
        s_mul_i32 s{t1}, s{t0}, 37
        s_lshr_b32 s{t1}, s{t1}, 8
        s_mul_i32 s{t1}, s{t1}, 7
        s_sub_u32 s{r}, s{t0}, s{t1}
        """.format(t0=sT0, t1=sT1, q=sQ, t4=sT4, rb=sRB, r=sSPIN)
    s += "".join(rot_regs(c) for c in range(1, cfg.npro)) if cfg.rot else ""
    s += """
    s_lshl_b32 s{l1k}, s{wv}, 10
    s_lshl_b32 s{tt}, s{xcd}, 2
    s_and_b32 s{t0}, s{idx}, 3
    s_add_u32 s{tt}, s{tt}, s{t0}
    s_lshr_b32 s{ct}, s{idx}, 2
    """.format(t0=sT0, wv=sWV, tt=sTT, xcd=sXCD, idx=sIDX, ct=sCT, l1k=sL1K)
    s += srd_consts(((SD, 0x1C0000), (SO, 0x80000), (SW, 0x10000000), (SOUT, 0x200000), (SDBG, 256), (SPHI, 16384)))
    return L(s)

def defaults():
    cfg.code_lim = 20480
    cfg.strict = False; cfg.p3t = 0; cfg.pacew = {}; cfg.wpfd = 0; cfg.npro = 2; cfg.pace0 = 8; cfg.pace = [8, 8, 4]; cfg.p2pace = 1
    cfg.order = '1jrcsfdu'; cfg.rot = 'z'; cfg.wpf0 = None; cfg.wpf = 0; cfg.wpf1 = [(SD, 14), (SO, 4)]; cfg.codepf = 1; cfg.w2pf = [(44, 16, 4), (48, 20, 4), (52, 24, 4), (56, 28, 4), (60, 32, 4)]
    cfg.p2period = 72; cfg.rd_early = True; cfg.one_wait = True; cfg.setup_end = 14
    cfg.a_att = 27; cfg.a_pub = 12; cfg.a_kvflag = 30; cfg.h1 = 18; cfg.a_h2 = 4
    cfg.b_h0 = 12; cfg.b_att = 22; cfg.b_ri = -8; cfg.b_rc = 0.1; cfg.b_li = 0.75
    cfg.flag_delay = 28; cfg.flag_delay2 = 14
    cfg.p0 = 10; cfg.poll_lead0 = 16; cfg.hstep0 = 5
    cfg.hlA = cfg.hlB = [4 * (n - 6) + 1 for n in range(36)]; cfg.poll_lead = [16, 16, 20, 20, 16]

def generate(path):
    label_n[0] = 0
    import fw; fw.LOOSE = cfg.x_nodma or cfg.x_drop
    progs = {}; cut = {}
    for typ in "AB":
        nc, p = build_type(typ)
        mark = p[nc]
        if cfg.x_nodma:
            k0 = [i for i, x in enumerate(p) if getattr(x, "kind", "") == "barrier"][0]
            q = p[:k0]
            for x in p[k0:]:
                if getattr(x, "dma", False):
                    y = I("s_nop 0");
                    q.append(y)
                else: q.append(x)
            p = q
        if cfg.x_drop:
            q = []
            for x in p:
                t = getattr(x, "text", "")
                d = ("h" in cfg.x_drop and t.startswith("buffer_load_dwordx4 a[")) or \
                    ("s" in cfg.x_drop and t.startswith("buffer_store_dwordx4") and "s[28:31]" in t) or \
                    ("w" in cfg.x_drop and getattr(x, "dma", False) and ("s[20:23]" in t or "s[24:27]" in t)) or \
                    ("p" in cfg.x_drop and x.kind == "raw")
                q.append(I("s_nop 0") if d else x)
            p = q
        progs[typ] = finalize(p, typ)
        cut[typ] = (progs[typ].index(mark), [i for i, x in enumerate(progs[typ]) if x.kind == "label"][0])
    body = emit(progs["A"][:cut["A"][1]]) + "L_proB:\n" + emit(progs["B"][cut["B"][0]:cut["B"][1]]) + "L_exit:\n    s_endpgm\n" + \
           emit(progs["A"][cut["A"][1]:]) + emit(progs["B"][cut["B"][1]:])
    ref = open("parallel_sum__linear_kernel_hedgehog__glu_gated_bilinear__prompt.s.ref").read().split("\n")
    head = [x for x in ref if x.startswith(";") and "@launch" not in x and "Override" not in x and "grid=ceil" not in x]
    txt = "\n".join(head) + "\n; @launch grid=(256,1,1) block=(256,1,1) lds=%d\n" % LDS_BYTES
    txt += """.amdgcn_target "amdgcn-amd-amdhsa--gfx950"
.text
.globl {k}
.p2align 8
.type {k},@function
{k}:
""".format(k=KNAME) + body + """.section .rodata,"a"
.p2align 6
.amdhsa_kernel {k}
  .amdhsa_next_free_vgpr 512
  .amdhsa_next_free_sgpr 102
  .amdhsa_accum_offset 256
  .amdhsa_group_segment_fixed_size 0
  .amdhsa_kernarg_size 88
  .amdhsa_user_sgpr_count 2
  .amdhsa_user_sgpr_kernarg_segment_ptr 1
  .amdhsa_system_sgpr_workgroup_id_x 1
.end_amdhsa_kernel
""".format(k=KNAME)
    open(path, "w").write(txt)
    if cfg.stamps: open(path[:-2] + ".names", "w").write("\n".join(stamp_names))

if __name__ == "__main__":
    defaults()
    path = sys.argv[1]
    for kv in sys.argv[2:]:
        k, v = kv.split("=")
        setattr(cfg, k, eval(v))
    generate(path)
```

```python
import sys
from fw import *

KNAME = "parallel_sum__linear_kernel_hedgehog__glu_gated_bilinear__prompt_kernel"

class Cfg:
    rot = True
    stamps = False
    codepf = False
    wpf = False
    w2pf = False
    spin = 200000
    dbgout = False
    x_drop = ''
    x_nostat = False; x_notask = False; x_nodma = False; x_nobar = False
cfg = Cfg()

PITCH = 8224
NSLOT = 16
WREG = NSLOT * PITCH
WREG_SZ = 5632
VOFF = 2304
STAT = WREG + 4 * WREG_SZ
CSP = STAT + 2048
CST = CSP + 3072
LDS_BYTES = 163840
WS_H = 0
WS_KVP = 0xC00000
WS_KVF = 0xA00000
WS_FL = 0xA40000
WS_ST = 0xB00000
OOB = 0x40000000

SX, SQ, SG, SU, SD, SO, SW, SOUT, SDBG, SPHI = 4, 8, 12, 16, 20, 24, 28, 32, 36, 40
def srd(b): return "s[%d:%d]" % (b, b + 3)
sWV, sTH, sGR, sRB, sQ, sT4, sAB, sI, sTT, sCT, sIDX, sXCD = range(44, 56)
sKX, sKQ, sKG = 56, 64, 72
sLX, sL2K, sL1K, sT0, sT1, sSPIN = 80, 81, 82, 83, 84, 85
sM1, sM2, sM3, sMB = 86, 88, 90, 92
sWDB, sWOB, sC2, sH2, sS = 94, 95, 96, 97, 3
sMH = 54
sST = 98
SET0, SET1, WF = 0, 64, 128
SEL01, SEL23 = 144, 148
vPW, vPR, vVW, vVR0 = 152, 153, 154, 155
vKVL, vKRL, vKRS = 152, 153, 154
CSD = 156
MB = 160
CA = 168
vSL = 172
XR, WR1, WR3, XD, WR2 = 174, 178, 178, 182, 182
W2R = 174
WQD, WGD, WHD = 186, 188, 190
vHLD, vPOL = 186, 187
vCSA, vRS, vR2, vHST, vL, W2D = 191, 192, 194, 196, 197, 198
WPHI = 200
KVD = 208
TMP = 240
vFLG, vVR1, vKVA, vSTAMP = 252, 253, 254, 255
RSD, SQD = 64, 68

def vr(b, n=1): return "v%d" % b if n == 1 else "v[%d:%d]" % (b, b + n - 1)
def ar(b, n): return "a[%d:%d]" % (b, b + n - 1)

stamp_names = []
def stamp(name):
    if cfg.stamps != True: return []
    if name not in stamp_names: stamp_names.append(name)
    k = stamp_names.index(name)
    return [I("s_memtime s[%d:%d]" % (sST, sST + 1)), I("v_writelane_b32 v%d, s%d, %d" % (vSTAMP, sST, k + 2))]

def addr_wfull(dst, n, att, swap, t0=TMP):
    a, b = vr(t0), vr(t0 + 1)
    s = """
    v_lshrrev_b32 {a}, 5, v{L}
    v_lshlrev_b32 {a}, 10, {a}
    v_bfe_u32 {b}, v{L}, 2, 2
    v_lshl_add_u32 {a}, {b}, 7, {a}
    v_and_b32 {b}, 3, v{L}
    v_lshl_add_u32 {a}, {b}, 3, {a}
    v_bfe_u32 {b}, v{L}, 3, 1
    v_xor_b32 {b}, s{gr}, {b}
    v_lshl_add_u32 {a}, {b}, 6, {a}
    v_bfe_u32 {b}, v{L}, 4, 1
    """.format(a=a, b=b, L=vL, gr=sGR)
    if att:
        if swap: s += "v_xor_b32 %s, s%d, %s\n" % (b, sTH, b)
        s += "v_lshl_add_u32 %s, %s, 5, %s\n" % (a, b, a)
    else:
        s += "v_mul_u32_u24 %s, %d, %s\nv_add_u32 %s, %s, %s\n" % (b, PITCH, b, a, a, b)
    return L(s) + wr_variants(dst, n, a, 12, 'Watt' if att else 'Wpair')

def wr_variants(dst, n, a, sh, role):
    s = "s_lshl_b32 s%d, s%d, %d\ns_xor_b32 s%d, s%d, %d\n" % (sT0, sS, sh, sT1, sT0, 1 << sh)
    k = dst
    if n == 4:
        s += "v_add_u32 v%d, s%d, %s\nv_add_u32 v%d, s%d, %s\n" % (k, sT0, a, k + 1, sT1, a)
        s += "v_add_u32 v%d, %d, v%d\nv_add_u32 v%d, %d, v%d\n" % (k + 2, 8 * PITCH, k, k + 3, 8 * PITCH, k + 1)
    else:
        s += "v_add_u32 %s, %d, %s\n" % (a, 8 * PITCH, a)
        s += "v_add_u32 v%d, s%d, %s\nv_add_u32 v%d, s%d, %s\n" % (k, sT0, a, k + 1, sT1, a)
    ins = L(s)
    return [defines(ins, **{role: range(dst, dst + n)})]

def addr_whalf(dst, t0=TMP):
    a, b = vr(t0), vr(t0 + 1)
    s = """
    v_lshrrev_b32 {a}, 5, v{L}
    v_lshlrev_b32 {a}, 9, {a}
    v_bfe_u32 {b}, v{L}, 2, 2
    v_lshl_add_u32 {a}, {b}, 6, {a}
    v_and_b32 {b}, 3, v{L}
    v_lshl_add_u32 {a}, {b}, 3, {a}
    v_bfe_u32 {b}, v{L}, 4, 1
    v_mul_u32_u24 {b}, 4128, {b}
    v_add_u32 {a}, {a}, {b}
    v_mov_b32 {b}, s{gr}
    v_lshl_add_u32 {a}, {b}, 5, {a}
    """.format(a=a, b=b, L=vL, gr=sGR)
    return L(s) + wr_variants(dst, 4, a, 11, 'Whalf')

def addr_cs(swap, t0=TMP):
    a = vr(t0)
    s = "s_lshl_b32 s%d, s%d, 8\ns_lshl_b32 s%d, s%d, 7\ns_add_u32 s%d, s%d, s%d\ns_add_u32 s%d, s%d, %d\n" % (sT0, sGR, sT1, sTH, sT0, sT0, sT1, sT0, sT0, CSP)
    s += "v_and_b32 %s, 31, v%d\n" % (a, vL)
    if swap: s += "s_lshl_b32 s%d, s%d, 4\nv_xor_b32 %s, s%d, %s\n" % (sT1, sTH, a, sT1, a)
    s += """
    v_lshl_add_u32 v{ca}, {a}, 2, s{t}
    v_lshrrev_b32 {a}, 5, v{L}
    v_lshl_add_u32 v{ca}, {a}, 9, v{ca}
    """.format(a=a, L=vL, ca=vCSA, t=sT0)
    return [defines(L(s), **{"CSs" if swap else "CS": vCSA})]

def addr_p2(t0=TMP):
    a, b = vr(t0), vr(t0 + 1)
    s = """
    v_lshrrev_b32 {a}, 5, v{L}
    v_lshlrev_b32 {a}, 9, {a}
    v_bfe_u32 {b}, v{L}, 2, 2
    v_lshl_add_u32 {a}, {b}, 7, {a}
    v_and_b32 {b}, 3, v{L}
    v_lshl_add_u32 {a}, {b}, 3, {a}
    v_bfe_u32 {b}, v{L}, 3, 1
    v_lshl_add_u32 {a}, {b}, 6, {a}
    v_bfe_u32 {b}, v{L}, 4, 1
    v_lshl_add_u32 {a}, {b}, 5, {a}
    v_xor_b32 {b}, 64, {a}
    v_add_u32 v{w0}, s{l2k}, {a}
    v_add_u32 v{w1}, s{l2k}, {b}
    v_add_u32 v{w2}, {hi}, v{w0}
    v_add_u32 v{w3}, {hi}, v{w1}
    """.format(a=a, b=b, L=vL, w0=W2R, w1=W2R + 1, w2=W2R + 2, w3=W2R + 3, l2k=sL2K, hi=8 * PITCH)
    ins = L(s)
    ins.append(L("""
    s_mul_i32 s{t0}, s{tt}, {a}
    s_mul_i32 s{t1}, s{wv}, {b}
    s_add_u32 s{t0}, s{t0}, s{t1}
    v_lshl_add_u32 v{h}, v{L}, 4, s{t0}
    """.format(t0=sT0, t1=sT1, tt=sTT, wv=sWV, a=144 * 2048, b=36 * 2048, h=vHLD, L=vL)))
    ins.append(L("""
    s_lshl_b32 s{t0}, s{tt}, 2
    s_add_u32 s{t0}, s{t0}, s{wv}
    s_lshl_b32 s{t0}, s{t0}, 7
    s_add_u32 s{t0}, s{t0}, {fl}
    v_and_b32 {a}, 7, v{L}
    v_lshl_add_u32 v{p}, {a}, 2, s{t0}
    """.format(t0=sT0, tt=sTT, wv=sWV, fl=WS_FL, a=a, L=vL, p=vPOL)))
    return defines(ins, W2R=range(W2R, W2R + 4), HLD=vHLD, POL=vPOL)

label_n = [0]
def poll(addr, res, need, sr=SW, cmp="gt"):
    label_n[0] += 1
    k = label_n[0]
    ld = "buffer_load_dword v%d, v%d, %s, 0 offen sc1" % (res, addr, srd(sr))
    c = "v_cmp_%s_u32 vcc, %s, v%d" % (cmp, need, res)
    chk = Raw([c, "s_nop 4", "s_cbranch_vccz L_ok%d" % k,
               "s_mov_b32 s%d, %d" % (sSPIN, cfg.spin),
               "L_re%d:" % k, "s_sleep 1", ld, "s_waitcnt vmcnt(0)", c, "s_sub_u32 s%d, s%d, 1" % (sSPIN, sSPIN),
               "s_cbranch_scc1 L_ok%d" % k, "s_nop 2", "s_cbranch_vccnz L_re%d" % k,
               "L_ok%d:" % k],
              rd=["v%d" % res, "v%d" % addr] + regs_of(need), wr=["vcc", "scc", "s%d" % sSPIN])
    chk.cost = 32
    return I(ld), chk

def class_poll(c, res, needr):
    na, nb = [(0, 1), (0, 2), (1, 2), (2, 2), (2, 3)][c]
    iss, chk = poll(vPOL, res, "v%d" % needr)
    needs([iss, chk], POL=vPOL); defines([iss], **{"cp%d" % c: res}); needs([chk], **{"cp%d" % c: res})
    return iss, [I("v_cndmask_b32 v%d, %d, %d, s[%d:%d]" % (needr, na, nb, sMB, sMB + 1)), chk]

def set_flag(level, tag, t):
    if cfg.strict: tag = "vm0"
    return stamp("f%d_0" % level) + [Wait(tag)] + stamp("f%d_1" % level) + [I("v_mov_b32 v%d, %d" % (t, level)), needs(I("buffer_store_dword v%d, v%d, %s, 0 offen sc1" % (t, vFLG, srd(SW))), FLG=vFLG)]

def t_stat_add():
    a, b = TMP, TMP + 1
    s = """
    s_lshl_b32 s{t0}, s{th}, 10
    s_add_u32 s{t0}, s{t0}, {st}
    v_and_b32 v{b}, 31, v{L}
    v_lshl_add_u32 v{b}, v{b}, 4, s{t0}
    s_lshl_b32 s{t1}, s{gr}, 3
    s_add_u32 s{t0}, s{t0}, s{t1}
    v_lshl_add_u32 v{a}, v{L}, 4, s{t0}
    """.format(t0=sT0, t1=sT1, th=sTH, gr=sGR, st=STAT, a=a, b=b, L=vL)
    pre = [L(s)]
    out = []
    for j, m in ((1, sM1), (2, sM2), (3, sM3)):
        for blk in range(2):
            q = SQD + 4 * blk
            out += L("v_cndmask_b32 v%d, v%d, v%d, s[%d:%d]" % (q, q, q + j, m, m + 1))
    out.append(L("v_permlane32_swap_b32 v%d, v%d\nv_add_f32 v%d, v%d, v%d" % (SQD, SQD + 4, RSD + 1, SQD, SQD + 4)))
    out += L("ds_write_b64 v%d, v[%d:%d]" % (a, RSD, RSD + 1))
    return pre, out

def t_cs_add(tile0, role="CS"):
    return needs(L("ds_write_b32 v%d, v%d offset:%d" % (vCSA, CSD, 512 * tile0)), **{role: vCSA})

def t_cs_tot(tile0, t):
    out = L("v_xor_b32 v%d, 0x80, v%d\nds_read_b32 v%d, v%d offset:%d" % (t, vCSA, t, t, 512 * tile0))
    out.append(Gap(2))
    out += L("""
    v_add_f32 v{t}, v{t}, v{cs}
    v_cvt_pk_bf16_f32 v{a}, v{t}, v{t}
    v_lshlrev_b32 v{a1}, 16, v{a}
    v_sub_f32 v{t}, v{t}, v{a1}
    v_cvt_pk_bf16_f32 v{a1}, v{t}, 0
    """.format(t=t, cs=CSD, a=CA, a1=CA + 1))
    return defines(out, **{"CA%d" % tile0: (CA, CA + 1)})

def t_corr(acc, T, tile0, bs=16):
    out = []
    for j in range(T):
        for b in range(2):
            d = vr(acc + 32 * j + bs * b, 16)
            x = I("v_mfma_f32_32x32x16_bf16 %s, %s, %s, %s" % (d, vr(CA, 4), vr(MB + 4 * b + 2 * j, 4), d)); x.cost = 24
            out.append(x)
    return needs(out, MB=range(MB, MB + 8), Z=(CA + 2, CA + 3), **{"CA%d" % tile0: (CA, CA + 1)})

def t_stat_fin():
    b = TMP + 1; t = TMP + 4
    out = L("ds_read_b128 v[%d:%d], v%d\nds_read_b128 v[%d:%d], v%d offset:512" % (t, t + 3, b, t + 4, t + 7, b))
    out.append(Gap(2))
    late = []
    for blk in range(2):
        r = t + 4 * blk; m = MB + 4 * blk
        out += L("""
        v_add_f32 v{r}, v{r}, v{r2}
        v_mul_f32 v{r}, 0xbb000000, v{r}
        v_cvt_pk_bf16_f32 v{m1}, v{r}, 0
        v_lshlrev_b32 v{r2}, 16, v{m1}
        v_sub_f32 v{r2}, v{r}, v{r2}
        v_cvt_pk_bf16_f32 v{m0}, v{r}, v{r2}
        v_cndmask_b32 v{m2}, 0, v{m0}, s[{h}:{h1}]
        v_cndmask_b32 v{m3}, 0, v{m1}, s[{h}:{h1}]
        v_cndmask_b32 v{m0}, v{m0}, 0, s[{h}:{h1}]
        v_cndmask_b32 v{m1}, v{m1}, 0, s[{h}:{h1}]
        """.format(r=r, r2=r + 2, m0=m, m1=m + 1, m2=m + 2, m3=m + 3, h=sMH, h1=sMH + 1))
        late += L("""
        v_add_f32 v{r1}, v{r1}, v{r3}
        v_mul_f32 v{r2}, v{r}, v{r}
        v_fma_f32 v{r1}, v{r1}, s{c}, -v{r2}
        v_max_f32 v{r1}, 0, v{r1}
        v_add_f32 v{r1}, 0x3727c5ac, v{r1}
        v_rsq_f32 v{rs}, v{r1}
        v_rcp_f32 v{rr}, v{r1}
        v_mul_f32 v{sl}, 0x3fb8aa3b, v{rs}
        """.format(r=r, r1=r + 1, r2=r + 2, r3=r + 3, rs=vRS + blk, rr=vR2 + blk, sl=vSL + blk, c=sC2))
    defines(out, MB=range(MB, MB + 8)); defines(late, R2=(vR2, vR2 + 1), RS=(vRS, vRS + 1), SL=(vSL, vSL + 1))
    return out, late

def t_hepi(acc, soff, imm, tag, bs=16):
    out = []
    for blk in range(2):
        g = acc + bs * blk
        for r in range(0, 8 if not cfg.x_notask else 0, 2):
            out += L("v_mul_f32 v%d, v%d, v%d\nv_mul_f32 v%d, v%d, v%d" % (g + r, vR2 + blk, g + r, g + r + 1, vR2 + blk, g + r + 1))
            out += L("v_mul_f32 v%d, v%d, v%d\nv_mul_f32 v%d, v%d, v%d" % (g + r, g + r, g + 8 + r, g + r + 1, g + r + 1, g + 9 + r))
            out += L("v_cvt_pk_bf16_f32 v%d, v%d, v%d" % (g + r // 2, g + r, g + r + 1))
        st = L("buffer_store_dwordx4 v[%d:%d], v%d, %s, s%d offen offset:%d sc1" % (g, g + 3, vHST, srd(SW), sT1, imm + 1024 * blk), tag=tag if blk else None)
        out.append(L(soff) + st)
    return needs(out, HST=vHST, R2=(vR2, vR2 + 1))

def phi_mfma(acc, TMP=TMP):
    out = []
    for j in range(8): out += L("v_cvt_pk_bf16_f32 v%d, v%d, v%d" % (TMP + j, acc + 2 * j, acc + 2 * j + 1))
    out += L("v_mfma_f32_32x32x16_bf16 v[%d:%d], v[%d:%d], v[%d:%d], 0" % (acc, acc + 15, WPHI, WPHI + 3, TMP, TMP + 3))
    out += L("v_mfma_f32_32x32x16_bf16 v[%d:%d], v[%d:%d], v[%d:%d], v[%d:%d]" % (acc, acc + 15, WPHI + 4, WPHI + 7, TMP + 4, TMP + 7, acc, acc + 15))
    out[-1].cost = 24; out[-2].cost = 24
    return needs(out, WPHI=range(WPHI, WPHI + 8))

def softmax2(p, blk):
    e = TMP; a, b, c, d = TMP + 8, TMP + 9, TMP + 10, TMP + 11; sl = vSL + blk
    s = """
    v_max3_f32 v{a}, v{p0}, v{p1}, v{p2}
    v_min3_f32 v{b}, v{p0}, v{p1}, v{p2}
    v_max3_f32 v{a}, v{a}, v{p3}, v{p4}
    v_min3_f32 v{b}, v{b}, v{p3}, v{p4}
    v_max3_f32 v{a}, v{a}, v{p5}, v{p6}
    v_min3_f32 v{b}, v{b}, v{p5}, v{p6}
    v_max_f32 v{a}, v{a}, v{p7}
    v_max_f32_e64 v{b}, -v{b}, -v{p7}
    """.format(a=a, b=b, **{"p%d" % i: p + i for i in range(8)})
    out = L(s)
    out += L("v_permlane32_swap_b32 v{a}, v{b}\nv_max_f32 v{a}, v{a}, v{b}\nv_mul_f32_e64 v{a}, -v{a}, v{sl}\nv_mov_b32 v{b}, v{a}".format(a=a, b=b, sl=sl))
    out += L("v_permlane32_swap_b32 v{a}, v{b}".format(a=a, b=b))
    for i in range(8):
        out += L("v_fma_f32 v%d, v%d, v%d, v%d" % (e + i, p + i, sl, a))
        out += L("v_fma_f32 v%d, -v%d, v%d, v%d" % (p + i, p + i, sl, b))
        if i > 1: out += L("v_add_f32 v%d, v%d, v%d" % (c, c if i > 2 else e, e + i - 1))
        out += L("v_exp_f32 v%d, v%d" % (e + i, e + i))
        if i > 1: out += L("v_add_f32 v%d, v%d, v%d" % (d, d if i > 2 else p, p + i - 1))
        out += L("v_exp_f32 v%d, v%d" % (p + i, p + i))
    out += L("v_add_f32 v%d, v%d, v%d\nv_add_f32 v%d, v%d, v%d" % (c, c, e + 7, d, d, p + 7))
    out += L("v_permlane32_swap_b32 v{c}, v{d}\nv_add_f32 v{c}, v{c}, v{d}\nv_rcp_f32 v{c}, v{c}".format(c=c, d=d))
    out += L("v_mov_b32 v{d}, v{c}".format(c=c, d=d))
    out += L("v_permlane32_swap_b32 v{c}, v{d}".format(c=c, d=d))
    for i in range(8):
        out += L("v_mul_f32 v%d, v%d, v%d" % (p + i, d, p + i))
        if i & 1: out += L("v_cvt_pk_bf16_f32 v%d, v%d, v%d" % (p + i // 2, p + i - 1, p + i))
    for i in range(8):
        out += L("v_mul_f32 v%d, v%d, v%d" % (e + i, c, e + i))
        if i & 1: out += L("v_cvt_pk_bf16_f32 v%d, v%d, v%d" % (p + 4 + i // 2, e + i - 1, e + i))
    return out

def v_out(va, blk):
    out = []
    for r in range(0, 16, 2):
        out += L("v_mul_f32 v%d, v%d, v%d\nv_mul_f32 v%d, v%d, v%d" % (va + r, vRS + blk, va + r, va + r + 1, vRS + blk, va + r + 1))
        out += L("v_cvt_pk_bf16_f32 v%d, v%d, v%d" % (va + r // 2, va + r, va + r + 1))
        if r % 4 == 2: out += L("ds_write_b64 v%d, v[%d:%d] offset:%d" % (vVW, va + r // 2 - 1, va + r // 2, 4 * (r - 2)))
    return out

def weave(main, extra, pos):
    out = []; k = 0
    for n, x in enumerate(main):
        while k < len(extra) and pos[k] <= n: out.append(extra[k]); k += 1
        out.append(x)
    return out + extra[k:]

def t_att_k():
    out = []
    if cfg.x_notask: return [I("s_nop 0")]
    FR = 32
    rds, mms = [], []
    for blk in range(2):
        va = 32 + 16 * blk; ka = 16 * blk
        pm = phi_mfma(ka)
        out += weave(pm, rds, range(0, 8)); rds = []
        vo = v_out(va, blk)
        out += weave(vo, mms, (10, 18)); mms = []
        for hh in range(2):
            p = ka + 8 * hh
            sm = softmax2(p, blk)
            n = len(sm)
            wr = [I("ds_write_b64 v%d, v[%d:%d] offset:%d" % (vPW, p + 2 * j, p + 1 + 2 * j, 32 + 16 * j)) for j in range(2)] + \
                 [I("ds_write_b64 v%d, v[%d:%d] offset:%d" % (vPW, p + 4 + 2 * j, p + 5 + 2 * j, 16 * j)) for j in range(2)]
            sm = weave(sm, rds + mms + wr, [2, 5, 8, 8, 12, 12, 16, 20][:len(rds)] + [44, 56][:len(mms)] + [n - 17, n - 11, n - 5, n])
            out += sm
            rds, mms = [], []
            for ks in range(2):
                for j in range(2):
                    rds += L("ds_read_b64_tr_b16 v[%d:%d], v%d offset:%d" % (FR + 8 * ks + 4 + 2 * j, FR + 8 * ks + 5 + 2 * j, (vVR0, vVR1)[hh], 1664 * ks + 416 * j))
                for j in range(2):
                    rds += L("ds_read_b64_tr_b16 v[%d:%d], v%d offset:%d" % (FR + 8 * ks + 2 * j, FR + 8 * ks + 2 * j + 1, vPR, 1152 * ks + 288 * j))
            d = KVD + 16 * hh
            for ks in range(2):
                c = "0" if (blk == 0 and ks == 0) else vr(d, 16)
                x = I("v_mfma_f32_32x32x16_bf16 %s, %s, %s, %s" % (vr(d, 16), vr(FR + 8 * ks, 4), vr(FR + 8 * ks + 4, 4), c)); x.cost = 24
                mms.append(x)
    for x in rds: x.cost = 8
    out += rds
    pend = mms
    out.append(L("""
    s_mul_i32 s{t0}, s{wv}, {wsz}
    s_add_u32 s{t0}, s{t0}, {wreg}
    v_lshl_add_u32 v{a}, v{L}, 4, s{t0}
    s_xor_b32 s{t0}, s{wv}, 1
    s_mul_i32 s{t0}, s{t0}, {wsz}
    s_add_u32 s{t0}, s{t0}, {wreg}
    v_lshl_add_u32 v{b}, v{L}, 4, s{t0}
    """.format(t0=sT0, wv=sWV, wsz=WREG_SZ, wreg=WREG, a=TMP, b=TMP + 1, L=vL)))
    out += [Gap(2)] + pend + [Gap(2)]
    for r4 in range(4): out += L("ds_write_b128 v%d, %s offset:%d" % (TMP, vr(KVD + 16 + 4 * r4, 4), 1024 * r4))
    defines(out, EXR=TMP + 1)
    return needs(out, PW=vPW, PR=vPR, VW=vVW, VR0=vVR0, VR1=vVR1, RS=(vRS, vRS + 1), SL=(vSL, vSL + 1))

def t_kv_pub():
    out = []
    for r4 in range(4): out += L("ds_read_b128 %s, v%d offset:%d" % (vr(KVD + 16 + 4 * r4, 4), TMP + 1, 1024 * r4))
    out.append(Gap(2))
    for r in range(16):
        out += L("v_add_f32 v%d, v%d, v%d" % (KVD + r, KVD + r, KVD + 16 + r))
        if r % 4 == 3: out += L("buffer_store_dwordx4 %s, v%d, %s, 0 offen offset:%d sc1" % (vr(KVD + r - 3, 4), vKVA, srd(SW), 136 * (r - 3)))
    return needs(out, EXR=TMP + 1, KVA=vKVA)

def data_poll(loads, regs, t):
    label_n[0] += 1
    k = label_n[0]
    chk = ["v_max3_u32 v%d, v%d, v%d, v%d" % (t, regs[0], regs[1], regs[2])]
    rest = regs[3:]
    while len(rest) > 1:
        chk.append("v_max3_u32 v%d, v%d, v%d, v%d" % (t, t, rest[0], rest[1])); rest = rest[2:]
    if rest: chk.append("v_max_u32 v%d, v%d, v%d" % (t, t, rest[0]))
    fast = L("\n".join(chk))
    c = "v_cmp_eq_u32 vcc, -1, v%d" % t
    raw = Raw([c, "s_nop 4", "s_cbranch_vccz L_ok%d" % k, "s_mov_b32 s%d, %d" % (sSPIN, cfg.spin), "L_re%d:" % k, "s_sleep 1"] + loads +
              ["s_waitcnt vmcnt(0)"] + chk + [c, "s_sub_u32 s%d, s%d, 1" % (sSPIN, sSPIN), "s_cbranch_scc1 L_ok%d" % k, "s_nop 2",
               "s_cbranch_vccnz L_re%d" % k, "L_ok%d:" % k],
              rd=["v%d" % t], wr=["vcc", "scc", "s%d" % sSPIN, "s%d" % sT1] + ["v%d" % r for r in regs])
    raw.cost = 32
    return fast + [raw]

RR = 80
def t_kv_red():
    ld = []
    for k in range(4):
        ld += ["s_mov_b32 s%d, %d" % (sT1, 8704 * k), "buffer_load_dwordx4 %s, v%d, %s, s%d offen sc1" % (vr(RR + 4 * k, 4), vKRL, srd(SW), sT1)]
    iss = [L("\n".join(ld[2 * k:2 * k + 2])) for k in range(4)]
    out = data_poll(ld, list(range(RR, RR + 16)), vKVA)
    for j in range(4):
        out += L("v_add_f32 v%d, v%d, v%d\nv_add_f32 v%d, v%d, v%d" % (RR + j, RR + j, RR + 4 + j, RR + 8 + j, RR + 8 + j, RR + 12 + j))
    for j in range(4): out += L("v_add_f32 v%d, v%d, v%d" % (RR + j, RR + j, RR + 8 + j))
    out += L("""
    v_permlane16_swap_b32 v{a}, v{b}
    v_permlane16_swap_b32 v{c}, v{d}
    v_add_f32 v{a}, v{a}, v{b}
    v_add_f32 v{c}, v{c}, v{d}
    v_permlane32_swap_b32 v{a}, v{c}
    v_add_f32 v{a}, v{a}, v{c}
    buffer_store_dword v{a}, v{s}, {sr}, 0 offen sc1
    """.format(a=RR, b=RR + 1, c=RR + 2, d=RR + 3, s=vKRS, sr=srd(SW)))
    needs(iss, KRL=vKRL); needs(out, KRS=vKRS)
    return iss, out

def t_att_q():
    out = []
    if cfg.x_notask: return [I("s_nop 0")]
    out += phi_mfma(SET0, 64) + phi_mfma(SET0 + 16, 72)
    out += softmax2(SET0, 0) + softmax2(SET0 + 8, 0) + softmax2(SET0 + 16, 1) + softmax2(SET0 + 24, 1)
    return out

KR = 32
def t_kv_load():
    ld = []
    for hh in range(2):
        for r4 in range(4):
            ld += ["buffer_load_dwordx4 %s, v%d, %s, 0 offen offset:%d sc1" % (vr(KR + 16 * hh + 4 * r4, 4), vKVL, srd(SW), 2176 * hh + 544 * r4)]
    return needs(L("\n".join(ld)), KVL=vKVL), data_poll(ld, list(range(KR, KR + 32)), vKVA)

def t_o():
    out = []
    for hh in range(2):
        for j in range(8): out += L("v_cvt_pk_bf16_f32 v%d, v%d, v%d" % (KR + 16 * hh + j, KR + 16 * hh + 2 * j, KR + 16 * hh + 2 * j + 1))
    seq = [(hh, blk) for hh in range(2) for blk in range(2)]
    def mm(k):
        hh, blk = seq[k]; d = 64 + 16 * (k & 1); p = SET0 + 16 * blk + 8 * hh
        return L("v_mfma_f32_32x32x16_bf16 %s, %s, %s, 0" % (vr(d, 16), vr(KR + 16 * hh, 4), vr(p + 4, 4))) + \
               L("v_mfma_f32_32x32x16_bf16 %s, %s, %s, %s" % (vr(d, 16), vr(KR + 16 * hh + 4, 4), vr(p, 4), vr(d, 16)))
    def fin(k):
        hh, blk = seq[k]; d = 64 + 16 * (k & 1)
        o = L("v_add_f32 v%d, 0x358637bd, v%d\nv_rcp_f32 v%d, v%d" % (d + 8, d + 8, d + 8, d + 8))
        for r in range(8):
            o += L("v_mul_f32 v%d, v%d, v%d" % (d + r, d + 8, d + r))
            if r & 1: o += L("v_cvt_pk_bf16_f32 v%d, v%d, v%d" % (d + r // 2, d + r - 1, d + r))
        st = L("s_mov_b32 s%d, %d" % (sT1, 28 * 2048)) + \
             L("buffer_store_dwordx4 %s, v%d, %s, s%d offen offset:%d sc1" % (vr(d, 4), vHST, srd(SW), sT1, 2048 * hh + 1024 * blk), tag="ost" if k == 3 else None)
        return o + [st]
    out += mm(0) + mm(1) + fin(0) + mm(2) + fin(1) + mm(3) + fin(2) + fin(3)
    return out

def dma(vo, sr, so, imm, tag=None):
    role = "XD" if sr == SX else "WQD" if sr == SQ else "W2D" if sr in (SD, SO) else "WHD" if vo == WHD else "WGD"
    return needs(dma_(vo, sr, so, imm, tag), **{role: vo})

def dma_(vo, sr, so, imm, tag=None):
    return L("buffer_load_dwordx4 v%d, %s, %s offen%s lds" % (vo, srd(sr), so, " offset:%d" % imm if imm else ""), tag=tag)

def m0set(base, lit): return L("s_add_u32 m0, s%d, %d" % (base, lit))

def dma_x(c, slot, tag):
    if not cfg.rot:
        g = m0set(sLX, slot * PITCH) + L("s_movk_i32 s%d, %d" % (sH2 + 0 if False else 79, 128 * c))
        return [g + dma(XD, SX, "s79", 0)] + [dma(XD + i, SX, "s79", 1024 * i, tag if i == 3 else None) for i in range(1, 4)]
    g = m0set(sLX, slot * PITCH)
    return [g + dma(XD, SX, "s%d" % (sKX + c), 0)] + [dma(XD + i, SX, "s%d" % (sKX + c), 1024 * i, tag if i == 3 else None) for i in range(1, 4)]

def dma_full(vo, sr, kreg, extra, slot, tag):
    g = m0set(sL2K, slot * PITCH)
    so = "s%d" % kreg
    if not cfg.rot:
        lit = extra + ((kreg - sKQ) * 64 * 3072 if kreg < sKG else (kreg - sKG) * 64 * 3584)
        g += L("s_mov_b32 s%d, %d" % (sT0, lit)); so = "s%d" % sT0
        return [g + dma(vo, sr, so, 0) + dma(vo + 1, sr, so, 1024, tag)]
    if extra:
        g += L("s_add_u32 s%d, s%d, %d" % (sT0, kreg, extra)); so = "s%d" % sT0
        return [g + dma(vo, sr, so, 0) + dma(vo + 1, sr, so, 1024, tag)]
    return [g + dma(vo, sr, so, 0) + dma(vo + 1, sr, so, 1024, tag)]

def dma_half(c, slot, tag):
    so = "s%d" % (sKG + c)
    if not cfg.rot:
        mv = lambda: L("s_mov_b32 s%d, %d" % (sT0, c * 64 * 3584)); so = "s%d" % sT0
        return [m0set(sL1K, slot * PITCH) + mv() + dma(WHD, SG, so, 0), m0set(sL1K, slot * PITCH + 4128) + mv() + dma(WHD, SU, so, 0, tag)]
    return [m0set(sL1K, slot * PITCH) + dma(WHD, SG, so, 0), m0set(sL1K, slot * PITCH + 4128) + dma(WHD, SU, so, 0, tag)]

def slice_src(n):
    return (SD, sWDB, 16 * n) if n < 28 else (SO, sWOB, 16 * (n - 28))

FIRST = [0, 8, 16, 24, 28, 36]
sR2 = sKX
def cls_of(n):
    c = max(k for k in range(5) if FIRST[k] <= n)
    return c, n - FIRST[c]

def r2_table():
    out = [L("s_and_b32 s{a}, s{tt}, 3\ns_lshl_b32 s{a}, s{a}, 1\ns_add_u32 s{a}, s{a}, s{ct}\ns_and_b32 s{a}, s{a}, {m}\ns_lshl_b32 s{a}, s{a}, 11".format(a=sR2, tt=sTT, ct=sCT, m=7 if cfg.rot2 else 0))]
    for i in range(1, 8): out.append(L("s_add_u32 s{a}, s{p}, 2048\ns_and_b32 s{a}, s{a}, 0x3800".format(a=sR2 + i, p=sR2 + i - 1)))
    return defines(out, R2T=["s%d" % (sR2 + i) for i in range(8)])

def dma_w2(n, slot):
    sr, base, row = slice_src(n)
    c, i = cls_of(n)
    g = m0set(sL2K, slot * PITCH)
    if c == 3: g += L("s_and_b32 s{t}, s{r}, 0x1800\ns_lshl3_add_u32 s{t}, s{t}, s{b}".format(t=sT0, r=sR2 + i, b=base))
    else: g += L("s_lshl3_add_u32 s{t}, s{r}, s{b}".format(t=sT0, r=sR2 + i, b=base))
    needs(g, R2T="s%d" % (sR2 + i))
    g += dma(W2D, sr, "s%d" % sT0, 0) + dma(W2D + 1, sr, "s%d" % sT0, 1024, "w2_%d" % n)
    if n in (7, 15, 23): g += L("s_add_u32 s%d, s%d, 131072" % (sWDB, sWDB))
    return [g]

def h_load(n):
    c, i = cls_of(n)
    if c == 3: g = L("s_and_b32 s{t}, s{r}, 0x1800\ns_add_u32 s{t}, s{t}, {l}".format(t=sT1, r=sR2 + i, l=FIRST[c] * 2048))
    else: g = L("s_add_u32 s%d, s%d, %d" % (sT1, sR2 + i, FIRST[c] * 2048))
    needs(g, R2T="s%d" % (sR2 + i))
    a = 8 * (n % 32)
    for b in range(2):
        g += L("buffer_load_dwordx4 %s, v%d, %s, s%d offen%s sc1" % (ar(a + 4 * b, 4), vHLD, srd(SW), sT1, " offset:1024" if b else ""))
    return needs(g, HLD=vHLD)

def build_type(typ):
    A = typ == "A"
    passes = [("att2", 2, SET0, 0), ("pair", 2, SET1, 2), ("half", 1, SET0, 4)] if A else \
             [("pair", 2, SET0, 0), ("pair", 2, SET1, 2), ("q", 1, SET0, 4)]
    WRs = [WR1, WR2, WR3]
    ACC2 = [16, 32, 208, 224] if A else [96, 112, 208, 224]
    accr = lambda p, j, b: (0, 48)[b] if (A and p == 2) else passes[p][2] + 32 * j + 16 * b
    S = Sched()
    step_beat = {}
    nt = lambda g: passes[g // 32][1]
    wbuf = lambda g, j: WF + (8 * (g & 1) + 4 * j if nt(g) == 2 else 4 * (g & 3))

    slot_of = {}
    for c in range(8):
        slot_of[("x", c)] = 2 * (c % 4); slot_of[("w", 0, c)] = 8 + 2 * (c % 4)
    def item_dma(it):
        if it[0] == "x": return dma_x(it[1], slot_of[it], "x%d" % it[1])
        if it[0] == "s": return dma_w2(it[1], slot_of[it])
        _, p, c = it; kind = passes[p][0]; sl = slot_of[it]; tag = "w%d_%d" % (p, c)
        if kind == "att2": return dma_full(WQD, SQ, sKQ + c, 0, sl, None) + dma_full(WQD, SQ, sKQ + c, 1024, sl + 1, tag)
        if kind == "q": return dma_full(WQD, SQ, sKQ + c, 0, sl, tag)
        if kind == "half": return dma_half(c, sl, tag)
        ex = 256 if (not A and p == 1) else 0
        return dma_full(WGD, SG, sKG + c, ex, sl, None) + dma_full(WGD, SU, sKG + c, ex, sl + 1, tag)
    def item_slots(it):
        if it[0] == "x": return 2
        if it[0] == "s": return 1
        return 2 if passes[it[1]][0] in ("att2", "pair") else 1

    for g in range(96):
        p, c, t = g // 32, (g // 4) % 8, g % 4
        kind, T, acc, tile0 = passes[p]
        step_beat[g] = len(S.beats)
        k = g % 32
        for j in range(T):
            for b in range(2):
                d = vr(accr(p, j, b), 16)
                S.beat(I("v_mfma_f32_32x32x16_bf16 %s, %s, %s, %s" % (d, vr(wbuf(g, j), 4), ar(8 * k + 4 * b, 4), "0" if k == 0 else d)))
        if t < 2 and not cfg.x_nostat:
            def m16(d, sel, src, first): S.beat(I("v_mfma_f32_16x16x32_bf16 %s, %s, %s, %s" % (vr(d, 4), vr(sel, 4), src, "0" if first else vr(d, 4))), 16)
            def m4(b, h): S.beat(I("v_mfma_f32_4x4x4_16b_bf16 %s, %s, %s, %s" % (vr(SQD + 4 * b, 4), ar(8 * k + 4 * b + 2 * h, 2), ar(8 * k + 4 * b + 2 * h, 2), "0" if (k == 0 and h == 0) else vr(SQD + 4 * b, 4))), 8)
            if p == 0:
                m4(0, 0); m4(1, 0); m16(RSD, SEL01, ar(8 * k, 4), k == 0); m4(0, 1); m4(1, 1); m16(RSD, SEL23, ar(8 * k + 4, 4), False)
            for j in range(T): m16(CSD, (SEL01, SEL23)[j], vr(wbuf(g, j), 4), k == 0 and j == 0)
    step_beat[96] = len(S.beats)
    sl_beat = {}
    for n in range(36):
        sl_beat[n] = len(S.beats)
        w = WF + 8 * (n & 1); a = 8 * (n % 32)
        for cb in range(2):
            for tb in range(2):
                d = vr(ACC2[2 * cb + tb], 16)
                S.beat(I("v_mfma_f32_32x32x16_bf16 %s, %s, %s, %s" % (d, vr(w + 4 * cb, 4), ar(a + 4 * tb, 4), "0" if n == 0 else d)), cfg.p2period)
    sl_beat[36] = len(S.beats)
    S.beat(None)

    bar_step = {}
    for cc in range(24):
        T = passes[cc // 8][1]
        bar_step[cc] = 4 * cc + (3 if (T == 2 or cc == 23) else 2)
    last_rd = {}
    def w_reads(g, j):
        p, c, t = g // 32, (g // 4) % 8, g % 4
        kind = passes[p][0]; sl = slot_of[("w", p, c)]
        if p == 0: base, off = WR1 + (t >> 1), (sl - 8) * PITCH
        else: base, off = WRs[p] + 2 * (sl >= 8) + (t >> 1), (sl % 8) * PITCH
        if kind == "att2": off += j * PITCH
        if kind == "pair": off += 32 * j
        st, js = (1024, 256) if kind == "half" else (2048, 512)
        off += (t & 1) * st
        w = wbuf(g, j)
        role = {"att2": "Watt", "q": "Watt", "pair": "Wpair", "half": "Whalf"}[kind]
        return needs([I("ds_read_b64_tr_b16 %s, v%d offset:%d" % (vr(w + 2 * e, 2), base, off + e * js)) for e in range(2)], **{role: base})
    def x_reads(g):
        c, t = g // 4, g % 4
        return needs([I("ds_read_b128 %s, v%d offset:%d" % (ar(8 * g + 4 * b, 4), XR + t, slot_of[("x", c)] * PITCH + 4096 * b)) for b in range(2)], XR=XR + t)
    def w2_reads(n):
        sl = slot_of[("s", n)]; w = WF + 8 * (n & 1)
        return needs([I("ds_read_b64_tr_b16 %s, v%d offset:%d" % (vr(w + 4 * cb + 2 * e, 2), W2R + 2 * (sl >= 8) + cb, (sl % 8) * PITCH + 1024 * e)) for cb in range(2) for e in range(2)], W2R=range(W2R, W2R + 4))

    queue = []
    for c in range(cfg.npro, 8): queue += [("x", c), ("w", 0, c)]
    queue += [("w", 1, c) for c in range(8)]
    if cfg.mix:
        for c in range(8): queue += [("w", 2, c), ("s", c)]
        queue += [("s", n) for n in range(8, 36)]
    else: queue += [("w", 2, c) for c in range(8)] + [("s", n) for n in range(36)]
    free = set()
    for c in range(cfg.npro, 4): free |= {2 * c, 2 * c + 1, 8 + 2 * c, 9 + 2 * c}
    issue_after = {}; held = []
    n_ins = lambda it: 4 if item_slots(it) == 2 else 2
    for cc in range(-1, 24):
        p, c = max(cc, 0) // 8, cc % 8
        T = passes[p][1] if cc >= 0 else 0
        rel = []
        budget = (cfg.pacew if A or cfg.pacewB is None else cfg.pacewB).get(cc, cfg.pace[p] if cc >= 0 else cfg.pace0)
        if T == 2 or cc == 23:
            rel.append(cc)
            if cc > 0 and passes[(cc - 1) // 8][1] == 1: rel.append(cc - 1)
        elif cc > 0 and passes[(cc - 1) // 8][1] == 1: rel.append(cc - 1)
        held += rel; rel = []
        if cc not in cfg.skipbar: rel, held = held, []
        for r in rel:
            it = ("w", r // 8, r % 8)
            free |= set(range(slot_of[it], slot_of[it] + item_slots(it)))
            if r < 8: free |= {slot_of[("x", r)], slot_of[("x", r)] + 1}
        got = []
        while queue:
            it = queue[0]; ns = item_slots(it)
            if it in slot_of: cand = [slot_of[it]] if all(slot_of[it] + i in free for i in range(ns)) else []
            elif ns == 2: cand = [s for s in sorted(free) if s % 2 == 0 and s + 1 in free]
            else: cand = sorted(free)
            if not cand or budget < n_ins(it): break
            budget -= n_ins(it)
            slot_of[it] = cand[0]
            for i in range(ns): free.discard(cand[0] + i)
            got.append(queue.pop(0))
        issue_after[cc] = (rel, got)
    p2_issue = {}
    for n in range(36):
        free.add(slot_of[("s", n)])
        for k in range(cfg.p2pace):
            if queue and free and n >= cfg.w2at(queue[0][1]):
                it = queue.pop(0); slot_of[it] = min(free); free.discard(slot_of[it]); p2_issue.setdefault(n, []).append(it)
    print(typ, "prefetched slices before P2:", 36 - sum(len(x) for x in p2_issue.values()))

    where = {}
    for g in range(1, 96):
        T = nt(g); k = g % 32
        for j in range(T):
            if T == 2: at = g - 1 if not (k == 0 and nt(g - 1) == 1 and j == 0) else g - 2
            else: at = g - 2 if not (k < 2 and nt(g - k - 1) == 2) else g - k - 1
            where.setdefault(at, []).append(("w", g, j))
        if g < 32: where.setdefault(g - 1, []).append(("x", g))
    for at, lst in sorted(where.items()):
        ins = []
        for it in lst:
            r = w_reads(it[1], it[2]) if it[0] == "w" else x_reads(it[1])
            if it[1] % 4 == 3:
                r[-1].tag = "rd%d_%s%d" % (it[1] // 4, it[0], it[2] if it[0] == "w" else 0)
                last_rd[it[1] // 4] = r[-1].tag
            ins += r
        b0 = step_beat[at]; nb = 2 * nt(at)
        if cfg.rd_early and len(ins) == 6: ins = [ins[0], ins[1], ins[4], ins[5], ins[2], ins[3]]
        if cfg.rd_early:
            tg = [x.tag for x in ins if x.tag]
            if tg:
                for x in ins: x.tag = None
                ins[-1].tag = last_rd[lst[-1][1] // 4]
        if cfg.one_wait and nt(at) == 2 and at + 1 in step_beat and all(it[1] == at + 1 for it in lst):
            if not ins[-1].tag: ins[-1].tag = "stp%d" % at
            S.put(step_beat[at + 1], Wait(ins[-1].tag), pre=True)
        nbb = 2 if cfg.rd_early else nb
        for i, x in enumerate(ins): S.put(b0 + min(nbb - 1, i * nbb // len(ins)), x)

    extra_pre = {}
    def place_barriers():
        for cc in range(24):
            b = step_beat[bar_step[cc]]
            if cc in cfg.skipbar:
                assert cc not in extra_pre and cc not in extra_wait
                continue
            pre = []
            for r in issue_after[cc][0]: pre.append(Wait(last_rd[r]))
            if cc in extra_pre: pre.append(Wait("lgkm0"))
            if cc in extra_wait: pre.append(Wait(extra_wait[cc]))
            if cc < 23:
                nx = cc + 1
                while nx in cfg.skipbar: nx += 1
                if nx < 8: pre.append(Wait("x%d" % nx))
                pre.append(Wait("w%d_%d" % (nx // 8, nx % 8)))
            pre.append(I("s_barrier"))
            S.beats[b]["pre"] = pre + S.beats[b]["pre"]
    bb = lambda cc: step_beat[bar_step[cc]]
    for cc in range(-1, 24):
        items = []
        for it in issue_after[cc][1]: items += item_dma(it)
        if items: S.spread(items, bb(cc) if cc >= 0 else 0, bb(cc + 1) if cc < 23 else sl_beat[0] + 2)

    r0 = w2_reads(0)
    S.put(step_beat[95], [Wait("w2_0")] );
    for i, x in enumerate(r0): S.put(step_beat[95] + min(i // 2, 2 * nt(95) - 1), x)
    for n in range(36):
        b = sl_beat[n]
        if n + 1 < 36:
            S.put(b, Wait("w2_%d" % (n + 1)))
            for i, x in enumerate(w2_reads(n + 1)): S.put(b + i, x)
        for k, it in enumerate(p2_issue.get(n, [])): S.put(b + 2 + k, dma_w2(it[1], slot_of[it])[0])

    sp = lambda g: step_beat[g]
    sl0 = sl_beat[0]
    def after(b, cyc):
        while cyc > 0: cyc -= max(S.beats[b]["period"], S.load(b)); b += 1
        return b
    def end_of(it):
        cc = [c for c in issue_after if it in issue_after[c][1]][0]
        return bb(cc + 1)
    def start_of(it):
        cc = [c for c in issue_after if it in issue_after[c][1]][0]
        return bb(cc)
    assert start_of(("w", 1, 0)) >= sp(cfg.setup_end) and end_of(("x", 7)) < sp(28)
    for cc in range(24):
        if cc not in cfg.skipbar:
            for k in range(cfg.quiet): S.beats[bb(cc) + k]["quiet"] = True
    S.spread(late_setup(A), sp(1), sp(cfg.setup_end), "setup")
    if cfg.wpf: S.put(sp(cfg.wpf), w_touch(cfg.wpf1, 110))
    if not A and cfg.bt2: S.put(sp(cfg.bt2), b_touch2(120, 2, 4))
    if not A and cfg.bt3: S.put(sp(cfg.bt3), b_touch2(122, 6, 1) + b_touch3(124))
    if cfg.late_d: S.put(sp(cfg.late_d), w_touch([(SD, 14), (SO, 4)], 108) + p3_touch(116))
    if cfg.p3t: S.put(sp(cfg.p3t), p3_touch(116))
    if cfg.wpfd: S.put(sp(cfg.wpfd), w_touch([(SD, 14), (SO, 4)], XR + 1))
    extra_wait = {4: "clr"}
    S.put(bb(4), needs(L("v_mov_b32 v%d, 1\nbuffer_atomic_add v%d, v%d, %s, 0 offen" % (KVD + 1, KVD + 1, KVD, srd(SDBG))), HSA=KVD))
    S.put(sp(21), wphi_finish())
    S.spread(addr_wfull(WR2, 4, False, False, TMP + 8), max(end_of(("x", 7)), sp(22)), sp(30))
    S.spread(r2_table(), max(end_of(("x", 7)), sp(22)), sp(30))
    pre, adds = t_stat_add()
    S.spread(pre, sp(26), sp(28))
    cs_pub = lambda tile0: [Gap(1)] + t_cs_add(tile0, 'CSs' if A and tile0 == 0 else 'CS')
    S.spread(cs_pub(0) + adds, sp(30), sp(31)); extra_pre[7] = 1
    fin, late = t_stat_fin()
    S.spread(t_cs_tot(0, TMP + 2), sp(31), sp(32))
    S.spread(fin, sp(31), sp(32))
    hs_i, hs_c = poll(XR, XR + 1, "8" if cfg.dbgout else "4", SDBG, "gt")
    if cfg.dbgout: S.put(sp(36), L("v_and_b32 v%d, 31, v%d\nv_lshlrev_b32 v%d, 2, v%d\nv_add_u32 v%d, 64, v%d" % (XR, vL, XR, XR, XR, XR)) + [hs_i])
    else: S.put(sp(36), [I("v_lshlrev_b32 v%d, 2, v%d" % (XR, vL)), hs_i])
    S.put(sp(44), stamp("hs0") + [hs_c] + stamp("hs1"))
    for k, (st, n0, ns) in enumerate(cfg.w2pf):
        assert sp(st) >= end_of(("w", 1, 7))
        S.put(sp(st) + 2, w2_touch(WGD + (k & 1), n0, ns))
    S.spread(cs_pub(2), sp(62), sp(63)); extra_pre[15] = 1
    S.spread(t_cs_tot(2, XR + 2), sp(63), sp(64))
    S.spread(cs_pub(4), sp(94), sp(95)); extra_pre[23] = 1
    S.spread(t_cs_tot(4, WR2 + 1), sp(95), sl0)
    x = addr_p2(WR2 + 1)
    b_ = max(sp(64), end_of(("w", 2, 7))); S.spread(x[-2:], b_, b_ + 4); S.spread(x[:-2], sp(76), sp(90))
    so2 = "s_mov_b32 s%d, %d" % (sT1, (16 if A else 8) * 2048)
    if A:
        S.spread(addr_whalf(WR3, XR + 2) + addr_cs(False, XR + 2), sp(52), sp(60))
        att = t_corr(SET0, 2, 0) + late + t_att_k()
        h1 = t_hepi(SET1, so2, 0, None) + t_hepi(SET1 + 32, so2, 2048, "h1")
        if cfg.h1first:
            eh = S.spread(t_corr(SET1, 2, 2) + h1, sp(64), sp(64 + cfg.h1first), "hepi1")
            S.put(after(eh, cfg.fd), set_flag(1, "h1", WR2 + 3))
        else: S.spread(t_corr(SET1, 2, 2), sp(64), sp(68))
        e = S.spread(att, sp(32), sp(32 + cfg.a_att), "att_k")
        busy = {"v%d" % r for r in list(range(16)) + list(range(48, 64))}
        later = [x for b in range(sp(64), e + 1) for x in flat(S.beats[b]["post"])]
        assert not any(x in later and busy & set(x.rd + x.wr) for x in flat(att) if isinstance(x, I)), "pass-3 accumulators still in use"
        cb = min(cc for cc in range(8, 24) if bb(cc) > e and cc not in cfg.skipbar); extra_pre[cb] = 1
        print("  kv exchange barrier chunk", cb)
        e = S.spread(t_kv_pub(), bb(cb), min(bb(cb) + cfg.a_pub, sl0), "kv_pub")
        S.put(e, stamp("kvi"))
        if not cfg.h1first:
            b0 = e + 1
            e = S.spread(h1, b0, min(b0 + cfg.a_h1, sl0 + 4), "hepi1")
            S.put(after(e, cfg.fd), set_flag(1, "h1", vPW))
        so = "s_mov_b32 s%d, s%d" % (sT1, sH2)
        S.spread(t_corr(SET0, 1, 4, 48), sl0, sl0 + 1)
        b0 = max(e, sl0 + 2)
        e = S.spread(t_hepi(SET0, so, 0, "h2", 48), b0, b0 + cfg.a_h2, "hepi2")
        S.put(after(e, cfg.fd), set_flag(2, "h2", vPW))
        last_task = e
    else:
        so = "s_mov_b32 s%d, 0" % sT1
        e = S.spread(t_corr(SET0, 2, 0) + late + t_hepi(SET0, so, 0, None) + t_hepi(SET0 + 32, so, 2048, "h0"), sp(32), sp(32 + cfg.b_h0), "hepi0")
        S.put(after(e, cfg.fd), set_flag(1, "h0", WHD))
        S.spread(addr_wfull(WR3, 4, True, False, XR + 2), sp(52), sp(60))
        e = S.spread(t_corr(SET1, 2, 2) + t_hepi(SET1, so2, 0, None) + t_hepi(SET1 + 32, so2, 2048, "h1"), sp(64), sp(64 + cfg.h1), "hepi1")
        S.put(after(e, cfg.fd), set_flag(2, "h1", WHD))
        att = t_corr(SET0, 1, 4) + [Gap(1)] + t_att_q()
        ri, rc = t_kv_red()
        li, lc = t_kv_load()
        e = S.spread(att, sl0, sl0 + cfg.b_att, "att_q")
        S.spread(ri, sl0 + cfg.b_ri, sl0 + cfg.b_ri + 2)
        S.put(sl0 + cfg.b_rc, stamp("kr0") + rc + stamp("kr1"))
        S.spread(li, sl0 + cfg.b_li, sl0 + cfg.b_li + 4)
        assert e <= sl0 + cfg.b_lc
        S.put(sl0 + cfg.b_lc, stamp("kp0") + lc + stamp("kp1"))
        e = S.spread(t_o(), sl0 + cfg.b_lc, sl0 + cfg.b_lc + cfg.b_o, "o")
        S.put(after(e, cfg.fd), set_flag(3, "ost", WHD))
        last_task = e
    place_barriers()
    first = [0, 8, 16, 24, 28, 36]
    hl = cfg.hlA if A else cfg.hlB
    for c in range(5):
        iss, chk = class_poll(c, (WGD, WR2)[c & 1], WGD + 1)
        pos = [sp(64 + cfg.p0) + i * cfg.hstep0 if c == 0 else sl0 + hl[first[c] + i] for i in range(first[c + 1] - first[c])]
        S.put(pos[0] - cfg.poll_lead[c], iss)
        S.put(pos[0], stamp("cp%d_0" % c) + chk + stamp("cp%d_1" % c))
        for i, b in enumerate(pos):
            n = first[c] + i
            if b < sl0: assert b >= sp(64 + n + 1)
            assert b < sl_beat[n], (c, n)
            S.put(b, h_load(n))
    RES = TMP
    rb_ = max(last_task + 2, sl_beat[24])
    S.put(rb_, L("""
    s_lshl_b32 s{t0}, s{tt}, 2
    s_add_u32 s{t0}, s{t0}, s{wv}
    s_lshl_b32 s{t0}, s{t0}, 14
    s_lshl_b32 s{t1}, s{ct}, 7
    s_add_u32 s{t0}, s{t0}, s{t1}
    v_lshrrev_b32 v{a}, 3, v{L}
    v_lshlrev_b32 v{a}, 10, v{a}
    v_and_b32 v{b}, 7, v{L}
    v_lshl_add_u32 v{a}, v{b}, 4, v{a}
    v_add_u32 v{o}, s{t0}, v{a}
    """.format(t0=sT0, t1=sT1, tt=sTT, wv=sWV, ct=sCT, a=TMP + 8, b=TMP + 9, o=WQD - 1, L=vL)))
    vOUT = WQD - 1
    S.put(rb_ + 1, L("s_mov_b32 s%d, 8192\nbuffer_load_dwordx4 %s, v%d, %s, 0 offen\nbuffer_load_dwordx4 %s, v%d, %s, s%d offen" % (sT1, vr(RES, 4), vOUT, srd(SX), vr(RES + 4, 4), vOUT, srd(SX), sT1)))
    S.spread(L("""
    v_bfe_u32 v8, v{L}, 3, 2
    v_mul_u32_u24 v8, {P}, v8
    v_and_b32 v9, 7, v{L}
    v_lshl_add_u32 v8, v9, 8, v8
    v_add_u32 v8, s{l2k}, v8
    v_lshrrev_b32 v10, 5, v{L}
    v_xor_b32 v10, v10, v9
    v_lshl_add_u32 v0, v10, 4, v8
    v_xor_b32 v11, 2, v10
    v_lshl_add_u32 v1, v11, 4, v8
    v_xor_b32 v11, 4, v10
    v_lshl_add_u32 v2, v11, 4, v8
    v_xor_b32 v11, 6, v10
    v_lshl_add_u32 v3, v11, 4, v8
    v_lshrrev_b32 v8, 3, v{L}
    v_and_b32 v10, 3, v{L}
    v_lshlrev_b32 v10, 1, v10
    v_xor_b32 v10, v10, v8
    v_bfe_u32 v11, v{L}, 2, 1
    v_lshlrev_b32 v11, 7, v11
    v_lshl_add_u32 v11, v8, 8, v11
    v_mov_b32 v9, s{wv}
    v_mul_u32_u24 v9, {P2}, v9
    v_add_u32 v11, v11, v9
    v_lshl_add_u32 v4, v10, 4, v11
    v_xor_b32 v10, 1, v10
    v_lshl_add_u32 v5, v10, 4, v11
    """.format(L=vL, P=PITCH, P2=2 * PITCH, l2k=sL2K, wv=sWV)), rb_ + 2, rb_ + 14)
    if cfg.stamps == 2:
        pts = [("b%d" % cc, bb(cc)) for cc in range(24)] + [("s%d" % n, sl_beat[n]) for n in range(0, 37) if n not in (34, 35)]
        prev = ("iss", 0)
        for k, (nm, b) in enumerate(pts):
            for x in (prev[0], nm):
                if x not in stamp_names: stamp_names.append(x)
            cur = sST + 2 * ((k + 1) & 1); old = sST + 2 * (k & 1)
            rd = I("v_writelane_b32 v%d, s%d, %d" % (vSTAMP, old, stamp_names.index(prev[0]) + 2))
            mt = I("s_memtime s[%d:%d]" % (cur, cur + 1))
            if nm[0] == "b" and int(nm[1:]) not in cfg.skipbar:
                pre = S.beats[b]["pre"]; pre.insert(len(pre) - 1, rd); pre.append(mt)
            else: S.beats[b]["pre"] = [rd, mt] + S.beats[b]["pre"]
            prev = (nm, b)
        last_stamp = I("v_writelane_b32 v%d, s%d, %d" % (vSTAMP, cur, stamp_names.index(prev[0]) + 2))
    if cfg.stamps == 3:
        lane = 2
        fine = []
        for cc in range(cfg.fine0, cfg.fine0 + 8):
            b0_, b1_ = bb(cc), bb(cc + 1)
            pts = [b0_ + (b1_ - b0_) * k // 7 for k in range(7)]
            rd = []
            for k, b in enumerate(pts):
                pr = (40, 42, 86, 88, 90, 98, 100, 24)[k]
                mt = I("s_memtime s[%d:%d]" % (pr, pr + 1))
                S.beats[b]["pre"].append(mt)
                rd.append(I("v_writelane_b32 v%d, s%d, %d" % (vSTAMP, pr, lane))); lane += 1
                fine.append(mt)
            pre = S.beats[b1_]["pre"]
            k = [i for i, x in enumerate(pre) if getattr(x, "kind", "") == "barrier"][0]
            S.beats[b1_]["pre"] = pre[:k] + rd + pre[k:]
        if "f0" not in stamp_names: stamp_names.extend("f%d" % k for k in range(56))
    if cfg.stamps == True:
        for nm, b in (("p1", sp(32)), ("p2", sp(64)), ("p3", sl_beat[0]), ("s8", sl_beat[8]), ("s16", sl_beat[16]), ("s20", sl_beat[20]), ("s28", sl_beat[28]), ("s36", sl_beat[36]),
                      ("c1", sp(4)), ("c2", sp(8)), ("c4", sp(16))):
            S.put(b, stamp(nm), pre=True)

    pro = entry_x(item_dma)
    n_common = len(pro)
    if A:
        pro += L("s_lshl_b32 s{t0}, s{i}, 7\ns_add_u32 s{t0}, s{t0}, 1024".format(t0=sT0, i=sI))
        pro += wdma_addr(WQD, 3072, sT0)
    else:
        pro += L("s_mul_i32 s{t0}, s{q}, 896\ns_lshl_b32 s{t1}, s{ab}, 7\ns_add_u32 s{t0}, s{t0}, s{t1}".format(t0=sT0, t1=sT1, q=sQ, ab=sAB))
        pro += wdma_addr(WGD, 3584, sT0)
    pro += flat(item_dma(("w", 0, 0))) + stamp("iw0")
    pro += entry_rest()
    order = cfg.order if A or not cfg.orderB else cfg.orderB
    for k, w in enumerate(order):
        if w in "123": pro += flat(item_dma(("x", int(w)))) + flat(item_dma(("w", 0, int(w))))
        elif w == "p": pro += p1_touch(112)
        elif w == "g": pro += w_touch([(SG, 14), (SU, 14), (SQ, 12)], 102)
        elif w == "d": pro += w_touch([(SD, 14), (SO, 4)], 108)
        elif w == "r": pro += L("".join(rot_regs(c) for c in range(cfg.npro, 8)))
        elif w == "i": pro += b_index()
        elif w == "P": pro += b_touch1(104)
        elif w == "G": pro += b_touch2(120, 2, 4)
        elif w == "u": pro += p3_touch(116)
        elif w == "t": pro += tlb_touch(120)
        elif w == "f": pro += wphi_setup(A)
        elif w == "c": pro += code_touch()
        elif w == "C": pro += code_touch(typ)
        elif w == "s": pro += early_setup() + flat(addr_wfull(WR1, 2, A, A))
        elif w == "j": pro += [I("s_branch L_main%s" % typ), I("L_main%s:" % typ)]
    assert cfg.npro == 1 + sum(w in "123" for w in order)
    pro += stamp("iss")
    if cfg.stamps == 2: pro += [I("s_memtime s[%d:%d]" % (sST, sST + 1))]
    pro += [Wait("x0"), Wait("w0_0"), I("s_barrier")]
    pro += stamp("data")
    pro += x_reads(0) + w_reads(0, 0) + w_reads(0, 1)

    tail = []
    for tb in range(2):
        for cb in range(2):
            for r4 in range(4):
                tail += L("ds_write_b128 v%d, %s offset:%d" % (r4, vr(ACC2[2 * cb + tb] + 4 * r4, 4), 128 * cb + 4 * PITCH * tb))
    tail += [Wait("lgkm0"), I("s_barrier")]
    for i in range(2):
        for e in range(2):
            for w in range(4):
                tail += L("ds_read_b128 %s, v%d offset:%d" % (vr(16 + 32 * i + 16 * e + 4 * w, 4), 4 + e, 2048 * w + PITCH * i))
    for i in range(2):
        for e in range(2):
            b = 16 + 32 * i + 16 * e
            for j in range(4):
                x = RES + 4 * i + 2 * e + j // 2
                tail += L("v_add_f32 v%d, v%d, v%d\nv_add_f32 v%d, v%d, v%d" % (b + j, b + j, b + 4 + j, b + 8 + j, b + 8 + j, b + 12 + j))
                tail += L(("v_and_b32 v%d, 0xffff0000, v%d" if j & 1 else "v_lshlrev_b32 v%d, 16, v%d") % (b + 4 + j, x))
                tail += L("v_add_f32 v%d, v%d, v%d\nv_add_f32 v%d, v%d, v%d" % (b + j, b + j, b + 8 + j, b + j, b + j, b + 4 + j))
            tail += L("v_cvt_pk_bf16_f32 v%d, v%d, v%d\nv_cvt_pk_bf16_f32 v%d, v%d, v%d" % (8 + 4 * i + 2 * e, b, b + 1, 9 + 4 * i + 2 * e, b + 2, b + 3))
        tail += L("s_mov_b32 s%d, %d\nbuffer_store_dwordx4 %s, v%d, %s, s%d offen" % (sT1, 8192 * i, vr(8 + 4 * i, 4), vOUT, srd(SOUT), sT1) + " sc1")
    if cfg.stamps:
        tail += stamp("end")
        if cfg.stamps == 4: tail += [I("s_memtime s[%d:%d]" % (sST, sST + 1)), I("v_writelane_b32 v%d, s%d, 2" % (vSTAMP, sST))]
        if cfg.stamps == 2:
            if "end" not in stamp_names: stamp_names.append("end")
            tail += [last_stamp, I("s_memtime s[%d:%d]" % (sST, sST + 1)), I("v_writelane_b32 v%d, s%d, %d" % (vSTAMP, sST, stamp_names.index("end") + 2))]
        tail += L("""
        s_memrealtime s[{a}:{b}]
        v_writelane_b32 v{st}, s{a}, 1
        s_lshl_b32 s{t0}, s2, 2
        s_add_u32 s{t0}, s{t0}, s{wv}
        s_lshl_b32 s{t0}, s{t0}, 8
        s_add_u32 s{t0}, s{t0}, {o}
        v_lshl_add_u32 v0, v{L}, 2, s{t0}
        buffer_store_dword v{st}, v0, {sr}, 0 offen
        """.format(a=sST, b=sST + 1, st=vSTAMP, t0=sT0, wv=sWV, o=WS_ST, L=vL, sr=srd(SW)))
    if cfg.dbgout:
        ix = lambda n: stamp_names.index(n) + 2
        t = """
        v_readlane_b32 s56, v{st}, 0
        v_readlane_b32 s57, v{st}, 1
        v_readlane_b32 s58, v{st}, {iss}
        s_nop 4
        v_mov_b32 v2, {oob}
        v_mov_b32 v1, 0
        v_writelane_b32 v2, 32, 0
        v_writelane_b32 v2, 40, 1
        v_writelane_b32 v2, 36, 2
        v_writelane_b32 v1, s57, 0
        v_writelane_b32 v1, s56, 1
        s_not_b32 s59, s56
        v_writelane_b32 v1, s59, 2
        buffer_atomic_umax v1, v2, {sd}, 0 offen
        s_sub_u32 s57, s57, s56
        v_mov_b32 v3, 0
        v_writelane_b32 v3, s57, 0
        """.format(st=vSTAMP, iss=ix("iss"), oob=OOB, sd=srd(SDBG))
        for k, nm in enumerate(("b0", "b3", "b7", "b15", "s0", "s28", "end")):
            t += "v_readlane_b32 s59, v%d, %d\ns_nop 4\ns_sub_u32 s59, s59, s58\nv_writelane_b32 v3, s59, %d\n" % (vSTAMP, ix(nm), k + 1)
        t += """
        v_lshlrev_b32 v2, 2, v{L}
        v_mov_b32 v4, {oob}
        v_cmp_gt_u32 vcc, 8, v{L}
        v_cndmask_b32 v2, v4, v2, vcc
        s_or_b32 s59, s2, s{wv}
        s_cmp_eq_u32 s59, 0
        s_cselect_b32 s59, 0, {oob}
        buffer_store_dword v3, v2, {sd}, s59 offen
        """.format(L=vL, oob=OOB, wv=sWV, sd=srd(SDBG))
        tail += L(t)
    tail += L("s_endpgm")
    est = sum(max(bt["period"], S.load(i)) for i, bt in enumerate(S.beats[:sl_beat[0]]))
    print("  P1 issue-model cycles:", est, " P2:", sum(max(32, S.load(i)) for i in range(sl_beat[0], sl_beat[36])))
    return n_common, pro + S.flat() + tail

def code_touch(typ=None):
    ins = L("""
    s_getpc_b64 s[{a}:{b}]
    {far}
    s_bfe_u32 s{t0}, s2, 0x40003
    s_lshl_b32 s{t0}, s{t0}, 2
    s_add_u32 s{t0}, s{t0}, s{wv}
    s_lshl_b32 s{t0}, s{t0}, 9
    v_and_b32 v{x}, 3, v{L}
    v_lshl_add_u32 v{x}, v{x}, 7, s{t0}
    v_min_u32 v{x}, {lim}, v{x}
    global_load_dword v{y}, v{x}, s[{a}:{b}]
    """.format(a=sM1, b=sM1 + 1, t0=sT0, wv=sWV, x=100, y=101, L=vL, lim=cfg.code_lim,
               far=("L_pc%s:\ns_add_u32 s%d, s%d, L_main%s-L_pc%s\ns_addc_u32 s%d, s%d, 0" % (typ, sM1, sM1, typ, typ, sM1 + 1, sM1 + 1)) if typ else ""))
    return ins

def w_touch(which, d0):
    s = "s_lshl_b32 s{t0}, s2, 2\ns_add_u32 s{t0}, s{t0}, s{wv}\n".format(t0=sT0, wv=sWV)
    last = None
    for k, (sr, n) in enumerate(which):
        if n != last:
            s += "s_mul_i32 s{t1}, s{t0}, {b}\nv_min_u32 v{a}, {m}, v{L}\nv_lshl_add_u32 v{a}, v{a}, 7, s{t1}\n".format(t0=sT0, t1=sT1, b=128 * n, a=d0, m=n - 1, L=vL)
            last = n
        s += "buffer_load_dword v%d, v%d, %s, 0 offen\n" % (d0 + 1 + k, d0, srd(sr))
    return L(s)

def tlb_touch(d0):
    s = "v_and_b32 v{a}, 15, v{L}\nv_lshlrev_b32 v{a}, 20, v{a}\nv_add_u32 v{a}, 0x7ff00, v{a}\n".format(a=d0, L=vL)
    for k, sr in enumerate((SD, SO, SW, SOUT, SG, SU, SQ)):
        s += "buffer_load_dword v%d, v%d, %s, 0 offen\n" % (d0 + 1 + k, d0, srd(sr))
    return L(s)

def p3_touch(d0):
    return L("""
    s_lshl_b32 s{t0}, s2, 2
    s_add_u32 s{t0}, s{t0}, s{wv}
    s_lshr_b32 s{t1}, s{t0}, 1
    s_and_b32 s{t0}, s{t0}, 1
    v_and_b32 v{b}, 3, v{L}
    v_lshl_add_u32 v{b}, s{t0}, 2, v{b}
    v_and_b32 v{c}, 1, v{L}
    v_lshl_add_u32 v{c}, s{t0}, 1, v{c}
    s_mul_i32 s{t0}, s{t1}, 3072
    v_lshl_add_u32 v{b}, v{b}, 7, s{t0}
    buffer_load_dword v{b}, v{b}, {q}, 0 offen
    s_mul_i32 s{t0}, s{t1}, 3584
    s_add_u32 s{t0}, s{t0}, 768
    v_mul_u32_u24 v{c}, 896, v{c}
    v_add_u32 v{c}, s{t0}, v{c}
    buffer_load_dword v{r2}, v{c}, {g}, 0 offen
    buffer_load_dword v{c}, v{c}, {u}, 0 offen
    """.format(t0=sT0, t1=sT1, wv=sWV, L=vL, b=d0, c=d0 + 1, r2=d0 + 2, q=srd(SQ), g=srd(SG), u=srd(SU)))

sWB = sH2
def b_index():
    return L("""
    s_and_b32 s{t0}, s2, 7
    s_lshl_b32 s{t0}, s{t0}, 4
    s_bfe_u32 s{t1}, s2, 0x40003
    s_add_u32 s{t0}, s{t0}, s{t1}
    s_lshl_b32 s{t0}, s{t0}, 2
    s_add_u32 s{w}, s{t0}, s{wv}
    """.format(t0=sT0, t1=sT1, w=sWB, wv=sWV))

def b_touch1(d0):
    a, b, c = d0, d0 + 1, d0 + 2
    ins = L("""
    v_bfe_u32 v{a}, v{L}, 1, 2
    v_lshlrev_b32 v{a}, 10, v{a}
    v_and_b32 v{c}, 1, v{L}
    v_lshl_add_u32 v{a}, v{c}, 7, v{a}
    s_lshl_b32 s{t0}, s{w}, 12
    v_add_u32 v{a}, s{t0}, v{a}
    s_lshr_b32 s{t0}, s{w}, 2
    s_and_b32 s{t1}, s{w}, 3
    v_and_b32 v{b}, 3, v{L}
    v_lshl_add_u32 v{b}, s{t1}, 2, v{b}
    s_mul_i32 s{t1}, s{t1}, 896
    v_lshl_add_u32 v{c}, v{c}, 7, s{t1}
    s_mul_i32 s{t1}, s{t0}, 3072
    s_add_u32 s{t1}, s{t1}, 1024
    v_lshl_add_u32 v{b}, v{b}, 7, s{t1}
    s_mul_i32 s{t1}, s{t0}, 3584
    v_add_u32 v{c}, s{t1}, v{c}
    """.format(a=a, b=b, c=c, L=vL, t0=sT0, t1=sT1, w=sWB))
    r = d0 + 3
    for g in range(1, 4):
        ins += L("buffer_load_dword v%d, v%d, %s, 0 offen offset:%d" % (r, a, srd(SX), 256 * g)); r += 1
        ins += L("s_mov_b32 s%d, %d\nbuffer_load_dword v%d, v%d, %s, s%d offen" % (sT0, 128 * 3072 * g, r, b, srd(SQ), sT0)); r += 1
        ins += L("s_mov_b32 s%d, %d\nbuffer_load_dword v%d, v%d, %s, s%d offen\nbuffer_load_dword v%d, v%d, %s, s%d offen" % (sT0, 128 * 3584 * g, r, c, srd(SG), sT0, r + 1, c, srd(SU), sT0)); r += 2
    return ins

def b_touch2(d0, u0, nu):
    a, b = d0, d0 + 1
    return L("""
    v_and_b32 v{a}, 3, v{L}
    v_mul_u32_u24 v{a}, 896, v{a}
    v_lshrrev_b32 v{b}, 2, v{L}
    v_min_u32 v{b}, {m}, v{b}
    v_lshl_add_u32 v{a}, v{b}, 7, v{a}
    s_mul_i32 s{t0}, s{w}, 3584
    s_add_u32 s{t0}, s{t0}, {o}
    buffer_load_dword v{b}, v{a}, {g}, s{t0} offen
    buffer_load_dword v{a}, v{a}, {u}, s{t0} offen
    """.format(a=a, b=b, L=vL, m=nu - 1, t0=sT0, w=sWB, o=128 * u0, g=srd(SG), u=srd(SU)))

def b_touch3(d0):
    a = d0
    return L("""
    v_min_u32 v{a}, 7, v{L}
    v_lshlrev_b32 v{a}, 7, v{a}
    s_mul_i32 s{t0}, s{w}, 3072
    s_lshl_b32 s{t1}, s{w}, 10
    buffer_load_dword v{r0}, v{a}, {q}, s{t0} offen
    buffer_load_dword v{r1}, v{a}, {o}, s{t1} offen
    v_min_u32 v{a}, 27, v{L}
    v_lshlrev_b32 v{a}, 7, v{a}
    s_mul_i32 s{t0}, s{w}, 3584
    buffer_load_dword v{a}, v{a}, {d}, s{t0} offen
    """.format(a=a, r0=a + 1, r1=a + 2, L=vL, t0=sT0, t1=sT1, w=sWB, q=srd(SQ), o=srd(SO), d=srd(SD)))

def p1_touch(d0):
    return L("""
    s_lshl_b32 s{t0}, s2, 2
    s_add_u32 s{t0}, s{t0}, s{wv}
    s_lshl_b32 s{t1}, s{t0}, 11
    v_and_b32 v{a}, 15, v{L}
    v_lshl_add_u32 v{a}, v{a}, 7, s{t1}
    buffer_load_dword v{r0}, v{a}, {x}, 0 offen
    s_lshr_b32 s{t1}, s{t0}, 1
    s_and_b32 s{t0}, s{t0}, 1
    s_mul_i32 s{sp}, s{t1}, 3072
    s_lshl_b32 s{m}, s{t0}, 10
    s_add_u32 s{sp}, s{sp}, s{m}
    s_add_u32 s{sp}, s{sp}, 1024
    v_and_b32 v{b}, 7, v{L}
    v_lshl_add_u32 v{b}, v{b}, 7, s{sp}
    buffer_load_dword v{r1}, v{b}, {q}, 0 offen
    s_mul_i32 s{sp}, s{t1}, 3584
    s_mul_i32 s{m}, s{t0}, 1792
    s_add_u32 s{sp}, s{sp}, s{m}
    v_bfe_u32 v{c}, v{L}, 1, 1
    v_mul_u32_u24 v{c}, 896, v{c}
    v_and_b32 v{d}, 1, v{L}
    v_lshl_add_u32 v{c}, v{d}, 8, v{c}
    v_add_u32 v{c}, s{sp}, v{c}
    buffer_load_dword v{r2}, v{c}, {g}, 0 offen
    buffer_load_dword v{r3}, v{c}, {u}, 0 offen
    """.format(t0=sT0, t1=sT1, sp=sH2, m=sM2, wv=sWV, L=vL, a=d0, b=d0 + 1, c=d0 + 2, d=d0 + 3, r0=d0 + 4, r1=d0 + 5, r2=d0 + 6, r3=d0 + 7,
               x=srd(SX), q=srd(SQ), g=srd(SG), u=srd(SU)))

def w2_touch(t, n0, ns):
    sr, base, row = slice_src(n0)
    nr = 4 * ns
    return L("""
    s_and_b32 s{t0}, s{tt}, 3
    s_mul_i32 s{t1}, s{t0}, {a}
    s_mul_i32 s{t0}, s{wv}, {wb}
    s_add_u32 s{t1}, s{t1}, s{t0}
    s_lshl_b32 s{t0}, s{ct}, 7
    s_add_u32 s{t1}, s{t1}, s{t0}
    s_add_u32 s{t1}, s{t1}, {b}
    v_min_u32 v{x}, {m}, v{L}
    v_lshl_add_u32 v{x}, v{x}, 10, s{t1}
    buffer_load_dword v{x}, v{x}, {d}, 0 offen
    """.format(t0=sT0, t1=sT1, tt=sTT, ct=sCT, wv=sWV, wb=(448 if sr == SD else 128) * 1024, a=nr * 1024, b=row * 1024, x=t, m=nr - 1, L=vL, d=srd(sr)))

def flat(x):
    o = []
    for y in x: o += y if isinstance(y, list) else [y]
    return o

def groups(ins):
    out = []; cur = []
    tmp = {"s%d" % sT0, "s%d" % sT1, "vcc", "scc"}
    for k, x in enumerate(ins):
        cur.append(x)
        live = set()
        written = {r for y in ins[:k + 1] for r in y.wr} & tmp
        seen = set()
        for y in ins[k + 1:]:
            live |= (set(y.rd) & written) - seen
            seen |= set(y.wr)
        if not live: out.append(cur); cur = []
    if cur: out.append(cur)
    return out

def late_setup(A):
    ins = []
    if A:
        ins += L("s_mul_i32 s{t0}, s{q}, 896\ns_lshl_b32 s{t1}, s{ab}, 7\ns_add_u32 s{t0}, s{t0}, s{t1}\ns_add_u32 s{t0}, s{t0}, 512".format(t0=sT0, t1=sT1, q=sQ, ab=sAB))
        ins += wdma_addr(WGD, 3584, sT0)
    ins += clear_store(A) + common_setup() + flat(addr_cs(A))
    if A:
        ins += L("""
        v_lshrrev_b32 v{a}, 2, v{L}
        v_mul_u32_u24 v{a}, 3584, v{a}
        v_and_b32 v{b}, 3, v{L}
        v_lshl_add_u32 v{a}, v{b}, 4, v{a}
        s_mul_i32 s{t0}, s{q}, 896
        s_lshl_b32 s{t1}, s{ab}, 6
        s_add_u32 s{t0}, s{t0}, s{t1}
        s_add_u32 s{t0}, s{t0}, 768
        s_mul_i32 s{t1}, s{wv}, {w}
        s_add_u32 s{t0}, s{t0}, s{t1}
        v_add_u32 v{d}, s{t0}, v{a}
        s_lshl_b32 s{t0}, s{ab}, 1
        s_add_u32 s{t0}, s{t0}, s{gr}
        s_sub_u32 s{h2}, 24, s{t0}
        s_lshl_b32 s{h2}, s{h2}, 11
        """.format(t0=sT0, t1=sT1, q=sQ, ab=sAB, wv=sWV, gr=sGR, w=16 * 3584, a=TMP, b=TMP + 1, d=WHD, L=vL, h2=sH2))
        ins += att_setup()
    else:
        ins += L("s_lshl_b32 s{t0}, s{i}, 7".format(t0=sT0, i=sI))
        ins += wdma_addr(WQD, 3072, sT0)
        ins += o_setup()
    defines(ins, FLG=vFLG, HST=vHST, W2D=(W2D, W2D + 1), Z=(CA + 2, CA + 3), HSA=KVD)
    if A: defines(ins, WHD=WHD, KVA=vKVA, PW=vPW, PR=vPR, VW=vVW, VR0=vVR0, VR1=vVR1)
    else: defines(ins, KRL=vKRL, KRS=vKRS, KVL=vKVL)
    return groups(ins)

def wdma_addr(dst, stride, scol):
    return defines(L("""
    s_mul_i32 s{t1}, s{wv}, {w}
    s_add_u32 s{t1}, s{t1}, s{c}
    v_lshrrev_b32 v{a}, 3, v{L}
    v_mul_u32_u24 v{a}, {st}, v{a}
    v_bfe_u32 v{b}, v{L}, 4, 1
    v_lshlrev_b32 v{b}, 2, v{b}
    v_xor_b32 v{b}, v{b}, v{L}
    v_and_b32 v{b}, 7, v{b}
    v_lshl_add_u32 v{a}, v{b}, 4, v{a}
    v_add_u32 v{d}, s{t1}, v{a}
    v_add_u32 v{d1}, {nx}, v{d}
    """.format(t1=sT1, wv=sWV, w=16 * stride, c=scol, a=TMP, b=TMP + 1, L=vL, st=stride, d=dst, d1=dst + 1, nx=8 * stride - 1024)), **{'WQD' if dst == WQD else 'WGD': (dst, dst + 1)})

def clear_store(A):
    z = TMP + 4
    s = """
    s_lshl_b32 s{t0}, s{rb}, 1
    s_add_u32 s{t0}, s{t0}, s{th}
    s_lshl_b32 s{t1}, s{t0}, 2
    s_add_u32 s{t1}, s{t1}, s{q}
    s_lshl_b32 s{t1}, s{t1}, 4
    s_add_u32 s{t1}, s{t1}, s{t4}
    s_lshl_b32 s{t1}, s{t1}, 1
    s_add_u32 s{t1}, s{t1}, s{gr}
    s_lshl_b32 s{t1}, s{t1}, 2
    s_add_u32 s{t1}, s{t1}, {fl}
    v_mov_b32 v{f}, {oob}
    v_writelane_b32 v{f}, s{t1}, 0
    v_mov_b32 v{z}, 0
    buffer_store_dword v{z}, v{f}, {sr}, 0 offen sc1
    s_lshl_b32 s{t0}, s{i}, 2
    s_lshl_b32 s{t1}, s{gr}, 1
    s_add_u32 s{t0}, s{t0}, s{t1}
    s_add_u32 s{t0}, s{t0}, s{th}
    """.format(t0=sT0, t1=sT1, rb=sRB, th=sTH, q=sQ, t4=sT4, gr=sGR, fl=WS_FL, f=vFLG, oob=OOB, z=z, sr=srd(SW), i=sI)
    if A:
        s += """
        s_lshl_b32 s{t0}, s{t0}, 4
        s_add_u32 s{t0}, s{t0}, s{rb}
        s_mul_i32 s{t0}, s{t0}, 2176
        s_add_u32 s{t0}, s{t0}, {kvp}
        """.format(t0=sT0, rb=sRB, kvp=WS_KVP) + kv_lane(vKVA, True)
        for j in range(4): s += "v_mov_b32 v%d, -1\n" % (z + j)
        ins = L(s)
        for j in range(4): ins += L("buffer_store_dwordx4 %s, v%d, %s, 0 offen offset:%d sc1" % (vr(z, 4), vKVA, srd(SW), 544 * j), tag="clr" if j == 3 else None)
        return ins
    s += """
    s_mul_i32 s{t1}, s{t0}, 34816
    s_mul_i32 s{t0}, s{t0}, 2176
    s_add_u32 s{t0}, s{t0}, {kvf}
    s_add_u32 s{t1}, s{t1}, {kvp}
    v_and_b32 v{a}, 15, v{L}
    v_lshl_add_u32 v{a}, s{rb}, 4, v{a}
    v_cmp_gt_u32 vcc, 0x88, v{a}
    v_lshlrev_b32 v{a}, 4, v{a}
    v_mov_b32 v{b}, {oob}
    v_cndmask_b32 v{a}, v{b}, v{a}, vcc
    v_lshrrev_b32 v{b}, 4, v{L}
    v_lshl_add_u32 v{rs}, v{b}, 2, v{a}
    v_add_u32 v{rs}, s{t0}, v{rs}
    v_mul_u32_u24 v{b}, 2176, v{b}
    v_add3_u32 v{rl}, v{b}, v{a}, s{t1}
    v_mov_b32 v{z}, -1
    """.format(t0=sT0, t1=sT1, rb=sRB, kvf=WS_KVF, kvp=WS_KVP, a=TMP, b=TMP + 1, L=vL, rs=vKRS, rl=vKRL, z=z + 1, oob=OOB)
    return L(s) + L("buffer_store_dword v%d, v%d, %s, 0 offen sc1" % (z + 1, vKRS, srd(SW)), tag="clr")

def kv_lane(dst, mask):
    a, b, c = TMP, TMP + 1, TMP + 2
    s = """
    v_and_b32 v{a}, 31, v{L}
    v_lshrrev_b32 v{b}, 5, v{L}
    v_lshl_add_u32 v{c}, v{b}, 4, v{a}
    v_add_u32 v{b}, 32, v{b}
    v_cmp_gt_u32 vcc, 16, v{a}
    v_cndmask_b32 v{c}, v{b}, v{c}, vcc
    v_lshl_add_u32 v{d}, v{c}, 4, s{t0}
    """.format(a=a, b=b, c=c, L=vL, d=dst, t0=sT0)
    if mask: s += "v_mov_b32 v{b}, {oob}\nv_cmp_gt_u32 vcc, 17, v{a}\nv_cndmask_b32 v{d}, v{b}, v{d}, vcc\n".format(a=a, b=b, d=dst, oob=OOB)
    return s

def early_setup():
    a, b, c = TMP, TMP + 1, TMP + 2
    s = """
    v_lshrrev_b32 v{a}, 5, v{L}
    v_bfe_u32 v{b}, v{L}, 1, 3
    v_xor_b32 v{a}, v{a}, v{b}
    v_lshlrev_b32 v{a}, 4, v{a}
    v_and_b32 v{b}, 31, v{L}
    v_lshl_add_u32 v{a}, v{b}, 7, v{a}
    s_lshl_b32 s{t0}, s{s}, 6
    v_xor_b32 v{a}, s{t0}, v{a}
    s_mul_i32 s{t1}, s{th}, {P}
    v_add_u32 v{x0}, s{t1}, v{a}
    v_xor_b32 v{b}, 32, v{a}
    v_add_u32 v{x1}, s{t1}, v{b}
    v_xor_b32 v{b}, 64, v{a}
    v_add_u32 v{x2}, s{t1}, v{b}
    v_xor_b32 v{b}, 0x60, v{a}
    v_add_u32 v{x3}, s{t1}, v{b}
    v_and_b32 v{a}, 31, v{L}
    v_mov_b32 v{b}, 0x3f803f80
    v_cmp_eq_u32 vcc, 0, v{a}
    v_cndmask_b32 v{s0}, 0, v{b}, vcc
    v_cmp_eq_u32 vcc, 20, v{a}
    v_cndmask_b32 v{s0}, v{s0}, v{b}, vcc
    v_cmp_eq_u32 vcc, 8, v{a}
    v_cndmask_b32 v{s2}, 0, v{b}, vcc
    v_cmp_eq_u32 vcc, 28, v{a}
    v_cndmask_b32 v{s2}, v{s2}, v{b}, vcc
    """.format(a=a, b=b, L=vL, t0=sT0, t1=sT1, s=sS, th=sTH, P=PITCH, x0=XR, x1=XR + 1, x2=XR + 2, x3=XR + 3, s0=SEL01, s2=SEL23)
    for j in range(1, 4): s += "v_mov_b32 v%d, v%d\nv_mov_b32 v%d, v%d\n" % (SEL01 + j, SEL01, SEL23 + j, SEL23)
    return defines(L(s), XR=range(XR, XR + 4))

def common_setup():
    a, b, c = TMP, TMP + 1, TMP + 2
    s = "s_mov_b32 s%d, 0\ns_mov_b32 s%d, -1\nv_mov_b32 v%d, 0\nv_mov_b32 v%d, 0\n" % (sMH, sMH + 1, CA + 2, CA + 3)
    s += """
    v_and_b32 v{a}, 3, v{L}
    v_cmp_eq_u32 s[{m1}:{m1b}], 1, v{a}
    v_cmp_eq_u32 s[{m2}:{m2b}], 2, v{a}
    v_cmp_eq_u32 s[{m3}:{m3b}], 3, v{a}
    v_and_b32 v{a}, 4, v{L}
    v_cmp_eq_u32 s[{mb}:{mbb}], 4, v{a}
    s_mul_i32 s{wd}, s{wv}, {wdv}
    s_lshl_b32 s{wo}, s{wv}, 17
    s_mov_b32 s{c2}, 0x3b000000
    """.format(a=a, L=vL, m1=sM1, m1b=sM1 + 1, m2=sM2, m2b=sM2 + 1, m3=sM3, m3b=sM3 + 1, mb=sMB, mbb=sMB + 1,
               wd=sWDB, wo=sWOB, wv=sWV, wdv=448 * 1024, c2=sC2)
    s += """
    s_lshl_b32 s{t0}, s{rb}, 1
    s_add_u32 s{t0}, s{t0}, s{th}
    s_mul_i32 s{t0}, s{t0}, 144
    s_mul_i32 s{t1}, s{q}, 36
    s_add_u32 s{t0}, s{t0}, s{t1}
    s_lshl_b32 s{t1}, s{ab}, 2
    s_add_u32 s{t0}, s{t0}, s{t1}
    s_lshl_b32 s{t1}, s{gr}, 1
    s_add_u32 s{t0}, s{t0}, s{t1}
    s_lshl_b32 s{t0}, s{t0}, 11
    v_lshl_add_u32 v{h}, v{L}, 4, s{t0}
    v_lshrrev_b32 v{a}, 3, v{L}
    v_lshlrev_b32 v{a}, 10, v{a}
    v_bfe_u32 v{b}, v{L}, 4, 1
    v_lshlrev_b32 v{b}, 2, v{b}
    v_xor_b32 v{b}, v{b}, v{L}
    v_and_b32 v{b}, 7, v{b}
    v_lshl_add_u32 v{a}, v{b}, 4, v{a}
    s_lshl_b32 s{t0}, s{ct}, 7
    v_add_u32 v{w}, s{t0}, v{a}
    v_add_u32 v{w1}, 7168, v{w}
    s_and_b32 s{t0}, s2, {hm}
    s_lshl_b32 s{t0}, s{t0}, 2
    s_add_u32 s{t0}, s{t0}, {ho}
    s_cmp_eq_u32 s{wv}, 0
    s_cselect_b32 s{t0}, s{t0}, {oob}
    v_mov_b32 v{hs}, {oob}
    v_writelane_b32 v{hs}, s{t0}, 0
    """.format(t0=sT0, t1=sT1, rb=sRB, th=sTH, q=sQ, ab=sAB, gr=sGR, h=vHST, L=vL, a=a, b=b, ct=sCT, w=W2D, w1=W2D + 1, wv=sWV, oob=OOB, hs=KVD, hm=31 if cfg.dbgout else 63, ho=64 if cfg.dbgout else 0)
    return L(s)

def att_setup():
    a, b, c = TMP, TMP + 1, TMP + 2
    s = """
    s_mul_i32 s{t0}, s{wv}, {wsz}
    s_add_u32 s{t0}, s{t0}, {wreg}
    v_and_b32 v{a}, 31, v{L}
    v_lshrrev_b32 v{b}, 5, v{L}
    v_mul_u32_u24 v{c}, 72, v{a}
    v_lshl_add_u32 v{c}, v{b}, 3, v{c}
    v_add_u32 v{pw}, s{t0}, v{c}
    v_mul_u32_u24 v{c}, 104, v{a}
    v_lshl_add_u32 v{c}, v{b}, 3, v{c}
    s_add_u32 s{t1}, s{t0}, {voff}
    v_add_u32 v{vw}, s{t1}, v{c}
    v_lshl_add_u32 v{c}, v{b}, 3, v{vw}
    v_mov_b32 v{o0}, 0x3f803f80
    v_mov_b32 v{o1}, 0x3f803f80
    ds_write_b64 v{c}, v[{o0}:{o1}] offset:64
    ds_write_b64 v{c}, v[{o0}:{o1}] offset:72
    v_bfe_u32 v{a}, v{L}, 2, 2
    v_lshl_add_u32 v{a}, v{b}, 3, v{a}
    v_and_b32 v{b}, 3, v{L}
    v_mul_u32_u24 v{c}, 72, v{a}
    v_lshl_add_u32 v{c}, v{b}, 3, v{c}
    v_bfe_u32 v{o0}, v{L}, 4, 1
    v_lshl_add_u32 v{c}, v{o0}, 5, v{c}
    v_add_u32 v{pr}, s{t0}, v{c}
    v_mul_u32_u24 v{c}, 104, v{a}
    v_lshl_add_u32 v{c}, v{b}, 3, v{c}
    v_add_u32 v{c}, s{t1}, v{c}
    v_lshl_add_u32 v{v0}, v{o0}, 6, v{c}
    v_add_u32 v{o0}, 1, v{o0}
    v_lshl_add_u32 v{v1}, v{o0}, 5, v{c}
    """.format(t0=sT0, t1=sT1, wv=sWV, wsz=WREG_SZ, wreg=WREG, a=a, b=b, c=c, L=vL, pw=vPW, vw=vVW, voff=VOFF, o0=TMP + 8, o1=TMP + 9,
               pr=vPR, v0=vVR0, v1=vVR1, i=sI, gr=sGR, th=sTH)
    return L(s)

def o_setup():
    return L("""
    s_lshl_b32 s{t0}, s{i}, 1
    s_add_u32 s{t0}, s{t0}, s{gr}
    s_mul_i32 s{t0}, s{t0}, 4352
    s_add_u32 s{t0}, s{t0}, {kvf}
    """.format(t0=sT0, i=sI, gr=sGR, kvf=WS_KVF) + kv_lane(vKVL, False))

def wphi_setup(A):
    a, b = TMP, TMP + 1; t = 64 + 16
    s = """
    s_lshl_b32 s{t0}, s{i}, 2
    s_lshl_b32 s{t1}, s{gr}, 1
    s_add_u32 s{t0}, s{t0}, s{t1}
    s_lshl_b32 s{t0}, s{t0}, 9
    v_bfe_u32 v{a}, v{L}, 4, 1
    """.format(t0=sT0, t1=sT1, i=sI, gr=sGR, a=a, L=vL)
    if A: s += "v_xor_b32 v%d, s%d, v%d\n" % (a, sTH, a)
    s += """
    v_lshlrev_b32 v{a}, 9, v{a}
    v_lshrrev_b32 v{b}, 5, v{L}
    v_lshl_add_u32 v{a}, v{b}, 7, v{a}
    v_and_b32 v{b}, 15, v{L}
    v_lshl_add_u32 v{a}, v{b}, 1, v{a}
    v_add_u32 v{a}, s{t0}, v{a}
    """.format(a=a, b=b, L=vL, t0=sT0)
    for j in range(8):
        s += "buffer_load_ushort v%d, v%d, %s, 0 offen offset:%d\n" % (t + j, a, srd(SPHI), 32 * ((j & 3) + 8 * (j >> 2)))
    return L(s)

def wphi_finish():
    t = 64 + 16
    out = L("v_and_b32 v%d, 16, v%d\nv_cmp_eq_u32 vcc, 0, v%d" % (TMP + 8, vL, TMP + 8))
    g = []
    for j in range(4):
        g += L("v_lshl_or_b32 v{x}, v{y}, 16, v{x}\nv_cndmask_b32 v{a0}, 0, v{x}, vcc\nv_cndmask_b32 v{a1}, v{x}, 0, vcc".format(x=t + 2 * j, y=t + 2 * j + 1, a0=WPHI + j, a1=WPHI + 4 + j))
    return defines(out + g, WPHI=range(WPHI, WPHI + 8))

def rot_regs(c):
    if cfg.rot == "z":
        if c == 0: return "s_mov_b32 s%d, 0\ns_mov_b32 s%d, 0\ns_mov_b32 s%d, 0\n" % (sKX, sKQ, sKG)
        return "s_add_u32 s{t1}, s{r}, {c}\ns_sub_u32 s{t0}, s{t1}, 7\ns_cmp_gt_u32 s{t1}, 7\ns_cselect_b32 s{t1}, s{t0}, s{t1}\ns_lshl_b32 s{kx}, s{t1}, 7\ns_mul_i32 s{kq}, s{t1}, {a}\ns_mul_i32 s{kg}, s{t1}, {b}\n".format(
            r=sSPIN, t0=sT0, t1=sT1, c=c, kx=sKX + c, kq=sKQ + c, kg=sKG + c, a=64 * 3072, b=64 * 3584)
    return "s_add_u32 s{t1}, s{r}, {c}\ns_and_b32 s{t1}, s{t1}, 7\ns_lshl_b32 s{kx}, s{t1}, 7\ns_mul_i32 s{kq}, s{t1}, {a}\ns_mul_i32 s{kg}, s{t1}, {b}\n".format(
        r=sSPIN, t1=sT1, c=c, kx=sKX + c, kq=sKQ + c, kg=sKG + c, a=64 * 3072, b=64 * 3584)

def srd_consts(lst):
    return "".join("s_mov_b32 s%d, 0x%x\ns_mov_b32 s%d, 0x20000\n" % (reg + 2, sz, reg + 3) for reg, sz in lst)

def entry_x(item_dma):
    s = """
    s_cmp_ge_u32 s2, 256
    s_cbranch_scc1 L_exit
    """
    for reg, off in ((SX, 0), (SQ, 8), (SG, 40), (SU, 48), (SW, 80), (SPHI, 16), (SO, 24), (SD, 56), (SOUT, 64), (SDBG, 72)):
        s += "s_load_dwordx2 s[%d:%d], s[0:1], %d\n" % (reg, reg + 1, off)
    if cfg.stamps:
        s += "s_memrealtime s[%d:%d]\ns_memtime s[%d:%d]\nv_mov_b32 v%d, 0\n" % (sST, sST + 1, sST + 2, sST + 3, vSTAMP)
    s += """
    v_lshrrev_b32 v1, 6, v0
    v_and_b32 v{L}, 63, v0
    v_readfirstlane_b32 s{wv}, v1
    s_and_b32 s{xcd}, s2, 7
    s_lshr_b32 s{idx}, s2, 3
    s_and_b32 s{rb}, s{xcd}, 1
    s_lshl_b32 s{rb}, s{rb}, 3
    s_and_b32 s{t0}, s{idx}, 7
    s_add_u32 s{rb}, s{rb}, s{t0}
    s_lshr_b32 s{q}, s{xcd}, 1
    s_lshr_b32 s{t4}, s{idx}, 3
    s_and_b32 s{ab}, s{t4}, 1
    s_lshl_b32 s{i}, s{q}, 1
    s_add_u32 s{i}, s{i}, s{ab}
    {rotc}    s_and_b32 s{th}, s{wv}, 1
    s_lshr_b32 s{gr}, s{wv}, 1
    s_xor_b32 s{s}, s{th}, s{gr}
    s_lshl_b32 s{l2k}, s{wv}, 11
    s_mul_i32 s{lx}, s{gr}, {P}
    s_lshl_b32 s{t1}, s{th}, 12
    s_add_u32 s{lx}, s{lx}, s{t1}
    """.format(L=vL, wv=sWV, xcd=sXCD, idx=sIDX, rb=sRB, t0=sT0, t1=sT1, q=sQ, t4=sT4, ab=sAB, i=sI, th=sTH, gr=sGR, s=sS, l2k=sL2K, lx=sLX, P=PITCH,
               rotc=("s_lshl_b32 s%d, s%d, 1\ns_add_u32 s%d, s%d, s%d\ns_and_b32 s%d, s%d, %d\n" % (sT1, sT4, sSPIN, sT0, sT1, sSPIN, sSPIN, 7 if cfg.rot is True else int(cfg.rot))) if cfg.rot and cfg.rot != "z" else "")
    if cfg.rot: s += rot_regs(0)
    s += """
    s_lshl_b32 s{t0}, s{rb}, 2
    s_add_u32 s{t0}, s{t0}, s{wv}
    s_lshl_b32 s{t0}, s{t0}, 15
    v_lshrrev_b32 v2, 3, v{L}
    v_lshlrev_b32 v2, 10, v2
    v_add_u32 v2, s{t0}, v2
    v_lshrrev_b32 v3, 4, v{L}
    v_xor_b32 v3, v3, v{L}
    v_and_b32 v3, 7, v3
    v_lshl_add_u32 v{x0}, v3, 4, v2
    v_add_u32 v{x2}, {d2}, v{x0}
    v_xor_b32 v3, 4, v3
    v_lshl_add_u32 v{x1}, v3, 4, v2
    v_add_u32 v{x1}, 7168, v{x1}
    v_add_u32 v{x3}, {d2}, v{x1}
    """.format(t0=sT0, rb=sRB, wv=sWV, L=vL, x0=XD, x1=XD + 1, x2=XD + 2, x3=XD + 3, d2=2 * 7168)
    s += srd_consts(((SX, 0x200000), (SQ, 0x180000), (SG, 0x1C0000), (SU, 0x1C0000)))
    s += "s_waitcnt lgkmcnt(0)\n"
    if cfg.stamps: s += "v_writelane_b32 v%d, s%d, 0\nv_writelane_b32 v%d, s%d, 63\n" % (vSTAMP, sST, vSTAMP, sST + 2)
    ins = L(s)
    for x in ins:
        if x.kind == "smem": x.nowait = True
    defines(ins, XD=range(XD, XD + 4))
    ins += stamp("karg") + flat(item_dma(("x", 0)))
    ins += L("s_cmp_ge_u32 s%d, 2\ns_cbranch_scc1 L_proB" % sT4)
    return ins

def entry_rest():
    s = ""
    if cfg.rot == "z":
        s += """
        s_lshl_b32 s{t0}, s{q}, 1
        s_add_u32 s{t0}, s{t0}, s{t4}
        s_lshl_b32 s{t0}, s{t0}, 1
        s_add_u32 s{t0}, s{t0}, s{rb}
        s_mul_i32 s{t1}, s{t0}, 37
        s_lshr_b32 s{t1}, s{t1}, 8
        s_mul_i32 s{t1}, s{t1}, 7
        s_sub_u32 s{r}, s{t0}, s{t1}
        """.format(t0=sT0, t1=sT1, q=sQ, t4=sT4, rb=sRB, r=sSPIN)
    s += "".join(rot_regs(c) for c in range(1, cfg.npro)) if cfg.rot else ""
    s += """
    s_lshl_b32 s{l1k}, s{wv}, 10
    s_lshl_b32 s{tt}, s{xcd}, 2
    s_and_b32 s{t0}, s{idx}, 3
    s_add_u32 s{tt}, s{tt}, s{t0}
    s_lshr_b32 s{ct}, s{idx}, 2
    """.format(t0=sT0, wv=sWV, tt=sTT, xcd=sXCD, idx=sIDX, ct=sCT, l1k=sL1K)
    s += srd_consts(((SD, 0x1C0000), (SO, 0x80000), (SW, 0x10000000), (SOUT, 0x200000), (SDBG, 256), (SPHI, 16384)))
    return L(s)

def defaults():
    cfg.code_lim = 20480
    cfg.late_d = 0; cfg.orderB = None; cfg.pacewB = None; cfg.bt2 = 0; cfg.bt3 = 0; cfg.strict = False; cfg.skipbar = (); cfg.quiet = 0; cfg.p3t = 0; cfg.pacew = {8: 8}; cfg.wpfd = 0; cfg.npro = 2; cfg.pace0 = 8; cfg.pace = [8, 4, 4]; cfg.p2pace = 1; cfg.w2at = lambda m: (m - 16) * 27 // 19
    cfg.order = '1jrcsfdu'; cfg.rot = 'z'; cfg.wpf0 = None; cfg.wpf = 0; cfg.wpf1 = [(SD, 14), (SO, 4)]; cfg.codepf = 1; cfg.w2pf = [(40, 8, 4), (43, 12, 4), (46, 16, 4), (49, 20, 4), (52, 24, 4), (55, 28, 4), (58, 32, 4)]; cfg.rot2 = True; cfg.mix = True
    cfg.p2period = 72; cfg.rd_early = True; cfg.one_wait = True; cfg.setup_end = 14
    cfg.fd = 1100; cfg.h1first = 10; cfg.a_att = 27; cfg.a_h1 = 26; cfg.a_pub = 8; cfg.a_kvflag = 30; cfg.h1 = 18; cfg.a_h2 = 3
    cfg.b_h0 = 12; cfg.b_att = 14; cfg.b_ri = -4; cfg.b_rc = 5; cfg.b_li = 14; cfg.b_lc = 24; cfg.b_o = 5
    cfg.flag_delay = 28; cfg.flag_delay2 = 14
    cfg.p0 = 14; cfg.hstep0 = 4
    cfg.hlA = cfg.hlB = [4 * (n - 6) + 1 for n in range(36)]; cfg.poll_lead = [10, 16, 20, 20, 16]

def generate(path):
    label_n[0] = 0
    import fw; fw.LOOSE = cfg.x_nodma or cfg.x_drop
    progs = {}; cut = {}
    for typ in "AB":
        nc, p = build_type(typ)
        mark = p[nc]
        if cfg.x_nodma:
            k0 = [i for i, x in enumerate(p) if getattr(x, "kind", "") == "barrier"][0]
            q = p[:k0]
            for x in p[k0:]:
                if getattr(x, "dma", False):
                    y = I("s_nop 0");
                    q.append(y)
                else: q.append(x)
            p = q
        if cfg.x_drop:
            q = []
            for x in p:
                t = getattr(x, "text", "")
                d = ("h" in cfg.x_drop and t.startswith("buffer_load_dwordx4 a[")) or \
                    ("s" in cfg.x_drop and t.startswith("buffer_store_dwordx4") and "s[28:31]" in t) or \
                    ("w" in cfg.x_drop and getattr(x, "dma", False) and ("s[20:23]" in t or "s[24:27]" in t)) or \
                    ("p" in cfg.x_drop and x.kind == "raw")
                if "m" in cfg.x_drop and x.kind == "mfma":
                    if t.endswith("]") and " a[" in t and "32x32" in t:
                        regs = [r for r in x.rd if r[0] == "a"]
                        y = I("s_nop 0"); y.rd = regs; y.kind = "salu"; q.append(y)
                    continue
                if "l" in cfg.x_drop and x.kind == "ds": continue
                q.append(I("s_nop 0") if d else x)
            p = q
        progs[typ] = finalize(p, typ)
        cut[typ] = (progs[typ].index(mark), [i for i, x in enumerate(progs[typ]) if x.kind == "label" and "main" in x.text][0])
    body = emit(progs["A"][:cut["A"][1]]) + "L_proB:\n" + emit(progs["B"][cut["B"][0]:cut["B"][1]]) + "L_exit:\n    s_endpgm\n" + \
           emit(progs["A"][cut["A"][1]:]) + emit(progs["B"][cut["B"][1]:])
    ref = open("parallel_sum__linear_kernel_hedgehog__glu_gated_bilinear__prompt.s.ref").read().split("\n")
    head = [x for x in ref if x.startswith(";") and "@launch" not in x and "Override" not in x and "grid=ceil" not in x]
    txt = "\n".join(head) + "\n; @launch grid=(256,1,1) block=(256,1,1) lds=%d\n" % LDS_BYTES
    txt += """.amdgcn_target "amdgcn-amd-amdhsa--gfx950"
.text
.globl {k}
.p2align 8
.type {k},@function
{k}:
""".format(k=KNAME) + body + """.section .rodata,"a"
.p2align 6
.amdhsa_kernel {k}
  .amdhsa_next_free_vgpr 512
  .amdhsa_next_free_sgpr 102
  .amdhsa_accum_offset 256
  .amdhsa_group_segment_fixed_size 0
  .amdhsa_kernarg_size 88
  .amdhsa_user_sgpr_count 2
  .amdhsa_user_sgpr_kernarg_segment_ptr 1
  .amdhsa_system_sgpr_workgroup_id_x 1
.end_amdhsa_kernel
""".format(k=KNAME)
    open(path, "w").write(txt)
    if cfg.stamps: open(path[:-2] + ".names", "w").write("\n".join(stamp_names))

if __name__ == "__main__":
    defaults()
    path = sys.argv[1]
    for kv in sys.argv[2:]:
        k, v = kv.split("=")
        setattr(cfg, k, eval(v))
    generate(path)
```

```python
import sys
from fw import *

KNAME = "parallel_sum__linear_kernel_hedgehog__glu_gated_bilinear__prompt_kernel"

class Cfg:
    rot = True
    stamps = False
    codepf = False
    wpf = False
    w2pf = False
    spin = 200000
    dbgout = False
    x_drop = ''
    x_nostat = False; x_notask = False; x_nodma = False; x_nobar = False
cfg = Cfg()

PITCH = 8224
NSLOT = 16
WREG = NSLOT * PITCH
WREG_SZ = 5632
VOFF = 2304
STAT = WREG + 4 * WREG_SZ
CSP = STAT + 2048
CST = CSP + 3072
LDS_BYTES = 163840
WS_H = 0
WS_KVP = 0xC00000
WS_KVF = 0xA00000
WS_FL = 0xA40000
WS_ST = 0xB00000
OOB = 0x40000000

SX, SQ, SG, SU, SD, SO, SW, SOUT, SDBG, SPHI = 4, 8, 12, 16, 20, 24, 28, 32, 36, 40
def srd(b): return "s[%d:%d]" % (b, b + 3)
sWV, sTH, sGR, sRB, sQ, sT4, sAB, sI, sTT, sCT, sIDX, sXCD = range(44, 56)
sKX, sKQ, sKG = 56, 64, 72
sLX, sL2K, sL1K, sT0, sT1, sSPIN = 80, 81, 82, 83, 84, 85
sM1, sM2, sM3, sMB = 86, 88, 90, 92
sWDB, sWOB, sC2, sH2, sS = 94, 95, 96, 97, 3
sMH = 54
sST = 98
SET0, SET1, WF = 0, 64, 128
SEL01, SEL23 = 144, 148
vPW, vPR, vVW, vVR0 = 152, 153, 154, 155
vKVL, vKRL, vKRS = 152, 153, 154
CSD = 156
MB = 160
CA = 168
vSL = 172
XR, WR1, WR3, XD, WR2 = 174, 178, 178, 182, 182
W2R = 174
WQD, WGD, WHD = 186, 188, 190
vHLD, vPOL = 186, 187
vCSA, vRS, vR2, vHST, vL, W2D = 191, 192, 194, 196, 197, 198
WPHI = 200
KVD = 208
TMP = 240
vFLG, vVR1, vKVA, vSTAMP = 252, 253, 254, 255
RSD, SQD = 64, 68

def vr(b, n=1): return "v%d" % b if n == 1 else "v[%d:%d]" % (b, b + n - 1)
def ar(b, n): return "a[%d:%d]" % (b, b + n - 1)

stamp_names = []
def stamp(name):
    if cfg.stamps != True: return []
    if name not in stamp_names: stamp_names.append(name)
    k = stamp_names.index(name)
    return [I("s_memtime s[%d:%d]" % (sST, sST + 1)), I("v_writelane_b32 v%d, s%d, %d" % (vSTAMP, sST, k + 2))]

def addr_wfull(dst, n, att, swap, t0=TMP):
    a, b = vr(t0), vr(t0 + 1)
    s = """
    v_lshrrev_b32 {a}, 5, v{L}
    v_lshlrev_b32 {a}, 10, {a}
    v_bfe_u32 {b}, v{L}, 2, 2
    v_lshl_add_u32 {a}, {b}, 7, {a}
    v_and_b32 {b}, 3, v{L}
    v_lshl_add_u32 {a}, {b}, 3, {a}
    v_bfe_u32 {b}, v{L}, 3, 1
    v_xor_b32 {b}, s{gr}, {b}
    v_lshl_add_u32 {a}, {b}, 6, {a}
    v_bfe_u32 {b}, v{L}, 4, 1
    """.format(a=a, b=b, L=vL, gr=sGR)
    if att:
        if swap: s += "v_xor_b32 %s, s%d, %s\n" % (b, sTH, b)
        s += "v_lshl_add_u32 %s, %s, 5, %s\n" % (a, b, a)
    else:
        s += "v_mul_u32_u24 %s, %d, %s\nv_add_u32 %s, %s, %s\n" % (b, PITCH, b, a, a, b)
    return L(s) + wr_variants(dst, n, a, 12, 'Watt' if att else 'Wpair')

def wr_variants(dst, n, a, sh, role):
    s = "s_lshl_b32 s%d, s%d, %d\ns_xor_b32 s%d, s%d, %d\n" % (sT0, sS, sh, sT1, sT0, 1 << sh)
    k = dst
    if n == 4:
        s += "v_add_u32 v%d, s%d, %s\nv_add_u32 v%d, s%d, %s\n" % (k, sT0, a, k + 1, sT1, a)
        s += "v_add_u32 v%d, %d, v%d\nv_add_u32 v%d, %d, v%d\n" % (k + 2, 8 * PITCH, k, k + 3, 8 * PITCH, k + 1)
    else:
        s += "v_add_u32 %s, %d, %s\n" % (a, 8 * PITCH, a)
        s += "v_add_u32 v%d, s%d, %s\nv_add_u32 v%d, s%d, %s\n" % (k, sT0, a, k + 1, sT1, a)
    ins = L(s)
    return [defines(ins, **{role: range(dst, dst + n)})]

def addr_whalf(dst, t0=TMP):
    a, b = vr(t0), vr(t0 + 1)
    s = """
    v_lshrrev_b32 {a}, 5, v{L}
    v_lshlrev_b32 {a}, 9, {a}
    v_bfe_u32 {b}, v{L}, 2, 2
    v_lshl_add_u32 {a}, {b}, 6, {a}
    v_and_b32 {b}, 3, v{L}
    v_lshl_add_u32 {a}, {b}, 3, {a}
    v_bfe_u32 {b}, v{L}, 4, 1
    v_mul_u32_u24 {b}, 4128, {b}
    v_add_u32 {a}, {a}, {b}
    v_mov_b32 {b}, s{gr}
    v_lshl_add_u32 {a}, {b}, 5, {a}
    """.format(a=a, b=b, L=vL, gr=sGR)
    return L(s) + wr_variants(dst, 4, a, 11, 'Whalf')

def addr_cs(swap, t0=TMP):
    a = vr(t0)
    s = "s_lshl_b32 s%d, s%d, 8\ns_lshl_b32 s%d, s%d, 7\ns_add_u32 s%d, s%d, s%d\ns_add_u32 s%d, s%d, %d\n" % (sT0, sGR, sT1, sTH, sT0, sT0, sT1, sT0, sT0, CSP)
    s += "v_and_b32 %s, 31, v%d\n" % (a, vL)
    if swap: s += "s_lshl_b32 s%d, s%d, 4\nv_xor_b32 %s, s%d, %s\n" % (sT1, sTH, a, sT1, a)
    s += """
    v_lshl_add_u32 v{ca}, {a}, 2, s{t}
    v_lshrrev_b32 {a}, 5, v{L}
    v_lshl_add_u32 v{ca}, {a}, 9, v{ca}
    """.format(a=a, L=vL, ca=vCSA, t=sT0)
    return [defines(L(s), **{"CSs" if swap else "CS": vCSA})]

def addr_p2(t0=TMP):
    a, b = vr(t0), vr(t0 + 1)
    s = """
    v_lshrrev_b32 {a}, 5, v{L}
    v_lshlrev_b32 {a}, 9, {a}
    v_bfe_u32 {b}, v{L}, 2, 2
    v_lshl_add_u32 {a}, {b}, 7, {a}
    v_and_b32 {b}, 3, v{L}
    v_lshl_add_u32 {a}, {b}, 3, {a}
    v_bfe_u32 {b}, v{L}, 3, 1
    v_lshl_add_u32 {a}, {b}, 6, {a}
    v_bfe_u32 {b}, v{L}, 4, 1
    v_lshl_add_u32 {a}, {b}, 5, {a}
    v_xor_b32 {b}, 64, {a}
    v_add_u32 v{w0}, s{l2k}, {a}
    v_add_u32 v{w1}, s{l2k}, {b}
    v_add_u32 v{w2}, {hi}, v{w0}
    v_add_u32 v{w3}, {hi}, v{w1}
    """.format(a=a, b=b, L=vL, w0=W2R, w1=W2R + 1, w2=W2R + 2, w3=W2R + 3, l2k=sL2K, hi=8 * PITCH)
    ins = L(s)
    ins.append(L("""
    s_mul_i32 s{t0}, s{tt}, {a}
    s_mul_i32 s{t1}, s{wv}, {b}
    s_add_u32 s{t0}, s{t0}, s{t1}
    v_lshl_add_u32 v{h}, v{L}, 4, s{t0}
    """.format(t0=sT0, t1=sT1, tt=sTT, wv=sWV, a=144 * 2048, b=36 * 2048, h=vHLD, L=vL)))
    ins.append(L("""
    s_lshl_b32 s{t0}, s{tt}, 2
    s_add_u32 s{t0}, s{t0}, s{wv}
    s_lshl_b32 s{t0}, s{t0}, 7
    s_add_u32 s{t0}, s{t0}, {fl}
    v_and_b32 {a}, 7, v{L}
    v_lshl_add_u32 v{p}, {a}, 2, s{t0}
    """.format(t0=sT0, tt=sTT, wv=sWV, fl=WS_FL, a=a, L=vL, p=vPOL)))
    return defines(ins, W2R=range(W2R, W2R + 4), HLD=vHLD, POL=vPOL)

label_n = [0]
def poll(addr, res, need, sr=SW, cmp="gt"):
    label_n[0] += 1
    k = label_n[0]
    ld = "buffer_load_dword v%d, v%d, %s, 0 offen sc1" % (res, addr, srd(sr))
    c = "v_cmp_%s_u32 vcc, %s, v%d" % (cmp, need, res)
    chk = Raw([c, "s_nop 4", "s_cbranch_vccz L_ok%d" % k,
               "s_mov_b32 s%d, %d" % (sSPIN, cfg.spin),
               "L_re%d:" % k, "s_sleep 1", ld, "s_waitcnt vmcnt(0)", c, "s_sub_u32 s%d, s%d, 1" % (sSPIN, sSPIN),
               "s_cbranch_scc1 L_ok%d" % k, "s_nop 2", "s_cbranch_vccnz L_re%d" % k,
               "L_ok%d:" % k],
              rd=["v%d" % res, "v%d" % addr] + regs_of(need), wr=["vcc", "scc", "s%d" % sSPIN])
    chk.cost = 32
    return I(ld), chk

def class_poll(c, res, needr):
    na, nb = [(0, 1), (0, 2), (1, 2), (2, 2), (2, 3)][c]
    iss, chk = poll(vPOL, res, "v%d" % needr)
    needs([iss, chk], POL=vPOL); defines([iss], **{"cp%d" % c: res}); needs([chk], **{"cp%d" % c: res})
    return iss, [I("v_cndmask_b32 v%d, %d, %d, s[%d:%d]" % (needr, na, nb, sMB, sMB + 1)), chk]

def set_flag(level, tag, t):
    if cfg.strict: tag = "vm0"
    return stamp("f%d_0" % level) + [Wait(tag)] + stamp("f%d_1" % level) + [I("v_mov_b32 v%d, %d" % (t, level)), needs(I("buffer_store_dword v%d, v%d, %s, 0 offen sc1" % (t, vFLG, srd(SW))), FLG=vFLG)]

def t_stat_add():
    a, b = TMP, TMP + 1
    s = """
    s_lshl_b32 s{t0}, s{th}, 10
    s_add_u32 s{t0}, s{t0}, {st}
    v_and_b32 v{b}, 31, v{L}
    v_lshl_add_u32 v{b}, v{b}, 4, s{t0}
    s_lshl_b32 s{t1}, s{gr}, 3
    s_add_u32 s{t0}, s{t0}, s{t1}
    v_lshl_add_u32 v{a}, v{L}, 4, s{t0}
    """.format(t0=sT0, t1=sT1, th=sTH, gr=sGR, st=STAT, a=a, b=b, L=vL)
    pre = [L(s)]
    out = []
    for j, m in ((1, sM1), (2, sM2), (3, sM3)):
        for blk in range(2):
            q = SQD + 4 * blk
            out += L("v_cndmask_b32 v%d, v%d, v%d, s[%d:%d]" % (q, q, q + j, m, m + 1))
    out.append(L("v_permlane32_swap_b32 v%d, v%d\nv_add_f32 v%d, v%d, v%d" % (SQD, SQD + 4, RSD + 1, SQD, SQD + 4)))
    out += L("ds_write_b64 v%d, v[%d:%d]" % (a, RSD, RSD + 1))
    return pre, out

def t_cs_add(tile0, role="CS"):
    return needs(L("ds_write_b32 v%d, v%d offset:%d" % (vCSA, CSD, 512 * tile0)), **{role: vCSA})

def t_cs_tot(tile0, t):
    out = L("v_xor_b32 v%d, 0x80, v%d\nds_read_b32 v%d, v%d offset:%d" % (t, vCSA, t, t, 512 * tile0))
    out.append(Gap(2))
    out += L("""
    v_add_f32 v{t}, v{t}, v{cs}
    v_cvt_pk_bf16_f32 v{a}, v{t}, v{t}
    v_lshlrev_b32 v{a1}, 16, v{a}
    v_sub_f32 v{t}, v{t}, v{a1}
    v_cvt_pk_bf16_f32 v{a1}, v{t}, 0
    """.format(t=t, cs=CSD, a=CA, a1=CA + 1))
    return defines(out, **{"CA%d" % tile0: (CA, CA + 1)})

def t_corr(acc, T, tile0, bs=16):
    out = []
    for j in range(T):
        for b in range(2):
            d = vr(acc + 32 * j + bs * b, 16)
            x = I("v_mfma_f32_32x32x16_bf16 %s, %s, %s, %s" % (d, vr(CA, 4), vr(MB + 4 * b + 2 * j, 4), d)); x.cost = 24
            out.append(x)
    return needs(out, MB=range(MB, MB + 8), Z=(CA + 2, CA + 3), **{"CA%d" % tile0: (CA, CA + 1)})

def t_stat_fin():
    b = TMP + 1; t = TMP + 4
    out = L("ds_read_b128 v[%d:%d], v%d\nds_read_b128 v[%d:%d], v%d offset:512" % (t, t + 3, b, t + 4, t + 7, b))
    out.append(Gap(2))
    late = []
    for blk in range(2):
        r = t + 4 * blk; m = MB + 4 * blk
        out += L("""
        v_add_f32 v{r}, v{r}, v{r2}
        v_mul_f32 v{r}, 0xbb000000, v{r}
        v_cvt_pk_bf16_f32 v{m1}, v{r}, 0
        v_lshlrev_b32 v{r2}, 16, v{m1}
        v_sub_f32 v{r2}, v{r}, v{r2}
        v_cvt_pk_bf16_f32 v{m0}, v{r}, v{r2}
        v_cndmask_b32 v{m2}, 0, v{m0}, s[{h}:{h1}]
        v_cndmask_b32 v{m3}, 0, v{m1}, s[{h}:{h1}]
        v_cndmask_b32 v{m0}, v{m0}, 0, s[{h}:{h1}]
        v_cndmask_b32 v{m1}, v{m1}, 0, s[{h}:{h1}]
        """.format(r=r, r2=r + 2, m0=m, m1=m + 1, m2=m + 2, m3=m + 3, h=sMH, h1=sMH + 1))
        late += L("""
        v_add_f32 v{r1}, v{r1}, v{r3}
        v_mul_f32 v{r2}, v{r}, v{r}
        v_fma_f32 v{r1}, v{r1}, s{c}, -v{r2}
        v_max_f32 v{r1}, 0, v{r1}
        v_add_f32 v{r1}, 0x3727c5ac, v{r1}
        v_rsq_f32 v{rs}, v{r1}
        v_rcp_f32 v{rr}, v{r1}
        v_mul_f32 v{sl}, 0x3fb8aa3b, v{rs}
        """.format(r=r, r1=r + 1, r2=r + 2, r3=r + 3, rs=vRS + blk, rr=vR2 + blk, sl=vSL + blk, c=sC2))
    defines(out, MB=range(MB, MB + 8)); defines(late, R2=(vR2, vR2 + 1), RS=(vRS, vRS + 1), SL=(vSL, vSL + 1))
    return out, late

def t_hepi(acc, soff, imm, tag, bs=16):
    out = []
    for blk in range(2):
        g = acc + bs * blk
        for r in range(0, 8 if not cfg.x_notask else 0, 2):
            out += L("v_mul_f32 v%d, v%d, v%d\nv_mul_f32 v%d, v%d, v%d" % (g + r, vR2 + blk, g + r, g + r + 1, vR2 + blk, g + r + 1))
            out += L("v_mul_f32 v%d, v%d, v%d\nv_mul_f32 v%d, v%d, v%d" % (g + r, g + r, g + 8 + r, g + r + 1, g + r + 1, g + 9 + r))
            out += L("v_cvt_pk_bf16_f32 v%d, v%d, v%d" % (g + r // 2, g + r, g + r + 1))
        st = L("buffer_store_dwordx4 v[%d:%d], v%d, %s, s%d offen offset:%d sc1" % (g, g + 3, vHST, srd(SW), sT1, imm + 1024 * blk), tag=tag if blk else None)
        out.append(L(soff) + st)
    return needs(out, HST=vHST, R2=(vR2, vR2 + 1))

def phi_mfma(acc, TMP=TMP):
    out = []
    for j in range(8): out += L("v_cvt_pk_bf16_f32 v%d, v%d, v%d" % (TMP + j, acc + 2 * j, acc + 2 * j + 1))
    out += L("v_mfma_f32_32x32x16_bf16 v[%d:%d], v[%d:%d], v[%d:%d], 0" % (acc, acc + 15, WPHI, WPHI + 3, TMP, TMP + 3))
    out += L("v_mfma_f32_32x32x16_bf16 v[%d:%d], v[%d:%d], v[%d:%d], v[%d:%d]" % (acc, acc + 15, WPHI + 4, WPHI + 7, TMP + 4, TMP + 7, acc, acc + 15))
    out[-1].cost = 24; out[-2].cost = 24
    return needs(out, WPHI=range(WPHI, WPHI + 8))

def softmax2(p, blk):
    e = TMP; a, b, c, d = TMP + 8, TMP + 9, TMP + 10, TMP + 11; sl = vSL + blk
    s = """
    v_max3_f32 v{a}, v{p0}, v{p1}, v{p2}
    v_min3_f32 v{b}, v{p0}, v{p1}, v{p2}
    v_max3_f32 v{a}, v{a}, v{p3}, v{p4}
    v_min3_f32 v{b}, v{b}, v{p3}, v{p4}
    v_max3_f32 v{a}, v{a}, v{p5}, v{p6}
    v_min3_f32 v{b}, v{b}, v{p5}, v{p6}
    v_max_f32 v{a}, v{a}, v{p7}
    v_max_f32_e64 v{b}, -v{b}, -v{p7}
    """.format(a=a, b=b, **{"p%d" % i: p + i for i in range(8)})
    out = L(s)
    out += L("v_permlane32_swap_b32 v{a}, v{b}\nv_max_f32 v{a}, v{a}, v{b}\nv_mul_f32_e64 v{a}, -v{a}, v{sl}\nv_mov_b32 v{b}, v{a}".format(a=a, b=b, sl=sl))
    out += L("v_permlane32_swap_b32 v{a}, v{b}".format(a=a, b=b))
    for i in range(8):
        out += L("v_fma_f32 v%d, v%d, v%d, v%d" % (e + i, p + i, sl, a))
        out += L("v_fma_f32 v%d, -v%d, v%d, v%d" % (p + i, p + i, sl, b))
        if i > 1: out += L("v_add_f32 v%d, v%d, v%d" % (c, c if i > 2 else e, e + i - 1))
        out += L("v_exp_f32 v%d, v%d" % (e + i, e + i))
        if i > 1: out += L("v_add_f32 v%d, v%d, v%d" % (d, d if i > 2 else p, p + i - 1))
        out += L("v_exp_f32 v%d, v%d" % (p + i, p + i))
    out += L("v_add_f32 v%d, v%d, v%d\nv_add_f32 v%d, v%d, v%d" % (c, c, e + 7, d, d, p + 7))
    out += L("v_permlane32_swap_b32 v{c}, v{d}\nv_add_f32 v{c}, v{c}, v{d}\nv_rcp_f32 v{c}, v{c}".format(c=c, d=d))
    out += L("v_mov_b32 v{d}, v{c}".format(c=c, d=d))
    out += L("v_permlane32_swap_b32 v{c}, v{d}".format(c=c, d=d))
    for i in range(8):
        out += L("v_mul_f32 v%d, v%d, v%d" % (p + i, d, p + i))
        if i & 1: out += L("v_cvt_pk_bf16_f32 v%d, v%d, v%d" % (p + i // 2, p + i - 1, p + i))
    for i in range(8):
        out += L("v_mul_f32 v%d, v%d, v%d" % (e + i, c, e + i))
        if i & 1: out += L("v_cvt_pk_bf16_f32 v%d, v%d, v%d" % (p + 4 + i // 2, e + i - 1, e + i))
    return out

def v_out(va, blk):
    out = []
    for r in range(0, 16, 2):
        out += L("v_mul_f32 v%d, v%d, v%d\nv_mul_f32 v%d, v%d, v%d" % (va + r, vRS + blk, va + r, va + r + 1, vRS + blk, va + r + 1))
        out += L("v_cvt_pk_bf16_f32 v%d, v%d, v%d" % (va + r // 2, va + r, va + r + 1))
        if r % 4 == 2: out += L("ds_write_b64 v%d, v[%d:%d] offset:%d" % (vVW, va + r // 2 - 1, va + r // 2, 4 * (r - 2)))
    return out

def weave(main, extra, pos):
    out = []; k = 0
    for n, x in enumerate(main):
        while k < len(extra) and pos[k] <= n: out.append(extra[k]); k += 1
        out.append(x)
    return out + extra[k:]

def t_att_k():
    out = []
    if cfg.x_notask: return [I("s_nop 0")]
    FR = 32
    rds, mms = [], []
    for blk in range(2):
        va = 32 + 16 * blk; ka = 16 * blk
        pm = phi_mfma(ka)
        out += weave(pm, rds, range(0, 8)); rds = []
        vo = v_out(va, blk)
        out += weave(vo, mms, (10, 18)); mms = []
        for hh in range(2):
            p = ka + 8 * hh
            sm = softmax2(p, blk)
            n = len(sm)
            wr = [I("ds_write_b64 v%d, v[%d:%d] offset:%d" % (vPW, p + 2 * j, p + 1 + 2 * j, 32 + 16 * j)) for j in range(2)] + \
                 [I("ds_write_b64 v%d, v[%d:%d] offset:%d" % (vPW, p + 4 + 2 * j, p + 5 + 2 * j, 16 * j)) for j in range(2)]
            sm = weave(sm, rds + mms + wr, [2, 5, 8, 8, 12, 12, 16, 20][:len(rds)] + [44, 56][:len(mms)] + [n - 17, n - 11, n - 5, n])
            out += sm
            rds, mms = [], []
            for ks in range(2):
                for j in range(2):
                    rds += L("ds_read_b64_tr_b16 v[%d:%d], v%d offset:%d" % (FR + 8 * ks + 4 + 2 * j, FR + 8 * ks + 5 + 2 * j, (vVR0, vVR1)[hh], 1664 * ks + 416 * j))
                for j in range(2):
                    rds += L("ds_read_b64_tr_b16 v[%d:%d], v%d offset:%d" % (FR + 8 * ks + 2 * j, FR + 8 * ks + 2 * j + 1, vPR, 1152 * ks + 288 * j))
            d = KVD + 16 * hh
            for ks in range(2):
                c = "0" if (blk == 0 and ks == 0) else vr(d, 16)
                x = I("v_mfma_f32_32x32x16_bf16 %s, %s, %s, %s" % (vr(d, 16), vr(FR + 8 * ks, 4), vr(FR + 8 * ks + 4, 4), c)); x.cost = 24
                mms.append(x)
    for x in rds: x.cost = 8
    out += rds
    pend = mms
    out.append(L("""
    s_mul_i32 s{t0}, s{wv}, {wsz}
    s_add_u32 s{t0}, s{t0}, {wreg}
    v_lshl_add_u32 v{a}, v{L}, 4, s{t0}
    s_xor_b32 s{t0}, s{wv}, 1
    s_mul_i32 s{t0}, s{t0}, {wsz}
    s_add_u32 s{t0}, s{t0}, {wreg}
    v_lshl_add_u32 v{b}, v{L}, 4, s{t0}
    """.format(t0=sT0, wv=sWV, wsz=WREG_SZ, wreg=WREG, a=TMP, b=TMP + 1, L=vL)))
    out += [Gap(2)] + pend + [Gap(2)]
    for r4 in range(4): out += L("ds_write_b128 v%d, %s offset:%d" % (TMP, vr(KVD + 16 + 4 * r4, 4), 1024 * r4))
    defines(out, EXR=TMP + 1)
    return needs(out, PW=vPW, PR=vPR, VW=vVW, VR0=vVR0, VR1=vVR1, RS=(vRS, vRS + 1), SL=(vSL, vSL + 1))

def t_kv_pub():
    out = []
    for r4 in range(4): out += L("ds_read_b128 %s, v%d offset:%d" % (vr(KVD + 16 + 4 * r4, 4), TMP + 1, 1024 * r4))
    out.append(Gap(2))
    for r in range(16):
        out += L("v_add_f32 v%d, v%d, v%d" % (KVD + r, KVD + r, KVD + 16 + r))
        if r % 4 == 3: out += L("buffer_store_dwordx4 %s, v%d, %s, 0 offen offset:%d sc1" % (vr(KVD + r - 3, 4), vKVA, srd(SW), 136 * (r - 3)))
    return needs(out, EXR=TMP + 1, KVA=vKVA)

def data_poll(loads, regs, t):
    label_n[0] += 1
    k = label_n[0]
    chk = ["v_max3_u32 v%d, v%d, v%d, v%d" % (t, regs[0], regs[1], regs[2])]
    rest = regs[3:]
    while len(rest) > 1:
        chk.append("v_max3_u32 v%d, v%d, v%d, v%d" % (t, t, rest[0], rest[1])); rest = rest[2:]
    if rest: chk.append("v_max_u32 v%d, v%d, v%d" % (t, t, rest[0]))
    fast = L("\n".join(chk))
    c = "v_cmp_eq_u32 vcc, -1, v%d" % t
    raw = Raw([c, "s_nop 4", "s_cbranch_vccz L_ok%d" % k, "s_mov_b32 s%d, %d" % (sSPIN, cfg.spin), "L_re%d:" % k, "s_sleep 1"] + loads +
              ["s_waitcnt vmcnt(0)"] + chk + [c, "s_sub_u32 s%d, s%d, 1" % (sSPIN, sSPIN), "s_cbranch_scc1 L_ok%d" % k, "s_nop 2",
               "s_cbranch_vccnz L_re%d" % k, "L_ok%d:" % k],
              rd=["v%d" % t], wr=["vcc", "scc", "s%d" % sSPIN, "s%d" % sT1] + ["v%d" % r for r in regs])
    raw.cost = 32
    return fast + [raw]

RR = 80
def t_kv_red():
    ld = []
    for k in range(4):
        ld += ["s_mov_b32 s%d, %d" % (sT1, 8704 * k), "buffer_load_dwordx4 %s, v%d, %s, s%d offen sc1" % (vr(RR + 4 * k, 4), vKRL, srd(SW), sT1)]
    iss = [L("\n".join(ld[2 * k:2 * k + 2])) for k in range(4)]
    out = data_poll(ld, list(range(RR, RR + 16)), vKVA)
    for j in range(4):
        out += L("v_add_f32 v%d, v%d, v%d\nv_add_f32 v%d, v%d, v%d" % (RR + j, RR + j, RR + 4 + j, RR + 8 + j, RR + 8 + j, RR + 12 + j))
    for j in range(4): out += L("v_add_f32 v%d, v%d, v%d" % (RR + j, RR + j, RR + 8 + j))
    out += L("""
    v_permlane16_swap_b32 v{a}, v{b}
    v_permlane16_swap_b32 v{c}, v{d}
    v_add_f32 v{a}, v{a}, v{b}
    v_add_f32 v{c}, v{c}, v{d}
    v_permlane32_swap_b32 v{a}, v{c}
    v_add_f32 v{a}, v{a}, v{c}
    buffer_store_dword v{a}, v{s}, {sr}, 0 offen sc1
    """.format(a=RR, b=RR + 1, c=RR + 2, d=RR + 3, s=vKRS, sr=srd(SW)))
    needs(iss, KRL=vKRL); needs(out, KRS=vKRS)
    return iss, out

def t_att_q():
    out = []
    if cfg.x_notask: return [I("s_nop 0")]
    out += phi_mfma(SET0, 64) + phi_mfma(SET0 + 16, 72)
    out += softmax2(SET0, 0) + softmax2(SET0 + 8, 0) + softmax2(SET0 + 16, 1) + softmax2(SET0 + 24, 1)
    return out

KR = 32
def t_kv_load():
    ld = []
    for hh in range(2):
        for r4 in range(4):
            ld += ["buffer_load_dwordx4 %s, v%d, %s, 0 offen offset:%d sc1" % (vr(KR + 16 * hh + 4 * r4, 4), vKVL, srd(SW), 2176 * hh + 544 * r4)]
    return needs(L("\n".join(ld)), KVL=vKVL), data_poll(ld, list(range(KR, KR + 32)), vKVA)

def t_o():
    out = []
    for hh in range(2):
        for j in range(8): out += L("v_cvt_pk_bf16_f32 v%d, v%d, v%d" % (KR + 16 * hh + j, KR + 16 * hh + 2 * j, KR + 16 * hh + 2 * j + 1))
    seq = [(hh, blk) for hh in range(2) for blk in range(2)]
    def mm(k):
        hh, blk = seq[k]; d = 64 + 16 * (k & 1); p = SET0 + 16 * blk + 8 * hh
        return L("v_mfma_f32_32x32x16_bf16 %s, %s, %s, 0" % (vr(d, 16), vr(KR + 16 * hh, 4), vr(p + 4, 4))) + \
               L("v_mfma_f32_32x32x16_bf16 %s, %s, %s, %s" % (vr(d, 16), vr(KR + 16 * hh + 4, 4), vr(p, 4), vr(d, 16)))
    def fin(k):
        hh, blk = seq[k]; d = 64 + 16 * (k & 1)
        o = L("v_add_f32 v%d, 0x358637bd, v%d\nv_rcp_f32 v%d, v%d" % (d + 8, d + 8, d + 8, d + 8))
        for r in range(8):
            o += L("v_mul_f32 v%d, v%d, v%d" % (d + r, d + 8, d + r))
            if r & 1: o += L("v_cvt_pk_bf16_f32 v%d, v%d, v%d" % (d + r // 2, d + r - 1, d + r))
        st = L("s_mov_b32 s%d, %d" % (sT1, 28 * 2048)) + \
             L("buffer_store_dwordx4 %s, v%d, %s, s%d offen offset:%d sc1" % (vr(d, 4), vHST, srd(SW), sT1, 2048 * hh + 1024 * blk), tag="ost" if k == 3 else None)
        return o + [st]
    out += mm(0) + mm(1) + fin(0) + mm(2) + fin(1) + mm(3) + fin(2) + fin(3)
    return out

def dma(vo, sr, so, imm, tag=None):
    role = "XD" if sr == SX else "WQD" if sr == SQ else "W2D" if sr in (SD, SO) else "WHD" if vo == WHD else "WGD"
    return needs(dma_(vo, sr, so, imm, tag), **{role: vo})

def dma_(vo, sr, so, imm, tag=None):
    return L("buffer_load_dwordx4 v%d, %s, %s offen%s lds" % (vo, srd(sr), so, " offset:%d" % imm if imm else ""), tag=tag)

def m0set(base, lit): return L("s_add_u32 m0, s%d, %d" % (base, lit))

def dma_x(c, slot, tag):
    if not cfg.rot:
        g = m0set(sLX, slot * PITCH) + L("s_movk_i32 s%d, %d" % (sH2 + 0 if False else 79, 128 * c))
        return [g + dma(XD, SX, "s79", 0)] + [dma(XD + i, SX, "s79", 1024 * i, tag if i == 3 else None) for i in range(1, 4)]
    g = m0set(sLX, slot * PITCH)
    return [g + dma(XD, SX, "s%d" % (sKX + c), 0)] + [dma(XD + i, SX, "s%d" % (sKX + c), 1024 * i, tag if i == 3 else None) for i in range(1, 4)]

def dma_full(vo, sr, kreg, extra, slot, tag):
    g = m0set(sL2K, slot * PITCH)
    so = "s%d" % kreg
    if not cfg.rot:
        lit = extra + ((kreg - sKQ) * 64 * 3072 if kreg < sKG else (kreg - sKG) * 64 * 3584)
        g += L("s_mov_b32 s%d, %d" % (sT0, lit)); so = "s%d" % sT0
        return [g + dma(vo, sr, so, 0) + dma(vo + 1, sr, so, 1024, tag)]
    if extra:
        g += L("s_add_u32 s%d, s%d, %d" % (sT0, kreg, extra)); so = "s%d" % sT0
        return [g + dma(vo, sr, so, 0) + dma(vo + 1, sr, so, 1024, tag)]
    return [g + dma(vo, sr, so, 0) + dma(vo + 1, sr, so, 1024, tag)]

def dma_half(c, slot, tag):
    so = "s%d" % (sKG + c)
    if not cfg.rot:
        mv = lambda: L("s_mov_b32 s%d, %d" % (sT0, c * 64 * 3584)); so = "s%d" % sT0
        return [m0set(sL1K, slot * PITCH) + mv() + dma(WHD, SG, so, 0), m0set(sL1K, slot * PITCH + 4128) + mv() + dma(WHD, SU, so, 0, tag)]
    return [m0set(sL1K, slot * PITCH) + dma(WHD, SG, so, 0), m0set(sL1K, slot * PITCH + 4128) + dma(WHD, SU, so, 0, tag)]

def slice_src(n):
    return (SD, sWDB, 16 * n) if n < 28 else (SO, sWOB, 16 * (n - 28))

FIRST = [0, 8, 16, 24, 28, 36]
sR2 = sKX
def cls_of(n):
    c = max(k for k in range(5) if FIRST[k] <= n)
    return c, n - FIRST[c]

def r2_table():
    out = [L("s_and_b32 s{a}, s{tt}, 3\ns_lshl_b32 s{a}, s{a}, 1\ns_add_u32 s{a}, s{a}, s{ct}\ns_and_b32 s{a}, s{a}, {m}\ns_lshl_b32 s{a}, s{a}, 11".format(a=sR2, tt=sTT, ct=sCT, m=7 if cfg.rot2 else 0))]
    for i in range(1, 8): out.append(L("s_add_u32 s{a}, s{p}, 2048\ns_and_b32 s{a}, s{a}, 0x3800".format(a=sR2 + i, p=sR2 + i - 1)))
    return defines(out, R2T=["s%d" % (sR2 + i) for i in range(8)])

def dma_w2(n, slot):
    sr, base, row = slice_src(n)
    c, i = cls_of(n)
    g = m0set(sL2K, slot * PITCH)
    if c == 3: g += L("s_and_b32 s{t}, s{r}, 0x1800\ns_lshl3_add_u32 s{t}, s{t}, s{b}".format(t=sT0, r=sR2 + i, b=base))
    else: g += L("s_lshl3_add_u32 s{t}, s{r}, s{b}".format(t=sT0, r=sR2 + i, b=base))
    needs(g, R2T="s%d" % (sR2 + i))
    g += dma(W2D, sr, "s%d" % sT0, 0) + dma(W2D + 1, sr, "s%d" % sT0, 1024, "w2_%d" % n)
    if n in (7, 15, 23): g += L("s_add_u32 s%d, s%d, 131072" % (sWDB, sWDB))
    return [g]

def h_load(n):
    c, i = cls_of(n)
    if c == 3: g = L("s_and_b32 s{t}, s{r}, 0x1800\ns_add_u32 s{t}, s{t}, {l}".format(t=sT1, r=sR2 + i, l=FIRST[c] * 2048))
    else: g = L("s_add_u32 s%d, s%d, %d" % (sT1, sR2 + i, FIRST[c] * 2048))
    needs(g, R2T="s%d" % (sR2 + i))
    a = 8 * (n % 32)
    for b in range(2):
        g += L("buffer_load_dwordx4 %s, v%d, %s, s%d offen%s sc1" % (ar(a + 4 * b, 4), vHLD, srd(SW), sT1, " offset:1024" if b else ""))
    return needs(g, HLD=vHLD)

def build_type(typ):
    A = typ == "A"
    passes = [("att2", 2, SET0, 0), ("pair", 2, SET1, 2), ("half", 1, SET0, 4)] if A else \
             [("pair", 2, SET0, 0), ("pair", 2, SET1, 2), ("q", 1, SET0, 4)]
    WRs = [WR1, WR2, WR3]
    ACC2 = [16, 32, 208, 224] if A else [96, 112, 208, 224]
    accr = lambda p, j, b: (0, 48)[b] if (A and p == 2) else passes[p][2] + 32 * j + 16 * b
    S = Sched()
    step_beat = {}
    nt = lambda g: passes[g // 32][1]
    wbuf = lambda g, j: WF + (8 * (g & 1) + 4 * j if nt(g) == 2 else 4 * (g & 3))

    slot_of = {}
    for c in range(8):
        slot_of[("x", c)] = 2 * (c % 4); slot_of[("w", 0, c)] = 8 + 2 * (c % 4)
    def item_dma(it):
        if it[0] == "x": return dma_x(it[1], slot_of[it], "x%d" % it[1])
        if it[0] == "s": return dma_w2(it[1], slot_of[it])
        _, p, c = it; kind = passes[p][0]; sl = slot_of[it]; tag = "w%d_%d" % (p, c)
        if kind == "att2": return dma_full(WQD, SQ, sKQ + c, 0, sl, None) + dma_full(WQD, SQ, sKQ + c, 1024, sl + 1, tag)
        if kind == "q": return dma_full(WQD, SQ, sKQ + c, 0, sl, tag)
        if kind == "half": return dma_half(c, sl, tag)
        ex = 256 if (not A and p == 1) else 0
        return dma_full(WGD, SG, sKG + c, ex, sl, None) + dma_full(WGD, SU, sKG + c, ex, sl + 1, tag)
    def item_slots(it):
        if it[0] == "x": return 2
        if it[0] == "s": return 1
        return 2 if passes[it[1]][0] in ("att2", "pair") else 1

    for g in range(96):
        p, c, t = g // 32, (g // 4) % 8, g % 4
        kind, T, acc, tile0 = passes[p]
        step_beat[g] = len(S.beats)
        k = g % 32
        for j in range(T):
            for b in range(2):
                d = vr(accr(p, j, b), 16)
                S.beat(I("v_mfma_f32_32x32x16_bf16 %s, %s, %s, %s" % (d, vr(wbuf(g, j), 4), ar(8 * k + 4 * b, 4), "0" if k == 0 else d)))
        if t < 2 and not cfg.x_nostat:
            def m16(d, sel, src, first): S.beat(I("v_mfma_f32_16x16x32_bf16 %s, %s, %s, %s" % (vr(d, 4), vr(sel, 4), src, "0" if first else vr(d, 4))), 16)
            def m4(b, h): S.beat(I("v_mfma_f32_4x4x4_16b_bf16 %s, %s, %s, %s" % (vr(SQD + 4 * b, 4), ar(8 * k + 4 * b + 2 * h, 2), ar(8 * k + 4 * b + 2 * h, 2), "0" if (k == 0 and h == 0) else vr(SQD + 4 * b, 4))), 8)
            if p == 0:
                m4(0, 0); m4(1, 0); m16(RSD, SEL01, ar(8 * k, 4), k == 0); m4(0, 1); m4(1, 1); m16(RSD, SEL23, ar(8 * k + 4, 4), False)
            for j in range(T): m16(CSD, (SEL01, SEL23)[j], vr(wbuf(g, j), 4), k == 0 and j == 0)
    step_beat[96] = len(S.beats)
    sl_beat = {}
    for n in range(36):
        sl_beat[n] = len(S.beats)
        w = WF + 8 * (n & 1); a = 8 * (n % 32)
        for cb in range(2):
            for tb in range(2):
                d = vr(ACC2[2 * cb + tb], 16)
                S.beat(I("v_mfma_f32_32x32x16_bf16 %s, %s, %s, %s" % (d, vr(w + 4 * cb, 4), ar(a + 4 * tb, 4), "0" if n == 0 else d)), cfg.p2period)
    sl_beat[36] = len(S.beats)
    S.beat(None)

    bar_step = {}
    for cc in range(24):
        T = passes[cc // 8][1]
        bar_step[cc] = 4 * cc + (3 if (T == 2 or cc == 23) else 2)
    last_rd = {}
    def w_reads(g, j):
        p, c, t = g // 32, (g // 4) % 8, g % 4
        kind = passes[p][0]; sl = slot_of[("w", p, c)]
        if p == 0: base, off = WR1 + (t >> 1), (sl - 8) * PITCH
        else: base, off = WRs[p] + 2 * (sl >= 8) + (t >> 1), (sl % 8) * PITCH
        if kind == "att2": off += j * PITCH
        if kind == "pair": off += 32 * j
        st, js = (1024, 256) if kind == "half" else (2048, 512)
        off += (t & 1) * st
        w = wbuf(g, j)
        role = {"att2": "Watt", "q": "Watt", "pair": "Wpair", "half": "Whalf"}[kind]
        return needs([I("ds_read_b64_tr_b16 %s, v%d offset:%d" % (vr(w + 2 * e, 2), base, off + e * js)) for e in range(2)], **{role: base})
    def x_reads(g):
        c, t = g // 4, g % 4
        return needs([I("ds_read_b128 %s, v%d offset:%d" % (ar(8 * g + 4 * b, 4), XR + t, slot_of[("x", c)] * PITCH + 4096 * b)) for b in range(2)], XR=XR + t)
    def w2_reads(n):
        sl = slot_of[("s", n)]; w = WF + 8 * (n & 1)
        return needs([I("ds_read_b64_tr_b16 %s, v%d offset:%d" % (vr(w + 4 * cb + 2 * e, 2), W2R + 2 * (sl >= 8) + cb, (sl % 8) * PITCH + 1024 * e)) for cb in range(2) for e in range(2)], W2R=range(W2R, W2R + 4))

    queue = []
    for c in range(cfg.npro, 8): queue += [("x", c), ("w", 0, c)]
    queue += [("w", 1, c) for c in range(8)]
    if cfg.mix:
        for c in range(8): queue += [("w", 2, c), ("s", c)]
        queue += [("s", n) for n in range(8, 36)]
    else: queue += [("w", 2, c) for c in range(8)] + [("s", n) for n in range(36)]
    free = set()
    for c in range(cfg.npro, 4): free |= {2 * c, 2 * c + 1, 8 + 2 * c, 9 + 2 * c}
    issue_after = {}; held = []
    n_ins = lambda it: 4 if item_slots(it) == 2 else 2
    for cc in range(-1, 24):
        p, c = max(cc, 0) // 8, cc % 8
        T = passes[p][1] if cc >= 0 else 0
        rel = []
        budget = (cfg.pacew if A or cfg.pacewB is None else cfg.pacewB).get(cc, cfg.pace[p] if cc >= 0 else cfg.pace0)
        if T == 2 or cc == 23:
            rel.append(cc)
            if cc > 0 and passes[(cc - 1) // 8][1] == 1: rel.append(cc - 1)
        elif cc > 0 and passes[(cc - 1) // 8][1] == 1: rel.append(cc - 1)
        held += rel; rel = []
        if cc not in cfg.skipbar: rel, held = held, []
        for r in rel:
            it = ("w", r // 8, r % 8)
            free |= set(range(slot_of[it], slot_of[it] + item_slots(it)))
            if r < 8: free |= {slot_of[("x", r)], slot_of[("x", r)] + 1}
        got = []
        while queue:
            it = queue[0]; ns = item_slots(it)
            if it in slot_of: cand = [slot_of[it]] if all(slot_of[it] + i in free for i in range(ns)) else []
            elif ns == 2: cand = [s for s in sorted(free) if s % 2 == 0 and s + 1 in free]
            else: cand = sorted(free)
            if not cand or budget < n_ins(it): break
            budget -= n_ins(it)
            slot_of[it] = cand[0]
            for i in range(ns): free.discard(cand[0] + i)
            got.append(queue.pop(0))
        issue_after[cc] = (rel, got)
    p2_issue = {}
    for n in range(36):
        free.add(slot_of[("s", n)])
        for k in range(cfg.p2pace):
            if queue and free and n >= cfg.w2at(queue[0][1]):
                it = queue.pop(0); slot_of[it] = min(free); free.discard(slot_of[it]); p2_issue.setdefault(n, []).append(it)
    print(typ, "prefetched slices before P2:", 36 - sum(len(x) for x in p2_issue.values()))

    where = {}
    for g in range(1, 96):
        T = nt(g); k = g % 32
        for j in range(T):
            if T == 2: at = g - 1 if not (k == 0 and nt(g - 1) == 1 and j == 0) else g - 2
            else: at = g - 2 if not (k < 2 and nt(g - k - 1) == 2) else g - k - 1
            where.setdefault(at, []).append(("w", g, j))
        if g < 32: where.setdefault(g - 1, []).append(("x", g))
    for at, lst in sorted(where.items()):
        ins = []
        for it in lst:
            r = w_reads(it[1], it[2]) if it[0] == "w" else x_reads(it[1])
            if it[1] % 4 == 3:
                r[-1].tag = "rd%d_%s%d" % (it[1] // 4, it[0], it[2] if it[0] == "w" else 0)
                last_rd[it[1] // 4] = r[-1].tag
            ins += r
        b0 = step_beat[at]; nb = 2 * nt(at)
        if cfg.rd_early and len(ins) == 6: ins = [ins[0], ins[1], ins[4], ins[5], ins[2], ins[3]]
        if cfg.rd_early:
            tg = [x.tag for x in ins if x.tag]
            if tg:
                for x in ins: x.tag = None
                ins[-1].tag = last_rd[lst[-1][1] // 4]
        if cfg.one_wait and nt(at) == 2 and at + 1 in step_beat and all(it[1] == at + 1 for it in lst):
            if not ins[-1].tag: ins[-1].tag = "stp%d" % at
            S.put(step_beat[at + 1], Wait(ins[-1].tag), pre=True)
        nbb = 2 if cfg.rd_early else nb
        for i, x in enumerate(ins): S.put(b0 + min(nbb - 1, i * nbb // len(ins)), x)

    extra_pre = {}
    def place_barriers():
        for cc in range(24):
            b = step_beat[bar_step[cc]]
            if cc in cfg.skipbar:
                assert cc not in extra_pre and cc not in extra_wait
                continue
            pre = []
            for r in issue_after[cc][0]: pre.append(Wait(last_rd[r]))
            if cc in extra_pre: pre.append(Wait("lgkm0"))
            if cc in extra_wait: pre.append(Wait(extra_wait[cc]))
            if cc < 23:
                nx = cc + 1
                while nx in cfg.skipbar: nx += 1
                if nx < 8: pre.append(Wait("x%d" % nx))
                pre.append(Wait("w%d_%d" % (nx // 8, nx % 8)))
            pre.append(I("s_barrier"))
            S.beats[b]["pre"] = pre + S.beats[b]["pre"]
    bb = lambda cc: step_beat[bar_step[cc]]
    for cc in range(-1, 24):
        items = []
        for it in issue_after[cc][1]: items += item_dma(it)
        if items: S.spread(items, bb(cc) if cc >= 0 else 0, bb(cc + 1) if cc < 23 else sl_beat[0] + 2)

    r0 = w2_reads(0)
    S.put(step_beat[95], [Wait("w2_0")] );
    for i, x in enumerate(r0): S.put(step_beat[95] + min(i // 2, 2 * nt(95) - 1), x)
    for n in range(36):
        b = sl_beat[n]
        if n + 1 < 36:
            S.put(b, Wait("w2_%d" % (n + 1)))
            for i, x in enumerate(w2_reads(n + 1)): S.put(b + i, x)
        for k, it in enumerate(p2_issue.get(n, [])): S.put(b + 2 + k, dma_w2(it[1], slot_of[it])[0])

    sp = lambda g: step_beat[g]
    sl0 = sl_beat[0]
    def after(b, cyc):
        while cyc > 0: cyc -= max(S.beats[b]["period"], S.load(b)); b += 1
        return b
    def end_of(it):
        cc = [c for c in issue_after if it in issue_after[c][1]][0]
        return bb(cc + 1)
    def start_of(it):
        cc = [c for c in issue_after if it in issue_after[c][1]][0]
        return bb(cc)
    assert start_of(("w", 1, 0)) >= sp(cfg.setup_end) and end_of(("x", 7)) < sp(28)
    for cc in range(24):
        if cc not in cfg.skipbar:
            for k in range(cfg.quiet): S.beats[bb(cc) + k]["quiet"] = True
    S.spread(late_setup(A), sp(1), sp(cfg.setup_end), "setup")
    if cfg.wpf: S.put(sp(cfg.wpf), w_touch(cfg.wpf1, 110))
    if not A and cfg.bt2: S.put(sp(cfg.bt2), b_touch2(120, 2, 4))
    if not A and cfg.bt3: S.put(sp(cfg.bt3), b_touch2(122, 6, 1) + b_touch3(124))
    if cfg.late_d: S.put(sp(cfg.late_d), w_touch([(SD, 14), (SO, 4)], 108) + p3_touch(116))
    if cfg.p3t: S.put(sp(cfg.p3t), p3_touch(116))
    if cfg.wpfd: S.put(sp(cfg.wpfd), w_touch([(SD, 14), (SO, 4)], XR + 1))
    extra_wait = {4: "clr"}
    S.put(bb(4), needs(L("v_mov_b32 v%d, 1\nbuffer_atomic_add v%d, v%d, %s, 0 offen" % (KVD + 1, KVD + 1, KVD, srd(SDBG))), HSA=KVD))
    S.put(sp(21), wphi_finish())
    S.spread(addr_wfull(WR2, 4, False, False, TMP + 8), max(end_of(("x", 7)), sp(22)), sp(30))
    S.spread(r2_table(), max(end_of(("x", 7)), sp(22)), sp(30))
    pre, adds = t_stat_add()
    S.spread(pre, sp(26), sp(28))
    cs_pub = lambda tile0: [Gap(1)] + t_cs_add(tile0, 'CSs' if A and tile0 == 0 else 'CS')
    S.spread(cs_pub(0) + adds, sp(30), sp(31)); extra_pre[7] = 1
    fin, late = t_stat_fin()
    S.spread(t_cs_tot(0, TMP + 2), sp(31), sp(32))
    S.spread(fin, sp(31), sp(32))
    hs_i, hs_c = poll(XR, XR + 1, "8" if cfg.dbgout else "4", SDBG, "gt")
    if cfg.dbgout: S.put(sp(36), L("v_and_b32 v%d, 31, v%d\nv_lshlrev_b32 v%d, 2, v%d\nv_add_u32 v%d, 64, v%d" % (XR, vL, XR, XR, XR, XR)) + [hs_i])
    else: S.put(sp(36), [I("v_lshlrev_b32 v%d, 2, v%d" % (XR, vL)), hs_i])
    S.put(sp(44), stamp("hs0") + [hs_c] + stamp("hs1"))
    for k, (st, n0, ns) in enumerate(cfg.w2pf):
        assert sp(st) >= end_of(("w", 1, 7))
        S.put(sp(st) + 2, w2_touch(WGD + (k & 1), n0, ns))
    S.spread(cs_pub(2), sp(62), sp(63)); extra_pre[15] = 1
    S.spread(t_cs_tot(2, XR + 2), sp(63), sp(64))
    S.spread(cs_pub(4), sp(94), sp(95)); extra_pre[23] = 1
    S.spread(t_cs_tot(4, WR2 + 1), sp(95), sl0)
    x = addr_p2(WR2 + 1)
    b_ = max(sp(64), end_of(("w", 2, 7))); S.spread(x[-2:], b_, b_ + 4); S.spread(x[:-2], sp(76), sp(90))
    so2 = "s_mov_b32 s%d, %d" % (sT1, (16 if A else 8) * 2048)
    if A:
        S.spread(addr_whalf(WR3, XR + 2) + addr_cs(False, XR + 2), sp(52), sp(60))
        att = t_corr(SET0, 2, 0) + late + t_att_k()
        h1 = t_hepi(SET1, so2, 0, None) + t_hepi(SET1 + 32, so2, 2048, "h1")
        if cfg.h1first:
            eh = S.spread(t_corr(SET1, 2, 2) + h1, sp(64), sp(64 + cfg.h1first), "hepi1")
            S.put(after(eh, cfg.fd), set_flag(1, "h1", WR2 + 3))
        else: S.spread(t_corr(SET1, 2, 2), sp(64), sp(68))
        e = S.spread(att, sp(32), sp(32 + cfg.a_att), "att_k")
        busy = {"v%d" % r for r in list(range(16)) + list(range(48, 64))}
        later = [x for b in range(sp(64), e + 1) for x in flat(S.beats[b]["post"])]
        assert not any(x in later and busy & set(x.rd + x.wr) for x in flat(att) if isinstance(x, I)), "pass-3 accumulators still in use"
        cb = min(cc for cc in range(8, 24) if bb(cc) > e and cc not in cfg.skipbar); extra_pre[cb] = 1
        print("  kv exchange barrier chunk", cb)
        e = S.spread(t_kv_pub(), bb(cb), min(bb(cb) + cfg.a_pub, sl0), "kv_pub")
        S.put(e, stamp("kvi"))
        if not cfg.h1first:
            b0 = e + 1
            e = S.spread(h1, b0, min(b0 + cfg.a_h1, sl0 + 4), "hepi1")
            S.put(after(e, cfg.fd), set_flag(1, "h1", vPW))
        so = "s_mov_b32 s%d, s%d" % (sT1, sH2)
        S.spread(t_corr(SET0, 1, 4, 48), sl0, sl0 + 1)
        b0 = max(e, sl0 + 2)
        e = S.spread(t_hepi(SET0, so, 0, "h2", 48), b0, b0 + cfg.a_h2, "hepi2")
        S.put(after(e, cfg.fd), set_flag(2, "h2", vPW))
        last_task = e
    else:
        so = "s_mov_b32 s%d, 0" % sT1
        e = S.spread(t_corr(SET0, 2, 0) + late + t_hepi(SET0, so, 0, None) + t_hepi(SET0 + 32, so, 2048, "h0"), sp(32), sp(32 + cfg.b_h0), "hepi0")
        S.put(after(e, cfg.fd), set_flag(1, "h0", WHD))
        S.spread(addr_wfull(WR3, 4, True, False, XR + 2), sp(52), sp(60))
        e = S.spread(t_corr(SET1, 2, 2) + t_hepi(SET1, so2, 0, None) + t_hepi(SET1 + 32, so2, 2048, "h1"), sp(64), sp(64 + cfg.h1), "hepi1")
        S.put(after(e, cfg.fd), set_flag(2, "h1", WHD))
        att = t_corr(SET0, 1, 4) + [Gap(1)] + t_att_q()
        ri, rc = t_kv_red()
        li, lc = t_kv_load()
        e = S.spread(att, sl0, sl0 + cfg.b_att, "att_q")
        S.spread(ri, sl0 + cfg.b_ri, sl0 + cfg.b_ri + 2)
        S.put(sl0 + cfg.b_rc, stamp("kr0") + rc + stamp("kr1"))
        S.spread(li, sl0 + cfg.b_li, sl0 + cfg.b_li + 4)
        assert e <= sl0 + cfg.b_lc
        S.put(sl0 + cfg.b_lc, stamp("kp0") + lc + stamp("kp1"))
        e = S.spread(t_o(), sl0 + cfg.b_lc, sl0 + cfg.b_lc + cfg.b_o, "o")
        S.put(after(e, cfg.fd), set_flag(3, "ost", WHD))
        last_task = e
    place_barriers()
    first = [0, 8, 16, 24, 28, 36]
    hl = cfg.hlA if A else cfg.hlB
    for c in range(5):
        iss, chk = class_poll(c, (WGD, WR2)[c & 1], WGD + 1)
        pos = [sp(64 + cfg.p0) + i * cfg.hstep0 if c == 0 else sl0 + hl[first[c] + i] for i in range(first[c + 1] - first[c])]
        S.put(pos[0] - cfg.poll_lead[c], iss)
        S.put(pos[0], stamp("cp%d_0" % c) + chk + stamp("cp%d_1" % c))
        for i, b in enumerate(pos):
            n = first[c] + i
            if b < sl0: assert b >= sp(64 + n + 1)
            assert b < sl_beat[n], (c, n)
            S.put(b, h_load(n))
    RES = TMP
    rb_ = max(last_task + 2, sl_beat[24])
    S.put(rb_, L("""
    s_lshl_b32 s{t0}, s{tt}, 2
    s_add_u32 s{t0}, s{t0}, s{wv}
    s_lshl_b32 s{t0}, s{t0}, 14
    s_lshl_b32 s{t1}, s{ct}, 7
    s_add_u32 s{t0}, s{t0}, s{t1}
    v_lshrrev_b32 v{a}, 3, v{L}
    v_lshlrev_b32 v{a}, 10, v{a}
    v_and_b32 v{b}, 7, v{L}
    v_lshl_add_u32 v{a}, v{b}, 4, v{a}
    v_add_u32 v{o}, s{t0}, v{a}
    """.format(t0=sT0, t1=sT1, tt=sTT, wv=sWV, ct=sCT, a=TMP + 8, b=TMP + 9, o=WQD - 1, L=vL)))
    vOUT = WQD - 1
    S.put(rb_ + 1, L("s_mov_b32 s%d, 8192\nbuffer_load_dwordx4 %s, v%d, %s, 0 offen\nbuffer_load_dwordx4 %s, v%d, %s, s%d offen" % (sT1, vr(RES, 4), vOUT, srd(SX), vr(RES + 4, 4), vOUT, srd(SX), sT1)))
    S.spread(L("""
    v_bfe_u32 v8, v{L}, 3, 2
    v_mul_u32_u24 v8, {P}, v8
    v_and_b32 v9, 7, v{L}
    v_lshl_add_u32 v8, v9, 8, v8
    v_add_u32 v8, s{l2k}, v8
    v_lshrrev_b32 v10, 5, v{L}
    v_xor_b32 v10, v10, v9
    v_lshl_add_u32 v0, v10, 4, v8
    v_xor_b32 v11, 2, v10
    v_lshl_add_u32 v1, v11, 4, v8
    v_xor_b32 v11, 4, v10
    v_lshl_add_u32 v2, v11, 4, v8
    v_xor_b32 v11, 6, v10
    v_lshl_add_u32 v3, v11, 4, v8
    v_lshrrev_b32 v8, 3, v{L}
    v_and_b32 v10, 3, v{L}
    v_lshlrev_b32 v10, 1, v10
    v_xor_b32 v10, v10, v8
    v_bfe_u32 v11, v{L}, 2, 1
    v_lshlrev_b32 v11, 7, v11
    v_lshl_add_u32 v11, v8, 8, v11
    v_mov_b32 v9, s{wv}
    v_mul_u32_u24 v9, {P2}, v9
    v_add_u32 v11, v11, v9
    v_lshl_add_u32 v4, v10, 4, v11
    v_xor_b32 v10, 1, v10
    v_lshl_add_u32 v5, v10, 4, v11
    """.format(L=vL, P=PITCH, P2=2 * PITCH, l2k=sL2K, wv=sWV)), rb_ + 2, rb_ + 14)
    if cfg.stamps == 2:
        pts = [("b%d" % cc, bb(cc)) for cc in range(24)] + [("s%d" % n, sl_beat[n]) for n in range(0, 37) if n not in (34, 35)]
        prev = ("iss", 0)
        for k, (nm, b) in enumerate(pts):
            for x in (prev[0], nm):
                if x not in stamp_names: stamp_names.append(x)
            cur = sST + 2 * ((k + 1) & 1); old = sST + 2 * (k & 1)
            rd = I("v_writelane_b32 v%d, s%d, %d" % (vSTAMP, old, stamp_names.index(prev[0]) + 2))
            mt = I("s_memtime s[%d:%d]" % (cur, cur + 1))
            if nm[0] == "b" and int(nm[1:]) not in cfg.skipbar:
                pre = S.beats[b]["pre"]; pre.insert(len(pre) - 1, rd); pre.append(mt)
            else: S.beats[b]["pre"] = [rd, mt] + S.beats[b]["pre"]
            prev = (nm, b)
        last_stamp = I("v_writelane_b32 v%d, s%d, %d" % (vSTAMP, cur, stamp_names.index(prev[0]) + 2))
    if cfg.stamps == 3:
        lane = 2
        fine = []
        for cc in range(cfg.fine0, cfg.fine0 + 8):
            b0_, b1_ = bb(cc), bb(cc + 1)
            pts = [b0_ + (b1_ - b0_) * k // 7 for k in range(7)]
            rd = []
            for k, b in enumerate(pts):
                pr = (40, 42, 86, 88, 90, 98, 100, 24)[k]
                mt = I("s_memtime s[%d:%d]" % (pr, pr + 1))
                S.beats[b]["pre"].append(mt)
                rd.append(I("v_writelane_b32 v%d, s%d, %d" % (vSTAMP, pr, lane))); lane += 1
                fine.append(mt)
            pre = S.beats[b1_]["pre"]
            k = [i for i, x in enumerate(pre) if getattr(x, "kind", "") == "barrier"][0]
            S.beats[b1_]["pre"] = pre[:k] + rd + pre[k:]
        if "f0" not in stamp_names: stamp_names.extend("f%d" % k for k in range(56))
    if cfg.stamps == True:
        for nm, b in (("p1", sp(32)), ("p2", sp(64)), ("p3", sl_beat[0]), ("s8", sl_beat[8]), ("s16", sl_beat[16]), ("s20", sl_beat[20]), ("s28", sl_beat[28]), ("s36", sl_beat[36]),
                      ("c1", sp(4)), ("c2", sp(8)), ("c4", sp(16))):
            S.put(b, stamp(nm), pre=True)

    pro = entry_x(item_dma)
    n_common = len(pro)
    if A:
        pro += L("s_lshl_b32 s{t0}, s{i}, 7\ns_add_u32 s{t0}, s{t0}, 1024".format(t0=sT0, i=sI))
        pro += wdma_addr(WQD, 3072, sT0)
    else:
        pro += L("s_mul_i32 s{t0}, s{q}, 896\ns_lshl_b32 s{t1}, s{ab}, 7\ns_add_u32 s{t0}, s{t0}, s{t1}".format(t0=sT0, t1=sT1, q=sQ, ab=sAB))
        pro += wdma_addr(WGD, 3584, sT0)
    pro += flat(item_dma(("w", 0, 0))) + stamp("iw0")
    pro += entry_rest()
    order = cfg.order if A or not cfg.orderB else cfg.orderB
    for k, w in enumerate(order):
        if w in "123": pro += flat(item_dma(("x", int(w)))) + flat(item_dma(("w", 0, int(w))))
        elif w == "p": pro += p1_touch(112)
        elif w == "g": pro += w_touch([(SG, 14), (SU, 14), (SQ, 12)], 102)
        elif w == "d": pro += w_touch([(SD, 14), (SO, 4)], 108)
        elif w == "r": pro += L("".join(rot_regs(c) for c in range(cfg.npro, 8)))
        elif w == "i": pro += b_index()
        elif w == "P": pro += b_touch1(104)
        elif w == "G": pro += b_touch2(120, 2, 4)
        elif w == "u": pro += p3_touch(116)
        elif w == "t": pro += tlb_touch(120)
        elif w == "f": pro += wphi_setup(A)
        elif w == "c": pro += code_touch()
        elif w == "C": pro += code_touch(typ)
        elif w == "s": pro += early_setup() + flat(addr_wfull(WR1, 2, A, A))
        elif w == "j": pro += [I("s_branch L_main%s" % typ), I("L_main%s:" % typ)]
    assert cfg.npro == 1 + sum(w in "123" for w in order)
    pro += stamp("iss")
    if cfg.stamps == 2: pro += [I("s_memtime s[%d:%d]" % (sST, sST + 1))]
    pro += [Wait("x0"), Wait("w0_0"), I("s_barrier")]
    pro += stamp("data")
    pro += x_reads(0) + w_reads(0, 0) + w_reads(0, 1)

    tail = []
    for tb in range(2):
        for cb in range(2):
            for r4 in range(4):
                tail += L("ds_write_b128 v%d, %s offset:%d" % (r4, vr(ACC2[2 * cb + tb] + 4 * r4, 4), 128 * cb + 4 * PITCH * tb))
    tail += [Wait("lgkm0"), I("s_barrier")]
    for i in range(2):
        for e in range(2):
            for w in range(4):
                tail += L("ds_read_b128 %s, v%d offset:%d" % (vr(16 + 32 * i + 16 * e + 4 * w, 4), 4 + e, 2048 * w + PITCH * i))
    for i in range(2):
        for e in range(2):
            b = 16 + 32 * i + 16 * e
            for j in range(4):
                x = RES + 4 * i + 2 * e + j // 2
                tail += L("v_add_f32 v%d, v%d, v%d\nv_add_f32 v%d, v%d, v%d" % (b + j, b + j, b + 4 + j, b + 8 + j, b + 8 + j, b + 12 + j))
                tail += L(("v_and_b32 v%d, 0xffff0000, v%d" if j & 1 else "v_lshlrev_b32 v%d, 16, v%d") % (b + 4 + j, x))
                tail += L("v_add_f32 v%d, v%d, v%d\nv_add_f32 v%d, v%d, v%d" % (b + j, b + j, b + 8 + j, b + j, b + j, b + 4 + j))
            tail += L("v_cvt_pk_bf16_f32 v%d, v%d, v%d\nv_cvt_pk_bf16_f32 v%d, v%d, v%d" % (8 + 4 * i + 2 * e, b, b + 1, 9 + 4 * i + 2 * e, b + 2, b + 3))
        tail += L("s_mov_b32 s%d, %d\nbuffer_store_dwordx4 %s, v%d, %s, s%d offen" % (sT1, 8192 * i, vr(8 + 4 * i, 4), vOUT, srd(SOUT), sT1) + " sc1")
    if cfg.stamps:
        tail += stamp("end")
        if cfg.stamps == 4: tail += [I("s_memtime s[%d:%d]" % (sST, sST + 1)), I("v_writelane_b32 v%d, s%d, 2" % (vSTAMP, sST))]
        if cfg.stamps == 2:
            if "end" not in stamp_names: stamp_names.append("end")
            tail += [last_stamp, I("s_memtime s[%d:%d]" % (sST, sST + 1)), I("v_writelane_b32 v%d, s%d, %d" % (vSTAMP, sST, stamp_names.index("end") + 2))]
        tail += L("""
        s_memrealtime s[{a}:{b}]
        v_writelane_b32 v{st}, s{a}, 1
        s_lshl_b32 s{t0}, s2, 2
        s_add_u32 s{t0}, s{t0}, s{wv}
        s_lshl_b32 s{t0}, s{t0}, 8
        s_add_u32 s{t0}, s{t0}, {o}
        v_lshl_add_u32 v0, v{L}, 2, s{t0}
        buffer_store_dword v{st}, v0, {sr}, 0 offen
        """.format(a=sST, b=sST + 1, st=vSTAMP, t0=sT0, wv=sWV, o=WS_ST, L=vL, sr=srd(SW)))
    if cfg.dbgout:
        ix = lambda n: stamp_names.index(n) + 2
        t = """
        v_readlane_b32 s56, v{st}, 0
        v_readlane_b32 s57, v{st}, 1
        v_readlane_b32 s58, v{st}, {iss}
        s_nop 4
        v_mov_b32 v2, {oob}
        v_mov_b32 v1, 0
        v_writelane_b32 v2, 32, 0
        v_writelane_b32 v2, 40, 1
        v_writelane_b32 v2, 36, 2
        v_writelane_b32 v1, s57, 0
        v_writelane_b32 v1, s56, 1
        s_not_b32 s59, s56
        v_writelane_b32 v1, s59, 2
        buffer_atomic_umax v1, v2, {sd}, 0 offen
        s_sub_u32 s57, s57, s56
        v_mov_b32 v3, 0
        v_writelane_b32 v3, s57, 0
        """.format(st=vSTAMP, iss=ix("iss"), oob=OOB, sd=srd(SDBG))
        for k, nm in enumerate(("b0", "b3", "b7", "b15", "s0", "s28", "end")):
            t += "v_readlane_b32 s59, v%d, %d\ns_nop 4\ns_sub_u32 s59, s59, s58\nv_writelane_b32 v3, s59, %d\n" % (vSTAMP, ix(nm), k + 1)
        t += """
        v_lshlrev_b32 v2, 2, v{L}
        v_mov_b32 v4, {oob}
        v_cmp_gt_u32 vcc, 8, v{L}
        v_cndmask_b32 v2, v4, v2, vcc
        s_or_b32 s59, s2, s{wv}
        s_cmp_eq_u32 s59, 0
        s_cselect_b32 s59, 0, {oob}
        buffer_store_dword v3, v2, {sd}, s59 offen
        """.format(L=vL, oob=OOB, wv=sWV, sd=srd(SDBG))
        tail += L(t)
    if cfg.padto:
        tail.append(Raw(["v_readlane_b32 s56, v%d, 0" % vSTAMP, "L_pad%s:" % typ, "s_memrealtime s[58:59]", "s_waitcnt lgkmcnt(0)", "s_sub_u32 s58, s58, s56",
                         "s_cmp_lt_u32 s58, %d" % cfg.padto, "s_cbranch_scc1 L_pad%s" % typ]))
    tail += L("s_endpgm")
    est = sum(max(bt["period"], S.load(i)) for i, bt in enumerate(S.beats[:sl_beat[0]]))
    print("  P1 issue-model cycles:", est, " P2:", sum(max(32, S.load(i)) for i in range(sl_beat[0], sl_beat[36])))
    return n_common, pro + S.flat() + tail

def code_touch(typ=None):
    ins = L("""
    s_getpc_b64 s[{a}:{b}]
    {far}
    s_bfe_u32 s{t0}, s2, 0x40003
    s_lshl_b32 s{t0}, s{t0}, 2
    s_add_u32 s{t0}, s{t0}, s{wv}
    s_lshl_b32 s{t0}, s{t0}, 9
    v_and_b32 v{x}, 3, v{L}
    v_lshl_add_u32 v{x}, v{x}, 7, s{t0}
    v_min_u32 v{x}, {lim}, v{x}
    global_load_dword v{y}, v{x}, s[{a}:{b}]
    """.format(a=sM1, b=sM1 + 1, t0=sT0, wv=sWV, x=100, y=101, L=vL, lim=cfg.code_lim,
               far=("L_pc%s:\ns_add_u32 s%d, s%d, L_main%s-L_pc%s\ns_addc_u32 s%d, s%d, 0" % (typ, sM1, sM1, typ, typ, sM1 + 1, sM1 + 1)) if typ else ""))
    return ins

def w_touch(which, d0):
    s = "s_lshl_b32 s{t0}, s2, 2\ns_add_u32 s{t0}, s{t0}, s{wv}\n".format(t0=sT0, wv=sWV)
    last = None
    for k, (sr, n) in enumerate(which):
        if n != last:
            s += "s_mul_i32 s{t1}, s{t0}, {b}\nv_min_u32 v{a}, {m}, v{L}\nv_lshl_add_u32 v{a}, v{a}, 7, s{t1}\n".format(t0=sT0, t1=sT1, b=128 * n, a=d0, m=n - 1, L=vL)
            last = n
        s += "buffer_load_dword v%d, v%d, %s, 0 offen\n" % (d0 + 1 + k, d0, srd(sr))
    return L(s)

def tlb_touch(d0):
    s = "v_and_b32 v{a}, 15, v{L}\nv_lshlrev_b32 v{a}, 20, v{a}\nv_add_u32 v{a}, 0x7ff00, v{a}\n".format(a=d0, L=vL)
    for k, sr in enumerate((SD, SO, SW, SOUT, SG, SU, SQ)):
        s += "buffer_load_dword v%d, v%d, %s, 0 offen\n" % (d0 + 1 + k, d0, srd(sr))
    return L(s)

def p3_touch(d0):
    return L("""
    s_lshl_b32 s{t0}, s2, 2
    s_add_u32 s{t0}, s{t0}, s{wv}
    s_lshr_b32 s{t1}, s{t0}, 1
    s_and_b32 s{t0}, s{t0}, 1
    v_and_b32 v{b}, 3, v{L}
    v_lshl_add_u32 v{b}, s{t0}, 2, v{b}
    v_and_b32 v{c}, 1, v{L}
    v_lshl_add_u32 v{c}, s{t0}, 1, v{c}
    s_mul_i32 s{t0}, s{t1}, 3072
    v_lshl_add_u32 v{b}, v{b}, 7, s{t0}
    buffer_load_dword v{b}, v{b}, {q}, 0 offen
    s_mul_i32 s{t0}, s{t1}, 3584
    s_add_u32 s{t0}, s{t0}, 768
    v_mul_u32_u24 v{c}, 896, v{c}
    v_add_u32 v{c}, s{t0}, v{c}
    buffer_load_dword v{r2}, v{c}, {g}, 0 offen
    buffer_load_dword v{c}, v{c}, {u}, 0 offen
    """.format(t0=sT0, t1=sT1, wv=sWV, L=vL, b=d0, c=d0 + 1, r2=d0 + 2, q=srd(SQ), g=srd(SG), u=srd(SU)))

sWB = sH2
def b_index():
    return L("""
    s_and_b32 s{t0}, s2, 7
    s_lshl_b32 s{t0}, s{t0}, 4
    s_bfe_u32 s{t1}, s2, 0x40003
    s_add_u32 s{t0}, s{t0}, s{t1}
    s_lshl_b32 s{t0}, s{t0}, 2
    s_add_u32 s{w}, s{t0}, s{wv}
    """.format(t0=sT0, t1=sT1, w=sWB, wv=sWV))

def b_touch1(d0):
    a, b, c = d0, d0 + 1, d0 + 2
    ins = L("""
    v_bfe_u32 v{a}, v{L}, 1, 2
    v_lshlrev_b32 v{a}, 10, v{a}
    v_and_b32 v{c}, 1, v{L}
    v_lshl_add_u32 v{a}, v{c}, 7, v{a}
    s_lshl_b32 s{t0}, s{w}, 12
    v_add_u32 v{a}, s{t0}, v{a}
    s_lshr_b32 s{t0}, s{w}, 2
    s_and_b32 s{t1}, s{w}, 3
    v_and_b32 v{b}, 3, v{L}
    v_lshl_add_u32 v{b}, s{t1}, 2, v{b}
    s_mul_i32 s{t1}, s{t1}, 896
    v_lshl_add_u32 v{c}, v{c}, 7, s{t1}
    s_mul_i32 s{t1}, s{t0}, 3072
    s_add_u32 s{t1}, s{t1}, 1024
    v_lshl_add_u32 v{b}, v{b}, 7, s{t1}
    s_mul_i32 s{t1}, s{t0}, 3584
    v_add_u32 v{c}, s{t1}, v{c}
    """.format(a=a, b=b, c=c, L=vL, t0=sT0, t1=sT1, w=sWB))
    r = d0 + 3
    for g in range(1, 4):
        ins += L("buffer_load_dword v%d, v%d, %s, 0 offen offset:%d" % (r, a, srd(SX), 256 * g)); r += 1
        ins += L("s_mov_b32 s%d, %d\nbuffer_load_dword v%d, v%d, %s, s%d offen" % (sT0, 128 * 3072 * g, r, b, srd(SQ), sT0)); r += 1
        ins += L("s_mov_b32 s%d, %d\nbuffer_load_dword v%d, v%d, %s, s%d offen\nbuffer_load_dword v%d, v%d, %s, s%d offen" % (sT0, 128 * 3584 * g, r, c, srd(SG), sT0, r + 1, c, srd(SU), sT0)); r += 2
    return ins

def b_touch2(d0, u0, nu):
    a, b = d0, d0 + 1
    return L("""
    v_and_b32 v{a}, 3, v{L}
    v_mul_u32_u24 v{a}, 896, v{a}
    v_lshrrev_b32 v{b}, 2, v{L}
    v_min_u32 v{b}, {m}, v{b}
    v_lshl_add_u32 v{a}, v{b}, 7, v{a}
    s_mul_i32 s{t0}, s{w}, 3584
    s_add_u32 s{t0}, s{t0}, {o}
    buffer_load_dword v{b}, v{a}, {g}, s{t0} offen
    buffer_load_dword v{a}, v{a}, {u}, s{t0} offen
    """.format(a=a, b=b, L=vL, m=nu - 1, t0=sT0, w=sWB, o=128 * u0, g=srd(SG), u=srd(SU)))

def b_touch3(d0):
    a = d0
    return L("""
    v_min_u32 v{a}, 7, v{L}
    v_lshlrev_b32 v{a}, 7, v{a}
    s_mul_i32 s{t0}, s{w}, 3072
    s_lshl_b32 s{t1}, s{w}, 10
    buffer_load_dword v{r0}, v{a}, {q}, s{t0} offen
    buffer_load_dword v{r1}, v{a}, {o}, s{t1} offen
    v_min_u32 v{a}, 27, v{L}
    v_lshlrev_b32 v{a}, 7, v{a}
    s_mul_i32 s{t0}, s{w}, 3584
    buffer_load_dword v{a}, v{a}, {d}, s{t0} offen
    """.format(a=a, r0=a + 1, r1=a + 2, L=vL, t0=sT0, t1=sT1, w=sWB, q=srd(SQ), o=srd(SO), d=srd(SD)))

def p1_touch(d0):
    return L("""
    s_lshl_b32 s{t0}, s2, 2
    s_add_u32 s{t0}, s{t0}, s{wv}
    s_lshl_b32 s{t1}, s{t0}, 11
    v_and_b32 v{a}, 15, v{L}
    v_lshl_add_u32 v{a}, v{a}, 7, s{t1}
    buffer_load_dword v{r0}, v{a}, {x}, 0 offen
    s_lshr_b32 s{t1}, s{t0}, 1
    s_and_b32 s{t0}, s{t0}, 1
    s_mul_i32 s{sp}, s{t1}, 3072
    s_lshl_b32 s{m}, s{t0}, 10
    s_add_u32 s{sp}, s{sp}, s{m}
    s_add_u32 s{sp}, s{sp}, 1024
    v_and_b32 v{b}, 7, v{L}
    v_lshl_add_u32 v{b}, v{b}, 7, s{sp}
    buffer_load_dword v{r1}, v{b}, {q}, 0 offen
    s_mul_i32 s{sp}, s{t1}, 3584
    s_mul_i32 s{m}, s{t0}, 1792
    s_add_u32 s{sp}, s{sp}, s{m}
    v_bfe_u32 v{c}, v{L}, 1, 1
    v_mul_u32_u24 v{c}, 896, v{c}
    v_and_b32 v{d}, 1, v{L}
    v_lshl_add_u32 v{c}, v{d}, 8, v{c}
    v_add_u32 v{c}, s{sp}, v{c}
    buffer_load_dword v{r2}, v{c}, {g}, 0 offen
    buffer_load_dword v{r3}, v{c}, {u}, 0 offen
    """.format(t0=sT0, t1=sT1, sp=sH2, m=sM2, wv=sWV, L=vL, a=d0, b=d0 + 1, c=d0 + 2, d=d0 + 3, r0=d0 + 4, r1=d0 + 5, r2=d0 + 6, r3=d0 + 7,
               x=srd(SX), q=srd(SQ), g=srd(SG), u=srd(SU)))

def w2_touch(t, n0, ns):
    sr, base, row = slice_src(n0)
    nr = 4 * ns
    return L("""
    s_and_b32 s{t0}, s{tt}, 3
    s_mul_i32 s{t1}, s{t0}, {a}
    s_mul_i32 s{t0}, s{wv}, {wb}
    s_add_u32 s{t1}, s{t1}, s{t0}
    s_lshl_b32 s{t0}, s{ct}, 7
    s_add_u32 s{t1}, s{t1}, s{t0}
    s_add_u32 s{t1}, s{t1}, {b}
    v_min_u32 v{x}, {m}, v{L}
    v_lshl_add_u32 v{x}, v{x}, 10, s{t1}
    buffer_load_dword v{x}, v{x}, {d}, 0 offen
    """.format(t0=sT0, t1=sT1, tt=sTT, ct=sCT, wv=sWV, wb=(448 if sr == SD else 128) * 1024, a=nr * 1024, b=row * 1024, x=t, m=nr - 1, L=vL, d=srd(sr)))

def flat(x):
    o = []
    for y in x: o += y if isinstance(y, list) else [y]
    return o

def groups(ins):
    out = []; cur = []
    tmp = {"s%d" % sT0, "s%d" % sT1, "vcc", "scc"}
    for k, x in enumerate(ins):
        cur.append(x)
        live = set()
        written = {r for y in ins[:k + 1] for r in y.wr} & tmp
        seen = set()
        for y in ins[k + 1:]:
            live |= (set(y.rd) & written) - seen
            seen |= set(y.wr)
        if not live: out.append(cur); cur = []
    if cur: out.append(cur)
    return out

def late_setup(A):
    ins = []
    if A:
        ins += L("s_mul_i32 s{t0}, s{q}, 896\ns_lshl_b32 s{t1}, s{ab}, 7\ns_add_u32 s{t0}, s{t0}, s{t1}\ns_add_u32 s{t0}, s{t0}, 512".format(t0=sT0, t1=sT1, q=sQ, ab=sAB))
        ins += wdma_addr(WGD, 3584, sT0)
    ins += clear_store(A) + common_setup() + flat(addr_cs(A))
    if A:
        ins += L("""
        v_lshrrev_b32 v{a}, 2, v{L}
        v_mul_u32_u24 v{a}, 3584, v{a}
        v_and_b32 v{b}, 3, v{L}
        v_lshl_add_u32 v{a}, v{b}, 4, v{a}
        s_mul_i32 s{t0}, s{q}, 896
        s_lshl_b32 s{t1}, s{ab}, 6
        s_add_u32 s{t0}, s{t0}, s{t1}
        s_add_u32 s{t0}, s{t0}, 768
        s_mul_i32 s{t1}, s{wv}, {w}
        s_add_u32 s{t0}, s{t0}, s{t1}
        v_add_u32 v{d}, s{t0}, v{a}
        s_lshl_b32 s{t0}, s{ab}, 1
        s_add_u32 s{t0}, s{t0}, s{gr}
        s_sub_u32 s{h2}, 24, s{t0}
        s_lshl_b32 s{h2}, s{h2}, 11
        """.format(t0=sT0, t1=sT1, q=sQ, ab=sAB, wv=sWV, gr=sGR, w=16 * 3584, a=TMP, b=TMP + 1, d=WHD, L=vL, h2=sH2))
        ins += att_setup()
    else:
        ins += L("s_lshl_b32 s{t0}, s{i}, 7".format(t0=sT0, i=sI))
        ins += wdma_addr(WQD, 3072, sT0)
        ins += o_setup()
    defines(ins, FLG=vFLG, HST=vHST, W2D=(W2D, W2D + 1), Z=(CA + 2, CA + 3), HSA=KVD)
    if A: defines(ins, WHD=WHD, KVA=vKVA, PW=vPW, PR=vPR, VW=vVW, VR0=vVR0, VR1=vVR1)
    else: defines(ins, KRL=vKRL, KRS=vKRS, KVL=vKVL)
    return groups(ins)

def wdma_addr(dst, stride, scol):
    return defines(L("""
    s_mul_i32 s{t1}, s{wv}, {w}
    s_add_u32 s{t1}, s{t1}, s{c}
    v_lshrrev_b32 v{a}, 3, v{L}
    v_mul_u32_u24 v{a}, {st}, v{a}
    v_bfe_u32 v{b}, v{L}, 4, 1
    v_lshlrev_b32 v{b}, 2, v{b}
    v_xor_b32 v{b}, v{b}, v{L}
    v_and_b32 v{b}, 7, v{b}
    v_lshl_add_u32 v{a}, v{b}, 4, v{a}
    v_add_u32 v{d}, s{t1}, v{a}
    v_add_u32 v{d1}, {nx}, v{d}
    """.format(t1=sT1, wv=sWV, w=16 * stride, c=scol, a=TMP, b=TMP + 1, L=vL, st=stride, d=dst, d1=dst + 1, nx=8 * stride - 1024)), **{'WQD' if dst == WQD else 'WGD': (dst, dst + 1)})

def clear_store(A):
    z = TMP + 4
    s = """
    s_lshl_b32 s{t0}, s{rb}, 1
    s_add_u32 s{t0}, s{t0}, s{th}
    s_lshl_b32 s{t1}, s{t0}, 2
    s_add_u32 s{t1}, s{t1}, s{q}
    s_lshl_b32 s{t1}, s{t1}, 4
    s_add_u32 s{t1}, s{t1}, s{t4}
    s_lshl_b32 s{t1}, s{t1}, 1
    s_add_u32 s{t1}, s{t1}, s{gr}
    s_lshl_b32 s{t1}, s{t1}, 2
    s_add_u32 s{t1}, s{t1}, {fl}
    v_mov_b32 v{f}, {oob}
    v_writelane_b32 v{f}, s{t1}, 0
    v_mov_b32 v{z}, 0
    buffer_store_dword v{z}, v{f}, {sr}, 0 offen sc1
    s_lshl_b32 s{t0}, s{i}, 2
    s_lshl_b32 s{t1}, s{gr}, 1
    s_add_u32 s{t0}, s{t0}, s{t1}
    s_add_u32 s{t0}, s{t0}, s{th}
    """.format(t0=sT0, t1=sT1, rb=sRB, th=sTH, q=sQ, t4=sT4, gr=sGR, fl=WS_FL, f=vFLG, oob=OOB, z=z, sr=srd(SW), i=sI)
    if A:
        s += """
        s_lshl_b32 s{t0}, s{t0}, 4
        s_add_u32 s{t0}, s{t0}, s{rb}
        s_mul_i32 s{t0}, s{t0}, 2176
        s_add_u32 s{t0}, s{t0}, {kvp}
        """.format(t0=sT0, rb=sRB, kvp=WS_KVP) + kv_lane(vKVA, True)
        for j in range(4): s += "v_mov_b32 v%d, -1\n" % (z + j)
        ins = L(s)
        for j in range(4): ins += L("buffer_store_dwordx4 %s, v%d, %s, 0 offen offset:%d sc1" % (vr(z, 4), vKVA, srd(SW), 544 * j), tag="clr" if j == 3 else None)
        return ins
    s += """
    s_mul_i32 s{t1}, s{t0}, 34816
    s_mul_i32 s{t0}, s{t0}, 2176
    s_add_u32 s{t0}, s{t0}, {kvf}
    s_add_u32 s{t1}, s{t1}, {kvp}
    v_and_b32 v{a}, 15, v{L}
    v_lshl_add_u32 v{a}, s{rb}, 4, v{a}
    v_cmp_gt_u32 vcc, 0x88, v{a}
    v_lshlrev_b32 v{a}, 4, v{a}
    v_mov_b32 v{b}, {oob}
    v_cndmask_b32 v{a}, v{b}, v{a}, vcc
    v_lshrrev_b32 v{b}, 4, v{L}
    v_lshl_add_u32 v{rs}, v{b}, 2, v{a}
    v_add_u32 v{rs}, s{t0}, v{rs}
    v_mul_u32_u24 v{b}, 2176, v{b}
    v_add3_u32 v{rl}, v{b}, v{a}, s{t1}
    v_mov_b32 v{z}, -1
    """.format(t0=sT0, t1=sT1, rb=sRB, kvf=WS_KVF, kvp=WS_KVP, a=TMP, b=TMP + 1, L=vL, rs=vKRS, rl=vKRL, z=z + 1, oob=OOB)
    return L(s) + L("buffer_store_dword v%d, v%d, %s, 0 offen sc1" % (z + 1, vKRS, srd(SW)), tag="clr")

def kv_lane(dst, mask):
    a, b, c = TMP, TMP + 1, TMP + 2
    s = """
    v_and_b32 v{a}, 31, v{L}
    v_lshrrev_b32 v{b}, 5, v{L}
    v_lshl_add_u32 v{c}, v{b}, 4, v{a}
    v_add_u32 v{b}, 32, v{b}
    v_cmp_gt_u32 vcc, 16, v{a}
    v_cndmask_b32 v{c}, v{b}, v{c}, vcc
    v_lshl_add_u32 v{d}, v{c}, 4, s{t0}
    """.format(a=a, b=b, c=c, L=vL, d=dst, t0=sT0)
    if mask: s += "v_mov_b32 v{b}, {oob}\nv_cmp_gt_u32 vcc, 17, v{a}\nv_cndmask_b32 v{d}, v{b}, v{d}, vcc\n".format(a=a, b=b, d=dst, oob=OOB)
    return s

def early_setup():
    a, b, c = TMP, TMP + 1, TMP + 2
    s = """
    v_lshrrev_b32 v{a}, 5, v{L}
    v_bfe_u32 v{b}, v{L}, 1, 3
    v_xor_b32 v{a}, v{a}, v{b}
    v_lshlrev_b32 v{a}, 4, v{a}
    v_and_b32 v{b}, 31, v{L}
    v_lshl_add_u32 v{a}, v{b}, 7, v{a}
    s_lshl_b32 s{t0}, s{s}, 6
    v_xor_b32 v{a}, s{t0}, v{a}
    s_mul_i32 s{t1}, s{th}, {P}
    v_add_u32 v{x0}, s{t1}, v{a}
    v_xor_b32 v{b}, 32, v{a}
    v_add_u32 v{x1}, s{t1}, v{b}
    v_xor_b32 v{b}, 64, v{a}
    v_add_u32 v{x2}, s{t1}, v{b}
    v_xor_b32 v{b}, 0x60, v{a}
    v_add_u32 v{x3}, s{t1}, v{b}
    v_and_b32 v{a}, 31, v{L}
    v_mov_b32 v{b}, 0x3f803f80
    v_cmp_eq_u32 vcc, 0, v{a}
    v_cndmask_b32 v{s0}, 0, v{b}, vcc
    v_cmp_eq_u32 vcc, 20, v{a}
    v_cndmask_b32 v{s0}, v{s0}, v{b}, vcc
    v_cmp_eq_u32 vcc, 8, v{a}
    v_cndmask_b32 v{s2}, 0, v{b}, vcc
    v_cmp_eq_u32 vcc, 28, v{a}
    v_cndmask_b32 v{s2}, v{s2}, v{b}, vcc
    """.format(a=a, b=b, L=vL, t0=sT0, t1=sT1, s=sS, th=sTH, P=PITCH, x0=XR, x1=XR + 1, x2=XR + 2, x3=XR + 3, s0=SEL01, s2=SEL23)
    for j in range(1, 4): s += "v_mov_b32 v%d, v%d\nv_mov_b32 v%d, v%d\n" % (SEL01 + j, SEL01, SEL23 + j, SEL23)
    return defines(L(s), XR=range(XR, XR + 4))

def common_setup():
    a, b, c = TMP, TMP + 1, TMP + 2
    s = "s_mov_b32 s%d, 0\ns_mov_b32 s%d, -1\nv_mov_b32 v%d, 0\nv_mov_b32 v%d, 0\n" % (sMH, sMH + 1, CA + 2, CA + 3)
    s += """
    v_and_b32 v{a}, 3, v{L}
    v_cmp_eq_u32 s[{m1}:{m1b}], 1, v{a}
    v_cmp_eq_u32 s[{m2}:{m2b}], 2, v{a}
    v_cmp_eq_u32 s[{m3}:{m3b}], 3, v{a}
    v_and_b32 v{a}, 4, v{L}
    v_cmp_eq_u32 s[{mb}:{mbb}], 4, v{a}
    s_mul_i32 s{wd}, s{wv}, {wdv}
    s_lshl_b32 s{wo}, s{wv}, 17
    s_mov_b32 s{c2}, 0x3b000000
    """.format(a=a, L=vL, m1=sM1, m1b=sM1 + 1, m2=sM2, m2b=sM2 + 1, m3=sM3, m3b=sM3 + 1, mb=sMB, mbb=sMB + 1,
               wd=sWDB, wo=sWOB, wv=sWV, wdv=448 * 1024, c2=sC2)
    s += """
    s_lshl_b32 s{t0}, s{rb}, 1
    s_add_u32 s{t0}, s{t0}, s{th}
    s_mul_i32 s{t0}, s{t0}, 144
    s_mul_i32 s{t1}, s{q}, 36
    s_add_u32 s{t0}, s{t0}, s{t1}
    s_lshl_b32 s{t1}, s{ab}, 2
    s_add_u32 s{t0}, s{t0}, s{t1}
    s_lshl_b32 s{t1}, s{gr}, 1
    s_add_u32 s{t0}, s{t0}, s{t1}
    s_lshl_b32 s{t0}, s{t0}, 11
    v_lshl_add_u32 v{h}, v{L}, 4, s{t0}
    v_lshrrev_b32 v{a}, 3, v{L}
    v_lshlrev_b32 v{a}, 10, v{a}
    v_bfe_u32 v{b}, v{L}, 4, 1
    v_lshlrev_b32 v{b}, 2, v{b}
    v_xor_b32 v{b}, v{b}, v{L}
    v_and_b32 v{b}, 7, v{b}
    v_lshl_add_u32 v{a}, v{b}, 4, v{a}
    s_lshl_b32 s{t0}, s{ct}, 7
    v_add_u32 v{w}, s{t0}, v{a}
    v_add_u32 v{w1}, 7168, v{w}
    s_and_b32 s{t0}, s2, {hm}
    s_lshl_b32 s{t0}, s{t0}, 2
    s_add_u32 s{t0}, s{t0}, {ho}
    s_cmp_eq_u32 s{wv}, 0
    s_cselect_b32 s{t0}, s{t0}, {oob}
    v_mov_b32 v{hs}, {oob}
    v_writelane_b32 v{hs}, s{t0}, 0
    """.format(t0=sT0, t1=sT1, rb=sRB, th=sTH, q=sQ, ab=sAB, gr=sGR, h=vHST, L=vL, a=a, b=b, ct=sCT, w=W2D, w1=W2D + 1, wv=sWV, oob=OOB, hs=KVD, hm=31 if cfg.dbgout else 63, ho=64 if cfg.dbgout else 0)
    return L(s)

def att_setup():
    a, b, c = TMP, TMP + 1, TMP + 2
    s = """
    s_mul_i32 s{t0}, s{wv}, {wsz}
    s_add_u32 s{t0}, s{t0}, {wreg}
    v_and_b32 v{a}, 31, v{L}
    v_lshrrev_b32 v{b}, 5, v{L}
    v_mul_u32_u24 v{c}, 72, v{a}
    v_lshl_add_u32 v{c}, v{b}, 3, v{c}
    v_add_u32 v{pw}, s{t0}, v{c}
    v_mul_u32_u24 v{c}, 104, v{a}
    v_lshl_add_u32 v{c}, v{b}, 3, v{c}
    s_add_u32 s{t1}, s{t0}, {voff}
    v_add_u32 v{vw}, s{t1}, v{c}
    v_lshl_add_u32 v{c}, v{b}, 3, v{vw}
    v_mov_b32 v{o0}, 0x3f803f80
    v_mov_b32 v{o1}, 0x3f803f80
    ds_write_b64 v{c}, v[{o0}:{o1}] offset:64
    ds_write_b64 v{c}, v[{o0}:{o1}] offset:72
    v_bfe_u32 v{a}, v{L}, 2, 2
    v_lshl_add_u32 v{a}, v{b}, 3, v{a}
    v_and_b32 v{b}, 3, v{L}
    v_mul_u32_u24 v{c}, 72, v{a}
    v_lshl_add_u32 v{c}, v{b}, 3, v{c}
    v_bfe_u32 v{o0}, v{L}, 4, 1
    v_lshl_add_u32 v{c}, v{o0}, 5, v{c}
    v_add_u32 v{pr}, s{t0}, v{c}
    v_mul_u32_u24 v{c}, 104, v{a}
    v_lshl_add_u32 v{c}, v{b}, 3, v{c}
    v_add_u32 v{c}, s{t1}, v{c}
    v_lshl_add_u32 v{v0}, v{o0}, 6, v{c}
    v_add_u32 v{o0}, 1, v{o0}
    v_lshl_add_u32 v{v1}, v{o0}, 5, v{c}
    """.format(t0=sT0, t1=sT1, wv=sWV, wsz=WREG_SZ, wreg=WREG, a=a, b=b, c=c, L=vL, pw=vPW, vw=vVW, voff=VOFF, o0=TMP + 8, o1=TMP + 9,
               pr=vPR, v0=vVR0, v1=vVR1, i=sI, gr=sGR, th=sTH)
    return L(s)

def o_setup():
    return L("""
    s_lshl_b32 s{t0}, s{i}, 1
    s_add_u32 s{t0}, s{t0}, s{gr}
    s_mul_i32 s{t0}, s{t0}, 4352
    s_add_u32 s{t0}, s{t0}, {kvf}
    """.format(t0=sT0, i=sI, gr=sGR, kvf=WS_KVF) + kv_lane(vKVL, False))

def wphi_setup(A):
    a, b = TMP, TMP + 1; t = 64 + 16
    s = """
    s_lshl_b32 s{t0}, s{i}, 2
    s_lshl_b32 s{t1}, s{gr}, 1
    s_add_u32 s{t0}, s{t0}, s{t1}
    s_lshl_b32 s{t0}, s{t0}, 9
    v_bfe_u32 v{a}, v{L}, 4, 1
    """.format(t0=sT0, t1=sT1, i=sI, gr=sGR, a=a, L=vL)
    if A: s += "v_xor_b32 v%d, s%d, v%d\n" % (a, sTH, a)
    s += """
    v_lshlrev_b32 v{a}, 9, v{a}
    v_lshrrev_b32 v{b}, 5, v{L}
    v_lshl_add_u32 v{a}, v{b}, 7, v{a}
    v_and_b32 v{b}, 15, v{L}
    v_lshl_add_u32 v{a}, v{b}, 1, v{a}
    v_add_u32 v{a}, s{t0}, v{a}
    """.format(a=a, b=b, L=vL, t0=sT0)
    for j in range(8):
        s += "buffer_load_ushort v%d, v%d, %s, 0 offen offset:%d\n" % (t + j, a, srd(SPHI), 32 * ((j & 3) + 8 * (j >> 2)))
    return L(s)

def wphi_finish():
    t = 64 + 16
    out = L("v_and_b32 v%d, 16, v%d\nv_cmp_eq_u32 vcc, 0, v%d" % (TMP + 8, vL, TMP + 8))
    g = []
    for j in range(4):
        g += L("v_lshl_or_b32 v{x}, v{y}, 16, v{x}\nv_cndmask_b32 v{a0}, 0, v{x}, vcc\nv_cndmask_b32 v{a1}, v{x}, 0, vcc".format(x=t + 2 * j, y=t + 2 * j + 1, a0=WPHI + j, a1=WPHI + 4 + j))
    return defines(out + g, WPHI=range(WPHI, WPHI + 8))

def rot_regs(c):
    if cfg.rot == "z":
        if c == 0: return "s_mov_b32 s%d, 0\ns_mov_b32 s%d, 0\ns_mov_b32 s%d, 0\n" % (sKX, sKQ, sKG)
        return "s_add_u32 s{t1}, s{r}, {c}\ns_sub_u32 s{t0}, s{t1}, 7\ns_cmp_gt_u32 s{t1}, 7\ns_cselect_b32 s{t1}, s{t0}, s{t1}\ns_lshl_b32 s{kx}, s{t1}, 7\ns_mul_i32 s{kq}, s{t1}, {a}\ns_mul_i32 s{kg}, s{t1}, {b}\n".format(
            r=sSPIN, t0=sT0, t1=sT1, c=c, kx=sKX + c, kq=sKQ + c, kg=sKG + c, a=64 * 3072, b=64 * 3584)
    return "s_add_u32 s{t1}, s{r}, {c}\ns_and_b32 s{t1}, s{t1}, 7\ns_lshl_b32 s{kx}, s{t1}, 7\ns_mul_i32 s{kq}, s{t1}, {a}\ns_mul_i32 s{kg}, s{t1}, {b}\n".format(
        r=sSPIN, t1=sT1, c=c, kx=sKX + c, kq=sKQ + c, kg=sKG + c, a=64 * 3072, b=64 * 3584)

def srd_consts(lst):
    return "".join("s_mov_b32 s%d, 0x%x\ns_mov_b32 s%d, 0x20000\n" % (reg + 2, sz, reg + 3) for reg, sz in lst)

def entry_x(item_dma):
    s = """
    s_cmp_ge_u32 s2, 256
    s_cbranch_scc1 L_exit
    """
    for reg, off in ((SX, 0), (SQ, 8), (SG, 40), (SU, 48), (SW, 80), (SPHI, 16), (SO, 24), (SD, 56), (SOUT, 64), (SDBG, 72)):
        s += "s_load_dwordx2 s[%d:%d], s[0:1], %d\n" % (reg, reg + 1, off)
    if cfg.stamps:
        s += "s_memrealtime s[%d:%d]\ns_memtime s[%d:%d]\nv_mov_b32 v%d, 0\n" % (sST, sST + 1, sST + 2, sST + 3, vSTAMP)
    s += """
    v_lshrrev_b32 v1, 6, v0
    v_and_b32 v{L}, 63, v0
    v_readfirstlane_b32 s{wv}, v1
    s_and_b32 s{xcd}, s2, 7
    s_lshr_b32 s{idx}, s2, 3
    s_and_b32 s{rb}, s{xcd}, 1
    s_lshl_b32 s{rb}, s{rb}, 3
    s_and_b32 s{t0}, s{idx}, 7
    s_add_u32 s{rb}, s{rb}, s{t0}
    s_lshr_b32 s{q}, s{xcd}, 1
    s_lshr_b32 s{t4}, s{idx}, 3
    s_and_b32 s{ab}, s{t4}, 1
    s_lshl_b32 s{i}, s{q}, 1
    s_add_u32 s{i}, s{i}, s{ab}
    {rotc}    s_and_b32 s{th}, s{wv}, 1
    s_lshr_b32 s{gr}, s{wv}, 1
    s_xor_b32 s{s}, s{th}, s{gr}
    s_lshl_b32 s{l2k}, s{wv}, 11
    s_mul_i32 s{lx}, s{gr}, {P}
    s_lshl_b32 s{t1}, s{th}, 12
    s_add_u32 s{lx}, s{lx}, s{t1}
    """.format(L=vL, wv=sWV, xcd=sXCD, idx=sIDX, rb=sRB, t0=sT0, t1=sT1, q=sQ, t4=sT4, ab=sAB, i=sI, th=sTH, gr=sGR, s=sS, l2k=sL2K, lx=sLX, P=PITCH,
               rotc=("s_lshl_b32 s%d, s%d, 1\ns_add_u32 s%d, s%d, s%d\ns_and_b32 s%d, s%d, %d\n" % (sT1, sT4, sSPIN, sT0, sT1, sSPIN, sSPIN, 7 if cfg.rot is True else int(cfg.rot))) if cfg.rot and cfg.rot != "z" else "")
    if cfg.rot: s += rot_regs(0)
    s += """
    s_lshl_b32 s{t0}, s{rb}, 2
    s_add_u32 s{t0}, s{t0}, s{wv}
    s_lshl_b32 s{t0}, s{t0}, 15
    v_lshrrev_b32 v2, 3, v{L}
    v_lshlrev_b32 v2, 10, v2
    v_add_u32 v2, s{t0}, v2
    v_lshrrev_b32 v3, 4, v{L}
    v_xor_b32 v3, v3, v{L}
    v_and_b32 v3, 7, v3
    v_lshl_add_u32 v{x0}, v3, 4, v2
    v_add_u32 v{x2}, {d2}, v{x0}
    v_xor_b32 v3, 4, v3
    v_lshl_add_u32 v{x1}, v3, 4, v2
    v_add_u32 v{x1}, 7168, v{x1}
    v_add_u32 v{x3}, {d2}, v{x1}
    """.format(t0=sT0, rb=sRB, wv=sWV, L=vL, x0=XD, x1=XD + 1, x2=XD + 2, x3=XD + 3, d2=2 * 7168)
    s += srd_consts(((SX, 0x200000), (SQ, 0x180000), (SG, 0x1C0000), (SU, 0x1C0000)))
    s += "s_waitcnt lgkmcnt(0)\n"
    if cfg.stamps: s += "v_writelane_b32 v%d, s%d, 0\nv_writelane_b32 v%d, s%d, 63\n" % (vSTAMP, sST, vSTAMP, sST + 2)
    ins = L(s)
    for x in ins:
        if x.kind == "smem": x.nowait = True
    defines(ins, XD=range(XD, XD + 4))
    ins += stamp("karg") + flat(item_dma(("x", 0)))
    ins += L("s_cmp_ge_u32 s%d, 2\ns_cbranch_scc1 L_proB" % sT4)
    return ins

def entry_rest():
    s = ""
    if cfg.rot == "z":
        s += """
        s_lshl_b32 s{t0}, s{q}, 1
        s_add_u32 s{t0}, s{t0}, s{t4}
        s_lshl_b32 s{t0}, s{t0}, 1
        s_add_u32 s{t0}, s{t0}, s{rb}
        s_mul_i32 s{t1}, s{t0}, 37
        s_lshr_b32 s{t1}, s{t1}, 8
        s_mul_i32 s{t1}, s{t1}, 7
        s_sub_u32 s{r}, s{t0}, s{t1}
        """.format(t0=sT0, t1=sT1, q=sQ, t4=sT4, rb=sRB, r=sSPIN)
    s += "".join(rot_regs(c) for c in range(1, cfg.npro)) if cfg.rot else ""
    s += """
    s_lshl_b32 s{l1k}, s{wv}, 10
    s_lshl_b32 s{tt}, s{xcd}, 2
    s_and_b32 s{t0}, s{idx}, 3
    s_add_u32 s{tt}, s{tt}, s{t0}
    s_lshr_b32 s{ct}, s{idx}, 2
    """.format(t0=sT0, wv=sWV, tt=sTT, xcd=sXCD, idx=sIDX, ct=sCT, l1k=sL1K)
    s += srd_consts(((SD, 0x1C0000), (SO, 0x80000), (SW, 0x10000000), (SOUT, 0x200000), (SDBG, 256), (SPHI, 16384)))
    return L(s)

def defaults():
    cfg.code_lim = 20480
    cfg.padto = 0; cfg.late_d = 0; cfg.orderB = None; cfg.pacewB = None; cfg.bt2 = 0; cfg.bt3 = 0; cfg.strict = False; cfg.skipbar = (); cfg.quiet = 0; cfg.p3t = 0; cfg.pacew = {8: 8}; cfg.wpfd = 0; cfg.npro = 2; cfg.pace0 = 8; cfg.pace = [8, 4, 4]; cfg.p2pace = 1; cfg.w2at = lambda m: (m - 16) * 27 // 19
    cfg.order = '1jrcsfdu'; cfg.rot = 'z'; cfg.wpf0 = None; cfg.wpf = 0; cfg.wpf1 = [(SD, 14), (SO, 4)]; cfg.codepf = 1; cfg.w2pf = [(40, 8, 4), (43, 12, 4), (46, 16, 4), (49, 20, 4), (52, 24, 4), (55, 28, 4), (58, 32, 4)]; cfg.rot2 = True; cfg.mix = True
    cfg.p2period = 72; cfg.rd_early = True; cfg.one_wait = True; cfg.setup_end = 14
    cfg.fd = 1100; cfg.h1first = 10; cfg.a_att = 27; cfg.a_h1 = 26; cfg.a_pub = 8; cfg.a_kvflag = 30; cfg.h1 = 18; cfg.a_h2 = 3
    cfg.b_h0 = 12; cfg.b_att = 14; cfg.b_ri = -4; cfg.b_rc = 5; cfg.b_li = 14; cfg.b_lc = 24; cfg.b_o = 5
    cfg.flag_delay = 28; cfg.flag_delay2 = 14
    cfg.p0 = 14; cfg.hstep0 = 4
    cfg.hlA = cfg.hlB = [4 * (n - 6) + 1 for n in range(36)]; cfg.poll_lead = [10, 16, 20, 20, 16]

def generate(path):
    label_n[0] = 0
    import fw; fw.LOOSE = cfg.x_nodma or cfg.x_drop
    progs = {}; cut = {}
    for typ in "AB":
        nc, p = build_type(typ)
        mark = p[nc]
        if cfg.x_nodma:
            k0 = [i for i, x in enumerate(p) if getattr(x, "kind", "") == "barrier"][0]
            q = p[:k0]
            for x in p[k0:]:
                if getattr(x, "dma", False):
                    y = I("s_nop 0");
                    q.append(y)
                else: q.append(x)
            p = q
        if cfg.x_drop:
            q = []
            for x in p:
                t = getattr(x, "text", "")
                d = ("h" in cfg.x_drop and t.startswith("buffer_load_dwordx4 a[")) or \
                    ("s" in cfg.x_drop and t.startswith("buffer_store_dwordx4") and "s[28:31]" in t) or \
                    ("w" in cfg.x_drop and getattr(x, "dma", False) and ("s[20:23]" in t or "s[24:27]" in t)) or \
                    ("p" in cfg.x_drop and x.kind == "raw")
                if "m" in cfg.x_drop and x.kind == "mfma":
                    if t.endswith("]") and " a[" in t and "32x32" in t:
                        regs = [r for r in x.rd if r[0] == "a"]
                        y = I("s_nop 0"); y.rd = regs; y.kind = "salu"; q.append(y)
                    continue
                if "l" in cfg.x_drop and x.kind == "ds": continue
                q.append(I("s_nop 0") if d else x)
            p = q
        progs[typ] = finalize(p, typ)
        cut[typ] = (progs[typ].index(mark), [i for i, x in enumerate(progs[typ]) if x.kind == "label" and "main" in x.text][0])
    body = emit(progs["A"][:cut["A"][1]]) + "L_proB:\n" + emit(progs["B"][cut["B"][0]:cut["B"][1]]) + "L_exit:\n    s_endpgm\n" + \
           emit(progs["A"][cut["A"][1]:]) + emit(progs["B"][cut["B"][1]:])
    ref = open("parallel_sum__linear_kernel_hedgehog__glu_gated_bilinear__prompt.s.ref").read().split("\n")
    head = [x for x in ref if x.startswith(";") and "@launch" not in x and "Override" not in x and "grid=ceil" not in x]
    txt = "\n".join(head) + "\n; @launch grid=(256,1,1) block=(256,1,1) lds=%d\n" % LDS_BYTES
    txt += """.amdgcn_target "amdgcn-amd-amdhsa--gfx950"
.text
.globl {k}
.p2align 8
.type {k},@function
{k}:
""".format(k=KNAME) + body + """.section .rodata,"a"
.p2align 6
.amdhsa_kernel {k}
  .amdhsa_next_free_vgpr 512
  .amdhsa_next_free_sgpr 102
  .amdhsa_accum_offset 256
  .amdhsa_group_segment_fixed_size 0
  .amdhsa_kernarg_size 88
  .amdhsa_user_sgpr_count 2
  .amdhsa_user_sgpr_kernarg_segment_ptr 1
  .amdhsa_system_sgpr_workgroup_id_x 1
.end_amdhsa_kernel
""".format(k=KNAME)
    open(path, "w").write(txt)
    if cfg.stamps: open(path[:-2] + ".names", "w").write("\n".join(stamp_names))

if __name__ == "__main__":
    defaults()
    path = sys.argv[1]
    for kv in sys.argv[2:]:
        k, v = kv.split("=")
        setattr(cfg, k, eval(v))
    generate(path)
```

```python
import re

TRANS = ("v_exp_f32", "v_log_f32", "v_rcp_f32", "v_rsq_f32", "v_sqrt_f32")


def regs_of(tok):
    tok = tok.strip()
    neg = tok.lstrip("-")
    if neg.startswith("abs(") or neg.startswith("|"):
        neg = neg.replace("abs(", "").replace(")", "").replace("|", "")
    m = re.fullmatch(r"([vas])\[(\d+):(\d+)\]", neg)
    if m:
        return [m.group(1) + str(i) for i in range(int(m.group(2)), int(m.group(3)) + 1)]
    m = re.fullmatch(r"([vas])(\d+)", neg)
    if m:
        return [neg]
    if neg in ("vcc", "exec", "m0", "scc"):
        return [neg]
    return []


class I:
    def __init__(self, text, tag=None):
        self.text = text.strip()
        self.tag = tag
        self.rd, self.wr = [], []
        self.kind = None
        self.passes = 0
        self.srcc = []
        self.parse()

    def parse(self):
        t = self.text
        if t.endswith(":"):
            self.kind = "label"; self.cost = 0; self.op = "label"; return
        parts = t.split(None, 1)
        op = parts[0]
        self.op = op
        rest = parts[1] if len(parts) > 1 else ""
        ops = [o.strip() for o in rest.split(",")] if rest else []
        if ops:
            last = ops[-1].split()
            mods = last[1:]
            ops[-1] = last[0]
        else:
            mods = []
        self.mods = mods
        R = lambda k: [r for o in ops[k:] for r in regs_of(o)]
        self.cost = 4
        if op.startswith("v_mfma"):
            self.kind = "mfma"
            self.wr = regs_of(ops[0]); self.srca = regs_of(ops[1]); self.srcb = regs_of(ops[2]); self.srcc = regs_of(ops[3])
            self.rd = self.srca + self.srcb + self.srcc
            self.passes = 8 if "32x32x16" in op else 4 if "16x16x32" in op else 2
            self.cost = 8
        elif op.startswith("ds_read"):
            self.kind = "ds"; self.wr = regs_of(ops[0]); self.rd = R(1)
        elif op.startswith("ds_"):
            self.kind = "ds"; self.rd = R(0)
        elif op.startswith("buffer_load") and "lds" in mods:
            self.kind = "vm"; self.rd = R(0) + ["m0"]; self.dma = True
        elif op.startswith("buffer_load") or op.startswith("global_load"):
            self.kind = "vm"; self.wr = regs_of(ops[0]); self.rd = R(1)
        elif op.startswith("buffer_store") or op.startswith("buffer_atomic"):
            self.kind = "vm"; self.rd = R(0); self.data = regs_of(ops[0])
        elif op.startswith("s_load") or op in ("s_memtime", "s_memrealtime"):
            self.kind = "smem"; self.wr = regs_of(ops[0]); self.rd = R(1)
        elif op in ("s_waitcnt", "s_barrier", "s_nop", "s_endpgm", "s_sleep", "s_setprio"):
            self.kind = op[2:]
        elif op.startswith("s_cbranch") or op == "s_branch":
            self.kind = "branch"
            if "scc" in op: self.rd = ["scc"]
            if "vcc" in op: self.rd = ["vcc"]
            if "exec" in op: self.rd = ["exec"]
        elif op.startswith("s_cmp"):
            self.kind = "salu"; self.rd = R(0); self.wr = ["scc"]
        elif op.startswith("s_"):
            self.kind = "salu"; self.wr = regs_of(ops[0]); self.rd = R(1)
            if not op.startswith(("s_mov", "s_mul_i32", "s_getpc", "s_getreg", "s_cselect")): self.wr = self.wr + ["scc"]
            if op.startswith("s_cselect") or op.startswith("s_addc"): self.rd = self.rd + ["scc"]
        elif op.startswith("v_"):
            self.kind = "valu"
            self.wr = regs_of(ops[0]); self.rd = R(1)
            if op.startswith(("v_fmac", "v_dot2c", "v_writelane")): self.rd = self.rd + self.wr
            if op.startswith("v_permlane"):
                self.wr = regs_of(ops[0]) + regs_of(ops[1]); self.rd = list(self.wr)
            if op.split("_e")[0] in TRANS or op in TRANS:
                self.trans = True; self.cost = 8
        else:
            raise ValueError("cannot parse: " + t)

    def __repr__(self):
        return self.text


class Wait:
    def __init__(self, tag):
        self.tag = tag; self.cost = 2; self.kind = "pseudo_wait"


class Gap:
    def __init__(self, n):
        self.n = n


class Raw:
    def __init__(self, lines, rd=(), wr=()):
        self.lines = lines; self.kind = "raw"; self.cost = 4 * len(lines); self.rd = list(rd); self.wr = list(wr)


def L(text, tag=None):
    out = []
    for x in text.strip("\n").split("\n"):
        x = x.split(";")[0].strip()
        if x: out.append(I(x))
    if tag is not None: out[-1].tag = tag
    return out


class Sched:
    def __init__(self):
        self.beats = []

    def beat(self, main, period=32):
        self.beats.append(dict(pre=[], main=main, post=[], period=period))
        return len(self.beats) - 1

    @staticmethod
    def _cost(item):
        if isinstance(item, list): return sum(x.cost for x in item)
        return item.cost

    def load(self, b):
        bt = self.beats[b]
        return sum(self._cost(x) for x in bt["pre"] + bt["post"]) + (bt["main"].cost if bt["main"] is not None else 0)

    def put(self, b, item, pre=False):
        self.beats[b]["pre" if pre else "post"].append(item)

    def spread(self, items, b0, b1, name=""):
        n = b1 - b0
        total = sum(self._cost(x) for x in items if not isinstance(x, Gap))
        gaps = sum(x.n for x in items if isinstance(x, Gap))
        loads = [self.load(b) - self.beats[b]["period"] + (1000 if self.beats[b].get("quiet") and n > 12 else 0) for b in range(b0, b1)]
        lo, hi = -64.0, 4096.0
        def run(level, place):
            b = 0; room = max(0.0, level - loads[0])
            last = 0
            for it in items:
                if isinstance(it, Gap):
                    b = min(n - 1, b + it.n)
                    room = min(room, 0) + max(0.0, level - loads[b])
                    continue
                c = self._cost(it)
                while room < min(c, 8) * 0.5 and b < n - 1:
                    b += 1; room = min(room, 0) + max(0.0, level - loads[b])
                if room < min(c, 8) * 0.5 and not place: return None
                if place: self.put(b0 + b, it)
                room -= c; last = b
            return last
        for _ in range(30):
            mid = (lo + hi) / 2
            if run(mid, False) is None: lo = mid
            else: hi = mid
        last = run(hi, True)
        if name: print("  spread %-10s cost %5d over beats %d..%d level %+.0f last %d" % (name, total, b0, b1, hi, b0 + last))
        return b0 + last

    def flat(self):
        out = []
        def add(x):
            if isinstance(x, list): out.extend(x)
            else: out.append(x)
        for bt in self.beats:
            for x in bt["pre"]: add(x)
            if bt["main"] is not None: add(bt["main"])
            for x in bt["post"]: add(x)
        return out


LOOSE = False
def insert_waits(prog):
    out = []
    vm_seq = 0; vm_done = 0
    ds_seq = 0; ds_done = 0
    pend = {}
    tags = {}
    sm_out = False
    maxvm = 0

    def need(kind, seq, w):
        if kind == "vm" and seq > vm_done: w["vm"] = max(w.get("vm", 0), seq)
        if kind == "ds" and seq > ds_done: w["ds"] = max(w.get("ds", 0), seq)
        if kind == "sm": w["sm"] = 1

    for ins in prog:
        w = {}
        if isinstance(ins, Wait):
            if ins.tag == "lgkm0": need("ds", ds_seq, w)
            elif ins.tag == "vm0": need("vm", vm_seq, w)
            else:
                if ins.tag in tags:
                    k, s = tags[ins.tag]; need(k, s, w)
                else: assert LOOSE, ins.tag
        else:
            for r in list(ins.rd) + list(ins.wr):
                if r in pend: need(pend[r][0], pend[r][1], w)
        if w:
            parts = []
            if "vm" in w:
                n = min(vm_seq - w["vm"], 63); parts.append("vmcnt(%d)" % n); vm_done = vm_seq - n
            if "sm" in w:
                parts.append("lgkmcnt(0)"); ds_done = ds_seq; sm_out = False
                for r in [r for r, v in pend.items() if v[0] == "sm"]: del pend[r]
            elif "ds" in w:
                n = min(ds_seq - w["ds"], 15); parts.append("lgkmcnt(%d)" % n); ds_done = ds_seq - n
            out.append(I("s_waitcnt " + " ".join(parts)))
            for r in [r for r, v in pend.items() if (v[0] == "vm" and v[1] <= vm_done) or (v[0] == "ds" and v[1] <= ds_done)]: del pend[r]
        if isinstance(ins, Wait): continue
        out.append(ins)
        if ins.kind == "vm":
            vm_seq += 1
            for r in ins.wr: pend[r] = ("vm", vm_seq)
            if ins.tag: tags[ins.tag] = ("vm", vm_seq)
            maxvm = max(maxvm, vm_seq - vm_done)
        elif ins.kind == "ds":
            ds_seq += 1
            for r in ins.wr: pend[r] = ("ds", ds_seq)
            if ins.tag: tags[ins.tag] = ("ds", ds_seq)
        elif ins.kind == "smem":
            if not getattr(ins, "nowait", False):
                for r in ins.wr: pend[r] = ("sm", 0)
    return out, maxvm


def states(ins):
    if ins.kind == "label": return 0
    if ins.kind == "nop": return int(ins.text.split()[1]) + 1
    if ins.kind == "raw": return 1
    return 1


def pad_hazards(prog):
    out = []
    nn = 0
    for ins in prog:
        needn = 0
        if ins.kind not in ("label", "nop", "waitcnt", "barrier"):
            rd = set(ins.rd); wr = set(ins.wr)
            dist = 0
            for p in reversed(out):
                if dist >= 20: break
                req = 0
                pw = set(p.wr) if p.kind not in ("label", "nop", "waitcnt", "barrier") else set()
                if p.kind == "valu":
                    vw = {r for r in pw if r[0] in "va" and r != "vcc"}
                    sw = pw - vw
                    if ins.kind == "mfma" and vw & rd: req = max(req, 2)
                    if ins.kind == "valu" and ins.op.startswith("v_permlane") and vw & rd: req = max(req, 2)
                    if ins.kind == "valu" and ins.op.startswith(("v_readfirstlane", "v_readlane")) and vw & rd: req = max(req, 1)
                    if getattr(p, "trans", False) and vw & rd: req = max(req, 1)
                    if "sdwa" in p.op and vw & (rd | wr): req = max(req, 1)
                    if sw & rd:
                        if ins.kind == "valu": req = max(req, 2)
                        elif ins.kind == "vm": req = max(req, 5)
                        elif ins.kind in ("salu", "branch", "raw"): req = max(req, 4)
                elif p.kind == "mfma":
                    k = {2: 0, 4: 1, 8: 2}[p.passes]
                    if ins.kind == "mfma":
                        if pw & set(ins.srcc):
                            if list(p.wr) == list(ins.srcc) and p.passes == ins.passes: req = max(req, [2, 0, 0][k])
                            else: req = max(req, [4, 6, 10][k])
                        if pw & (set(ins.srca) | set(ins.srcb)): req = max(req, [5, 8, 12][k])
                        if pw & wr and not (pw & set(ins.srcc)): req = max(req, [5, 8, 12][k])
                    else:
                        if pw & (rd | wr): req = max(req, [5, 8, 12][k])
                        if set(p.srcc) & wr: req = max(req, [1, 3, 7][k])
                elif p.kind == "salu":
                    if "m0" in pw and ins.kind == "vm" and "m0" in rd: req = max(req, 1)
                elif p.kind in ("vm", "ds"):
                    data = getattr(p, "data", None)
                    if p.kind == "ds" and not p.wr: data = p.rd[1:]
                    if data and len(data) >= 3 and set(data) & wr: req = max(req, 2)
                if req > dist: needn = max(needn, req - dist)
                dist += states(p)
        if needn:
            out.append(I("s_nop %d" % (needn - 1))); nn += needn
        out.append(ins)
    return out, nn


def emit(prog):
    lines = []
    for ins in prog:
        if ins.kind == "raw": lines += ["    " + x if not x.endswith(":") else x for x in ins.lines]
        elif ins.kind == "label": lines.append(ins.text)
        else: lines.append("    " + ins.text)
    return "\n".join(lines) + "\n"


def _flat(x):
    o = []
    for y in x: o += _flat(y) if isinstance(y, list) else [y]
    return o

def defines(ins, **roles):
    fl = [x for x in _flat(ins) if isinstance(x, I)]
    for name, regs in roles.items():
        for r in (regs if isinstance(regs, (list, tuple, range)) else [regs]):
            w = [x for x in fl if r_name(r) in x.wr]
            assert w, (name, r)
            w[-1].__dict__.setdefault("role", {})[r_name(r)] = name
    return ins

def needs(ins, **roles):
    fl = [x for x in _flat(ins if isinstance(ins, list) else [ins]) if isinstance(x, (I, Raw))]
    for name, regs in roles.items():
        for r in (regs if isinstance(regs, (list, tuple, range)) else [regs]):
            for x in fl:
                if r_name(r) in x.rd:
                    x.__dict__.setdefault("need", {})[r_name(r)] = name
                    if r_name(r) in x.wr: break
    return ins

def r_name(r): return r if isinstance(r, str) else "v%d" % r

def check_roles(prog, name):
    cur = {}
    for k, x in enumerate(prog):
        if isinstance(x, Wait): continue
        for r, n in getattr(x, "need", {}).items():
            assert cur.get(r) == n, "%s: %s needs %s=%s but holds %s" % (name, getattr(x, "text", "raw"), r, n, cur.get(r))
        for r in getattr(x, "wr", []):
            cur[r] = getattr(x, "role", {}).get(r)

def finalize(prog, name=""):
    check_roles(prog, name)
    p, maxvm = insert_waits(prog)
    q = []
    for x in p:
        if x.kind == "waitcnt" and q and q[-1].kind == "waitcnt":
            d = dict(re.findall(r"(\w+)\((\d+)\)", q[-1].text))
            for k, v in re.findall(r"(\w+)\((\d+)\)", x.text): d[k] = str(min(int(v), int(d.get(k, 99))))
            q[-1] = I("s_waitcnt " + " ".join("%s(%s)" % (k, d[k]) for k in ("vmcnt", "lgkmcnt") if k in d))
        else: q.append(x)
    p = q
    p, nn = pad_hazards(p)
    cnt = {}
    for x in p: cnt[x.kind] = cnt.get(x.kind, 0) + 1
    print("  %s: %d instr, max vm in flight %d, nop states %d, %s" % (name, len(p), maxvm, nn, cnt))
    return p


def sizes(prog):
    import subprocess
    lines = []; owner = []
    for k, x in enumerate(prog):
        for t in (x.lines if x.kind == "raw" else [x.text]):
            if t.endswith(":"): continue
            t = re.sub(r"L_\w+(-L_\w+)?", "4660" if "-L_" in t else "0", t)
            lines.append(t); owner.append(k)
    r = subprocess.run(["llvm-mc", "-triple=amdgcn-amd-amdhsa", "-mcpu=gfx950", "-show-encoding"], input="\n".join(lines), capture_output=True, text=True)
    enc = re.findall(r"encoding: \[([^\]]*)\]", r.stdout)
    assert len(enc) == len(lines), (len(enc), len(lines), r.stderr[:300])
    sz = [0] * len(prog)
    for k, e in zip(owner, enc): sz[k] += len(e.split(","))
    return sz

def widen(x):
    if x.kind != "valu" or x.op.startswith(("v_permlane", "v_readfirstlane", "v_writelane", "v_readlane", "v_accvgpr")): return None
    op = x.op.replace("_e32", "")
    y = I(x.text.replace(x.op, op + "_e64", 1)); y.op = x.op
    return y

def fix_parity(prog, mode):
    sz = sizes(prog)
    out = list(prog); n_w = n_bad = n_nop = 0
    pos = 0; cand = None; res = []
    for k, x in enumerate(out):
        s = sz[k]
        if x.kind != "label" and s >= 8 and x.kind != "raw" and pos % 8 == 4:
            if cand is not None:
                res[cand] = widen(res[cand]); pos += 4; n_w += 1
            elif mode == 2 and x.kind == "mfma":
                res.append(I("s_nop 0")); pos += 4; n_nop += 1
            else: n_bad += 1
        res.append(x); pos += s
        if s == 4 and widen(x) is not None: cand = len(res) - 1
        elif s >= 8: cand = None
    print("  parity: widened %d, padded %d, misaligned %d" % (n_w, n_nop, n_bad))
    return res
```

```python
import sys
from fw import *

KNAME = "parallel_sum__linear_kernel_hedgehog__glu_gated_bilinear__prompt_kernel"

class Cfg:
    rot = True
    stamps = False
    codepf = False
    wpf = False
    w2pf = False
    spin = 200000
    dbgout = False
    x_drop = ''
    x_nostat = False; x_notask = False; x_nodma = False; x_nobar = False
cfg = Cfg()

PITCH = 8224
NSLOT = 16
WREG = NSLOT * PITCH
WREG_SZ = 5632
VOFF = 2304
STAT = WREG + 4 * WREG_SZ
CSP = STAT + 2048
CST = CSP + 3072
LDS_BYTES = 163840
WS_H = 0
WS_KVP = 0xC00000
WS_KVF = 0xA00000
WS_FL = 0xA40000
WS_ST = 0xB00000
OOB = 0x40000000

SX, SQ, SG, SU, SD, SO, SW, SOUT, SDBG, SPHI = 4, 8, 12, 16, 20, 24, 28, 32, 36, 40
def srd(b): return "s[%d:%d]" % (b, b + 3)
sWV, sTH, sGR, sRB, sQ, sT4, sAB, sI, sTT, sCT, sIDX, sXCD = range(44, 56)
sKX, sKQ, sKG = 56, 64, 72
sLX, sL2K, sL1K, sT0, sT1, sSPIN = 80, 81, 82, 83, 84, 85
sM1, sM2, sM3, sMB = 86, 88, 90, 92
sWDB, sWOB, sC2, sH2, sS = 94, 95, 96, 97, 3
sMH = 54
sST = 98
SET0, SET1, WF = 0, 64, 128
SEL01, SEL23 = 144, 148
vPW, vPR, vVW, vVR0 = 152, 153, 154, 155
vKVL, vKRL, vKRS = 152, 153, 154
CSD = 156
MB = 160
CA = 168
vSL = 172
XR, WR1, WR3, XD, WR2 = 174, 178, 178, 182, 182
W2R = 174
WQD, WGD, WHD = 186, 188, 190
vHLD, vPOL = 186, 187
vCSA, vRS, vR2, vHST, vL, W2D = 191, 192, 194, 196, 197, 198
WPHI = 200
KVD = 208
TMP = 240
vFLG, vVR1, vKVA, vSTAMP = 252, 253, 254, 255
SQD2 = 88
RSD, SQD = 64, 68

def vr(b, n=1): return "v%d" % b if n == 1 else "v[%d:%d]" % (b, b + n - 1)
def ar(b, n): return "a[%d:%d]" % (b, b + n - 1)

stamp_names = []
def stamp(name):
    if cfg.stamps != True: return []
    if name not in stamp_names: stamp_names.append(name)
    k = stamp_names.index(name)
    return [I("s_memtime s[%d:%d]" % (sST, sST + 1)), I("v_writelane_b32 v%d, s%d, %d" % (vSTAMP, sST, k + 2))]

def addr_wfull(dst, n, att, swap, t0=TMP):
    a, b = vr(t0), vr(t0 + 1)
    s = """
    v_lshrrev_b32 {a}, 5, v{L}
    v_lshlrev_b32 {a}, 10, {a}
    v_bfe_u32 {b}, v{L}, 2, 2
    v_lshl_add_u32 {a}, {b}, 7, {a}
    v_and_b32 {b}, 3, v{L}
    v_lshl_add_u32 {a}, {b}, 3, {a}
    v_bfe_u32 {b}, v{L}, 3, 1
    v_xor_b32 {b}, s{gr}, {b}
    v_lshl_add_u32 {a}, {b}, 6, {a}
    v_bfe_u32 {b}, v{L}, 4, 1
    """.format(a=a, b=b, L=vL, gr=sGR)
    if att:
        if swap: s += "v_xor_b32 %s, s%d, %s\n" % (b, sTH, b)
        s += "v_lshl_add_u32 %s, %s, 5, %s\n" % (a, b, a)
    else:
        s += "v_mul_u32_u24 %s, %d, %s\nv_add_u32 %s, %s, %s\n" % (b, PITCH, b, a, a, b)
    return L(s) + wr_variants(dst, n, a, 12, 'Watt' if att else 'Wpair')

def wr_variants(dst, n, a, sh, role):
    s = "s_lshl_b32 s%d, s%d, %d\ns_xor_b32 s%d, s%d, %d\n" % (sT0, sS, sh, sT1, sT0, 1 << sh)
    k = dst
    if n == 4:
        s += "v_add_u32 v%d, s%d, %s\nv_add_u32 v%d, s%d, %s\n" % (k, sT0, a, k + 1, sT1, a)
        s += "v_add_u32 v%d, %d, v%d\nv_add_u32 v%d, %d, v%d\n" % (k + 2, 8 * PITCH, k, k + 3, 8 * PITCH, k + 1)
    else:
        s += "v_add_u32 %s, %d, %s\n" % (a, 8 * PITCH, a)
        s += "v_add_u32 v%d, s%d, %s\nv_add_u32 v%d, s%d, %s\n" % (k, sT0, a, k + 1, sT1, a)
    ins = L(s)
    return [defines(ins, **{role: range(dst, dst + n)})]

def addr_whalf(dst, t0=TMP):
    a, b = vr(t0), vr(t0 + 1)
    s = """
    v_lshrrev_b32 {a}, 5, v{L}
    v_lshlrev_b32 {a}, 9, {a}
    v_bfe_u32 {b}, v{L}, 2, 2
    v_lshl_add_u32 {a}, {b}, 6, {a}
    v_and_b32 {b}, 3, v{L}
    v_lshl_add_u32 {a}, {b}, 3, {a}
    v_bfe_u32 {b}, v{L}, 4, 1
    v_mul_u32_u24 {b}, 4128, {b}
    v_add_u32 {a}, {a}, {b}
    v_mov_b32 {b}, s{gr}
    v_lshl_add_u32 {a}, {b}, 5, {a}
    """.format(a=a, b=b, L=vL, gr=sGR)
    return L(s) + wr_variants(dst, 4, a, 11, 'Whalf')

def addr_cs(swap, t0=TMP):
    a = vr(t0)
    s = "s_lshl_b32 s%d, s%d, 8\ns_lshl_b32 s%d, s%d, 7\ns_add_u32 s%d, s%d, s%d\ns_add_u32 s%d, s%d, %d\n" % (sT0, sGR, sT1, sTH, sT0, sT0, sT1, sT0, sT0, CSP)
    s += "v_and_b32 %s, 31, v%d\n" % (a, vL)
    if swap: s += "s_lshl_b32 s%d, s%d, 4\nv_xor_b32 %s, s%d, %s\n" % (sT1, sTH, a, sT1, a)
    s += """
    v_lshl_add_u32 v{ca}, {a}, 2, s{t}
    v_lshrrev_b32 {a}, 5, v{L}
    v_lshl_add_u32 v{ca}, {a}, 9, v{ca}
    """.format(a=a, L=vL, ca=vCSA, t=sT0)
    return [defines(L(s), **{"CSs" if swap else "CS": vCSA})]

def addr_p2(t0=TMP):
    a, b = vr(t0), vr(t0 + 1)
    s = """
    v_lshrrev_b32 {a}, 5, v{L}
    v_lshlrev_b32 {a}, 9, {a}
    v_bfe_u32 {b}, v{L}, 2, 2
    v_lshl_add_u32 {a}, {b}, 7, {a}
    v_and_b32 {b}, 3, v{L}
    v_lshl_add_u32 {a}, {b}, 3, {a}
    v_bfe_u32 {b}, v{L}, 3, 1
    v_lshl_add_u32 {a}, {b}, 6, {a}
    v_bfe_u32 {b}, v{L}, 4, 1
    v_lshl_add_u32 {a}, {b}, 5, {a}
    v_xor_b32 {b}, 64, {a}
    v_add_u32 v{w0}, s{l2k}, {a}
    v_add_u32 v{w1}, s{l2k}, {b}
    v_add_u32 v{w2}, {hi}, v{w0}
    v_add_u32 v{w3}, {hi}, v{w1}
    """.format(a=a, b=b, L=vL, w0=W2R, w1=W2R + 1, w2=W2R + 2, w3=W2R + 3, l2k=sL2K, hi=8 * PITCH)
    ins = L(s)
    ins.append(L("""
    s_mul_i32 s{t0}, s{tt}, {a}
    s_mul_i32 s{t1}, s{wv}, {b}
    s_add_u32 s{t0}, s{t0}, s{t1}
    v_lshl_add_u32 v{h}, v{L}, 4, s{t0}
    """.format(t0=sT0, t1=sT1, tt=sTT, wv=sWV, a=144 * 2048, b=36 * 2048, h=vHLD, L=vL)))
    ins.append(L("""
    s_lshl_b32 s{t0}, s{tt}, 2
    s_add_u32 s{t0}, s{t0}, s{wv}
    s_lshl_b32 s{t0}, s{t0}, 7
    s_add_u32 s{t0}, s{t0}, {fl}
    v_and_b32 {a}, 7, v{L}
    v_lshl_add_u32 v{p}, {a}, 2, s{t0}
    """.format(t0=sT0, tt=sTT, wv=sWV, fl=WS_FL, a=a, L=vL, p=vPOL)))
    return defines(ins, W2R=range(W2R, W2R + 4), HLD=vHLD, POL=vPOL)

label_n = [0]
def poll(addr, res, need, sr=SW, cmp="gt"):
    label_n[0] += 1
    k = label_n[0]
    ld = "buffer_load_dword v%d, v%d, %s, 0 offen sc1" % (res, addr, srd(sr))
    c = "v_cmp_%s_u32 vcc, %s, v%d" % (cmp, need, res)
    chk = Raw([c, "s_nop 4", "s_cbranch_vccz L_ok%d" % k,
               "s_mov_b32 s%d, %d" % (sSPIN, cfg.spin),
               "L_re%d:" % k, "s_sleep 1", ld, "s_waitcnt vmcnt(0)", c, "s_sub_u32 s%d, s%d, 1" % (sSPIN, sSPIN),
               "s_cbranch_scc1 L_ok%d" % k, "s_nop 2", "s_cbranch_vccnz L_re%d" % k,
               "L_ok%d:" % k],
              rd=["v%d" % res, "v%d" % addr] + regs_of(need), wr=["vcc", "scc", "s%d" % sSPIN])
    chk.cost = 32
    return I(ld), chk

def class_poll(c, res, needr):
    na, nb = [(0, 1), (0, 2), (1, 2), (2, 2), (2, 3)][c]
    iss, chk = poll(vPOL, res, "v%d" % needr)
    needs([iss, chk], POL=vPOL); defines([iss], **{"cp%d" % c: res}); needs([chk], **{"cp%d" % c: res})
    return iss, [I("v_cndmask_b32 v%d, %d, %d, s[%d:%d]" % (needr, na, nb, sMB, sMB + 1)), chk]

def set_flag(level, tag, t):
    if cfg.strict: tag = "vm0"
    return stamp("f%d_0" % level) + [Wait(tag)] + stamp("f%d_1" % level) + [I("v_mov_b32 v%d, %d" % (t, level)), needs(I("buffer_store_dword v%d, v%d, %s, 0 offen sc1" % (t, vFLG, srd(SW))), FLG=vFLG)]

def t_stat_add():
    a, b = TMP, TMP + 1
    s = """
    s_lshl_b32 s{t0}, s{th}, 10
    s_add_u32 s{t0}, s{t0}, {st}
    v_and_b32 v{b}, 31, v{L}
    v_lshl_add_u32 v{b}, v{b}, 4, s{t0}
    s_lshl_b32 s{t1}, s{gr}, 3
    s_add_u32 s{t0}, s{t0}, s{t1}
    v_lshl_add_u32 v{a}, v{L}, 4, s{t0}
    """.format(t0=sT0, t1=sT1, th=sTH, gr=sGR, st=STAT, a=a, b=b, L=vL)
    pre = [L(s)]
    out = []
    for j in range(8): out += L("v_add_f32 v%d, v%d, v%d" % (SQD + j, SQD + j, SQD2 + j))
    for j, m in ((1, sM1), (2, sM2), (3, sM3)):
        for blk in range(2):
            q = SQD + 4 * blk
            out += L("v_cndmask_b32 v%d, v%d, v%d, s[%d:%d]" % (q, q, q + j, m, m + 1))
    out.append(L("v_permlane32_swap_b32 v%d, v%d\nv_add_f32 v%d, v%d, v%d" % (SQD, SQD + 4, RSD + 1, SQD, SQD + 4)))
    out += L("ds_write_b64 v%d, v[%d:%d]" % (a, RSD, RSD + 1))
    return pre, out

def t_cs_add(tile0, role="CS"):
    return needs(L("ds_write_b32 v%d, v%d offset:%d" % (vCSA, CSD, 512 * tile0)), **{role: vCSA})

def t_cs_tot(tile0, t):
    out = L("v_xor_b32 v%d, 0x80, v%d\nds_read_b32 v%d, v%d offset:%d" % (t, vCSA, t, t, 512 * tile0))
    out.append(Gap(2))
    out += L("""
    v_add_f32 v{t}, v{t}, v{cs}
    v_cvt_pk_bf16_f32 v{a}, v{t}, v{t}
    v_lshlrev_b32 v{a1}, 16, v{a}
    v_sub_f32 v{t}, v{t}, v{a1}
    v_cvt_pk_bf16_f32 v{a1}, v{t}, 0
    """.format(t=t, cs=CSD, a=CA, a1=CA + 1))
    return defines(out, **{"CA%d" % tile0: (CA, CA + 1)})

def t_corr(acc, T, tile0, bs=16):
    out = []
    for j in range(T):
        for b in range(2):
            d = vr(acc + 32 * j + bs * b, 16)
            x = I("v_mfma_f32_32x32x16_bf16 %s, %s, %s, %s" % (d, vr(CA, 4), vr(MB + 4 * b + 2 * j, 4), d)); x.cost = 24
            out.append(x)
    return needs(out, MB=range(MB, MB + 8), Z=(CA + 2, CA + 3), **{"CA%d" % tile0: (CA, CA + 1)})

def t_stat_fin():
    b = TMP + 1; t = TMP + 4
    out = L("ds_read_b128 v[%d:%d], v%d\nds_read_b128 v[%d:%d], v%d offset:512" % (t, t + 3, b, t + 4, t + 7, b))
    out.append(Gap(2))
    late = []
    for blk in range(2):
        r = t + 4 * blk; m = MB + 4 * blk
        out += L("""
        v_add_f32 v{r}, v{r}, v{r2}
        v_mul_f32 v{r}, 0xbb000000, v{r}
        v_cvt_pk_bf16_f32 v{m1}, v{r}, 0
        v_lshlrev_b32 v{r2}, 16, v{m1}
        v_sub_f32 v{r2}, v{r}, v{r2}
        v_cvt_pk_bf16_f32 v{m0}, v{r}, v{r2}
        v_cndmask_b32 v{m2}, 0, v{m0}, s[{h}:{h1}]
        v_cndmask_b32 v{m3}, 0, v{m1}, s[{h}:{h1}]
        v_cndmask_b32 v{m0}, v{m0}, 0, s[{h}:{h1}]
        v_cndmask_b32 v{m1}, v{m1}, 0, s[{h}:{h1}]
        """.format(r=r, r2=r + 2, m0=m, m1=m + 1, m2=m + 2, m3=m + 3, h=sMH, h1=sMH + 1))
        late += L("""
        v_add_f32 v{r1}, v{r1}, v{r3}
        v_mul_f32 v{r2}, v{r}, v{r}
        v_fma_f32 v{r1}, v{r1}, s{c}, -v{r2}
        v_max_f32 v{r1}, 0, v{r1}
        v_add_f32 v{r1}, 0x3727c5ac, v{r1}
        v_rsq_f32 v{rs}, v{r1}
        v_rcp_f32 v{rr}, v{r1}
        v_mul_f32 v{sl}, 0x3fb8aa3b, v{rs}
        """.format(r=r, r1=r + 1, r2=r + 2, r3=r + 3, rs=vRS + blk, rr=vR2 + blk, sl=vSL + blk, c=sC2))
    defines(out, MB=range(MB, MB + 8)); defines(late, R2=(vR2, vR2 + 1), RS=(vRS, vRS + 1), SL=(vSL, vSL + 1))
    return out, late

def t_hepi(acc, soff, imm, tag, bs=16):
    out = []
    for blk in range(2):
        g = acc + bs * blk
        for r in range(0, 8 if not cfg.x_notask else 0, 2):
            out += L("v_mul_f32 v%d, v%d, v%d\nv_mul_f32 v%d, v%d, v%d" % (g + r, vR2 + blk, g + r, g + r + 1, vR2 + blk, g + r + 1))
            out += L("v_mul_f32 v%d, v%d, v%d\nv_mul_f32 v%d, v%d, v%d" % (g + r, g + r, g + 8 + r, g + r + 1, g + r + 1, g + 9 + r))
            out += L("v_cvt_pk_bf16_f32 v%d, v%d, v%d" % (g + r // 2, g + r, g + r + 1))
        st = L("buffer_store_dwordx4 v[%d:%d], v%d, %s, s%d offen offset:%d sc1" % (g, g + 3, vHST, srd(SW), sT1, imm + 1024 * blk), tag=tag if blk else None)
        out.append(L(soff) + st)
    return needs(out, HST=vHST, R2=(vR2, vR2 + 1))

def phi_mfma(acc, TMP=TMP):
    out = []
    for j in range(8): out += L("v_cvt_pk_bf16_f32 v%d, v%d, v%d" % (TMP + j, acc + 2 * j, acc + 2 * j + 1))
    out += L("v_mfma_f32_32x32x16_bf16 v[%d:%d], v[%d:%d], v[%d:%d], 0" % (acc, acc + 15, WPHI, WPHI + 3, TMP, TMP + 3))
    out += L("v_mfma_f32_32x32x16_bf16 v[%d:%d], v[%d:%d], v[%d:%d], v[%d:%d]" % (acc, acc + 15, WPHI + 4, WPHI + 7, TMP + 4, TMP + 7, acc, acc + 15))
    out[-1].cost = 24; out[-2].cost = 24
    return needs(out, WPHI=range(WPHI, WPHI + 8))

def softmax2(p, blk):
    e = TMP; a, b, c, d = TMP + 8, TMP + 9, TMP + 10, TMP + 11; sl = vSL + blk
    s = """
    v_max3_f32 v{a}, v{p0}, v{p1}, v{p2}
    v_min3_f32 v{b}, v{p0}, v{p1}, v{p2}
    v_max3_f32 v{a}, v{a}, v{p3}, v{p4}
    v_min3_f32 v{b}, v{b}, v{p3}, v{p4}
    v_max3_f32 v{a}, v{a}, v{p5}, v{p6}
    v_min3_f32 v{b}, v{b}, v{p5}, v{p6}
    v_max_f32 v{a}, v{a}, v{p7}
    v_max_f32_e64 v{b}, -v{b}, -v{p7}
    """.format(a=a, b=b, **{"p%d" % i: p + i for i in range(8)})
    out = L(s)
    out += L("v_permlane32_swap_b32 v{a}, v{b}\nv_max_f32 v{a}, v{a}, v{b}\nv_mul_f32_e64 v{a}, -v{a}, v{sl}\nv_mov_b32 v{b}, v{a}".format(a=a, b=b, sl=sl))
    out += L("v_permlane32_swap_b32 v{a}, v{b}".format(a=a, b=b))
    for i in range(8):
        out += L("v_fma_f32 v%d, v%d, v%d, v%d" % (e + i, p + i, sl, a))
        out += L("v_fma_f32 v%d, -v%d, v%d, v%d" % (p + i, p + i, sl, b))
        if i > 1: out += L("v_add_f32 v%d, v%d, v%d" % (c, c if i > 2 else e, e + i - 1))
        out += L("v_exp_f32 v%d, v%d" % (e + i, e + i))
        if i > 1: out += L("v_add_f32 v%d, v%d, v%d" % (d, d if i > 2 else p, p + i - 1))
        out += L("v_exp_f32 v%d, v%d" % (p + i, p + i))
    out += L("v_add_f32 v%d, v%d, v%d\nv_add_f32 v%d, v%d, v%d" % (c, c, e + 7, d, d, p + 7))
    out += L("v_permlane32_swap_b32 v{c}, v{d}\nv_add_f32 v{c}, v{c}, v{d}\nv_rcp_f32 v{c}, v{c}".format(c=c, d=d))
    out += L("v_mov_b32 v{d}, v{c}".format(c=c, d=d))
    out += L("v_permlane32_swap_b32 v{c}, v{d}".format(c=c, d=d))
    for i in range(8):
        out += L("v_mul_f32 v%d, v%d, v%d" % (p + i, d, p + i))
        if i & 1: out += L("v_cvt_pk_bf16_f32 v%d, v%d, v%d" % (p + i // 2, p + i - 1, p + i))
    for i in range(8):
        out += L("v_mul_f32 v%d, v%d, v%d" % (e + i, c, e + i))
        if i & 1: out += L("v_cvt_pk_bf16_f32 v%d, v%d, v%d" % (p + 4 + i // 2, e + i - 1, e + i))
    return out

def v_out(va, blk):
    out = []
    for r in range(0, 16, 2):
        out += L("v_mul_f32 v%d, v%d, v%d\nv_mul_f32 v%d, v%d, v%d" % (va + r, vRS + blk, va + r, va + r + 1, vRS + blk, va + r + 1))
        out += L("v_cvt_pk_bf16_f32 v%d, v%d, v%d" % (va + r // 2, va + r, va + r + 1))
        if r % 4 == 2: out += L("ds_write_b64 v%d, v[%d:%d] offset:%d" % (vVW, va + r // 2 - 1, va + r // 2, 4 * (r - 2)))
    return out

def weave(main, extra, pos):
    out = []; k = 0
    for n, x in enumerate(main):
        while k < len(extra) and pos[k] <= n: out.append(extra[k]); k += 1
        out.append(x)
    return out + extra[k:]

def t_att_k():
    out = []
    if cfg.x_notask: return [I("s_nop 0")]
    FR = 32
    rds, mms = [], []
    for blk in range(2):
        va = 32 + 16 * blk; ka = 16 * blk
        pm = phi_mfma(ka)
        out += weave(pm, rds, range(0, 8)); rds = []
        vo = v_out(va, blk)
        out += weave(vo, mms, (10, 18)); mms = []
        for hh in range(2):
            p = ka + 8 * hh
            sm = softmax2(p, blk)
            n = len(sm)
            wr = [I("ds_write_b64 v%d, v[%d:%d] offset:%d" % (vPW, p + 2 * j, p + 1 + 2 * j, 32 + 16 * j)) for j in range(2)] + \
                 [I("ds_write_b64 v%d, v[%d:%d] offset:%d" % (vPW, p + 4 + 2 * j, p + 5 + 2 * j, 16 * j)) for j in range(2)]
            sm = weave(sm, rds + mms + wr, [2, 5, 8, 8, 12, 12, 16, 20][:len(rds)] + [44, 56][:len(mms)] + [n - 17, n - 11, n - 5, n])
            out += sm
            rds, mms = [], []
            for ks in range(2):
                for j in range(2):
                    rds += L("ds_read_b64_tr_b16 v[%d:%d], v%d offset:%d" % (FR + 8 * ks + 4 + 2 * j, FR + 8 * ks + 5 + 2 * j, (vVR0, vVR1)[hh], 1664 * ks + 416 * j))
                for j in range(2):
                    rds += L("ds_read_b64_tr_b16 v[%d:%d], v%d offset:%d" % (FR + 8 * ks + 2 * j, FR + 8 * ks + 2 * j + 1, vPR, 1152 * ks + 288 * j))
            d = KVD + 16 * hh
            for ks in range(2):
                c = "0" if (blk == 0 and ks == 0) else vr(d, 16)
                x = I("v_mfma_f32_32x32x16_bf16 %s, %s, %s, %s" % (vr(d, 16), vr(FR + 8 * ks, 4), vr(FR + 8 * ks + 4, 4), c)); x.cost = 24
                mms.append(x)
    for x in rds: x.cost = 8
    out += rds
    pend = mms
    out.append(L("""
    s_mul_i32 s{t0}, s{wv}, {wsz}
    s_add_u32 s{t0}, s{t0}, {wreg}
    v_lshl_add_u32 v{a}, v{L}, 4, s{t0}
    s_xor_b32 s{t0}, s{wv}, 1
    s_mul_i32 s{t0}, s{t0}, {wsz}
    s_add_u32 s{t0}, s{t0}, {wreg}
    v_lshl_add_u32 v{b}, v{L}, 4, s{t0}
    """.format(t0=sT0, wv=sWV, wsz=WREG_SZ, wreg=WREG, a=TMP, b=TMP + 1, L=vL)))
    out += [Gap(2)] + pend + [Gap(2)]
    for r4 in range(4): out += L("ds_write_b128 v%d, %s offset:%d" % (TMP, vr(KVD + 16 + 4 * r4, 4), 1024 * r4))
    defines(out, EXR=TMP + 1)
    return needs(out, PW=vPW, PR=vPR, VW=vVW, VR0=vVR0, VR1=vVR1, RS=(vRS, vRS + 1), SL=(vSL, vSL + 1))

def t_kv_pub():
    out = []
    for r4 in range(4): out += L("ds_read_b128 %s, v%d offset:%d" % (vr(KVD + 16 + 4 * r4, 4), TMP + 1, 1024 * r4))
    out.append(Gap(2))
    for r in range(16):
        out += L("v_add_f32 v%d, v%d, v%d" % (KVD + r, KVD + r, KVD + 16 + r))
        if r % 4 == 3: out += L("buffer_store_dwordx4 %s, v%d, %s, 0 offen offset:%d sc1" % (vr(KVD + r - 3, 4), vKVA, srd(SW), 136 * (r - 3)))
    return needs(out, EXR=TMP + 1, KVA=vKVA)

def data_poll(loads, regs, t):
    label_n[0] += 1
    k = label_n[0]
    chk = ["v_max3_u32 v%d, v%d, v%d, v%d" % (t, regs[0], regs[1], regs[2])]
    rest = regs[3:]
    while len(rest) > 1:
        chk.append("v_max3_u32 v%d, v%d, v%d, v%d" % (t, t, rest[0], rest[1])); rest = rest[2:]
    if rest: chk.append("v_max_u32 v%d, v%d, v%d" % (t, t, rest[0]))
    fast = L("\n".join(chk))
    c = "v_cmp_eq_u32 vcc, -1, v%d" % t
    raw = Raw([c, "s_nop 4", "s_cbranch_vccz L_ok%d" % k, "s_mov_b32 s%d, %d" % (sSPIN, cfg.spin), "L_re%d:" % k, "s_sleep 1"] + loads +
              ["s_waitcnt vmcnt(0)"] + chk + [c, "s_sub_u32 s%d, s%d, 1" % (sSPIN, sSPIN), "s_cbranch_scc1 L_ok%d" % k, "s_nop 2",
               "s_cbranch_vccnz L_re%d" % k, "L_ok%d:" % k],
              rd=["v%d" % t], wr=["vcc", "scc", "s%d" % sSPIN, "s%d" % sT1] + ["v%d" % r for r in regs])
    raw.cost = 32
    return fast + [raw]

RR = 80
def t_kv_red():
    ld = []
    for k in range(4):
        ld += ["s_mov_b32 s%d, %d" % (sT1, 8704 * k), "buffer_load_dwordx4 %s, v%d, %s, s%d offen sc1" % (vr(RR + 4 * k, 4), vKRL, srd(SW), sT1)]
    iss = [L("\n".join(ld[2 * k:2 * k + 2])) for k in range(4)]
    out = data_poll(ld, list(range(RR, RR + 16)), vKVA)
    for j in range(4):
        out += L("v_add_f32 v%d, v%d, v%d\nv_add_f32 v%d, v%d, v%d" % (RR + j, RR + j, RR + 4 + j, RR + 8 + j, RR + 8 + j, RR + 12 + j))
    for j in range(4): out += L("v_add_f32 v%d, v%d, v%d" % (RR + j, RR + j, RR + 8 + j))
    out += L("""
    v_permlane16_swap_b32 v{a}, v{b}
    v_permlane16_swap_b32 v{c}, v{d}
    v_add_f32 v{a}, v{a}, v{b}
    v_add_f32 v{c}, v{c}, v{d}
    v_permlane32_swap_b32 v{a}, v{c}
    v_add_f32 v{a}, v{a}, v{c}
    buffer_store_dword v{a}, v{s}, {sr}, 0 offen sc1
    """.format(a=RR, b=RR + 1, c=RR + 2, d=RR + 3, s=vKRS, sr=srd(SW)))
    needs(iss, KRL=vKRL); needs(out, KRS=vKRS)
    return iss, out

def t_att_q():
    out = []
    if cfg.x_notask: return [I("s_nop 0")]
    out += phi_mfma(SET0, 64) + phi_mfma(SET0 + 16, 72)
    out += softmax2(SET0, 0) + softmax2(SET0 + 8, 0) + softmax2(SET0 + 16, 1) + softmax2(SET0 + 24, 1)
    return out

KR = 32
def t_kv_load():
    ld = []
    for hh in range(2):
        for r4 in range(4):
            ld += ["buffer_load_dwordx4 %s, v%d, %s, 0 offen offset:%d sc1" % (vr(KR + 16 * hh + 4 * r4, 4), vKVL, srd(SW), 2176 * hh + 544 * r4)]
    return needs(L("\n".join(ld)), KVL=vKVL), data_poll(ld, list(range(KR, KR + 32)), vKVA)

def t_o():
    out = []
    for hh in range(2):
        for j in range(8): out += L("v_cvt_pk_bf16_f32 v%d, v%d, v%d" % (KR + 16 * hh + j, KR + 16 * hh + 2 * j, KR + 16 * hh + 2 * j + 1))
    seq = [(hh, blk) for hh in range(2) for blk in range(2)]
    def mm(k):
        hh, blk = seq[k]; d = 64 + 16 * (k & 1); p = SET0 + 16 * blk + 8 * hh
        return L("v_mfma_f32_32x32x16_bf16 %s, %s, %s, 0" % (vr(d, 16), vr(KR + 16 * hh, 4), vr(p + 4, 4))) + \
               L("v_mfma_f32_32x32x16_bf16 %s, %s, %s, %s" % (vr(d, 16), vr(KR + 16 * hh + 4, 4), vr(p, 4), vr(d, 16)))
    def fin(k):
        hh, blk = seq[k]; d = 64 + 16 * (k & 1)
        o = L("v_add_f32 v%d, 0x358637bd, v%d\nv_rcp_f32 v%d, v%d" % (d + 8, d + 8, d + 8, d + 8))
        for r in range(8):
            o += L("v_mul_f32 v%d, v%d, v%d" % (d + r, d + 8, d + r))
            if r & 1: o += L("v_cvt_pk_bf16_f32 v%d, v%d, v%d" % (d + r // 2, d + r - 1, d + r))
        st = L("s_mov_b32 s%d, %d" % (sT1, 28 * 2048)) + \
             L("buffer_store_dwordx4 %s, v%d, %s, s%d offen offset:%d sc1" % (vr(d, 4), vHST, srd(SW), sT1, 2048 * hh + 1024 * blk), tag="ost" if k == 3 else None)
        return o + [st]
    out += mm(0) + mm(1) + fin(0) + mm(2) + fin(1) + mm(3) + fin(2) + fin(3)
    return out

def dma(vo, sr, so, imm, tag=None):
    role = "XD" if sr == SX else "WQD" if sr == SQ else "W2D" if sr in (SD, SO) else "WHD" if vo == WHD else "WGD"
    return needs(dma_(vo, sr, so, imm, tag), **{role: vo})

def dma_(vo, sr, so, imm, tag=None):
    return L("buffer_load_dwordx4 v%d, %s, %s offen%s lds" % (vo, srd(sr), so, " offset:%d" % imm if imm else ""), tag=tag)

def m0set(base, lit): return L("s_add_u32 m0, s%d, %d" % (base, lit))

def dma_x(c, slot, tag):
    if not cfg.rot:
        g = m0set(sLX, slot * PITCH) + L("s_movk_i32 s%d, %d" % (sH2 + 0 if False else 79, 128 * c))
        return [g + dma(XD, SX, "s79", 0)] + [dma(XD + i, SX, "s79", 1024 * i, tag if i == 3 else None) for i in range(1, 4)]
    g = m0set(sLX, slot * PITCH)
    return [g + dma(XD, SX, "s%d" % (sKX + c), 0)] + [dma(XD + i, SX, "s%d" % (sKX + c), 1024 * i, tag if i == 3 else None) for i in range(1, 4)]

def dma_full(vo, sr, kreg, extra, slot, tag):
    g = m0set(sL2K, slot * PITCH)
    so = "s%d" % kreg
    if not cfg.rot:
        lit = extra + ((kreg - sKQ) * 64 * 3072 if kreg < sKG else (kreg - sKG) * 64 * 3584)
        g += L("s_mov_b32 s%d, %d" % (sT0, lit)); so = "s%d" % sT0
        return [g + dma(vo, sr, so, 0) + dma(vo + 1, sr, so, 1024, tag)]
    if extra:
        g += L("s_add_u32 s%d, s%d, %d" % (sT0, kreg, extra)); so = "s%d" % sT0
        return [g + dma(vo, sr, so, 0) + dma(vo + 1, sr, so, 1024, tag)]
    return [g + dma(vo, sr, so, 0) + dma(vo + 1, sr, so, 1024, tag)]

def dma_half(c, slot, tag):
    so = "s%d" % (sKG + c)
    if not cfg.rot:
        mv = lambda: L("s_mov_b32 s%d, %d" % (sT0, c * 64 * 3584)); so = "s%d" % sT0
        return [m0set(sL1K, slot * PITCH) + mv() + dma(WHD, SG, so, 0), m0set(sL1K, slot * PITCH + 4128) + mv() + dma(WHD, SU, so, 0, tag)]
    return [m0set(sL1K, slot * PITCH) + dma(WHD, SG, so, 0), m0set(sL1K, slot * PITCH + 4128) + dma(WHD, SU, so, 0, tag)]

def slice_src(n):
    return (SD, sWDB, 16 * n) if n < 28 else (SO, sWOB, 16 * (n - 28))

FIRST = [0, 8, 16, 24, 28, 36]
sR2 = sKX
def cls_of(n):
    c = max(k for k in range(5) if FIRST[k] <= n)
    return c, n - FIRST[c]

def r2_table():
    out = [L("s_and_b32 s{a}, s{tt}, 3\ns_lshl_b32 s{a}, s{a}, 1\ns_add_u32 s{a}, s{a}, s{ct}\ns_and_b32 s{a}, s{a}, {m}\ns_lshl_b32 s{a}, s{a}, 11".format(a=sR2, tt=sTT, ct=sCT, m=7 if cfg.rot2 else 0))]
    for i in range(1, 8): out.append(L("s_add_u32 s{a}, s{p}, 2048\ns_and_b32 s{a}, s{a}, 0x3800".format(a=sR2 + i, p=sR2 + i - 1)))
    return defines(out, R2T=["s%d" % (sR2 + i) for i in range(8)])

def dma_w2(n, slot):
    sr, base, row = slice_src(n)
    c, i = cls_of(n)
    g = m0set(sL2K, slot * PITCH)
    if c == 3: g += L("s_and_b32 s{t}, s{r}, 0x1800\ns_lshl3_add_u32 s{t}, s{t}, s{b}".format(t=sT0, r=sR2 + i, b=base))
    else: g += L("s_lshl3_add_u32 s{t}, s{r}, s{b}".format(t=sT0, r=sR2 + i, b=base))
    needs(g, R2T="s%d" % (sR2 + i))
    g += dma(W2D, sr, "s%d" % sT0, 0) + dma(W2D + 1, sr, "s%d" % sT0, 1024, "w2_%d" % n)
    if n in (7, 15, 23): g += L("s_add_u32 s%d, s%d, 131072" % (sWDB, sWDB))
    return [g]

def h_load(n):
    c, i = cls_of(n)
    if c == 3: g = L("s_and_b32 s{t}, s{r}, 0x1800\ns_add_u32 s{t}, s{t}, {l}".format(t=sT1, r=sR2 + i, l=FIRST[c] * 2048))
    else: g = L("s_add_u32 s%d, s%d, %d" % (sT1, sR2 + i, FIRST[c] * 2048))
    needs(g, R2T="s%d" % (sR2 + i))
    a = 8 * (n % 32)
    for b in range(2):
        g += L("buffer_load_dwordx4 %s, v%d, %s, s%d offen%s sc1" % (ar(a + 4 * b, 4), vHLD, srd(SW), sT1, " offset:1024" if b else ""))
    return needs(g, HLD=vHLD)

def build_type(typ):
    global vHLD, vPOL
    A = typ == "A"
    vHLD, vPOL = (186, 187) if A else (155, 253)
    passes = [("att2", 2, SET0, 0), ("pair", 2, SET1, 2), ("half", 1, SET0, 4)] if A else \
             [("pair", 2, SET0, 0), ("pair", 2, SET1, 2), ("q", 1, SET0, 4)]
    WRs = [WR1, WR2, WR3]
    ACC2 = [16, 32, 208, 224] if A else [96, 112, 208, 224]
    accr = lambda p, j, b: (0, 48)[b] if (A and p == 2) else passes[p][2] + 32 * j + 16 * b
    S = Sched()
    step_beat = {}
    nt = lambda g: passes[g // 32][1]
    wbuf = lambda g, j: WF + (8 * (g & 1) + 4 * j if nt(g) == 2 else 4 * (g & 3))

    slot_of = {}
    for c in range(8):
        slot_of[("x", c)] = 2 * (c % 4); slot_of[("w", 0, c)] = 8 + 2 * (c % 4)
    def item_dma(it):
        if it[0] == "x": return dma_x(it[1], slot_of[it], "x%d" % it[1])
        if it[0] == "s": return dma_w2(it[1], slot_of[it])
        _, p, c = it; kind = passes[p][0]; sl = slot_of[it]; tag = "w%d_%d" % (p, c)
        if kind == "att2": return dma_full(WQD, SQ, sKQ + c, 0, sl, None) + dma_full(WQD, SQ, sKQ + c, 1024, sl + 1, tag)
        if kind == "q": return dma_full(WQD, SQ, sKQ + c, 0, sl, tag)
        if kind == "half": return dma_half(c, sl, tag)
        ex = 256 if (not A and p == 1) else 0
        return dma_full(WGD, SG, sKG + c, ex, sl, None) + dma_full(WGD, SU, sKG + c, ex, sl + 1, tag)
    def item_slots(it):
        if it[0] == "x": return 2
        if it[0] == "s": return 1
        return 2 if passes[it[1]][0] in ("att2", "pair") else 1

    def m16(d, sel, src, first): S.beat(I("v_mfma_f32_16x16x32_bf16 %s, %s, %s, %s" % (vr(d, 4), vr(sel, 4), src, "0" if first else vr(d, 4))), 16)
    def row_stats(k):
        for h in range(2):
            for b in range(2):
                d = vr((SQD, SQD2)[h] + 4 * b, 4)
                S.beat(I("v_mfma_f32_4x4x4_16b_bf16 %s, %s, %s, %s" % (d, ar(8 * k + 4 * b + 2 * h, 2), ar(8 * k + 4 * b + 2 * h, 2), "0" if k == 0 else d)), 8)
        m16(RSD, SEL01, ar(8 * k, 4), k == 0); m16(RSD, SEL23, ar(8 * k + 4, 4), False)
    def col_stats(g):
        for j in range(nt(g)): m16(CSD, (SEL01, SEL23)[j], vr(wbuf(g, j), 4), g % 32 == 0 and j == 0)
    for g in range(96):
        p, c, t = g // 32, (g // 4) % 8, g % 4
        kind, T, acc, tile0 = passes[p]
        step_beat[g] = len(S.beats)
        k = g % 32
        if cfg.st_early and c == 7 and T == 2 and t == 1 and not cfg.x_nostat: col_stats(g)
        for j in range(T):
            for b in range(2):
                d = vr(accr(p, j, b), 16)
                S.beat(I("v_mfma_f32_32x32x16_bf16 %s, %s, %s, %s" % (d, vr(wbuf(g, j), 4), ar(8 * k + 4 * b, 4), "0" if k == 0 else d)))
        if t < 2 and not cfg.x_nostat:
            early = cfg.st_early and c == 7 and T == 2
            if p == 0:
                for kk in ([k] if not early else [k, k + 1] if t == 0 else []): row_stats(kk)
            if not (early and t == 1): col_stats(g)
    step_beat[96] = len(S.beats)
    sl_beat = {}
    for n in range(36):
        sl_beat[n] = len(S.beats)
        w = WF + 8 * (n & 1); a = 8 * (n % 32)
        for cb in range(2):
            for tb in range(2):
                d = vr(ACC2[2 * cb + tb], 16)
                S.beat(I("v_mfma_f32_32x32x16_bf16 %s, %s, %s, %s" % (d, vr(w + 4 * cb, 4), ar(a + 4 * tb, 4), "0" if n == 0 else d)), cfg.p2period)
    sl_beat[36] = len(S.beats)
    S.beat(None)

    bar_step = {}
    for cc in range(24):
        T = passes[cc // 8][1]
        bar_step[cc] = 4 * cc + (3 if (T == 2 or cc == 23) else 2)
    last_rd = {}
    def w_reads(g, j):
        p, c, t = g // 32, (g // 4) % 8, g % 4
        kind = passes[p][0]; sl = slot_of[("w", p, c)]
        if p == 0: base, off = WR1 + (t >> 1), (sl - 8) * PITCH
        else: base, off = WRs[p] + 2 * (sl >= 8) + (t >> 1), (sl % 8) * PITCH
        if kind == "att2": off += j * PITCH
        if kind == "pair": off += 32 * j
        st, js = (1024, 256) if kind == "half" else (2048, 512)
        off += (t & 1) * st
        w = wbuf(g, j)
        role = {"att2": "Watt", "q": "Watt", "pair": "Wpair", "half": "Whalf"}[kind]
        return needs([I("ds_read_b64_tr_b16 %s, v%d offset:%d" % (vr(w + 2 * e, 2), base, off + e * js)) for e in range(2)], **{role: base})
    def x_reads(g):
        c, t = g // 4, g % 4
        return needs([I("ds_read_b128 %s, v%d offset:%d" % (ar(8 * g + 4 * b, 4), XR + t, slot_of[("x", c)] * PITCH + 4096 * b)) for b in range(2)], XR=XR + t)
    def w2_reads(n):
        sl = slot_of[("s", n)]; w = WF + 8 * (n & 1)
        return needs([I("ds_read_b64_tr_b16 %s, v%d offset:%d" % (vr(w + 4 * cb + 2 * e, 2), W2R + 2 * (sl >= 8) + cb, (sl % 8) * PITCH + 1024 * e)) for cb in range(2) for e in range(2)], W2R=range(W2R, W2R + 4))

    queue = []
    for c in range(cfg.npro, 8): queue += [("x", c), ("w", 0, c)]
    queue += [("w", 1, c) for c in range(8)]
    if cfg.mix:
        for c in range(8): queue += [("w", 2, c), ("s", c)]
        queue += [("s", n) for n in range(8, 36)]
    else: queue += [("w", 2, c) for c in range(8)] + [("s", n) for n in range(36)]
    free = set()
    for c in range(cfg.npro, 4): free |= {2 * c, 2 * c + 1, 8 + 2 * c, 9 + 2 * c}
    issue_after = {}; held = []
    n_ins = lambda it: 4 if item_slots(it) == 2 else 2
    for cc in range(-1, 24):
        p, c = max(cc, 0) // 8, cc % 8
        T = passes[p][1] if cc >= 0 else 0
        rel = []
        budget = (cfg.pacew if A or cfg.pacewB is None else cfg.pacewB).get(cc, cfg.pace[p] if cc >= 0 else cfg.pace0)
        if T == 2 or cc == 23:
            rel.append(cc)
            if cc > 0 and passes[(cc - 1) // 8][1] == 1: rel.append(cc - 1)
        elif cc > 0 and passes[(cc - 1) // 8][1] == 1: rel.append(cc - 1)
        held += rel; rel = []
        if cc not in cfg.skipbar: rel, held = held, []
        for r in rel:
            it = ("w", r // 8, r % 8)
            free |= set(range(slot_of[it], slot_of[it] + item_slots(it)))
            if r < 8: free |= {slot_of[("x", r)], slot_of[("x", r)] + 1}
        got = []
        while queue:
            it = queue[0]; ns = item_slots(it)
            if it in slot_of: cand = [slot_of[it]] if all(slot_of[it] + i in free for i in range(ns)) else []
            elif ns == 2: cand = [s for s in sorted(free) if s % 2 == 0 and s + 1 in free]
            else: cand = sorted(free)
            if not cand or budget < n_ins(it): break
            budget -= n_ins(it)
            slot_of[it] = cand[0]
            for i in range(ns): free.discard(cand[0] + i)
            got.append(queue.pop(0))
        issue_after[cc] = (rel, got)
    p2_issue = {}
    for n in range(36):
        free.add(slot_of[("s", n)])
        for k in range(cfg.p2pace):
            if queue and free and n >= cfg.w2at(queue[0][1]):
                it = queue.pop(0); slot_of[it] = min(free); free.discard(slot_of[it]); p2_issue.setdefault(n, []).append(it)
    print(typ, "prefetched slices before P2:", 36 - sum(len(x) for x in p2_issue.values()))

    where = {}
    for g in range(1, 96):
        T = nt(g); k = g % 32
        for j in range(T):
            if T == 2: at = g - 1 if not (k == 0 and nt(g - 1) == 1 and j == 0) else g - 2
            else: at = g - 2 if not (k < 2 and nt(g - k - 1) == 2) else g - k - 1
            where.setdefault(at, []).append(("w", g, j))
        if g < 32: where.setdefault(g - 1 if not cfg.x_early else g - (1, 1, 2, 2)[g % 4], []).append(("x", g))
    for at, lst in sorted(where.items()):
        ins = []
        for it in lst:
            r = w_reads(it[1], it[2]) if it[0] == "w" else x_reads(it[1])
            if it[1] % 4 == 3:
                r[-1].tag = "rd%d_%s%d" % (it[1] // 4, it[0], it[2] if it[0] == "w" else 0)
                last_rd[it[1] // 4] = r[-1].tag
            ins += r
        b0 = step_beat[at]; nb = 2 * nt(at)
        late_x = []
        if cfg.x_early and at < 32 and at % 4 < 2:
            k0 = 6 if at % 4 == 0 else 4
            ins, late_x = ins[:k0], ins[k0:]
            for x in late_x: x.tag = None
            for i, x in enumerate(late_x): S.put(b0 + 2 + i, x)
        if cfg.rd_early and len(ins) == 6: ins = [ins[0], ins[1], ins[4], ins[5], ins[2], ins[3]]
        if cfg.rd_early:
            tg = [x.tag for x in ins if x.tag]
            if tg:
                for x in ins: x.tag = None
                ins[-1].tag = last_rd[lst[0][1] // 4]
        if cfg.one_wait and nt(at) == 2 and at + 1 in step_beat and lst[0][1] == at + 1:
            if not ins[-1].tag: ins[-1].tag = "stp%d" % at
            S.put(step_beat[at + 1], Wait(ins[-1].tag), pre=True)
        nbb = 2 if cfg.rd_early else nb
        for i, x in enumerate(ins): S.put(b0 + min(nbb - 1, i * nbb // len(ins)), x)

    extra_pre = {}
    def place_barriers():
        for cc in range(24):
            b = step_beat[bar_step[cc]]
            if cc in cfg.skipbar:
                assert cc not in extra_pre and cc not in extra_wait
                continue
            pre = []
            for r in issue_after[cc][0]: pre.append(Wait(last_rd[r]))
            if cc in extra_pre: pre.append(Wait("lgkm0"))
            if cc in extra_wait: pre.append(Wait(extra_wait[cc]))
            if cc < 23:
                nx = cc + 1
                while nx in cfg.skipbar: nx += 1
                if nx < 8: pre.append(Wait("x%d" % nx))
                pre.append(Wait("w%d_%d" % (nx // 8, nx % 8)))
            pre.append(I("s_barrier"))
            S.beats[b]["pre"] = pre + S.beats[b]["pre"]
    bb = lambda cc: step_beat[bar_step[cc]]
    for cc in range(-1, 24):
        items = []
        for it in issue_after[cc][1]: items += item_dma(it)
        if items: S.spread(items, bb(cc) if cc >= 0 else 0, bb(cc + 1) if cc < 23 else sl_beat[0] + 2)

    r0 = w2_reads(0)
    S.put(step_beat[95], [Wait("w2_0")] );
    for i, x in enumerate(r0): S.put(step_beat[95] + min(i // 2, 2 * nt(95) - 1), x)
    for n in range(36):
        b = sl_beat[n]
        if n + 1 < 36:
            S.put(b, Wait("w2_%d" % (n + 1)))
            for i, x in enumerate(w2_reads(n + 1)): S.put(b + i, x)
        for k, it in enumerate(p2_issue.get(n, [])): S.put(b + 2 + k, dma_w2(it[1], slot_of[it])[0])

    sp = lambda g: step_beat[g]
    sl0 = sl_beat[0]
    def after(b, cyc):
        while cyc > 0: cyc -= max(S.beats[b]["period"], S.load(b)); b += 1
        return b
    def end_of(it):
        cc = [c for c in issue_after if it in issue_after[c][1]][0]
        return bb(cc + 1)
    def start_of(it):
        cc = [c for c in issue_after if it in issue_after[c][1]][0]
        return bb(cc)
    assert start_of(("w", 1, 0)) >= sp(cfg.setup_end) and end_of(("x", 7)) < sp(28)
    for cc in range(24):
        if cc not in cfg.skipbar:
            for k in range(cfg.quiet): S.beats[bb(cc) + k]["quiet"] = True
    setup = late_setup(A)
    pro_setup = []
    if cfg.pro_setup:
        setup = flat(setup)
        mem = [x for x in setup if x.kind == "vm"]
        pro_setup = [x for x in setup if x.kind != "vm"]
        S.spread(mem, sp(cfg.clr_at), sp(cfg.clr_at + 5))
    else: S.spread(setup, sp(1), sp(cfg.setup_end), "setup")
    if cfg.wpf: S.put(sp(cfg.wpf), w_touch(cfg.wpf1, 110))
    if not A and cfg.bt2: S.put(sp(cfg.bt2), b_touch2(120, 2, 4))
    if not A and cfg.bt3: S.put(sp(cfg.bt3), b_touch2(122, 6, 1) + b_touch3(124))
    if cfg.late_g: S.put(sp(cfg.late_g), w_touch([(SG, 14), (SU, 14), (SQ, 12)], 102))
    if cfg.late_d: S.put(sp(cfg.late_d), w_touch([(SD, 14), (SO, 4)], 108) + (p3_touch(116) if cfg.late_u else []))
    if cfg.p3t: S.put(sp(cfg.p3t), p3_touch(116))
    if cfg.wpfd: S.put(sp(cfg.wpfd), w_touch([(SD, 14), (SO, 4)], XR + 1))
    extra_wait = {4: "clr"}
    S.put(bb(4), needs(L("v_mov_b32 v%d, 1\nbuffer_atomic_add v%d, v%d, %s, 0 offen" % (KVD + 1, KVD + 1, KVD, srd(SDBG))), HSA=KVD))
    S.put(sp(21), wphi_finish())
    S.spread(addr_wfull(WR2, 4, False, False, TMP + 8), max(end_of(("x", 7)), sp(22)), sp(30))
    S.spread(r2_table(), max(end_of(("x", 7)), sp(22)), sp(30))
    pre, adds = t_stat_add()
    S.spread(pre, sp(26), sp(28))
    cs_pub = lambda tile0: [Gap(1)] + t_cs_add(tile0, 'CSs' if A and tile0 == 0 else 'CS')
    S.spread(adds + cs_pub(0)[1:], sp(29) + 2, sp(30) + 1) if cfg.st_early else S.spread(cs_pub(0) + adds, sp(30), sp(31)); extra_pre[7] = 1
    fin, late = t_stat_fin()
    S.spread(t_cs_tot(0, TMP + 2), sp(31), sp(32))
    S.spread(fin, sp(31), sp(32))
    hs_i, hs_c = poll(XR, XR + 1, "8" if cfg.dbgout else "4", SDBG, "gt")
    if cfg.dbgout: S.put(sp(36), L("v_and_b32 v%d, 31, v%d\nv_lshlrev_b32 v%d, 2, v%d\nv_add_u32 v%d, 64, v%d" % (XR, vL, XR, XR, XR, XR)) + [hs_i])
    else: S.put(sp(36), [I("v_lshlrev_b32 v%d, 2, v%d" % (XR, vL)), hs_i])
    S.put(sp(44), stamp("hs0") + [hs_c] + stamp("hs1"))
    for k, (st, n0, ns) in enumerate(cfg.w2pf):
        assert sp(st) >= end_of(("w", 1, 7))
        if cfg.w2B and A: continue
        S.put(sp(st) + 2, w2_touch(WGD + (k & 1), n0, ns, cfg.w2B))
    S.spread(cs_pub(2), sp(62) - 3 * cfg.st_early, sp(63) - 3 * cfg.st_early); extra_pre[15] = 1
    S.spread(t_cs_tot(2, XR + 2), sp(63), sp(64))
    S.spread(cs_pub(4), sp(94), sp(95)); extra_pre[23] = 1
    S.spread(t_cs_tot(4, WR2 + 1), sp(95), sl0)
    x = addr_p2(WR2 + 1)
    S.spread(addr_p2(XR + 2)[-2:], sp(60), sp(62)); S.spread(x[:-2], sp(76), sp(90))
    so2 = "s_mov_b32 s%d, %d" % (sT1, (16 if A else 8) * 2048)
    if A:
        S.spread(addr_whalf(WR3, XR + 2) + addr_cs(False, XR + 2), sp(52), sp(60))
        att = t_corr(SET0, 2, 0) + late + t_att_k()
        h1 = t_hepi(SET1, so2, 0, None) + t_hepi(SET1 + 32, so2, 2048, "h1")
        if cfg.h1first:
            eh = S.spread(t_corr(SET1, 2, 2) + h1, sp(64), sp(64 + cfg.h1first), "hepi1")
            S.put(after(eh, cfg.fd), set_flag(1, "h1", WR2 + 3))
        else: S.spread(t_corr(SET1, 2, 2), sp(64), sp(68))
        e = S.spread(att, sp(32), sp(32 + cfg.a_att), "att_k")
        busy = {"v%d" % r for r in list(range(16)) + list(range(48, 64))}
        later = [x for b in range(sp(64), e + 1) for x in flat(S.beats[b]["post"])]
        assert not any(x in later and busy & set(x.rd + x.wr) for x in flat(att) if isinstance(x, I)), "pass-3 accumulators still in use"
        cb = min(cc for cc in range(8, 24) if bb(cc) > e and cc not in cfg.skipbar); extra_pre[cb] = 1
        print("  kv exchange barrier chunk", cb)
        e = S.spread(t_kv_pub(), bb(cb), min(bb(cb) + cfg.a_pub, sl0), "kv_pub")
        S.put(e, stamp("kvi"))
        if not cfg.h1first:
            b0 = e + 1
            e = S.spread(h1, b0, min(b0 + cfg.a_h1, sl0 + 4), "hepi1")
            S.put(after(e, cfg.fd), set_flag(1, "h1", vPW))
        so = "s_mov_b32 s%d, s%d" % (sT1, sH2)
        S.spread(t_corr(SET0, 1, 4, 48), sl0, sl0 + 1)
        b0 = max(e, sl0 + 2)
        e = S.spread(t_hepi(SET0, so, 0, "h2", 48), b0, b0 + cfg.a_h2, "hepi2")
        S.put(after(e, cfg.fd), set_flag(2, "h2", vPW))
        last_task = e
    else:
        so = "s_mov_b32 s%d, 0" % sT1
        e = S.spread(t_corr(SET0, 2, 0) + late + t_hepi(SET0, so, 0, None) + t_hepi(SET0 + 32, so, 2048, "h0"), sp(32), sp(32 + cfg.b_h0), "hepi0")
        S.put(after(e, cfg.fd), set_flag(1, "h0", WHD))
        S.spread(addr_wfull(WR3, 4, True, False, XR + 2), sp(52), sp(60))
        e = S.spread(t_corr(SET1, 2, 2) + t_hepi(SET1, so2, 0, None) + t_hepi(SET1 + 32, so2, 2048, "h1"), sp(64), sp(64 + cfg.h1), "hepi1")
        S.put(after(e, cfg.fd), set_flag(2, "h1", WHD))
        att = t_corr(SET0, 1, 4) + [Gap(1)] + t_att_q()
        ri, rc = t_kv_red()
        li, lc = t_kv_load()
        e = S.spread(att, sl0, sl0 + cfg.b_att, "att_q")
        S.spread(ri, sl0 + cfg.b_ri, sl0 + cfg.b_ri + 2)
        S.put(sl0 + cfg.b_rc, stamp("kr0") + rc + stamp("kr1"))
        S.spread(li, sl0 + cfg.b_li, sl0 + cfg.b_li + 4)
        assert e <= sl0 + cfg.b_lc
        S.put(sl0 + cfg.b_lc, stamp("kp0") + lc + stamp("kp1"))
        e = S.spread(t_o(), sl0 + cfg.b_lc, sl0 + cfg.b_lc + cfg.b_o, "o")
        S.put(after(e, cfg.fd), set_flag(3, "ost", WHD))
        last_task = e
    place_barriers()
    first = [0, 8, 16, 24, 28, 36]
    hl = cfg.hlA if A else cfg.hlB
    for c in range(5):
        iss, chk = class_poll(c, (WGD, WR2)[c & 1], WGD + 1)
        pos = [sp(64 + cfg.p0) + i * cfg.hstep0 if c == 0 else sl0 + hl[first[c] + i] for i in range(first[c + 1] - first[c])]
        S.put(pos[0] - cfg.poll_lead[c], iss)
        S.put(pos[0], stamp("cp%d_0" % c) + chk + stamp("cp%d_1" % c))
        for i, b in enumerate(pos):
            n = first[c] + i
            if b < sl0: assert b >= sp(64 + n + 1)
            assert b < sl_beat[n], (c, n)
            S.put(b, h_load(n))
    RES = TMP
    rb_ = max(last_task + 2, sl_beat[24])
    S.put(rb_, L("""
    s_lshl_b32 s{t0}, s{tt}, 2
    s_add_u32 s{t0}, s{t0}, s{wv}
    s_lshl_b32 s{t0}, s{t0}, 14
    s_lshl_b32 s{t1}, s{ct}, 7
    s_add_u32 s{t0}, s{t0}, s{t1}
    v_lshrrev_b32 v{a}, 3, v{L}
    v_lshlrev_b32 v{a}, 10, v{a}
    v_and_b32 v{b}, 7, v{L}
    v_lshl_add_u32 v{a}, v{b}, 4, v{a}
    v_add_u32 v{o}, s{t0}, v{a}
    """.format(t0=sT0, t1=sT1, tt=sTT, wv=sWV, ct=sCT, a=TMP + 8, b=TMP + 9, o=WQD - 1, L=vL)))
    vOUT = WQD - 1; vOUT_ = 6
    S.put(rb_ + 15, I("v_mov_b32 v6, v%d" % vOUT))
    S.put(rb_ + 1, L("s_mov_b32 s%d, 8192\nbuffer_load_dwordx4 %s, v%d, %s, 0 offen\nbuffer_load_dwordx4 %s, v%d, %s, s%d offen" % (sT1, vr(RES, 4), vOUT, srd(SX), vr(RES + 4, 4), vOUT, srd(SX), sT1)))
    S.spread(L("""
    v_bfe_u32 v8, v{L}, 3, 2
    v_mul_u32_u24 v8, {P}, v8
    v_and_b32 v9, 7, v{L}
    v_lshl_add_u32 v8, v9, 8, v8
    v_add_u32 v8, s{l2k}, v8
    v_lshrrev_b32 v10, 5, v{L}
    v_xor_b32 v10, v10, v9
    v_lshl_add_u32 v0, v10, 4, v8
    v_xor_b32 v11, 2, v10
    v_lshl_add_u32 v1, v11, 4, v8
    v_xor_b32 v11, 4, v10
    v_lshl_add_u32 v2, v11, 4, v8
    v_xor_b32 v11, 6, v10
    v_lshl_add_u32 v3, v11, 4, v8
    v_lshrrev_b32 v8, 3, v{L}
    v_and_b32 v10, 3, v{L}
    v_lshlrev_b32 v10, 1, v10
    v_xor_b32 v10, v10, v8
    v_bfe_u32 v11, v{L}, 2, 1
    v_lshlrev_b32 v11, 7, v11
    v_lshl_add_u32 v11, v8, 8, v11
    v_mov_b32 v9, s{wv}
    v_mul_u32_u24 v9, {P2}, v9
    v_add_u32 v11, v11, v9
    v_lshl_add_u32 v4, v10, 4, v11
    v_xor_b32 v10, 1, v10
    v_lshl_add_u32 v5, v10, 4, v11
    """.format(L=vL, P=PITCH, P2=2 * PITCH, l2k=sL2K, wv=sWV)), rb_ + 2, rb_ + 14)
    if cfg.stamps == 2:
        pts = [("b%d" % cc, bb(cc)) for cc in range(24)] + [("s%d" % n, sl_beat[n]) for n in range(0, 37) if n not in (34, 35)]
        prev = ("iss", 0)
        for k, (nm, b) in enumerate(pts):
            for x in (prev[0], nm):
                if x not in stamp_names: stamp_names.append(x)
            cur = sST + 2 * ((k + 1) & 1); old = sST + 2 * (k & 1)
            rd = I("v_writelane_b32 v%d, s%d, %d" % (vSTAMP, old, stamp_names.index(prev[0]) + 2))
            mt = I("s_memtime s[%d:%d]" % (cur, cur + 1))
            if nm[0] == "b" and int(nm[1:]) not in cfg.skipbar:
                pre = S.beats[b]["pre"]; pre.insert(len(pre) - 1, rd); pre.append(mt)
            else: S.beats[b]["pre"] = [rd, mt] + S.beats[b]["pre"]
            prev = (nm, b)
        last_stamp = I("v_writelane_b32 v%d, s%d, %d" % (vSTAMP, cur, stamp_names.index(prev[0]) + 2))
    if cfg.stamps == 3:
        lane = 2
        fine = []
        for cc in range(cfg.fine0, cfg.fine0 + 8):
            b0_, b1_ = bb(cc), bb(cc + 1)
            pts = [b0_ + (b1_ - b0_) * k // 7 for k in range(7)]
            rd = []
            for k, b in enumerate(pts):
                pr = ((40, 42, 86, 88, 90, 98, 100) if cfg.fine0 >= 8 else (40, 42, 32, 24, 20, 98, 100))[k]
                mt = I("s_memtime s[%d:%d]" % (pr, pr + 1))
                S.beats[b]["pre"].append(mt)
                rd.append(I("v_writelane_b32 v%d, s%d, %d" % (vSTAMP, pr, lane))); lane += 1
                fine.append(mt)
            pre = S.beats[b1_]["pre"]
            k = [i for i, x in enumerate(pre) if getattr(x, "kind", "") == "barrier"][0]
            S.beats[b1_]["pre"] = pre[:k] + rd + pre[k:]
        if "f0" not in stamp_names: stamp_names.extend("f%d" % k for k in range(56))
    if cfg.stamps == True:
        for nm, b in (("p1", sp(32)), ("p2", sp(64)), ("p3", sl_beat[0]), ("s8", sl_beat[8]), ("s16", sl_beat[16]), ("s20", sl_beat[20]), ("s28", sl_beat[28]), ("s36", sl_beat[36]),
                      ("c1", sp(4)), ("c2", sp(8)), ("c4", sp(16))):
            S.put(b, stamp(nm), pre=True)

    pro = entry_x(item_dma)
    n_common = len(pro)
    if A:
        pro += L("s_lshl_b32 s{t0}, s{i}, 7\ns_add_u32 s{t0}, s{t0}, 1024".format(t0=sT0, i=sI))
        pro += wdma_addr(WQD, 3072, sT0)
    else:
        pro += L("s_mul_i32 s{t0}, s{q}, 896\ns_lshl_b32 s{t1}, s{ab}, 7\ns_add_u32 s{t0}, s{t0}, s{t1}".format(t0=sT0, t1=sT1, q=sQ, ab=sAB))
        pro += wdma_addr(WGD, 3584, sT0)
    pro += flat(item_dma(("w", 0, 0))) + stamp("iw0")
    pro += entry_rest()
    order = cfg.order if A or not cfg.orderB else cfg.orderB
    for k, w in enumerate(order):
        if w in "123": pro += flat(item_dma(("x", int(w)))) + flat(item_dma(("w", 0, int(w))))
        elif w == "p": pro += p1_touch(112)
        elif w == "g": pro += w_touch([(SG, 14), (SU, 14), (SQ, 12)], 102)
        elif w == "d": pro += w_touch([(SD, 14), (SO, 4)], 108)
        elif w == "r": pro += L("".join(rot_regs(c) for c in range(cfg.npro, 8)))
        elif w == "i": pro += b_index()
        elif w == "P": pro += b_touch1(104)
        elif w == "G": pro += b_touch2(120, 2, 4)
        elif w == "u": pro += p3_touch(116)
        elif w == "t": pro += tlb_touch(120)
        elif w == "f": pro += wphi_setup(A)
        elif w == "c": pro += code_touch()
        elif w == "C": pro += code_touch(typ)
        elif w == "s": pro += early_setup() + flat(addr_wfull(WR1, 2, A, A))
        elif w == "j": pro += [I("s_branch L_main%s" % typ), I("L_main%s:" % typ)]
    pro += pro_setup
    assert cfg.npro == 1 + sum(w in "123" for w in order)
    pro += stamp("iss")
    if cfg.stamps == 2: pro += [I("s_memtime s[%d:%d]" % (sST, sST + 1))]
    pro += [Wait("x0"), Wait("w0_0"), I("s_barrier")]
    pro += stamp("data")
    pro += x_reads(0) + w_reads(0, 0) + w_reads(0, 1)

    RF = 128 - 32 if A else 64
    unp = []
    for k in range(8): unp += L("v_lshlrev_b32 v%d, 16, v%d\nv_and_b32 v%d, 0xffff0000, v%d" % (RF + 2 * k, RES + k, RF + 2 * k + 1, RES + k))
    S.spread(unp, sl_beat[31], sl_beat[34])
    tail = []
    wr = lambda tb, cb: [I("ds_write_b128 v%d, %s offset:%d" % (r4, vr(ACC2[2 * cb + tb] + 4 * r4, 4), 128 * cb + 4 * PITCH * tb)) for r4 in range(4)]
    if cfg.qmajor:
        ms = [S.beats[b]["main"] for b in range(sl_beat[34], sl_beat[36])]
        for k, q in enumerate((0, 4, 2, 6, 1, 5, 3, 7)): S.beats[sl_beat[34] + k]["main"] = ms[q]
        for k in range(1, 4): S.beats[sl_beat[34]]["post"] += S.beats[sl_beat[34] + k]["post"]; S.beats[sl_beat[34] + k]["post"] = []
        S.beats[sl_beat[34]]["pre"] += S.beats[sl_beat[34]]["post"]; S.beats[sl_beat[34]]["post"] = []
        w = wr(0, 0) + wr(0, 1) + wr(1, 0)
        for k, b in enumerate((4, 4, 5, 5, 5, 6, 6, 7)): S.put(sl_beat[34] + b, w[k])
        tail += w[8:] + wr(1, 1)
    else: tail += wr(0, 0) + wr(0, 1) + wr(1, 0) + wr(1, 1)
    tail += [Wait("lgkm0"), I("s_barrier")]
    RD = 128
    for i in range(2):
        for e in range(2):
            for w in range(4):
                tail += L("ds_read_b128 %s, v%d offset:%d" % (vr(RD + 32 * i + 16 * e + 4 * w, 4), 4 + e, 2048 * w + PITCH * i))
    pk = lambda d, a, b: I("v_pk_add_f32 %s, %s, %s" % (vr(d, 2), vr(a, 2), vr(b, 2)))
    for i in range(2):
        for e in range(2):
            b = RD + 32 * i + 16 * e; r = RF + 8 * i + 4 * e
            tail += [pk(r, r, b), pk(r + 2, r + 2, b + 2), pk(b + 4, b + 4, b + 8), pk(b + 6, b + 6, b + 10), pk(r, r, b + 12), pk(r + 2, r + 2, b + 14),
                     pk(r, r, b + 4), pk(r + 2, r + 2, b + 6)]
            tail += L("v_cvt_pk_bf16_f32 v%d, v%d, v%d\nv_cvt_pk_bf16_f32 v%d, v%d, v%d" % (8 + 4 * i + 2 * e, r, r + 1, 9 + 4 * i + 2 * e, r + 2, r + 3))
        tail += L("s_mov_b32 s%d, %d\nbuffer_store_dwordx4 %s, v%d, %s, s%d offen" % (sT1, 8192 * i, vr(8 + 4 * i, 4), vOUT_, srd(SOUT), sT1) + cfg.outfl)
    if cfg.stamps:
        tail += stamp("end")
        if cfg.stamps == 4: tail += L("s_getpc_b64 s[56:57]\nv_writelane_b32 v%d, s56, 3\nv_writelane_b32 v%d, s57, 4" % (vSTAMP, vSTAMP))
        if cfg.stamps == 4: tail += [I("s_memtime s[%d:%d]" % (sST, sST + 1)), I("v_writelane_b32 v%d, s%d, 2" % (vSTAMP, sST))]
        if cfg.stamps == 2:
            if "end" not in stamp_names: stamp_names.append("end")
            tail += [last_stamp, I("s_memtime s[%d:%d]" % (sST, sST + 1)), I("v_writelane_b32 v%d, s%d, %d" % (vSTAMP, sST, stamp_names.index("end") + 2))]
        tail += L("""
        s_memrealtime s[{a}:{b}]
        v_writelane_b32 v{st}, s{a}, 1
        s_lshl_b32 s{t0}, s2, 2
        s_add_u32 s{t0}, s{t0}, s{wv}
        s_lshl_b32 s{t0}, s{t0}, 8
        s_add_u32 s{t0}, s{t0}, {o}
        v_lshl_add_u32 v0, v{L}, 2, s{t0}
        buffer_store_dword v{st}, v0, {sr}, 0 offen
        """.format(a=sST, b=sST + 1, st=vSTAMP, t0=sT0, wv=sWV, o=WS_ST, L=vL, sr=srd(SW)))
    if cfg.dbgout:
        ix = lambda n: stamp_names.index(n) + 2
        t = """
        v_readlane_b32 s56, v{st}, 0
        v_readlane_b32 s57, v{st}, 1
        v_readlane_b32 s58, v{st}, {iss}
        s_nop 4
        v_mov_b32 v2, {oob}
        v_mov_b32 v1, 0
        v_writelane_b32 v2, 32, 0
        v_writelane_b32 v2, 40, 1
        v_writelane_b32 v2, 36, 2
        v_writelane_b32 v1, s57, 0
        v_writelane_b32 v1, s56, 1
        s_not_b32 s59, s56
        v_writelane_b32 v1, s59, 2
        buffer_atomic_umax v1, v2, {sd}, 0 offen
        s_sub_u32 s57, s57, s56
        v_mov_b32 v3, 0
        v_writelane_b32 v3, s57, 0
        """.format(st=vSTAMP, iss=ix("iss"), oob=OOB, sd=srd(SDBG))
        for k, nm in enumerate(("b0", "b3", "b7", "b15", "s0", "s28", "end")):
            t += "v_readlane_b32 s59, v%d, %d\ns_nop 4\ns_sub_u32 s59, s59, s58\nv_writelane_b32 v3, s59, %d\n" % (vSTAMP, ix(nm), k + 1)
        t += """
        v_lshlrev_b32 v2, 2, v{L}
        v_mov_b32 v4, {oob}
        v_cmp_gt_u32 vcc, 8, v{L}
        v_cndmask_b32 v2, v4, v2, vcc
        s_or_b32 s59, s2, s{wv}
        s_cmp_eq_u32 s59, 0
        s_cselect_b32 s59, 0, {oob}
        buffer_store_dword v3, v2, {sd}, s59 offen
        """.format(L=vL, oob=OOB, wv=sWV, sd=srd(SDBG))
        tail += L(t)
    if cfg.padto:
        tail.append(Raw(["v_readlane_b32 s56, v%d, 0" % vSTAMP, "L_pad%s:" % typ, "s_memrealtime s[58:59]", "s_waitcnt lgkmcnt(0)", "s_sub_u32 s58, s58, s56",
                         "s_cmp_lt_u32 s58, %d" % cfg.padto, "s_cbranch_scc1 L_pad%s" % typ]))
    tail += L("s_endpgm")
    est = sum(max(bt["period"], S.load(i)) for i, bt in enumerate(S.beats[:sl_beat[0]]))
    print("  P1 issue-model cycles:", est, " P2:", sum(max(32, S.load(i)) for i in range(sl_beat[0], sl_beat[36])))
    return n_common, pro + S.flat() + tail

def code_touch(typ=None):
    ins = L("""
    s_getpc_b64 s[{a}:{b}]
    {far}
    s_bfe_u32 s{t0}, s2, 0x40003
    s_lshl_b32 s{t0}, s{t0}, 2
    s_add_u32 s{t0}, s{t0}, s{wv}
    s_lshl_b32 s{t0}, s{t0}, 9
    v_and_b32 v{x}, 3, v{L}
    v_lshl_add_u32 v{x}, v{x}, 7, s{t0}
    v_min_u32 v{x}, {lim}, v{x}
    global_load_dword v{y}, v{x}, s[{a}:{b}]
    """.format(a=sM1, b=sM1 + 1, t0=sT0, wv=sWV, x=76, y=77, L=vL, lim="L_end%s-L_main%s-4" % (typ, typ),
               far=("L_pc%s:\ns_add_u32 s%d, s%d, L_main%s-L_pc%s\ns_addc_u32 s%d, s%d, 0" % (typ, sM1, sM1, typ, typ, sM1 + 1, sM1 + 1)) if typ else ""))
    return ins

def w_touch(which, d0):
    s = "s_lshl_b32 s{t0}, s2, 2\ns_add_u32 s{t0}, s{t0}, s{wv}\n".format(t0=sT0, wv=sWV)
    last = None
    for k, (sr, n) in enumerate(which):
        if n != last:
            s += "s_mul_i32 s{t1}, s{t0}, {b}\nv_min_u32 v{a}, {m}, v{L}\nv_lshl_add_u32 v{a}, v{a}, 7, s{t1}\n".format(t0=sT0, t1=sT1, b=128 * n, a=d0, m=n - 1, L=vL)
            last = n
        s += "buffer_load_dword v%d, v%d, %s, 0 offen\n" % (d0 + 1 + k, d0, srd(sr))
    return L(s)

def tlb_touch(d0):
    s = "v_and_b32 v{a}, 15, v{L}\nv_lshlrev_b32 v{a}, 20, v{a}\nv_add_u32 v{a}, 0x7ff00, v{a}\n".format(a=d0, L=vL)
    for k, sr in enumerate((SD, SO, SW, SOUT, SG, SU, SQ)):
        s += "buffer_load_dword v%d, v%d, %s, 0 offen\n" % (d0 + 1 + k, d0, srd(sr))
    return L(s)

def p3_touch(d0):
    return L("""
    s_lshl_b32 s{t0}, s2, 2
    s_add_u32 s{t0}, s{t0}, s{wv}
    s_lshr_b32 s{t1}, s{t0}, 1
    s_and_b32 s{t0}, s{t0}, 1
    v_and_b32 v{b}, 3, v{L}
    v_lshl_add_u32 v{b}, s{t0}, 2, v{b}
    v_and_b32 v{c}, 1, v{L}
    v_lshl_add_u32 v{c}, s{t0}, 1, v{c}
    s_mul_i32 s{t0}, s{t1}, 3072
    v_lshl_add_u32 v{b}, v{b}, 7, s{t0}
    buffer_load_dword v{b}, v{b}, {q}, 0 offen
    s_mul_i32 s{t0}, s{t1}, 3584
    s_add_u32 s{t0}, s{t0}, 768
    v_mul_u32_u24 v{c}, 896, v{c}
    v_add_u32 v{c}, s{t0}, v{c}
    buffer_load_dword v{r2}, v{c}, {g}, 0 offen
    buffer_load_dword v{c}, v{c}, {u}, 0 offen
    """.format(t0=sT0, t1=sT1, wv=sWV, L=vL, b=d0, c=d0 + 1, r2=d0 + 2, q=srd(SQ), g=srd(SG), u=srd(SU)))

sWB = sH2
def b_index():
    return L("""
    s_and_b32 s{t0}, s2, 7
    s_lshl_b32 s{t0}, s{t0}, 4
    s_bfe_u32 s{t1}, s2, 0x40003
    s_add_u32 s{t0}, s{t0}, s{t1}
    s_lshl_b32 s{t0}, s{t0}, 2
    s_add_u32 s{w}, s{t0}, s{wv}
    """.format(t0=sT0, t1=sT1, w=sWB, wv=sWV))

def b_touch1(d0):
    a, b, c = d0, d0 + 1, d0 + 2
    ins = L("""
    v_bfe_u32 v{a}, v{L}, 1, 2
    v_lshlrev_b32 v{a}, 10, v{a}
    v_and_b32 v{c}, 1, v{L}
    v_lshl_add_u32 v{a}, v{c}, 7, v{a}
    s_lshl_b32 s{t0}, s{w}, 12
    v_add_u32 v{a}, s{t0}, v{a}
    s_lshr_b32 s{t0}, s{w}, 2
    s_and_b32 s{t1}, s{w}, 3
    v_and_b32 v{b}, 3, v{L}
    v_lshl_add_u32 v{b}, s{t1}, 2, v{b}
    s_mul_i32 s{t1}, s{t1}, 896
    v_lshl_add_u32 v{c}, v{c}, 7, s{t1}
    s_mul_i32 s{t1}, s{t0}, 3072
    s_add_u32 s{t1}, s{t1}, 1024
    v_lshl_add_u32 v{b}, v{b}, 7, s{t1}
    s_mul_i32 s{t1}, s{t0}, 3584
    v_add_u32 v{c}, s{t1}, v{c}
    """.format(a=a, b=b, c=c, L=vL, t0=sT0, t1=sT1, w=sWB))
    r = d0 + 3
    for g in range(1, 4):
        ins += L("buffer_load_dword v%d, v%d, %s, 0 offen offset:%d" % (r, a, srd(SX), 256 * g)); r += 1
        ins += L("s_mov_b32 s%d, %d\nbuffer_load_dword v%d, v%d, %s, s%d offen" % (sT0, 128 * 3072 * g, r, b, srd(SQ), sT0)); r += 1
        ins += L("s_mov_b32 s%d, %d\nbuffer_load_dword v%d, v%d, %s, s%d offen\nbuffer_load_dword v%d, v%d, %s, s%d offen" % (sT0, 128 * 3584 * g, r, c, srd(SG), sT0, r + 1, c, srd(SU), sT0)); r += 2
    return ins

def b_touch2(d0, u0, nu):
    a, b = d0, d0 + 1
    return L("""
    v_and_b32 v{a}, 3, v{L}
    v_mul_u32_u24 v{a}, 896, v{a}
    v_lshrrev_b32 v{b}, 2, v{L}
    v_min_u32 v{b}, {m}, v{b}
    v_lshl_add_u32 v{a}, v{b}, 7, v{a}
    s_mul_i32 s{t0}, s{w}, 3584
    s_add_u32 s{t0}, s{t0}, {o}
    buffer_load_dword v{b}, v{a}, {g}, s{t0} offen
    buffer_load_dword v{a}, v{a}, {u}, s{t0} offen
    """.format(a=a, b=b, L=vL, m=nu - 1, t0=sT0, w=sWB, o=128 * u0, g=srd(SG), u=srd(SU)))

def b_touch3(d0):
    a = d0
    return L("""
    v_min_u32 v{a}, 7, v{L}
    v_lshlrev_b32 v{a}, 7, v{a}
    s_mul_i32 s{t0}, s{w}, 3072
    s_lshl_b32 s{t1}, s{w}, 10
    buffer_load_dword v{r0}, v{a}, {q}, s{t0} offen
    buffer_load_dword v{r1}, v{a}, {o}, s{t1} offen
    v_min_u32 v{a}, 27, v{L}
    v_lshlrev_b32 v{a}, 7, v{a}
    s_mul_i32 s{t0}, s{w}, 3584
    buffer_load_dword v{a}, v{a}, {d}, s{t0} offen
    """.format(a=a, r0=a + 1, r1=a + 2, L=vL, t0=sT0, t1=sT1, w=sWB, q=srd(SQ), o=srd(SO), d=srd(SD)))

def p1_touch(d0):
    return L("""
    s_lshl_b32 s{t0}, s2, 2
    s_add_u32 s{t0}, s{t0}, s{wv}
    s_lshl_b32 s{t1}, s{t0}, 11
    v_and_b32 v{a}, 15, v{L}
    v_lshl_add_u32 v{a}, v{a}, 7, s{t1}
    buffer_load_dword v{r0}, v{a}, {x}, 0 offen
    s_lshr_b32 s{t1}, s{t0}, 1
    s_and_b32 s{t0}, s{t0}, 1
    s_mul_i32 s{sp}, s{t1}, 3072
    s_lshl_b32 s{m}, s{t0}, 10
    s_add_u32 s{sp}, s{sp}, s{m}
    s_add_u32 s{sp}, s{sp}, 1024
    v_and_b32 v{b}, 7, v{L}
    v_lshl_add_u32 v{b}, v{b}, 7, s{sp}
    buffer_load_dword v{r1}, v{b}, {q}, 0 offen
    s_mul_i32 s{sp}, s{t1}, 3584
    s_mul_i32 s{m}, s{t0}, 1792
    s_add_u32 s{sp}, s{sp}, s{m}
    v_bfe_u32 v{c}, v{L}, 1, 1
    v_mul_u32_u24 v{c}, 896, v{c}
    v_and_b32 v{d}, 1, v{L}
    v_lshl_add_u32 v{c}, v{d}, 8, v{c}
    v_add_u32 v{c}, s{sp}, v{c}
    buffer_load_dword v{r2}, v{c}, {g}, 0 offen
    buffer_load_dword v{r3}, v{c}, {u}, 0 offen
    """.format(t0=sT0, t1=sT1, sp=sH2, m=sM2, wv=sWV, L=vL, a=d0, b=d0 + 1, c=d0 + 2, d=d0 + 3, r0=d0 + 4, r1=d0 + 5, r2=d0 + 6, r3=d0 + 7,
               x=srd(SX), q=srd(SQ), g=srd(SG), u=srd(SU)))

def w2_touch(t, n0, ns, both=False):
    sr, base, row = slice_src(n0)
    nr = 4 * ns
    return L("""
    s_and_b32 s{t0}, s{tt}, 3
    s_mul_i32 s{t1}, s{t0}, {a}
    s_mul_i32 s{t0}, s{wv}, {wb}
    s_add_u32 s{t1}, s{t1}, s{t0}
    s_lshl_b32 s{t0}, s{ct}, 7
    s_add_u32 s{t1}, s{t1}, s{t0}
    s_add_u32 s{t1}, s{t1}, {b}
    {lane}
    buffer_load_dword v{x}, v{x}, {d}, 0 offen
    """.format(lane=("v_min_u32 v{x}, {m}, v{L}\nv_lshl_add_u32 v{x}, v{x}, 10, s{t1}" if not both else
                     "v_lshrrev_b32 v{x}, 1, v{L}\nv_min_u32 v{x}, {m}, v{x}\nv_lshl_add_u32 v{x}, v{x}, 10, s{t1}\nv_and_b32 v{y}, 1, v{L}\nv_lshlrev_b32 v{y}, 9, v{y}\nv_sub_u32 v{x}, v{x}, v{y}"
                     ).format(x=t, y=WHD, m=nr - 1, L=vL, t1=sT1), t0=sT0, t1=sT1, tt=sTT, ct=sCT, wv=sWV, wb=(448 if sr == SD else 128) * 1024, a=nr * 1024, b=row * 1024, x=t, m=nr - 1, L=vL, d=srd(sr)))

def flat(x):
    o = []
    for y in x: o += y if isinstance(y, list) else [y]
    return o

def groups(ins):
    out = []; cur = []
    tmp = {"s%d" % sT0, "s%d" % sT1, "vcc", "scc"}
    for k, x in enumerate(ins):
        cur.append(x)
        live = set()
        written = {r for y in ins[:k + 1] for r in y.wr} & tmp
        seen = set()
        for y in ins[k + 1:]:
            live |= (set(y.rd) & written) - seen
            seen |= set(y.wr)
        if not live: out.append(cur); cur = []
    if cur: out.append(cur)
    return out

def late_setup(A):
    ins = []
    if A:
        ins += L("s_mul_i32 s{t0}, s{q}, 896\ns_lshl_b32 s{t1}, s{ab}, 7\ns_add_u32 s{t0}, s{t0}, s{t1}\ns_add_u32 s{t0}, s{t0}, 512".format(t0=sT0, t1=sT1, q=sQ, ab=sAB))
        ins += wdma_addr(WGD, 3584, sT0)
    ins += clear_store(A) + common_setup() + flat(addr_cs(A))
    if A:
        ins += L("""
        v_lshrrev_b32 v{a}, 2, v{L}
        v_mul_u32_u24 v{a}, 3584, v{a}
        v_and_b32 v{b}, 3, v{L}
        v_lshl_add_u32 v{a}, v{b}, 4, v{a}
        s_mul_i32 s{t0}, s{q}, 896
        s_lshl_b32 s{t1}, s{ab}, 6
        s_add_u32 s{t0}, s{t0}, s{t1}
        s_add_u32 s{t0}, s{t0}, 768
        s_mul_i32 s{t1}, s{wv}, {w}
        s_add_u32 s{t0}, s{t0}, s{t1}
        v_add_u32 v{d}, s{t0}, v{a}
        s_lshl_b32 s{t0}, s{ab}, 1
        s_add_u32 s{t0}, s{t0}, s{gr}
        s_sub_u32 s{h2}, 24, s{t0}
        s_lshl_b32 s{h2}, s{h2}, 11
        """.format(t0=sT0, t1=sT1, q=sQ, ab=sAB, wv=sWV, gr=sGR, w=16 * 3584, a=TMP, b=TMP + 1, d=WHD, L=vL, h2=sH2))
        ins += att_setup()
    else:
        ins += L("s_lshl_b32 s{t0}, s{i}, 7".format(t0=sT0, i=sI))
        ins += wdma_addr(WQD, 3072, sT0)
        ins += o_setup()
    defines(ins, FLG=vFLG, HST=vHST, W2D=(W2D, W2D + 1), Z=(CA + 2, CA + 3), HSA=KVD)
    if A: defines(ins, WHD=WHD, KVA=vKVA, PW=vPW, PR=vPR, VW=vVW, VR0=vVR0, VR1=vVR1)
    else: defines(ins, KRL=vKRL, KRS=vKRS, KVL=vKVL)
    return groups(ins)

def wdma_addr(dst, stride, scol):
    return defines(L("""
    s_mul_i32 s{t1}, s{wv}, {w}
    s_add_u32 s{t1}, s{t1}, s{c}
    v_lshrrev_b32 v{a}, 3, v{L}
    v_mul_u32_u24 v{a}, {st}, v{a}
    v_bfe_u32 v{b}, v{L}, 4, 1
    v_lshlrev_b32 v{b}, 2, v{b}
    v_xor_b32 v{b}, v{b}, v{L}
    v_and_b32 v{b}, 7, v{b}
    v_lshl_add_u32 v{a}, v{b}, 4, v{a}
    v_add_u32 v{d}, s{t1}, v{a}
    v_add_u32 v{d1}, {nx}, v{d}
    """.format(t1=sT1, wv=sWV, w=16 * stride, c=scol, a=TMP, b=TMP + 1, L=vL, st=stride, d=dst, d1=dst + 1, nx=8 * stride - 1024)), **{'WQD' if dst == WQD else 'WGD': (dst, dst + 1)})

def clear_store(A):
    z = 96
    s = """
    s_lshl_b32 s{t0}, s{rb}, 1
    s_add_u32 s{t0}, s{t0}, s{th}
    s_lshl_b32 s{t1}, s{t0}, 2
    s_add_u32 s{t1}, s{t1}, s{q}
    s_lshl_b32 s{t1}, s{t1}, 4
    s_add_u32 s{t1}, s{t1}, s{t4}
    s_lshl_b32 s{t1}, s{t1}, 1
    s_add_u32 s{t1}, s{t1}, s{gr}
    s_lshl_b32 s{t1}, s{t1}, 2
    s_add_u32 s{t1}, s{t1}, {fl}
    v_mov_b32 v{f}, {oob}
    v_writelane_b32 v{f}, s{t1}, 0
    v_mov_b32 v{z}, 0
    buffer_store_dword v{z}, v{f}, {sr}, 0 offen sc1
    s_lshl_b32 s{t0}, s{i}, 2
    s_lshl_b32 s{t1}, s{gr}, 1
    s_add_u32 s{t0}, s{t0}, s{t1}
    s_add_u32 s{t0}, s{t0}, s{th}
    """.format(t0=sT0, t1=sT1, rb=sRB, th=sTH, q=sQ, t4=sT4, gr=sGR, fl=WS_FL, f=vFLG, oob=OOB, z=z, sr=srd(SW), i=sI)
    if A:
        s += """
        s_lshl_b32 s{t0}, s{t0}, 4
        s_add_u32 s{t0}, s{t0}, s{rb}
        s_mul_i32 s{t0}, s{t0}, 2176
        s_add_u32 s{t0}, s{t0}, {kvp}
        """.format(t0=sT0, rb=sRB, kvp=WS_KVP) + kv_lane(vKVA, True)
        z += 2
        for j in range(4): s += "v_mov_b32 v%d, -1\n" % (z + j)
        ins = L(s)
        for j in range(4): ins += L("buffer_store_dwordx4 %s, v%d, %s, 0 offen offset:%d sc1" % (vr(z, 4), vKVA, srd(SW), 544 * j), tag="clr" if j == 3 else None)
        return ins
    s += """
    s_mul_i32 s{t1}, s{t0}, 34816
    s_mul_i32 s{t0}, s{t0}, 2176
    s_add_u32 s{t0}, s{t0}, {kvf}
    s_add_u32 s{t1}, s{t1}, {kvp}
    v_and_b32 v{a}, 15, v{L}
    v_lshl_add_u32 v{a}, s{rb}, 4, v{a}
    v_cmp_gt_u32 vcc, 0x88, v{a}
    v_lshlrev_b32 v{a}, 4, v{a}
    v_mov_b32 v{b}, {oob}
    v_cndmask_b32 v{a}, v{b}, v{a}, vcc
    v_lshrrev_b32 v{b}, 4, v{L}
    v_lshl_add_u32 v{rs}, v{b}, 2, v{a}
    v_add_u32 v{rs}, s{t0}, v{rs}
    v_mul_u32_u24 v{b}, 2176, v{b}
    v_add3_u32 v{rl}, v{b}, v{a}, s{t1}
    v_mov_b32 v{z}, -1
    """.format(t0=sT0, t1=sT1, rb=sRB, kvf=WS_KVF, kvp=WS_KVP, a=TMP, b=TMP + 1, L=vL, rs=vKRS, rl=vKRL, z=z + 1, oob=OOB)
    return L(s) + L("buffer_store_dword v%d, v%d, %s, 0 offen sc1" % (z + 1, vKRS, srd(SW)), tag="clr")

def kv_lane(dst, mask):
    a, b, c = TMP, TMP + 1, TMP + 2
    s = """
    v_and_b32 v{a}, 31, v{L}
    v_lshrrev_b32 v{b}, 5, v{L}
    v_lshl_add_u32 v{c}, v{b}, 4, v{a}
    v_add_u32 v{b}, 32, v{b}
    v_cmp_gt_u32 vcc, 16, v{a}
    v_cndmask_b32 v{c}, v{b}, v{c}, vcc
    v_lshl_add_u32 v{d}, v{c}, 4, s{t0}
    """.format(a=a, b=b, c=c, L=vL, d=dst, t0=sT0)
    if mask: s += "v_mov_b32 v{b}, {oob}\nv_cmp_gt_u32 vcc, 17, v{a}\nv_cndmask_b32 v{d}, v{b}, v{d}, vcc\n".format(a=a, b=b, d=dst, oob=OOB)
    return s

def early_setup():
    a, b, c = TMP, TMP + 1, TMP + 2
    s = """
    v_lshrrev_b32 v{a}, 5, v{L}
    v_bfe_u32 v{b}, v{L}, 1, 3
    v_xor_b32 v{a}, v{a}, v{b}
    v_lshlrev_b32 v{a}, 4, v{a}
    v_and_b32 v{b}, 31, v{L}
    v_lshl_add_u32 v{a}, v{b}, 7, v{a}
    s_lshl_b32 s{t0}, s{s}, 6
    v_xor_b32 v{a}, s{t0}, v{a}
    s_mul_i32 s{t1}, s{th}, {P}
    v_add_u32 v{x0}, s{t1}, v{a}
    v_xor_b32 v{b}, 32, v{a}
    v_add_u32 v{x1}, s{t1}, v{b}
    v_xor_b32 v{b}, 64, v{a}
    v_add_u32 v{x2}, s{t1}, v{b}
    v_xor_b32 v{b}, 0x60, v{a}
    v_add_u32 v{x3}, s{t1}, v{b}
    v_and_b32 v{a}, 31, v{L}
    v_mov_b32 v{b}, 0x3f803f80
    v_cmp_eq_u32 vcc, 0, v{a}
    v_cndmask_b32 v{s0}, 0, v{b}, vcc
    v_cmp_eq_u32 vcc, 20, v{a}
    v_cndmask_b32 v{s0}, v{s0}, v{b}, vcc
    v_cmp_eq_u32 vcc, 8, v{a}
    v_cndmask_b32 v{s2}, 0, v{b}, vcc
    v_cmp_eq_u32 vcc, 28, v{a}
    v_cndmask_b32 v{s2}, v{s2}, v{b}, vcc
    """.format(a=a, b=b, L=vL, t0=sT0, t1=sT1, s=sS, th=sTH, P=PITCH, x0=XR, x1=XR + 1, x2=XR + 2, x3=XR + 3, s0=SEL01, s2=SEL23)
    for j in range(1, 4): s += "v_mov_b32 v%d, v%d\nv_mov_b32 v%d, v%d\n" % (SEL01 + j, SEL01, SEL23 + j, SEL23)
    return defines(L(s), XR=range(XR, XR + 4))

def common_setup():
    a, b, c = TMP, TMP + 1, TMP + 2
    s = "s_mov_b32 s%d, 0\ns_mov_b32 s%d, -1\nv_mov_b32 v%d, 0\nv_mov_b32 v%d, 0\n" % (sMH, sMH + 1, CA + 2, CA + 3)
    s += """
    v_and_b32 v{a}, 3, v{L}
    v_cmp_eq_u32 s[{m1}:{m1b}], 1, v{a}
    v_cmp_eq_u32 s[{m2}:{m2b}], 2, v{a}
    v_cmp_eq_u32 s[{m3}:{m3b}], 3, v{a}
    v_and_b32 v{a}, 4, v{L}
    v_cmp_eq_u32 s[{mb}:{mbb}], 4, v{a}
    s_mul_i32 s{wd}, s{wv}, {wdv}
    s_lshl_b32 s{wo}, s{wv}, 17
    s_mov_b32 s{c2}, 0x3b000000
    """.format(a=a, L=vL, m1=sM1, m1b=sM1 + 1, m2=sM2, m2b=sM2 + 1, m3=sM3, m3b=sM3 + 1, mb=sMB, mbb=sMB + 1,
               wd=sWDB, wo=sWOB, wv=sWV, wdv=448 * 1024, c2=sC2)
    s += """
    s_lshl_b32 s{t0}, s{rb}, 1
    s_add_u32 s{t0}, s{t0}, s{th}
    s_mul_i32 s{t0}, s{t0}, 144
    s_mul_i32 s{t1}, s{q}, 36
    s_add_u32 s{t0}, s{t0}, s{t1}
    s_lshl_b32 s{t1}, s{ab}, 2
    s_add_u32 s{t0}, s{t0}, s{t1}
    s_lshl_b32 s{t1}, s{gr}, 1
    s_add_u32 s{t0}, s{t0}, s{t1}
    s_lshl_b32 s{t0}, s{t0}, 11
    v_lshl_add_u32 v{h}, v{L}, 4, s{t0}
    v_lshrrev_b32 v{a}, 3, v{L}
    v_lshlrev_b32 v{a}, 10, v{a}
    v_bfe_u32 v{b}, v{L}, 4, 1
    v_lshlrev_b32 v{b}, 2, v{b}
    v_xor_b32 v{b}, v{b}, v{L}
    v_and_b32 v{b}, 7, v{b}
    v_lshl_add_u32 v{a}, v{b}, 4, v{a}
    s_lshl_b32 s{t0}, s{ct}, 7
    v_add_u32 v{w}, s{t0}, v{a}
    v_add_u32 v{w1}, 7168, v{w}
    s_and_b32 s{t0}, s2, {hm}
    s_lshl_b32 s{t0}, s{t0}, 2
    s_add_u32 s{t0}, s{t0}, {ho}
    s_cmp_eq_u32 s{wv}, 0
    s_cselect_b32 s{t0}, s{t0}, {oob}
    v_mov_b32 v{hs}, {oob}
    v_writelane_b32 v{hs}, s{t0}, 0
    """.format(t0=sT0, t1=sT1, rb=sRB, th=sTH, q=sQ, ab=sAB, gr=sGR, h=vHST, L=vL, a=a, b=b, ct=sCT, w=W2D, w1=W2D + 1, wv=sWV, oob=OOB, hs=KVD, hm=31 if cfg.dbgout else 63, ho=64 if cfg.dbgout else 0)
    return L(s)

def att_setup():
    a, b, c = TMP, TMP + 1, TMP + 2
    s = """
    s_mul_i32 s{t0}, s{wv}, {wsz}
    s_add_u32 s{t0}, s{t0}, {wreg}
    v_and_b32 v{a}, 31, v{L}
    v_lshrrev_b32 v{b}, 5, v{L}
    v_mul_u32_u24 v{c}, 72, v{a}
    v_lshl_add_u32 v{c}, v{b}, 3, v{c}
    v_add_u32 v{pw}, s{t0}, v{c}
    v_mul_u32_u24 v{c}, 104, v{a}
    v_lshl_add_u32 v{c}, v{b}, 3, v{c}
    s_add_u32 s{t1}, s{t0}, {voff}
    v_add_u32 v{vw}, s{t1}, v{c}
    v_lshl_add_u32 v{c}, v{b}, 3, v{vw}
    v_mov_b32 v{o0}, 0x3f803f80
    v_mov_b32 v{o1}, 0x3f803f80
    ds_write_b64 v{c}, v[{o0}:{o1}] offset:64
    ds_write_b64 v{c}, v[{o0}:{o1}] offset:72
    v_bfe_u32 v{a}, v{L}, 2, 2
    v_lshl_add_u32 v{a}, v{b}, 3, v{a}
    v_and_b32 v{b}, 3, v{L}
    v_mul_u32_u24 v{c}, 72, v{a}
    v_lshl_add_u32 v{c}, v{b}, 3, v{c}
    v_bfe_u32 v{o0}, v{L}, 4, 1
    v_lshl_add_u32 v{c}, v{o0}, 5, v{c}
    v_add_u32 v{pr}, s{t0}, v{c}
    v_mul_u32_u24 v{c}, 104, v{a}
    v_lshl_add_u32 v{c}, v{b}, 3, v{c}
    v_add_u32 v{c}, s{t1}, v{c}
    v_lshl_add_u32 v{v0}, v{o0}, 6, v{c}
    v_add_u32 v{o0}, 1, v{o0}
    v_lshl_add_u32 v{v1}, v{o0}, 5, v{c}
    """.format(t0=sT0, t1=sT1, wv=sWV, wsz=WREG_SZ, wreg=WREG, a=a, b=b, c=c, L=vL, pw=vPW, vw=vVW, voff=VOFF, o0=TMP + 8, o1=TMP + 9,
               pr=vPR, v0=vVR0, v1=vVR1, i=sI, gr=sGR, th=sTH)
    return L(s)

def o_setup():
    return L("""
    s_lshl_b32 s{t0}, s{i}, 1
    s_add_u32 s{t0}, s{t0}, s{gr}
    s_mul_i32 s{t0}, s{t0}, 4352
    s_add_u32 s{t0}, s{t0}, {kvf}
    """.format(t0=sT0, i=sI, gr=sGR, kvf=WS_KVF) + kv_lane(vKVL, False))

def wphi_setup(A):
    a, b = TMP, TMP + 1; t = 64 + 16
    s = """
    s_lshl_b32 s{t0}, s{i}, 2
    s_lshl_b32 s{t1}, s{gr}, 1
    s_add_u32 s{t0}, s{t0}, s{t1}
    s_lshl_b32 s{t0}, s{t0}, 9
    v_bfe_u32 v{a}, v{L}, 4, 1
    """.format(t0=sT0, t1=sT1, i=sI, gr=sGR, a=a, L=vL)
    if A: s += "v_xor_b32 v%d, s%d, v%d\n" % (a, sTH, a)
    s += """
    v_lshlrev_b32 v{a}, 9, v{a}
    v_lshrrev_b32 v{b}, 5, v{L}
    v_lshl_add_u32 v{a}, v{b}, 7, v{a}
    v_and_b32 v{b}, 15, v{L}
    v_lshl_add_u32 v{a}, v{b}, 1, v{a}
    v_add_u32 v{a}, s{t0}, v{a}
    """.format(a=a, b=b, L=vL, t0=sT0)
    for j in range(8):
        s += "buffer_load_ushort v%d, v%d, %s, 0 offen offset:%d\n" % (t + j, a, srd(SPHI), 32 * ((j & 3) + 8 * (j >> 2)))
    return L(s)

def wphi_finish():
    t = 64 + 16
    out = L("v_and_b32 v%d, 16, v%d\nv_cmp_eq_u32 vcc, 0, v%d" % (TMP + 8, vL, TMP + 8))
    g = []
    for j in range(4):
        g += L("v_lshl_or_b32 v{x}, v{y}, 16, v{x}\nv_cndmask_b32 v{a0}, 0, v{x}, vcc\nv_cndmask_b32 v{a1}, v{x}, 0, vcc".format(x=t + 2 * j, y=t + 2 * j + 1, a0=WPHI + j, a1=WPHI + 4 + j))
    return defines(out + g, WPHI=range(WPHI, WPHI + 8))

def rot_regs(c):
    if cfg.rot == "z":
        if c < cfg.nfix: return "s_mov_b32 s%d, %d\ns_mov_b32 s%d, %d\ns_mov_b32 s%d, %d\n" % (sKX + c, 128 * c, sKQ + c, 64 * 3072 * c, sKG + c, 64 * 3584 * c)
        return "s_add_u32 s{t1}, s{r}, {c}\ns_sub_u32 s{t0}, s{t1}, {m}\ns_cmp_gt_u32 s{t1}, 7\ns_cselect_b32 s{t1}, s{t0}, s{t1}\ns_lshl_b32 s{kx}, s{t1}, 7\ns_mul_i32 s{kq}, s{t1}, {a}\ns_mul_i32 s{kg}, s{t1}, {b}\n".format(
            m=8 - cfg.nfix, r=sSPIN, t0=sT0, t1=sT1, c=c, kx=sKX + c, kq=sKQ + c, kg=sKG + c, a=64 * 3072, b=64 * 3584)
    return "s_add_u32 s{t1}, s{r}, {c}\ns_and_b32 s{t1}, s{t1}, 7\ns_lshl_b32 s{kx}, s{t1}, 7\ns_mul_i32 s{kq}, s{t1}, {a}\ns_mul_i32 s{kg}, s{t1}, {b}\n".format(
        r=sSPIN, t1=sT1, c=c, kx=sKX + c, kq=sKQ + c, kg=sKG + c, a=64 * 3072, b=64 * 3584)

def srd_consts(lst):
    return "".join("s_mov_b32 s%d, 0x%x\ns_mov_b32 s%d, 0x20000\n" % (reg + 2, sz, reg + 3) for reg, sz in lst)

def entry_x(item_dma):
    s = """
    s_cmp_ge_u32 s2, 256
    s_cbranch_scc1 L_exit
    """
    for reg, off in ((SX, 0), (SQ, 8), (SG, 40), (SU, 48), (SW, 80), (SPHI, 16), (SO, 24), (SD, 56), (SOUT, 64), (SDBG, 72)):
        s += "s_load_dwordx2 s[%d:%d], s[0:1], %d\n" % (reg, reg + 1, off)
    if cfg.stamps:
        s += "s_memrealtime s[%d:%d]\ns_memtime s[%d:%d]\nv_mov_b32 v%d, 0\n" % (sST, sST + 1, sST + 2, sST + 3, vSTAMP)
    s += """
    v_lshrrev_b32 v1, 6, v0
    v_and_b32 v{L}, 63, v0
    v_readfirstlane_b32 s{wv}, v1
    s_and_b32 s{xcd}, s2, 7
    s_lshr_b32 s{idx}, s2, 3
    s_and_b32 s{rb}, s{xcd}, 1
    s_lshl_b32 s{rb}, s{rb}, 3
    s_and_b32 s{t0}, s{idx}, 7
    s_add_u32 s{rb}, s{rb}, s{t0}
    s_lshr_b32 s{q}, s{xcd}, 1
    s_lshr_b32 s{t4}, s{idx}, 3
    s_and_b32 s{ab}, s{t4}, 1
    s_lshl_b32 s{i}, s{q}, 1
    s_add_u32 s{i}, s{i}, s{ab}
    {rotc}    s_and_b32 s{th}, s{wv}, 1
    s_lshr_b32 s{gr}, s{wv}, 1
    s_xor_b32 s{s}, s{th}, s{gr}
    s_lshl_b32 s{l2k}, s{wv}, 11
    s_mul_i32 s{lx}, s{gr}, {P}
    s_lshl_b32 s{t1}, s{th}, 12
    s_add_u32 s{lx}, s{lx}, s{t1}
    """.format(L=vL, wv=sWV, xcd=sXCD, idx=sIDX, rb=sRB, t0=sT0, t1=sT1, q=sQ, t4=sT4, ab=sAB, i=sI, th=sTH, gr=sGR, s=sS, l2k=sL2K, lx=sLX, P=PITCH,
               rotc=("s_lshl_b32 s%d, s%d, 1\ns_add_u32 s%d, s%d, s%d\ns_and_b32 s%d, s%d, %d\n" % (sT1, sT4, sSPIN, sT0, sT1, sSPIN, sSPIN, 7 if cfg.rot is True else int(cfg.rot))) if cfg.rot and cfg.rot != "z" else "")
    if cfg.rot: s += rot_regs(0)
    s += """
    s_lshl_b32 s{t0}, s{rb}, 2
    s_add_u32 s{t0}, s{t0}, s{wv}
    s_lshl_b32 s{t0}, s{t0}, 15
    v_lshrrev_b32 v2, 3, v{L}
    v_lshlrev_b32 v2, 10, v2
    v_add_u32 v2, s{t0}, v2
    v_lshrrev_b32 v3, 4, v{L}
    v_xor_b32 v3, v3, v{L}
    v_and_b32 v3, 7, v3
    v_lshl_add_u32 v{x0}, v3, 4, v2
    v_add_u32 v{x2}, {d2}, v{x0}
    v_xor_b32 v3, 4, v3
    v_lshl_add_u32 v{x1}, v3, 4, v2
    v_add_u32 v{x1}, 7168, v{x1}
    v_add_u32 v{x3}, {d2}, v{x1}
    """.format(t0=sT0, rb=sRB, wv=sWV, L=vL, x0=XD, x1=XD + 1, x2=XD + 2, x3=XD + 3, d2=2 * 7168)
    s += srd_consts(((SX, 0x200000), (SQ, 0x180000), (SG, 0x1C0000), (SU, 0x1C0000)))
    s += "s_waitcnt lgkmcnt(0)\n"
    if cfg.stamps: s += "v_writelane_b32 v%d, s%d, 0\nv_writelane_b32 v%d, s%d, 63\n" % (vSTAMP, sST, vSTAMP, sST + 2)
    ins = L(s)
    for x in ins:
        if x.kind == "smem": x.nowait = True
    defines(ins, XD=range(XD, XD + 4))
    ins += stamp("karg") + flat(item_dma(("x", 0)))
    ins += L("s_cmp_ge_u32 s%d, 2\ns_cbranch_scc1 L_proB" % sT4)
    return ins

def entry_rest():
    s = ""
    if cfg.rot == "z":
        s += """
        s_lshl_b32 s{t0}, s{q}, 1
        s_add_u32 s{t0}, s{t0}, s{t4}
        s_lshl_b32 s{t0}, s{t0}, 1
        s_add_u32 s{t0}, s{t0}, s{rb}
        s_mul_i32 s{t1}, s{t0}, {mg}
        s_lshr_b32 s{t1}, s{t1}, 8
        s_mul_i32 s{t1}, s{t1}, {m}
        s_sub_u32 s{r}, s{t0}, s{t1}
        """.format(m=8 - cfg.nfix, mg={7: 37, 6: 43, 5: 52}[8 - cfg.nfix], t0=sT0, t1=sT1, q=sQ, t4=sT4, rb=sRB, r=sSPIN)
    s += "".join(rot_regs(c) for c in range(1, cfg.npro)) if cfg.rot else ""
    s += """
    s_lshl_b32 s{l1k}, s{wv}, 10
    s_lshl_b32 s{tt}, s{xcd}, 2
    s_and_b32 s{t0}, s{idx}, 3
    s_add_u32 s{tt}, s{tt}, s{t0}
    s_lshr_b32 s{ct}, s{idx}, 2
    """.format(t0=sT0, wv=sWV, tt=sTT, xcd=sXCD, idx=sIDX, ct=sCT, l1k=sL1K)
    s += srd_consts(((SD, 0x1C0000), (SO, 0x80000), (SW, 0x10000000), (SOUT, 0x200000), (SDBG, 256), (SPHI, 16384)))
    return L(s)

def defaults():
    cfg.code_lim = 20480
    cfg.fixpar = 0; cfg.shift = (0, 0); cfg.qmajor = True; cfg.outfl = ' sc1'; cfg.clr_at = 12; cfg.late_u = True; cfg.late_g = 0; cfg.padto = 0; cfg.late_d = 7; cfg.orderB = None; cfg.pacewB = None; cfg.bt2 = 0; cfg.bt3 = 0; cfg.strict = False; cfg.skipbar = (); cfg.quiet = 0; cfg.p3t = 0; cfg.pacew = {8: 8}; cfg.wpfd = 0; cfg.npro = 2; cfg.pace0 = 8; cfg.pace = [8, 4, 4]; cfg.p2pace = 1; cfg.w2at = lambda m: (m - 16) * 30 // 19
    cfg.order = 'Cf1jrs'; cfg.rot = 'z'; cfg.wpf0 = None; cfg.wpf = 0; cfg.wpf1 = [(SD, 14), (SO, 4)]; cfg.codepf = 1; cfg.w2pf = [(40, 8, 4), (43, 12, 4), (46, 16, 4), (49, 20, 4), (52, 24, 4), (55, 28, 4), (58, 32, 4)]; cfg.nfix = 1; cfg.rot2 = True; cfg.w2B = False; cfg.mix = True
    cfg.p2period = 72; cfg.rd_early = True; cfg.one_wait = True; cfg.x_early = True; cfg.st_early = True; cfg.pro_setup = True; cfg.setup_end = 14
    cfg.fd = 1100; cfg.h1first = 10; cfg.a_att = 27; cfg.a_h1 = 26; cfg.a_pub = 8; cfg.a_kvflag = 30; cfg.h1 = 18; cfg.a_h2 = 3
    cfg.b_h0 = 12; cfg.b_att = 14; cfg.b_ri = -4; cfg.b_rc = 5; cfg.b_li = 14; cfg.b_lc = 24; cfg.b_o = 5
    cfg.flag_delay = 28; cfg.flag_delay2 = 14
    cfg.p0 = 6; cfg.hstep0 = 5
    cfg.hlA = cfg.hlB = [4 * (n - 4) + 1 for n in range(36)]; cfg.poll_lead = [16, 10, 16, 16, 12]

def generate(path):
    label_n[0] = 0
    import fw; fw.LOOSE = cfg.x_nodma or cfg.x_drop
    progs = {}; cut = {}
    for typ in "AB":
        nc, p = build_type(typ)
        mark = p[nc]
        if cfg.x_nodma:
            k0 = [i for i, x in enumerate(p) if getattr(x, "kind", "") == "barrier"][0]
            q = p[:k0]
            for x in p[k0:]:
                if getattr(x, "dma", False):
                    y = I("s_nop 0");
                    q.append(y)
                else: q.append(x)
            p = q
        if cfg.x_drop:
            q = []
            for x in p:
                t = getattr(x, "text", "")
                d = ("h" in cfg.x_drop and t.startswith("buffer_load_dwordx4 a[")) or \
                    ("s" in cfg.x_drop and t.startswith("buffer_store_dwordx4") and "s[28:31]" in t) or \
                    ("w" in cfg.x_drop and getattr(x, "dma", False) and ("s[20:23]" in t or "s[24:27]" in t)) or \
                    ("p" in cfg.x_drop and x.kind == "raw")
                if "m" in cfg.x_drop and x.kind == "mfma":
                    if t.endswith("]") and " a[" in t and "32x32" in t:
                        regs = [r for r in x.rd if r[0] == "a"]
                        y = I("s_nop 0"); y.rd = regs; y.kind = "salu"; q.append(y)
                    continue
                if "l" in cfg.x_drop and x.kind == "ds": continue
                q.append(I("s_nop 0") if d else x)
            p = q
        progs[typ] = finalize(p, typ)
        cut[typ] = (progs[typ].index(mark), [i for i, x in enumerate(progs[typ]) if x.kind == "label" and "main" in x.text][0])
    def main(t):
        p = progs[t][cut[t][1]:]
        if cfg.fixpar: p = fix_parity(p, cfg.fixpar)
        return ".p2align 6\n" + emit(p[:1]) + "    s_nop 0\n" * cfg.shift[t == "B"] + emit(p[1:]) + "L_end%s:\n" % t
    body = emit(progs["A"][:cut["A"][1]]) + "L_proB:\n" + emit(progs["B"][cut["B"][0]:cut["B"][1]]) + "L_exit:\n    s_endpgm\n" + \
           main("A") + main("B")
    ref = open("parallel_sum__linear_kernel_hedgehog__glu_gated_bilinear__prompt.s.ref").read().split("\n")
    head = [x for x in ref if x.startswith(";") and "@launch" not in x and "Override" not in x and "grid=ceil" not in x]
    txt = "\n".join(head) + "\n; @launch grid=(256,1,1) block=(256,1,1) lds=%d\n" % LDS_BYTES
    txt += """.amdgcn_target "amdgcn-amd-amdhsa--gfx950"
.text
.globl {k}
.p2align 8
.type {k},@function
{k}:
""".format(k=KNAME) + body + """.section .rodata,"a"
.p2align 6
.amdhsa_kernel {k}
  .amdhsa_next_free_vgpr 512
  .amdhsa_next_free_sgpr 102
  .amdhsa_accum_offset 256
  .amdhsa_group_segment_fixed_size 0
  .amdhsa_kernarg_size 88
  .amdhsa_user_sgpr_count 2
  .amdhsa_user_sgpr_kernarg_segment_ptr 1
  .amdhsa_system_sgpr_workgroup_id_x 1
.end_amdhsa_kernel
""".format(k=KNAME)
    open(path, "w").write(txt)
    if cfg.stamps: open(path[:-2] + ".names", "w").write("\n".join(stamp_names))

if __name__ == "__main__":
    defaults()
    path = sys.argv[1]
    for kv in sys.argv[2:]:
        k, v = kv.split("=", 1)
        setattr(cfg, k, eval(v))
    generate(path)
```

```python
import sys
from fw import *

KNAME = "parallel_sum__linear_kernel_hedgehog__glu_gated_bilinear__prompt_kernel"

class Cfg:
    rot = True
    stamps = False
    codepf = False
    wpf = False
    w2pf = False
    spin = 200000
    dbgout = False
    x_drop = ''
    x_nostat = False; x_notask = False; x_nodma = False; x_nobar = False
cfg = Cfg()

PITCH = 8224
NSLOT = 16
WREG = NSLOT * PITCH
WREG_SZ = 5632
VOFF = 2304
STAT = WREG + 4 * WREG_SZ
CSP = STAT + 2048
CST = CSP + 3072
LDS_BYTES = 163840
WS_H = 0
WS_KVP = 0xC00000
WS_KVF = 0xA00000
WS_FL = 0xA40000
WS_ST = 0xB00000
OOB = 0x40000000

SX, SQ, SG, SU, SD, SO, SW, SOUT, SDBG, SPHI = 4, 8, 12, 16, 20, 24, 28, 32, 36, 40
def srd(b): return "s[%d:%d]" % (b, b + 3)
sWV, sTH, sGR, sRB, sQ, sT4, sAB, sI, sTT, sCT, sIDX, sXCD = range(44, 56)
sKX, sKQ, sKG = 56, 64, 72
sLX, sL2K, sL1K, sT0, sT1, sSPIN = 80, 81, 82, 83, 84, 85
sM1, sM2, sM3, sMB = 86, 88, 90, 92
sWDB, sWOB, sC2, sH2, sS = 94, 95, 96, 97, 3
sMH = 54
sST = 98
SET0, SET1, WF = 0, 64, 128
SEL01, SEL23 = 144, 148
vPW, vPR, vVW, vVR0 = 152, 153, 154, 155
vKVL, vKRL, vKRS = 152, 153, 154
CSD = 156
MB = 160
CA = 168
vSL = 172
XR, WR1, WR3, XD, WR2 = 174, 178, 178, 182, 182
W2R = 174
WQD, WGD, WHD = 186, 188, 190
vHLD, vPOL = 186, 187
vCSA, vRS, vR2, vHST, vL, W2D = 191, 192, 194, 196, 197, 198
WPHI = 200
KVD = 208
TMP = 240
vFLG, vVR1, vKVA, vSTAMP = 252, 253, 254, 255
SQD2 = 88
RSD, SQD = 64, 68

def vr(b, n=1): return "v%d" % b if n == 1 else "v[%d:%d]" % (b, b + n - 1)
def ar(b, n): return "a[%d:%d]" % (b, b + n - 1)

stamp_names = []
def stamp(name):
    if cfg.stamps != True: return []
    if name not in stamp_names: stamp_names.append(name)
    k = stamp_names.index(name)
    return [I("s_memtime s[%d:%d]" % (sST, sST + 1)), I("v_writelane_b32 v%d, s%d, %d" % (vSTAMP, sST, k + 2))]

def addr_wfull(dst, n, att, swap, t0=TMP):
    a, b = vr(t0), vr(t0 + 1)
    s = """
    v_lshrrev_b32 {a}, 5, v{L}
    v_lshlrev_b32 {a}, 10, {a}
    v_bfe_u32 {b}, v{L}, 2, 2
    v_lshl_add_u32 {a}, {b}, 7, {a}
    v_and_b32 {b}, 3, v{L}
    v_lshl_add_u32 {a}, {b}, 3, {a}
    v_bfe_u32 {b}, v{L}, 3, 1
    v_xor_b32 {b}, s{gr}, {b}
    v_lshl_add_u32 {a}, {b}, 6, {a}
    v_bfe_u32 {b}, v{L}, 4, 1
    """.format(a=a, b=b, L=vL, gr=sGR)
    if att:
        if swap: s += "v_xor_b32 %s, s%d, %s\n" % (b, sTH, b)
        s += "v_lshl_add_u32 %s, %s, 5, %s\n" % (a, b, a)
    else:
        s += "v_mul_u32_u24 %s, %d, %s\nv_add_u32 %s, %s, %s\n" % (b, PITCH, b, a, a, b)
    return L(s) + wr_variants(dst, n, a, 12, 'Watt' if att else 'Wpair')

def wr_variants(dst, n, a, sh, role):
    s = "s_lshl_b32 s%d, s%d, %d\ns_xor_b32 s%d, s%d, %d\n" % (sT0, sS, sh, sT1, sT0, 1 << sh)
    k = dst
    if n == 4:
        s += "v_add_u32 v%d, s%d, %s\nv_add_u32 v%d, s%d, %s\n" % (k, sT0, a, k + 1, sT1, a)
        s += "v_add_u32 v%d, %d, v%d\nv_add_u32 v%d, %d, v%d\n" % (k + 2, 8 * PITCH, k, k + 3, 8 * PITCH, k + 1)
    else:
        s += "v_add_u32 %s, %d, %s\n" % (a, 8 * PITCH, a)
        s += "v_add_u32 v%d, s%d, %s\nv_add_u32 v%d, s%d, %s\n" % (k, sT0, a, k + 1, sT1, a)
    ins = L(s)
    return [defines(ins, **{role: range(dst, dst + n)})]

def addr_whalf(dst, t0=TMP):
    a, b = vr(t0), vr(t0 + 1)
    s = """
    v_lshrrev_b32 {a}, 5, v{L}
    v_lshlrev_b32 {a}, 9, {a}
    v_bfe_u32 {b}, v{L}, 2, 2
    v_lshl_add_u32 {a}, {b}, 6, {a}
    v_and_b32 {b}, 3, v{L}
    v_lshl_add_u32 {a}, {b}, 3, {a}
    v_bfe_u32 {b}, v{L}, 4, 1
    v_mul_u32_u24 {b}, 4128, {b}
    v_add_u32 {a}, {a}, {b}
    v_mov_b32 {b}, s{gr}
    v_lshl_add_u32 {a}, {b}, 5, {a}
    """.format(a=a, b=b, L=vL, gr=sGR)
    return L(s) + wr_variants(dst, 4, a, 11, 'Whalf')

def addr_cs(swap, t0=TMP):
    a = vr(t0)
    s = "s_lshl_b32 s%d, s%d, 8\ns_lshl_b32 s%d, s%d, 7\ns_add_u32 s%d, s%d, s%d\ns_add_u32 s%d, s%d, %d\n" % (sT0, sGR, sT1, sTH, sT0, sT0, sT1, sT0, sT0, CSP)
    s += "v_and_b32 %s, 31, v%d\n" % (a, vL)
    if swap: s += "s_lshl_b32 s%d, s%d, 4\nv_xor_b32 %s, s%d, %s\n" % (sT1, sTH, a, sT1, a)
    s += """
    v_lshl_add_u32 v{ca}, {a}, 2, s{t}
    v_lshrrev_b32 {a}, 5, v{L}
    v_lshl_add_u32 v{ca}, {a}, 9, v{ca}
    """.format(a=a, L=vL, ca=vCSA, t=sT0)
    return [defines(L(s), **{"CSs" if swap else "CS": vCSA})]

def addr_p2(t0=TMP):
    a, b = vr(t0), vr(t0 + 1)
    s = """
    v_lshrrev_b32 {a}, 5, v{L}
    v_lshlrev_b32 {a}, 9, {a}
    v_bfe_u32 {b}, v{L}, 2, 2
    v_lshl_add_u32 {a}, {b}, 7, {a}
    v_and_b32 {b}, 3, v{L}
    v_lshl_add_u32 {a}, {b}, 3, {a}
    v_bfe_u32 {b}, v{L}, 3, 1
    v_lshl_add_u32 {a}, {b}, 6, {a}
    v_bfe_u32 {b}, v{L}, 4, 1
    v_lshl_add_u32 {a}, {b}, 5, {a}
    v_xor_b32 {b}, 64, {a}
    v_add_u32 v{w0}, s{l2k}, {a}
    v_add_u32 v{w1}, s{l2k}, {b}
    v_add_u32 v{w2}, {hi}, v{w0}
    v_add_u32 v{w3}, {hi}, v{w1}
    """.format(a=a, b=b, L=vL, w0=W2R, w1=W2R + 1, w2=W2R + 2, w3=W2R + 3, l2k=sL2K, hi=8 * PITCH)
    ins = L(s)
    ins.append(L("""
    s_mul_i32 s{t0}, s{tt}, {a}
    s_mul_i32 s{t1}, s{wv}, {b}
    s_add_u32 s{t0}, s{t0}, s{t1}
    v_lshl_add_u32 v{h}, v{L}, 4, s{t0}
    """.format(t0=sT0, t1=sT1, tt=sTT, wv=sWV, a=144 * 2048, b=36 * 2048, h=vHLD, L=vL)))
    ins.append(L("""
    s_lshl_b32 s{t0}, s{tt}, 2
    s_add_u32 s{t0}, s{t0}, s{wv}
    s_lshl_b32 s{t0}, s{t0}, 7
    s_add_u32 s{t0}, s{t0}, {fl}
    v_and_b32 {a}, 7, v{L}
    v_lshl_add_u32 v{p}, {a}, 2, s{t0}
    """.format(t0=sT0, tt=sTT, wv=sWV, fl=WS_FL, a=a, L=vL, p=vPOL)))
    return defines(ins, W2R=range(W2R, W2R + 4), HLD=vHLD, POL=vPOL)

label_n = [0]
def poll(addr, res, need, sr=SW, cmp="gt"):
    label_n[0] += 1
    k = label_n[0]
    ld = "buffer_load_dword v%d, v%d, %s, 0 offen sc1" % (res, addr, srd(sr))
    c = "v_cmp_%s_u32 vcc, %s, v%d" % (cmp, need, res)
    chk = Raw([c, "s_nop 4", "s_cbranch_vccz L_ok%d" % k,
               "s_mov_b32 s%d, %d" % (sSPIN, cfg.spin),
               "L_re%d:" % k, "s_sleep 1", ld, "s_waitcnt vmcnt(0)", c, "s_sub_u32 s%d, s%d, 1" % (sSPIN, sSPIN),
               "s_cbranch_scc1 L_ok%d" % k, "s_nop 2", "s_cbranch_vccnz L_re%d" % k,
               "L_ok%d:" % k],
              rd=["v%d" % res, "v%d" % addr] + regs_of(need), wr=["vcc", "scc", "s%d" % sSPIN])
    chk.cost = 32
    return I(ld), chk

def class_poll(c, res, needr):
    na, nb = [(0, 1), (0, 2), (1, 2), (2, 2), (2, 3)][c]
    iss, chk = poll(vPOL, res, "v%d" % needr)
    needs([iss, chk], POL=vPOL); defines([iss], **{"cp%d" % c: res}); needs([chk], **{"cp%d" % c: res})
    return iss, [I("v_cndmask_b32 v%d, %d, %d, s[%d:%d]" % (needr, na, nb, sMB, sMB + 1)), chk]

def set_flag(level, tag, t):
    if cfg.strict: tag = "vm0"
    return stamp("f%d_0" % level) + [Wait(tag)] + stamp("f%d_1" % level) + [I("v_mov_b32 v%d, %d" % (t, level)), needs(I("buffer_store_dword v%d, v%d, %s, 0 offen sc1" % (t, vFLG, srd(SW))), FLG=vFLG)]

def t_stat_add():
    a, b = TMP, TMP + 1
    s = """
    s_lshl_b32 s{t0}, s{th}, 10
    s_add_u32 s{t0}, s{t0}, {st}
    v_and_b32 v{b}, 31, v{L}
    v_lshl_add_u32 v{b}, v{b}, 4, s{t0}
    s_lshl_b32 s{t1}, s{gr}, 3
    s_add_u32 s{t0}, s{t0}, s{t1}
    v_lshl_add_u32 v{a}, v{L}, 4, s{t0}
    """.format(t0=sT0, t1=sT1, th=sTH, gr=sGR, st=STAT, a=a, b=b, L=vL)
    pre = [L(s)]
    out = []
    for j in range(8): out += L("v_add_f32 v%d, v%d, v%d" % (SQD + j, SQD + j, SQD2 + j))
    for j, m in ((1, sM1), (2, sM2), (3, sM3)):
        for blk in range(2):
            q = SQD + 4 * blk
            out += L("v_cndmask_b32 v%d, v%d, v%d, s[%d:%d]" % (q, q, q + j, m, m + 1))
    out.append(L("v_permlane32_swap_b32 v%d, v%d\nv_add_f32 v%d, v%d, v%d" % (SQD, SQD + 4, RSD + 1, SQD, SQD + 4)))
    out += L("ds_write_b64 v%d, v[%d:%d]" % (a, RSD, RSD + 1))
    return pre, out

def t_cs_add(tile0, role="CS"):
    return needs(L("ds_write_b32 v%d, v%d offset:%d" % (vCSA, CSD, 512 * tile0)), **{role: vCSA})

def t_cs_tot(tile0, t):
    out = L("v_xor_b32 v%d, 0x80, v%d\nds_read_b32 v%d, v%d offset:%d" % (t, vCSA, t, t, 512 * tile0))
    out.append(Gap(2))
    out += L("""
    v_add_f32 v{t}, v{t}, v{cs}
    v_cvt_pk_bf16_f32 v{a}, v{t}, v{t}
    v_lshlrev_b32 v{a1}, 16, v{a}
    v_sub_f32 v{t}, v{t}, v{a1}
    v_cvt_pk_bf16_f32 v{a1}, v{t}, 0
    """.format(t=t, cs=CSD, a=CA, a1=CA + 1))
    return defines(out, **{"CA%d" % tile0: (CA, CA + 1)})

def t_corr(acc, T, tile0, bs=16):
    out = []
    for j in range(T):
        for b in range(2):
            d = vr(acc + 32 * j + bs * b, 16)
            x = I("v_mfma_f32_32x32x16_bf16 %s, %s, %s, %s" % (d, vr(CA, 4), vr(MB + 4 * b + 2 * j, 4), d)); x.cost = 24
            out.append(x)
    return needs(out, MB=range(MB, MB + 8), Z=(CA + 2, CA + 3), **{"CA%d" % tile0: (CA, CA + 1)})

def t_stat_fin():
    b = TMP + 1; t = TMP + 4
    out = L("ds_read_b128 v[%d:%d], v%d\nds_read_b128 v[%d:%d], v%d offset:512" % (t, t + 3, b, t + 4, t + 7, b))
    out.append(Gap(2))
    late = []
    for blk in range(2):
        r = t + 4 * blk; m = MB + 4 * blk
        out += L("""
        v_add_f32 v{r}, v{r}, v{r2}
        v_mul_f32 v{r}, 0xbb000000, v{r}
        v_cvt_pk_bf16_f32 v{m1}, v{r}, 0
        v_lshlrev_b32 v{r2}, 16, v{m1}
        v_sub_f32 v{r2}, v{r}, v{r2}
        v_cvt_pk_bf16_f32 v{m0}, v{r}, v{r2}
        v_cndmask_b32 v{m2}, 0, v{m0}, s[{h}:{h1}]
        v_cndmask_b32 v{m3}, 0, v{m1}, s[{h}:{h1}]
        v_cndmask_b32 v{m0}, v{m0}, 0, s[{h}:{h1}]
        v_cndmask_b32 v{m1}, v{m1}, 0, s[{h}:{h1}]
        """.format(r=r, r2=r + 2, m0=m, m1=m + 1, m2=m + 2, m3=m + 3, h=sMH, h1=sMH + 1))
        late += L("""
        v_add_f32 v{r1}, v{r1}, v{r3}
        v_mul_f32 v{r2}, v{r}, v{r}
        v_fma_f32 v{r1}, v{r1}, s{c}, -v{r2}
        v_max_f32 v{r1}, 0, v{r1}
        v_add_f32 v{r1}, 0x3727c5ac, v{r1}
        v_rsq_f32 v{rs}, v{r1}
        v_rcp_f32 v{rr}, v{r1}
        v_mul_f32 v{sl}, 0x3fb8aa3b, v{rs}
        """.format(r=r, r1=r + 1, r2=r + 2, r3=r + 3, rs=vRS + blk, rr=vR2 + blk, sl=vSL + blk, c=sC2))
    defines(out, MB=range(MB, MB + 8)); defines(late, R2=(vR2, vR2 + 1), RS=(vRS, vRS + 1), SL=(vSL, vSL + 1))
    return out, late

def t_hepi(acc, soff, imm, tag, bs=16):
    out = []
    for blk in range(2):
        g = acc + bs * blk
        for r in range(0, 8 if not cfg.x_notask else 0, 2):
            out += L("v_mul_f32 v%d, v%d, v%d\nv_mul_f32 v%d, v%d, v%d" % (g + r, vR2 + blk, g + r, g + r + 1, vR2 + blk, g + r + 1))
            out += L("v_mul_f32 v%d, v%d, v%d\nv_mul_f32 v%d, v%d, v%d" % (g + r, g + r, g + 8 + r, g + r + 1, g + r + 1, g + 9 + r))
            out += L("v_cvt_pk_bf16_f32 v%d, v%d, v%d" % (g + r // 2, g + r, g + r + 1))
        st = L("buffer_store_dwordx4 v[%d:%d], v%d, %s, s%d offen offset:%d sc1" % (g, g + 3, vHST, srd(SW), sT1, imm + 1024 * blk), tag=tag if blk else None)
        out.append(L(soff) + st)
    return needs(out, HST=vHST, R2=(vR2, vR2 + 1))

def phi_mfma(acc, TMP=TMP):
    out = []
    for j in range(8): out += L("v_cvt_pk_bf16_f32 v%d, v%d, v%d" % (TMP + j, acc + 2 * j, acc + 2 * j + 1))
    out += L("v_mfma_f32_32x32x16_bf16 v[%d:%d], v[%d:%d], v[%d:%d], 0" % (acc, acc + 15, WPHI, WPHI + 3, TMP, TMP + 3))
    out += L("v_mfma_f32_32x32x16_bf16 v[%d:%d], v[%d:%d], v[%d:%d], v[%d:%d]" % (acc, acc + 15, WPHI + 4, WPHI + 7, TMP + 4, TMP + 7, acc, acc + 15))
    out[-1].cost = 24; out[-2].cost = 24
    return needs(out, WPHI=range(WPHI, WPHI + 8))

def softmax2(p, blk):
    e = TMP; a, b, c, d = TMP + 8, TMP + 9, TMP + 10, TMP + 11; sl = vSL + blk
    s = """
    v_max3_f32 v{a}, v{p0}, v{p1}, v{p2}
    v_min3_f32 v{b}, v{p0}, v{p1}, v{p2}
    v_max3_f32 v{a}, v{a}, v{p3}, v{p4}
    v_min3_f32 v{b}, v{b}, v{p3}, v{p4}
    v_max3_f32 v{a}, v{a}, v{p5}, v{p6}
    v_min3_f32 v{b}, v{b}, v{p5}, v{p6}
    v_max_f32 v{a}, v{a}, v{p7}
    v_max_f32_e64 v{b}, -v{b}, -v{p7}
    """.format(a=a, b=b, **{"p%d" % i: p + i for i in range(8)})
    out = L(s)
    out += L("v_permlane32_swap_b32 v{a}, v{b}\nv_max_f32 v{a}, v{a}, v{b}\nv_mul_f32_e64 v{a}, -v{a}, v{sl}\nv_mov_b32 v{b}, v{a}".format(a=a, b=b, sl=sl))
    out += L("v_permlane32_swap_b32 v{a}, v{b}".format(a=a, b=b))
    for i in range(8):
        out += L("v_fma_f32 v%d, v%d, v%d, v%d" % (e + i, p + i, sl, a))
        out += L("v_fma_f32 v%d, -v%d, v%d, v%d" % (p + i, p + i, sl, b))
        if i > 1: out += L("v_add_f32 v%d, v%d, v%d" % (c, c if i > 2 else e, e + i - 1))
        out += L("v_exp_f32 v%d, v%d" % (e + i, e + i))
        if i > 1: out += L("v_add_f32 v%d, v%d, v%d" % (d, d if i > 2 else p, p + i - 1))
        out += L("v_exp_f32 v%d, v%d" % (p + i, p + i))
    out += L("v_add_f32 v%d, v%d, v%d\nv_add_f32 v%d, v%d, v%d" % (c, c, e + 7, d, d, p + 7))
    out += L("v_permlane32_swap_b32 v{c}, v{d}\nv_add_f32 v{c}, v{c}, v{d}\nv_rcp_f32 v{c}, v{c}".format(c=c, d=d))
    out += L("v_mov_b32 v{d}, v{c}".format(c=c, d=d))
    out += L("v_permlane32_swap_b32 v{c}, v{d}".format(c=c, d=d))
    for i in range(8):
        out += L("v_mul_f32 v%d, v%d, v%d" % (p + i, d, p + i))
        if i & 1: out += L("v_cvt_pk_bf16_f32 v%d, v%d, v%d" % (p + i // 2, p + i - 1, p + i))
    for i in range(8):
        out += L("v_mul_f32 v%d, v%d, v%d" % (e + i, c, e + i))
        if i & 1: out += L("v_cvt_pk_bf16_f32 v%d, v%d, v%d" % (p + 4 + i // 2, e + i - 1, e + i))
    return out

def v_out(va, blk):
    out = []
    for r in range(0, 16, 2):
        out += L("v_mul_f32 v%d, v%d, v%d\nv_mul_f32 v%d, v%d, v%d" % (va + r, vRS + blk, va + r, va + r + 1, vRS + blk, va + r + 1))
        out += L("v_cvt_pk_bf16_f32 v%d, v%d, v%d" % (va + r // 2, va + r, va + r + 1))
        if r % 4 == 2: out += L("ds_write_b64 v%d, v[%d:%d] offset:%d" % (vVW, va + r // 2 - 1, va + r // 2, 4 * (r - 2)))
    return out

def weave(main, extra, pos):
    out = []; k = 0
    for n, x in enumerate(main):
        while k < len(extra) and pos[k] <= n: out.append(extra[k]); k += 1
        out.append(x)
    return out + extra[k:]

def t_att_k():
    out = []
    if cfg.x_notask: return [I("s_nop 0")]
    FR = 32
    rds, mms = [], []
    for blk in range(2):
        va = 32 + 16 * blk; ka = 16 * blk
        pm = phi_mfma(ka)
        out += weave(pm, rds, range(0, 8)); rds = []
        vo = v_out(va, blk)
        out += weave(vo, mms, (10, 18)); mms = []
        for hh in range(2):
            p = ka + 8 * hh
            sm = softmax2(p, blk)
            n = len(sm)
            wr = [I("ds_write_b64 v%d, v[%d:%d] offset:%d" % (vPW, p + 2 * j, p + 1 + 2 * j, 32 + 16 * j)) for j in range(2)] + \
                 [I("ds_write_b64 v%d, v[%d:%d] offset:%d" % (vPW, p + 4 + 2 * j, p + 5 + 2 * j, 16 * j)) for j in range(2)]
            sm = weave(sm, rds + mms + wr, [2, 5, 8, 8, 12, 12, 16, 20][:len(rds)] + [44, 56][:len(mms)] + [n - 17, n - 11, n - 5, n])
            out += sm
            rds, mms = [], []
            for ks in range(2):
                for j in range(2):
                    rds += L("ds_read_b64_tr_b16 v[%d:%d], v%d offset:%d" % (FR + 8 * ks + 4 + 2 * j, FR + 8 * ks + 5 + 2 * j, (vVR0, vVR1)[hh], 1664 * ks + 416 * j))
                for j in range(2):
                    rds += L("ds_read_b64_tr_b16 v[%d:%d], v%d offset:%d" % (FR + 8 * ks + 2 * j, FR + 8 * ks + 2 * j + 1, vPR, 1152 * ks + 288 * j))
            d = KVD + 16 * hh
            for ks in range(2):
                c = "0" if (blk == 0 and ks == 0) else vr(d, 16)
                x = I("v_mfma_f32_32x32x16_bf16 %s, %s, %s, %s" % (vr(d, 16), vr(FR + 8 * ks, 4), vr(FR + 8 * ks + 4, 4), c)); x.cost = 24
                mms.append(x)
    for x in rds: x.cost = 8
    out += rds
    pend = mms
    out.append(L("""
    s_mul_i32 s{t0}, s{wv}, {wsz}
    s_add_u32 s{t0}, s{t0}, {wreg}
    v_lshl_add_u32 v{a}, v{L}, 4, s{t0}
    s_xor_b32 s{t0}, s{wv}, 1
    s_mul_i32 s{t0}, s{t0}, {wsz}
    s_add_u32 s{t0}, s{t0}, {wreg}
    v_lshl_add_u32 v{b}, v{L}, 4, s{t0}
    """.format(t0=sT0, wv=sWV, wsz=WREG_SZ, wreg=WREG, a=TMP, b=TMP + 1, L=vL)))
    out += [Gap(2)] + pend + [Gap(2)]
    for r4 in range(4): out += L("ds_write_b128 v%d, %s offset:%d" % (TMP, vr(KVD + 16 + 4 * r4, 4), 1024 * r4))
    defines(out, EXR=TMP + 1)
    return needs(out, PW=vPW, PR=vPR, VW=vVW, VR0=vVR0, VR1=vVR1, RS=(vRS, vRS + 1), SL=(vSL, vSL + 1))

def t_kv_pub():
    out = []
    for r4 in range(4): out += L("ds_read_b128 %s, v%d offset:%d" % (vr(KVD + 16 + 4 * r4, 4), TMP + 1, 1024 * r4))
    out.append(Gap(2))
    for r in range(16):
        out += L("v_add_f32 v%d, v%d, v%d" % (KVD + r, KVD + r, KVD + 16 + r))
        if r % 4 == 3: out += L("buffer_store_dwordx4 %s, v%d, %s, 0 offen offset:%d sc1" % (vr(KVD + r - 3, 4), vKVA, srd(SW), 136 * (r - 3)))
    return needs(out, EXR=TMP + 1, KVA=vKVA)

def data_poll(loads, regs, t):
    label_n[0] += 1
    k = label_n[0]
    chk = ["v_max3_u32 v%d, v%d, v%d, v%d" % (t, regs[0], regs[1], regs[2])]
    rest = regs[3:]
    while len(rest) > 1:
        chk.append("v_max3_u32 v%d, v%d, v%d, v%d" % (t, t, rest[0], rest[1])); rest = rest[2:]
    if rest: chk.append("v_max_u32 v%d, v%d, v%d" % (t, t, rest[0]))
    fast = L("\n".join(chk))
    c = "v_cmp_eq_u32 vcc, -1, v%d" % t
    raw = Raw([c, "s_nop 4", "s_cbranch_vccz L_ok%d" % k, "s_mov_b32 s%d, %d" % (sSPIN, cfg.spin), "L_re%d:" % k, "s_sleep 1"] + loads +
              ["s_waitcnt vmcnt(0)"] + chk + [c, "s_sub_u32 s%d, s%d, 1" % (sSPIN, sSPIN), "s_cbranch_scc1 L_ok%d" % k, "s_nop 2",
               "s_cbranch_vccnz L_re%d" % k, "L_ok%d:" % k],
              rd=["v%d" % t], wr=["vcc", "scc", "s%d" % sSPIN, "s%d" % sT1] + ["v%d" % r for r in regs])
    raw.cost = 32
    return fast + [raw]

RR = 80
def t_kv_red():
    ld = []
    for k in range(4):
        ld += ["s_mov_b32 s%d, %d" % (sT1, 8704 * k), "buffer_load_dwordx4 %s, v%d, %s, s%d offen sc1" % (vr(RR + 4 * k, 4), vKRL, srd(SW), sT1)]
    iss = [L("\n".join(ld[2 * k:2 * k + 2])) for k in range(4)]
    out = data_poll(ld, list(range(RR, RR + 16)), vKVA)
    for j in range(4):
        out += L("v_add_f32 v%d, v%d, v%d\nv_add_f32 v%d, v%d, v%d" % (RR + j, RR + j, RR + 4 + j, RR + 8 + j, RR + 8 + j, RR + 12 + j))
    for j in range(4): out += L("v_add_f32 v%d, v%d, v%d" % (RR + j, RR + j, RR + 8 + j))
    out += L("""
    v_permlane16_swap_b32 v{a}, v{b}
    v_permlane16_swap_b32 v{c}, v{d}
    v_add_f32 v{a}, v{a}, v{b}
    v_add_f32 v{c}, v{c}, v{d}
    v_permlane32_swap_b32 v{a}, v{c}
    v_add_f32 v{a}, v{a}, v{c}
    buffer_store_dword v{a}, v{s}, {sr}, 0 offen sc1
    """.format(a=RR, b=RR + 1, c=RR + 2, d=RR + 3, s=vKRS, sr=srd(SW)))
    needs(iss, KRL=vKRL); needs(out, KRS=vKRS)
    return iss, out

def t_att_q():
    out = []
    if cfg.x_notask: return [I("s_nop 0")]
    out += phi_mfma(SET0, 64) + phi_mfma(SET0 + 16, 72)
    out += softmax2(SET0, 0) + softmax2(SET0 + 8, 0) + softmax2(SET0 + 16, 1) + softmax2(SET0 + 24, 1)
    return out

KR = 32
def t_kv_load():
    ld = []
    for hh in range(2):
        for r4 in range(4):
            ld += ["buffer_load_dwordx4 %s, v%d, %s, 0 offen offset:%d sc1" % (vr(KR + 16 * hh + 4 * r4, 4), vKVL, srd(SW), 2176 * hh + 544 * r4)]
    return needs(L("\n".join(ld)), KVL=vKVL), data_poll(ld, list(range(KR, KR + 32)), vKVA)

def t_o():
    out = []
    for hh in range(2):
        for j in range(8): out += L("v_cvt_pk_bf16_f32 v%d, v%d, v%d" % (KR + 16 * hh + j, KR + 16 * hh + 2 * j, KR + 16 * hh + 2 * j + 1))
    seq = [(hh, blk) for hh in range(2) for blk in range(2)]
    def mm(k):
        hh, blk = seq[k]; d = 64 + 16 * (k & 1); p = SET0 + 16 * blk + 8 * hh
        return L("v_mfma_f32_32x32x16_bf16 %s, %s, %s, 0" % (vr(d, 16), vr(KR + 16 * hh, 4), vr(p + 4, 4))) + \
               L("v_mfma_f32_32x32x16_bf16 %s, %s, %s, %s" % (vr(d, 16), vr(KR + 16 * hh + 4, 4), vr(p, 4), vr(d, 16)))
    def fin(k):
        hh, blk = seq[k]; d = 64 + 16 * (k & 1)
        o = L("v_add_f32 v%d, 0x358637bd, v%d\nv_rcp_f32 v%d, v%d" % (d + 8, d + 8, d + 8, d + 8))
        for r in range(8):
            o += L("v_mul_f32 v%d, v%d, v%d" % (d + r, d + 8, d + r))
            if r & 1: o += L("v_cvt_pk_bf16_f32 v%d, v%d, v%d" % (d + r // 2, d + r - 1, d + r))
        st = L("s_mov_b32 s%d, %d" % (sT1, 28 * 2048)) + \
             L("buffer_store_dwordx4 %s, v%d, %s, s%d offen offset:%d sc1" % (vr(d, 4), vHST, srd(SW), sT1, 2048 * hh + 1024 * blk), tag="ost" if k == 3 else None)
        return o + [st]
    out += mm(0) + mm(1) + fin(0) + mm(2) + fin(1) + mm(3) + fin(2) + fin(3)
    return out

def dma(vo, sr, so, imm, tag=None):
    role = "XD" if sr == SX else "WQD" if sr == SQ else "W2D" if sr in (SD, SO) else "WHD" if vo == WHD else "WGD"
    return needs(dma_(vo, sr, so, imm, tag), **{role: vo})

def dma_(vo, sr, so, imm, tag=None):
    return L("buffer_load_dwordx4 v%d, %s, %s offen%s lds" % (vo, srd(sr), so, " offset:%d" % imm if imm else ""), tag=tag)

def m0set(base, lit): return L("s_add_u32 m0, s%d, %d" % (base, lit))

def dma_x(c, slot, tag):
    if not cfg.rot:
        g = m0set(sLX, slot * PITCH) + L("s_movk_i32 s%d, %d" % (sH2 + 0 if False else 79, 128 * c))
        return [g + dma(XD, SX, "s79", 0)] + [dma(XD + i, SX, "s79", 1024 * i, tag if i == 3 else None) for i in range(1, 4)]
    g = m0set(sLX, slot * PITCH)
    return [g + dma(XD, SX, "s%d" % (sKX + c), 0)] + [dma(XD + i, SX, "s%d" % (sKX + c), 1024 * i, tag if i == 3 else None) for i in range(1, 4)]

def dma_full(vo, sr, kreg, extra, slot, tag):
    g = m0set(sL2K, slot * PITCH)
    so = "s%d" % kreg
    if not cfg.rot:
        lit = extra + ((kreg - sKQ) * 64 * 3072 if kreg < sKG else (kreg - sKG) * 64 * 3584)
        g += L("s_mov_b32 s%d, %d" % (sT0, lit)); so = "s%d" % sT0
        return [g + dma(vo, sr, so, 0) + dma(vo + 1, sr, so, 1024, tag)]
    if extra:
        g += L("s_add_u32 s%d, s%d, %d" % (sT0, kreg, extra)); so = "s%d" % sT0
        return [g + dma(vo, sr, so, 0) + dma(vo + 1, sr, so, 1024, tag)]
    return [g + dma(vo, sr, so, 0) + dma(vo + 1, sr, so, 1024, tag)]

def dma_half(c, slot, tag):
    so = "s%d" % (sKG + c)
    if not cfg.rot:
        mv = lambda: L("s_mov_b32 s%d, %d" % (sT0, c * 64 * 3584)); so = "s%d" % sT0
        return [m0set(sL1K, slot * PITCH) + mv() + dma(WHD, SG, so, 0), m0set(sL1K, slot * PITCH + 4128) + mv() + dma(WHD, SU, so, 0, tag)]
    return [m0set(sL1K, slot * PITCH) + dma(WHD, SG, so, 0), m0set(sL1K, slot * PITCH + 4128) + dma(WHD, SU, so, 0, tag)]

def slice_src(n):
    return (SD, sWDB, 16 * n) if n < 28 else (SO, sWOB, 16 * (n - 28))

FIRST = [0, 8, 16, 24, 28, 36]
sR2 = sKX
def cls_of(n):
    c = max(k for k in range(5) if FIRST[k] <= n)
    return c, n - FIRST[c]

def r2_table():
    out = [L("s_and_b32 s{a}, s{tt}, 3\ns_lshl_b32 s{a}, s{a}, 1\ns_add_u32 s{a}, s{a}, s{ct}\ns_and_b32 s{a}, s{a}, {m}\ns_lshl_b32 s{a}, s{a}, 11".format(a=sR2, tt=sTT, ct=sCT, m=7 if cfg.rot2 else 0))]
    for i in range(1, 8): out.append(L("s_add_u32 s{a}, s{p}, 2048\ns_and_b32 s{a}, s{a}, 0x3800".format(a=sR2 + i, p=sR2 + i - 1)))
    return defines(out, R2T=["s%d" % (sR2 + i) for i in range(8)])

def dma_w2(n, slot):
    sr, base, row = slice_src(n)
    c, i = cls_of(n)
    g = m0set(sL2K, slot * PITCH)
    if c == 3: g += L("s_and_b32 s{t}, s{r}, 0x1800\ns_lshl3_add_u32 s{t}, s{t}, s{b}".format(t=sT0, r=sR2 + i, b=base))
    else: g += L("s_lshl3_add_u32 s{t}, s{r}, s{b}".format(t=sT0, r=sR2 + i, b=base))
    needs(g, R2T="s%d" % (sR2 + i))
    g += dma(W2D, sr, "s%d" % sT0, 0) + dma(W2D + 1, sr, "s%d" % sT0, 1024, "w2_%d" % n)
    if n in (7, 15, 23): g += L("s_add_u32 s%d, s%d, 131072" % (sWDB, sWDB))
    return [g]

def h_load(n):
    c, i = cls_of(n)
    if c == 3: g = L("s_and_b32 s{t}, s{r}, 0x1800\ns_add_u32 s{t}, s{t}, {l}".format(t=sT1, r=sR2 + i, l=FIRST[c] * 2048))
    else: g = L("s_add_u32 s%d, s%d, %d" % (sT1, sR2 + i, FIRST[c] * 2048))
    needs(g, R2T="s%d" % (sR2 + i))
    a = 8 * (n % 32)
    for b in range(2):
        g += L("buffer_load_dwordx4 %s, v%d, %s, s%d offen%s sc1" % (ar(a + 4 * b, 4), vHLD, srd(SW), sT1, " offset:1024" if b else ""))
    return needs(g, HLD=vHLD)

def build_type(typ):
    global vHLD, vPOL
    A = typ == "A"
    vHLD, vPOL = (186, 187) if A else (155, 253)
    passes = [("att2", 2, SET0, 0), ("pair", 2, SET1, 2), ("half", 1, SET0, 4)] if A else \
             [("pair", 2, SET0, 0), ("pair", 2, SET1, 2), ("q", 1, SET0, 4)]
    WRs = [WR1, WR2, WR3]
    ACC2 = [16, 32, 208, 224] if A else [96, 112, 208, 224]
    accr = lambda p, j, b: (0, 48)[b] if (A and p == 2) else passes[p][2] + 32 * j + 16 * b
    S = Sched()
    step_beat = {}
    nt = lambda g: passes[g // 32][1]
    wbuf = lambda g, j: WF + (8 * (g & 1) + 4 * j if nt(g) == 2 else 4 * (g & 3))

    slot_of = {}
    for c in range(8):
        slot_of[("x", c)] = 2 * (c % 4); slot_of[("w", 0, c)] = 8 + 2 * (c % 4)
    def item_dma(it):
        if it[0] == "x": return dma_x(it[1], slot_of[it], "x%d" % it[1])
        if it[0] == "s": return dma_w2(it[1], slot_of[it])
        _, p, c = it; kind = passes[p][0]; sl = slot_of[it]; tag = "w%d_%d" % (p, c)
        if kind == "att2": return dma_full(WQD, SQ, sKQ + c, 0, sl, None) + dma_full(WQD, SQ, sKQ + c, 1024, sl + 1, tag)
        if kind == "q": return dma_full(WQD, SQ, sKQ + c, 0, sl, tag)
        if kind == "half": return dma_half(c, sl, tag)
        ex = 256 if (not A and p == 1) else 0
        return dma_full(WGD, SG, sKG + c, ex, sl, None) + dma_full(WGD, SU, sKG + c, ex, sl + 1, tag)
    def item_slots(it):
        if it[0] == "x": return 2
        if it[0] == "s": return 1
        return 2 if passes[it[1]][0] in ("att2", "pair") else 1

    def m16(d, sel, src, first): S.beat(I("v_mfma_f32_16x16x32_bf16 %s, %s, %s, %s" % (vr(d, 4), vr(sel, 4), src, "0" if first else vr(d, 4))), 16)
    def row_stats(k):
        for h in range(2):
            for b in range(2):
                d = vr((SQD, SQD2)[h] + 4 * b, 4)
                S.beat(I("v_mfma_f32_4x4x4_16b_bf16 %s, %s, %s, %s" % (d, ar(8 * k + 4 * b + 2 * h, 2), ar(8 * k + 4 * b + 2 * h, 2), "0" if k == 0 else d)), 8)
        m16(RSD, SEL01, ar(8 * k, 4), k == 0); m16(RSD, SEL23, ar(8 * k + 4, 4), False)
    def col_stats(g):
        for j in range(nt(g)): m16(CSD, (SEL01, SEL23)[j], vr(wbuf(g, j), 4), g % 32 == 0 and j == 0)
    for g in range(96):
        p, c, t = g // 32, (g // 4) % 8, g % 4
        kind, T, acc, tile0 = passes[p]
        step_beat[g] = len(S.beats)
        k = g % 32
        if cfg.st_early and c == 7 and T == 2 and t == 1 and not cfg.x_nostat: col_stats(g)
        for j in range(T):
            for b in range(2):
                d = vr(accr(p, j, b), 16)
                S.beat(I("v_mfma_f32_32x32x16_bf16 %s, %s, %s, %s" % (d, vr(wbuf(g, j), 4), ar(8 * k + 4 * b, 4), "0" if k == 0 else d)))
        if t < 2 and not cfg.x_nostat:
            early = cfg.st_early and c == 7 and T == 2
            if p == 0:
                for kk in ([k] if not early else [k, k + 1] if t == 0 else []): row_stats(kk)
            if not (early and t == 1): col_stats(g)
    step_beat[96] = len(S.beats)
    sl_beat = {}
    for n in range(36):
        sl_beat[n] = len(S.beats)
        w = WF + 8 * (n & 1); a = 8 * (n % 32)
        for cb in range(2):
            for tb in range(2):
                d = vr(ACC2[2 * cb + tb], 16)
                S.beat(I("v_mfma_f32_32x32x16_bf16 %s, %s, %s, %s" % (d, vr(w + 4 * cb, 4), ar(a + 4 * tb, 4), "0" if n == 0 else d)), cfg.p2period)
    sl_beat[36] = len(S.beats)
    S.beat(None)

    bar_step = {}
    for cc in range(24):
        T = passes[cc // 8][1]
        bar_step[cc] = 4 * cc + (3 if (T == 2 or cc == 23) else 2)
    last_rd = {}
    def w_reads(g, j):
        p, c, t = g // 32, (g // 4) % 8, g % 4
        kind = passes[p][0]; sl = slot_of[("w", p, c)]
        if p == 0: base, off = WR1 + (t >> 1), (sl - 8) * PITCH
        else: base, off = WRs[p] + 2 * (sl >= 8) + (t >> 1), (sl % 8) * PITCH
        if kind == "att2": off += j * PITCH
        if kind == "pair": off += 32 * j
        st, js = (1024, 256) if kind == "half" else (2048, 512)
        off += (t & 1) * st
        w = wbuf(g, j)
        role = {"att2": "Watt", "q": "Watt", "pair": "Wpair", "half": "Whalf"}[kind]
        return needs([I("ds_read_b64_tr_b16 %s, v%d offset:%d" % (vr(w + 2 * e, 2), base, off + e * js)) for e in range(2)], **{role: base})
    def x_reads(g):
        c, t = g // 4, g % 4
        return needs([I("ds_read_b128 %s, v%d offset:%d" % (ar(8 * g + 4 * b, 4), XR + t, slot_of[("x", c)] * PITCH + 4096 * b)) for b in range(2)], XR=XR + t)
    def w2_reads(n):
        sl = slot_of[("s", n)]; w = WF + 8 * (n & 1)
        return needs([I("ds_read_b64_tr_b16 %s, v%d offset:%d" % (vr(w + 4 * cb + 2 * e, 2), W2R + 2 * (sl >= 8) + cb, (sl % 8) * PITCH + 1024 * e)) for cb in range(2) for e in range(2)], W2R=range(W2R, W2R + 4))

    queue = []
    for c in range(cfg.npro, 8): queue += [("x", c), ("w", 0, c)]
    queue += [("w", 1, c) for c in range(8)]
    if cfg.mix:
        for c in range(8): queue += [("w", 2, c), ("s", c)]
        queue += [("s", n) for n in range(8, 36)]
    else: queue += [("w", 2, c) for c in range(8)] + [("s", n) for n in range(36)]
    free = set()
    for c in range(cfg.npro, 4): free |= {2 * c, 2 * c + 1, 8 + 2 * c, 9 + 2 * c}
    issue_after = {}; held = []
    n_ins = lambda it: 4 if item_slots(it) == 2 else 2
    for cc in range(-1, 24):
        p, c = max(cc, 0) // 8, cc % 8
        T = passes[p][1] if cc >= 0 else 0
        rel = []
        budget = (cfg.pacew if A or cfg.pacewB is None else cfg.pacewB).get(cc, cfg.pace[p] if cc >= 0 else cfg.pace0)
        if T == 2 or cc == 23:
            rel.append(cc)
            if cc > 0 and passes[(cc - 1) // 8][1] == 1: rel.append(cc - 1)
        elif cc > 0 and passes[(cc - 1) // 8][1] == 1: rel.append(cc - 1)
        held += rel; rel = []
        if cc not in cfg.skipbar: rel, held = held, []
        for r in rel:
            it = ("w", r // 8, r % 8)
            free |= set(range(slot_of[it], slot_of[it] + item_slots(it)))
            if r < 8: free |= {slot_of[("x", r)], slot_of[("x", r)] + 1}
        got = []
        while queue:
            it = queue[0]; ns = item_slots(it)
            if it in slot_of: cand = [slot_of[it]] if all(slot_of[it] + i in free for i in range(ns)) else []
            elif ns == 2: cand = [s for s in sorted(free) if s % 2 == 0 and s + 1 in free]
            else: cand = sorted(free)
            if not cand or budget < n_ins(it): break
            budget -= n_ins(it)
            slot_of[it] = cand[0]
            for i in range(ns): free.discard(cand[0] + i)
            got.append(queue.pop(0))
        issue_after[cc] = (rel, got)
    p2_issue = {}
    for n in range(36):
        free.add(slot_of[("s", n)])
        for k in range(cfg.p2pace):
            if queue and free and n >= cfg.w2at(queue[0][1]):
                it = queue.pop(0); slot_of[it] = min(free); free.discard(slot_of[it]); p2_issue.setdefault(n, []).append(it)
    print(typ, "prefetched slices before P2:", 36 - sum(len(x) for x in p2_issue.values()))

    where = {}
    for g in range(1, 96):
        T = nt(g); k = g % 32
        for j in range(T):
            if T == 2: at = g - 1 if not (k == 0 and nt(g - 1) == 1 and j == 0) else g - 2
            else: at = g - 2 if not (k < 2 and nt(g - k - 1) == 2) else g - k - 1
            where.setdefault(at, []).append(("w", g, j))
        if g < 32: where.setdefault(g - 1 if not cfg.x_early else g - (1, 1, 2, 2)[g % 4], []).append(("x", g))
    for at, lst in sorted(where.items()):
        ins = []
        for it in lst:
            r = w_reads(it[1], it[2]) if it[0] == "w" else x_reads(it[1])
            if it[1] % 4 == 3:
                r[-1].tag = "rd%d_%s%d" % (it[1] // 4, it[0], it[2] if it[0] == "w" else 0)
                last_rd[it[1] // 4] = r[-1].tag
            ins += r
        b0 = step_beat[at]; nb = 2 * nt(at)
        late_x = []
        if cfg.x_early and at < 32 and at % 4 < 2:
            k0 = 6 if at % 4 == 0 else 4
            ins, late_x = ins[:k0], ins[k0:]
            for x in late_x: x.tag = None
            for i, x in enumerate(late_x): S.put(b0 + 2 + i, x)
        if cfg.rd_early and len(ins) == 6: ins = [ins[0], ins[1], ins[4], ins[5], ins[2], ins[3]]
        if cfg.rd_early:
            tg = [x.tag for x in ins if x.tag]
            if tg:
                for x in ins: x.tag = None
                ins[-1].tag = last_rd[lst[0][1] // 4]
        if cfg.one_wait and nt(at) == 2 and at + 1 in step_beat and lst[0][1] == at + 1:
            if not ins[-1].tag: ins[-1].tag = "stp%d" % at
            S.put(step_beat[at + 1], Wait(ins[-1].tag), pre=True)
        nbb = 2 if cfg.rd_early else nb
        for i, x in enumerate(ins): S.put(b0 + min(nbb - 1, i * nbb // len(ins)), x)

    extra_pre = {}
    def place_barriers():
        for cc in range(24):
            b = step_beat[bar_step[cc]]
            if cc in cfg.skipbar:
                assert cc not in extra_pre and cc not in extra_wait
                continue
            pre = []
            for r in issue_after[cc][0]: pre.append(Wait(last_rd[r]))
            if cc in extra_pre: pre.append(Wait("lgkm0"))
            if cc in extra_wait: pre.append(Wait(extra_wait[cc]))
            if cc < 23:
                nx = cc + 1
                while nx in cfg.skipbar: nx += 1
                if nx < 8: pre.append(Wait("x%d" % nx))
                pre.append(Wait("w%d_%d" % (nx // 8, nx % 8)))
            pre.append(I("s_barrier"))
            S.beats[b]["pre"] = pre + S.beats[b]["pre"]
    bb = lambda cc: step_beat[bar_step[cc]]
    for cc in range(-1, 24):
        items = []
        for it in issue_after[cc][1]: items += item_dma(it)
        if items: S.spread(items, bb(cc) if cc >= 0 else 0, bb(cc + 1) if cc < 23 else sl_beat[0] + 2)

    r0 = w2_reads(0)
    S.put(step_beat[95], [Wait("w2_0")] );
    for i, x in enumerate(r0): S.put(step_beat[95] + min(i // 2, 2 * nt(95) - 1), x)
    for n in range(36):
        b = sl_beat[n]
        if n + 1 < 36:
            S.put(b, Wait("w2_%d" % (n + 1)))
            for i, x in enumerate(w2_reads(n + 1)): S.put(b + i, x)
        for k, it in enumerate(p2_issue.get(n, [])): S.put(b + 2 + k, dma_w2(it[1], slot_of[it])[0])

    sp = lambda g: step_beat[g]
    sl0 = sl_beat[0]
    def after(b, cyc):
        while cyc > 0: cyc -= max(S.beats[b]["period"], S.load(b)); b += 1
        return b
    def end_of(it):
        cc = [c for c in issue_after if it in issue_after[c][1]][0]
        return bb(cc + 1)
    def start_of(it):
        cc = [c for c in issue_after if it in issue_after[c][1]][0]
        return bb(cc)
    assert start_of(("w", 1, 0)) >= sp(cfg.setup_end) and end_of(("x", 7)) < sp(28)
    for cc in range(24):
        if cc not in cfg.skipbar:
            for k in range(cfg.quiet): S.beats[bb(cc) + k]["quiet"] = True
    setup = late_setup(A)
    pro_setup = []
    if cfg.pro_setup:
        setup = flat(setup)
        mem = [x for x in setup if x.kind == "vm"]
        pro_setup = [x for x in setup if x.kind != "vm"]
        S.spread(mem, sp(cfg.clr_at), sp(cfg.clr_at + 5))
    else: S.spread(setup, sp(1), sp(cfg.setup_end), "setup")
    if cfg.wpf: S.put(sp(cfg.wpf), w_touch(cfg.wpf1, 110))
    if not A and cfg.bt2: S.put(sp(cfg.bt2), b_touch2(120, 2, 4))
    if not A and cfg.bt3: S.put(sp(cfg.bt3), b_touch2(122, 6, 1) + b_touch3(124))
    if cfg.late_g: S.put(sp(cfg.late_g), w_touch([(SG, 14), (SU, 14), (SQ, 12)], 102))
    if cfg.late_d: S.put(sp(cfg.late_d), w_touch([(SD, 14), (SO, 4)], 108) + (p3_touch(116) if cfg.late_u else []))
    if cfg.p3t: S.put(sp(cfg.p3t), p3_touch(116))
    if cfg.wpfd: S.put(sp(cfg.wpfd), w_touch([(SD, 14), (SO, 4)], XR + 1))
    extra_wait = {4: "clr"}
    S.put(bb(4), needs(L("v_mov_b32 v%d, 1\nbuffer_atomic_add v%d, v%d, %s, 0 offen" % (KVD + 1, KVD + 1, KVD, srd(SDBG))), HSA=KVD))
    S.put(sp(21), wphi_finish())
    S.spread(addr_wfull(WR2, 4, False, False, TMP + 8), max(end_of(("x", 7)), sp(22)), sp(30))
    S.spread(r2_table(), max(end_of(("x", 7)), sp(22)), sp(30))
    pre, adds = t_stat_add()
    S.spread(pre, sp(26), sp(28))
    cs_pub = lambda tile0: [Gap(1)] + t_cs_add(tile0, 'CSs' if A and tile0 == 0 else 'CS')
    S.spread(adds + cs_pub(0)[1:], sp(29) + 2, sp(30) + 1) if cfg.st_early else S.spread(cs_pub(0) + adds, sp(30), sp(31)); extra_pre[7] = 1
    fin, late = t_stat_fin()
    S.spread(t_cs_tot(0, TMP + 2), sp(31), sp(32))
    S.spread(fin, sp(31), sp(32))
    hs_i, hs_c = poll(XR, XR + 1, "8" if cfg.dbgout else "4", SDBG, "gt")
    if cfg.dbgout: S.put(sp(36), L("v_and_b32 v%d, 31, v%d\nv_lshlrev_b32 v%d, 2, v%d\nv_add_u32 v%d, 64, v%d" % (XR, vL, XR, XR, XR, XR)) + [hs_i])
    else: S.put(sp(36), [I("v_lshlrev_b32 v%d, 2, v%d" % (XR, vL)), hs_i])
    S.put(sp(44), stamp("hs0") + [hs_c] + stamp("hs1"))
    for k, (st, n0, ns) in enumerate(cfg.w2pf):
        assert sp(st) >= end_of(("w", 1, 7))
        if cfg.w2B and A: continue
        S.put(sp(st) + 2, w2_touch(WGD + (k & 1), n0, ns, cfg.w2B))
    S.spread(cs_pub(2), sp(62) - 3 * cfg.st_early, sp(63) - 3 * cfg.st_early); extra_pre[15] = 1
    S.spread(t_cs_tot(2, XR + 2), sp(63), sp(64))
    S.spread(cs_pub(4), sp(94), sp(95)); extra_pre[23] = 1
    S.spread(t_cs_tot(4, WR2 + 1), sp(95), sl0)
    x = addr_p2(WR2 + 1)
    S.spread(addr_p2(XR + 2)[-2:], sp(60), sp(62)); S.spread(x[:-2], sp(76), sp(90))
    so2 = "s_mov_b32 s%d, %d" % (sT1, (16 if A else 8) * 2048)
    if A:
        S.spread(addr_whalf(WR3, XR + 2) + addr_cs(False, XR + 2), sp(52), sp(60))
        att = t_corr(SET0, 2, 0) + late + t_att_k()
        h1 = t_hepi(SET1, so2, 0, None) + t_hepi(SET1 + 32, so2, 2048, "h1")
        if cfg.h1first:
            eh = S.spread(t_corr(SET1, 2, 2) + h1, sp(64), sp(64 + cfg.h1first), "hepi1")
            S.put(after(eh, cfg.fd), set_flag(1, "h1", WR2 + 3))
        else: S.spread(t_corr(SET1, 2, 2), sp(64), sp(68))
        e = S.spread(att, sp(32), sp(32 + cfg.a_att), "att_k")
        busy = {"v%d" % r for r in list(range(16)) + list(range(48, 64))}
        later = [x for b in range(sp(64), e + 1) for x in flat(S.beats[b]["post"])]
        assert not any(x in later and busy & set(x.rd + x.wr) for x in flat(att) if isinstance(x, I)), "pass-3 accumulators still in use"
        cb = min(cc for cc in range(8, 24) if bb(cc) > e and cc not in cfg.skipbar); extra_pre[cb] = 1
        print("  kv exchange barrier chunk", cb)
        e = S.spread(t_kv_pub(), bb(cb), min(bb(cb) + cfg.a_pub, sl0), "kv_pub")
        S.put(e, stamp("kvi"))
        if not cfg.h1first:
            b0 = e + 1
            e = S.spread(h1, b0, min(b0 + cfg.a_h1, sl0 + 4), "hepi1")
            S.put(after(e, cfg.fd), set_flag(1, "h1", vPW))
        so = "s_mov_b32 s%d, s%d" % (sT1, sH2)
        S.spread(t_corr(SET0, 1, 4, 48), sl0, sl0 + 1)
        b0 = max(e, sl0 + 2)
        e = S.spread(t_hepi(SET0, so, 0, "h2", 48), b0, b0 + cfg.a_h2, "hepi2")
        S.put(after(e, cfg.fd), set_flag(2, "h2", vPW))
        last_task = e
    else:
        so = "s_mov_b32 s%d, 0" % sT1
        e = S.spread(t_corr(SET0, 2, 0) + late + t_hepi(SET0, so, 0, None) + t_hepi(SET0 + 32, so, 2048, "h0"), sp(32), sp(32 + cfg.b_h0), "hepi0")
        S.put(after(e, cfg.fd), set_flag(1, "h0", WHD))
        S.spread(addr_wfull(WR3, 4, True, False, XR + 2), sp(52), sp(60))
        e = S.spread(t_corr(SET1, 2, 2) + t_hepi(SET1, so2, 0, None) + t_hepi(SET1 + 32, so2, 2048, "h1"), sp(64), sp(64 + cfg.h1), "hepi1")
        S.put(after(e, cfg.fd), set_flag(2, "h1", WHD))
        att = t_corr(SET0, 1, 4) + [Gap(1)] + t_att_q()
        ri, rc = t_kv_red()
        li, lc = t_kv_load()
        e = S.spread(att, sl0, sl0 + cfg.b_att, "att_q")
        S.spread(ri, sl0 + cfg.b_ri, sl0 + cfg.b_ri + 2)
        S.put(sl0 + cfg.b_rc, stamp("kr0") + rc + stamp("kr1"))
        S.spread(li, sl0 + cfg.b_li, sl0 + cfg.b_li + 4)
        assert e <= sl0 + cfg.b_lc
        S.put(sl0 + cfg.b_lc, stamp("kp0") + lc + stamp("kp1"))
        e = S.spread(t_o(), sl0 + cfg.b_lc, sl0 + cfg.b_lc + cfg.b_o, "o")
        S.put(after(e, cfg.fd), set_flag(3, "ost", WHD))
        last_task = e
    place_barriers()
    def padder(T):
        return Raw(["v_readlane_b32 s100, v%d, 0" % vSTAMP, "L_padx%s:" % typ, "s_memrealtime s[98:99]", "s_waitcnt lgkmcnt(0)", "s_sub_u32 s98, s98, s100",
                    "s_cmp_lt_u32 s98, %d" % T, "s_cbranch_scc1 L_padx%s" % typ], wr=["scc"])
    if cfg.pad_at and cfg.pad_at[0] >= 0: S.beats[sp(cfg.pad_at[0])]["pre"].insert(0, padder(cfg.pad_at[1]))
    first = [0, 8, 16, 24, 28, 36]
    hl = cfg.hlA if A else cfg.hlB
    for c in range(5):
        iss, chk = class_poll(c, (WGD, WR2)[c & 1], WGD + 1)
        pos = [sp(64 + cfg.p0) + i * cfg.hstep0 if c == 0 else sl0 + hl[first[c] + i] for i in range(first[c + 1] - first[c])]
        S.put(pos[0] - cfg.poll_lead[c], iss)
        S.put(pos[0], stamp("cp%d_0" % c) + chk + stamp("cp%d_1" % c))
        for i, b in enumerate(pos):
            n = first[c] + i
            if b < sl0: assert b >= sp(64 + n + 1)
            assert b < sl_beat[n], (c, n)
            S.put(b, h_load(n))
    RES = TMP
    rb_ = max(last_task + 2, sl_beat[24])
    S.put(rb_, L("""
    s_lshl_b32 s{t0}, s{tt}, 2
    s_add_u32 s{t0}, s{t0}, s{wv}
    s_lshl_b32 s{t0}, s{t0}, 14
    s_lshl_b32 s{t1}, s{ct}, 7
    s_add_u32 s{t0}, s{t0}, s{t1}
    v_lshrrev_b32 v{a}, 3, v{L}
    v_lshlrev_b32 v{a}, 10, v{a}
    v_and_b32 v{b}, 7, v{L}
    v_lshl_add_u32 v{a}, v{b}, 4, v{a}
    v_add_u32 v{o}, s{t0}, v{a}
    """.format(t0=sT0, t1=sT1, tt=sTT, wv=sWV, ct=sCT, a=TMP + 8, b=TMP + 9, o=WQD - 1, L=vL)))
    vOUT = WQD - 1; vOUT_ = 6
    S.put(rb_ + 15, I("v_mov_b32 v6, v%d" % vOUT))
    S.put(rb_ + 1, L("s_mov_b32 s%d, 8192\nbuffer_load_dwordx4 %s, v%d, %s, 0 offen\nbuffer_load_dwordx4 %s, v%d, %s, s%d offen" % (sT1, vr(RES, 4), vOUT, srd(SX), vr(RES + 4, 4), vOUT, srd(SX), sT1)))
    S.spread(L("""
    v_bfe_u32 v8, v{L}, 3, 2
    v_mul_u32_u24 v8, {P}, v8
    v_and_b32 v9, 7, v{L}
    v_lshl_add_u32 v8, v9, 8, v8
    v_add_u32 v8, s{l2k}, v8
    v_lshrrev_b32 v10, 5, v{L}
    v_xor_b32 v10, v10, v9
    v_lshl_add_u32 v0, v10, 4, v8
    v_xor_b32 v11, 2, v10
    v_lshl_add_u32 v1, v11, 4, v8
    v_xor_b32 v11, 4, v10
    v_lshl_add_u32 v2, v11, 4, v8
    v_xor_b32 v11, 6, v10
    v_lshl_add_u32 v3, v11, 4, v8
    v_lshrrev_b32 v8, 3, v{L}
    v_and_b32 v10, 3, v{L}
    v_lshlrev_b32 v10, 1, v10
    v_xor_b32 v10, v10, v8
    v_bfe_u32 v11, v{L}, 2, 1
    v_lshlrev_b32 v11, 7, v11
    v_lshl_add_u32 v11, v8, 8, v11
    v_mov_b32 v9, s{wv}
    v_mul_u32_u24 v9, {P2}, v9
    v_add_u32 v11, v11, v9
    v_lshl_add_u32 v4, v10, 4, v11
    v_xor_b32 v10, 1, v10
    v_lshl_add_u32 v5, v10, 4, v11
    """.format(L=vL, P=PITCH, P2=2 * PITCH, l2k=sL2K, wv=sWV)), rb_ + 2, rb_ + 14)
    if cfg.stamps == 2:
        pts = [("b%d" % cc, bb(cc)) for cc in range(24)] + [("s%d" % n, sl_beat[n]) for n in range(0, 37) if n not in (34, 35)]
        prev = ("iss", 0)
        for k, (nm, b) in enumerate(pts):
            for x in (prev[0], nm):
                if x not in stamp_names: stamp_names.append(x)
            cur = sST + 2 * ((k + 1) & 1); old = sST + 2 * (k & 1)
            rd = I("v_writelane_b32 v%d, s%d, %d" % (vSTAMP, old, stamp_names.index(prev[0]) + 2))
            mt = I("s_memtime s[%d:%d]" % (cur, cur + 1))
            if nm[0] == "b" and int(nm[1:]) not in cfg.skipbar:
                pre = S.beats[b]["pre"]; pre.insert(len(pre) - 1, rd); pre.append(mt)
            else: S.beats[b]["pre"] = [rd, mt] + S.beats[b]["pre"]
            prev = (nm, b)
        last_stamp = I("v_writelane_b32 v%d, s%d, %d" % (vSTAMP, cur, stamp_names.index(prev[0]) + 2))
    if cfg.stamps == 3:
        lane = 2
        fine = []
        for cc in range(cfg.fine0, cfg.fine0 + 8):
            b0_, b1_ = bb(cc), bb(cc + 1)
            pts = [b0_ + (b1_ - b0_) * k // 7 for k in range(7)]
            rd = []
            for k, b in enumerate(pts):
                pr = ((40, 42, 86, 88, 90, 98, 100) if cfg.fine0 >= 8 else (40, 42, 32, 24, 20, 98, 100))[k]
                mt = I("s_memtime s[%d:%d]" % (pr, pr + 1))
                S.beats[b]["pre"].append(mt)
                rd.append(I("v_writelane_b32 v%d, s%d, %d" % (vSTAMP, pr, lane))); lane += 1
                fine.append(mt)
            pre = S.beats[b1_]["pre"]
            k = [i for i, x in enumerate(pre) if getattr(x, "kind", "") == "barrier"][0]
            S.beats[b1_]["pre"] = pre[:k] + rd + pre[k:]
        if "f0" not in stamp_names: stamp_names.extend("f%d" % k for k in range(56))
    if cfg.stamps == True:
        for nm, b in (("p1", sp(32)), ("p2", sp(64)), ("p3", sl_beat[0]), ("s8", sl_beat[8]), ("s16", sl_beat[16]), ("s20", sl_beat[20]), ("s28", sl_beat[28]), ("s36", sl_beat[36]),
                      ("c1", sp(4)), ("c2", sp(8)), ("c4", sp(16))):
            S.put(b, stamp(nm), pre=True)

    pro = entry_x(item_dma)
    n_common = len(pro)
    if A:
        pro += L("s_lshl_b32 s{t0}, s{i}, 7\ns_add_u32 s{t0}, s{t0}, 1024".format(t0=sT0, i=sI))
        pro += wdma_addr(WQD, 3072, sT0)
    else:
        pro += L("s_mul_i32 s{t0}, s{q}, 896\ns_lshl_b32 s{t1}, s{ab}, 7\ns_add_u32 s{t0}, s{t0}, s{t1}".format(t0=sT0, t1=sT1, q=sQ, ab=sAB))
        pro += wdma_addr(WGD, 3584, sT0)
    pro += flat(item_dma(("w", 0, 0))) + stamp("iw0")
    pro += entry_rest()
    order = cfg.order if A or not cfg.orderB else cfg.orderB
    for k, w in enumerate(order):
        if w in "123": pro += flat(item_dma(("x", int(w)))) + flat(item_dma(("w", 0, int(w))))
        elif w == "p": pro += p1_touch(112)
        elif w == "g": pro += w_touch([(SG, 14), (SU, 14), (SQ, 12)], 102)
        elif w == "d": pro += w_touch([(SD, 14), (SO, 4)], 108)
        elif w == "r": pro += L("".join(rot_regs(c) for c in range(cfg.npro, 8)))
        elif w == "i": pro += b_index()
        elif w == "P": pro += b_touch1(104)
        elif w == "G": pro += b_touch2(120, 2, 4)
        elif w == "u": pro += p3_touch(116)
        elif w == "t": pro += tlb_touch(120)
        elif w == "f": pro += wphi_setup(A)
        elif w == "c": pro += code_touch()
        elif w == "C": pro += code_touch(typ)
        elif w == "s": pro += early_setup() + flat(addr_wfull(WR1, 2, A, A))
        elif w == "j": pro += [I("s_branch L_main%s" % typ), I("L_main%s:" % typ)]
    pro += pro_setup
    assert cfg.npro == 1 + sum(w in "123" for w in order)
    pro += stamp("iss")
    if cfg.stamps == 2: pro += [I("s_memtime s[%d:%d]" % (sST, sST + 1))]
    if cfg.pad_at and cfg.pad_at[0] == -1: pro += [padder(cfg.pad_at[1])]
    pro += [Wait("x0"), Wait("w0_0"), I("s_barrier")]
    pro += stamp("data")
    pro += x_reads(0) + w_reads(0, 0) + w_reads(0, 1)

    RF = 128 - 32 if A else 64
    unp = []
    for k in range(8): unp += L("v_lshlrev_b32 v%d, 16, v%d\nv_and_b32 v%d, 0xffff0000, v%d" % (RF + 2 * k, RES + k, RF + 2 * k + 1, RES + k))
    S.spread(unp, sl_beat[31], sl_beat[34])
    tail = []
    wr = lambda tb, cb: [I("ds_write_b128 v%d, %s offset:%d" % (r4, vr(ACC2[2 * cb + tb] + 4 * r4, 4), 128 * cb + 4 * PITCH * tb)) for r4 in range(4)]
    if cfg.qmajor:
        ms = [S.beats[b]["main"] for b in range(sl_beat[34], sl_beat[36])]
        for k, q in enumerate((0, 4, 2, 6, 1, 5, 3, 7)): S.beats[sl_beat[34] + k]["main"] = ms[q]
        for k in range(1, 4): S.beats[sl_beat[34]]["post"] += S.beats[sl_beat[34] + k]["post"]; S.beats[sl_beat[34] + k]["post"] = []
        S.beats[sl_beat[34]]["pre"] += S.beats[sl_beat[34]]["post"]; S.beats[sl_beat[34]]["post"] = []
        w = wr(0, 0) + wr(0, 1) + wr(1, 0)
        for k, b in enumerate((4, 4, 5, 5, 5, 6, 6, 7)): S.put(sl_beat[34] + b, w[k])
        tail += w[8:] + wr(1, 1)
    else: tail += wr(0, 0) + wr(0, 1) + wr(1, 0) + wr(1, 1)
    tail += [Wait("lgkm0"), I("s_barrier")]
    RD = 128
    for i in range(2):
        for e in range(2):
            for w in range(4):
                tail += L("ds_read_b128 %s, v%d offset:%d" % (vr(RD + 32 * i + 16 * e + 4 * w, 4), 4 + e, 2048 * w + PITCH * i))
    pk = lambda d, a, b: I("v_pk_add_f32 %s, %s, %s" % (vr(d, 2), vr(a, 2), vr(b, 2)))
    for i in range(2):
        for e in range(2):
            b = RD + 32 * i + 16 * e; r = RF + 8 * i + 4 * e
            tail += [pk(r, r, b), pk(r + 2, r + 2, b + 2), pk(b + 4, b + 4, b + 8), pk(b + 6, b + 6, b + 10), pk(r, r, b + 12), pk(r + 2, r + 2, b + 14),
                     pk(r, r, b + 4), pk(r + 2, r + 2, b + 6)]
            tail += L("v_cvt_pk_bf16_f32 v%d, v%d, v%d\nv_cvt_pk_bf16_f32 v%d, v%d, v%d" % (8 + 4 * i + 2 * e, r, r + 1, 9 + 4 * i + 2 * e, r + 2, r + 3))
        tail += L("s_mov_b32 s%d, %d\nbuffer_store_dwordx4 %s, v%d, %s, s%d offen" % (sT1, 8192 * i, vr(8 + 4 * i, 4), vOUT_, srd(SOUT), sT1) + cfg.outfl)
    if cfg.stamps:
        tail += stamp("end")
        if cfg.stamps == 4: tail += L("s_getpc_b64 s[56:57]\nv_writelane_b32 v%d, s56, 3\nv_writelane_b32 v%d, s57, 4" % (vSTAMP, vSTAMP))
        if cfg.stamps == 4: tail += [I("s_memtime s[%d:%d]" % (sST, sST + 1)), I("v_writelane_b32 v%d, s%d, 2" % (vSTAMP, sST))]
        if cfg.stamps == 2:
            if "end" not in stamp_names: stamp_names.append("end")
            tail += [last_stamp, I("s_memtime s[%d:%d]" % (sST, sST + 1)), I("v_writelane_b32 v%d, s%d, %d" % (vSTAMP, sST, stamp_names.index("end") + 2))]
        tail += L("""
        s_memrealtime s[{a}:{b}]
        v_writelane_b32 v{st}, s{a}, 1
        s_lshl_b32 s{t0}, s2, 2
        s_add_u32 s{t0}, s{t0}, s{wv}
        s_lshl_b32 s{t0}, s{t0}, 8
        s_add_u32 s{t0}, s{t0}, {o}
        v_lshl_add_u32 v0, v{L}, 2, s{t0}
        buffer_store_dword v{st}, v0, {sr}, 0 offen
        """.format(a=sST, b=sST + 1, st=vSTAMP, t0=sT0, wv=sWV, o=WS_ST, L=vL, sr=srd(SW)))
    if cfg.dbgout:
        ix = lambda n: stamp_names.index(n) + 2
        t = """
        v_readlane_b32 s56, v{st}, 0
        v_readlane_b32 s57, v{st}, 1
        v_readlane_b32 s58, v{st}, {iss}
        s_nop 4
        v_mov_b32 v2, {oob}
        v_mov_b32 v1, 0
        v_writelane_b32 v2, 32, 0
        v_writelane_b32 v2, 40, 1
        v_writelane_b32 v2, 36, 2
        v_writelane_b32 v1, s57, 0
        v_writelane_b32 v1, s56, 1
        s_not_b32 s59, s56
        v_writelane_b32 v1, s59, 2
        buffer_atomic_umax v1, v2, {sd}, 0 offen
        s_sub_u32 s57, s57, s56
        v_mov_b32 v3, 0
        v_writelane_b32 v3, s57, 0
        """.format(st=vSTAMP, iss=ix("iss"), oob=OOB, sd=srd(SDBG))
        for k, nm in enumerate(("b0", "b3", "b7", "b15", "s0", "s28", "end")):
            t += "v_readlane_b32 s59, v%d, %d\ns_nop 4\ns_sub_u32 s59, s59, s58\nv_writelane_b32 v3, s59, %d\n" % (vSTAMP, ix(nm), k + 1)
        t += """
        v_lshlrev_b32 v2, 2, v{L}
        v_mov_b32 v4, {oob}
        v_cmp_gt_u32 vcc, 8, v{L}
        v_cndmask_b32 v2, v4, v2, vcc
        s_or_b32 s59, s2, s{wv}
        s_cmp_eq_u32 s59, 0
        s_cselect_b32 s59, 0, {oob}
        buffer_store_dword v3, v2, {sd}, s59 offen
        """.format(L=vL, oob=OOB, wv=sWV, sd=srd(SDBG))
        tail += L(t)
    if cfg.padto:
        tail.append(Raw(["v_readlane_b32 s56, v%d, 0" % vSTAMP, "L_pad%s:" % typ, "s_memrealtime s[58:59]", "s_waitcnt lgkmcnt(0)", "s_sub_u32 s58, s58, s56",
                         "s_cmp_lt_u32 s58, %d" % cfg.padto, "s_cbranch_scc1 L_pad%s" % typ]))
    tail += L("s_endpgm")
    est = sum(max(bt["period"], S.load(i)) for i, bt in enumerate(S.beats[:sl_beat[0]]))
    print("  P1 issue-model cycles:", est, " P2:", sum(max(32, S.load(i)) for i in range(sl_beat[0], sl_beat[36])))
    return n_common, pro + S.flat() + tail

def code_touch(typ=None):
    ins = L("""
    s_getpc_b64 s[{a}:{b}]
    {far}
    s_bfe_u32 s{t0}, s2, 0x40003
    s_lshl_b32 s{t0}, s{t0}, 2
    s_add_u32 s{t0}, s{t0}, s{wv}
    s_lshl_b32 s{t0}, s{t0}, 9
    v_and_b32 v{x}, 3, v{L}
    v_lshl_add_u32 v{x}, v{x}, 7, s{t0}
    v_min_u32 v{x}, {lim}, v{x}
    global_load_dword v{y}, v{x}, s[{a}:{b}]
    """.format(a=sM1, b=sM1 + 1, t0=sT0, wv=sWV, x=76, y=77, L=vL, lim="L_end%s-L_main%s-4" % (typ, typ),
               far=("L_pc%s:\ns_add_u32 s%d, s%d, L_main%s-L_pc%s\ns_addc_u32 s%d, s%d, 0" % (typ, sM1, sM1, typ, typ, sM1 + 1, sM1 + 1)) if typ else ""))
    return ins

def w_touch(which, d0):
    s = "s_lshl_b32 s{t0}, s2, 2\ns_add_u32 s{t0}, s{t0}, s{wv}\n".format(t0=sT0, wv=sWV)
    last = None
    for k, (sr, n) in enumerate(which):
        if n != last:
            s += "s_mul_i32 s{t1}, s{t0}, {b}\nv_min_u32 v{a}, {m}, v{L}\nv_lshl_add_u32 v{a}, v{a}, 7, s{t1}\n".format(t0=sT0, t1=sT1, b=128 * n, a=d0, m=n - 1, L=vL)
            last = n
        s += "buffer_load_dword v%d, v%d, %s, 0 offen\n" % (d0 + 1 + k, d0, srd(sr))
    return L(s)

def tlb_touch(d0):
    s = "v_and_b32 v{a}, 15, v{L}\nv_lshlrev_b32 v{a}, 20, v{a}\nv_add_u32 v{a}, 0x7ff00, v{a}\n".format(a=d0, L=vL)
    for k, sr in enumerate((SD, SO, SW, SOUT, SG, SU, SQ)):
        s += "buffer_load_dword v%d, v%d, %s, 0 offen\n" % (d0 + 1 + k, d0, srd(sr))
    return L(s)

def p3_touch(d0):
    return L("""
    s_lshl_b32 s{t0}, s2, 2
    s_add_u32 s{t0}, s{t0}, s{wv}
    s_lshr_b32 s{t1}, s{t0}, 1
    s_and_b32 s{t0}, s{t0}, 1
    v_and_b32 v{b}, 3, v{L}
    v_lshl_add_u32 v{b}, s{t0}, 2, v{b}
    v_and_b32 v{c}, 1, v{L}
    v_lshl_add_u32 v{c}, s{t0}, 1, v{c}
    s_mul_i32 s{t0}, s{t1}, 3072
    v_lshl_add_u32 v{b}, v{b}, 7, s{t0}
    buffer_load_dword v{b}, v{b}, {q}, 0 offen
    s_mul_i32 s{t0}, s{t1}, 3584
    s_add_u32 s{t0}, s{t0}, 768
    v_mul_u32_u24 v{c}, 896, v{c}
    v_add_u32 v{c}, s{t0}, v{c}
    buffer_load_dword v{r2}, v{c}, {g}, 0 offen
    buffer_load_dword v{c}, v{c}, {u}, 0 offen
    """.format(t0=sT0, t1=sT1, wv=sWV, L=vL, b=d0, c=d0 + 1, r2=d0 + 2, q=srd(SQ), g=srd(SG), u=srd(SU)))

sWB = sH2
def b_index():
    return L("""
    s_and_b32 s{t0}, s2, 7
    s_lshl_b32 s{t0}, s{t0}, 4
    s_bfe_u32 s{t1}, s2, 0x40003
    s_add_u32 s{t0}, s{t0}, s{t1}
    s_lshl_b32 s{t0}, s{t0}, 2
    s_add_u32 s{w}, s{t0}, s{wv}
    """.format(t0=sT0, t1=sT1, w=sWB, wv=sWV))

def b_touch1(d0):
    a, b, c = d0, d0 + 1, d0 + 2
    ins = L("""
    v_bfe_u32 v{a}, v{L}, 1, 2
    v_lshlrev_b32 v{a}, 10, v{a}
    v_and_b32 v{c}, 1, v{L}
    v_lshl_add_u32 v{a}, v{c}, 7, v{a}
    s_lshl_b32 s{t0}, s{w}, 12
    v_add_u32 v{a}, s{t0}, v{a}
    s_lshr_b32 s{t0}, s{w}, 2
    s_and_b32 s{t1}, s{w}, 3
    v_and_b32 v{b}, 3, v{L}
    v_lshl_add_u32 v{b}, s{t1}, 2, v{b}
    s_mul_i32 s{t1}, s{t1}, 896
    v_lshl_add_u32 v{c}, v{c}, 7, s{t1}
    s_mul_i32 s{t1}, s{t0}, 3072
    s_add_u32 s{t1}, s{t1}, 1024
    v_lshl_add_u32 v{b}, v{b}, 7, s{t1}
    s_mul_i32 s{t1}, s{t0}, 3584
    v_add_u32 v{c}, s{t1}, v{c}
    """.format(a=a, b=b, c=c, L=vL, t0=sT0, t1=sT1, w=sWB))
    r = d0 + 3
    for g in range(1, 4):
        ins += L("buffer_load_dword v%d, v%d, %s, 0 offen offset:%d" % (r, a, srd(SX), 256 * g)); r += 1
        ins += L("s_mov_b32 s%d, %d\nbuffer_load_dword v%d, v%d, %s, s%d offen" % (sT0, 128 * 3072 * g, r, b, srd(SQ), sT0)); r += 1
        ins += L("s_mov_b32 s%d, %d\nbuffer_load_dword v%d, v%d, %s, s%d offen\nbuffer_load_dword v%d, v%d, %s, s%d offen" % (sT0, 128 * 3584 * g, r, c, srd(SG), sT0, r + 1, c, srd(SU), sT0)); r += 2
    return ins

def b_touch2(d0, u0, nu):
    a, b = d0, d0 + 1
    return L("""
    v_and_b32 v{a}, 3, v{L}
    v_mul_u32_u24 v{a}, 896, v{a}
    v_lshrrev_b32 v{b}, 2, v{L}
    v_min_u32 v{b}, {m}, v{b}
    v_lshl_add_u32 v{a}, v{b}, 7, v{a}
    s_mul_i32 s{t0}, s{w}, 3584
    s_add_u32 s{t0}, s{t0}, {o}
    buffer_load_dword v{b}, v{a}, {g}, s{t0} offen
    buffer_load_dword v{a}, v{a}, {u}, s{t0} offen
    """.format(a=a, b=b, L=vL, m=nu - 1, t0=sT0, w=sWB, o=128 * u0, g=srd(SG), u=srd(SU)))

def b_touch3(d0):
    a = d0
    return L("""
    v_min_u32 v{a}, 7, v{L}
    v_lshlrev_b32 v{a}, 7, v{a}
    s_mul_i32 s{t0}, s{w}, 3072
    s_lshl_b32 s{t1}, s{w}, 10
    buffer_load_dword v{r0}, v{a}, {q}, s{t0} offen
    buffer_load_dword v{r1}, v{a}, {o}, s{t1} offen
    v_min_u32 v{a}, 27, v{L}
    v_lshlrev_b32 v{a}, 7, v{a}
    s_mul_i32 s{t0}, s{w}, 3584
    buffer_load_dword v{a}, v{a}, {d}, s{t0} offen
    """.format(a=a, r0=a + 1, r1=a + 2, L=vL, t0=sT0, t1=sT1, w=sWB, q=srd(SQ), o=srd(SO), d=srd(SD)))

def p1_touch(d0):
    return L("""
    s_lshl_b32 s{t0}, s2, 2
    s_add_u32 s{t0}, s{t0}, s{wv}
    s_lshl_b32 s{t1}, s{t0}, 11
    v_and_b32 v{a}, 15, v{L}
    v_lshl_add_u32 v{a}, v{a}, 7, s{t1}
    buffer_load_dword v{r0}, v{a}, {x}, 0 offen
    s_lshr_b32 s{t1}, s{t0}, 1
    s_and_b32 s{t0}, s{t0}, 1
    s_mul_i32 s{sp}, s{t1}, 3072
    s_lshl_b32 s{m}, s{t0}, 10
    s_add_u32 s{sp}, s{sp}, s{m}
    s_add_u32 s{sp}, s{sp}, 1024
    v_and_b32 v{b}, 7, v{L}
    v_lshl_add_u32 v{b}, v{b}, 7, s{sp}
    buffer_load_dword v{r1}, v{b}, {q}, 0 offen
    s_mul_i32 s{sp}, s{t1}, 3584
    s_mul_i32 s{m}, s{t0}, 1792
    s_add_u32 s{sp}, s{sp}, s{m}
    v_bfe_u32 v{c}, v{L}, 1, 1
    v_mul_u32_u24 v{c}, 896, v{c}
    v_and_b32 v{d}, 1, v{L}
    v_lshl_add_u32 v{c}, v{d}, 8, v{c}
    v_add_u32 v{c}, s{sp}, v{c}
    buffer_load_dword v{r2}, v{c}, {g}, 0 offen
    buffer_load_dword v{r3}, v{c}, {u}, 0 offen
    """.format(t0=sT0, t1=sT1, sp=sH2, m=sM2, wv=sWV, L=vL, a=d0, b=d0 + 1, c=d0 + 2, d=d0 + 3, r0=d0 + 4, r1=d0 + 5, r2=d0 + 6, r3=d0 + 7,
               x=srd(SX), q=srd(SQ), g=srd(SG), u=srd(SU)))

def w2_touch(t, n0, ns, both=False):
    sr, base, row = slice_src(n0)
    nr = 4 * ns
    return L("""
    s_and_b32 s{t0}, s{tt}, 3
    s_mul_i32 s{t1}, s{t0}, {a}
    s_mul_i32 s{t0}, s{wv}, {wb}
    s_add_u32 s{t1}, s{t1}, s{t0}
    s_lshl_b32 s{t0}, s{ct}, 7
    s_add_u32 s{t1}, s{t1}, s{t0}
    s_add_u32 s{t1}, s{t1}, {b}
    {lane}
    buffer_load_dword v{x}, v{x}, {d}, 0 offen
    """.format(lane=("v_min_u32 v{x}, {m}, v{L}\nv_lshl_add_u32 v{x}, v{x}, 10, s{t1}" if not both else
                     "v_lshrrev_b32 v{x}, 1, v{L}\nv_min_u32 v{x}, {m}, v{x}\nv_lshl_add_u32 v{x}, v{x}, 10, s{t1}\nv_and_b32 v{y}, 1, v{L}\nv_lshlrev_b32 v{y}, 9, v{y}\nv_sub_u32 v{x}, v{x}, v{y}"
                     ).format(x=t, y=WHD, m=nr - 1, L=vL, t1=sT1), t0=sT0, t1=sT1, tt=sTT, ct=sCT, wv=sWV, wb=(448 if sr == SD else 128) * 1024, a=nr * 1024, b=row * 1024, x=t, m=nr - 1, L=vL, d=srd(sr)))

def flat(x):
    o = []
    for y in x: o += y if isinstance(y, list) else [y]
    return o

def groups(ins):
    out = []; cur = []
    tmp = {"s%d" % sT0, "s%d" % sT1, "vcc", "scc"}
    for k, x in enumerate(ins):
        cur.append(x)
        live = set()
        written = {r for y in ins[:k + 1] for r in y.wr} & tmp
        seen = set()
        for y in ins[k + 1:]:
            live |= (set(y.rd) & written) - seen
            seen |= set(y.wr)
        if not live: out.append(cur); cur = []
    if cur: out.append(cur)
    return out

def late_setup(A):
    ins = []
    if A:
        ins += L("s_mul_i32 s{t0}, s{q}, 896\ns_lshl_b32 s{t1}, s{ab}, 7\ns_add_u32 s{t0}, s{t0}, s{t1}\ns_add_u32 s{t0}, s{t0}, 512".format(t0=sT0, t1=sT1, q=sQ, ab=sAB))
        ins += wdma_addr(WGD, 3584, sT0)
    ins += clear_store(A) + common_setup() + flat(addr_cs(A))
    if A:
        ins += L("""
        v_lshrrev_b32 v{a}, 2, v{L}
        v_mul_u32_u24 v{a}, 3584, v{a}
        v_and_b32 v{b}, 3, v{L}
        v_lshl_add_u32 v{a}, v{b}, 4, v{a}
        s_mul_i32 s{t0}, s{q}, 896
        s_lshl_b32 s{t1}, s{ab}, 6
        s_add_u32 s{t0}, s{t0}, s{t1}
        s_add_u32 s{t0}, s{t0}, 768
        s_mul_i32 s{t1}, s{wv}, {w}
        s_add_u32 s{t0}, s{t0}, s{t1}
        v_add_u32 v{d}, s{t0}, v{a}
        s_lshl_b32 s{t0}, s{ab}, 1
        s_add_u32 s{t0}, s{t0}, s{gr}
        s_sub_u32 s{h2}, 24, s{t0}
        s_lshl_b32 s{h2}, s{h2}, 11
        """.format(t0=sT0, t1=sT1, q=sQ, ab=sAB, wv=sWV, gr=sGR, w=16 * 3584, a=TMP, b=TMP + 1, d=WHD, L=vL, h2=sH2))
        ins += att_setup()
    else:
        ins += L("s_lshl_b32 s{t0}, s{i}, 7".format(t0=sT0, i=sI))
        ins += wdma_addr(WQD, 3072, sT0)
        ins += o_setup()
    defines(ins, FLG=vFLG, HST=vHST, W2D=(W2D, W2D + 1), Z=(CA + 2, CA + 3), HSA=KVD)
    if A: defines(ins, WHD=WHD, KVA=vKVA, PW=vPW, PR=vPR, VW=vVW, VR0=vVR0, VR1=vVR1)
    else: defines(ins, KRL=vKRL, KRS=vKRS, KVL=vKVL)
    return groups(ins)

def wdma_addr(dst, stride, scol):
    return defines(L("""
    s_mul_i32 s{t1}, s{wv}, {w}
    s_add_u32 s{t1}, s{t1}, s{c}
    v_lshrrev_b32 v{a}, 3, v{L}
    v_mul_u32_u24 v{a}, {st}, v{a}
    v_bfe_u32 v{b}, v{L}, 4, 1
    v_lshlrev_b32 v{b}, 2, v{b}
    v_xor_b32 v{b}, v{b}, v{L}
    v_and_b32 v{b}, 7, v{b}
    v_lshl_add_u32 v{a}, v{b}, 4, v{a}
    v_add_u32 v{d}, s{t1}, v{a}
    v_add_u32 v{d1}, {nx}, v{d}
    """.format(t1=sT1, wv=sWV, w=16 * stride, c=scol, a=TMP, b=TMP + 1, L=vL, st=stride, d=dst, d1=dst + 1, nx=8 * stride - 1024)), **{'WQD' if dst == WQD else 'WGD': (dst, dst + 1)})

def clear_store(A):
    z = 96
    s = """
    s_lshl_b32 s{t0}, s{rb}, 1
    s_add_u32 s{t0}, s{t0}, s{th}
    s_lshl_b32 s{t1}, s{t0}, 2
    s_add_u32 s{t1}, s{t1}, s{q}
    s_lshl_b32 s{t1}, s{t1}, 4
    s_add_u32 s{t1}, s{t1}, s{t4}
    s_lshl_b32 s{t1}, s{t1}, 1
    s_add_u32 s{t1}, s{t1}, s{gr}
    s_lshl_b32 s{t1}, s{t1}, 2
    s_add_u32 s{t1}, s{t1}, {fl}
    v_mov_b32 v{f}, {oob}
    v_writelane_b32 v{f}, s{t1}, 0
    v_mov_b32 v{z}, 0
    buffer_store_dword v{z}, v{f}, {sr}, 0 offen sc1
    s_lshl_b32 s{t0}, s{i}, 2
    s_lshl_b32 s{t1}, s{gr}, 1
    s_add_u32 s{t0}, s{t0}, s{t1}
    s_add_u32 s{t0}, s{t0}, s{th}
    """.format(t0=sT0, t1=sT1, rb=sRB, th=sTH, q=sQ, t4=sT4, gr=sGR, fl=WS_FL, f=vFLG, oob=OOB, z=z, sr=srd(SW), i=sI)
    if A:
        s += """
        s_lshl_b32 s{t0}, s{t0}, 4
        s_add_u32 s{t0}, s{t0}, s{rb}
        s_mul_i32 s{t0}, s{t0}, 2176
        s_add_u32 s{t0}, s{t0}, {kvp}
        """.format(t0=sT0, rb=sRB, kvp=WS_KVP) + kv_lane(vKVA, True)
        z += 2
        for j in range(4): s += "v_mov_b32 v%d, -1\n" % (z + j)
        ins = L(s)
        for j in range(4): ins += L("buffer_store_dwordx4 %s, v%d, %s, 0 offen offset:%d sc1" % (vr(z, 4), vKVA, srd(SW), 544 * j), tag="clr" if j == 3 else None)
        return ins
    s += """
    s_mul_i32 s{t1}, s{t0}, 34816
    s_mul_i32 s{t0}, s{t0}, 2176
    s_add_u32 s{t0}, s{t0}, {kvf}
    s_add_u32 s{t1}, s{t1}, {kvp}
    v_and_b32 v{a}, 15, v{L}
    v_lshl_add_u32 v{a}, s{rb}, 4, v{a}
    v_cmp_gt_u32 vcc, 0x88, v{a}
    v_lshlrev_b32 v{a}, 4, v{a}
    v_mov_b32 v{b}, {oob}
    v_cndmask_b32 v{a}, v{b}, v{a}, vcc
    v_lshrrev_b32 v{b}, 4, v{L}
    v_lshl_add_u32 v{rs}, v{b}, 2, v{a}
    v_add_u32 v{rs}, s{t0}, v{rs}
    v_mul_u32_u24 v{b}, 2176, v{b}
    v_add3_u32 v{rl}, v{b}, v{a}, s{t1}
    v_mov_b32 v{z}, -1
    """.format(t0=sT0, t1=sT1, rb=sRB, kvf=WS_KVF, kvp=WS_KVP, a=TMP, b=TMP + 1, L=vL, rs=vKRS, rl=vKRL, z=z + 1, oob=OOB)
    return L(s) + L("buffer_store_dword v%d, v%d, %s, 0 offen sc1" % (z + 1, vKRS, srd(SW)), tag="clr")

def kv_lane(dst, mask):
    a, b, c = TMP, TMP + 1, TMP + 2
    s = """
    v_and_b32 v{a}, 31, v{L}
    v_lshrrev_b32 v{b}, 5, v{L}
    v_lshl_add_u32 v{c}, v{b}, 4, v{a}
    v_add_u32 v{b}, 32, v{b}
    v_cmp_gt_u32 vcc, 16, v{a}
    v_cndmask_b32 v{c}, v{b}, v{c}, vcc
    v_lshl_add_u32 v{d}, v{c}, 4, s{t0}
    """.format(a=a, b=b, c=c, L=vL, d=dst, t0=sT0)
    if mask: s += "v_mov_b32 v{b}, {oob}\nv_cmp_gt_u32 vcc, 17, v{a}\nv_cndmask_b32 v{d}, v{b}, v{d}, vcc\n".format(a=a, b=b, d=dst, oob=OOB)
    return s

def early_setup():
    a, b, c = TMP, TMP + 1, TMP + 2
    s = """
    v_lshrrev_b32 v{a}, 5, v{L}
    v_bfe_u32 v{b}, v{L}, 1, 3
    v_xor_b32 v{a}, v{a}, v{b}
    v_lshlrev_b32 v{a}, 4, v{a}
    v_and_b32 v{b}, 31, v{L}
    v_lshl_add_u32 v{a}, v{b}, 7, v{a}
    s_lshl_b32 s{t0}, s{s}, 6
    v_xor_b32 v{a}, s{t0}, v{a}
    s_mul_i32 s{t1}, s{th}, {P}
    v_add_u32 v{x0}, s{t1}, v{a}
    v_xor_b32 v{b}, 32, v{a}
    v_add_u32 v{x1}, s{t1}, v{b}
    v_xor_b32 v{b}, 64, v{a}
    v_add_u32 v{x2}, s{t1}, v{b}
    v_xor_b32 v{b}, 0x60, v{a}
    v_add_u32 v{x3}, s{t1}, v{b}
    v_and_b32 v{a}, 31, v{L}
    v_mov_b32 v{b}, 0x3f803f80
    v_cmp_eq_u32 vcc, 0, v{a}
    v_cndmask_b32 v{s0}, 0, v{b}, vcc
    v_cmp_eq_u32 vcc, 20, v{a}
    v_cndmask_b32 v{s0}, v{s0}, v{b}, vcc
    v_cmp_eq_u32 vcc, 8, v{a}
    v_cndmask_b32 v{s2}, 0, v{b}, vcc
    v_cmp_eq_u32 vcc, 28, v{a}
    v_cndmask_b32 v{s2}, v{s2}, v{b}, vcc
    """.format(a=a, b=b, L=vL, t0=sT0, t1=sT1, s=sS, th=sTH, P=PITCH, x0=XR, x1=XR + 1, x2=XR + 2, x3=XR + 3, s0=SEL01, s2=SEL23)
    for j in range(1, 4): s += "v_mov_b32 v%d, v%d\nv_mov_b32 v%d, v%d\n" % (SEL01 + j, SEL01, SEL23 + j, SEL23)
    return defines(L(s), XR=range(XR, XR + 4))

def common_setup():
    a, b, c = TMP, TMP + 1, TMP + 2
    s = "s_mov_b32 s%d, 0\ns_mov_b32 s%d, -1\nv_mov_b32 v%d, 0\nv_mov_b32 v%d, 0\n" % (sMH, sMH + 1, CA + 2, CA + 3)
    s += """
    v_and_b32 v{a}, 3, v{L}
    v_cmp_eq_u32 s[{m1}:{m1b}], 1, v{a}
    v_cmp_eq_u32 s[{m2}:{m2b}], 2, v{a}
    v_cmp_eq_u32 s[{m3}:{m3b}], 3, v{a}
    v_and_b32 v{a}, 4, v{L}
    v_cmp_eq_u32 s[{mb}:{mbb}], 4, v{a}
    s_mul_i32 s{wd}, s{wv}, {wdv}
    s_lshl_b32 s{wo}, s{wv}, 17
    s_mov_b32 s{c2}, 0x3b000000
    """.format(a=a, L=vL, m1=sM1, m1b=sM1 + 1, m2=sM2, m2b=sM2 + 1, m3=sM3, m3b=sM3 + 1, mb=sMB, mbb=sMB + 1,
               wd=sWDB, wo=sWOB, wv=sWV, wdv=448 * 1024, c2=sC2)
    s += """
    s_lshl_b32 s{t0}, s{rb}, 1
    s_add_u32 s{t0}, s{t0}, s{th}
    s_mul_i32 s{t0}, s{t0}, 144
    s_mul_i32 s{t1}, s{q}, 36
    s_add_u32 s{t0}, s{t0}, s{t1}
    s_lshl_b32 s{t1}, s{ab}, 2
    s_add_u32 s{t0}, s{t0}, s{t1}
    s_lshl_b32 s{t1}, s{gr}, 1
    s_add_u32 s{t0}, s{t0}, s{t1}
    s_lshl_b32 s{t0}, s{t0}, 11
    v_lshl_add_u32 v{h}, v{L}, 4, s{t0}
    v_lshrrev_b32 v{a}, 3, v{L}
    v_lshlrev_b32 v{a}, 10, v{a}
    v_bfe_u32 v{b}, v{L}, 4, 1
    v_lshlrev_b32 v{b}, 2, v{b}
    v_xor_b32 v{b}, v{b}, v{L}
    v_and_b32 v{b}, 7, v{b}
    v_lshl_add_u32 v{a}, v{b}, 4, v{a}
    s_lshl_b32 s{t0}, s{ct}, 7
    v_add_u32 v{w}, s{t0}, v{a}
    v_add_u32 v{w1}, 7168, v{w}
    s_and_b32 s{t0}, s2, {hm}
    s_lshl_b32 s{t0}, s{t0}, 2
    s_add_u32 s{t0}, s{t0}, {ho}
    s_cmp_eq_u32 s{wv}, 0
    s_cselect_b32 s{t0}, s{t0}, {oob}
    v_mov_b32 v{hs}, {oob}
    v_writelane_b32 v{hs}, s{t0}, 0
    """.format(t0=sT0, t1=sT1, rb=sRB, th=sTH, q=sQ, ab=sAB, gr=sGR, h=vHST, L=vL, a=a, b=b, ct=sCT, w=W2D, w1=W2D + 1, wv=sWV, oob=OOB, hs=KVD, hm=31 if cfg.dbgout else 63, ho=64 if cfg.dbgout else 0)
    return L(s)

def att_setup():
    a, b, c = TMP, TMP + 1, TMP + 2
    s = """
    s_mul_i32 s{t0}, s{wv}, {wsz}
    s_add_u32 s{t0}, s{t0}, {wreg}
    v_and_b32 v{a}, 31, v{L}
    v_lshrrev_b32 v{b}, 5, v{L}
    v_mul_u32_u24 v{c}, 72, v{a}
    v_lshl_add_u32 v{c}, v{b}, 3, v{c}
    v_add_u32 v{pw}, s{t0}, v{c}
    v_mul_u32_u24 v{c}, 104, v{a}
    v_lshl_add_u32 v{c}, v{b}, 3, v{c}
    s_add_u32 s{t1}, s{t0}, {voff}
    v_add_u32 v{vw}, s{t1}, v{c}
    v_lshl_add_u32 v{c}, v{b}, 3, v{vw}
    v_mov_b32 v{o0}, 0x3f803f80
    v_mov_b32 v{o1}, 0x3f803f80
    ds_write_b64 v{c}, v[{o0}:{o1}] offset:64
    ds_write_b64 v{c}, v[{o0}:{o1}] offset:72
    v_bfe_u32 v{a}, v{L}, 2, 2
    v_lshl_add_u32 v{a}, v{b}, 3, v{a}
    v_and_b32 v{b}, 3, v{L}
    v_mul_u32_u24 v{c}, 72, v{a}
    v_lshl_add_u32 v{c}, v{b}, 3, v{c}
    v_bfe_u32 v{o0}, v{L}, 4, 1
    v_lshl_add_u32 v{c}, v{o0}, 5, v{c}
    v_add_u32 v{pr}, s{t0}, v{c}
    v_mul_u32_u24 v{c}, 104, v{a}
    v_lshl_add_u32 v{c}, v{b}, 3, v{c}
    v_add_u32 v{c}, s{t1}, v{c}
    v_lshl_add_u32 v{v0}, v{o0}, 6, v{c}
    v_add_u32 v{o0}, 1, v{o0}
    v_lshl_add_u32 v{v1}, v{o0}, 5, v{c}
    """.format(t0=sT0, t1=sT1, wv=sWV, wsz=WREG_SZ, wreg=WREG, a=a, b=b, c=c, L=vL, pw=vPW, vw=vVW, voff=VOFF, o0=TMP + 8, o1=TMP + 9,
               pr=vPR, v0=vVR0, v1=vVR1, i=sI, gr=sGR, th=sTH)
    return L(s)

def o_setup():
    return L("""
    s_lshl_b32 s{t0}, s{i}, 1
    s_add_u32 s{t0}, s{t0}, s{gr}
    s_mul_i32 s{t0}, s{t0}, 4352
    s_add_u32 s{t0}, s{t0}, {kvf}
    """.format(t0=sT0, i=sI, gr=sGR, kvf=WS_KVF) + kv_lane(vKVL, False))

def wphi_setup(A):
    a, b = TMP, TMP + 1; t = 64 + 16
    s = """
    s_lshl_b32 s{t0}, s{i}, 2
    s_lshl_b32 s{t1}, s{gr}, 1
    s_add_u32 s{t0}, s{t0}, s{t1}
    s_lshl_b32 s{t0}, s{t0}, 9
    v_bfe_u32 v{a}, v{L}, 4, 1
    """.format(t0=sT0, t1=sT1, i=sI, gr=sGR, a=a, L=vL)
    if A: s += "v_xor_b32 v%d, s%d, v%d\n" % (a, sTH, a)
    s += """
    v_lshlrev_b32 v{a}, 9, v{a}
    v_lshrrev_b32 v{b}, 5, v{L}
    v_lshl_add_u32 v{a}, v{b}, 7, v{a}
    v_and_b32 v{b}, 15, v{L}
    v_lshl_add_u32 v{a}, v{b}, 1, v{a}
    v_add_u32 v{a}, s{t0}, v{a}
    """.format(a=a, b=b, L=vL, t0=sT0)
    for j in range(8):
        s += "buffer_load_ushort v%d, v%d, %s, 0 offen offset:%d\n" % (t + j, a, srd(SPHI), 32 * ((j & 3) + 8 * (j >> 2)))
    return L(s)

def wphi_finish():
    t = 64 + 16
    out = L("v_and_b32 v%d, 16, v%d\nv_cmp_eq_u32 vcc, 0, v%d" % (TMP + 8, vL, TMP + 8))
    g = []
    for j in range(4):
        g += L("v_lshl_or_b32 v{x}, v{y}, 16, v{x}\nv_cndmask_b32 v{a0}, 0, v{x}, vcc\nv_cndmask_b32 v{a1}, v{x}, 0, vcc".format(x=t + 2 * j, y=t + 2 * j + 1, a0=WPHI + j, a1=WPHI + 4 + j))
    return defines(out + g, WPHI=range(WPHI, WPHI + 8))

def rot_regs(c):
    if cfg.rot == "z":
        if c < cfg.nfix: return "s_mov_b32 s%d, %d\ns_mov_b32 s%d, %d\ns_mov_b32 s%d, %d\n" % (sKX + c, 128 * c, sKQ + c, 64 * 3072 * c, sKG + c, 64 * 3584 * c)
        return "s_add_u32 s{t1}, s{r}, {c}\ns_sub_u32 s{t0}, s{t1}, {m}\ns_cmp_gt_u32 s{t1}, 7\ns_cselect_b32 s{t1}, s{t0}, s{t1}\ns_lshl_b32 s{kx}, s{t1}, 7\ns_mul_i32 s{kq}, s{t1}, {a}\ns_mul_i32 s{kg}, s{t1}, {b}\n".format(
            m=8 - cfg.nfix, r=sSPIN, t0=sT0, t1=sT1, c=c, kx=sKX + c, kq=sKQ + c, kg=sKG + c, a=64 * 3072, b=64 * 3584)
    return "s_add_u32 s{t1}, s{r}, {c}\ns_and_b32 s{t1}, s{t1}, 7\ns_lshl_b32 s{kx}, s{t1}, 7\ns_mul_i32 s{kq}, s{t1}, {a}\ns_mul_i32 s{kg}, s{t1}, {b}\n".format(
        r=sSPIN, t1=sT1, c=c, kx=sKX + c, kq=sKQ + c, kg=sKG + c, a=64 * 3072, b=64 * 3584)

def srd_consts(lst):
    return "".join("s_mov_b32 s%d, 0x%x\ns_mov_b32 s%d, 0x20000\n" % (reg + 2, sz, reg + 3) for reg, sz in lst)

def entry_x(item_dma):
    s = """
    s_cmp_ge_u32 s2, 256
    s_cbranch_scc1 L_exit
    """
    for reg, off in ((SX, 0), (SQ, 8), (SG, 40), (SU, 48), (SW, 80), (SPHI, 16), (SO, 24), (SD, 56), (SOUT, 64), (SDBG, 72)):
        s += "s_load_dwordx2 s[%d:%d], s[0:1], %d\n" % (reg, reg + 1, off)
    if cfg.stamps:
        s += "s_memrealtime s[%d:%d]\ns_memtime s[%d:%d]\nv_mov_b32 v%d, 0\n" % (sST, sST + 1, sST + 2, sST + 3, vSTAMP)
    s += """
    v_lshrrev_b32 v1, 6, v0
    v_and_b32 v{L}, 63, v0
    v_readfirstlane_b32 s{wv}, v1
    s_and_b32 s{xcd}, s2, 7
    s_lshr_b32 s{idx}, s2, 3
    s_and_b32 s{rb}, s{xcd}, 1
    s_lshl_b32 s{rb}, s{rb}, 3
    s_and_b32 s{t0}, s{idx}, 7
    s_add_u32 s{rb}, s{rb}, s{t0}
    s_lshr_b32 s{q}, s{xcd}, 1
    s_lshr_b32 s{t4}, s{idx}, 3
    s_and_b32 s{ab}, s{t4}, 1
    s_lshl_b32 s{i}, s{q}, 1
    s_add_u32 s{i}, s{i}, s{ab}
    {rotc}    s_and_b32 s{th}, s{wv}, 1
    s_lshr_b32 s{gr}, s{wv}, 1
    s_xor_b32 s{s}, s{th}, s{gr}
    s_lshl_b32 s{l2k}, s{wv}, 11
    s_mul_i32 s{lx}, s{gr}, {P}
    s_lshl_b32 s{t1}, s{th}, 12
    s_add_u32 s{lx}, s{lx}, s{t1}
    """.format(L=vL, wv=sWV, xcd=sXCD, idx=sIDX, rb=sRB, t0=sT0, t1=sT1, q=sQ, t4=sT4, ab=sAB, i=sI, th=sTH, gr=sGR, s=sS, l2k=sL2K, lx=sLX, P=PITCH,
               rotc=("s_lshl_b32 s%d, s%d, 1\ns_add_u32 s%d, s%d, s%d\ns_and_b32 s%d, s%d, %d\n" % (sT1, sT4, sSPIN, sT0, sT1, sSPIN, sSPIN, 7 if cfg.rot is True else int(cfg.rot))) if cfg.rot and cfg.rot != "z" else "")
    if cfg.rot: s += rot_regs(0)
    s += """
    s_lshl_b32 s{t0}, s{rb}, 2
    s_add_u32 s{t0}, s{t0}, s{wv}
    s_lshl_b32 s{t0}, s{t0}, 15
    v_lshrrev_b32 v2, 3, v{L}
    v_lshlrev_b32 v2, 10, v2
    v_add_u32 v2, s{t0}, v2
    v_lshrrev_b32 v3, 4, v{L}
    v_xor_b32 v3, v3, v{L}
    v_and_b32 v3, 7, v3
    v_lshl_add_u32 v{x0}, v3, 4, v2
    v_add_u32 v{x2}, {d2}, v{x0}
    v_xor_b32 v3, 4, v3
    v_lshl_add_u32 v{x1}, v3, 4, v2
    v_add_u32 v{x1}, 7168, v{x1}
    v_add_u32 v{x3}, {d2}, v{x1}
    """.format(t0=sT0, rb=sRB, wv=sWV, L=vL, x0=XD, x1=XD + 1, x2=XD + 2, x3=XD + 3, d2=2 * 7168)
    s += srd_consts(((SX, 0x200000), (SQ, 0x180000), (SG, 0x1C0000), (SU, 0x1C0000)))
    s += "s_waitcnt lgkmcnt(0)\n"
    if cfg.stamps: s += "v_writelane_b32 v%d, s%d, 0\nv_writelane_b32 v%d, s%d, 63\n" % (vSTAMP, sST, vSTAMP, sST + 2)
    ins = L(s)
    for x in ins:
        if x.kind == "smem": x.nowait = True
    defines(ins, XD=range(XD, XD + 4))
    ins += stamp("karg") + flat(item_dma(("x", 0)))
    ins += L("s_cmp_ge_u32 s%d, 2\ns_cbranch_scc1 L_proB" % sT4)
    return ins

def entry_rest():
    s = ""
    if cfg.rot == "z":
        s += """
        s_lshl_b32 s{t0}, s{q}, 1
        s_add_u32 s{t0}, s{t0}, s{t4}
        s_lshl_b32 s{t0}, s{t0}, 1
        s_add_u32 s{t0}, s{t0}, s{rb}
        s_mul_i32 s{t1}, s{t0}, {mg}
        s_lshr_b32 s{t1}, s{t1}, 8
        s_mul_i32 s{t1}, s{t1}, {m}
        s_sub_u32 s{r}, s{t0}, s{t1}
        """.format(m=8 - cfg.nfix, mg={7: 37, 6: 43, 5: 52}[8 - cfg.nfix], t0=sT0, t1=sT1, q=sQ, t4=sT4, rb=sRB, r=sSPIN)
    s += "".join(rot_regs(c) for c in range(1, cfg.npro)) if cfg.rot else ""
    s += """
    s_lshl_b32 s{l1k}, s{wv}, 10
    s_lshl_b32 s{tt}, s{xcd}, 2
    s_and_b32 s{t0}, s{idx}, 3
    s_add_u32 s{tt}, s{tt}, s{t0}
    s_lshr_b32 s{ct}, s{idx}, 2
    """.format(t0=sT0, wv=sWV, tt=sTT, xcd=sXCD, idx=sIDX, ct=sCT, l1k=sL1K)
    s += srd_consts(((SD, 0x1C0000), (SO, 0x80000), (SW, 0x10000000), (SOUT, 0x200000), (SDBG, 256), (SPHI, 16384)))
    return L(s)

def defaults():
    cfg.code_lim = 20480
    cfg.fixpar = 0; cfg.shift = (0, 0); cfg.qmajor = True; cfg.outfl = ' sc1'; cfg.clr_at = 12; cfg.late_u = True; cfg.late_g = 0; cfg.padto = 0; cfg.pad_at = None; cfg.late_d = 7; cfg.orderB = None; cfg.pacewB = None; cfg.bt2 = 0; cfg.bt3 = 0; cfg.strict = False; cfg.skipbar = (); cfg.quiet = 0; cfg.p3t = 0; cfg.pacew = {8: 8}; cfg.wpfd = 0; cfg.npro = 2; cfg.pace0 = 8; cfg.pace = [8, 4, 4]; cfg.p2pace = 1; cfg.w2at = lambda m: (m - 16) * 30 // 19
    cfg.order = 'Cf1jrs'; cfg.rot = 'z'; cfg.wpf0 = None; cfg.wpf = 0; cfg.wpf1 = [(SD, 14), (SO, 4)]; cfg.codepf = 1; cfg.w2pf = [(40, 8, 4), (43, 12, 4), (46, 16, 4), (49, 20, 4), (52, 24, 4), (55, 28, 4), (58, 32, 4)]; cfg.nfix = 1; cfg.rot2 = True; cfg.w2B = False; cfg.mix = True
    cfg.p2period = 72; cfg.rd_early = True; cfg.one_wait = True; cfg.x_early = True; cfg.st_early = True; cfg.pro_setup = True; cfg.setup_end = 14
    cfg.fd = 1100; cfg.h1first = 10; cfg.a_att = 27; cfg.a_h1 = 26; cfg.a_pub = 8; cfg.a_kvflag = 30; cfg.h1 = 18; cfg.a_h2 = 3
    cfg.b_h0 = 12; cfg.b_att = 14; cfg.b_ri = -4; cfg.b_rc = 5; cfg.b_li = 14; cfg.b_lc = 24; cfg.b_o = 5
    cfg.flag_delay = 28; cfg.flag_delay2 = 14
    cfg.p0 = 6; cfg.hstep0 = 5
    cfg.hlA = cfg.hlB = [4 * (n - 4) + 1 for n in range(36)]; cfg.poll_lead = [16, 10, 16, 16, 12]

def generate(path):
    label_n[0] = 0
    import fw; fw.LOOSE = cfg.x_nodma or cfg.x_drop
    progs = {}; cut = {}
    for typ in "AB":
        nc, p = build_type(typ)
        mark = p[nc]
        if cfg.x_nodma:
            k0 = [i for i, x in enumerate(p) if getattr(x, "kind", "") == "barrier"][0]
            q = p[:k0]
            for x in p[k0:]:
                if getattr(x, "dma", False):
                    y = I("s_nop 0");
                    q.append(y)
                else: q.append(x)
            p = q
        if cfg.x_drop:
            q = []
            for x in p:
                t = getattr(x, "text", "")
                d = ("h" in cfg.x_drop and t.startswith("buffer_load_dwordx4 a[")) or \
                    ("s" in cfg.x_drop and t.startswith("buffer_store_dwordx4") and "s[28:31]" in t) or \
                    ("w" in cfg.x_drop and getattr(x, "dma", False) and ("s[20:23]" in t or "s[24:27]" in t)) or \
                    ("p" in cfg.x_drop and x.kind == "raw")
                if "m" in cfg.x_drop and x.kind == "mfma":
                    if t.endswith("]") and " a[" in t and "32x32" in t:
                        regs = [r for r in x.rd if r[0] == "a"]
                        y = I("s_nop 0"); y.rd = regs; y.kind = "salu"; q.append(y)
                    continue
                if "l" in cfg.x_drop and x.kind == "ds": continue
                q.append(I("s_nop 0") if d else x)
            p = q
        progs[typ] = finalize(p, typ)
        cut[typ] = (progs[typ].index(mark), [i for i, x in enumerate(progs[typ]) if x.kind == "label" and "main" in x.text][0])
    def main(t):
        p = progs[t][cut[t][1]:]
        if cfg.fixpar: p = fix_parity(p, cfg.fixpar)
        return ".p2align 6\n" + emit(p[:1]) + "    s_nop 0\n" * cfg.shift[t == "B"] + emit(p[1:]) + "L_end%s:\n" % t
    body = emit(progs["A"][:cut["A"][1]]) + "L_proB:\n" + emit(progs["B"][cut["B"][0]:cut["B"][1]]) + "L_exit:\n    s_endpgm\n" + \
           main("A") + main("B")
    ref = open("parallel_sum__linear_kernel_hedgehog__glu_gated_bilinear__prompt.s.ref").read().split("\n")
    head = [x for x in ref if x.startswith(";") and "@launch" not in x and "Override" not in x and "grid=ceil" not in x]
    txt = "\n".join(head) + "\n; @launch grid=(256,1,1) block=(256,1,1) lds=%d\n" % LDS_BYTES
    txt += """.amdgcn_target "amdgcn-amd-amdhsa--gfx950"
.text
.globl {k}
.p2align 8
.type {k},@function
{k}:
""".format(k=KNAME) + body + """.section .rodata,"a"
.p2align 6
.amdhsa_kernel {k}
  .amdhsa_next_free_vgpr 512
  .amdhsa_next_free_sgpr 102
  .amdhsa_accum_offset 256
  .amdhsa_group_segment_fixed_size 0
  .amdhsa_kernarg_size 88
  .amdhsa_user_sgpr_count 2
  .amdhsa_user_sgpr_kernarg_segment_ptr 1
  .amdhsa_system_sgpr_workgroup_id_x 1
.end_amdhsa_kernel
""".format(k=KNAME)
    open(path, "w").write(txt)
    if cfg.stamps: open(path[:-2] + ".names", "w").write("\n".join(stamp_names))

if __name__ == "__main__":
    defaults()
    path = sys.argv[1]
    for kv in sys.argv[2:]:
        k, v = kv.split("=", 1)
        setattr(cfg, k, eval(v))
    generate(path)
```

```python
import re

TRANS = ("v_exp_f32", "v_log_f32", "v_rcp_f32", "v_rsq_f32", "v_sqrt_f32")


def regs_of(tok):
    tok = tok.strip()
    neg = tok.lstrip("-")
    if neg.startswith("abs(") or neg.startswith("|"):
        neg = neg.replace("abs(", "").replace(")", "").replace("|", "")
    m = re.fullmatch(r"([vas])\[(\d+):(\d+)\]", neg)
    if m:
        return [m.group(1) + str(i) for i in range(int(m.group(2)), int(m.group(3)) + 1)]
    m = re.fullmatch(r"([vas])(\d+)", neg)
    if m:
        return [neg]
    if neg in ("vcc", "exec", "m0", "scc"):
        return [neg]
    return []


class I:
    def __init__(self, text, tag=None):
        self.text = text.strip()
        self.tag = tag
        self.rd, self.wr = [], []
        self.kind = None
        self.passes = 0
        self.srcc = []
        self.parse()

    def parse(self):
        t = self.text
        if t.endswith(":"):
            self.kind = "label"; self.cost = 0; self.op = "label"; return
        parts = t.split(None, 1)
        op = parts[0]
        self.op = op
        rest = parts[1] if len(parts) > 1 else ""
        ops = [o.strip() for o in rest.split(",")] if rest else []
        if ops:
            last = ops[-1].split()
            mods = last[1:]
            ops[-1] = last[0]
        else:
            mods = []
        self.mods = mods
        R = lambda k: [r for o in ops[k:] for r in regs_of(o)]
        self.cost = 4
        if op.startswith("v_mfma"):
            self.kind = "mfma"
            self.wr = regs_of(ops[0]); self.srca = regs_of(ops[1]); self.srcb = regs_of(ops[2]); self.srcc = regs_of(ops[3])
            self.rd = self.srca + self.srcb + self.srcc
            self.passes = 8 if "32x32x16" in op else 4 if "16x16x32" in op else 2
            self.cost = 8
        elif op.startswith("ds_read"):
            self.kind = "ds"; self.wr = regs_of(ops[0]); self.rd = R(1)
        elif op.startswith("ds_"):
            self.kind = "ds"; self.rd = R(0)
        elif op.startswith("buffer_load") and "lds" in mods:
            self.kind = "vm"; self.rd = R(0) + ["m0"]; self.dma = True
        elif op.startswith("buffer_load") or op.startswith("global_load"):
            self.kind = "vm"; self.wr = regs_of(ops[0]); self.rd = R(1)
        elif op.startswith("buffer_store") or op.startswith("buffer_atomic"):
            self.kind = "vm"; self.rd = R(0); self.data = regs_of(ops[0])
        elif op.startswith("s_load") or op in ("s_memtime", "s_memrealtime"):
            self.kind = "smem"; self.wr = regs_of(ops[0]); self.rd = R(1)
        elif op in ("s_waitcnt", "s_barrier", "s_nop", "s_endpgm", "s_sleep", "s_setprio"):
            self.kind = op[2:]
        elif op.startswith("s_cbranch") or op == "s_branch":
            self.kind = "branch"
            if "scc" in op: self.rd = ["scc"]
            if "vcc" in op: self.rd = ["vcc"]
            if "exec" in op: self.rd = ["exec"]
        elif op.startswith("s_cmp"):
            self.kind = "salu"; self.rd = R(0); self.wr = ["scc"]
        elif op.startswith("s_"):
            self.kind = "salu"; self.wr = regs_of(ops[0]); self.rd = R(1)
            if not op.startswith(("s_mov", "s_mul_i32", "s_getpc", "s_getreg", "s_cselect")): self.wr = self.wr + ["scc"]
            if op.startswith("s_cselect") or op.startswith("s_addc"): self.rd = self.rd + ["scc"]
        elif op.startswith("v_"):
            self.kind = "valu"
            self.wr = regs_of(ops[0]); self.rd = R(1)
            if op.startswith(("v_fmac", "v_dot2c", "v_writelane")): self.rd = self.rd + self.wr
            if op.startswith(("v_add_co", "v_addc_co")): self.wr = self.wr + ["vcc"]; self.rd = R(2)
            if op.startswith("v_permlane"):
                self.wr = regs_of(ops[0]) + regs_of(ops[1]); self.rd = list(self.wr)
            if op.split("_e")[0] in TRANS or op in TRANS:
                self.trans = True; self.cost = 8
        else:
            raise ValueError("cannot parse: " + t)

    def __repr__(self):
        return self.text


class Wait:
    def __init__(self, tag):
        self.tag = tag; self.cost = 2; self.kind = "pseudo_wait"


class Gap:
    def __init__(self, n):
        self.n = n


class Raw:
    def __init__(self, lines, rd=(), wr=()):
        self.lines = lines; self.kind = "raw"; self.cost = 4 * len(lines); self.rd = list(rd); self.wr = list(wr)


def L(text, tag=None):
    out = []
    for x in text.strip("\n").split("\n"):
        x = x.split(";")[0].strip()
        if x: out.append(I(x))
    if tag is not None: out[-1].tag = tag
    return out


class Sched:
    def __init__(self):
        self.beats = []

    def beat(self, main, period=32):
        self.beats.append(dict(pre=[], main=main, post=[], period=period))
        return len(self.beats) - 1

    @staticmethod
    def _cost(item):
        if isinstance(item, list): return sum(x.cost for x in item)
        return item.cost

    def load(self, b):
        bt = self.beats[b]
        return sum(self._cost(x) for x in bt["pre"] + bt["post"]) + (bt["main"].cost if bt["main"] is not None else 0)

    def put(self, b, item, pre=False):
        self.beats[b]["pre" if pre else "post"].append(item)

    def spread(self, items, b0, b1, name=""):
        n = b1 - b0
        total = sum(self._cost(x) for x in items if not isinstance(x, Gap))
        gaps = sum(x.n for x in items if isinstance(x, Gap))
        loads = [self.load(b) - self.beats[b]["period"] + (1000 if self.beats[b].get("quiet") and n > 12 else 0) for b in range(b0, b1)]
        lo, hi = -64.0, 4096.0
        def run(level, place):
            b = 0; room = max(0.0, level - loads[0])
            last = 0
            for it in items:
                if isinstance(it, Gap):
                    b = min(n - 1, b + it.n)
                    room = min(room, 0) + max(0.0, level - loads[b])
                    continue
                c = self._cost(it)
                while room < min(c, 8) * 0.5 and b < n - 1:
                    b += 1; room = min(room, 0) + max(0.0, level - loads[b])
                if room < min(c, 8) * 0.5 and not place: return None
                if place: self.put(b0 + b, it)
                room -= c; last = b
            return last
        for _ in range(30):
            mid = (lo + hi) / 2
            if run(mid, False) is None: lo = mid
            else: hi = mid
        last = run(hi, True)
        if name: print("  spread %-10s cost %5d over beats %d..%d level %+.0f last %d" % (name, total, b0, b1, hi, b0 + last))
        return b0 + last

    def flat(self):
        out = []
        def add(x):
            if isinstance(x, list): out.extend(x)
            else: out.append(x)
        for bt in self.beats:
            for x in bt["pre"]: add(x)
            if bt["main"] is not None: add(bt["main"])
            for x in bt["post"]: add(x)
        return out


LOOSE = False
def insert_waits(prog):
    out = []
    vm_seq = 0; vm_done = 0
    ds_seq = 0; ds_done = 0
    pend = {}
    tags = {}
    sm_out = False
    maxvm = 0

    def need(kind, seq, w):
        if kind == "vm" and seq > vm_done: w["vm"] = max(w.get("vm", 0), seq)
        if kind == "ds" and seq > ds_done: w["ds"] = max(w.get("ds", 0), seq)
        if kind == "sm": w["sm"] = 1

    for ins in prog:
        w = {}
        if isinstance(ins, Wait):
            if ins.tag == "lgkm0": need("ds", ds_seq, w)
            elif ins.tag == "vm0": need("vm", vm_seq, w)
            else:
                if ins.tag in tags:
                    k, s = tags[ins.tag]; need(k, s, w)
                else: assert LOOSE, ins.tag
        else:
            for r in list(ins.rd) + list(ins.wr):
                if r in pend: need(pend[r][0], pend[r][1], w)
        if w:
            parts = []
            if "vm" in w:
                n = min(vm_seq - w["vm"], 63); parts.append("vmcnt(%d)" % n); vm_done = vm_seq - n
            if "sm" in w:
                parts.append("lgkmcnt(0)"); ds_done = ds_seq; sm_out = False
                for r in [r for r, v in pend.items() if v[0] == "sm"]: del pend[r]
            elif "ds" in w:
                n = min(ds_seq - w["ds"], 15); parts.append("lgkmcnt(%d)" % n); ds_done = ds_seq - n
            out.append(I("s_waitcnt " + " ".join(parts)))
            for r in [r for r, v in pend.items() if (v[0] == "vm" and v[1] <= vm_done) or (v[0] == "ds" and v[1] <= ds_done)]: del pend[r]
        if isinstance(ins, Wait): continue
        out.append(ins)
        if ins.kind == "vm":
            vm_seq += 1
            for r in ins.wr: pend[r] = ("vm", vm_seq)
            if ins.tag: tags[ins.tag] = ("vm", vm_seq)
            maxvm = max(maxvm, vm_seq - vm_done)
        elif ins.kind == "ds":
            ds_seq += 1
            for r in ins.wr: pend[r] = ("ds", ds_seq)
            if ins.tag: tags[ins.tag] = ("ds", ds_seq)
        elif ins.kind == "smem":
            if not getattr(ins, "nowait", False):
                for r in ins.wr: pend[r] = ("sm", 0)
    return out, maxvm


def states(ins):
    if ins.kind == "label": return 0
    if ins.kind == "nop": return int(ins.text.split()[1]) + 1
    if ins.kind == "raw": return 1
    return 1


def pad_hazards(prog):
    out = []
    nn = 0
    for ins in prog:
        needn = 0
        if ins.kind not in ("label", "nop", "waitcnt", "barrier"):
            rd = set(ins.rd); wr = set(ins.wr)
            dist = 0
            for p in reversed(out):
                if dist >= 20: break
                req = 0
                pw = set(p.wr) if p.kind not in ("label", "nop", "waitcnt", "barrier") else set()
                if p.kind == "valu":
                    vw = {r for r in pw if r[0] in "va" and r != "vcc"}
                    sw = pw - vw
                    if ins.kind == "mfma" and vw & rd: req = max(req, 2)
                    if ins.kind == "valu" and ins.op.startswith("v_permlane") and vw & rd: req = max(req, 2)
                    if ins.kind == "valu" and ins.op.startswith(("v_readfirstlane", "v_readlane")) and vw & rd: req = max(req, 1)
                    if getattr(p, "trans", False) and vw & rd: req = max(req, 1)
                    if "sdwa" in p.op and vw & (rd | wr): req = max(req, 1)
                    if sw & rd:
                        if ins.kind == "valu": req = max(req, 2)
                        elif ins.kind == "vm": req = max(req, 5)
                        elif ins.kind in ("salu", "branch", "raw"): req = max(req, 4)
                elif p.kind == "mfma":
                    k = {2: 0, 4: 1, 8: 2}[p.passes]
                    if ins.kind == "mfma":
                        if pw & set(ins.srcc):
                            if list(p.wr) == list(ins.srcc) and p.passes == ins.passes: req = max(req, [2, 0, 0][k])
                            else: req = max(req, [4, 6, 10][k])
                        if pw & (set(ins.srca) | set(ins.srcb)): req = max(req, [5, 8, 12][k])
                        if pw & wr and not (pw & set(ins.srcc)): req = max(req, [5, 8, 12][k])
                    else:
                        if pw & (rd | wr): req = max(req, [5, 8, 12][k])
                        if set(p.srcc) & wr: req = max(req, [1, 3, 7][k])
                elif p.kind == "salu":
                    if "m0" in pw and ins.kind == "vm" and "m0" in rd: req = max(req, 1)
                elif p.kind in ("vm", "ds"):
                    data = getattr(p, "data", None)
                    if p.kind == "ds" and not p.wr: data = p.rd[1:]
                    if data and len(data) >= 3 and set(data) & wr: req = max(req, 2)
                if req > dist: needn = max(needn, req - dist)
                dist += states(p)
        if needn:
            out.append(I("s_nop %d" % (needn - 1))); nn += needn
        out.append(ins)
    return out, nn


def emit(prog):
    lines = []
    for ins in prog:
        if ins.kind == "raw": lines += ["    " + x if not x.endswith(":") else x for x in ins.lines]
        elif ins.kind == "label": lines.append(ins.text)
        else: lines.append("    " + ins.text)
    return "\n".join(lines) + "\n"


def _flat(x):
    o = []
    for y in x: o += _flat(y) if isinstance(y, list) else [y]
    return o

def defines(ins, **roles):
    fl = [x for x in _flat(ins) if isinstance(x, I)]
    for name, regs in roles.items():
        for r in (regs if isinstance(regs, (list, tuple, range)) else [regs]):
            w = [x for x in fl if r_name(r) in x.wr]
            assert w, (name, r)
            w[-1].__dict__.setdefault("role", {})[r_name(r)] = name
    return ins

def needs(ins, **roles):
    fl = [x for x in _flat(ins if isinstance(ins, list) else [ins]) if isinstance(x, (I, Raw))]
    for name, regs in roles.items():
        for r in (regs if isinstance(regs, (list, tuple, range)) else [regs]):
            for x in fl:
                if r_name(r) in x.rd:
                    x.__dict__.setdefault("need", {})[r_name(r)] = name
                    if r_name(r) in x.wr: break
    return ins

def r_name(r): return r if isinstance(r, str) else "v%d" % r

def check_roles(prog, name):
    cur = {}
    for k, x in enumerate(prog):
        if isinstance(x, Wait): continue
        for r, n in getattr(x, "need", {}).items():
            assert cur.get(r) == n, "%s: %s needs %s=%s but holds %s" % (name, getattr(x, "text", "raw"), r, n, cur.get(r))
        for r in getattr(x, "wr", []):
            cur[r] = getattr(x, "role", {}).get(r)

def hoist_m0(prog):
    p = list(prog)
    for k in range(1, len(p) - 1):
        x, prev, nxt = p[k], p[k - 1], p[k + 1]
        if isinstance(x, I) and "m0" in x.wr and getattr(nxt, "dma", False) and isinstance(prev, I) and prev.kind in ("valu", "mfma", "ds") \
           and not set(prev.wr) & set(x.rd):
            p[k - 1], p[k] = x, prev
    return p

def finalize(prog, name=""):
    check_roles(prog, name)
    prog = hoist_m0(prog)
    p, maxvm = insert_waits(prog)
    q = []
    for x in p:
        if x.kind == "waitcnt" and q and q[-1].kind == "waitcnt":
            d = dict(re.findall(r"(\w+)\((\d+)\)", q[-1].text))
            for k, v in re.findall(r"(\w+)\((\d+)\)", x.text): d[k] = str(min(int(v), int(d.get(k, 99))))
            q[-1] = I("s_waitcnt " + " ".join("%s(%s)" % (k, d[k]) for k in ("vmcnt", "lgkmcnt") if k in d))
        else: q.append(x)
    p = q
    p, nn = pad_hazards(p)
    cnt = {}
    for x in p: cnt[x.kind] = cnt.get(x.kind, 0) + 1
    print("  %s: %d instr, max vm in flight %d, nop states %d, %s" % (name, len(p), maxvm, nn, cnt))
    return p


def sizes(prog):
    import subprocess
    lines = []; owner = []
    for k, x in enumerate(prog):
        for t in (x.lines if x.kind == "raw" else [x.text]):
            if t.endswith(":"): continue
            t = re.sub(r"L_\w+(-L_\w+)?", "4660" if "-L_" in t else "0", t)
            lines.append(t); owner.append(k)
    r = subprocess.run(["llvm-mc", "-triple=amdgcn-amd-amdhsa", "-mcpu=gfx950", "-show-encoding"], input="\n".join(lines), capture_output=True, text=True)
    enc = re.findall(r"encoding: \[([^\]]*)\]", r.stdout)
    assert len(enc) == len(lines), (len(enc), len(lines), r.stderr[:300])
    sz = [0] * len(prog)
    for k, e in zip(owner, enc): sz[k] += len(e.split(","))
    return sz

def widen(x):
    if x.kind != "valu" or x.op.startswith(("v_permlane", "v_readfirstlane", "v_writelane", "v_readlane", "v_accvgpr")): return None
    op = x.op.replace("_e32", "")
    y = I(x.text.replace(x.op, op + "_e64", 1)); y.op = x.op
    return y

def fix_parity(prog, mode):
    sz = sizes(prog)
    out = list(prog); n_w = n_bad = n_nop = 0
    pos = 0; cand = None; res = []
    for k, x in enumerate(out):
        s = sz[k]
        if x.kind != "label" and s >= 8 and x.kind != "raw" and pos % 8 == 4:
            if cand is not None:
                res[cand] = widen(res[cand]); pos += 4; n_w += 1
            elif mode == 2 and x.kind == "mfma":
                res.append(I("s_nop 0")); pos += 4; n_nop += 1
            else: n_bad += 1
        res.append(x); pos += s
        if s == 4 and widen(x) is not None: cand = len(res) - 1
        elif s >= 8: cand = None
    print("  parity: widened %d, padded %d, misaligned %d" % (n_w, n_nop, n_bad))
    return res
```

```python
import sys, re
from fw import *

KNAME = "parallel_sum__linear_kernel_hedgehog__glu_gated_bilinear__prompt_kernel"

class Cfg:
    rot = True
    stamps = False
    codepf = False
    wpf = False
    w2pf = False
    spin = 200000
    dbgout = False
    x_drop = ''
    x_nostat = False; x_notask = False; x_nodma = False; x_nobar = False
cfg = Cfg()

PITCH = 8224
NSLOT = 16
WREG = NSLOT * PITCH
WREG_SZ = 5632
VOFF = 2304
STAT = WREG + 4 * WREG_SZ
CSP = STAT + 2048
CST = CSP + 3072
LDS_BYTES = 163840
WS_H = 0
WS_KVP = 0xC00000
WS_KVF = 0xA00000
WS_FL = 0xA40000
WS_ST = 0xB00000
OOB = 0x40000000

SX, SQ, SG, SU, SD, SO, SW, SOUT, SDBG, SPHI = 4, 8, 12, 16, 20, 24, 28, 32, 36, 40
def srd(b): return "s[%d:%d]" % (b, b + 3)
sWV, sTH, sGR, sRB, sQ, sT4, sAB, sI, sTT, sCT, sIDX, sXCD = range(44, 56)
sKX, sKQ, sKG = 56, 64, 72
sLX, sL2K, sL1K, sT0, sT1, sSPIN = 80, 81, 82, 83, 84, 85
sM1, sM2, sM3, sMB = 86, 88, 90, 92
sWDB, sWOB, sC2, sH2, sS = 94, 95, 96, 97, 3
sPB = 40
sMH = 54
sST = 98
SET0, SET1, WF = 0, 64, 128
SEL01, SEL23 = 144, 148
vPW, vPR, vVW, vVR0 = 152, 153, 154, 155
vKVL, vKRL, vKRS = 152, 153, 154
CSD = 156
MB = 160
CA = 168
vSL = 172
XR, WR1, WR3, XD, WR2 = 174, 178, 178, 182, 182
W2R = 174
WQD, WGD, WHD = 186, 188, 190
vHLD, vPOL = 186, 187
vCSA, vRS, vR2, vHST, vL, W2D = 191, 192, 194, 196, 197, 198
WPHI = 200
KVD = 208
TMP = 240
vFLG, vVR1, vKVA, vSTAMP = 252, 253, 254, 255
SQD2 = 88
RSD, SQD = 64, 68

def vr(b, n=1): return "v%d" % b if n == 1 else "v[%d:%d]" % (b, b + n - 1)
def ar(b, n): return "a[%d:%d]" % (b, b + n - 1)

stamp_names = []
def stamp(name):
    if cfg.stamps != True: return []
    if name not in stamp_names: stamp_names.append(name)
    k = stamp_names.index(name)
    return [I("s_memtime s[%d:%d]" % (sST, sST + 1)), I("v_writelane_b32 v%d, s%d, %d" % (vSTAMP, sST, k + 2))]

def addr_wfull(dst, n, att, swap, t0=TMP):
    a, b = vr(t0), vr(t0 + 1)
    s = """
    v_lshrrev_b32 {a}, 5, v{L}
    v_lshlrev_b32 {a}, 10, {a}
    v_bfe_u32 {b}, v{L}, 2, 2
    v_lshl_add_u32 {a}, {b}, 7, {a}
    v_and_b32 {b}, 3, v{L}
    v_lshl_add_u32 {a}, {b}, 3, {a}
    v_bfe_u32 {b}, v{L}, 3, 1
    v_xor_b32 {b}, s{gr}, {b}
    v_lshl_add_u32 {a}, {b}, 6, {a}
    v_bfe_u32 {b}, v{L}, 4, 1
    """.format(a=a, b=b, L=vL, gr=sGR)
    if att:
        if swap: s += "v_xor_b32 %s, s%d, %s\n" % (b, sTH, b)
        s += "v_lshl_add_u32 %s, %s, 5, %s\n" % (a, b, a)
    else:
        s += "v_mul_u32_u24 %s, %d, %s\nv_add_u32 %s, %s, %s\n" % (b, PITCH, b, a, a, b)
    return L(s) + wr_variants(dst, n, a, 12, 'Watt' if att else 'Wpair')

def wr_variants(dst, n, a, sh, role):
    s = "s_lshl_b32 s%d, s%d, %d\ns_xor_b32 s%d, s%d, %d\n" % (sT0, sS, sh, sT1, sT0, 1 << sh)
    k = dst
    if n == 4:
        s += "v_add_u32 v%d, s%d, %s\nv_add_u32 v%d, s%d, %s\n" % (k, sT0, a, k + 1, sT1, a)
        s += "v_add_u32 v%d, %d, v%d\nv_add_u32 v%d, %d, v%d\n" % (k + 2, 8 * PITCH, k, k + 3, 8 * PITCH, k + 1)
    else:
        s += "v_add_u32 %s, %d, %s\n" % (a, 8 * PITCH, a)
        s += "v_add_u32 v%d, s%d, %s\nv_add_u32 v%d, s%d, %s\n" % (k, sT0, a, k + 1, sT1, a)
    ins = L(s)
    return [defines(ins, **{role: range(dst, dst + n)})]

def addr_whalf(dst, t0=TMP):
    a, b = vr(t0), vr(t0 + 1)
    s = """
    v_lshrrev_b32 {a}, 5, v{L}
    v_lshlrev_b32 {a}, 9, {a}
    v_bfe_u32 {b}, v{L}, 2, 2
    v_lshl_add_u32 {a}, {b}, 6, {a}
    v_and_b32 {b}, 3, v{L}
    v_lshl_add_u32 {a}, {b}, 3, {a}
    v_bfe_u32 {b}, v{L}, 4, 1
    v_mul_u32_u24 {b}, 4128, {b}
    v_add_u32 {a}, {a}, {b}
    v_mov_b32 {b}, s{gr}
    v_lshl_add_u32 {a}, {b}, 5, {a}
    """.format(a=a, b=b, L=vL, gr=sGR)
    return L(s) + wr_variants(dst, 4, a, 11, 'Whalf')

def addr_cs(swap, t0=TMP):
    a = vr(t0)
    s = "s_lshl_b32 s%d, s%d, 8\ns_lshl_b32 s%d, s%d, 7\ns_add_u32 s%d, s%d, s%d\ns_add_u32 s%d, s%d, %d\n" % (sT0, sGR, sT1, sTH, sT0, sT0, sT1, sT0, sT0, CSP)
    s += "v_and_b32 %s, 31, v%d\n" % (a, vL)
    if swap: s += "s_lshl_b32 s%d, s%d, 4\nv_xor_b32 %s, s%d, %s\n" % (sT1, sTH, a, sT1, a)
    s += """
    v_lshl_add_u32 v{ca}, {a}, 2, s{t}
    v_lshrrev_b32 {a}, 5, v{L}
    v_lshl_add_u32 v{ca}, {a}, 9, v{ca}
    """.format(a=a, L=vL, ca=vCSA, t=sT0)
    return [defines(L(s), **{"CSs" if swap else "CS": vCSA})]

def addr_p2(t0=TMP):
    a, b = vr(t0), vr(t0 + 1)
    s = """
    v_lshrrev_b32 {a}, 5, v{L}
    v_lshlrev_b32 {a}, 9, {a}
    v_bfe_u32 {b}, v{L}, 2, 2
    v_lshl_add_u32 {a}, {b}, 7, {a}
    v_and_b32 {b}, 3, v{L}
    v_lshl_add_u32 {a}, {b}, 3, {a}
    v_bfe_u32 {b}, v{L}, 3, 1
    v_lshl_add_u32 {a}, {b}, 6, {a}
    v_bfe_u32 {b}, v{L}, 4, 1
    v_lshl_add_u32 {a}, {b}, 5, {a}
    v_xor_b32 {b}, 64, {a}
    v_add_u32 v{w0}, s{l2k}, {a}
    v_add_u32 v{w1}, s{l2k}, {b}
    v_add_u32 v{w2}, {hi}, v{w0}
    v_add_u32 v{w3}, {hi}, v{w1}
    """.format(a=a, b=b, L=vL, w0=W2R, w1=W2R + 1, w2=W2R + 2, w3=W2R + 3, l2k=sL2K, hi=8 * PITCH)
    ins = L(s)
    ins.append(L("""
    s_mul_i32 s{t0}, s{tt}, {a}
    s_mul_i32 s{t1}, s{wv}, {b}
    s_add_u32 s{t0}, s{t0}, s{t1}
    v_lshl_add_u32 v{h}, v{L}, 4, s{t0}
    """.format(t0=sT0, t1=sT1, tt=sTT, wv=sWV, a=144 * 2048, b=36 * 2048, h=vHLD, L=vL)))
    ins.append(L("""
    s_lshl_b32 s{t0}, s{tt}, 2
    s_add_u32 s{t0}, s{t0}, s{wv}
    s_lshl_b32 s{t0}, s{t0}, 7
    s_add_u32 s{t0}, s{t0}, {fl}
    v_and_b32 {a}, 7, v{L}
    v_lshl_add_u32 v{p}, {a}, 2, s{t0}
    """.format(t0=sT0, tt=sTT, wv=sWV, fl=WS_FL, a=a, L=vL, p=vPOL)))
    return defines(ins, W2R=range(W2R, W2R + 4), HLD=vHLD, POL=vPOL)

label_n = [0]
def poll(addr, res, need, sr=SW, cmp="gt"):
    label_n[0] += 1
    k = label_n[0]
    ld = "buffer_load_dword v%d, v%d, %s, 0 offen sc1" % (res, addr, srd(sr))
    c = "v_cmp_%s_u32 vcc, %s, v%d" % (cmp, need, res)
    chk = Raw([c, "s_nop 4", "s_cbranch_vccz L_ok%d" % k,
               "s_mov_b32 s%d, %d" % (sSPIN, cfg.spin),
               "L_re%d:" % k, "s_sleep 1", ld, "s_waitcnt vmcnt(0)", c, "s_sub_u32 s%d, s%d, 1" % (sSPIN, sSPIN),
               "s_cbranch_scc1 L_ok%d" % k, "s_nop 2", "s_cbranch_vccnz L_re%d" % k,
               "L_ok%d:" % k],
              rd=["v%d" % res, "v%d" % addr] + regs_of(need), wr=["vcc", "scc", "s%d" % sSPIN])
    chk.cost = 32
    return I(ld), chk

def class_poll(c, res, needr):
    na, nb = ([(0, 1), (1, 1), (1, 2), (2, 2), (2, 3)] if cfg.o212 else [(0, 1), (0, 2), (1, 2), (2, 2), (2, 3)])[c]
    iss, chk = poll(vPOL, res, "v%d" % needr)
    chk.waits = [("A", na), ("B", nb)]
    needs([iss, chk], POL=vPOL); defines([iss], **{"cp%d" % c: res}); needs([chk], **{"cp%d" % c: res})
    return iss, [I("v_cndmask_b32 v%d, %d, %d, s[%d:%d]" % (needr, na, nb, sMB, sMB + 1)), chk]

def set_flag(level, tag, t):
    if cfg.strict: tag = "vm0"
    mv = I("v_mov_b32 v%d, %d" % (t, level)); mv.gives = level
    return stamp("f%d_0" % level) + [Wait(tag)] + stamp("f%d_1" % level) + [mv, needs(I("buffer_store_dword v%d, v%d, %s, 0 offen sc1" % (t, vFLG, srd(SW))), FLG=vFLG)]

def t_stat_add():
    a, b = TMP, TMP + 1
    s = """
    s_lshl_b32 s{t0}, s{th}, 10
    s_add_u32 s{t0}, s{t0}, {st}
    v_and_b32 v{b}, 31, v{L}
    v_lshl_add_u32 v{b}, v{b}, 4, s{t0}
    s_lshl_b32 s{t1}, s{gr}, 3
    s_add_u32 s{t0}, s{t0}, s{t1}
    v_lshl_add_u32 v{a}, v{L}, 4, s{t0}
    """.format(t0=sT0, t1=sT1, th=sTH, gr=sGR, st=STAT, a=a, b=b, L=vL)
    pre = [L(s)]
    out = []
    for j in range(8): out += L("v_add_f32 v%d, v%d, v%d" % (SQD + j, SQD + j, SQD2 + j))
    for j, m in ((1, sM1), (2, sM2), (3, sM3)):
        for blk in range(2):
            q = SQD + 4 * blk
            out += L("v_cndmask_b32 v%d, v%d, v%d, s[%d:%d]" % (q, q, q + j, m, m + 1))
    out.append(L("v_permlane32_swap_b32 v%d, v%d\nv_add_f32 v%d, v%d, v%d" % (SQD, SQD + 4, RSD + 1, SQD, SQD + 4)))
    out += L("ds_write_b64 v%d, v[%d:%d]" % (a, RSD, RSD + 1))
    return pre, out

def t_cs_add(tile0, role="CS"):
    return needs(L("ds_write_b32 v%d, v%d offset:%d" % (vCSA, CSD, 512 * tile0)), **{role: vCSA})

def t_cs_tot(tile0, t):
    out = L("v_xor_b32 v%d, 0x80, v%d\nds_read_b32 v%d, v%d offset:%d" % (t, vCSA, t, t, 512 * tile0))
    out.append(Gap(2))
    out += L("""
    v_add_f32 v{t}, v{t}, v{cs}
    v_cvt_pk_bf16_f32 v{a}, v{t}, v{t}
    v_lshlrev_b32 v{a1}, 16, v{a}
    v_sub_f32 v{t}, v{t}, v{a1}
    v_cvt_pk_bf16_f32 v{a1}, v{t}, 0
    """.format(t=t, cs=CSD, a=CA, a1=CA + 1))
    return defines(out, **{"CA%d" % tile0: (CA, CA + 1)})

def t_corr(acc, T, tile0, bs=16, regs=None):
    out = []
    for j in range(T):
        for b in range(2):
            d = vr(regs[j][b] if regs else acc + 32 * j + bs * b, 16)
            x = I("v_mfma_f32_32x32x16_bf16 %s, %s, %s, %s" % (d, vr(CA, 4), vr(MB + 4 * b + 2 * j, 4), d)); x.cost = 24
            out.append(x)
    return needs(out, MB=range(MB, MB + 8), Z=(CA + 2, CA + 3), **{"CA%d" % tile0: (CA, CA + 1)})

def t_stat_fin():
    b = TMP + 1; t = TMP + 4
    out = L("ds_read_b128 v[%d:%d], v%d\nds_read_b128 v[%d:%d], v%d offset:512" % (t, t + 3, b, t + 4, t + 7, b))
    out.append(Gap(2))
    late = []
    for blk in range(2):
        r = t + 4 * blk; m = MB + 4 * blk
        out += L("""
        v_add_f32 v{r}, v{r}, v{r2}
        v_mul_f32 v{r}, 0xbb000000, v{r}
        v_cvt_pk_bf16_f32 v{m1}, v{r}, 0
        v_lshlrev_b32 v{r2}, 16, v{m1}
        v_sub_f32 v{r2}, v{r}, v{r2}
        v_cvt_pk_bf16_f32 v{m0}, v{r}, v{r2}
        v_cndmask_b32 v{m2}, 0, v{m0}, s[{h}:{h1}]
        v_cndmask_b32 v{m3}, 0, v{m1}, s[{h}:{h1}]
        v_cndmask_b32 v{m0}, v{m0}, 0, s[{h}:{h1}]
        v_cndmask_b32 v{m1}, v{m1}, 0, s[{h}:{h1}]
        """.format(r=r, r2=r + 2, m0=m, m1=m + 1, m2=m + 2, m3=m + 3, h=sMH, h1=sMH + 1))
        late += L("""
        v_add_f32 v{r1}, v{r1}, v{r3}
        v_mul_f32 v{r2}, v{r}, v{r}
        v_fma_f32 v{r1}, v{r1}, s{c}, -v{r2}
        v_max_f32 v{r1}, 0, v{r1}
        v_add_f32 v{r1}, 0x3727c5ac, v{r1}
        v_rsq_f32 v{rs}, v{r1}
        v_rcp_f32 v{rr}, v{r1}
        v_mul_f32 v{sl}, 0x3fb8aa3b, v{rs}
        """.format(r=r, r1=r + 1, r2=r + 2, r3=r + 3, rs=vRS + blk, rr=vR2 + blk, sl=vSL + blk, c=sC2))
    defines(out, MB=range(MB, MB + 8)); defines(late, R2=(vR2, vR2 + 1), RS=(vRS, vRS + 1), SL=(vSL, vSL + 1))
    return out, late

def t_hepi(acc, soff, imm, tag, bs=16):
    out = []
    for blk in range(2):
        g = acc + bs * blk
        for r in range(0, 8 if not cfg.x_notask else 0, 2):
            out += L("v_mul_f32 v%d, v%d, v%d\nv_mul_f32 v%d, v%d, v%d" % (g + r, vR2 + blk, g + r, g + r + 1, vR2 + blk, g + r + 1))
            out += L("v_mul_f32 v%d, v%d, v%d\nv_mul_f32 v%d, v%d, v%d" % (g + r, g + r, g + 8 + r, g + r + 1, g + r + 1, g + 9 + r))
            out += L("v_cvt_pk_bf16_f32 v%d, v%d, v%d" % (g + r // 2, g + r, g + r + 1))
        st = L("buffer_store_dwordx4 v[%d:%d], v%d, %s, s%d offen offset:%d sc1" % (g, g + 3, vHST, srd(SW), sT1, imm + 1024 * blk), tag=tag if blk else None)
        out.append(L(soff) + st)
    return needs(out, HST=vHST, R2=(vR2, vR2 + 1))

def phi_mfma(acc, TMP=TMP):
    out = []
    for j in range(8): out += L("v_cvt_pk_bf16_f32 v%d, v%d, v%d" % (TMP + j, acc + 2 * j, acc + 2 * j + 1))
    out += L("v_mfma_f32_32x32x16_bf16 v[%d:%d], v[%d:%d], v[%d:%d], 0" % (acc, acc + 15, WPHI, WPHI + 3, TMP, TMP + 3))
    out += L("v_mfma_f32_32x32x16_bf16 v[%d:%d], v[%d:%d], v[%d:%d], v[%d:%d]" % (acc, acc + 15, WPHI + 4, WPHI + 7, TMP + 4, TMP + 7, acc, acc + 15))
    out[-1].cost = 24; out[-2].cost = 24
    return needs(out, WPHI=range(WPHI, WPHI + 8))

def softmax2(p, blk, scale=None):
    e = TMP; a, b, c, d = TMP + 8, TMP + 9, TMP + 10, TMP + 11; sl = vSL + blk
    s = """
    v_max3_f32 v{a}, v{p0}, v{p1}, v{p2}
    v_min3_f32 v{b}, v{p0}, v{p1}, v{p2}
    v_max3_f32 v{a}, v{a}, v{p3}, v{p4}
    v_min3_f32 v{b}, v{b}, v{p3}, v{p4}
    v_max3_f32 v{a}, v{a}, v{p5}, v{p6}
    v_min3_f32 v{b}, v{b}, v{p5}, v{p6}
    v_max_f32 v{a}, v{a}, v{p7}
    v_max_f32_e64 v{b}, -v{b}, -v{p7}
    """.format(a=a, b=b, **{"p%d" % i: p + i for i in range(8)})
    out = L(s)
    out += L("v_permlane32_swap_b32 v{a}, v{b}\nv_max_f32 v{a}, v{a}, v{b}\nv_mul_f32_e64 v{a}, -v{a}, v{sl}\nv_mov_b32 v{b}, v{a}".format(a=a, b=b, sl=sl))
    out += L("v_permlane32_swap_b32 v{a}, v{b}".format(a=a, b=b))
    for i in range(8):
        out += L("v_fma_f32 v%d, v%d, v%d, v%d" % (e + i, p + i, sl, a))
        out += L("v_fma_f32 v%d, -v%d, v%d, v%d" % (p + i, p + i, sl, b))
        if i > 1: out += L("v_add_f32 v%d, v%d, v%d" % (c, c if i > 2 else e, e + i - 1))
        out += L("v_exp_f32 v%d, v%d" % (e + i, e + i))
        if i > 1: out += L("v_add_f32 v%d, v%d, v%d" % (d, d if i > 2 else p, p + i - 1))
        out += L("v_exp_f32 v%d, v%d" % (p + i, p + i))
    out += L("v_add_f32 v%d, v%d, v%d\nv_add_f32 v%d, v%d, v%d" % (c, c, e + 7, d, d, p + 7))
    out += L("v_permlane32_swap_b32 v{c}, v{d}\nv_add_f32 v{c}, v{c}, v{d}\nv_rcp_f32 v{c}, v{c}".format(c=c, d=d))
    if scale: out += L("v_mul_f32 v%d, v%d, v%d" % (c, scale, c))
    out += L("v_mov_b32 v{d}, v{c}".format(c=c, d=d))
    out += L("v_permlane32_swap_b32 v{c}, v{d}".format(c=c, d=d))
    for i in range(8):
        out += L("v_mul_f32 v%d, v%d, v%d" % (p + i, d, p + i))
        if i & 1: out += L("v_cvt_pk_bf16_f32 v%d, v%d, v%d" % (p + i // 2, p + i - 1, p + i))
    for i in range(8):
        out += L("v_mul_f32 v%d, v%d, v%d" % (e + i, c, e + i))
        if i & 1: out += L("v_cvt_pk_bf16_f32 v%d, v%d, v%d" % (p + 4 + i // 2, e + i - 1, e + i))
    return out

def v_out(va, blk):
    out = []
    if cfg.vfold:
        t = TMP + 8
        out += L("v_rcp_f32 v{t}, v{rs}\nv_cvt_pk_bf16_f32 v{t}, v{t}, v{t}\nds_write_b32 v{a}, v{t} offset:64".format(t=t, rs=vRS + blk, a=vVW))
    for r in range(0, 16, 2):
        if not cfg.vfold: out += L("v_mul_f32 v%d, v%d, v%d\nv_mul_f32 v%d, v%d, v%d" % (va + r, vRS + blk, va + r, va + r + 1, vRS + blk, va + r + 1))
        out += L("v_cvt_pk_bf16_f32 v%d, v%d, v%d" % (va + r // 2, va + r, va + r + 1))
        if r % 4 == 2: out += L("ds_write_b64 v%d, v[%d:%d] offset:%d" % (vVW, va + r // 2 - 1, va + r // 2, 4 * (r - 2)))
    return out

def weave(main, extra, pos):
    out = []; k = 0
    for n, x in enumerate(main):
        while k < len(extra) and pos[k] <= n: out.append(extra[k]); k += 1
        out.append(x)
    return out + extra[k:]

def t_att_k():
    out = []
    if cfg.x_notask: return [I("s_nop 0")]
    FR = 32
    rds, mms = [], []
    for blk in range(2):
        va = 32 + 16 * blk; ka = 16 * blk
        pm = phi_mfma(ka)
        out += weave(pm, rds, range(0, 8)); rds = []
        vo = v_out(va, blk)
        out += weave(vo, mms, (10, 18) if not cfg.vfold else (6, 12)); mms = []
        for hh in range(2):
            p = ka + 8 * hh
            sm = softmax2(p, blk, vRS + blk if cfg.vfold else None)
            n = len(sm)
            wr = [I("ds_write_b64 v%d, v[%d:%d] offset:%d" % (vPW, p + 2 * j, p + 1 + 2 * j, 32 + 16 * j)) for j in range(2)] + \
                 [I("ds_write_b64 v%d, v[%d:%d] offset:%d" % (vPW, p + 4 + 2 * j, p + 5 + 2 * j, 16 * j)) for j in range(2)]
            sm = weave(sm, rds + mms + wr, [2, 5, 8, 8, 12, 12, 16, 20][:len(rds)] + [44, 56][:len(mms)] + [n - 17, n - 11, n - 5, n])
            out += sm
            rds, mms = [], []
            for ks in range(2):
                for j in range(2):
                    rds += L("ds_read_b64_tr_b16 v[%d:%d], v%d offset:%d" % (FR + 8 * ks + 4 + 2 * j, FR + 8 * ks + 5 + 2 * j, (vVR0, vVR1)[hh], 1664 * ks + 416 * j))
                for j in range(2):
                    rds += L("ds_read_b64_tr_b16 v[%d:%d], v%d offset:%d" % (FR + 8 * ks + 2 * j, FR + 8 * ks + 2 * j + 1, vPR, 1152 * ks + 288 * j))
            d = KVD + 16 * hh
            for ks in range(2):
                c = "0" if (blk == 0 and ks == 0) else vr(d, 16)
                x = I("v_mfma_f32_32x32x16_bf16 %s, %s, %s, %s" % (vr(d, 16), vr(FR + 8 * ks, 4), vr(FR + 8 * ks + 4, 4), c)); x.cost = 24
                mms.append(x)
    for x in rds: x.cost = 8
    out += rds
    pend = mms
    out.append(L("""
    s_mul_i32 s{t0}, s{wv}, {wsz}
    s_add_u32 s{t0}, s{t0}, {wreg}
    v_lshl_add_u32 v{a}, v{L}, 4, s{t0}
    s_xor_b32 s{t0}, s{wv}, 1
    s_mul_i32 s{t0}, s{t0}, {wsz}
    s_add_u32 s{t0}, s{t0}, {wreg}
    v_lshl_add_u32 v{b}, v{L}, 4, s{t0}
    """.format(t0=sT0, wv=sWV, wsz=WREG_SZ, wreg=WREG, a=TMP, b=TMP + 1, L=vL)))
    out += [Gap(2)] + pend + [Gap(2)]
    for r4 in range(4): out += L("ds_write_b128 v%d, %s offset:%d" % (TMP, vr(KVD + 16 + 4 * r4, 4), 1024 * r4))
    defines(out, EXR=TMP + 1)
    return needs(out, PW=vPW, PR=vPR, VW=vVW, VR0=vVR0, VR1=vVR1, RS=(vRS, vRS + 1), SL=(vSL, vSL + 1))

def t_kv_pub():
    out = []
    for r4 in range(4): out += L("ds_read_b128 %s, v%d offset:%d" % (vr(KVD + 16 + 4 * r4, 4), TMP + 1, 1024 * r4))
    out.append(Gap(2))
    for r in range(16):
        out += L("v_add_f32 v%d, v%d, v%d" % (KVD + r, KVD + r, KVD + 16 + r))
        if r % 4 == 3: out += L("buffer_store_dwordx4 %s, v%d, %s, 0 offen offset:%d sc1" % (vr(KVD + r - 3, 4), vKVA, srd(SW), 136 * (r - 3)))
    out[-1].gives = "kvp"
    return needs(out, EXR=TMP + 1, KVA=vKVA)

def data_poll(loads, regs, t):
    label_n[0] += 1
    k = label_n[0]
    chk = ["v_max3_u32 v%d, v%d, v%d, v%d" % (t, regs[0], regs[1], regs[2])]
    rest = regs[3:]
    while len(rest) > 1:
        chk.append("v_max3_u32 v%d, v%d, v%d, v%d" % (t, t, rest[0], rest[1])); rest = rest[2:]
    if rest: chk.append("v_max_u32 v%d, v%d, v%d" % (t, t, rest[0]))
    fast = L("\n".join(chk))
    c = "v_cmp_eq_u32 vcc, -1, v%d" % t
    raw = Raw([c, "s_nop 4", "s_cbranch_vccz L_ok%d" % k, "s_mov_b32 s%d, %d" % (sSPIN, cfg.spin), "L_re%d:" % k, "s_sleep 1"] + loads +
              ["s_waitcnt vmcnt(0)"] + chk + [c, "s_sub_u32 s%d, s%d, 1" % (sSPIN, sSPIN), "s_cbranch_scc1 L_ok%d" % k, "s_nop 2",
               "s_cbranch_vccnz L_re%d" % k, "L_ok%d:" % k],
              rd=["v%d" % t], wr=["vcc", "scc", "s%d" % sSPIN, "s%d" % sT1] + ["v%d" % r for r in regs])
    raw.cost = 32
    return fast + [raw]

def t_kv_red(RR=80):
    ld = []
    for k in range(4):
        ld += ["s_mov_b32 s%d, %d" % (sT1, 8704 * k), "buffer_load_dwordx4 %s, v%d, %s, s%d offen sc1" % (vr(RR + 4 * k, 4), vKRL, srd(SW), sT1)]
    iss = [L("\n".join(ld[2 * k:2 * k + 2])) for k in range(4)]
    out = data_poll(ld, list(range(RR, RR + 16)), vKVA)
    for j in range(4):
        out += L("v_add_f32 v%d, v%d, v%d\nv_add_f32 v%d, v%d, v%d" % (RR + j, RR + j, RR + 4 + j, RR + 8 + j, RR + 8 + j, RR + 12 + j))
    for j in range(4): out += L("v_add_f32 v%d, v%d, v%d" % (RR + j, RR + j, RR + 8 + j))
    out += L("""
    v_permlane16_swap_b32 v{a}, v{b}
    v_permlane16_swap_b32 v{c}, v{d}
    v_add_f32 v{a}, v{a}, v{b}
    v_add_f32 v{c}, v{c}, v{d}
    v_permlane32_swap_b32 v{a}, v{c}
    v_add_f32 v{a}, v{a}, v{c}
    buffer_store_dword v{a}, v{s}, {sr}, 0 offen sc1
    """.format(a=RR, b=RR + 1, c=RR + 2, d=RR + 3, s=vKRS, sr=srd(SW)))
    needs(iss, KRL=vKRL); needs(out, KRS=vKRS)
    out[-1].gives = "kvf"; [x for x in out if x.kind == "raw"][0].waits = [("A", "kvp")]
    return iss, out

def t_att_q(Q=SET0, T8=64):
    out = []
    if cfg.x_notask: return [I("s_nop 0")]
    out += phi_mfma(Q, T8) + phi_mfma(Q + 16, T8 + 8) + [Gap(1)] * (Q != SET0)
    out += softmax2(Q, 0) + softmax2(Q + 8, 0) + softmax2(Q + 16, 1) + softmax2(Q + 24, 1)
    return out

KR = 32
def t_kv_load():
    ld = []
    for hh in range(2):
        for r4 in range(4):
            ld += ["buffer_load_dwordx4 %s, v%d, %s, 0 offen offset:%d sc1" % (vr(KR + 16 * hh + 4 * r4, 4), vKVL, srd(SW), 2176 * hh + 544 * r4)]
    chk = data_poll(ld, list(range(KR, KR + 32)), vKVA); chk[-1].waits = [("B", "kvf")]
    return needs(L("\n".join(ld)), KVL=vKVL), chk

def t_o(Q=SET0, D=64):
    out = []
    for hh in range(2):
        for j in range(8): out += L("v_cvt_pk_bf16_f32 v%d, v%d, v%d" % (KR + 16 * hh + j, KR + 16 * hh + 2 * j, KR + 16 * hh + 2 * j + 1))
    seq = [(hh, blk) for hh in range(2) for blk in range(2)]
    def mm(k):
        hh, blk = seq[k]; d = D + 16 * (k & 1); p = Q + 16 * blk + 8 * hh
        return L("v_mfma_f32_32x32x16_bf16 %s, %s, %s, 0" % (vr(d, 16), vr(KR + 16 * hh, 4), vr(p + 4, 4))) + \
               L("v_mfma_f32_32x32x16_bf16 %s, %s, %s, %s" % (vr(d, 16), vr(KR + 16 * hh + 4, 4), vr(p, 4), vr(d, 16)))
    def fin(k):
        hh, blk = seq[k]; d = D + 16 * (k & 1)
        o = L("v_add_f32 v%d, 0x358637bd, v%d\nv_rcp_f32 v%d, v%d" % (d + 8, d + 8, d + 8, d + 8))
        for r in range(8):
            o += L("v_mul_f32 v%d, v%d, v%d" % (d + r, d + 8, d + r))
            if r & 1: o += L("v_cvt_pk_bf16_f32 v%d, v%d, v%d" % (d + r // 2, d + r - 1, d + r))
        st = L("s_mov_b32 s%d, %d" % (sT1, 28 * 2048)) + \
             L("buffer_store_dwordx4 %s, v%d, %s, s%d offen offset:%d sc1" % (vr(d, 4), vHST, srd(SW), sT1, 2048 * hh + 1024 * blk), tag="ost" if k == 3 else None)
        return o + [st]
    out += mm(0) + mm(1) + fin(0) + mm(2) + fin(1) + mm(3) + fin(2) + fin(3)
    return out

def dma(vo, sr, so, imm, tag=None):
    role = "XD" if sr == SX else "WQD" if sr == SQ else "W2D" if sr in (SD, SO) else "WHD" if vo == WHD else "WGD"
    return needs(dma_(vo, sr, so, imm, tag), **{role: vo})

def dma_(vo, sr, so, imm, tag=None):
    return L("buffer_load_dwordx4 v%d, %s, %s offen%s lds" % (vo, srd(sr), so, " offset:%d" % imm if imm else ""), tag=tag)

def m0set(base, lit): return L("s_add_u32 m0, s%d, %d" % (base, lit))

def dma_x(c, slot, tag):
    if not cfg.rot:
        g = m0set(sLX, slot * PITCH) + L("s_movk_i32 s%d, %d" % (sH2 + 0 if False else 79, 128 * c))
        return [g + dma(XD, SX, "s79", 0)] + [dma(XD + i, SX, "s79", 1024 * i, tag if i == 3 else None) for i in range(1, 4)]
    g = m0set(sLX, slot * PITCH)
    return [g + dma(XD, SX, "s%d" % (sKX + c), 0)] + [dma(XD + i, SX, "s%d" % (sKX + c), 1024 * i, tag if i == 3 else None) for i in range(1, 4)]

def dma_full(vo, sr, kreg, extra, slot, tag):
    g = m0set(sL2K, slot * PITCH)
    so = "s%d" % kreg
    if not cfg.rot:
        lit = extra + ((kreg - sKQ) * 64 * 3072 if kreg < sKG else (kreg - sKG) * 64 * 3584)
        g += L("s_mov_b32 s%d, %d" % (sT0, lit)); so = "s%d" % sT0
        return [g + dma(vo, sr, so, 0) + dma(vo + 1, sr, so, 1024, tag)]
    if extra:
        g += L("s_add_u32 s%d, s%d, %d" % (sT0, kreg, extra)); so = "s%d" % sT0
        return [g + dma(vo, sr, so, 0) + dma(vo + 1, sr, so, 1024, tag)]
    return [g + dma(vo, sr, so, 0) + dma(vo + 1, sr, so, 1024, tag)]

def dma_half(c, slot, tag):
    so = "s%d" % (sKG + c)
    if not cfg.rot:
        mv = lambda: L("s_mov_b32 s%d, %d" % (sT0, c * 64 * 3584)); so = "s%d" % sT0
        return [m0set(sL1K, slot * PITCH) + mv() + dma(WHD, SG, so, 0), m0set(sL1K, slot * PITCH + 4128) + mv() + dma(WHD, SU, so, 0, tag)]
    return [m0set(sL1K, slot * PITCH) + dma(WHD, SG, so, 0), m0set(sL1K, slot * PITCH + 4128) + dma(WHD, SU, so, 0, tag)]

def slice_src(n):
    return (SD, sWDB, 16 * n) if n < 28 else (SO, sWOB, 16 * (n - 28))

FIRST = [0, 8, 16, 24, 28, 36]
SMALL = [3]
sR2 = sKX
def cls_of(n):
    c = max(k for k in range(5) if FIRST[k] <= n)
    return c, n - FIRST[c]

def r2_table():
    out = [L("s_and_b32 s{a}, s{tt}, 3\ns_lshl_b32 s{a}, s{a}, 1\ns_add_u32 s{a}, s{a}, s{ct}\ns_and_b32 s{a}, s{a}, {m}\ns_lshl_b32 s{a}, s{a}, 11".format(a=sR2, tt=sTT, ct=sCT, m=7 if cfg.rot2 else 0))]
    for i in range(1, 8): out.append(L("s_add_u32 s{a}, s{p}, 2048\ns_and_b32 s{a}, s{a}, 0x3800".format(a=sR2 + i, p=sR2 + i - 1)))
    return defines(out, R2T=["s%d" % (sR2 + i) for i in range(8)])

def dma_w2(n, slot):
    sr, base, row = slice_src(n)
    c, i = cls_of(n)
    g = m0set(sL2K, slot * PITCH)
    if c == SMALL[0]: g += L("s_and_b32 s{t}, s{r}, 0x1800\ns_lshl3_add_u32 s{t}, s{t}, s{b}".format(t=sT0, r=sR2 + i, b=base))
    else: g += L("s_lshl3_add_u32 s{t}, s{r}, s{b}".format(t=sT0, r=sR2 + i, b=base))
    needs(g, R2T="s%d" % (sR2 + i))
    g += dma(W2D, sr, "s%d" % sT0, 0) + dma(W2D + 1, sr, "s%d" % sT0, 1024, "w2_%d" % n)
    if n + 1 in FIRST[1:4]: g += L("s_add_u32 s%d, s%d, %d" % (sWDB, sWDB, 16384 * (FIRST[c + 1] - FIRST[c])))
    return [g]

def h_load(n):
    c, i = cls_of(n)
    if c == SMALL[0]: g = L("s_and_b32 s{t}, s{r}, 0x1800\ns_add_u32 s{t}, s{t}, {l}".format(t=sT1, r=sR2 + i, l=FIRST[c] * 2048))
    else: g = L("s_add_u32 s%d, s%d, %d" % (sT1, sR2 + i, FIRST[c] * 2048))
    needs(g, R2T="s%d" % (sR2 + i))
    a = 8 * (n % 32)
    for b in range(2):
        g += L("buffer_load_dwordx4 %s, v%d, %s, s%d offen%s sc1" % (ar(a + 4 * b, 4), vHLD, srd(SW), sT1, " offset:1024" if b else ""))
    return needs(g, HLD=vHLD)

def build_type(typ):
    global vHLD, vPOL
    A = typ == "A"
    vHLD, vPOL = (186, 187) if A else (155, 253)
    passes = [("att2", 2, SET0, 0), ("pair", 2, SET1, 2), ("half", 1, SET0, 4)] if A else \
             [("pair", 2, SET0, 0), ("pair", 2, SET1, 2), ("q", 1, SET0, 4)]
    WRs = [WR1, WR2, WR3]
    ACC2 = [16, 32, 208, 224] if A else [96, 112, 208, 224]
    accr = lambda p, j, b: (0, 48)[b] if (A and p == 2) else passes[p][2] + 32 * j + 16 * b
    if cfg.o212:
        passes = [("att2", 2, SET0, 0), ("half", 1, SET1, 2), ("pair", 2, SET0, 4)] if A else \
                 [("pair", 2, SET0, 0), ("q", 1, SET1, 2), ("pair", 2, SET0, 4)]
        ACC2 = [16, 32, 64, 80] if A else [96, 112, 208, 224]
        accr = lambda p, j, b: ((96, 112), (0, 48))[j][b] if (A and p == 2) else passes[p][2] + 32 * j + 16 * b
        FIRST[:] = [0, 8, 12, 20, 28, 36]; SMALL[:] = [1]
    S = Sched()
    step_beat = {}
    nt = lambda g: passes[g // 32][1]
    wbuf = lambda g, j: WF + (8 * (g & 1) + 4 * j if nt(g) == 2 else 4 * (g & 3))

    slot_of = {}
    for c in range(8):
        slot_of[("x", c)] = 2 * (c % 4); slot_of[("w", 0, c)] = 8 + 2 * (c % 4)
    def item_dma(it):
        if it[0] == "x": return dma_x(it[1], slot_of[it], "x%d" % it[1])
        if it[0] == "s": return dma_w2(it[1], slot_of[it])
        _, p, c = it; kind = passes[p][0]; sl = slot_of[it]; tag = "w%d_%d" % (p, c)
        if kind == "att2": return dma_full(WQD, SQ, sKQ + c, 0, sl, None) + dma_full(WQD, SQ, sKQ + c, 1024, sl + 1, tag)
        if kind == "q": return dma_full(WQD, SQ, sKQ + c, 0, sl, tag)
        if kind == "half": return dma_half(c, sl, tag)
        ex = (384 if cfg.o212 else 256) if (not A and p > 0) else 0
        return dma_full(WGD, SG, sKG + c, ex, sl, None) + dma_full(WGD, SU, sKG + c, ex, sl + 1, tag)
    def item_slots(it):
        if it[0] == "x": return 2
        if it[0] == "s": return 1
        return 2 if passes[it[1]][0] in ("att2", "pair") else 1

    def m16(d, sel, src, first): S.beat(I("v_mfma_f32_16x16x32_bf16 %s, %s, %s, %s" % (vr(d, 4), vr(sel, 4), src, "0" if first else vr(d, 4))), 16)
    def row_stats(k):
        for h in range(2):
            for b in range(2):
                d = vr((SQD, SQD2)[h] + 4 * b, 4)
                S.beat(I("v_mfma_f32_4x4x4_16b_bf16 %s, %s, %s, %s" % (d, ar(8 * k + 4 * b + 2 * h, 2), ar(8 * k + 4 * b + 2 * h, 2), "0" if k == 0 else d)), 8)
        m16(RSD, SEL01, ar(8 * k, 4), k == 0); m16(RSD, SEL23, ar(8 * k + 4, 4), False)
    def col_stats(g):
        for j in range(nt(g)): m16(CSD, (SEL01, SEL23)[j], vr(wbuf(g, j), 4), g % 32 == 0 and j == 0)
    for g in range(96):
        p, c, t = g // 32, (g // 4) % 8, g % 4
        kind, T, acc, tile0 = passes[p]
        step_beat[g] = len(S.beats)
        k = g % 32
        if cfg.st_early and c == 7 and T == 2 and t == 1 and not cfg.x_nostat: col_stats(g)
        for j in range(T):
            for b in range(2):
                d = vr(accr(p, j, b), 16)
                S.beat(I("v_mfma_f32_32x32x16_bf16 %s, %s, %s, %s" % (d, vr(wbuf(g, j), 4), ar(8 * k + 4 * b, 4), "0" if k == 0 else d)))
        if t < 2 and not cfg.x_nostat:
            early = cfg.st_early and c == 7 and T == 2
            if p == 0:
                for kk in ([k] if not early else [k, k + 1] if t == 0 else []): row_stats(kk)
            if cfg.st_early and c == 7 and T == 1 and p == 1:
                if t == 0: col_stats(g); col_stats(g + 1)
            elif not (early and t == 1): col_stats(g)
    step_beat[96] = len(S.beats)
    sl_beat = {}
    for n in range(36):
        sl_beat[n] = len(S.beats)
        w = WF + 8 * (n & 1); a = 8 * (n % 32)
        for cb in range(2):
            for tb in range(2):
                d = vr(ACC2[2 * cb + tb], 16)
                S.beat(I("v_mfma_f32_32x32x16_bf16 %s, %s, %s, %s" % (d, vr(w + 4 * cb, 4), ar(a + 4 * tb, 4), "0" if n == 0 else d)), cfg.p2period)
    sl_beat[36] = len(S.beats)
    S.beat(None)

    bar_step = {}
    for cc in range(24):
        T = passes[cc // 8][1]
        bar_step[cc] = 4 * cc + (3 if (T == 2 or cc == 23) else 2)
    last_rd = {}
    def w_reads(g, j):
        p, c, t = g // 32, (g // 4) % 8, g % 4
        kind = passes[p][0]; sl = slot_of[("w", p, c)]
        if p == 0: base, off = WR1 + (t >> 1), (sl - 8) * PITCH
        else: base, off = WRs[p] + 2 * (sl >= 8) + (t >> 1), (sl % 8) * PITCH
        if kind == "att2": off += j * PITCH
        if kind == "pair": off += 32 * j
        st, js = (1024, 256) if kind == "half" else (2048, 512)
        off += (t & 1) * st
        w = wbuf(g, j)
        role = {"att2": "Watt", "q": "Watt", "pair": "Wpair", "half": "Whalf"}[kind]
        return needs([I("ds_read_b64_tr_b16 %s, v%d offset:%d" % (vr(w + 2 * e, 2), base, off + e * js)) for e in range(2)], **{role: base})
    def x_reads(g):
        c, t = g // 4, g % 4
        return needs([I("ds_read_b128 %s, v%d offset:%d" % (ar(8 * g + 4 * b, 4), XR + t, slot_of[("x", c)] * PITCH + 4096 * b)) for b in range(2)], XR=XR + t)
    def w2_reads(n):
        sl = slot_of[("s", n)]; w = WF + 8 * (n & 1)
        return needs([I("ds_read_b64_tr_b16 %s, v%d offset:%d" % (vr(w + 4 * cb + 2 * e, 2), W2R + 2 * (sl >= 8) + cb, (sl % 8) * PITCH + 1024 * e)) for cb in range(2) for e in range(2)], W2R=range(W2R, W2R + 4))

    queue = []
    for c in range(cfg.npro, 8): queue += [("x", c), ("w", 0, c)]
    queue += [("w", 1, c) for c in range(8)]
    if cfg.o212: queue += [("w", 2, c) for c in range(8)] + [("s", n) for n in range(36)]
    elif cfg.mix:
        for c in range(8): queue += [("w", 2, c), ("s", c)]
        queue += [("s", n) for n in range(8, 36)]
    else: queue += [("w", 2, c) for c in range(8)] + [("s", n) for n in range(36)]
    free = set()
    for c in range(cfg.npro, 4): free |= {2 * c, 2 * c + 1, 8 + 2 * c, 9 + 2 * c}
    issue_after = {}; held = []
    n_ins = lambda it: 4 if item_slots(it) == 2 else 2
    for cc in range(-1, 24):
        p, c = max(cc, 0) // 8, cc % 8
        T = passes[p][1] if cc >= 0 else 0
        rel = []
        budget = (cfg.pacew if A or cfg.pacewB is None else cfg.pacewB).get(cc, cfg.pace[p] if cc >= 0 else cfg.pace0)
        if T == 2 or cc == 23:
            rel.append(cc)
            if cc > 0 and passes[(cc - 1) // 8][1] == 1: rel.append(cc - 1)
        elif cc > 0 and passes[(cc - 1) // 8][1] == 1: rel.append(cc - 1)
        held += rel; rel = []
        if cc not in cfg.skipbar: rel, held = held, []
        for r in rel:
            it = ("w", r // 8, r % 8)
            free |= set(range(slot_of[it], slot_of[it] + item_slots(it)))
            if r < 8: free |= {slot_of[("x", r)], slot_of[("x", r)] + 1}
        got = []
        while queue:
            it = queue[0]; ns = item_slots(it)
            if it in slot_of: cand = [slot_of[it]] if all(slot_of[it] + i in free for i in range(ns)) else []
            elif ns == 2: cand = [s for s in sorted(free) if s % 2 == 0 and s + 1 in free]
            else: cand = sorted(free)
            if not cand or budget < n_ins(it): break
            budget -= n_ins(it)
            slot_of[it] = cand[0]
            for i in range(ns): free.discard(cand[0] + i)
            got.append(queue.pop(0))
        issue_after[cc] = (rel, got)
    p2_issue = {}
    for n in range(36):
        free.add(slot_of[("s", n)])
        for k in range(cfg.p2pace):
            if queue and free and n >= (cfg.w2at if A or not cfg.w2atB else cfg.w2atB)(queue[0][1]):
                it = queue.pop(0); slot_of[it] = min(free); free.discard(slot_of[it]); p2_issue.setdefault(n, []).append(it)
    print(typ, "prefetched slices before P2:", 36 - sum(len(x) for x in p2_issue.values()))

    where = {}
    for g in range(1, 96):
        T = nt(g); k = g % 32
        for j in range(T):
            if T == 2: at = g - 1 if not (k == 0 and nt(g - 1) == 1 and j == 0) else g - 2
            else: at = g - 2 if not (k < 2 and nt(g - k - 1) == 2) else g - k - 1
            where.setdefault(at, []).append(("w", g, j))
        if g < 32: where.setdefault(g - 1 if not cfg.x_early else g - (1, 1, 2, 2)[g % 4], []).append(("x", g))
    for at, lst in sorted(where.items()):
        ins = []
        for it in lst:
            r = w_reads(it[1], it[2]) if it[0] == "w" else x_reads(it[1])
            if it[1] % 4 == 3:
                r[-1].tag = "rd%d_%s%d" % (it[1] // 4, it[0], it[2] if it[0] == "w" else 0)
                last_rd[it[1] // 4] = r[-1].tag
            ins += r
        b0 = step_beat[at]; nb = 2 * nt(at)
        late_x = []
        if cfg.x_early and at < 32 and at % 4 < 2:
            k0 = 6 if at % 4 == 0 else 4
            ins, late_x = ins[:k0], ins[k0:]
            for x in late_x: x.tag = None
            for i, x in enumerate(late_x): S.put(b0 + 2 + i, x)
        if cfg.rd_early and len(ins) == 6: ins = [ins[0], ins[1], ins[4], ins[5], ins[2], ins[3]]
        if cfg.rd_early:
            tg = [x.tag for x in ins if x.tag]
            if tg:
                for x in ins: x.tag = None
                ins[-1].tag = last_rd[lst[0][1] // 4]
        if cfg.one_wait and nt(at) == 2 and at + 1 in step_beat and lst[0][1] == at + 1:
            if not ins[-1].tag: ins[-1].tag = "stp%d" % at
            S.put(step_beat[at + 1], Wait(ins[-1].tag), pre=True)
        nbb = 2 if cfg.rd_early else nb
        for i, x in enumerate(ins): S.put(b0 + min(nbb - 1, i * nbb // len(ins)), x)

    extra_pre = {}
    def place_barriers():
        for cc in range(24):
            b = step_beat[bar_step[cc]]
            if cc in cfg.skipbar:
                assert cc not in extra_pre and cc not in extra_wait
                continue
            pre = []
            for r in issue_after[cc][0]: pre.append(Wait(last_rd[r]))
            if cc in extra_pre: pre.append(Wait("lgkm0"))
            if cc in extra_wait: pre.append(Wait(extra_wait[cc]))
            if cc < 23:
                nx = cc + 1
                while nx in cfg.skipbar: nx += 1
                if nx < 8: pre.append(Wait("x%d" % nx))
                pre.append(Wait("w%d_%d" % (nx // 8, nx % 8)))
            pre.append(I("s_barrier"))
            S.beats[b]["pre"] = pre + S.beats[b]["pre"]
    bb = lambda cc: step_beat[bar_step[cc]]
    for cc in range(-1, 24):
        items = []
        for it in issue_after[cc][1]: items += item_dma(it)
        if items: S.spread(items, (bb(cc) + cfg.wdelay.get(cc, 0)) if cc >= 0 else cfg.w1_from, bb(cc + 1) if cc < 23 else sl_beat[0] + 2)

    r0 = w2_reads(0)
    S.put(step_beat[95], [Wait("w2_0")] );
    for i, x in enumerate(r0): S.put(step_beat[95] + min(i // 2, 2 * nt(95) - 1), x)
    for n in range(36):
        b = sl_beat[n]
        if n + 1 < 36:
            S.put(b, Wait("w2_%d" % (n + 1)))
            for i, x in enumerate(w2_reads(n + 1)): S.put(b + i, x)
        for k, it in enumerate(p2_issue.get(n, [])): S.put(b + 2 + k, dma_w2(it[1], slot_of[it])[0])

    sp = lambda g: step_beat[g]
    sl0 = sl_beat[0]
    def after(b, cyc):
        while cyc > 0: cyc -= max(S.beats[b]["period"], S.load(b)); b += 1
        return b
    def end_of(it):
        cc = [c for c in issue_after if it in issue_after[c][1]][0]
        return bb(cc + 1)
    def start_of(it):
        cc = [c for c in issue_after if it in issue_after[c][1]][0]
        return bb(cc)
    assert start_of(("w", 1, 0)) >= sp(cfg.setup_end) and end_of(("x", 7)) < sp(28)
    for cc in range(24):
        if cc not in cfg.skipbar:
            for k in range(cfg.quiet): S.beats[bb(cc) + k]["quiet"] = True
    setup = late_setup(A)
    pro_setup = []
    if cfg.pro_setup:
        setup = flat(setup)
        mem = [x for x in setup if x.kind == "vm"]
        pro_setup = [x for x in setup if x.kind != "vm"]
        S.spread(mem, sp(cfg.clr_at), sp(cfg.clr_at + 5))
    else: S.spread(setup, sp(1), sp(cfg.setup_end), "setup")
    if cfg.wpf: S.put(sp(cfg.wpf), w_touch(cfg.wpf1, 110))
    if not A and cfg.bt2: S.put(sp(cfg.bt2), b_touch2(120, 2, 4))
    if not A and cfg.bt3: S.put(sp(cfg.bt3), b_touch2(122, 6, 1) + b_touch3(124))
    if cfg.late_g: S.put(sp(cfg.late_g), w_touch([(SG, 14), (SU, 14), (SQ, 12)], 102))
    if cfg.late_d: S.put(sp(cfg.late_d), w_touch([(SD, 14), (SO, 4)], 120) + (p3_touch(124) if cfg.late_u else []))
    if cfg.p3t: S.put(sp(cfg.p3t), p3_touch(116))
    if cfg.wpfd: S.put(sp(cfg.wpfd), w_touch([(SD, 14), (SO, 4)], XR + 1))
    extra_wait = {4: "clr"}
    S.put(bb(4), needs(L("v_mov_b32 v%d, 1\nbuffer_atomic_add v%d, v%d, %s, 0 offen" % (KVD + 1, KVD + 1, KVD, srd(SDBG))), HSA=KVD))
    S.put(sp(21), wphi_finish())
    STASH = 120 - 16
    stash_pro = []
    def stash(ins, regs, at):
        ins = flat(ins); k0 = stash.n
        for k, r in enumerate(regs):
            for x in ins:
                role = getattr(x, "role", {}).get("v%d" % r)
                if "v%d" % r in x.rd + x.wr:
                    y = I(re.sub(r"\bv%d\b" % r, "v%d" % (STASH + k0 + k), x.text)); x.text, x.rd, x.wr = y.text, y.rd, y.wr
                if role:
                    del x.role["v%d" % r]
                    mv = I("v_mov_b32 v%d, v%d" % (r, STASH + k0 + k)); mv.role = {"v%d" % r: role}; S.put(at + k // 2, mv)
        stash.n += len(regs); assert stash.n <= 16
        stash_pro.extend(ins)
    stash.n = 0
    if cfg.stash:
        stash(addr_wfull(WR2, 4, False, False), range(WR2, WR2 + 4), max(end_of(("x", 7)), sp(26)))
        stash(addr_whalf(WR3) if A else addr_wfull(WR3, 4, True, False), range(WR3, WR3 + 4), sp(31))
        if A: stash(addr_cs(False), [vCSA], sp(31) + 3)
        if A: stash(addr_p2()[-2:], [vHLD, vPOL], sp(26))
        else: stash_pro.extend(flat(addr_p2()[-2:]))
    else: S.spread((addr_whalf(WR2, TMP + 8) if A else addr_wfull(WR2, 4, True, False, TMP + 8)) if cfg.o212 else addr_wfull(WR2, 4, False, False, TMP + 8), max(end_of(("x", 7)), sp(22)), sp(30))
    S.spread(r2_table(), max(end_of(("x", 7)), sp(22)), sp(30))
    pre, adds = t_stat_add()
    S.spread(pre, sp(26), sp(28))
    cs_pub = lambda tile0: [Gap(1)] + t_cs_add(tile0, 'CSs' if A and tile0 == 0 else 'CS')
    S.spread(adds + cs_pub(0)[1:], sp(29) + 2, sp(30) + 1) if cfg.st_early else S.spread(cs_pub(0) + adds, sp(30), sp(31)); extra_pre[7] = 1
    fin, late = t_stat_fin()
    S.spread(t_cs_tot(0, TMP + 2), sp(31), sp(32))
    S.spread(fin, sp(31), sp(32))
    hs_i, hs_c = poll(XR, XR + 1, "8" if cfg.dbgout else "4", SDBG, "gt")
    if cfg.dbgout: S.put(sp(36), L("v_and_b32 v%d, 31, v%d\nv_lshlrev_b32 v%d, 2, v%d\nv_add_u32 v%d, 64, v%d" % (XR, vL, XR, XR, XR, XR)) + [hs_i])
    else: S.put(sp(36), [I("v_lshlrev_b32 v%d, 2, v%d" % (XR, vL)), hs_i])
    S.put(sp(44), stamp("hs0") + [hs_c] + stamp("hs1"))
    if cfg.stash and cfg.w2pf and not cfg.w2B:
        stash_pro.extend(defines(L("""
        s_and_b32 s{t0}, s{tt}, 3
        s_lshl_b32 s{t0}, s{t0}, 14
        s_lshl_b32 s{t1}, s{ct}, 7
        s_add_u32 s{t0}, s{t0}, s{t1}
        v_and_b32 v{x}, 15, v{L}
        v_lshl_add_u32 v{x}, v{x}, 10, s{t0}
        s_mul_i32 s{b}, s{wv}, {w}
        """.format(t0=sT0, t1=sT1, tt=sTT, ct=sCT, x=180, L=vL, b=sPB, wv=sWV, w=448 * 1024)), TCH0=180))
        mv = I("v_mov_b32 v%d, v180" % (XR + 3)); mv.role = {"v%d" % (XR + 3): "TCH"}; S.put(sp(30) + 3, needs(mv, TCH0=180))
    for k, (st, n0, ns) in enumerate(cfg.w2pf):
        assert cfg.o212 or sp(st) >= end_of(("w", 1, 7))
        if cfg.o212:
            S.put(sp(st) + 1, w2_touch(XR + 2 + (k & 1), n0, ns)); continue
        if cfg.stash and not cfg.w2B:
            sr, base, row = slice_src(n0); assert ns == 4
            S.put(sp(st) + 2, needs(L("s_add_u32 s%d, s%d, %d\nbuffer_load_dword v%d, v%d, %s, s%d offen" % (sT0, sPB if sr == SD else sWOB, row * 1024, WGD + (k & 1), XR + 3, srd(sr), sT0)), TCH=XR + 3))
            continue
        if cfg.w2B and A: continue
        S.put(sp(st) + 2, w2_touch(WGD + (k & 1), n0, ns, cfg.w2B))
    if cfg.o212:
        S.spread(addr_wfull(WR3, 4, False, False, XR) + (addr_cs(False, XR) if A else []), sp(46), sp(56))
        S.spread(addr_p2(XR)[-2:], sp(56), sp(59))
        S.spread(cs_pub(2), sp(61), sp(62)); extra_pre[15] = 1
        S.spread(t_cs_tot(2, XR), sp(62), sp(64))
        S.spread(cs_pub(4), sp(94) - 3 * cfg.st_early, sp(95) - 3 * cfg.st_early); extra_pre[23] = 1
        S.spread(t_cs_tot(4, WR2 + 1), sp(95), sl0)
        S.spread(addr_p2(WR2 + 1)[:-2], sp(72), sp(88))
        so3 = "s_mov_b32 s%d, %d" % (sT1, (20 if A else 12) * 2048)
        r3 = [[accr(2, j, b) for b in range(2)] for j in range(2)]
        if A:
            att = t_corr(SET0, 2, 0) + late + t_att_k()
            busy = {"v%d" % r for r in list(range(16)) + list(range(48, 64))}
            k1 = 1 + max(k for k, it in enumerate(att) if not isinstance(it, Gap) and any(busy & set(x.rd + x.wr) for x in flat([it])))
            S.spread(att[:k1], sp(32), sp(64) + 1, "att_k 1")
            so = "s_mov_b32 s%d, s%d" % (sT1, sH2)
            eh = S.spread(t_corr(SET1, 1, 2) + [Gap(2)] + t_hepi(SET1, so, 0, "h1"), sp(64 + cfg.a_hh), sp(64 + cfg.a_hh + 4), "hepi half")
            S.put(after(eh, cfg.fd), set_flag(1, "h1", WR2 + 3))
            e = S.spread(att[k1:], sp(64) + 1, sp(64 + cfg.a_att2), "att_k 2")
            cb = min(cc for cc in range(8, 24) if bb(cc) > e and cc not in cfg.skipbar); extra_pre[cb] = 1
            print("  kv exchange barrier chunk", cb)
            e = S.spread(t_kv_pub(), bb(cb), min(bb(cb) + cfg.a_pub, sl0), "kv_pub")
            S.put(e, stamp("kvi"))
            e = S.spread(t_corr(0, 2, 4, regs=r3) + t_hepi(96, so3, 0, None) + t_hepi(0, so3, 2048, "h2", 48), sl0, sl0 + cfg.h3, "hepi pair")
            S.put(after(e, cfg.fd), set_flag(2, "h2", vPW))
            last_task = e
        else:
            so = "s_mov_b32 s%d, 0" % sT1
            e = S.spread(t_corr(SET0, 2, 0) + late + t_hepi(SET0, so, 0, None) + t_hepi(SET0 + 32, so, 2048, "h0"), sp(32), sp(32 + cfg.b_h0), "hepi0")
            assert e < sp(64)
            S.put(after(e, cfg.fd), set_flag(1, "h0", WHD))
            S.spread(t_corr(SET1, 1, 2) + [Gap(2)] + t_att_q(SET1, 96), sp(64), sp(64 + cfg.b_att), "att_q")
            e = S.spread(t_corr(SET0, 2, 4) + t_hepi(SET0, so3, 0, None) + t_hepi(SET0 + 32, so3, 2048, "h1"), sl0, sl0 + cfg.h3, "hepi pair")
            S.put(after(e, cfg.fd), set_flag(2, "h1", WHD))
            ri, rc = t_kv_red(112 if cfg.b_rc < 0 else 0)
            li, lc = t_kv_load()
            assert cfg.b_rc < 0 or sl0 + cfg.b_ri > e
            S.spread(ri, sl0 + cfg.b_ri, sl0 + cfg.b_ri + 2)
            S.put(sl0 + cfg.b_rc, stamp("kr0") + rc + stamp("kr1"))
            assert sl0 + cfg.b_li > e
            S.spread(li, sl0 + cfg.b_li, sl0 + cfg.b_li + 4)
            S.put(sl0 + cfg.b_lc, stamp("kp0") + lc + stamp("kp1"))
            e = S.spread(t_o(SET1, 0), sl0 + cfg.b_lc, sl0 + cfg.b_lc + cfg.b_o, "o")
            S.put(after(e, cfg.fd), set_flag(3, "ost", WHD))
            last_task = e
    else:
        S.spread(cs_pub(2), sp(62) - 3 * cfg.st_early, sp(63) - 3 * cfg.st_early); extra_pre[15] = 1
        S.spread(t_cs_tot(2, XR + 2), sp(63), sp(64))
        S.spread(cs_pub(4), sp(94), sp(95)); extra_pre[23] = 1
        S.spread(t_cs_tot(4, WR2 + 1), sp(95), sl0)
        x = addr_p2(WR2 + 1)
        if not cfg.stash: S.spread(addr_p2(XR + 2)[-2:], sp(60), sp(62))
        S.spread(x[:-2], sp(76), sp(90))
        so2 = "s_mov_b32 s%d, %d" % (sT1, (16 if A else 8) * 2048)
        if A:
            if not cfg.stash: S.spread(addr_whalf(WR3, XR + 2) + addr_cs(False, XR + 2), sp(52), sp(60))
            att = t_corr(SET0, 2, 0) + late + t_att_k()
            h1 = t_hepi(SET1, so2, 0, None) + t_hepi(SET1 + 32, so2, 2048, "h1")
            if cfg.h1first:
                eh = S.spread(t_corr(SET1, 2, 2) + h1, sp(64), sp(64 + cfg.h1first), "hepi1")
                S.put(after(eh, cfg.fd), set_flag(1, "h1", WR2 + 3))
            else: S.spread(t_corr(SET1, 2, 2), sp(64), sp(68))
            e = S.spread(att, sp(32), sp(32 + cfg.a_att), "att_k")
            busy = {"v%d" % r for r in list(range(16)) + list(range(48, 64))}
            later = [x for b in range(sp(64), e + 1) for x in flat(S.beats[b]["post"])]
            assert not any(x in later and busy & set(x.rd + x.wr) for x in flat(att) if isinstance(x, I)), "pass-3 accumulators still in use"
            cb = min(cc for cc in range(8, 24) if bb(cc) > e and cc not in cfg.skipbar); extra_pre[cb] = 1
            print("  kv exchange barrier chunk", cb)
            e = S.spread(t_kv_pub(), bb(cb), min(bb(cb) + cfg.a_pub, sl0), "kv_pub")
            S.put(e, stamp("kvi"))
            if not cfg.h1first:
                b0 = e + 1
                e = S.spread(h1, b0, min(b0 + cfg.a_h1, sl0 + 4), "hepi1")
                S.put(after(e, cfg.fd), set_flag(1, "h1", vPW))
            so = "s_mov_b32 s%d, s%d" % (sT1, sH2)
            S.spread(t_corr(SET0, 1, 4, 48), sl0, sl0 + 1)
            b0 = max(e, sl0 + 2)
            e = S.spread(t_hepi(SET0, so, 0, "h2", 48), b0, b0 + cfg.a_h2, "hepi2")
            S.put(after(e, cfg.fd), set_flag(2, "h2", vPW))
            last_task = e
        else:
            so = "s_mov_b32 s%d, 0" % sT1
            e = S.spread(t_corr(SET0, 2, 0) + late + t_hepi(SET0, so, 0, None) + t_hepi(SET0 + 32, so, 2048, "h0"), sp(32), sp(32 + cfg.b_h0), "hepi0")
            S.put(after(e, cfg.fd), set_flag(1, "h0", WHD))
            if not cfg.stash: S.spread(addr_wfull(WR3, 4, True, False, XR + 2), sp(52), sp(60))
            e = S.spread(t_corr(SET1, 2, 2) + t_hepi(SET1, so2, 0, None) + t_hepi(SET1 + 32, so2, 2048, "h1"), sp(64), sp(64 + cfg.h1), "hepi1")
            S.put(after(e, cfg.fd), set_flag(2, "h1", WHD))
            att = t_corr(SET0, 1, 4) + [Gap(1)] + t_att_q()
            ri, rc = t_kv_red()
            li, lc = t_kv_load()
            e = S.spread(att, sl0, sl0 + cfg.b_att, "att_q")
            S.spread(ri, sl0 + cfg.b_ri, sl0 + cfg.b_ri + 2)
            S.put(sl0 + cfg.b_rc, stamp("kr0") + rc + stamp("kr1"))
            S.spread(li, sl0 + cfg.b_li, sl0 + cfg.b_li + 4)
            assert e <= sl0 + cfg.b_lc
            S.put(sl0 + cfg.b_lc, stamp("kp0") + lc + stamp("kp1"))
            e = S.spread(t_o(), sl0 + cfg.b_lc, sl0 + cfg.b_lc + cfg.b_o, "o")
            S.put(after(e, cfg.fd), set_flag(3, "ost", WHD))
            last_task = e
    place_barriers()
    if cfg.walk and len(cfg.walk) > 1: S.beats[bb(cfg.walk_at)]["pre"].insert(0, walk_call(typ, 1))
    def padder(T):
        return Raw(["v_readlane_b32 s100, v%d, 0" % vSTAMP, "L_padx%s:" % typ, "s_memrealtime s[98:99]", "s_waitcnt lgkmcnt(0)", "s_sub_u32 s98, s98, s100",
                    "s_cmp_lt_u32 s98, %d" % T, "s_cbranch_scc1 L_padx%s" % typ], wr=["scc"])
    if cfg.pad_at and cfg.pad_at[0] >= 0: S.beats[sp(cfg.pad_at[0])]["pre"].insert(0, padder(cfg.pad_at[1]))
    first = FIRST
    hl = cfg.hlA if A else cfg.hlB
    for c in range(5):
        iss, chk = class_poll(c, WR2, WHD if A else WQD) if cfg.o212 else class_poll(c, (WGD, WR2)[c & 1], WGD + 1)
        pos = [sp(64 + cfg.p0) + i * cfg.hstep0 if c == 0 else sp(64 + cfg.p1) + i * cfg.hstep1 if (c == 1 and cfg.o212) else sl0 + hl[first[c] + i] for i in range(first[c + 1] - first[c])]
        S.put(pos[0] - cfg.poll_lead[c], iss)
        S.put(pos[0], stamp("cp%d_0" % c) + chk + stamp("cp%d_1" % c))
        for i, b in enumerate(pos):
            n = first[c] + i
            if b < sl0: assert b >= sp(64 + n + 1)
            assert b < sl_beat[n], (c, n)
            S.put(b, h_load(n))
    RES = TMP
    rb_ = max(last_task + 2, sl_beat[24])
    S.put(rb_, L("""
    s_lshl_b32 s{t0}, s{tt}, 2
    s_add_u32 s{t0}, s{t0}, s{wv}
    s_lshl_b32 s{t0}, s{t0}, 14
    s_lshl_b32 s{t1}, s{ct}, 7
    s_add_u32 s{t0}, s{t0}, s{t1}
    v_lshrrev_b32 v{a}, 3, v{L}
    v_lshlrev_b32 v{a}, 10, v{a}
    v_and_b32 v{b}, 7, v{L}
    v_lshl_add_u32 v{a}, v{b}, 4, v{a}
    v_add_u32 v{o}, s{t0}, v{a}
    """.format(t0=sT0, t1=sT1, tt=sTT, wv=sWV, ct=sCT, a=TMP + 8, b=TMP + 9, o=WQD - 1, L=vL)))
    vOUT = WQD - 1; vOUT_ = 6
    S.put(rb_ + 15, I("v_mov_b32 v6, v%d" % vOUT))
    S.put(rb_ + 1, L("s_mov_b32 s%d, 8192\nbuffer_load_dwordx4 %s, v%d, %s, 0 offen\nbuffer_load_dwordx4 %s, v%d, %s, s%d offen" % (sT1, vr(RES, 4), vOUT, srd(SX), vr(RES + 4, 4), vOUT, srd(SX), sT1)))
    S.spread(L("""
    v_bfe_u32 v8, v{L}, 3, 2
    v_mul_u32_u24 v8, {P}, v8
    v_and_b32 v9, 7, v{L}
    v_lshl_add_u32 v8, v9, 8, v8
    v_add_u32 v8, s{l2k}, v8
    v_lshrrev_b32 v10, 5, v{L}
    v_xor_b32 v10, v10, v9
    v_lshl_add_u32 v0, v10, 4, v8
    v_xor_b32 v11, 2, v10
    v_lshl_add_u32 v1, v11, 4, v8
    v_xor_b32 v11, 4, v10
    v_lshl_add_u32 v2, v11, 4, v8
    v_xor_b32 v11, 6, v10
    v_lshl_add_u32 v3, v11, 4, v8
    v_lshrrev_b32 v8, 3, v{L}
    v_and_b32 v10, 3, v{L}
    v_lshlrev_b32 v10, 1, v10
    v_xor_b32 v10, v10, v8
    v_bfe_u32 v11, v{L}, 2, 1
    v_lshlrev_b32 v11, 7, v11
    v_lshl_add_u32 v11, v8, 8, v11
    v_mov_b32 v9, s{wv}
    v_mul_u32_u24 v9, {P2}, v9
    v_add_u32 v11, v11, v9
    v_lshl_add_u32 v4, v10, 4, v11
    v_xor_b32 v10, 1, v10
    v_lshl_add_u32 v5, v10, 4, v11
    """.format(L=vL, P=PITCH, P2=2 * PITCH, l2k=sL2K, wv=sWV)), rb_ + 2, rb_ + 14)
    if cfg.stamps == 2:
        pts = [("b%d" % cc, bb(cc)) for cc in range(24)] + [("s%d" % n, sl_beat[n]) for n in range(0, 37) if n not in (34, 35)]
        prev = ("iss", 0)
        for k, (nm, b) in enumerate(pts):
            for x in (prev[0], nm):
                if x not in stamp_names: stamp_names.append(x)
            cur = sST + 2 * ((k + 1) & 1); old = sST + 2 * (k & 1)
            rd = I("v_writelane_b32 v%d, s%d, %d" % (vSTAMP, old, stamp_names.index(prev[0]) + 2))
            mt = I("s_memtime s[%d:%d]" % (cur, cur + 1))
            if nm[0] == "b" and int(nm[1:]) not in cfg.skipbar:
                pre = S.beats[b]["pre"]; pre.insert(len(pre) - 1, rd); pre.append(mt)
            else: S.beats[b]["pre"] = [rd, mt] + S.beats[b]["pre"]
            prev = (nm, b)
        last_stamp = I("v_writelane_b32 v%d, s%d, %d" % (vSTAMP, cur, stamp_names.index(prev[0]) + 2))
    if cfg.stamps == 3:
        lane = 2
        fine = []
        for cc in range(cfg.fine0, cfg.fine0 + 8):
            b0_, b1_ = bb(cc), bb(cc + 1)
            pts = [b0_ + (b1_ - b0_) * k // 7 for k in range(7)]
            rd = []
            for k, b in enumerate(pts):
                pr = ((40, 42, 86, 88, 90, 98, 100) if cfg.fine0 >= 8 else (40, 42, 32, 24, 20, 98, 100))[k]
                mt = I("s_memtime s[%d:%d]" % (pr, pr + 1))
                S.beats[b]["pre"].append(mt)
                rd.append(I("v_writelane_b32 v%d, s%d, %d" % (vSTAMP, pr, lane))); lane += 1
                fine.append(mt)
            pre = S.beats[b1_]["pre"]
            k = [i for i, x in enumerate(pre) if getattr(x, "kind", "") == "barrier"][0]
            S.beats[b1_]["pre"] = pre[:k] + rd + pre[k:]
        if "f0" not in stamp_names: stamp_names.extend("f%d" % k for k in range(56))
    if cfg.stamps == True:
        for nm, b in (("p1", sp(32)), ("p2", sp(64)), ("p3", sl_beat[0]), ("s8", sl_beat[8]), ("s16", sl_beat[16]), ("s20", sl_beat[20]), ("s28", sl_beat[28]), ("s36", sl_beat[36]),
                      ("c1", sp(4)), ("c2", sp(8)), ("c4", sp(16))):
            S.put(b, stamp(nm), pre=True)

    pro = entry_x(item_dma)
    n_common = len(pro)
    if A:
        pro += L("s_lshl_b32 s{t0}, s{i}, 7\ns_add_u32 s{t0}, s{t0}, 1024".format(t0=sT0, i=sI))
        pro += wdma_addr(WQD, 3072, sT0)
    else:
        pro += L("s_mul_i32 s{t0}, s{q}, 896\ns_lshl_b32 s{t1}, s{ab}, 7\ns_add_u32 s{t0}, s{t0}, s{t1}".format(t0=sT0, t1=sT1, q=sQ, ab=sAB))
        pro += wdma_addr(WGD, 3584, sT0)
    pro += flat(item_dma(("w", 0, 0))) + stamp("iw0")
    pro += entry_rest()
    order = cfg.order if A or not cfg.orderB else cfg.orderB
    for k, w in enumerate(order):
        if w in "123": pro += flat(item_dma(("x", int(w)))) + flat(item_dma(("w", 0, int(w))))
        elif w == "p": pro += p1_touch(112)
        elif w == "g": pro += w_touch([(SG, 14), (SU, 14), (SQ, 12)], 102)
        elif w == "d": pro += w_touch([(SD, 14), (SO, 4)], 108)
        elif w == "r": pro += L("".join(rot_regs(c) for c in range(cfg.npro, 8)))
        elif w == "W": pro += [walk_call(typ, 0)]
        elif w == "i": pro += b_index()
        elif w == "P": pro += b_touch1(104)
        elif w == "G": pro += b_touch2(120, 2, 4)
        elif w == "u": pro += p3_touch(116)
        elif w == "t": pro += tlb_touch(120)
        elif w == "f": pro += wphi_setup(A)
        elif w == "c": pro += code_touch()
        elif w == "C": pro += code_touch(typ)
        elif w == "s": pro += early_setup() + flat(addr_wfull(WR1, 2, A, A))
        elif w == "j": pro += [I("s_branch L_main%s" % typ), I("L_main%s:" % typ)]
    pro += pro_setup + stash_pro
    assert cfg.npro == 1 + sum(w in "123" for w in order)
    pro += stamp("iss")
    if cfg.stamps == 2: pro += [I("s_memtime s[%d:%d]" % (sST, sST + 1))]
    if cfg.pad_at and cfg.pad_at[0] == -1: pro += [padder(cfg.pad_at[1])]
    pro += [Wait("x0"), Wait("w0_0"), I("s_barrier")]
    pro += stamp("data")
    pro += x_reads(0) + w_reads(0, 0) + w_reads(0, 1)

    RF = (208 if cfg.o212 else 96) if A else 64
    unp = []
    for k in range(8): unp += L("v_lshlrev_b32 v%d, 16, v%d\nv_and_b32 v%d, 0xffff0000, v%d" % (RF + 2 * k, RES + k, RF + 2 * k + 1, RES + k))
    S.spread(unp, sl_beat[31], sl_beat[34])
    tail = []
    wr = lambda tb, cb: [I("ds_write_b128 v%d, %s offset:%d" % (r4, vr(ACC2[2 * cb + tb] + 4 * r4, 4), 128 * cb + 4 * PITCH * tb)) for r4 in range(4)]
    if cfg.qmajor:
        ms = [S.beats[b]["main"] for b in range(sl_beat[34], sl_beat[36])]
        for k, q in enumerate((0, 4, 2, 6, 1, 5, 3, 7)): S.beats[sl_beat[34] + k]["main"] = ms[q]
        for k in range(1, 4): S.beats[sl_beat[34]]["post"] += S.beats[sl_beat[34] + k]["post"]; S.beats[sl_beat[34] + k]["post"] = []
        S.beats[sl_beat[34]]["pre"] += S.beats[sl_beat[34]]["post"]; S.beats[sl_beat[34]]["post"] = []
        w = wr(0, 0) + wr(0, 1) + wr(1, 0)
        for k, b in enumerate((4, 4, 5, 5, 5, 6, 6, 7)): S.put(sl_beat[34] + b, w[k])
        tail += w[8:] + wr(1, 1)
    else: tail += wr(0, 0) + wr(0, 1) + wr(1, 0) + wr(1, 1)
    tail += [Wait("lgkm0"), I("s_barrier")]
    RD = 128
    for i in range(2):
        for e in range(2):
            for w in range(4):
                tail += L("ds_read_b128 %s, v%d offset:%d" % (vr(RD + 32 * i + 16 * e + 4 * w, 4), 4 + e, 2048 * w + PITCH * i))
    pk = lambda d, a, b: I("v_pk_add_f32 %s, %s, %s" % (vr(d, 2), vr(a, 2), vr(b, 2)))
    for i in range(2):
        for e in range(2):
            b = RD + 32 * i + 16 * e; r = RF + 8 * i + 4 * e
            tail += [pk(r, r, b), pk(r + 2, r + 2, b + 2), pk(b + 4, b + 4, b + 8), pk(b + 6, b + 6, b + 10), pk(r, r, b + 12), pk(r + 2, r + 2, b + 14),
                     pk(r, r, b + 4), pk(r + 2, r + 2, b + 6)]
            tail += L("v_cvt_pk_bf16_f32 v%d, v%d, v%d\nv_cvt_pk_bf16_f32 v%d, v%d, v%d" % (8 + 4 * i + 2 * e, r, r + 1, 9 + 4 * i + 2 * e, r + 2, r + 3))
        tail += L("s_mov_b32 s%d, %d\nbuffer_store_dwordx4 %s, v%d, %s, s%d offen" % (sT1, 8192 * i, vr(8 + 4 * i, 4), vOUT_, srd(SOUT), sT1) + cfg.outfl)
    if cfg.stamps:
        tail += stamp("end")
        if cfg.stamps == 4: tail += L("s_getpc_b64 s[56:57]\nv_writelane_b32 v%d, s56, 3\nv_writelane_b32 v%d, s57, 4" % (vSTAMP, vSTAMP))
        if cfg.stamps == 4: tail += [I("s_memtime s[%d:%d]" % (sST, sST + 1)), I("v_writelane_b32 v%d, s%d, 2" % (vSTAMP, sST))]
        if cfg.stamps == 2:
            if "end" not in stamp_names: stamp_names.append("end")
            tail += [last_stamp, I("s_memtime s[%d:%d]" % (sST, sST + 1)), I("v_writelane_b32 v%d, s%d, %d" % (vSTAMP, sST, stamp_names.index("end") + 2))]
        tail += L("""
        s_memrealtime s[{a}:{b}]
        v_writelane_b32 v{st}, s{a}, 1
        s_lshl_b32 s{t0}, s2, 2
        s_add_u32 s{t0}, s{t0}, s{wv}
        s_lshl_b32 s{t0}, s{t0}, 8
        s_add_u32 s{t0}, s{t0}, {o}
        v_lshl_add_u32 v0, v{L}, 2, s{t0}
        buffer_store_dword v{st}, v0, {sr}, 0 offen
        """.format(a=sST, b=sST + 1, st=vSTAMP, t0=sT0, wv=sWV, o=WS_ST, L=vL, sr=srd(SW)))
    if cfg.dbgout:
        ix = lambda n: stamp_names.index(n) + 2
        t = """
        v_readlane_b32 s56, v{st}, 0
        v_readlane_b32 s57, v{st}, 1
        v_readlane_b32 s58, v{st}, {iss}
        s_nop 4
        v_mov_b32 v2, {oob}
        v_mov_b32 v1, 0
        v_writelane_b32 v2, 32, 0
        v_writelane_b32 v2, 40, 1
        v_writelane_b32 v2, 36, 2
        v_writelane_b32 v1, s57, 0
        v_writelane_b32 v1, s56, 1
        s_not_b32 s59, s56
        v_writelane_b32 v1, s59, 2
        buffer_atomic_umax v1, v2, {sd}, 0 offen
        s_sub_u32 s57, s57, s56
        v_mov_b32 v3, 0
        v_writelane_b32 v3, s57, 0
        """.format(st=vSTAMP, iss=ix("iss"), oob=OOB, sd=srd(SDBG))
        for k, nm in enumerate(("b0", "b3", "b7", "b15", "s0", "s28", "end")):
            t += "v_readlane_b32 s59, v%d, %d\ns_nop 4\ns_sub_u32 s59, s59, s58\nv_writelane_b32 v3, s59, %d\n" % (vSTAMP, ix(nm), k + 1)
        t += """
        v_lshlrev_b32 v2, 2, v{L}
        v_mov_b32 v4, {oob}
        v_cmp_gt_u32 vcc, 8, v{L}
        v_cndmask_b32 v2, v4, v2, vcc
        s_or_b32 s59, s2, s{wv}
        s_cmp_eq_u32 s59, 0
        s_cselect_b32 s59, 0, {oob}
        buffer_store_dword v3, v2, {sd}, s59 offen
        """.format(L=vL, oob=OOB, wv=sWV, sd=srd(SDBG))
        tail += L(t)
    if cfg.padto:
        tail.append(Raw(["v_readlane_b32 s56, v%d, 0" % vSTAMP, "L_pad%s:" % typ, "s_memrealtime s[58:59]", "s_waitcnt lgkmcnt(0)", "s_sub_u32 s58, s58, s56",
                         "s_cmp_lt_u32 s58, %d" % cfg.padto, "s_cbranch_scc1 L_pad%s" % typ]))
    tail += L("s_endpgm")
    est = sum(max(bt["period"], S.load(i)) for i, bt in enumerate(S.beats[:sl_beat[0]]))
    print("  P1 issue-model cycles:", est, " P2:", sum(max(32, S.load(i)) for i in range(sl_beat[0], sl_beat[36])))
    return n_common, pro + S.flat() + tail

def code_touch(typ=None):
    ins = L("""
    s_getpc_b64 s[{a}:{b}]
    {far}
    s_bfe_u32 s{t0}, s2, 0x40003
    s_lshl_b32 s{t0}, s{t0}, 2
    s_add_u32 s{t0}, s{t0}, s{wv}
    s_lshl_b32 s{t0}, s{t0}, 9
    v_and_b32 v{x}, 3, v{L}
    v_lshl_add_u32 v{x}, v{x}, 7, s{t0}
    v_min_u32 v{x}, {lim}, v{x}
    global_load_dword v{y}, v{x}, s[{a}:{b}]
    """.format(a=sM1, b=sM1 + 1, t0=sT0, wv=sWV, x=76, y=77, L=vL, lim="L_end%s-L_main%s-4" % (typ, typ),
               far=("L_pc%s:\ns_add_u32 s%d, s%d, L_main%s-L_pc%s\ns_addc_u32 s%d, s%d, 0" % (typ, sM1, sM1, typ, typ, sM1 + 1, sM1 + 1)) if typ else ""))
    return ins

def w_touch(which, d0):
    s = "s_lshl_b32 s{t0}, s2, 2\ns_add_u32 s{t0}, s{t0}, s{wv}\n".format(t0=sT0, wv=sWV)
    last = None
    for k, (sr, n) in enumerate(which):
        if n != last:
            s += "s_mul_i32 s{t1}, s{t0}, {b}\nv_min_u32 v{a}, {m}, v{L}\nv_lshl_add_u32 v{a}, v{a}, 7, s{t1}\n".format(t0=sT0, t1=sT1, b=128 * n, a=d0, m=n - 1, L=vL)
            last = n
        s += "buffer_load_dword v%d, v%d, %s, 0 offen\n" % (d0 + 1 + k, d0, srd(sr))
    return L(s)

def tlb_touch(d0):
    s = "v_and_b32 v{a}, 15, v{L}\nv_lshlrev_b32 v{a}, 20, v{a}\nv_add_u32 v{a}, 0x7ff00, v{a}\n".format(a=d0, L=vL)
    for k, sr in enumerate((SD, SO, SW, SOUT, SG, SU, SQ)):
        s += "buffer_load_dword v%d, v%d, %s, 0 offen\n" % (d0 + 1 + k, d0, srd(sr))
    return L(s)

def p3_touch(d0):
    return L("""
    s_lshl_b32 s{t0}, s2, 2
    s_add_u32 s{t0}, s{t0}, s{wv}
    s_lshr_b32 s{t1}, s{t0}, 1
    s_and_b32 s{t0}, s{t0}, 1
    v_and_b32 v{b}, 3, v{L}
    v_lshl_add_u32 v{b}, s{t0}, 2, v{b}
    v_and_b32 v{c}, 1, v{L}
    v_lshl_add_u32 v{c}, s{t0}, 1, v{c}
    s_mul_i32 s{t0}, s{t1}, 3072
    v_lshl_add_u32 v{b}, v{b}, 7, s{t0}
    buffer_load_dword v{b}, v{b}, {q}, 0 offen
    s_mul_i32 s{t0}, s{t1}, 3584
    s_add_u32 s{t0}, s{t0}, {uo}
    v_mul_u32_u24 v{c}, 896, v{c}
    v_add_u32 v{c}, s{t0}, v{c}
    buffer_load_dword v{r2}, v{c}, {g}, 0 offen
    buffer_load_dword v{c}, v{c}, {u}, 0 offen
    """.format(t0=sT0, t1=sT1, wv=sWV, L=vL, b=d0, c=d0 + 1, r2=d0 + 2, q=srd(SQ), g=srd(SG), u=srd(SU), uo=256 if cfg.o212 else 768))

sWB = sH2
def b_index():
    return L("""
    s_and_b32 s{t0}, s2, 7
    s_lshl_b32 s{t0}, s{t0}, 4
    s_bfe_u32 s{t1}, s2, 0x40003
    s_add_u32 s{t0}, s{t0}, s{t1}
    s_lshl_b32 s{t0}, s{t0}, 2
    s_add_u32 s{w}, s{t0}, s{wv}
    """.format(t0=sT0, t1=sT1, w=sWB, wv=sWV))

def b_touch1(d0):
    a, b, c = d0, d0 + 1, d0 + 2
    ins = L("""
    v_bfe_u32 v{a}, v{L}, 1, 2
    v_lshlrev_b32 v{a}, 10, v{a}
    v_and_b32 v{c}, 1, v{L}
    v_lshl_add_u32 v{a}, v{c}, 7, v{a}
    s_lshl_b32 s{t0}, s{w}, 12
    v_add_u32 v{a}, s{t0}, v{a}
    s_lshr_b32 s{t0}, s{w}, 2
    s_and_b32 s{t1}, s{w}, 3
    v_and_b32 v{b}, 3, v{L}
    v_lshl_add_u32 v{b}, s{t1}, 2, v{b}
    s_mul_i32 s{t1}, s{t1}, 896
    v_lshl_add_u32 v{c}, v{c}, 7, s{t1}
    s_mul_i32 s{t1}, s{t0}, 3072
    s_add_u32 s{t1}, s{t1}, 1024
    v_lshl_add_u32 v{b}, v{b}, 7, s{t1}
    s_mul_i32 s{t1}, s{t0}, 3584
    v_add_u32 v{c}, s{t1}, v{c}
    """.format(a=a, b=b, c=c, L=vL, t0=sT0, t1=sT1, w=sWB))
    r = d0 + 3
    for g in range(1, 4):
        ins += L("buffer_load_dword v%d, v%d, %s, 0 offen offset:%d" % (r, a, srd(SX), 256 * g)); r += 1
        ins += L("s_mov_b32 s%d, %d\nbuffer_load_dword v%d, v%d, %s, s%d offen" % (sT0, 128 * 3072 * g, r, b, srd(SQ), sT0)); r += 1
        ins += L("s_mov_b32 s%d, %d\nbuffer_load_dword v%d, v%d, %s, s%d offen\nbuffer_load_dword v%d, v%d, %s, s%d offen" % (sT0, 128 * 3584 * g, r, c, srd(SG), sT0, r + 1, c, srd(SU), sT0)); r += 2
    return ins

def b_touch2(d0, u0, nu):
    a, b = d0, d0 + 1
    return L("""
    v_and_b32 v{a}, 3, v{L}
    v_mul_u32_u24 v{a}, 896, v{a}
    v_lshrrev_b32 v{b}, 2, v{L}
    v_min_u32 v{b}, {m}, v{b}
    v_lshl_add_u32 v{a}, v{b}, 7, v{a}
    s_mul_i32 s{t0}, s{w}, 3584
    s_add_u32 s{t0}, s{t0}, {o}
    buffer_load_dword v{b}, v{a}, {g}, s{t0} offen
    buffer_load_dword v{a}, v{a}, {u}, s{t0} offen
    """.format(a=a, b=b, L=vL, m=nu - 1, t0=sT0, w=sWB, o=128 * u0, g=srd(SG), u=srd(SU)))

def b_touch3(d0):
    a = d0
    return L("""
    v_min_u32 v{a}, 7, v{L}
    v_lshlrev_b32 v{a}, 7, v{a}
    s_mul_i32 s{t0}, s{w}, 3072
    s_lshl_b32 s{t1}, s{w}, 10
    buffer_load_dword v{r0}, v{a}, {q}, s{t0} offen
    buffer_load_dword v{r1}, v{a}, {o}, s{t1} offen
    v_min_u32 v{a}, 27, v{L}
    v_lshlrev_b32 v{a}, 7, v{a}
    s_mul_i32 s{t0}, s{w}, 3584
    buffer_load_dword v{a}, v{a}, {d}, s{t0} offen
    """.format(a=a, r0=a + 1, r1=a + 2, L=vL, t0=sT0, t1=sT1, w=sWB, q=srd(SQ), o=srd(SO), d=srd(SD)))

def p1_touch(d0):
    return L("""
    s_lshl_b32 s{t0}, s2, 2
    s_add_u32 s{t0}, s{t0}, s{wv}
    s_lshl_b32 s{t1}, s{t0}, 11
    v_and_b32 v{a}, 15, v{L}
    v_lshl_add_u32 v{a}, v{a}, 7, s{t1}
    buffer_load_dword v{r0}, v{a}, {x}, 0 offen
    s_lshr_b32 s{t1}, s{t0}, 1
    s_and_b32 s{t0}, s{t0}, 1
    s_mul_i32 s{sp}, s{t1}, 3072
    s_lshl_b32 s{m}, s{t0}, 10
    s_add_u32 s{sp}, s{sp}, s{m}
    s_add_u32 s{sp}, s{sp}, 1024
    v_and_b32 v{b}, 7, v{L}
    v_lshl_add_u32 v{b}, v{b}, 7, s{sp}
    buffer_load_dword v{r1}, v{b}, {q}, 0 offen
    s_mul_i32 s{sp}, s{t1}, 3584
    s_mul_i32 s{m}, s{t0}, 1792
    s_add_u32 s{sp}, s{sp}, s{m}
    v_bfe_u32 v{c}, v{L}, 1, 1
    v_mul_u32_u24 v{c}, 896, v{c}
    v_and_b32 v{d}, 1, v{L}
    v_lshl_add_u32 v{c}, v{d}, 8, v{c}
    v_add_u32 v{c}, s{sp}, v{c}
    buffer_load_dword v{r2}, v{c}, {g}, 0 offen
    buffer_load_dword v{r3}, v{c}, {u}, 0 offen
    """.format(t0=sT0, t1=sT1, sp=sH2, m=sM2, wv=sWV, L=vL, a=d0, b=d0 + 1, c=d0 + 2, d=d0 + 3, r0=d0 + 4, r1=d0 + 5, r2=d0 + 6, r3=d0 + 7,
               x=srd(SX), q=srd(SQ), g=srd(SG), u=srd(SU)))

def w2_touch(t, n0, ns, both=False):
    sr, base, row = slice_src(n0)
    nr = 4 * ns
    return L("""
    s_and_b32 s{t0}, s{tt}, 3
    s_mul_i32 s{t1}, s{t0}, {a}
    s_mul_i32 s{t0}, s{wv}, {wb}
    s_add_u32 s{t1}, s{t1}, s{t0}
    s_lshl_b32 s{t0}, s{ct}, 7
    s_add_u32 s{t1}, s{t1}, s{t0}
    s_add_u32 s{t1}, s{t1}, {b}
    {lane}
    buffer_load_dword v{x}, v{x}, {d}, 0 offen
    """.format(lane=("v_min_u32 v{x}, {m}, v{L}\nv_lshl_add_u32 v{x}, v{x}, 10, s{t1}" if not both else
                     "v_lshrrev_b32 v{x}, 1, v{L}\nv_min_u32 v{x}, {m}, v{x}\nv_lshl_add_u32 v{x}, v{x}, 10, s{t1}\nv_and_b32 v{y}, 1, v{L}\nv_lshlrev_b32 v{y}, 9, v{y}\nv_sub_u32 v{x}, v{x}, v{y}"
                     ).format(x=t, y=WHD, m=nr - 1, L=vL, t1=sT1), t0=sT0, t1=sT1, tt=sTT, ct=sCT, wv=sWV, wb=(448 if sr == SD else 128) * 1024, a=nr * 1024, b=row * 1024, x=t, m=nr - 1, L=vL, d=srd(sr)))

def flat(x):
    o = []
    for y in x: o += y if isinstance(y, list) else [y]
    return o

def groups(ins):
    out = []; cur = []
    tmp = {"s%d" % sT0, "s%d" % sT1, "vcc", "scc"}
    for k, x in enumerate(ins):
        cur.append(x)
        live = set()
        written = {r for y in ins[:k + 1] for r in y.wr} & tmp
        seen = set()
        for y in ins[k + 1:]:
            live |= (set(y.rd) & written) - seen
            seen |= set(y.wr)
        if not live: out.append(cur); cur = []
    if cur: out.append(cur)
    return out

def late_setup(A):
    ins = []
    if A:
        ins += L("s_mul_i32 s{t0}, s{q}, 896\ns_lshl_b32 s{t1}, s{ab}, 7\ns_add_u32 s{t0}, s{t0}, s{t1}\ns_add_u32 s{t0}, s{t0}, {o}".format(t0=sT0, t1=sT1, q=sQ, ab=sAB, o=640 if cfg.o212 else 512))
        ins += wdma_addr(WGD, 3584, sT0)
    ins += clear_store(A) + common_setup() + flat(addr_cs(A))
    if A:
        ins += L("""
        v_lshrrev_b32 v{a}, 2, v{L}
        v_mul_u32_u24 v{a}, 3584, v{a}
        v_and_b32 v{b}, 3, v{L}
        v_lshl_add_u32 v{a}, v{b}, 4, v{a}
        s_mul_i32 s{t0}, s{q}, 896
        s_lshl_b32 s{t1}, s{ab}, 6
        s_add_u32 s{t0}, s{t0}, s{t1}
        s_add_u32 s{t0}, s{t0}, {ho}
        s_mul_i32 s{t1}, s{wv}, {w}
        s_add_u32 s{t0}, s{t0}, s{t1}
        v_add_u32 v{d}, s{t0}, v{a}
        s_lshl_b32 s{t0}, s{ab}, 1
        s_add_u32 s{t0}, s{t0}, s{gr}
        s_sub_u32 s{h2}, {hn}, s{t0}
        s_lshl_b32 s{h2}, s{h2}, 11
        """.format(t0=sT0, t1=sT1, q=sQ, ab=sAB, wv=sWV, gr=sGR, w=16 * 3584, a=TMP, b=TMP + 1, d=WHD, L=vL, h2=sH2, ho=256 if cfg.o212 else 768, hn=8 if cfg.o212 else 24))
        ins += att_setup()
    else:
        ins += L("s_lshl_b32 s{t0}, s{i}, 7".format(t0=sT0, i=sI))
        ins += wdma_addr(WQD, 3072, sT0)
        ins += o_setup()
    defines(ins, FLG=vFLG, HST=vHST, W2D=(W2D, W2D + 1), Z=(CA + 2, CA + 3), HSA=KVD)
    if A: defines(ins, WHD=WHD, KVA=vKVA, PW=vPW, PR=vPR, VW=vVW, VR0=vVR0, VR1=vVR1)
    else: defines(ins, KRL=vKRL, KRS=vKRS, KVL=vKVL)
    return groups(ins)

def wdma_addr(dst, stride, scol):
    return defines(L("""
    s_mul_i32 s{t1}, s{wv}, {w}
    s_add_u32 s{t1}, s{t1}, s{c}
    v_lshrrev_b32 v{a}, 3, v{L}
    v_mul_u32_u24 v{a}, {st}, v{a}
    v_bfe_u32 v{b}, v{L}, 4, 1
    v_lshlrev_b32 v{b}, 2, v{b}
    v_xor_b32 v{b}, v{b}, v{L}
    v_and_b32 v{b}, 7, v{b}
    v_lshl_add_u32 v{a}, v{b}, 4, v{a}
    v_add_u32 v{d}, s{t1}, v{a}
    v_add_u32 v{d1}, {nx}, v{d}
    """.format(t1=sT1, wv=sWV, w=16 * stride, c=scol, a=TMP, b=TMP + 1, L=vL, st=stride, d=dst, d1=dst + 1, nx=8 * stride - 1024)), **{'WQD' if dst == WQD else 'WGD': (dst, dst + 1)})

def clear_store(A):
    z = 96
    s = """
    s_lshl_b32 s{t0}, s{rb}, 1
    s_add_u32 s{t0}, s{t0}, s{th}
    s_lshl_b32 s{t1}, s{t0}, 2
    s_add_u32 s{t1}, s{t1}, s{q}
    s_lshl_b32 s{t1}, s{t1}, 4
    s_add_u32 s{t1}, s{t1}, s{t4}
    s_lshl_b32 s{t1}, s{t1}, 1
    s_add_u32 s{t1}, s{t1}, s{gr}
    s_lshl_b32 s{t1}, s{t1}, 2
    s_add_u32 s{t1}, s{t1}, {fl}
    v_mov_b32 v{f}, {oob}
    v_writelane_b32 v{f}, s{t1}, 0
    v_mov_b32 v{z}, 0
    buffer_store_dword v{z}, v{f}, {sr}, 0 offen sc1
    s_lshl_b32 s{t0}, s{i}, 2
    s_lshl_b32 s{t1}, s{gr}, 1
    s_add_u32 s{t0}, s{t0}, s{t1}
    s_add_u32 s{t0}, s{t0}, s{th}
    """.format(t0=sT0, t1=sT1, rb=sRB, th=sTH, q=sQ, t4=sT4, gr=sGR, fl=WS_FL, f=vFLG, oob=OOB, z=z, sr=srd(SW), i=sI)
    if A:
        s += """
        s_lshl_b32 s{t0}, s{t0}, 4
        s_add_u32 s{t0}, s{t0}, s{rb}
        s_mul_i32 s{t0}, s{t0}, 2176
        s_add_u32 s{t0}, s{t0}, {kvp}
        """.format(t0=sT0, rb=sRB, kvp=WS_KVP) + kv_lane(vKVA, True)
        z += 2
        for j in range(4): s += "v_mov_b32 v%d, -1\n" % (z + j)
        ins = L(s)
        for j in range(4): ins += L("buffer_store_dwordx4 %s, v%d, %s, 0 offen offset:%d sc1" % (vr(z, 4), vKVA, srd(SW), 544 * j), tag="clr" if j == 3 else None)
        return ins
    s += """
    s_mul_i32 s{t1}, s{t0}, 34816
    s_mul_i32 s{t0}, s{t0}, 2176
    s_add_u32 s{t0}, s{t0}, {kvf}
    s_add_u32 s{t1}, s{t1}, {kvp}
    v_and_b32 v{a}, 15, v{L}
    v_lshl_add_u32 v{a}, s{rb}, 4, v{a}
    v_cmp_gt_u32 vcc, 0x88, v{a}
    v_lshlrev_b32 v{a}, 4, v{a}
    v_mov_b32 v{b}, {oob}
    v_cndmask_b32 v{a}, v{b}, v{a}, vcc
    v_lshrrev_b32 v{b}, 4, v{L}
    v_lshl_add_u32 v{rs}, v{b}, 2, v{a}
    v_add_u32 v{rs}, s{t0}, v{rs}
    v_mul_u32_u24 v{b}, 2176, v{b}
    v_add3_u32 v{rl}, v{b}, v{a}, s{t1}
    v_mov_b32 v{z}, -1
    """.format(t0=sT0, t1=sT1, rb=sRB, kvf=WS_KVF, kvp=WS_KVP, a=TMP, b=TMP + 1, L=vL, rs=vKRS, rl=vKRL, z=z + 1, oob=OOB)
    return L(s) + L("buffer_store_dword v%d, v%d, %s, 0 offen sc1" % (z + 1, vKRS, srd(SW)), tag="clr")

def kv_lane(dst, mask):
    a, b, c = TMP, TMP + 1, TMP + 2
    s = """
    v_and_b32 v{a}, 31, v{L}
    v_lshrrev_b32 v{b}, 5, v{L}
    v_lshl_add_u32 v{c}, v{b}, 4, v{a}
    v_add_u32 v{b}, 32, v{b}
    v_cmp_gt_u32 vcc, 16, v{a}
    v_cndmask_b32 v{c}, v{b}, v{c}, vcc
    v_lshl_add_u32 v{d}, v{c}, 4, s{t0}
    """.format(a=a, b=b, c=c, L=vL, d=dst, t0=sT0)
    if mask: s += "v_mov_b32 v{b}, {oob}\nv_cmp_gt_u32 vcc, 17, v{a}\nv_cndmask_b32 v{d}, v{b}, v{d}, vcc\n".format(a=a, b=b, d=dst, oob=OOB)
    return s

def early_setup():
    a, b, c = TMP, TMP + 1, TMP + 2
    s = """
    v_lshrrev_b32 v{a}, 5, v{L}
    v_bfe_u32 v{b}, v{L}, 1, 3
    v_xor_b32 v{a}, v{a}, v{b}
    v_lshlrev_b32 v{a}, 4, v{a}
    v_and_b32 v{b}, 31, v{L}
    v_lshl_add_u32 v{a}, v{b}, 7, v{a}
    s_lshl_b32 s{t0}, s{s}, 6
    v_xor_b32 v{a}, s{t0}, v{a}
    s_mul_i32 s{t1}, s{th}, {P}
    v_add_u32 v{x0}, s{t1}, v{a}
    v_xor_b32 v{b}, 32, v{a}
    v_add_u32 v{x1}, s{t1}, v{b}
    v_xor_b32 v{b}, 64, v{a}
    v_add_u32 v{x2}, s{t1}, v{b}
    v_xor_b32 v{b}, 0x60, v{a}
    v_add_u32 v{x3}, s{t1}, v{b}
    v_and_b32 v{a}, 31, v{L}
    v_mov_b32 v{b}, 0x3f803f80
    v_cmp_eq_u32 vcc, 0, v{a}
    v_cndmask_b32 v{s0}, 0, v{b}, vcc
    v_cmp_eq_u32 vcc, 20, v{a}
    v_cndmask_b32 v{s0}, v{s0}, v{b}, vcc
    v_cmp_eq_u32 vcc, 8, v{a}
    v_cndmask_b32 v{s2}, 0, v{b}, vcc
    v_cmp_eq_u32 vcc, 28, v{a}
    v_cndmask_b32 v{s2}, v{s2}, v{b}, vcc
    """.format(a=a, b=b, L=vL, t0=sT0, t1=sT1, s=sS, th=sTH, P=PITCH, x0=XR, x1=XR + 1, x2=XR + 2, x3=XR + 3, s0=SEL01, s2=SEL23)
    for j in range(1, 4): s += "v_mov_b32 v%d, v%d\nv_mov_b32 v%d, v%d\n" % (SEL01 + j, SEL01, SEL23 + j, SEL23)
    return defines(L(s), XR=range(XR, XR + 4))

def common_setup():
    a, b, c = TMP, TMP + 1, TMP + 2
    s = "s_mov_b32 s%d, 0\ns_mov_b32 s%d, -1\nv_mov_b32 v%d, 0\nv_mov_b32 v%d, 0\n" % (sMH, sMH + 1, CA + 2, CA + 3)
    s += """
    v_and_b32 v{a}, 3, v{L}
    v_cmp_eq_u32 s[{m1}:{m1b}], 1, v{a}
    v_cmp_eq_u32 s[{m2}:{m2b}], 2, v{a}
    v_cmp_eq_u32 s[{m3}:{m3b}], 3, v{a}
    v_and_b32 v{a}, 4, v{L}
    v_cmp_eq_u32 s[{mb}:{mbb}], 4, v{a}
    s_mul_i32 s{wd}, s{wv}, {wdv}
    s_lshl_b32 s{wo}, s{wv}, 17
    s_mov_b32 s{c2}, 0x3b000000
    """.format(a=a, L=vL, m1=sM1, m1b=sM1 + 1, m2=sM2, m2b=sM2 + 1, m3=sM3, m3b=sM3 + 1, mb=sMB, mbb=sMB + 1,
               wd=sWDB, wo=sWOB, wv=sWV, wdv=448 * 1024, c2=sC2)
    s += """
    s_lshl_b32 s{t0}, s{rb}, 1
    s_add_u32 s{t0}, s{t0}, s{th}
    s_mul_i32 s{t0}, s{t0}, 144
    s_mul_i32 s{t1}, s{q}, 36
    s_add_u32 s{t0}, s{t0}, s{t1}
    s_lshl_b32 s{t1}, s{ab}, 2
    s_add_u32 s{t0}, s{t0}, s{t1}
    s_lshl_b32 s{t1}, s{gr}, 1
    s_add_u32 s{t0}, s{t0}, s{t1}
    s_lshl_b32 s{t0}, s{t0}, 11
    v_lshl_add_u32 v{h}, v{L}, 4, s{t0}
    v_lshrrev_b32 v{a}, 3, v{L}
    v_lshlrev_b32 v{a}, 10, v{a}
    v_bfe_u32 v{b}, v{L}, 4, 1
    v_lshlrev_b32 v{b}, 2, v{b}
    v_xor_b32 v{b}, v{b}, v{L}
    v_and_b32 v{b}, 7, v{b}
    v_lshl_add_u32 v{a}, v{b}, 4, v{a}
    s_lshl_b32 s{t0}, s{ct}, 7
    v_add_u32 v{w}, s{t0}, v{a}
    v_add_u32 v{w1}, 7168, v{w}
    s_and_b32 s{t0}, s2, {hm}
    s_lshl_b32 s{t0}, s{t0}, 2
    s_add_u32 s{t0}, s{t0}, {ho}
    s_cmp_eq_u32 s{wv}, 0
    s_cselect_b32 s{t0}, s{t0}, {oob}
    v_mov_b32 v{hs}, {oob}
    v_writelane_b32 v{hs}, s{t0}, 0
    """.format(t0=sT0, t1=sT1, rb=sRB, th=sTH, q=sQ, ab=sAB, gr=sGR, h=vHST, L=vL, a=a, b=b, ct=sCT, w=W2D, w1=W2D + 1, wv=sWV, oob=OOB, hs=KVD, hm=31 if cfg.dbgout else 63, ho=64 if cfg.dbgout else 0)
    return L(s)

def att_setup():
    a, b, c = TMP, TMP + 1, TMP + 2
    s = """
    s_mul_i32 s{t0}, s{wv}, {wsz}
    s_add_u32 s{t0}, s{t0}, {wreg}
    v_and_b32 v{a}, 31, v{L}
    v_lshrrev_b32 v{b}, 5, v{L}
    v_mul_u32_u24 v{c}, 72, v{a}
    v_lshl_add_u32 v{c}, v{b}, 3, v{c}
    v_add_u32 v{pw}, s{t0}, v{c}
    v_mul_u32_u24 v{c}, 104, v{a}
    v_lshl_add_u32 v{c}, v{b}, 3, v{c}
    s_add_u32 s{t1}, s{t0}, {voff}
    v_add_u32 v{vw}, s{t1}, v{c}
    v_lshl_add_u32 v{c}, v{b}, 3, v{vw}
    v_mov_b32 v{o0}, 0x3f803f80
    v_mov_b32 v{o1}, 0x3f803f80
    ds_write_b64 v{c}, v[{o0}:{o1}] offset:64
    ds_write_b64 v{c}, v[{o0}:{o1}] offset:72
    v_bfe_u32 v{a}, v{L}, 2, 2
    v_lshl_add_u32 v{a}, v{b}, 3, v{a}
    v_and_b32 v{b}, 3, v{L}
    v_mul_u32_u24 v{c}, 72, v{a}
    v_lshl_add_u32 v{c}, v{b}, 3, v{c}
    v_bfe_u32 v{o0}, v{L}, 4, 1
    v_lshl_add_u32 v{c}, v{o0}, 5, v{c}
    v_add_u32 v{pr}, s{t0}, v{c}
    v_mul_u32_u24 v{c}, 104, v{a}
    v_lshl_add_u32 v{c}, v{b}, 3, v{c}
    v_add_u32 v{c}, s{t1}, v{c}
    v_lshl_add_u32 v{v0}, v{o0}, 6, v{c}
    v_add_u32 v{o0}, 1, v{o0}
    v_lshl_add_u32 v{v1}, v{o0}, 5, v{c}
    """.format(t0=sT0, t1=sT1, wv=sWV, wsz=WREG_SZ, wreg=WREG, a=a, b=b, c=c, L=vL, pw=vPW, vw=vVW, voff=VOFF, o0=TMP + 8, o1=TMP + 9,
               pr=vPR, v0=vVR0, v1=vVR1, i=sI, gr=sGR, th=sTH)
    if cfg.vfold: s = "\n".join(x for x in s.split("\n") if "0x3f803f80" not in x and "ds_write" not in x)
    return L(s)

def o_setup():
    return L("""
    s_lshl_b32 s{t0}, s{i}, 1
    s_add_u32 s{t0}, s{t0}, s{gr}
    s_mul_i32 s{t0}, s{t0}, 4352
    s_add_u32 s{t0}, s{t0}, {kvf}
    """.format(t0=sT0, i=sI, gr=sGR, kvf=WS_KVF) + kv_lane(vKVL, False))

def wphi_setup(A):
    a, b = TMP, TMP + 1; t = 64 + 16
    s = """
    s_lshl_b32 s{t0}, s{i}, 2
    s_lshl_b32 s{t1}, s{gr}, 1
    s_add_u32 s{t0}, s{t0}, s{t1}
    s_lshl_b32 s{t0}, s{t0}, 9
    v_bfe_u32 v{a}, v{L}, 4, 1
    """.format(t0=sT0, t1=sT1, i=sI, gr=sGR, a=a, L=vL)
    if A: s += "v_xor_b32 v%d, s%d, v%d\n" % (a, sTH, a)
    s += """
    v_lshlrev_b32 v{a}, 9, v{a}
    v_lshrrev_b32 v{b}, 5, v{L}
    v_lshl_add_u32 v{a}, v{b}, 7, v{a}
    v_and_b32 v{b}, 15, v{L}
    v_lshl_add_u32 v{a}, v{b}, 1, v{a}
    v_add_u32 v{a}, s{t0}, v{a}
    """.format(a=a, b=b, L=vL, t0=sT0)
    for j in range(8):
        s += "buffer_load_ushort v%d, v%d, %s, 0 offen offset:%d\n" % (t + j, a, srd(SPHI), 32 * ((j & 3) + 8 * (j >> 2)))
    return L(s)

def wphi_finish():
    t = 64 + 16
    out = L("v_and_b32 v%d, 16, v%d\nv_cmp_eq_u32 vcc, 0, v%d" % (TMP + 8, vL, TMP + 8))
    g = []
    for j in range(4):
        g += L("v_lshl_or_b32 v{x}, v{y}, 16, v{x}\nv_cndmask_b32 v{a0}, 0, v{x}, vcc\nv_cndmask_b32 v{a1}, v{x}, 0, vcc".format(x=t + 2 * j, y=t + 2 * j + 1, a0=WPHI + j, a1=WPHI + 4 + j))
    return defines(out + g, WPHI=range(WPHI, WPHI + 8))

def rot_regs(c):
    if cfg.rot == "z":
        if c < cfg.nfix: return "s_mov_b32 s%d, %d\ns_mov_b32 s%d, %d\ns_mov_b32 s%d, %d\n" % (sKX + c, 128 * c, sKQ + c, 64 * 3072 * c, sKG + c, 64 * 3584 * c)
        return "s_add_u32 s{t1}, s{r}, {c}\ns_sub_u32 s{t0}, s{t1}, {m}\ns_cmp_gt_u32 s{t1}, 7\ns_cselect_b32 s{t1}, s{t0}, s{t1}\ns_lshl_b32 s{kx}, s{t1}, 7\ns_mul_i32 s{kq}, s{t1}, {a}\ns_mul_i32 s{kg}, s{t1}, {b}\n".format(
            m=8 - cfg.nfix, r=sSPIN, t0=sT0, t1=sT1, c=c, kx=sKX + c, kq=sKQ + c, kg=sKG + c, a=64 * 3072, b=64 * 3584)
    return "s_add_u32 s{t1}, s{r}, {c}\ns_and_b32 s{t1}, s{t1}, 7\ns_lshl_b32 s{kx}, s{t1}, 7\ns_mul_i32 s{kq}, s{t1}, {a}\ns_mul_i32 s{kg}, s{t1}, {b}\n".format(
        r=sSPIN, t1=sT1, c=c, kx=sKX + c, kq=sKQ + c, kg=sKG + c, a=64 * 3072, b=64 * 3584)

def srd_consts(lst):
    return "".join("s_mov_b32 s%d, 0x%x\ns_mov_b32 s%d, 0x20000\n" % (reg + 2, sz, reg + 3) for reg, sz in lst)

def entry_x(item_dma):
    s = """
    s_cmp_ge_u32 s2, 256
    s_cbranch_scc1 L_exit
    """
    for reg, off in ((SX, 0), (SQ, 8), (SG, 40), (SU, 48), (SW, 80), (SPHI, 16), (SO, 24), (SD, 56), (SOUT, 64), (SDBG, 72)):
        s += "s_load_dwordx2 s[%d:%d], s[0:1], %d\n" % (reg, reg + 1, off)
    if cfg.stamps:
        s += "s_memrealtime s[%d:%d]\ns_memtime s[%d:%d]\nv_mov_b32 v%d, 0\n" % (sST, sST + 1, sST + 2, sST + 3, vSTAMP)
    s += """
    v_lshrrev_b32 v1, 6, v0
    v_and_b32 v{L}, 63, v0
    v_readfirstlane_b32 s{wv}, v1
    s_and_b32 s{xcd}, s2, 7
    s_lshr_b32 s{idx}, s2, 3
    s_and_b32 s{rb}, s{xcd}, 1
    s_lshl_b32 s{rb}, s{rb}, 3
    s_and_b32 s{t0}, s{idx}, 7
    s_add_u32 s{rb}, s{rb}, s{t0}
    s_lshr_b32 s{q}, s{xcd}, 1
    s_lshr_b32 s{t4}, s{idx}, 3
    s_and_b32 s{ab}, s{t4}, 1
    s_lshl_b32 s{i}, s{q}, 1
    s_add_u32 s{i}, s{i}, s{ab}
    {rotc}    s_and_b32 s{th}, s{wv}, 1
    s_lshr_b32 s{gr}, s{wv}, 1
    s_xor_b32 s{s}, s{th}, s{gr}
    s_lshl_b32 s{l2k}, s{wv}, 11
    s_mul_i32 s{lx}, s{gr}, {P}
    s_lshl_b32 s{t1}, s{th}, 12
    s_add_u32 s{lx}, s{lx}, s{t1}
    """.format(L=vL, wv=sWV, xcd=sXCD, idx=sIDX, rb=sRB, t0=sT0, t1=sT1, q=sQ, t4=sT4, ab=sAB, i=sI, th=sTH, gr=sGR, s=sS, l2k=sL2K, lx=sLX, P=PITCH,
               rotc=("s_lshl_b32 s%d, s%d, 1\ns_add_u32 s%d, s%d, s%d\ns_and_b32 s%d, s%d, %d\n" % (sT1, sT4, sSPIN, sT0, sT1, sSPIN, sSPIN, 7 if cfg.rot is True else int(cfg.rot))) if cfg.rot and cfg.rot != "z" else "")
    if cfg.rot: s += rot_regs(0)
    s += """
    s_lshl_b32 s{t0}, s{rb}, 2
    s_add_u32 s{t0}, s{t0}, s{wv}
    s_lshl_b32 s{t0}, s{t0}, 15
    v_lshrrev_b32 v2, 3, v{L}
    v_lshlrev_b32 v2, 10, v2
    v_add_u32 v2, s{t0}, v2
    v_lshrrev_b32 v3, 4, v{L}
    v_xor_b32 v3, v3, v{L}
    v_and_b32 v3, 7, v3
    v_lshl_add_u32 v{x0}, v3, 4, v2
    v_add_u32 v{x2}, {d2}, v{x0}
    v_xor_b32 v3, 4, v3
    v_lshl_add_u32 v{x1}, v3, 4, v2
    v_add_u32 v{x1}, 7168, v{x1}
    v_add_u32 v{x3}, {d2}, v{x1}
    """.format(t0=sT0, rb=sRB, wv=sWV, L=vL, x0=XD, x1=XD + 1, x2=XD + 2, x3=XD + 3, d2=2 * 7168)
    s += srd_consts(((SX, 0x200000), (SQ, 0x180000), (SG, 0x1C0000), (SU, 0x1C0000)))
    s += "s_waitcnt lgkmcnt(0)\n"
    if cfg.stamps: s += "v_writelane_b32 v%d, s%d, 0\nv_writelane_b32 v%d, s%d, 63\n" % (vSTAMP, sST, vSTAMP, sST + 2)
    ins = L(s)
    for x in ins:
        if x.kind == "smem": x.nowait = True
    defines(ins, XD=range(XD, XD + 4))
    ins += stamp("karg") + flat(item_dma(("x", 0)))
    ins += L("s_cmp_ge_u32 s%d, 2\ns_cbranch_scc1 L_proB" % sT4)
    return ins

def entry_rest():
    s = ""
    if cfg.rot == "z":
        s += """
        s_lshl_b32 s{t0}, s{q}, 1
        s_add_u32 s{t0}, s{t0}, s{t4}
        s_lshl_b32 s{t0}, s{t0}, 1
        s_add_u32 s{t0}, s{t0}, s{rb}
        s_mul_i32 s{t1}, s{t0}, {mg}
        s_lshr_b32 s{t1}, s{t1}, 8
        s_mul_i32 s{t1}, s{t1}, {m}
        s_sub_u32 s{r}, s{t0}, s{t1}
        """.format(m=8 - cfg.nfix, mg={7: 37, 6: 43, 5: 52}[8 - cfg.nfix], t0=sT0, t1=sT1, q=sQ, t4=sT4, rb=sRB, r=sSPIN)
    s += "".join(rot_regs(c) for c in range(1, cfg.npro)) if cfg.rot else ""
    s += """
    s_lshl_b32 s{l1k}, s{wv}, 10
    s_lshl_b32 s{tt}, s{xcd}, 2
    s_and_b32 s{t0}, s{idx}, 3
    s_add_u32 s{tt}, s{tt}, s{t0}
    s_lshr_b32 s{ct}, s{idx}, 2
    """.format(t0=sT0, wv=sWV, tt=sTT, xcd=sXCD, idx=sIDX, ct=sCT, l1k=sL1K)
    s += srd_consts(((SD, 0x1C0000), (SO, 0x80000), (SW, 0x10000000), (SOUT, 0x200000), (SDBG, 256), (SPHI, 16384)))
    return L(s)

def defaults():
    cfg.code_lim = 20480
    cfg.fixpar = 0; cfg.shift = (0, 0); cfg.qmajor = True; cfg.outfl = ' sc1'; cfg.clr_at = 12; cfg.late_u = True; cfg.late_g = 0; cfg.padto = 0; cfg.pad_at = None; cfg.late_d = 7; cfg.orderB = None; cfg.pacewB = None; cfg.bt2 = 0; cfg.bt3 = 0; cfg.strict = False; cfg.skipbar = (); cfg.quiet = 0; cfg.p3t = 0; cfg.pacew = {8: 8}; cfg.wpfd = 0; cfg.npro = 2; cfg.pace0 = 8; cfg.pace = [8, 4, 4]; cfg.p2pace = 1; cfg.w2at = lambda m: (m - 16) * 30 // 19
    cfg.order = 'Cf1jrsW'; cfg.rot = 'z'; cfg.wpf0 = None; cfg.wpf = 0; cfg.wpf1 = [(SD, 14), (SO, 4)]; cfg.codepf = 1; cfg.w2pf = [(40, 8, 4), (43, 12, 4), (46, 16, 4), (49, 20, 4), (52, 24, 4), (55, 28, 4), (58, 32, 4)]; cfg.o212 = False; cfg.w2atB = lambda m: max(m - 16, (m - 16) * 30 // 19 - 3); cfg.walk = [[0], [128, 256]]; cfg.walk_at = 0; cfg.nfix = 1; cfg.w1_from = 0; cfg.wdelay = {}; cfg.rot2 = True; cfg.w2B = False; cfg.mix = True
    cfg.p2period = 72; cfg.rd_early = True; cfg.one_wait = True; cfg.x_early = True; cfg.st_early = True; cfg.stash = False; cfg.vfold = True; cfg.pro_setup = True; cfg.setup_end = 14
    cfg.fd = 1100; cfg.h1first = 10; cfg.a_att = 27; cfg.a_h1 = 26; cfg.a_pub = 8; cfg.a_kvflag = 30; cfg.h1 = 12; cfg.a_h2 = 3
    cfg.b_h0 = 12; cfg.b_att = 14; cfg.b_ri = -4; cfg.b_rc = 5; cfg.b_li = 14; cfg.b_lc = 24; cfg.b_o = 5
    cfg.flag_delay = 28; cfg.flag_delay2 = 14
    cfg.p0 = 6; cfg.hstep0 = 5
    cfg.hlA = [4 * (n - 4) + 1 for n in range(36)]; cfg.hlB = [(6 + 2 * (n - 8) if n < 16 else 4 * (n - 5) + 1) for n in range(36)]; cfg.poll_lead = [16, 10, 16, 16, 12]

def walk_call(typ, k):
    ls = ["s_mov_b64 exec, 0"]
    for w in range(3): ls += ["s_cmp_eq_u32 s%d, %d" % (sWV, w), "s_cbranch_scc1 L_pad%s%d_%d" % (typ, k, w)]
    ls += ["s_branch L_pad%s%d_3" % (typ, k), "L_ret%s%d:" % (typ, k), "s_mov_b64 exec, -1"]
    return Raw(ls, wr=["scc"])

def add_pads(p, typ):
    sz = sizes(p)
    total = sum(sz)
    want = []
    for pg in range(1, total // 4096 + 1):
        for k, offs in enumerate(cfg.walk):
            want += [(4096 * pg + o, k) for o in offs]
    want.sort()
    out = []; pos = 0; pads = {k: [] for k in range(len(cfg.walk))}
    for x, n in zip(p, sz):
        while want and pos >= want[0][0] and x.kind != "endpgm":
            o, k = want.pop(0)
            lab, br = I("L_x:"), I("s_cbranch_execz L_x")
            pads[k].append((lab, br)); out += [lab, br]; pos += 4
        out.append(x); pos += n
    for k, lst in pads.items():
        assert len(lst) >= 4
        for i, (lab, br) in enumerate(lst):
            lab.text = "L_pad%s%d_%d:" % (typ, k, i)
            br.text = "s_cbranch_execz " + ("L_pad%s%d_%d" % (typ, k, i + 4) if i + 4 < len(lst) else "L_ret%s%d" % (typ, k))
    print("  pads", {k: len(v) for k, v in pads.items()}, "bytes", pos)
    return out

def o212_defaults():
    cfg.o212 = True; cfg.pace = [8, 4, 6]; cfg.pacew = {}
    cfg.a_hh = 1; cfg.a_att2 = 14; cfg.h3 = 6; cfg.b_h0 = 14; cfg.b_att = 28
    cfg.b_ri = -24; cfg.b_rc = -6; cfg.b_li = 8; cfg.b_lc = 18
    cfg.p0 = 5; cfg.hstep0 = 9; cfg.p1 = 26; cfg.hstep1 = 5
    cfg.poll_lead = [12, 20, 12, 12, 12]
    cfg.hlA = cfg.hlB = [max(30 + 2 * (n - 12), 4 * (n - 5) + 1) for n in range(36)]
    cfg.w2at = cfg.w2atB = lambda m: m - 16
    cfg.w2pf = [(36, 16, 4), (40, 20, 4), (44, 24, 4), (48, 28, 4), (52, 32, 4)]

def generate(path):
    label_n[0] = 0
    import fw; fw.LOOSE = cfg.x_nodma or cfg.x_drop
    progs = {}; cut = {}
    for typ in "AB":
        nc, p = build_type(typ)
        mark = p[nc]
        if cfg.x_nodma:
            k0 = [i for i, x in enumerate(p) if getattr(x, "kind", "") == "barrier"][0]
            q = p[:k0]
            for x in p[k0:]:
                if getattr(x, "dma", False):
                    y = I("s_nop 0");
                    q.append(y)
                else: q.append(x)
            p = q
        if cfg.x_drop:
            q = []
            for x in p:
                t = getattr(x, "text", "")
                d = ("h" in cfg.x_drop and t.startswith("buffer_load_dwordx4 a[")) or \
                    ("s" in cfg.x_drop and t.startswith("buffer_store_dwordx4") and "s[28:31]" in t) or \
                    ("w" in cfg.x_drop and getattr(x, "dma", False) and ("s[20:23]" in t or "s[24:27]" in t)) or \
                    ("p" in cfg.x_drop and x.kind == "raw")
                if "m" in cfg.x_drop and x.kind == "mfma":
                    if t.endswith("]") and " a[" in t and "32x32" in t:
                        regs = [r for r in x.rd if r[0] == "a"]
                        y = I("s_nop 0"); y.rd = regs; y.kind = "salu"; q.append(y)
                    continue
                if "l" in cfg.x_drop and x.kind == "ds": continue
                q.append(I("s_nop 0") if d else x)
            p = q
        progs[typ] = finalize(p, typ)
        cut[typ] = (progs[typ].index(mark), [i for i, x in enumerate(progs[typ]) if x.kind == "label" and "main" in x.text][0])
    given = {("A", 0), ("B", 0)}; at = {"A": 0, "B": 0}; moved = True
    while moved:
        moved = False
        for t in "AB":
            while at[t] < len(progs[t]) and all(w in given for w in getattr(progs[t][at[t]], "waits", [])):
                g = getattr(progs[t][at[t]], "gives", None)
                if g is not None: given.add((t, g))
                at[t] += 1; moved = True
    assert all(at[t] == len(progs[t]) for t in "AB"), ("circular wait", at, [getattr(progs[t][min(at[t], len(progs[t]) - 1)], "waits", None) for t in "AB"])
    def main(t):
        p = progs[t][cut[t][1]:]
        if cfg.fixpar: p = fix_parity(p, cfg.fixpar)
        if cfg.walk: return ".p2align 12\n" + emit(add_pads(p, t)) + "L_end%s:\n" % t
        return ".p2align 6\n" + emit(p[:1]) + "    s_nop 0\n" * cfg.shift[t == "B"] + emit(p[1:]) + "L_end%s:\n" % t
    body = emit(progs["A"][:cut["A"][1]]) + "L_proB:\n" + emit(progs["B"][cut["B"][0]:cut["B"][1]]) + "L_exit:\n    s_endpgm\n" + \
           main("A") + main("B")
    ref = open("parallel_sum__linear_kernel_hedgehog__glu_gated_bilinear__prompt.s.ref").read().split("\n")
    head = [x for x in ref if x.startswith(";") and "@launch" not in x and "Override" not in x and "grid=ceil" not in x]
    txt = "\n".join(head) + "\n; @launch grid=(256,1,1) block=(256,1,1) lds=%d\n" % LDS_BYTES
    txt += """.amdgcn_target "amdgcn-amd-amdhsa--gfx950"
.text
.globl {k}
.p2align 8
.type {k},@function
{k}:
""".format(k=KNAME) + body + """.section .rodata,"a"
.p2align 6
.amdhsa_kernel {k}
  .amdhsa_next_free_vgpr 512
  .amdhsa_next_free_sgpr 102
  .amdhsa_accum_offset 256
  .amdhsa_group_segment_fixed_size 0
  .amdhsa_kernarg_size 88
  .amdhsa_user_sgpr_count 2
  .amdhsa_user_sgpr_kernarg_segment_ptr 1
  .amdhsa_system_sgpr_workgroup_id_x 1
.end_amdhsa_kernel
""".format(k=KNAME)
    open(path, "w").write(txt)
    if cfg.stamps: open(path[:-2] + ".names", "w").write("\n".join(stamp_names))

if __name__ == "__main__":
    defaults()
    path = sys.argv[1]
    for kv in sys.argv[2:]:
        k, v = kv.split("=", 1)
        if k == "o212": o212_defaults()
        setattr(cfg, k, eval(v))
    generate(path)
```

```python
import sys, re
from fw import *

KNAME = "parallel_sum__linear_kernel_hedgehog__glu_gated_bilinear__prompt_kernel"

class Cfg:
    rot = True
    stamps = False
    codepf = False
    wpf = False
    w2pf = False
    spin = 200000
    dbgout = False
    x_drop = ''
    x_nostat = False; x_notask = False; x_nodma = False; x_nobar = False
cfg = Cfg()

PITCH = 8224
NSLOT = 16
WREG = NSLOT * PITCH
WREG_SZ = 5632
VOFF = 2304
STAT = WREG + 4 * WREG_SZ
CSP = STAT + 2048
CST = CSP + 3072
LDS_BYTES = 163840
WS_H = 0
WS_KVP = 0xC00000
WS_KVF = 0xA00000
WS_FL = 0xA40000
WS_ST = 0xB00000
OOB = 0x40000000

SX, SQ, SG, SU, SD, SO, SW, SOUT, SDBG, SPHI = 4, 8, 12, 16, 20, 24, 28, 32, 36, 40
def srd(b): return "s[%d:%d]" % (b, b + 3)
sWV, sTH, sGR, sRB, sQ, sT4, sAB, sI, sTT, sCT, sIDX, sXCD = range(44, 56)
sKX, sKQ, sKG = 56, 64, 72
sLX, sL2K, sL1K, sT0, sT1, sSPIN = 80, 81, 82, 83, 84, 85
sM1, sM2, sM3, sMB = 86, 88, 90, 92
sWDB, sWOB, sC2, sH2, sS = 94, 95, 96, 97, 3
sPB = 40
sMH = 54
sST = 98
SET0, SET1, WF = 0, 64, 128
SEL01, SEL23 = 144, 148
vPW, vPR, vVW, vVR0 = 152, 153, 154, 155
vKVL, vKRL, vKRS = 152, 153, 154
CSD = 156
MB = 160
CA = 168
vSL = 172
XR, WR1, WR3, XD, WR2 = 174, 178, 178, 182, 182
W2R = 174
WQD, WGD, WHD = 186, 188, 190
vHLD, vPOL = 186, 187
vCSA, vRS, vR2, vHST, vL, W2D = 191, 192, 194, 196, 197, 198
WPHI = 200
KVD = 208
TMP = 240
vFLG, vVR1, vKVA, vSTAMP = 252, 253, 254, 255
SQD2 = 88
RSD, SQD = 64, 68

def vr(b, n=1): return "v%d" % b if n == 1 else "v[%d:%d]" % (b, b + n - 1)
def ar(b, n): return "a[%d:%d]" % (b, b + n - 1)

stamp_names = []
def stamp(name):
    if cfg.stamps != True: return []
    if name not in stamp_names: stamp_names.append(name)
    k = stamp_names.index(name)
    return [I("s_memtime s[%d:%d]" % (sST, sST + 1)), I("v_writelane_b32 v%d, s%d, %d" % (vSTAMP, sST, k + 2))]

def addr_wfull(dst, n, att, swap, t0=TMP):
    a, b = vr(t0), vr(t0 + 1)
    s = """
    v_lshrrev_b32 {a}, 5, v{L}
    v_lshlrev_b32 {a}, 10, {a}
    v_bfe_u32 {b}, v{L}, 2, 2
    v_lshl_add_u32 {a}, {b}, 7, {a}
    v_and_b32 {b}, 3, v{L}
    v_lshl_add_u32 {a}, {b}, 3, {a}
    v_bfe_u32 {b}, v{L}, 3, 1
    v_xor_b32 {b}, s{gr}, {b}
    v_lshl_add_u32 {a}, {b}, 6, {a}
    v_bfe_u32 {b}, v{L}, 4, 1
    """.format(a=a, b=b, L=vL, gr=sGR)
    if att:
        if swap: s += "v_xor_b32 %s, s%d, %s\n" % (b, sTH, b)
        s += "v_lshl_add_u32 %s, %s, 5, %s\n" % (a, b, a)
    else:
        s += "v_mul_u32_u24 %s, %d, %s\nv_add_u32 %s, %s, %s\n" % (b, PITCH, b, a, a, b)
    return L(s) + wr_variants(dst, n, a, 12, 'Watt' if att else 'Wpair')

def wr_variants(dst, n, a, sh, role):
    s = "s_lshl_b32 s%d, s%d, %d\ns_xor_b32 s%d, s%d, %d\n" % (sT0, sS, sh, sT1, sT0, 1 << sh)
    k = dst
    if n == 4:
        s += "v_add_u32 v%d, s%d, %s\nv_add_u32 v%d, s%d, %s\n" % (k, sT0, a, k + 1, sT1, a)
        s += "v_add_u32 v%d, %d, v%d\nv_add_u32 v%d, %d, v%d\n" % (k + 2, 8 * PITCH, k, k + 3, 8 * PITCH, k + 1)
    else:
        s += "v_add_u32 %s, %d, %s\n" % (a, 8 * PITCH, a)
        s += "v_add_u32 v%d, s%d, %s\nv_add_u32 v%d, s%d, %s\n" % (k, sT0, a, k + 1, sT1, a)
    ins = L(s)
    return [defines(ins, **{role: range(dst, dst + n)})]

def addr_whalf(dst, t0=TMP):
    a, b = vr(t0), vr(t0 + 1)
    s = """
    v_lshrrev_b32 {a}, 5, v{L}
    v_lshlrev_b32 {a}, 9, {a}
    v_bfe_u32 {b}, v{L}, 2, 2
    v_lshl_add_u32 {a}, {b}, 6, {a}
    v_and_b32 {b}, 3, v{L}
    v_lshl_add_u32 {a}, {b}, 3, {a}
    v_bfe_u32 {b}, v{L}, 4, 1
    v_mul_u32_u24 {b}, 4128, {b}
    v_add_u32 {a}, {a}, {b}
    v_mov_b32 {b}, s{gr}
    v_lshl_add_u32 {a}, {b}, 5, {a}
    """.format(a=a, b=b, L=vL, gr=sGR)
    return L(s) + wr_variants(dst, 4, a, 11, 'Whalf')

def addr_cs(swap, t0=TMP):
    a = vr(t0)
    s = "s_lshl_b32 s%d, s%d, 8\ns_lshl_b32 s%d, s%d, 7\ns_add_u32 s%d, s%d, s%d\ns_add_u32 s%d, s%d, %d\n" % (sT0, sGR, sT1, sTH, sT0, sT0, sT1, sT0, sT0, CSP)
    s += "v_and_b32 %s, 31, v%d\n" % (a, vL)
    if swap: s += "s_lshl_b32 s%d, s%d, 4\nv_xor_b32 %s, s%d, %s\n" % (sT1, sTH, a, sT1, a)
    s += """
    v_lshl_add_u32 v{ca}, {a}, 2, s{t}
    v_lshrrev_b32 {a}, 5, v{L}
    v_lshl_add_u32 v{ca}, {a}, 9, v{ca}
    """.format(a=a, L=vL, ca=vCSA, t=sT0)
    return [defines(L(s), **{"CSs" if swap else "CS": vCSA})]

def addr_p2(t0=TMP):
    a, b = vr(t0), vr(t0 + 1)
    s = """
    v_lshrrev_b32 {a}, 5, v{L}
    v_lshlrev_b32 {a}, 9, {a}
    v_bfe_u32 {b}, v{L}, 2, 2
    v_lshl_add_u32 {a}, {b}, 7, {a}
    v_and_b32 {b}, 3, v{L}
    v_lshl_add_u32 {a}, {b}, 3, {a}
    v_bfe_u32 {b}, v{L}, 3, 1
    v_lshl_add_u32 {a}, {b}, 6, {a}
    v_bfe_u32 {b}, v{L}, 4, 1
    v_lshl_add_u32 {a}, {b}, 5, {a}
    v_xor_b32 {b}, 64, {a}
    v_add_u32 v{w0}, s{l2k}, {a}
    v_add_u32 v{w1}, s{l2k}, {b}
    v_add_u32 v{w2}, {hi}, v{w0}
    v_add_u32 v{w3}, {hi}, v{w1}
    """.format(a=a, b=b, L=vL, w0=W2R, w1=W2R + 1, w2=W2R + 2, w3=W2R + 3, l2k=sL2K, hi=8 * PITCH)
    ins = L(s)
    ins.append(L("""
    s_mul_i32 s{t0}, s{tt}, {a}
    s_mul_i32 s{t1}, s{wv}, {b}
    s_add_u32 s{t0}, s{t0}, s{t1}
    v_lshl_add_u32 v{h}, v{L}, 4, s{t0}
    """.format(t0=sT0, t1=sT1, tt=sTT, wv=sWV, a=144 * 2048, b=36 * 2048, h=vHLD, L=vL)))
    ins.append(L("""
    s_lshl_b32 s{t0}, s{tt}, 2
    s_add_u32 s{t0}, s{t0}, s{wv}
    s_lshl_b32 s{t0}, s{t0}, 7
    s_add_u32 s{t0}, s{t0}, {fl}
    v_and_b32 {a}, 7, v{L}
    v_lshl_add_u32 v{p}, {a}, 2, s{t0}
    """.format(t0=sT0, tt=sTT, wv=sWV, fl=WS_FL, a=a, L=vL, p=vPOL)))
    return defines(ins, W2R=range(W2R, W2R + 4), HLD=vHLD, POL=vPOL)

label_n = [0]
def poll(addr, res, need, sr=SW, cmp="gt"):
    label_n[0] += 1
    k = label_n[0]
    ld = "buffer_load_dword v%d, v%d, %s, 0 offen sc1" % (res, addr, srd(sr))
    c = "v_cmp_%s_u32 vcc, %s, v%d" % (cmp, need, res)
    chk = Raw([c, "s_nop 4", "s_cbranch_vccz L_ok%d" % k,
               "s_mov_b32 s%d, %d" % (sSPIN, cfg.spin),
               "L_re%d:" % k, "s_sleep 1", ld, "s_waitcnt vmcnt(0)", c, "s_sub_u32 s%d, s%d, 1" % (sSPIN, sSPIN),
               "s_cbranch_scc1 L_ok%d" % k, "s_nop 2", "s_cbranch_vccnz L_re%d" % k,
               "L_ok%d:" % k],
              rd=["v%d" % res, "v%d" % addr] + regs_of(need), wr=["vcc", "scc", "s%d" % sSPIN])
    chk.cost = 32
    return I(ld), chk

def class_poll(c, res, needr):
    na, nb = ([(0, 1), (1, 1), (1, 2), (2, 2), (2, 3)] if cfg.o212 else [(0, 1), (0, 2), (1, 2), (2, 2), (2, 3)])[c]
    iss, chk = poll(vPOL, res, "v%d" % needr)
    chk.waits = [("A", na), ("B", nb)]; iss.after_hs = True
    needs([iss, chk], POL=vPOL); defines([iss], **{"cp%d" % c: res}); needs([chk], **{"cp%d" % c: res})
    return iss, [I("v_cndmask_b32 v%d, %d, %d, s[%d:%d]" % (needr, na, nb, sMB, sMB + 1)), chk]

def set_flag(level, tag, t):
    if cfg.strict: tag = "vm0"
    mv = I("v_mov_b32 v%d, %d" % (t, level)); mv.gives = level
    return stamp("f%d_0" % level) + [Wait(tag)] + stamp("f%d_1" % level) + [mv, needs(I("buffer_store_dword v%d, v%d, %s, 0 offen sc1" % (t, vFLG, srd(SW))), FLG=vFLG)]

def t_stat_add():
    a, b = TMP, TMP + 1
    s = """
    s_lshl_b32 s{t0}, s{th}, 10
    s_add_u32 s{t0}, s{t0}, {st}
    v_and_b32 v{b}, 31, v{L}
    v_lshl_add_u32 v{b}, v{b}, 4, s{t0}
    s_lshl_b32 s{t1}, s{gr}, 3
    s_add_u32 s{t0}, s{t0}, s{t1}
    v_lshl_add_u32 v{a}, v{L}, 4, s{t0}
    """.format(t0=sT0, t1=sT1, th=sTH, gr=sGR, st=STAT, a=a, b=b, L=vL)
    pre = [L(s)]
    out = []
    for j in range(8): out += L("v_add_f32 v%d, v%d, v%d" % (SQD + j, SQD + j, SQD2 + j))
    for j, m in ((1, sM1), (2, sM2), (3, sM3)):
        for blk in range(2):
            q = SQD + 4 * blk
            out += L("v_cndmask_b32 v%d, v%d, v%d, s[%d:%d]" % (q, q, q + j, m, m + 1))
    out.append(L("v_permlane32_swap_b32 v%d, v%d\nv_add_f32 v%d, v%d, v%d" % (SQD, SQD + 4, RSD + 1, SQD, SQD + 4)))
    out += L("ds_write_b64 v%d, v[%d:%d]" % (a, RSD, RSD + 1))
    return pre, out

def t_cs_add(tile0, role="CS"):
    return needs(L("ds_write_b32 v%d, v%d offset:%d" % (vCSA, CSD, 512 * tile0)), **{role: vCSA})

def t_cs_tot(tile0, t):
    out = L("v_xor_b32 v%d, 0x80, v%d\nds_read_b32 v%d, v%d offset:%d" % (t, vCSA, t, t, 512 * tile0))
    out.append(Gap(2))
    out += L("""
    v_add_f32 v{t}, v{t}, v{cs}
    v_cvt_pk_bf16_f32 v{a}, v{t}, v{t}
    v_lshlrev_b32 v{a1}, 16, v{a}
    v_sub_f32 v{t}, v{t}, v{a1}
    v_cvt_pk_bf16_f32 v{a1}, v{t}, 0
    """.format(t=t, cs=CSD, a=CA, a1=CA + 1))
    return defines(out, **{"CA%d" % tile0: (CA, CA + 1)})

def t_corr(acc, T, tile0, bs=16, regs=None):
    out = []
    for j in range(T):
        for b in range(2):
            d = vr(regs[j][b] if regs else acc + 32 * j + bs * b, 16)
            x = I("v_mfma_f32_32x32x16_bf16 %s, %s, %s, %s" % (d, vr(CA, 4), vr(MB + 4 * b + 2 * j, 4), d)); x.cost = 24
            out.append(x)
    return needs(out, MB=range(MB, MB + 8), Z=(CA + 2, CA + 3), **{"CA%d" % tile0: (CA, CA + 1)})

def t_stat_fin():
    b = TMP + 1; t = TMP + 4
    out = L("ds_read_b128 v[%d:%d], v%d\nds_read_b128 v[%d:%d], v%d offset:512" % (t, t + 3, b, t + 4, t + 7, b))
    out.append(Gap(2))
    late = []
    for blk in range(2):
        r = t + 4 * blk; m = MB + 4 * blk
        out += L("""
        v_add_f32 v{r}, v{r}, v{r2}
        v_mul_f32 v{r}, 0xbb000000, v{r}
        v_cvt_pk_bf16_f32 v{m1}, v{r}, 0
        v_lshlrev_b32 v{r2}, 16, v{m1}
        v_sub_f32 v{r2}, v{r}, v{r2}
        v_cvt_pk_bf16_f32 v{m0}, v{r}, v{r2}
        v_cndmask_b32 v{m2}, 0, v{m0}, s[{h}:{h1}]
        v_cndmask_b32 v{m3}, 0, v{m1}, s[{h}:{h1}]
        v_cndmask_b32 v{m0}, v{m0}, 0, s[{h}:{h1}]
        v_cndmask_b32 v{m1}, v{m1}, 0, s[{h}:{h1}]
        """.format(r=r, r2=r + 2, m0=m, m1=m + 1, m2=m + 2, m3=m + 3, h=sMH, h1=sMH + 1))
        late += L("""
        v_add_f32 v{r1}, v{r1}, v{r3}
        v_mul_f32 v{r2}, v{r}, v{r}
        v_fma_f32 v{r1}, v{r1}, s{c}, -v{r2}
        v_max_f32 v{r1}, 0, v{r1}
        v_add_f32 v{r1}, 0x3727c5ac, v{r1}
        v_rsq_f32 v{rs}, v{r1}
        v_rcp_f32 v{rr}, v{r1}
        v_mul_f32 v{sl}, 0x3fb8aa3b, v{rs}
        """.format(r=r, r1=r + 1, r2=r + 2, r3=r + 3, rs=vRS + blk, rr=vR2 + blk, sl=vSL + blk, c=sC2))
    defines(out, MB=range(MB, MB + 8)); defines(late, R2=(vR2, vR2 + 1), RS=(vRS, vRS + 1), SL=(vSL, vSL + 1))
    return out, late

def t_hepi(acc, soff, imm, tag, bs=16):
    out = []
    for blk in range(2):
        g = acc + bs * blk
        for r in range(0, 8 if not cfg.x_notask else 0, 2):
            out += L("v_mul_f32 v%d, v%d, v%d\nv_mul_f32 v%d, v%d, v%d" % (g + r, vR2 + blk, g + r, g + r + 1, vR2 + blk, g + r + 1))
            out += L("v_mul_f32 v%d, v%d, v%d\nv_mul_f32 v%d, v%d, v%d" % (g + r, g + r, g + 8 + r, g + r + 1, g + r + 1, g + 9 + r))
            out += L("v_cvt_pk_bf16_f32 v%d, v%d, v%d" % (g + r // 2, g + r, g + r + 1))
        st = L("buffer_store_dwordx4 v[%d:%d], v%d, %s, s%d offen offset:%d sc1" % (g, g + 3, vHST, srd(SW), sT1, imm + 1024 * blk), tag=tag if blk else None)
        out.append(L(soff) + st)
    return needs(out, HST=vHST, R2=(vR2, vR2 + 1))

def phi_mfma(acc, TMP=TMP):
    out = []
    for j in range(8): out += L("v_cvt_pk_bf16_f32 v%d, v%d, v%d" % (TMP + j, acc + 2 * j, acc + 2 * j + 1))
    out += L("v_mfma_f32_32x32x16_bf16 v[%d:%d], v[%d:%d], v[%d:%d], 0" % (acc, acc + 15, WPHI, WPHI + 3, TMP, TMP + 3))
    out += L("v_mfma_f32_32x32x16_bf16 v[%d:%d], v[%d:%d], v[%d:%d], v[%d:%d]" % (acc, acc + 15, WPHI + 4, WPHI + 7, TMP + 4, TMP + 7, acc, acc + 15))
    out[-1].cost = 24; out[-2].cost = 24
    return needs(out, WPHI=range(WPHI, WPHI + 8))

def softmax2(p, blk, scale=None):
    e = TMP; a, b, c, d = TMP + 8, TMP + 9, TMP + 10, TMP + 11; sl = vSL + blk
    s = """
    v_max3_f32 v{a}, v{p0}, v{p1}, v{p2}
    v_min3_f32 v{b}, v{p0}, v{p1}, v{p2}
    v_max3_f32 v{a}, v{a}, v{p3}, v{p4}
    v_min3_f32 v{b}, v{b}, v{p3}, v{p4}
    v_max3_f32 v{a}, v{a}, v{p5}, v{p6}
    v_min3_f32 v{b}, v{b}, v{p5}, v{p6}
    v_max_f32 v{a}, v{a}, v{p7}
    v_max_f32_e64 v{b}, -v{b}, -v{p7}
    """.format(a=a, b=b, **{"p%d" % i: p + i for i in range(8)})
    out = L(s)
    out += L("v_permlane32_swap_b32 v{a}, v{b}\nv_max_f32 v{a}, v{a}, v{b}\nv_mul_f32_e64 v{a}, -v{a}, v{sl}\nv_mov_b32 v{b}, v{a}".format(a=a, b=b, sl=sl))
    out += L("v_permlane32_swap_b32 v{a}, v{b}".format(a=a, b=b))
    for i in range(8):
        out += L("v_fma_f32 v%d, v%d, v%d, v%d" % (e + i, p + i, sl, a))
        out += L("v_fma_f32 v%d, -v%d, v%d, v%d" % (p + i, p + i, sl, b))
        if i > 1: out += L("v_add_f32 v%d, v%d, v%d" % (c, c if i > 2 else e, e + i - 1))
        out += L("v_exp_f32 v%d, v%d" % (e + i, e + i))
        if i > 1: out += L("v_add_f32 v%d, v%d, v%d" % (d, d if i > 2 else p, p + i - 1))
        out += L("v_exp_f32 v%d, v%d" % (p + i, p + i))
    out += L("v_add_f32 v%d, v%d, v%d\nv_add_f32 v%d, v%d, v%d" % (c, c, e + 7, d, d, p + 7))
    out += L("v_permlane32_swap_b32 v{c}, v{d}\nv_add_f32 v{c}, v{c}, v{d}\nv_rcp_f32 v{c}, v{c}".format(c=c, d=d))
    if scale: out += L("v_mul_f32 v%d, v%d, v%d" % (c, scale, c))
    out += L("v_mov_b32 v{d}, v{c}".format(c=c, d=d))
    out += L("v_permlane32_swap_b32 v{c}, v{d}".format(c=c, d=d))
    for i in range(8):
        out += L("v_mul_f32 v%d, v%d, v%d" % (p + i, d, p + i))
        if i & 1: out += L("v_cvt_pk_bf16_f32 v%d, v%d, v%d" % (p + i // 2, p + i - 1, p + i))
    for i in range(8):
        out += L("v_mul_f32 v%d, v%d, v%d" % (e + i, c, e + i))
        if i & 1: out += L("v_cvt_pk_bf16_f32 v%d, v%d, v%d" % (p + 4 + i // 2, e + i - 1, e + i))
    return out

def v_out(va, blk):
    out = []
    if cfg.vfold:
        t = TMP + 8
        out += L("v_rcp_f32 v{t}, v{rs}\nv_cvt_pk_bf16_f32 v{t}, v{t}, v{t}\nds_write_b32 v{a}, v{t} offset:64".format(t=t, rs=vRS + blk, a=vVW))
    for r in range(0, 16, 2):
        if not cfg.vfold: out += L("v_mul_f32 v%d, v%d, v%d\nv_mul_f32 v%d, v%d, v%d" % (va + r, vRS + blk, va + r, va + r + 1, vRS + blk, va + r + 1))
        out += L("v_cvt_pk_bf16_f32 v%d, v%d, v%d" % (va + r // 2, va + r, va + r + 1))
        if r % 4 == 2: out += L("ds_write_b64 v%d, v[%d:%d] offset:%d" % (vVW, va + r // 2 - 1, va + r // 2, 4 * (r - 2)))
    return out

def weave(main, extra, pos):
    out = []; k = 0
    for n, x in enumerate(main):
        while k < len(extra) and pos[k] <= n: out.append(extra[k]); k += 1
        out.append(x)
    return out + extra[k:]

def t_att_k():
    out = []
    if cfg.x_notask: return [I("s_nop 0")]
    FR = 32
    rds, mms = [], []
    for blk in range(2):
        va = 32 + 16 * blk; ka = 16 * blk
        pm = phi_mfma(ka)
        out += weave(pm, rds, range(0, 8)); rds = []
        vo = v_out(va, blk)
        out += weave(vo, mms, (10, 18) if not cfg.vfold else (6, 12)); mms = []
        for hh in range(2):
            p = ka + 8 * hh
            sm = softmax2(p, blk, vRS + blk if cfg.vfold else None)
            n = len(sm)
            wr = [I("ds_write_b64 v%d, v[%d:%d] offset:%d" % (vPW, p + 2 * j, p + 1 + 2 * j, 32 + 16 * j)) for j in range(2)] + \
                 [I("ds_write_b64 v%d, v[%d:%d] offset:%d" % (vPW, p + 4 + 2 * j, p + 5 + 2 * j, 16 * j)) for j in range(2)]
            sm = weave(sm, rds + mms + wr, [2, 5, 8, 8, 12, 12, 16, 20][:len(rds)] + [44, 56][:len(mms)] + [n - 17, n - 11, n - 5, n])
            out += sm
            rds, mms = [], []
            for ks in range(2):
                for j in range(2):
                    rds += L("ds_read_b64_tr_b16 v[%d:%d], v%d offset:%d" % (FR + 8 * ks + 4 + 2 * j, FR + 8 * ks + 5 + 2 * j, (vVR0, vVR1)[hh], 1664 * ks + 416 * j))
                for j in range(2):
                    rds += L("ds_read_b64_tr_b16 v[%d:%d], v%d offset:%d" % (FR + 8 * ks + 2 * j, FR + 8 * ks + 2 * j + 1, vPR, 1152 * ks + 288 * j))
            d = KVD + 16 * hh
            for ks in range(2):
                c = "0" if (blk == 0 and ks == 0) else vr(d, 16)
                x = I("v_mfma_f32_32x32x16_bf16 %s, %s, %s, %s" % (vr(d, 16), vr(FR + 8 * ks, 4), vr(FR + 8 * ks + 4, 4), c)); x.cost = 24
                mms.append(x)
    for x in rds: x.cost = 8
    out += rds
    pend = mms
    out.append(L("""
    s_mul_i32 s{t0}, s{wv}, {wsz}
    s_add_u32 s{t0}, s{t0}, {wreg}
    v_lshl_add_u32 v{a}, v{L}, 4, s{t0}
    s_xor_b32 s{t0}, s{wv}, 1
    s_mul_i32 s{t0}, s{t0}, {wsz}
    s_add_u32 s{t0}, s{t0}, {wreg}
    v_lshl_add_u32 v{b}, v{L}, 4, s{t0}
    """.format(t0=sT0, wv=sWV, wsz=WREG_SZ, wreg=WREG, a=TMP, b=TMP + 1, L=vL)))
    out += [Gap(2)] + pend + [Gap(2)]
    for r4 in range(4): out += L("ds_write_b128 v%d, %s offset:%d" % (TMP, vr(KVD + 16 + 4 * r4, 4), 1024 * r4))
    defines(out, EXR=TMP + 1)
    return needs(out, PW=vPW, PR=vPR, VW=vVW, VR0=vVR0, VR1=vVR1, RS=(vRS, vRS + 1), SL=(vSL, vSL + 1))

def t_kv_pub():
    out = []
    for r4 in range(4): out += L("ds_read_b128 %s, v%d offset:%d" % (vr(KVD + 16 + 4 * r4, 4), TMP + 1, 1024 * r4))
    out.append(Gap(2))
    for r in range(16):
        out += L("v_add_f32 v%d, v%d, v%d" % (KVD + r, KVD + r, KVD + 16 + r))
        if r % 4 == 3: out += L("buffer_store_dwordx4 %s, v%d, %s, 0 offen offset:%d sc1" % (vr(KVD + r - 3, 4), vKVA, srd(SW), 136 * (r - 3)))
    out[-1].gives = "kvp"
    return needs(out, EXR=TMP + 1, KVA=vKVA)

def data_poll(loads, regs, t):
    label_n[0] += 1
    k = label_n[0]
    chk = ["v_max3_u32 v%d, v%d, v%d, v%d" % (t, regs[0], regs[1], regs[2])]
    rest = regs[3:]
    while len(rest) > 1:
        chk.append("v_max3_u32 v%d, v%d, v%d, v%d" % (t, t, rest[0], rest[1])); rest = rest[2:]
    if rest: chk.append("v_max_u32 v%d, v%d, v%d" % (t, t, rest[0]))
    fast = L("\n".join(chk))
    c = "v_cmp_eq_u32 vcc, -1, v%d" % t
    raw = Raw([c, "s_nop 4", "s_cbranch_vccz L_ok%d" % k, "s_mov_b32 s%d, %d" % (sSPIN, cfg.spin), "L_re%d:" % k, "s_sleep 1"] + loads +
              ["s_waitcnt vmcnt(0)"] + chk + [c, "s_sub_u32 s%d, s%d, 1" % (sSPIN, sSPIN), "s_cbranch_scc1 L_ok%d" % k, "s_nop 2",
               "s_cbranch_vccnz L_re%d" % k, "L_ok%d:" % k],
              rd=["v%d" % t], wr=["vcc", "scc", "s%d" % sSPIN, "s%d" % sT1] + ["v%d" % r for r in regs])
    raw.cost = 32
    return fast + [raw]

def t_kv_red(RR=80):
    ld = []
    for k in range(4):
        ld += ["s_mov_b32 s%d, %d" % (sT1, 8704 * k), "buffer_load_dwordx4 %s, v%d, %s, s%d offen sc1" % (vr(RR + 4 * k, 4), vKRL, srd(SW), sT1)]
    iss = [L("\n".join(ld[2 * k:2 * k + 2])) for k in range(4)]
    out = data_poll(ld, list(range(RR, RR + 16)), vKVA)
    for j in range(4):
        out += L("v_add_f32 v%d, v%d, v%d\nv_add_f32 v%d, v%d, v%d" % (RR + j, RR + j, RR + 4 + j, RR + 8 + j, RR + 8 + j, RR + 12 + j))
    for j in range(4): out += L("v_add_f32 v%d, v%d, v%d" % (RR + j, RR + j, RR + 8 + j))
    out += L("""
    v_permlane16_swap_b32 v{a}, v{b}
    v_permlane16_swap_b32 v{c}, v{d}
    v_add_f32 v{a}, v{a}, v{b}
    v_add_f32 v{c}, v{c}, v{d}
    v_permlane32_swap_b32 v{a}, v{c}
    v_add_f32 v{a}, v{a}, v{c}
    buffer_store_dword v{a}, v{s}, {sr}, 0 offen sc1
    """.format(a=RR, b=RR + 1, c=RR + 2, d=RR + 3, s=vKRS, sr=srd(SW)))
    needs(iss, KRL=vKRL); needs(out, KRS=vKRS); flat(iss)[1].after_hs = True
    out[-1].gives = "kvf"; [x for x in out if x.kind == "raw"][0].waits = [("A", "kvp")]
    return iss, out

def t_att_q(Q=SET0, T8=64):
    out = []
    if cfg.x_notask: return [I("s_nop 0")]
    out += phi_mfma(Q, T8) + phi_mfma(Q + 16, T8 + 8) + [Gap(1)] * (Q != SET0)
    out += softmax2(Q, 0) + softmax2(Q + 8, 0) + softmax2(Q + 16, 1) + softmax2(Q + 24, 1)
    return out

KR = 32
def t_kv_load():
    ld = []
    for hh in range(2):
        for r4 in range(4):
            ld += ["buffer_load_dwordx4 %s, v%d, %s, 0 offen offset:%d sc1" % (vr(KR + 16 * hh + 4 * r4, 4), vKVL, srd(SW), 2176 * hh + 544 * r4)]
    chk = data_poll(ld, list(range(KR, KR + 32)), vKVA); chk[-1].waits = [("B", "kvf")]
    return needs(L("\n".join(ld)), KVL=vKVL), chk

def t_o(Q=SET0, D=64):
    out = []
    for hh in range(2):
        for j in range(8): out += L("v_cvt_pk_bf16_f32 v%d, v%d, v%d" % (KR + 16 * hh + j, KR + 16 * hh + 2 * j, KR + 16 * hh + 2 * j + 1))
    seq = [(hh, blk) for hh in range(2) for blk in range(2)]
    def mm(k):
        hh, blk = seq[k]; d = D + 16 * (k & 1); p = Q + 16 * blk + 8 * hh
        return L("v_mfma_f32_32x32x16_bf16 %s, %s, %s, 0" % (vr(d, 16), vr(KR + 16 * hh, 4), vr(p + 4, 4))) + \
               L("v_mfma_f32_32x32x16_bf16 %s, %s, %s, %s" % (vr(d, 16), vr(KR + 16 * hh + 4, 4), vr(p, 4), vr(d, 16)))
    def fin(k):
        hh, blk = seq[k]; d = D + 16 * (k & 1)
        o = L("v_add_f32 v%d, 0x358637bd, v%d\nv_rcp_f32 v%d, v%d" % (d + 8, d + 8, d + 8, d + 8))
        for r in range(8):
            o += L("v_mul_f32 v%d, v%d, v%d" % (d + r, d + 8, d + r))
            if r & 1: o += L("v_cvt_pk_bf16_f32 v%d, v%d, v%d" % (d + r // 2, d + r - 1, d + r))
        st = L("s_mov_b32 s%d, %d" % (sT1, 28 * 2048)) + \
             L("buffer_store_dwordx4 %s, v%d, %s, s%d offen offset:%d sc1" % (vr(d, 4), vHST, srd(SW), sT1, 2048 * hh + 1024 * blk), tag="ost" if k == 3 else None)
        return o + [st]
    out += mm(0) + mm(1) + fin(0) + mm(2) + fin(1) + mm(3) + fin(2) + fin(3)
    return out

def dma(vo, sr, so, imm, tag=None):
    role = "XD" if sr == SX else "WQD" if sr == SQ else "W2D" if sr in (SD, SO) else "WHD" if vo == WHD else "WGD"
    return needs(dma_(vo, sr, so, imm, tag), **{role: vo})

def dma_(vo, sr, so, imm, tag=None):
    return L("buffer_load_dwordx4 v%d, %s, %s offen%s lds" % (vo, srd(sr), so, " offset:%d" % imm if imm else ""), tag=tag)

def m0set(base, lit): return L("s_add_u32 m0, s%d, %d" % (base, lit))

def dma_x(c, slot, tag):
    if not cfg.rot:
        g = m0set(sLX, slot * PITCH) + L("s_movk_i32 s%d, %d" % (sH2 + 0 if False else 79, 128 * c))
        return [g + dma(XD, SX, "s79", 0)] + [dma(XD + i, SX, "s79", 1024 * i, tag if i == 3 else None) for i in range(1, 4)]
    g = m0set(sLX, slot * PITCH)
    return [g + dma(XD, SX, "s%d" % (sKX + c), 0)] + [dma(XD + i, SX, "s%d" % (sKX + c), 1024 * i, tag if i == 3 else None) for i in range(1, 4)]

def dma_full(vo, sr, kreg, extra, slot, tag):
    g = m0set(sL2K, slot * PITCH)
    so = "s%d" % kreg
    if not cfg.rot:
        lit = extra + ((kreg - sKQ) * 64 * 3072 if kreg < sKG else (kreg - sKG) * 64 * 3584)
        g += L("s_mov_b32 s%d, %d" % (sT0, lit)); so = "s%d" % sT0
        return [g + dma(vo, sr, so, 0) + dma(vo + 1, sr, so, 1024, tag)]
    if extra:
        g += L("s_add_u32 s%d, s%d, %d" % (sT0, kreg, extra)); so = "s%d" % sT0
        return [g + dma(vo, sr, so, 0) + dma(vo + 1, sr, so, 1024, tag)]
    return [g + dma(vo, sr, so, 0) + dma(vo + 1, sr, so, 1024, tag)]

def dma_half(c, slot, tag):
    so = "s%d" % (sKG + c)
    if not cfg.rot:
        mv = lambda: L("s_mov_b32 s%d, %d" % (sT0, c * 64 * 3584)); so = "s%d" % sT0
        return [m0set(sL1K, slot * PITCH) + mv() + dma(WHD, SG, so, 0), m0set(sL1K, slot * PITCH + 4128) + mv() + dma(WHD, SU, so, 0, tag)]
    return [m0set(sL1K, slot * PITCH) + dma(WHD, SG, so, 0), m0set(sL1K, slot * PITCH + 4128) + dma(WHD, SU, so, 0, tag)]

def slice_src(n):
    return (SD, sWDB, 16 * n) if n < 28 else (SO, sWOB, 16 * (n - 28))

FIRST = [0, 8, 16, 24, 28, 36]
SMALL = [3]
sR2 = sKX
def cls_of(n):
    c = max(k for k in range(5) if FIRST[k] <= n)
    return c, n - FIRST[c]

def r2_table():
    out = [L("s_and_b32 s{a}, s{tt}, 3\ns_lshl_b32 s{a}, s{a}, 1\ns_add_u32 s{a}, s{a}, s{ct}\ns_and_b32 s{a}, s{a}, {m}\ns_lshl_b32 s{a}, s{a}, 11".format(a=sR2, tt=sTT, ct=sCT, m=7 if cfg.rot2 else 0))]
    for i in range(1, 8): out.append(L("s_add_u32 s{a}, s{p}, 2048\ns_and_b32 s{a}, s{a}, 0x3800".format(a=sR2 + i, p=sR2 + i - 1)))
    return defines(out, R2T=["s%d" % (sR2 + i) for i in range(8)])

def dma_w2(n, slot):
    sr, base, row = slice_src(n)
    c, i = cls_of(n)
    g = m0set(sL2K, slot * PITCH)
    if c == SMALL[0]: g += L("s_and_b32 s{t}, s{r}, 0x1800\ns_lshl3_add_u32 s{t}, s{t}, s{b}".format(t=sT0, r=sR2 + i, b=base))
    else: g += L("s_lshl3_add_u32 s{t}, s{r}, s{b}".format(t=sT0, r=sR2 + i, b=base))
    needs(g, R2T="s%d" % (sR2 + i))
    g += dma(W2D, sr, "s%d" % sT0, 0) + dma(W2D + 1, sr, "s%d" % sT0, 1024, "w2_%d" % n)
    if n + 1 in FIRST[1:4]: g += L("s_add_u32 s%d, s%d, %d" % (sWDB, sWDB, 16384 * (FIRST[c + 1] - FIRST[c])))
    return [g]

def h_load(n):
    c, i = cls_of(n)
    if c == SMALL[0]: g = L("s_and_b32 s{t}, s{r}, 0x1800\ns_add_u32 s{t}, s{t}, {l}".format(t=sT1, r=sR2 + i, l=FIRST[c] * 2048))
    else: g = L("s_add_u32 s%d, s%d, %d" % (sT1, sR2 + i, FIRST[c] * 2048))
    needs(g, R2T="s%d" % (sR2 + i))
    a = 8 * (n % 32)
    for b in range(2):
        g += L("buffer_load_dwordx4 %s, v%d, %s, s%d offen%s sc1" % (ar(a + 4 * b, 4), vHLD, srd(SW), sT1, " offset:1024" if b else ""))
    return needs(g, HLD=vHLD)

def build_type(typ):
    global vHLD, vPOL
    A = typ == "A"
    vHLD, vPOL = (186, 187) if A else (155, 253)
    passes = [("att2", 2, SET0, 0), ("pair", 2, SET1, 2), ("half", 1, SET0, 4)] if A else \
             [("pair", 2, SET0, 0), ("pair", 2, SET1, 2), ("q", 1, SET0, 4)]
    WRs = [WR1, WR2, WR3]
    ACC2 = [16, 32, 208, 224] if A else [96, 112, 208, 224]
    accr = lambda p, j, b: (0, 48)[b] if (A and p == 2) else passes[p][2] + 32 * j + 16 * b
    if cfg.o212:
        passes = [("att2", 2, SET0, 0), ("half", 1, SET1, 2), ("pair", 2, SET0, 4)] if A else \
                 [("pair", 2, SET0, 0), ("q", 1, SET1, 2), ("pair", 2, SET0, 4)]
        ACC2 = [16, 32, 64, 80] if A else [96, 112, 208, 224]
        accr = lambda p, j, b: ((96, 112), (0, 48))[j][b] if (A and p == 2) else passes[p][2] + 32 * j + 16 * b
        FIRST[:] = [0, 8, 12, 20, 28, 36]; SMALL[:] = [1]
    S = Sched()
    step_beat = {}
    nt = lambda g: passes[g // 32][1]
    wbuf = lambda g, j: WF + (8 * (g & 1) + 4 * j if nt(g) == 2 else 4 * (g & 3))

    slot_of = {}
    for c in range(8):
        slot_of[("x", c)] = 2 * (c % 4); slot_of[("w", 0, c)] = 8 + 2 * (c % 4)
    def item_dma(it):
        if it[0] == "x": return dma_x(it[1], slot_of[it], "x%d" % it[1])
        if it[0] == "s": return dma_w2(it[1], slot_of[it])
        _, p, c = it; kind = passes[p][0]; sl = slot_of[it]; tag = "w%d_%d" % (p, c)
        if kind == "att2": return dma_full(WQD, SQ, sKQ + c, 0, sl, None) + dma_full(WQD, SQ, sKQ + c, 1024, sl + 1, tag)
        if kind == "q": return dma_full(WQD, SQ, sKQ + c, 0, sl, tag)
        if kind == "half": return dma_half(c, sl, tag)
        ex = (384 if cfg.o212 else 256) if (not A and p > 0) else 0
        return dma_full(WGD, SG, sKG + c, ex, sl, None) + dma_full(WGD, SU, sKG + c, ex, sl + 1, tag)
    def item_slots(it):
        if it[0] == "x": return 2
        if it[0] == "s": return 1
        return 2 if passes[it[1]][0] in ("att2", "pair") else 1

    def m16(d, sel, src, first): S.beat(I("v_mfma_f32_16x16x32_bf16 %s, %s, %s, %s" % (vr(d, 4), vr(sel, 4), src, "0" if first else vr(d, 4))), 16)
    def row_stats(k):
        for h in range(2):
            for b in range(2):
                d = vr((SQD, SQD2)[h] + 4 * b, 4)
                S.beat(I("v_mfma_f32_4x4x4_16b_bf16 %s, %s, %s, %s" % (d, ar(8 * k + 4 * b + 2 * h, 2), ar(8 * k + 4 * b + 2 * h, 2), "0" if k == 0 else d)), 8)
        m16(RSD, SEL01, ar(8 * k, 4), k == 0); m16(RSD, SEL23, ar(8 * k + 4, 4), False)
    def col_stats(g):
        for j in range(nt(g)): m16(CSD, (SEL01, SEL23)[j], vr(wbuf(g, j), 4), g % 32 == 0 and j == 0)
    for g in range(96):
        p, c, t = g // 32, (g // 4) % 8, g % 4
        kind, T, acc, tile0 = passes[p]
        step_beat[g] = len(S.beats)
        k = g % 32
        if cfg.st_early and c == 7 and T == 2 and t == 1 and not cfg.x_nostat: col_stats(g)
        for j in range(T):
            for b in range(2):
                d = vr(accr(p, j, b), 16)
                S.beat(I("v_mfma_f32_32x32x16_bf16 %s, %s, %s, %s" % (d, vr(wbuf(g, j), 4), ar(8 * k + 4 * b, 4), "0" if k == 0 else d)))
        if t < 2 and not cfg.x_nostat:
            early = cfg.st_early and c == 7 and T == 2
            if p == 0:
                for kk in ([k] if not early else [k, k + 1] if t == 0 else []): row_stats(kk)
            if cfg.st_early and c == 7 and T == 1 and p == 1:
                if t == 0: col_stats(g); col_stats(g + 1)
            elif not (early and t == 1): col_stats(g)
    step_beat[96] = len(S.beats)
    sl_beat = {}
    for n in range(36):
        sl_beat[n] = len(S.beats)
        w = WF + 8 * (n & 1); a = 8 * (n % 32)
        for cb in range(2):
            for tb in range(2):
                d = vr(ACC2[2 * cb + tb], 16)
                S.beat(I("v_mfma_f32_32x32x16_bf16 %s, %s, %s, %s" % (d, vr(w + 4 * cb, 4), ar(a + 4 * tb, 4), "0" if n == 0 else d)), cfg.p2period)
    sl_beat[36] = len(S.beats)
    S.beat(None)

    bar_step = {}
    for cc in range(24):
        T = passes[cc // 8][1]
        bar_step[cc] = 4 * cc + (3 if (T == 2 or cc == 23) else 2)
    last_rd = {}
    def w_reads(g, j):
        p, c, t = g // 32, (g // 4) % 8, g % 4
        kind = passes[p][0]; sl = slot_of[("w", p, c)]
        if p == 0: base, off = WR1 + (t >> 1), (sl - 8) * PITCH
        else: base, off = WRs[p] + 2 * (sl >= 8) + (t >> 1), (sl % 8) * PITCH
        if kind == "att2": off += j * PITCH
        if kind == "pair": off += 32 * j
        st, js = (1024, 256) if kind == "half" else (2048, 512)
        off += (t & 1) * st
        w = wbuf(g, j)
        role = {"att2": "Watt", "q": "Watt", "pair": "Wpair", "half": "Whalf"}[kind]
        return needs([I("ds_read_b64_tr_b16 %s, v%d offset:%d" % (vr(w + 2 * e, 2), base, off + e * js)) for e in range(2)], **{role: base})
    def x_reads(g):
        c, t = g // 4, g % 4
        return needs([I("ds_read_b128 %s, v%d offset:%d" % (ar(8 * g + 4 * b, 4), XR + t, slot_of[("x", c)] * PITCH + 4096 * b)) for b in range(2)], XR=XR + t)
    def w2_reads(n):
        sl = slot_of[("s", n)]; w = WF + 8 * (n & 1)
        return needs([I("ds_read_b64_tr_b16 %s, v%d offset:%d" % (vr(w + 4 * cb + 2 * e, 2), W2R + 2 * (sl >= 8) + cb, (sl % 8) * PITCH + 1024 * e)) for cb in range(2) for e in range(2)], W2R=range(W2R, W2R + 4))

    queue = []
    for c in range(cfg.npro, 8): queue += [("x", c), ("w", 0, c)]
    queue += [("w", 1, c) for c in range(8)]
    if cfg.o212: queue += [("w", 2, c) for c in range(8)] + [("s", n) for n in range(36)]
    elif cfg.mix:
        for c in range(8): queue += [("w", 2, c), ("s", c)]
        queue += [("s", n) for n in range(8, 36)]
    else: queue += [("w", 2, c) for c in range(8)] + [("s", n) for n in range(36)]
    free = set()
    for c in range(cfg.npro, 4): free |= {2 * c, 2 * c + 1, 8 + 2 * c, 9 + 2 * c}
    issue_after = {}; held = []
    n_ins = lambda it: 4 if item_slots(it) == 2 else 2
    for cc in range(-1, 24):
        p, c = max(cc, 0) // 8, cc % 8
        T = passes[p][1] if cc >= 0 else 0
        rel = []
        budget = (cfg.pacew if A or cfg.pacewB is None else cfg.pacewB).get(cc, cfg.pace[p] if cc >= 0 else cfg.pace0)
        if T == 2 or cc == 23:
            rel.append(cc)
            if cc > 0 and passes[(cc - 1) // 8][1] == 1: rel.append(cc - 1)
        elif cc > 0 and passes[(cc - 1) // 8][1] == 1: rel.append(cc - 1)
        held += rel; rel = []
        if cc not in cfg.skipbar: rel, held = held, []
        for r in rel:
            it = ("w", r // 8, r % 8)
            free |= set(range(slot_of[it], slot_of[it] + item_slots(it)))
            if r < 8: free |= {slot_of[("x", r)], slot_of[("x", r)] + 1}
        got = []
        while queue:
            it = queue[0]; ns = item_slots(it)
            if it in slot_of: cand = [slot_of[it]] if all(slot_of[it] + i in free for i in range(ns)) else []
            elif ns == 2: cand = [s for s in sorted(free) if s % 2 == 0 and s + 1 in free]
            else: cand = sorted(free)
            if not cand or budget < n_ins(it): break
            budget -= n_ins(it)
            slot_of[it] = cand[0]
            for i in range(ns): free.discard(cand[0] + i)
            got.append(queue.pop(0))
        issue_after[cc] = (rel, got)
    p2_issue = {}
    for n in range(36):
        free.add(slot_of[("s", n)])
        for k in range(cfg.p2pace):
            if queue and free and n >= (cfg.w2at if A or not cfg.w2atB else cfg.w2atB)(queue[0][1]):
                it = queue.pop(0); slot_of[it] = min(free); free.discard(slot_of[it]); p2_issue.setdefault(n, []).append(it)
    print(typ, "prefetched slices before P2:", 36 - sum(len(x) for x in p2_issue.values()))

    where = {}
    for g in range(1, 96):
        T = nt(g); k = g % 32
        for j in range(T):
            if T == 2: at = g - 1 if not (k == 0 and nt(g - 1) == 1 and j == 0) else g - 2
            else: at = g - 2 if not (k < 2 and nt(g - k - 1) == 2) else g - k - 1
            where.setdefault(at, []).append(("w", g, j))
        if g < 32: where.setdefault(g - 1 if not cfg.x_early else g - (1, 1, 2, 2)[g % 4], []).append(("x", g))
    for at, lst in sorted(where.items()):
        ins = []
        for it in lst:
            r = w_reads(it[1], it[2]) if it[0] == "w" else x_reads(it[1])
            if it[1] % 4 == 3:
                r[-1].tag = "rd%d_%s%d" % (it[1] // 4, it[0], it[2] if it[0] == "w" else 0)
                last_rd[it[1] // 4] = r[-1].tag
            ins += r
        b0 = step_beat[at]; nb = 2 * nt(at)
        late_x = []
        if cfg.x_early and at < 32 and at % 4 < 2:
            k0 = 6 if at % 4 == 0 else 4
            ins, late_x = ins[:k0], ins[k0:]
            for x in late_x: x.tag = None
            for i, x in enumerate(late_x): S.put(b0 + 2 + i, x)
        if cfg.rd_early and len(ins) == 6: ins = [ins[0], ins[1], ins[4], ins[5], ins[2], ins[3]]
        if cfg.rd_early:
            tg = [x.tag for x in ins if x.tag]
            if tg:
                for x in ins: x.tag = None
                ins[-1].tag = last_rd[lst[0][1] // 4]
        if cfg.one_wait and nt(at) == 2 and at + 1 in step_beat and lst[0][1] == at + 1:
            if not ins[-1].tag: ins[-1].tag = "stp%d" % at
            S.put(step_beat[at + 1], Wait(ins[-1].tag), pre=True)
        nbb = 2 if cfg.rd_early else nb
        for i, x in enumerate(ins): S.put(b0 + min(nbb - 1, i * nbb // len(ins)), x)

    extra_pre = {}
    def place_barriers():
        for cc in range(24):
            b = step_beat[bar_step[cc]]
            if cc in cfg.skipbar:
                assert cc not in extra_pre and cc not in extra_wait
                continue
            pre = []
            for r in issue_after[cc][0]: pre.append(Wait(last_rd[r]))
            if cc in extra_pre: pre.append(Wait("lgkm0"))
            if cc in extra_wait: pre.append(Wait(extra_wait[cc]))
            if cc < 23:
                nx = cc + 1
                while nx in cfg.skipbar: nx += 1
                if nx < 8: pre.append(Wait("x%d" % nx))
                pre.append(Wait("w%d_%d" % (nx // 8, nx % 8)))
            pre.append(I("s_barrier"))
            S.beats[b]["pre"] = pre + S.beats[b]["pre"]
    bb = lambda cc: step_beat[bar_step[cc]]
    for cc in range(-1, 24):
        items = []
        for it in issue_after[cc][1]: items += item_dma(it)
        if items: S.spread(items, (bb(cc) + cfg.wdelay.get(cc, 0)) if cc >= 0 else cfg.w1_from, bb(cc + 1) if cc < 23 else sl_beat[0] + 2)

    r0 = w2_reads(0)
    S.put(step_beat[95], [Wait("w2_0")] );
    for i, x in enumerate(r0): S.put(step_beat[95] + min(i // 2, 2 * nt(95) - 1), x)
    for n in range(36):
        b = sl_beat[n]
        if n + 1 < 36:
            S.put(b, Wait("w2_%d" % (n + 1)))
            for i, x in enumerate(w2_reads(n + 1)): S.put(b + i, x)
        for k, it in enumerate(p2_issue.get(n, [])): S.put(b + 2 + k, dma_w2(it[1], slot_of[it])[0])

    sp = lambda g: step_beat[g]
    sl0 = sl_beat[0]
    def after(b, cyc):
        while cyc > 0: cyc -= max(S.beats[b]["period"], S.load(b)); b += 1
        return b
    def end_of(it):
        cc = [c for c in issue_after if it in issue_after[c][1]][0]
        return bb(cc + 1)
    def start_of(it):
        cc = [c for c in issue_after if it in issue_after[c][1]][0]
        return bb(cc)
    assert start_of(("w", 1, 0)) >= sp(cfg.setup_end) and end_of(("x", 7)) < sp(28)
    for cc in range(24):
        if cc not in cfg.skipbar:
            for k in range(cfg.quiet): S.beats[bb(cc) + k]["quiet"] = True
    setup = late_setup(A)
    pro_setup = []
    if cfg.pro_setup:
        setup = flat(setup)
        mem = [x for x in setup if x.kind == "vm"]
        pro_setup = [x for x in setup if x.kind != "vm"]
        S.spread(mem, sp(cfg.clr_at), sp(cfg.clr_at + 5))
    else: S.spread(setup, sp(1), sp(cfg.setup_end), "setup")
    if cfg.wpf: S.put(sp(cfg.wpf), w_touch(cfg.wpf1, 110))
    if not A and cfg.bt2: S.put(sp(cfg.bt2), b_touch2(120, 2, 4))
    if not A and cfg.bt3: S.put(sp(cfg.bt3), b_touch2(122, 6, 1) + b_touch3(124))
    if cfg.late_g: S.put(sp(cfg.late_g), w_touch([(SG, 14), (SU, 14), (SQ, 12)], 102))
    if cfg.late_d: S.put(sp(cfg.late_d), w_touch([(SD, 14), (SO, 4)], 120) + (p3_touch(124) if cfg.late_u else []))
    if cfg.p3t: S.put(sp(cfg.p3t), p3_touch(116))
    if cfg.wpfd: S.put(sp(cfg.wpfd), w_touch([(SD, 14), (SO, 4)], XR + 1))
    extra_wait = {4: "clr"}
    S.put(bb(4), needs(L("v_mov_b32 v%d, 1\nbuffer_atomic_add v%d, v%d, %s, 0 offen" % (KVD + 1, KVD + 1, KVD, srd(SDBG))), HSA=KVD))
    S.put(sp(21), wphi_finish())
    STASH = 120 - 16
    stash_pro = []
    def stash(ins, regs, at):
        ins = flat(ins); k0 = stash.n
        for k, r in enumerate(regs):
            for x in ins:
                role = getattr(x, "role", {}).get("v%d" % r)
                if "v%d" % r in x.rd + x.wr:
                    y = I(re.sub(r"\bv%d\b" % r, "v%d" % (STASH + k0 + k), x.text)); x.text, x.rd, x.wr = y.text, y.rd, y.wr
                if role:
                    del x.role["v%d" % r]
                    mv = I("v_mov_b32 v%d, v%d" % (r, STASH + k0 + k)); mv.role = {"v%d" % r: role}; S.put(at + k // 2, mv)
        stash.n += len(regs); assert stash.n <= 16
        stash_pro.extend(ins)
    stash.n = 0
    if cfg.stash:
        stash(addr_wfull(WR2, 4, False, False), range(WR2, WR2 + 4), max(end_of(("x", 7)), sp(26)))
        stash(addr_whalf(WR3) if A else addr_wfull(WR3, 4, True, False), range(WR3, WR3 + 4), sp(31))
        if A: stash(addr_cs(False), [vCSA], sp(31) + 3)
        if A: stash(addr_p2()[-2:], [vHLD, vPOL], sp(26))
        else: stash_pro.extend(flat(addr_p2()[-2:]))
    else: S.spread((addr_whalf(WR2, TMP + 8) if A else addr_wfull(WR2, 4, True, False, TMP + 8)) if cfg.o212 else addr_wfull(WR2, 4, False, False, TMP + 8), max(end_of(("x", 7)), sp(22)), sp(30))
    S.spread(r2_table(), max(end_of(("x", 7)), sp(22)), sp(30))
    pre, adds = t_stat_add()
    S.spread(pre, sp(26), sp(28))
    cs_pub = lambda tile0: [Gap(1)] + t_cs_add(tile0, 'CSs' if A and tile0 == 0 else 'CS')
    S.spread(adds + cs_pub(0)[1:], sp(29) + 2, sp(30) + 1) if cfg.st_early else S.spread(cs_pub(0) + adds, sp(30), sp(31)); extra_pre[7] = 1
    fin, late = t_stat_fin()
    S.spread(t_cs_tot(0, TMP + 2), sp(31), sp(32))
    S.spread(fin, sp(31), sp(32))
    hs_i, hs_c = poll(XR, XR + 1, "8" if cfg.dbgout else "4", SDBG, "gt")
    if cfg.dbgout: S.put(sp(36), L("v_and_b32 v%d, 31, v%d\nv_lshlrev_b32 v%d, 2, v%d\nv_add_u32 v%d, 64, v%d" % (XR, vL, XR, XR, XR, XR)) + [hs_i])
    else: S.put(sp(cfg.hs[0]), [I("v_lshlrev_b32 v%d, 2, v%d" % (XR, vL)), hs_i])
    hs_c.gives = "hs" + typ
    S.put(sp(cfg.hs[1]), stamp("hs0") + [hs_c] + stamp("hs1"))
    if cfg.stash and cfg.w2pf and not cfg.w2B:
        stash_pro.extend(defines(L("""
        s_and_b32 s{t0}, s{tt}, 3
        s_lshl_b32 s{t0}, s{t0}, 14
        s_lshl_b32 s{t1}, s{ct}, 7
        s_add_u32 s{t0}, s{t0}, s{t1}
        v_and_b32 v{x}, 15, v{L}
        v_lshl_add_u32 v{x}, v{x}, 10, s{t0}
        s_mul_i32 s{b}, s{wv}, {w}
        """.format(t0=sT0, t1=sT1, tt=sTT, ct=sCT, x=180, L=vL, b=sPB, wv=sWV, w=448 * 1024)), TCH0=180))
        mv = I("v_mov_b32 v%d, v180" % (XR + 3)); mv.role = {"v%d" % (XR + 3): "TCH"}; S.put(sp(30) + 3, needs(mv, TCH0=180))
    TA, TW = XR + 2, (56 if cfg.w2row else 52)
    if cfg.w2row: S.put(sp(30) + 2, w2_row_addr(XR + 3, None))
    for k, (st, n0, ns) in enumerate(cfg.w2pf):
        if cfg.w2row:
            S.put(sp(st) + 2, w2_row_touch(XR + 3, (WR1 + 2, WR1 + 3)[k & 1] if st < 50 else (WGD, WGD + 1)[k & 1], n0)); continue
        assert cfg.o212 or sp(st) >= end_of(("w", 1, 7))
        if cfg.o212:
            S.put(sp(st) + 1, w2_touch(XR + 2 + (k & 1), n0, ns)); continue
        if cfg.stash and not cfg.w2B:
            sr, base, row = slice_src(n0); assert ns == 4
            S.put(sp(st) + 2, needs(L("s_add_u32 s%d, s%d, %d\nbuffer_load_dword v%d, v%d, %s, s%d offen" % (sT0, sPB if sr == SD else sWOB, row * 1024, WGD + (k & 1), XR + 3, srd(sr), sT0)), TCH=XR + 3))
            continue
        if cfg.w2B and A: continue
        S.put(sp(st) + 2, w2_touch(WGD + (k & 1), n0, ns, cfg.w2B))
    if cfg.o212:
        S.spread(addr_wfull(WR3, 4, False, False, XR) + (addr_cs(False, XR) if A else []), sp(46), sp(56))
        S.spread(addr_p2(XR)[-2:], sp(56), sp(59))
        S.spread(cs_pub(2), sp(61), sp(62)); extra_pre[15] = 1
        S.spread(t_cs_tot(2, XR), sp(62), sp(64))
        S.spread(cs_pub(4), sp(94) - 3 * cfg.st_early, sp(95) - 3 * cfg.st_early); extra_pre[23] = 1
        S.spread(t_cs_tot(4, WR2 + 1), sp(95), sl0)
        S.spread(addr_p2(WR2 + 1)[:-2], sp(72), sp(88))
        so3 = "s_mov_b32 s%d, %d" % (sT1, (20 if A else 12) * 2048)
        r3 = [[accr(2, j, b) for b in range(2)] for j in range(2)]
        if A:
            att = t_corr(SET0, 2, 0) + late + t_att_k()
            busy = {"v%d" % r for r in list(range(16)) + list(range(48, 64))}
            k1 = 1 + max(k for k, it in enumerate(att) if not isinstance(it, Gap) and any(busy & set(x.rd + x.wr) for x in flat([it])))
            S.spread(att[:k1], sp(32), sp(64) + 1, "att_k 1")
            so = "s_mov_b32 s%d, s%d" % (sT1, sH2)
            eh = S.spread(t_corr(SET1, 1, 2) + [Gap(2)] + t_hepi(SET1, so, 0, "h1"), sp(64 + cfg.a_hh), sp(64 + cfg.a_hh + 4), "hepi half")
            S.put(after(eh, cfg.fd), set_flag(1, "h1", WR2 + 3))
            e = S.spread(att[k1:], sp(64) + 1, sp(64 + cfg.a_att2), "att_k 2")
            cb = min(cc for cc in range(8, 24) if bb(cc) > e and cc not in cfg.skipbar); extra_pre[cb] = 1
            print("  kv exchange barrier chunk", cb)
            e = S.spread(t_kv_pub(), bb(cb), min(bb(cb) + cfg.a_pub, sl0), "kv_pub")
            S.put(e, stamp("kvi"))
            e = S.spread(t_corr(0, 2, 4, regs=r3) + t_hepi(96, so3, 0, None) + t_hepi(0, so3, 2048, "h2", 48), sl0, sl0 + cfg.h3, "hepi pair")
            S.put(after(e, cfg.fd), set_flag(2, "h2", vPW))
            last_task = e
        else:
            so = "s_mov_b32 s%d, 0" % sT1
            e = S.spread(t_corr(SET0, 2, 0) + late + t_hepi(SET0, so, 0, None) + t_hepi(SET0 + 32, so, 2048, "h0"), sp(32), sp(32 + cfg.b_h0), "hepi0")
            assert e < sp(64)
            S.put(after(e, cfg.fd), set_flag(1, "h0", WHD))
            S.spread(t_corr(SET1, 1, 2) + [Gap(2)] + t_att_q(SET1, 96), sp(64), sp(64 + cfg.b_att), "att_q")
            e = S.spread(t_corr(SET0, 2, 4) + t_hepi(SET0, so3, 0, None) + t_hepi(SET0 + 32, so3, 2048, "h1"), sl0, sl0 + cfg.h3, "hepi pair")
            S.put(after(e, cfg.fd), set_flag(2, "h1", WHD))
            ri, rc = t_kv_red(112 if cfg.b_rc < 0 else 0)
            li, lc = t_kv_load()
            assert cfg.b_rc < 0 or sl0 + cfg.b_ri > e
            S.spread(ri, sl0 + cfg.b_ri, sl0 + cfg.b_ri + 2)
            S.put(sl0 + cfg.b_rc, stamp("kr0") + rc + stamp("kr1"))
            assert sl0 + cfg.b_li > e
            S.spread(li, sl0 + cfg.b_li, sl0 + cfg.b_li + 4)
            S.put(sl0 + cfg.b_lc, stamp("kp0") + lc + stamp("kp1"))
            e = S.spread(t_o(SET1, 0), sl0 + cfg.b_lc, sl0 + cfg.b_lc + cfg.b_o, "o")
            S.put(after(e, cfg.fd), set_flag(3, "ost", WHD))
            last_task = e
    else:
        S.spread(cs_pub(2), sp(62) - 3 * cfg.st_early, sp(63) - 3 * cfg.st_early); extra_pre[15] = 1
        S.spread(t_cs_tot(2, XR + 2), sp(63), sp(64))
        S.spread(cs_pub(4), sp(94), sp(95)); extra_pre[23] = 1
        S.spread(t_cs_tot(4, WR2 + 1), sp(95), sl0)
        x = addr_p2(WR2 + 1)
        if not cfg.stash: S.spread(addr_p2(XR + 2)[-2:], sp(62), sp(63))
        S.spread(x[:-2], sp(76), sp(90))
        so2 = "s_mov_b32 s%d, %d" % (sT1, (16 if A else 8) * 2048)
        if A:
            if not cfg.stash: S.spread(addr_whalf(WR3, TA) + addr_cs(False, TA), sp(TW), sp(TW + (8 if TW == 52 else 4)))
            att = t_corr(SET0, 2, 0) + late + t_att_k()
            h1 = t_hepi(SET1, so2, 0, None) + t_hepi(SET1 + 32, so2, 2048, "h1")
            if cfg.h1first:
                eh = S.spread(t_corr(SET1, 2, 2) + h1, sp(64), sp(64 + cfg.h1first), "hepi1")
                S.put(after(eh, cfg.fd), set_flag(1, "h1", WR2 + 3))
            else: S.spread(t_corr(SET1, 2, 2), sp(64), sp(68))
            e = S.spread(att, sp(32), sp(32 + cfg.a_att), "att_k")
            busy = {"v%d" % r for r in list(range(16)) + list(range(48, 64))}
            later = [x for b in range(sp(64), e + 1) for x in flat(S.beats[b]["post"])]
            assert not any(x in later and busy & set(x.rd + x.wr) for x in flat(att) if isinstance(x, I)), "pass-3 accumulators still in use"
            cb = min(cc for cc in range(8, 24) if bb(cc) > e and cc not in cfg.skipbar); extra_pre[cb] = 1
            print("  kv exchange barrier chunk", cb)
            e = S.spread(t_kv_pub(), bb(cb), min(bb(cb) + cfg.a_pub, sl0), "kv_pub")
            S.put(e, stamp("kvi"))
            if not cfg.h1first:
                b0 = e + 1
                e = S.spread(h1, b0, min(b0 + cfg.a_h1, sl0 + 4), "hepi1")
                S.put(after(e, cfg.fd), set_flag(1, "h1", vPW))
            so = "s_mov_b32 s%d, s%d" % (sT1, sH2)
            S.spread(t_corr(SET0, 1, 4, 48), sl0, sl0 + 1)
            b0 = max(e, sl0 + 2)
            e = S.spread(t_hepi(SET0, so, 0, "h2", 48), b0, b0 + cfg.a_h2, "hepi2")
            S.put(after(e, cfg.fd), set_flag(2, "h2", vPW))
            last_task = e
        else:
            so = "s_mov_b32 s%d, 0" % sT1
            e = S.spread(t_corr(SET0, 2, 0) + late + t_hepi(SET0, so, 0, None) + t_hepi(SET0 + 32, so, 2048, "h0"), sp(32), sp(32 + cfg.b_h0), "hepi0")
            S.put(after(e, cfg.fd), set_flag(1, "h0", WHD))
            if not cfg.stash: S.spread(addr_wfull(WR3, 4, True, False, TA), sp(TW), sp(TW + (8 if TW == 52 else 4)))
            e = S.spread(t_corr(SET1, 2, 2) + t_hepi(SET1, so2, 0, None) + t_hepi(SET1 + 32, so2, 2048, "h1"), sp(64), sp(64 + cfg.h1), "hepi1")
            S.put(after(e, cfg.fd), set_flag(2, "h1", WHD))
            att = t_corr(SET0, 1, 4) + [Gap(1)] + t_att_q()
            ri, rc = t_kv_red()
            li, lc = t_kv_load()
            e = S.spread(att, sl0, sl0 + cfg.b_att, "att_q")
            S.spread(ri, sl0 + cfg.b_ri, sl0 + cfg.b_ri + 2)
            S.put(sl0 + cfg.b_rc, stamp("kr0") + rc + stamp("kr1"))
            S.spread(li, sl0 + cfg.b_li, sl0 + cfg.b_li + 4)
            assert e <= sl0 + cfg.b_lc
            S.put(sl0 + cfg.b_lc, stamp("kp0") + lc + stamp("kp1"))
            e = S.spread(t_o(), sl0 + cfg.b_lc, sl0 + cfg.b_lc + cfg.b_o, "o")
            S.put(after(e, cfg.fd), set_flag(3, "ost", WHD))
            last_task = e
    place_barriers()
    if cfg.walk and len(cfg.walk) > 1: S.beats[bb(cfg.walk_at)]["pre"].insert(0, walk_call(typ, 1))
    def padder(T):
        return Raw(["v_readlane_b32 s100, v%d, 0" % vSTAMP, "L_padx%s:" % typ, "s_memrealtime s[98:99]", "s_waitcnt lgkmcnt(0)", "s_sub_u32 s98, s98, s100",
                    "s_cmp_lt_u32 s98, %d" % T, "s_cbranch_scc1 L_padx%s" % typ], wr=["scc"])
    if cfg.pad_at and cfg.pad_at[0] >= 0: S.beats[sp(cfg.pad_at[0])]["pre"].insert(0, padder(cfg.pad_at[1]))
    first = FIRST
    hl = cfg.hlA if A else cfg.hlB
    for c in range(5):
        iss, chk = class_poll(c, WR2, WHD if A else WQD) if cfg.o212 else class_poll(c, (WGD, WR2)[c & 1], WGD + 1)
        pos = [sp(64 + cfg.p0) + i * cfg.hstep0 if c == 0 else sp(64 + cfg.p1) + i * cfg.hstep1 if (c == 1 and cfg.o212) else sl0 + hl[first[c] + i] for i in range(first[c + 1] - first[c])]
        S.put(pos[0] - cfg.poll_lead[c], iss)
        S.put(pos[0], stamp("cp%d_0" % c) + chk + stamp("cp%d_1" % c))
        for i, b in enumerate(pos):
            n = first[c] + i
            if b < sl0: assert b >= sp(64 + n + 1)
            assert b < sl_beat[n], (c, n)
            S.put(b, h_load(n))
    RES = TMP
    rb_ = max(last_task + 2, sl_beat[24])
    S.put(rb_, L("""
    s_lshl_b32 s{t0}, s{tt}, 2
    s_add_u32 s{t0}, s{t0}, s{wv}
    s_lshl_b32 s{t0}, s{t0}, 14
    s_lshl_b32 s{t1}, s{ct}, 7
    s_add_u32 s{t0}, s{t0}, s{t1}
    v_lshrrev_b32 v{a}, 3, v{L}
    v_lshlrev_b32 v{a}, 10, v{a}
    v_and_b32 v{b}, 7, v{L}
    v_lshl_add_u32 v{a}, v{b}, 4, v{a}
    v_add_u32 v{o}, s{t0}, v{a}
    """.format(t0=sT0, t1=sT1, tt=sTT, wv=sWV, ct=sCT, a=TMP + 8, b=TMP + 9, o=WQD - 1, L=vL)))
    vOUT = WQD - 1; vOUT_ = 6
    S.put(rb_ + 15, I("v_mov_b32 v6, v%d" % vOUT))
    S.put(rb_ + 1, L("s_mov_b32 s%d, 8192\nbuffer_load_dwordx4 %s, v%d, %s, 0 offen\nbuffer_load_dwordx4 %s, v%d, %s, s%d offen" % (sT1, vr(RES, 4), vOUT, srd(SX), vr(RES + 4, 4), vOUT, srd(SX), sT1)))
    S.spread(L("""
    v_bfe_u32 v8, v{L}, 3, 2
    v_mul_u32_u24 v8, {P}, v8
    v_and_b32 v9, 7, v{L}
    v_lshl_add_u32 v8, v9, 8, v8
    v_add_u32 v8, s{l2k}, v8
    v_lshrrev_b32 v10, 5, v{L}
    v_xor_b32 v10, v10, v9
    v_lshl_add_u32 v0, v10, 4, v8
    v_xor_b32 v11, 2, v10
    v_lshl_add_u32 v1, v11, 4, v8
    v_xor_b32 v11, 4, v10
    v_lshl_add_u32 v2, v11, 4, v8
    v_xor_b32 v11, 6, v10
    v_lshl_add_u32 v3, v11, 4, v8
    v_lshrrev_b32 v8, 3, v{L}
    v_and_b32 v10, 3, v{L}
    v_lshlrev_b32 v10, 1, v10
    v_xor_b32 v10, v10, v8
    v_bfe_u32 v11, v{L}, 2, 1
    v_lshlrev_b32 v11, 7, v11
    v_lshl_add_u32 v11, v8, 8, v11
    v_mov_b32 v9, s{wv}
    v_mul_u32_u24 v9, {P2}, v9
    v_add_u32 v11, v11, v9
    v_lshl_add_u32 v4, v10, 4, v11
    v_xor_b32 v10, 1, v10
    v_lshl_add_u32 v5, v10, 4, v11
    """.format(L=vL, P=PITCH, P2=2 * PITCH, l2k=sL2K, wv=sWV)), rb_ + 2, rb_ + 14)
    if cfg.stamps == 2:
        pts = [("b%d" % cc, bb(cc)) for cc in range(24)] + [("s%d" % n, sl_beat[n]) for n in range(0, 37) if n not in (34, 35)]
        prev = ("iss", 0)
        for k, (nm, b) in enumerate(pts):
            for x in (prev[0], nm):
                if x not in stamp_names: stamp_names.append(x)
            cur = sST + 2 * ((k + 1) & 1); old = sST + 2 * (k & 1)
            rd = I("v_writelane_b32 v%d, s%d, %d" % (vSTAMP, old, stamp_names.index(prev[0]) + 2))
            mt = I("s_memtime s[%d:%d]" % (cur, cur + 1))
            if nm[0] == "b" and int(nm[1:]) not in cfg.skipbar:
                pre = S.beats[b]["pre"]; pre.insert(len(pre) - 1, rd); pre.append(mt)
            else: S.beats[b]["pre"] = [rd, mt] + S.beats[b]["pre"]
            prev = (nm, b)
        last_stamp = I("v_writelane_b32 v%d, s%d, %d" % (vSTAMP, cur, stamp_names.index(prev[0]) + 2))
    if cfg.stamps == 3:
        lane = 2
        fine = []
        for cc in range(cfg.fine0, cfg.fine0 + 8):
            b0_, b1_ = bb(cc), bb(cc + 1)
            pts = [b0_ + (b1_ - b0_) * k // 7 for k in range(7)]
            rd = []
            for k, b in enumerate(pts):
                pr = ((40, 42, 86, 88, 90, 98, 100) if cfg.fine0 >= 8 else (40, 42, 32, 24, 20, 98, 100))[k]
                mt = I("s_memtime s[%d:%d]" % (pr, pr + 1))
                S.beats[b]["pre"].append(mt)
                rd.append(I("v_writelane_b32 v%d, s%d, %d" % (vSTAMP, pr, lane))); lane += 1
                fine.append(mt)
            pre = S.beats[b1_]["pre"]
            k = [i for i, x in enumerate(pre) if getattr(x, "kind", "") == "barrier"][0]
            S.beats[b1_]["pre"] = pre[:k] + rd + pre[k:]
        if "f0" not in stamp_names: stamp_names.extend("f%d" % k for k in range(56))
    if cfg.stamps == True:
        for nm, b in (("p1", sp(32)), ("p2", sp(64)), ("p3", sl_beat[0]), ("s8", sl_beat[8]), ("s16", sl_beat[16]), ("s20", sl_beat[20]), ("s28", sl_beat[28]), ("s36", sl_beat[36]),
                      ("c1", sp(4)), ("c2", sp(8)), ("c4", sp(16))):
            S.put(b, stamp(nm), pre=True)

    pro = entry_x(item_dma)
    n_common = len(pro)
    if A:
        pro += L("s_lshl_b32 s{t0}, s{i}, 7\ns_add_u32 s{t0}, s{t0}, 1024".format(t0=sT0, i=sI))
        pro += wdma_addr(WQD, 3072, sT0)
    else:
        pro += L("s_mul_i32 s{t0}, s{q}, 896\ns_lshl_b32 s{t1}, s{ab}, 7\ns_add_u32 s{t0}, s{t0}, s{t1}".format(t0=sT0, t1=sT1, q=sQ, ab=sAB))
        pro += wdma_addr(WGD, 3584, sT0)
    pro += flat(item_dma(("w", 0, 0))) + stamp("iw0")
    pro += entry_rest()
    order = cfg.order if A or not cfg.orderB else cfg.orderB
    for k, w in enumerate(order):
        if w in "123": pro += flat(item_dma(("x", int(w)))) + flat(item_dma(("w", 0, int(w))))
        elif w == "p": pro += p1_touch(112)
        elif w == "g": pro += w_touch([(SG, 14), (SU, 14), (SQ, 12)], 102)
        elif w == "d": pro += w_touch([(SD, 14), (SO, 4)], 108)
        elif w == "r": pro += L("".join(rot_regs(c) for c in range(cfg.npro, 8)))
        elif w == "W": pro += [walk_call(typ, 0)]
        elif w == "L": pro += [l2_walk(typ)]
        elif w == "i": pro += b_index()
        elif w == "P": pro += b_touch1(104)
        elif w == "G": pro += b_touch2(120, 2, 4)
        elif w == "u": pro += p3_touch(116)
        elif w == "t": pro += tlb_touch(120)
        elif w == "f": pro += wphi_setup(A)
        elif w == "c": pro += code_touch()
        elif w == "C": pro += code_touch(typ)
        elif w == "s": pro += early_setup() + flat(addr_wfull(WR1, 2, A, A))
        elif w == "j": pro += [I("s_branch L_main%s" % typ), I("L_main%s:" % typ)]
    pro += pro_setup + stash_pro
    assert cfg.npro == 1 + sum(w in "123" for w in order)
    pro += stamp("iss")
    if cfg.stamps == 2: pro += [I("s_memtime s[%d:%d]" % (sST, sST + 1))]
    if cfg.pad_at and cfg.pad_at[0] == -1: pro += [padder(cfg.pad_at[1])]
    pro += [Wait("x0"), Wait("w0_0"), I("s_barrier")]
    pro += stamp("data")
    pro += x_reads(0) + w_reads(0, 0) + w_reads(0, 1)

    RF = (208 if cfg.o212 else 96) if A else 64
    unp = []
    for k in range(8): unp += L("v_lshlrev_b32 v%d, 16, v%d\nv_and_b32 v%d, 0xffff0000, v%d" % (RF + 2 * k, RES + k, RF + 2 * k + 1, RES + k))
    S.spread(unp, sl_beat[31], sl_beat[34])
    tail = []
    wr = lambda tb, cb: [I("ds_write_b128 v%d, %s offset:%d" % (r4, vr(ACC2[2 * cb + tb] + 4 * r4, 4), 128 * cb + 4 * PITCH * tb)) for r4 in range(4)]
    if cfg.qmajor:
        ms = [S.beats[b]["main"] for b in range(sl_beat[34], sl_beat[36])]
        for k, q in enumerate((0, 4, 2, 6, 1, 5, 3, 7)): S.beats[sl_beat[34] + k]["main"] = ms[q]
        for k in range(1, 4): S.beats[sl_beat[34]]["post"] += S.beats[sl_beat[34] + k]["post"]; S.beats[sl_beat[34] + k]["post"] = []
        S.beats[sl_beat[34]]["pre"] += S.beats[sl_beat[34]]["post"]; S.beats[sl_beat[34]]["post"] = []
        w = wr(0, 0) + wr(0, 1) + wr(1, 0)
        for k, b in enumerate((4, 4, 5, 5, 5, 6, 6, 7)): S.put(sl_beat[34] + b, w[k])
        tail += w[8:] + wr(1, 1)
    else: tail += wr(0, 0) + wr(0, 1) + wr(1, 0) + wr(1, 1)
    tail += [Wait("lgkm0"), I("s_barrier")]
    RD = 128
    for i in range(2):
        for e in range(2):
            for w in range(4):
                tail += L("ds_read_b128 %s, v%d offset:%d" % (vr(RD + 32 * i + 16 * e + 4 * w, 4), 4 + e, 2048 * w + PITCH * i))
    pk = lambda d, a, b: I("v_pk_add_f32 %s, %s, %s" % (vr(d, 2), vr(a, 2), vr(b, 2)))
    for i in range(2):
        for e in range(2):
            b = RD + 32 * i + 16 * e; r = RF + 8 * i + 4 * e
            tail += [pk(r, r, b), pk(r + 2, r + 2, b + 2), pk(b + 4, b + 4, b + 8), pk(b + 6, b + 6, b + 10), pk(r, r, b + 12), pk(r + 2, r + 2, b + 14),
                     pk(r, r, b + 4), pk(r + 2, r + 2, b + 6)]
            tail += L("v_cvt_pk_bf16_f32 v%d, v%d, v%d\nv_cvt_pk_bf16_f32 v%d, v%d, v%d" % (8 + 4 * i + 2 * e, r, r + 1, 9 + 4 * i + 2 * e, r + 2, r + 3))
        tail += L("s_mov_b32 s%d, %d\nbuffer_store_dwordx4 %s, v%d, %s, s%d offen" % (sT1, 8192 * i, vr(8 + 4 * i, 4), vOUT_, srd(SOUT), sT1) + cfg.outfl)
    if cfg.stamps:
        tail += stamp("end")
        if cfg.stamps == 4: tail += L("s_getpc_b64 s[56:57]\nv_writelane_b32 v%d, s56, 3\nv_writelane_b32 v%d, s57, 4" % (vSTAMP, vSTAMP))
        if cfg.stamps == 4: tail += [I("s_memtime s[%d:%d]" % (sST, sST + 1)), I("v_writelane_b32 v%d, s%d, 2" % (vSTAMP, sST))]
        if cfg.stamps == 2:
            if "end" not in stamp_names: stamp_names.append("end")
            tail += [last_stamp, I("s_memtime s[%d:%d]" % (sST, sST + 1)), I("v_writelane_b32 v%d, s%d, %d" % (vSTAMP, sST, stamp_names.index("end") + 2))]
        tail += L("""
        s_memrealtime s[{a}:{b}]
        v_writelane_b32 v{st}, s{a}, 1
        s_lshl_b32 s{t0}, s2, 2
        s_add_u32 s{t0}, s{t0}, s{wv}
        s_lshl_b32 s{t0}, s{t0}, 8
        s_add_u32 s{t0}, s{t0}, {o}
        v_lshl_add_u32 v0, v{L}, 2, s{t0}
        buffer_store_dword v{st}, v0, {sr}, 0 offen
        """.format(a=sST, b=sST + 1, st=vSTAMP, t0=sT0, wv=sWV, o=WS_ST, L=vL, sr=srd(SW)))
    if cfg.dbgout:
        ix = lambda n: stamp_names.index(n) + 2
        t = """
        v_readlane_b32 s56, v{st}, 0
        v_readlane_b32 s57, v{st}, 1
        v_readlane_b32 s58, v{st}, {iss}
        s_nop 4
        v_mov_b32 v2, {oob}
        v_mov_b32 v1, 0
        v_writelane_b32 v2, 32, 0
        v_writelane_b32 v2, 40, 1
        v_writelane_b32 v2, 36, 2
        v_writelane_b32 v1, s57, 0
        v_writelane_b32 v1, s56, 1
        s_not_b32 s59, s56
        v_writelane_b32 v1, s59, 2
        buffer_atomic_umax v1, v2, {sd}, 0 offen
        s_sub_u32 s57, s57, s56
        v_mov_b32 v3, 0
        v_writelane_b32 v3, s57, 0
        """.format(st=vSTAMP, iss=ix("iss"), oob=OOB, sd=srd(SDBG))
        for k, nm in enumerate(("b0", "b3", "b7", "b15", "s0", "s28", "end")):
            t += "v_readlane_b32 s59, v%d, %d\ns_nop 4\ns_sub_u32 s59, s59, s58\nv_writelane_b32 v3, s59, %d\n" % (vSTAMP, ix(nm), k + 1)
        t += """
        v_lshlrev_b32 v2, 2, v{L}
        v_mov_b32 v4, {oob}
        v_cmp_gt_u32 vcc, 8, v{L}
        v_cndmask_b32 v2, v4, v2, vcc
        s_or_b32 s59, s2, s{wv}
        s_cmp_eq_u32 s59, 0
        s_cselect_b32 s59, 0, {oob}
        buffer_store_dword v3, v2, {sd}, s59 offen
        """.format(L=vL, oob=OOB, wv=sWV, sd=srd(SDBG))
        tail += L(t)
    if cfg.padto:
        tail.append(Raw(["v_readlane_b32 s56, v%d, 0" % vSTAMP, "L_pad%s:" % typ, "s_memrealtime s[58:59]", "s_waitcnt lgkmcnt(0)", "s_sub_u32 s58, s58, s56",
                         "s_cmp_lt_u32 s58, %d" % cfg.padto, "s_cbranch_scc1 L_pad%s" % typ]))
    tail += L("s_endpgm")
    est = sum(max(bt["period"], S.load(i)) for i, bt in enumerate(S.beats[:sl_beat[0]]))
    print("  P1 issue-model cycles:", est, " P2:", sum(max(32, S.load(i)) for i in range(sl_beat[0], sl_beat[36])))
    return n_common, pro + S.flat() + tail

def code_touch(typ=None):
    ins = L("""
    s_getpc_b64 s[{a}:{b}]
    {far}
    s_bfe_u32 s{t0}, s2, 0x40003
    s_lshl_b32 s{t0}, s{t0}, 2
    s_add_u32 s{t0}, s{t0}, s{wv}
    s_lshl_b32 s{t0}, s{t0}, 9
    v_and_b32 v{x}, 3, v{L}
    v_lshl_add_u32 v{x}, v{x}, 7, s{t0}
    v_min_u32 v{x}, {lim}, v{x}
    global_load_dword v{y}, v{x}, s[{a}:{b}]
    """.format(a=sM1, b=sM1 + 1, t0=sT0, wv=sWV, x=76, y=77, L=vL, lim="L_end%s-L_main%s-4" % (typ, typ),
               far=("L_pc%s:\ns_add_u32 s%d, s%d, L_main%s-L_pc%s\ns_addc_u32 s%d, s%d, 0" % (typ, sM1, sM1, typ, typ, sM1 + 1, sM1 + 1)) if typ else ""))
    return ins

def w_touch(which, d0):
    s = "s_lshl_b32 s{t0}, s2, 2\ns_add_u32 s{t0}, s{t0}, s{wv}\n".format(t0=sT0, wv=sWV)
    last = None
    for k, (sr, n) in enumerate(which):
        if n != last:
            s += "s_mul_i32 s{t1}, s{t0}, {b}\nv_min_u32 v{a}, {m}, v{L}\nv_lshl_add_u32 v{a}, v{a}, 7, s{t1}\n".format(t0=sT0, t1=sT1, b=128 * n, a=d0, m=n - 1, L=vL)
            last = n
        s += "buffer_load_dword v%d, v%d, %s, 0 offen\n" % (d0 + 1 + k, d0, srd(sr))
    return L(s)

def tlb_touch(d0):
    s = "v_and_b32 v{a}, 15, v{L}\nv_lshlrev_b32 v{a}, 20, v{a}\nv_add_u32 v{a}, 0x7ff00, v{a}\n".format(a=d0, L=vL)
    for k, sr in enumerate((SD, SO, SW, SOUT, SG, SU, SQ)):
        s += "buffer_load_dword v%d, v%d, %s, 0 offen\n" % (d0 + 1 + k, d0, srd(sr))
    return L(s)

def p3_touch(d0):
    return L("""
    s_lshl_b32 s{t0}, s2, 2
    s_add_u32 s{t0}, s{t0}, s{wv}
    s_lshr_b32 s{t1}, s{t0}, 1
    s_and_b32 s{t0}, s{t0}, 1
    v_and_b32 v{b}, 3, v{L}
    v_lshl_add_u32 v{b}, s{t0}, 2, v{b}
    v_and_b32 v{c}, 1, v{L}
    v_lshl_add_u32 v{c}, s{t0}, 1, v{c}
    s_mul_i32 s{t0}, s{t1}, 3072
    v_lshl_add_u32 v{b}, v{b}, 7, s{t0}
    buffer_load_dword v{b}, v{b}, {q}, 0 offen
    s_mul_i32 s{t0}, s{t1}, 3584
    s_add_u32 s{t0}, s{t0}, {uo}
    v_mul_u32_u24 v{c}, 896, v{c}
    v_add_u32 v{c}, s{t0}, v{c}
    buffer_load_dword v{r2}, v{c}, {g}, 0 offen
    buffer_load_dword v{c}, v{c}, {u}, 0 offen
    """.format(t0=sT0, t1=sT1, wv=sWV, L=vL, b=d0, c=d0 + 1, r2=d0 + 2, q=srd(SQ), g=srd(SG), u=srd(SU), uo=256 if cfg.o212 else 768))

sWB = sH2
def b_index():
    return L("""
    s_and_b32 s{t0}, s2, 7
    s_lshl_b32 s{t0}, s{t0}, 4
    s_bfe_u32 s{t1}, s2, 0x40003
    s_add_u32 s{t0}, s{t0}, s{t1}
    s_lshl_b32 s{t0}, s{t0}, 2
    s_add_u32 s{w}, s{t0}, s{wv}
    """.format(t0=sT0, t1=sT1, w=sWB, wv=sWV))

def b_touch1(d0):
    a, b, c = d0, d0 + 1, d0 + 2
    ins = L("""
    v_bfe_u32 v{a}, v{L}, 1, 2
    v_lshlrev_b32 v{a}, 10, v{a}
    v_and_b32 v{c}, 1, v{L}
    v_lshl_add_u32 v{a}, v{c}, 7, v{a}
    s_lshl_b32 s{t0}, s{w}, 12
    v_add_u32 v{a}, s{t0}, v{a}
    s_lshr_b32 s{t0}, s{w}, 2
    s_and_b32 s{t1}, s{w}, 3
    v_and_b32 v{b}, 3, v{L}
    v_lshl_add_u32 v{b}, s{t1}, 2, v{b}
    s_mul_i32 s{t1}, s{t1}, 896
    v_lshl_add_u32 v{c}, v{c}, 7, s{t1}
    s_mul_i32 s{t1}, s{t0}, 3072
    s_add_u32 s{t1}, s{t1}, 1024
    v_lshl_add_u32 v{b}, v{b}, 7, s{t1}
    s_mul_i32 s{t1}, s{t0}, 3584
    v_add_u32 v{c}, s{t1}, v{c}
    """.format(a=a, b=b, c=c, L=vL, t0=sT0, t1=sT1, w=sWB))
    r = d0 + 3
    for g in range(1, 4):
        ins += L("buffer_load_dword v%d, v%d, %s, 0 offen offset:%d" % (r, a, srd(SX), 256 * g)); r += 1
        ins += L("s_mov_b32 s%d, %d\nbuffer_load_dword v%d, v%d, %s, s%d offen" % (sT0, 128 * 3072 * g, r, b, srd(SQ), sT0)); r += 1
        ins += L("s_mov_b32 s%d, %d\nbuffer_load_dword v%d, v%d, %s, s%d offen\nbuffer_load_dword v%d, v%d, %s, s%d offen" % (sT0, 128 * 3584 * g, r, c, srd(SG), sT0, r + 1, c, srd(SU), sT0)); r += 2
    return ins

def b_touch2(d0, u0, nu):
    a, b = d0, d0 + 1
    return L("""
    v_and_b32 v{a}, 3, v{L}
    v_mul_u32_u24 v{a}, 896, v{a}
    v_lshrrev_b32 v{b}, 2, v{L}
    v_min_u32 v{b}, {m}, v{b}
    v_lshl_add_u32 v{a}, v{b}, 7, v{a}
    s_mul_i32 s{t0}, s{w}, 3584
    s_add_u32 s{t0}, s{t0}, {o}
    buffer_load_dword v{b}, v{a}, {g}, s{t0} offen
    buffer_load_dword v{a}, v{a}, {u}, s{t0} offen
    """.format(a=a, b=b, L=vL, m=nu - 1, t0=sT0, w=sWB, o=128 * u0, g=srd(SG), u=srd(SU)))

def b_touch3(d0):
    a = d0
    return L("""
    v_min_u32 v{a}, 7, v{L}
    v_lshlrev_b32 v{a}, 7, v{a}
    s_mul_i32 s{t0}, s{w}, 3072
    s_lshl_b32 s{t1}, s{w}, 10
    buffer_load_dword v{r0}, v{a}, {q}, s{t0} offen
    buffer_load_dword v{r1}, v{a}, {o}, s{t1} offen
    v_min_u32 v{a}, 27, v{L}
    v_lshlrev_b32 v{a}, 7, v{a}
    s_mul_i32 s{t0}, s{w}, 3584
    buffer_load_dword v{a}, v{a}, {d}, s{t0} offen
    """.format(a=a, r0=a + 1, r1=a + 2, L=vL, t0=sT0, t1=sT1, w=sWB, q=srd(SQ), o=srd(SO), d=srd(SD)))

def p1_touch(d0):
    return L("""
    s_lshl_b32 s{t0}, s2, 2
    s_add_u32 s{t0}, s{t0}, s{wv}
    s_lshl_b32 s{t1}, s{t0}, 11
    v_and_b32 v{a}, 15, v{L}
    v_lshl_add_u32 v{a}, v{a}, 7, s{t1}
    buffer_load_dword v{r0}, v{a}, {x}, 0 offen
    s_lshr_b32 s{t1}, s{t0}, 1
    s_and_b32 s{t0}, s{t0}, 1
    s_mul_i32 s{sp}, s{t1}, 3072
    s_lshl_b32 s{m}, s{t0}, 10
    s_add_u32 s{sp}, s{sp}, s{m}
    s_add_u32 s{sp}, s{sp}, 1024
    v_and_b32 v{b}, 7, v{L}
    v_lshl_add_u32 v{b}, v{b}, 7, s{sp}
    buffer_load_dword v{r1}, v{b}, {q}, 0 offen
    s_mul_i32 s{sp}, s{t1}, 3584
    s_mul_i32 s{m}, s{t0}, 1792
    s_add_u32 s{sp}, s{sp}, s{m}
    v_bfe_u32 v{c}, v{L}, 1, 1
    v_mul_u32_u24 v{c}, 896, v{c}
    v_and_b32 v{d}, 1, v{L}
    v_lshl_add_u32 v{c}, v{d}, 8, v{c}
    v_add_u32 v{c}, s{sp}, v{c}
    buffer_load_dword v{r2}, v{c}, {g}, 0 offen
    buffer_load_dword v{r3}, v{c}, {u}, 0 offen
    """.format(t0=sT0, t1=sT1, sp=sH2, m=sM2, wv=sWV, L=vL, a=d0, b=d0 + 1, c=d0 + 2, d=d0 + 3, r0=d0 + 4, r1=d0 + 5, r2=d0 + 6, r3=d0 + 7,
               x=srd(SX), q=srd(SQ), g=srd(SG), u=srd(SU)))

def w2_row_addr(d, t):
    return defines(L("""
    s_lshr_b32 s{t0}, s2, 3
    s_lshl_b32 s{t0}, s{t0}, 11
    v_and_b32 v{d}, 15, v{L}
    v_lshl_add_u32 v{d}, v{d}, 7, s{t0}
    s_mul_i32 s{b}, s{wv}, {w}
    """.format(t0=sT0, d=d, L=vL, b=sPB, wv=sWV, w=448 * 1024)), TCH=d)

def w2_row_touch(d, res, n0):
    sr, base, row = slice_src(n0)
    return needs(L("s_add_u32 s%d, s%d, %d\nbuffer_load_dword v%d, v%d, %s, s%d offen" % (sT0, sPB if sr == SD else sWOB, row * 1024, res, d, srd(sr), sT0)), TCH=d)

def w2_touch(t, n0, ns, both=False):
    sr, base, row = slice_src(n0)
    nr = 4 * ns
    return L("""
    s_and_b32 s{t0}, s{tt}, 3
    s_mul_i32 s{t1}, s{t0}, {a}
    s_mul_i32 s{t0}, s{wv}, {wb}
    s_add_u32 s{t1}, s{t1}, s{t0}
    s_lshl_b32 s{t0}, s{ct}, 7
    s_add_u32 s{t1}, s{t1}, s{t0}
    s_add_u32 s{t1}, s{t1}, {b}
    {lane}
    buffer_load_dword v{x}, v{x}, {d}, 0 offen
    """.format(lane=("v_min_u32 v{x}, {m}, v{L}\nv_lshl_add_u32 v{x}, v{x}, 10, s{t1}" if not both else
                     "v_lshrrev_b32 v{x}, 1, v{L}\nv_min_u32 v{x}, {m}, v{x}\nv_lshl_add_u32 v{x}, v{x}, 10, s{t1}\nv_and_b32 v{y}, 1, v{L}\nv_lshlrev_b32 v{y}, 9, v{y}\nv_sub_u32 v{x}, v{x}, v{y}"
                     ).format(x=t, y=WHD, m=nr - 1, L=vL, t1=sT1), t0=sT0, t1=sT1, tt=sTT, ct=sCT, wv=sWV, wb=(448 if sr == SD else 128) * 1024, a=nr * 1024, b=row * 1024, x=t, m=nr - 1, L=vL, d=srd(sr)))

def flat(x):
    o = []
    for y in x: o += y if isinstance(y, list) else [y]
    return o

def groups(ins):
    out = []; cur = []
    tmp = {"s%d" % sT0, "s%d" % sT1, "vcc", "scc"}
    for k, x in enumerate(ins):
        cur.append(x)
        live = set()
        written = {r for y in ins[:k + 1] for r in y.wr} & tmp
        seen = set()
        for y in ins[k + 1:]:
            live |= (set(y.rd) & written) - seen
            seen |= set(y.wr)
        if not live: out.append(cur); cur = []
    if cur: out.append(cur)
    return out

def late_setup(A):
    ins = []
    if A:
        ins += L("s_mul_i32 s{t0}, s{q}, 896\ns_lshl_b32 s{t1}, s{ab}, 7\ns_add_u32 s{t0}, s{t0}, s{t1}\ns_add_u32 s{t0}, s{t0}, {o}".format(t0=sT0, t1=sT1, q=sQ, ab=sAB, o=640 if cfg.o212 else 512))
        ins += wdma_addr(WGD, 3584, sT0)
    ins += clear_store(A) + common_setup() + flat(addr_cs(A))
    if A:
        ins += L("""
        v_lshrrev_b32 v{a}, 2, v{L}
        v_mul_u32_u24 v{a}, 3584, v{a}
        v_and_b32 v{b}, 3, v{L}
        v_lshl_add_u32 v{a}, v{b}, 4, v{a}
        s_mul_i32 s{t0}, s{q}, 896
        s_lshl_b32 s{t1}, s{ab}, 6
        s_add_u32 s{t0}, s{t0}, s{t1}
        s_add_u32 s{t0}, s{t0}, {ho}
        s_mul_i32 s{t1}, s{wv}, {w}
        s_add_u32 s{t0}, s{t0}, s{t1}
        v_add_u32 v{d}, s{t0}, v{a}
        s_lshl_b32 s{t0}, s{ab}, 1
        s_add_u32 s{t0}, s{t0}, s{gr}
        s_sub_u32 s{h2}, {hn}, s{t0}
        s_lshl_b32 s{h2}, s{h2}, 11
        """.format(t0=sT0, t1=sT1, q=sQ, ab=sAB, wv=sWV, gr=sGR, w=16 * 3584, a=TMP, b=TMP + 1, d=WHD, L=vL, h2=sH2, ho=256 if cfg.o212 else 768, hn=8 if cfg.o212 else 24))
        ins += att_setup()
    else:
        ins += L("s_lshl_b32 s{t0}, s{i}, 7".format(t0=sT0, i=sI))
        ins += wdma_addr(WQD, 3072, sT0)
        ins += o_setup()
    defines(ins, FLG=vFLG, HST=vHST, W2D=(W2D, W2D + 1), Z=(CA + 2, CA + 3), HSA=KVD)
    if A: defines(ins, WHD=WHD, KVA=vKVA, PW=vPW, PR=vPR, VW=vVW, VR0=vVR0, VR1=vVR1)
    else: defines(ins, KRL=vKRL, KRS=vKRS, KVL=vKVL)
    return groups(ins)

def wdma_addr(dst, stride, scol):
    return defines(L("""
    s_mul_i32 s{t1}, s{wv}, {w}
    s_add_u32 s{t1}, s{t1}, s{c}
    v_lshrrev_b32 v{a}, 3, v{L}
    v_mul_u32_u24 v{a}, {st}, v{a}
    v_bfe_u32 v{b}, v{L}, 4, 1
    v_lshlrev_b32 v{b}, 2, v{b}
    v_xor_b32 v{b}, v{b}, v{L}
    v_and_b32 v{b}, 7, v{b}
    v_lshl_add_u32 v{a}, v{b}, 4, v{a}
    v_add_u32 v{d}, s{t1}, v{a}
    v_add_u32 v{d1}, {nx}, v{d}
    """.format(t1=sT1, wv=sWV, w=16 * stride, c=scol, a=TMP, b=TMP + 1, L=vL, st=stride, d=dst, d1=dst + 1, nx=8 * stride - 1024)), **{'WQD' if dst == WQD else 'WGD': (dst, dst + 1)})

def clear_store(A):
    z = 96
    s = """
    s_lshl_b32 s{t0}, s{rb}, 1
    s_add_u32 s{t0}, s{t0}, s{th}
    s_lshl_b32 s{t1}, s{t0}, 2
    s_add_u32 s{t1}, s{t1}, s{q}
    s_lshl_b32 s{t1}, s{t1}, 4
    s_add_u32 s{t1}, s{t1}, s{t4}
    s_lshl_b32 s{t1}, s{t1}, 1
    s_add_u32 s{t1}, s{t1}, s{gr}
    s_lshl_b32 s{t1}, s{t1}, 2
    s_add_u32 s{t1}, s{t1}, {fl}
    v_mov_b32 v{f}, {oob}
    v_writelane_b32 v{f}, s{t1}, 0
    v_mov_b32 v{z}, 0
    buffer_store_dword v{z}, v{f}, {sr}, 0 offen sc1
    s_lshl_b32 s{t0}, s{i}, 2
    s_lshl_b32 s{t1}, s{gr}, 1
    s_add_u32 s{t0}, s{t0}, s{t1}
    s_add_u32 s{t0}, s{t0}, s{th}
    """.format(t0=sT0, t1=sT1, rb=sRB, th=sTH, q=sQ, t4=sT4, gr=sGR, fl=WS_FL, f=vFLG, oob=OOB, z=z, sr=srd(SW), i=sI)
    if A:
        s += """
        s_lshl_b32 s{t0}, s{t0}, 4
        s_add_u32 s{t0}, s{t0}, s{rb}
        s_mul_i32 s{t0}, s{t0}, 2176
        s_add_u32 s{t0}, s{t0}, {kvp}
        """.format(t0=sT0, rb=sRB, kvp=WS_KVP) + kv_lane(vKVA, True)
        z += 2
        for j in range(4): s += "v_mov_b32 v%d, -1\n" % (z + j)
        ins = L(s)
        for j in range(4): ins += L("buffer_store_dwordx4 %s, v%d, %s, 0 offen offset:%d sc1" % (vr(z, 4), vKVA, srd(SW), 544 * j), tag="clr" if j == 3 else None)
        return ins
    s += """
    s_mul_i32 s{t1}, s{t0}, 34816
    s_mul_i32 s{t0}, s{t0}, 2176
    s_add_u32 s{t0}, s{t0}, {kvf}
    s_add_u32 s{t1}, s{t1}, {kvp}
    v_and_b32 v{a}, 15, v{L}
    v_lshl_add_u32 v{a}, s{rb}, 4, v{a}
    v_cmp_gt_u32 vcc, 0x88, v{a}
    v_lshlrev_b32 v{a}, 4, v{a}
    v_mov_b32 v{b}, {oob}
    v_cndmask_b32 v{a}, v{b}, v{a}, vcc
    v_lshrrev_b32 v{b}, 4, v{L}
    v_lshl_add_u32 v{rs}, v{b}, 2, v{a}
    v_add_u32 v{rs}, s{t0}, v{rs}
    v_mul_u32_u24 v{b}, 2176, v{b}
    v_add3_u32 v{rl}, v{b}, v{a}, s{t1}
    v_mov_b32 v{z}, -1
    """.format(t0=sT0, t1=sT1, rb=sRB, kvf=WS_KVF, kvp=WS_KVP, a=TMP, b=TMP + 1, L=vL, rs=vKRS, rl=vKRL, z=z + 1, oob=OOB)
    return L(s) + L("buffer_store_dword v%d, v%d, %s, 0 offen sc1" % (z + 1, vKRS, srd(SW)), tag="clr")

def kv_lane(dst, mask):
    a, b, c = TMP, TMP + 1, TMP + 2
    s = """
    v_and_b32 v{a}, 31, v{L}
    v_lshrrev_b32 v{b}, 5, v{L}
    v_lshl_add_u32 v{c}, v{b}, 4, v{a}
    v_add_u32 v{b}, 32, v{b}
    v_cmp_gt_u32 vcc, 16, v{a}
    v_cndmask_b32 v{c}, v{b}, v{c}, vcc
    v_lshl_add_u32 v{d}, v{c}, 4, s{t0}
    """.format(a=a, b=b, c=c, L=vL, d=dst, t0=sT0)
    if mask: s += "v_mov_b32 v{b}, {oob}\nv_cmp_gt_u32 vcc, 17, v{a}\nv_cndmask_b32 v{d}, v{b}, v{d}, vcc\n".format(a=a, b=b, d=dst, oob=OOB)
    return s

def early_setup():
    a, b, c = TMP, TMP + 1, TMP + 2
    s = """
    v_lshrrev_b32 v{a}, 5, v{L}
    v_bfe_u32 v{b}, v{L}, 1, 3
    v_xor_b32 v{a}, v{a}, v{b}
    v_lshlrev_b32 v{a}, 4, v{a}
    v_and_b32 v{b}, 31, v{L}
    v_lshl_add_u32 v{a}, v{b}, 7, v{a}
    s_lshl_b32 s{t0}, s{s}, 6
    v_xor_b32 v{a}, s{t0}, v{a}
    s_mul_i32 s{t1}, s{th}, {P}
    v_add_u32 v{x0}, s{t1}, v{a}
    v_xor_b32 v{b}, 32, v{a}
    v_add_u32 v{x1}, s{t1}, v{b}
    v_xor_b32 v{b}, 64, v{a}
    v_add_u32 v{x2}, s{t1}, v{b}
    v_xor_b32 v{b}, 0x60, v{a}
    v_add_u32 v{x3}, s{t1}, v{b}
    v_and_b32 v{a}, 31, v{L}
    v_mov_b32 v{b}, 0x3f803f80
    v_cmp_eq_u32 vcc, 0, v{a}
    v_cndmask_b32 v{s0}, 0, v{b}, vcc
    v_cmp_eq_u32 vcc, 20, v{a}
    v_cndmask_b32 v{s0}, v{s0}, v{b}, vcc
    v_cmp_eq_u32 vcc, 8, v{a}
    v_cndmask_b32 v{s2}, 0, v{b}, vcc
    v_cmp_eq_u32 vcc, 28, v{a}
    v_cndmask_b32 v{s2}, v{s2}, v{b}, vcc
    """.format(a=a, b=b, L=vL, t0=sT0, t1=sT1, s=sS, th=sTH, P=PITCH, x0=XR, x1=XR + 1, x2=XR + 2, x3=XR + 3, s0=SEL01, s2=SEL23)
    for j in range(1, 4): s += "v_mov_b32 v%d, v%d\nv_mov_b32 v%d, v%d\n" % (SEL01 + j, SEL01, SEL23 + j, SEL23)
    return defines(L(s), XR=range(XR, XR + 4))

def common_setup():
    a, b, c = TMP, TMP + 1, TMP + 2
    s = "s_mov_b32 s%d, 0\ns_mov_b32 s%d, -1\nv_mov_b32 v%d, 0\nv_mov_b32 v%d, 0\n" % (sMH, sMH + 1, CA + 2, CA + 3)
    s += """
    v_and_b32 v{a}, 3, v{L}
    v_cmp_eq_u32 s[{m1}:{m1b}], 1, v{a}
    v_cmp_eq_u32 s[{m2}:{m2b}], 2, v{a}
    v_cmp_eq_u32 s[{m3}:{m3b}], 3, v{a}
    v_and_b32 v{a}, 4, v{L}
    v_cmp_eq_u32 s[{mb}:{mbb}], 4, v{a}
    s_mul_i32 s{wd}, s{wv}, {wdv}
    s_lshl_b32 s{wo}, s{wv}, 17
    s_mov_b32 s{c2}, 0x3b000000
    """.format(a=a, L=vL, m1=sM1, m1b=sM1 + 1, m2=sM2, m2b=sM2 + 1, m3=sM3, m3b=sM3 + 1, mb=sMB, mbb=sMB + 1,
               wd=sWDB, wo=sWOB, wv=sWV, wdv=448 * 1024, c2=sC2)
    s += """
    s_lshl_b32 s{t0}, s{rb}, 1
    s_add_u32 s{t0}, s{t0}, s{th}
    s_mul_i32 s{t0}, s{t0}, 144
    s_mul_i32 s{t1}, s{q}, 36
    s_add_u32 s{t0}, s{t0}, s{t1}
    s_lshl_b32 s{t1}, s{ab}, 2
    s_add_u32 s{t0}, s{t0}, s{t1}
    s_lshl_b32 s{t1}, s{gr}, 1
    s_add_u32 s{t0}, s{t0}, s{t1}
    s_lshl_b32 s{t0}, s{t0}, 11
    v_lshl_add_u32 v{h}, v{L}, 4, s{t0}
    v_lshrrev_b32 v{a}, 3, v{L}
    v_lshlrev_b32 v{a}, 10, v{a}
    v_bfe_u32 v{b}, v{L}, 4, 1
    v_lshlrev_b32 v{b}, 2, v{b}
    v_xor_b32 v{b}, v{b}, v{L}
    v_and_b32 v{b}, 7, v{b}
    v_lshl_add_u32 v{a}, v{b}, 4, v{a}
    s_lshl_b32 s{t0}, s{ct}, 7
    v_add_u32 v{w}, s{t0}, v{a}
    v_add_u32 v{w1}, 7168, v{w}
    s_and_b32 s{t0}, s2, {hm}
    s_lshl_b32 s{t0}, s{t0}, 2
    s_add_u32 s{t0}, s{t0}, {ho}
    s_cmp_eq_u32 s{wv}, 0
    s_cselect_b32 s{t0}, s{t0}, {oob}
    v_mov_b32 v{hs}, {oob}
    v_writelane_b32 v{hs}, s{t0}, 0
    """.format(t0=sT0, t1=sT1, rb=sRB, th=sTH, q=sQ, ab=sAB, gr=sGR, h=vHST, L=vL, a=a, b=b, ct=sCT, w=W2D, w1=W2D + 1, wv=sWV, oob=OOB, hs=KVD, hm=31 if cfg.dbgout else 63, ho=64 if cfg.dbgout else 0)
    return L(s)

def att_setup():
    a, b, c = TMP, TMP + 1, TMP + 2
    s = """
    s_mul_i32 s{t0}, s{wv}, {wsz}
    s_add_u32 s{t0}, s{t0}, {wreg}
    v_and_b32 v{a}, 31, v{L}
    v_lshrrev_b32 v{b}, 5, v{L}
    v_mul_u32_u24 v{c}, 72, v{a}
    v_lshl_add_u32 v{c}, v{b}, 3, v{c}
    v_add_u32 v{pw}, s{t0}, v{c}
    v_mul_u32_u24 v{c}, 104, v{a}
    v_lshl_add_u32 v{c}, v{b}, 3, v{c}
    s_add_u32 s{t1}, s{t0}, {voff}
    v_add_u32 v{vw}, s{t1}, v{c}
    v_lshl_add_u32 v{c}, v{b}, 3, v{vw}
    v_mov_b32 v{o0}, 0x3f803f80
    v_mov_b32 v{o1}, 0x3f803f80
    ds_write_b64 v{c}, v[{o0}:{o1}] offset:64
    ds_write_b64 v{c}, v[{o0}:{o1}] offset:72
    v_bfe_u32 v{a}, v{L}, 2, 2
    v_lshl_add_u32 v{a}, v{b}, 3, v{a}
    v_and_b32 v{b}, 3, v{L}
    v_mul_u32_u24 v{c}, 72, v{a}
    v_lshl_add_u32 v{c}, v{b}, 3, v{c}
    v_bfe_u32 v{o0}, v{L}, 4, 1
    v_lshl_add_u32 v{c}, v{o0}, 5, v{c}
    v_add_u32 v{pr}, s{t0}, v{c}
    v_mul_u32_u24 v{c}, 104, v{a}
    v_lshl_add_u32 v{c}, v{b}, 3, v{c}
    v_add_u32 v{c}, s{t1}, v{c}
    v_lshl_add_u32 v{v0}, v{o0}, 6, v{c}
    v_add_u32 v{o0}, 1, v{o0}
    v_lshl_add_u32 v{v1}, v{o0}, 5, v{c}
    """.format(t0=sT0, t1=sT1, wv=sWV, wsz=WREG_SZ, wreg=WREG, a=a, b=b, c=c, L=vL, pw=vPW, vw=vVW, voff=VOFF, o0=TMP + 8, o1=TMP + 9,
               pr=vPR, v0=vVR0, v1=vVR1, i=sI, gr=sGR, th=sTH)
    if cfg.vfold: s = "\n".join(x for x in s.split("\n") if "0x3f803f80" not in x and "ds_write" not in x)
    return L(s)

def o_setup():
    return L("""
    s_lshl_b32 s{t0}, s{i}, 1
    s_add_u32 s{t0}, s{t0}, s{gr}
    s_mul_i32 s{t0}, s{t0}, 4352
    s_add_u32 s{t0}, s{t0}, {kvf}
    """.format(t0=sT0, i=sI, gr=sGR, kvf=WS_KVF) + kv_lane(vKVL, False))

def wphi_setup(A):
    a, b = TMP, TMP + 1; t = 64 + 16
    s = """
    s_lshl_b32 s{t0}, s{i}, 2
    s_lshl_b32 s{t1}, s{gr}, 1
    s_add_u32 s{t0}, s{t0}, s{t1}
    s_lshl_b32 s{t0}, s{t0}, 9
    v_bfe_u32 v{a}, v{L}, 4, 1
    """.format(t0=sT0, t1=sT1, i=sI, gr=sGR, a=a, L=vL)
    if A: s += "v_xor_b32 v%d, s%d, v%d\n" % (a, sTH, a)
    s += """
    v_lshlrev_b32 v{a}, 9, v{a}
    v_lshrrev_b32 v{b}, 5, v{L}
    v_lshl_add_u32 v{a}, v{b}, 7, v{a}
    v_and_b32 v{b}, 15, v{L}
    v_lshl_add_u32 v{a}, v{b}, 1, v{a}
    v_add_u32 v{a}, s{t0}, v{a}
    """.format(a=a, b=b, L=vL, t0=sT0)
    for j in range(8):
        s += "buffer_load_ushort v%d, v%d, %s, 0 offen offset:%d\n" % (t + j, a, srd(SPHI), 32 * ((j & 3) + 8 * (j >> 2)))
    return L(s)

def wphi_finish():
    t = 64 + 16
    out = L("v_and_b32 v%d, 16, v%d\nv_cmp_eq_u32 vcc, 0, v%d" % (TMP + 8, vL, TMP + 8))
    g = []
    for j in range(4):
        g += L("v_lshl_or_b32 v{x}, v{y}, 16, v{x}\nv_cndmask_b32 v{a0}, 0, v{x}, vcc\nv_cndmask_b32 v{a1}, v{x}, 0, vcc".format(x=t + 2 * j, y=t + 2 * j + 1, a0=WPHI + j, a1=WPHI + 4 + j))
    return defines(out + g, WPHI=range(WPHI, WPHI + 8))

def rot_regs(c):
    if cfg.rot == "z":
        if c < cfg.nfix: return "s_mov_b32 s%d, %d\ns_mov_b32 s%d, %d\ns_mov_b32 s%d, %d\n" % (sKX + c, 128 * c, sKQ + c, 64 * 3072 * c, sKG + c, 64 * 3584 * c)
        return "s_add_u32 s{t1}, s{r}, {c}\ns_sub_u32 s{t0}, s{t1}, {m}\ns_cmp_gt_u32 s{t1}, 7\ns_cselect_b32 s{t1}, s{t0}, s{t1}\ns_lshl_b32 s{kx}, s{t1}, 7\ns_mul_i32 s{kq}, s{t1}, {a}\ns_mul_i32 s{kg}, s{t1}, {b}\n".format(
            m=8 - cfg.nfix, r=sSPIN, t0=sT0, t1=sT1, c=c, kx=sKX + c, kq=sKQ + c, kg=sKG + c, a=64 * 3072, b=64 * 3584)
    return "s_add_u32 s{t1}, s{r}, {c}\ns_and_b32 s{t1}, s{t1}, 7\ns_lshl_b32 s{kx}, s{t1}, 7\ns_mul_i32 s{kq}, s{t1}, {a}\ns_mul_i32 s{kg}, s{t1}, {b}\n".format(
        r=sSPIN, t1=sT1, c=c, kx=sKX + c, kq=sKQ + c, kg=sKG + c, a=64 * 3072, b=64 * 3584)

def srd_consts(lst):
    return "".join("s_mov_b32 s%d, 0x%x\ns_mov_b32 s%d, 0x20000\n" % (reg + 2, sz, reg + 3) for reg, sz in lst)

def entry_x(item_dma):
    s = """
    s_cmp_ge_u32 s2, 256
    s_cbranch_scc1 L_exit
    """
    if cfg.idmap == 1: s += "s_xor_b32 s2, s2, 0x80\n"
    if cfg.idmap == 2: s += "s_xor_b32 s2, s2, 0x60\n"
    if cfg.idmap == 3:
        s += "s_lshr_b32 s3, s2, 4\ns_xor_b32 s3, s3, s2\ns_and_b32 s3, s3, 8\ns_mul_i32 s3, s3, 17\ns_xor_b32 s2, s2, s3\n"
    if cfg.idmap == 4:
        s += "s_lshr_b32 s3, s2, 3\ns_xor_b32 s3, s3, s2\ns_and_b32 s3, s3, 16\ns_mul_i32 s3, s3, 9\ns_xor_b32 s2, s2, s3\n"
    for reg, off in ((SX, 0), (SQ, 8), (SG, 40), (SU, 48), (SW, 80), (SPHI, 16), (SO, 24), (SD, 56), (SOUT, 64), (SDBG, 72)):
        s += "s_load_dwordx2 s[%d:%d], s[0:1], %d\n" % (reg, reg + 1, off)
    if cfg.stamps:
        s += "s_memrealtime s[%d:%d]\ns_memtime s[%d:%d]\nv_mov_b32 v%d, 0\n" % (sST, sST + 1, sST + 2, sST + 3, vSTAMP)
    s += """
    v_lshrrev_b32 v1, 6, v0
    v_and_b32 v{L}, 63, v0
    v_readfirstlane_b32 s{wv}, v1
    s_and_b32 s{xcd}, s2, 7
    s_lshr_b32 s{idx}, s2, 3
    s_and_b32 s{rb}, s{xcd}, 1
    s_lshl_b32 s{rb}, s{rb}, 3
    s_and_b32 s{t0}, s{idx}, 7
    s_add_u32 s{rb}, s{rb}, s{t0}
    s_lshr_b32 s{q}, s{xcd}, 1
    s_lshr_b32 s{t4}, s{idx}, 3
    s_and_b32 s{ab}, s{t4}, 1
    s_lshl_b32 s{i}, s{q}, 1
    s_add_u32 s{i}, s{i}, s{ab}
    {rotc}    s_and_b32 s{th}, s{wv}, 1
    s_lshr_b32 s{gr}, s{wv}, 1
    s_xor_b32 s{s}, s{th}, s{gr}
    s_lshl_b32 s{l2k}, s{wv}, 11
    s_mul_i32 s{lx}, s{gr}, {P}
    s_lshl_b32 s{t1}, s{th}, 12
    s_add_u32 s{lx}, s{lx}, s{t1}
    """.format(L=vL, wv=sWV, xcd=sXCD, idx=sIDX, rb=sRB, t0=sT0, t1=sT1, q=sQ, t4=sT4, ab=sAB, i=sI, th=sTH, gr=sGR, s=sS, l2k=sL2K, lx=sLX, P=PITCH,
               rotc=("s_lshl_b32 s%d, s%d, 1\ns_add_u32 s%d, s%d, s%d\ns_and_b32 s%d, s%d, %d\n" % (sT1, sT4, sSPIN, sT0, sT1, sSPIN, sSPIN, 7 if cfg.rot is True else int(cfg.rot))) if cfg.rot and cfg.rot != "z" else "")
    if cfg.rot: s += rot_regs(0)
    s += """
    s_lshl_b32 s{t0}, s{rb}, 2
    s_add_u32 s{t0}, s{t0}, s{wv}
    s_lshl_b32 s{t0}, s{t0}, 15
    v_lshrrev_b32 v2, 3, v{L}
    v_lshlrev_b32 v2, 10, v2
    v_add_u32 v2, s{t0}, v2
    v_lshrrev_b32 v3, 4, v{L}
    v_xor_b32 v3, v3, v{L}
    v_and_b32 v3, 7, v3
    v_lshl_add_u32 v{x0}, v3, 4, v2
    v_add_u32 v{x2}, {d2}, v{x0}
    v_xor_b32 v3, 4, v3
    v_lshl_add_u32 v{x1}, v3, 4, v2
    v_add_u32 v{x1}, 7168, v{x1}
    v_add_u32 v{x3}, {d2}, v{x1}
    """.format(t0=sT0, rb=sRB, wv=sWV, L=vL, x0=XD, x1=XD + 1, x2=XD + 2, x3=XD + 3, d2=2 * 7168)
    s += srd_consts(((SX, 0x200000), (SQ, 0x180000), (SG, 0x1C0000), (SU, 0x1C0000)))
    if cfg.walk_entry: s += "s_nop 15\n"
    s += "s_waitcnt lgkmcnt(0)\n"
    if cfg.stamps: s += "v_writelane_b32 v%d, s%d, 0\nv_writelane_b32 v%d, s%d, 63\n" % (vSTAMP, sST, vSTAMP, sST + 2)
    ins = L(s)
    for x in ins:
        if x.kind == "smem": x.nowait = True
    if cfg.walk_entry:
        k = [i for i, x in enumerate(ins) if x.text == "s_nop 15"][0]
        a, b = walk_call("A", 0).lines, walk_call("B", 0).lines
        ins[k] = Raw(a[:1] + ["s_cmp_ge_u32 s%d, 2" % sT4, "s_cbranch_scc1 L_walkB"] + a[1:-2] + ["L_walkB:"] + b[1:-2] + [a[-2], b[-2], a[-1]], wr=["scc"])
    defines(ins, XD=range(XD, XD + 4))
    ins += stamp("karg") + flat(item_dma(("x", 0)))
    ins += L("s_cmp_ge_u32 s%d, 2\ns_cbranch_scc1 L_proB" % sT4)
    return ins

def entry_rest():
    s = ""
    if cfg.rot == "z":
        s += """
        s_lshl_b32 s{t0}, s{q}, 1
        s_add_u32 s{t0}, s{t0}, s{t4}
        s_lshl_b32 s{t0}, s{t0}, 1
        s_add_u32 s{t0}, s{t0}, s{rb}
        s_mul_i32 s{t1}, s{t0}, {mg}
        s_lshr_b32 s{t1}, s{t1}, 8
        s_mul_i32 s{t1}, s{t1}, {m}
        s_sub_u32 s{r}, s{t0}, s{t1}
        """.format(m=8 - cfg.nfix, mg={7: 37, 6: 43, 5: 52}[8 - cfg.nfix], t0=sT0, t1=sT1, q=sQ, t4=sT4, rb=sRB, r=sSPIN)
    s += "".join(rot_regs(c) for c in range(1, cfg.npro)) if cfg.rot else ""
    s += """
    s_lshl_b32 s{l1k}, s{wv}, 10
    s_lshl_b32 s{tt}, s{xcd}, 2
    s_and_b32 s{t0}, s{idx}, 3
    s_add_u32 s{tt}, s{tt}, s{t0}
    s_lshr_b32 s{ct}, s{idx}, 2
    s_xor_b32 s{ct}, s{ct}, {cx}
    """.format(t0=sT0, wv=sWV, tt=sTT, xcd=sXCD, idx=sIDX, ct=sCT, l1k=sL1K, cx=cfg.ctx)
    s += srd_consts(((SD, 0x1C0000), (SO, 0x80000), (SW, 0x10000000), (SOUT, 0x200000), (SDBG, 256), (SPHI, 16384)))
    return L(s)

def defaults():
    cfg.code_lim = 20480
    cfg.fixpar = 0; cfg.shift = (0, 0); cfg.qmajor = True; cfg.outfl = ' sc1'; cfg.clr_at = 12; cfg.late_u = True; cfg.late_g = 0; cfg.padto = 0; cfg.pad_at = None; cfg.late_d = 7; cfg.orderB = None; cfg.pacewB = None; cfg.bt2 = 0; cfg.bt3 = 0; cfg.strict = False; cfg.skipbar = (); cfg.quiet = 0; cfg.p3t = 0; cfg.pacew = {8: 8}; cfg.wpfd = 0; cfg.npro = 2; cfg.pace0 = 8; cfg.pace = [8, 4, 4]; cfg.p2pace = 1; cfg.w2at = lambda m: (m - 16) * 30 // 19
    cfg.order = 'Wf1jrs'; cfg.rot = 'z'; cfg.wpf0 = None; cfg.wpf = 0; cfg.wpf1 = [(SD, 14), (SO, 4)]; cfg.codepf = 1; cfg.w2pf = [(40, 8, 4), (43, 12, 4), (46, 16, 4), (49, 20, 4), (52, 24, 4), (55, 28, 4), (58, 32, 4)]; cfg.l2n = 0; cfg.walk_entry = False; cfg.w2row = False; cfg.idmap = 0; cfg.ctx = 0; cfg.o212 = False; cfg.hs = (40, 63); cfg.w2atB = lambda m: max(m - 16, (m - 16) * 30 // 19 - 3); cfg.walk = [[0]]; cfg.walk_at = 0; cfg.nfix = 1; cfg.w1_from = 0; cfg.wdelay = {}; cfg.rot2 = True; cfg.w2B = False; cfg.mix = True
    cfg.p2period = 72; cfg.rd_early = True; cfg.one_wait = True; cfg.x_early = True; cfg.st_early = True; cfg.stash = False; cfg.vfold = True; cfg.pro_setup = True; cfg.setup_end = 14
    cfg.fd = 1100; cfg.h1first = 10; cfg.a_att = 23; cfg.a_h1 = 26; cfg.a_pub = 8; cfg.a_kvflag = 30; cfg.h1 = 12; cfg.a_h2 = 3
    cfg.b_h0 = 12; cfg.b_att = 14; cfg.b_ri = -10; cfg.b_rc = 2; cfg.b_li = 12; cfg.b_lc = 20; cfg.b_o = 5
    cfg.flag_delay = 28; cfg.flag_delay2 = 14
    cfg.p0 = 6; cfg.hstep0 = 5
    cfg.hlA = [4 * (n - 4) + 1 for n in range(36)]; cfg.hlB = [(6 + 2 * (n - 8) if n < 16 else 4 * (n - 5) + 1) for n in range(36)]; cfg.poll_lead = [16, 10, 16, 16, 12]

def walk_call(typ, k):
    ls = ["s_mov_b64 exec, 0"]
    for w in range(3): ls += ["s_cmp_eq_u32 s%d, %d" % (sWV, w), "s_cbranch_scc1 L_pad%s%d_%d" % (typ, k, w)]
    ls += ["s_branch L_pad%s%d_3" % (typ, k), "L_ret%s%d:" % (typ, k), "s_mov_b64 exec, -1"]
    return Raw(ls, wr=["scc"])

def l2_walk(typ):
    n = cfg.l2n
    ls = ["s_bfe_u32 s%d, s2, 0x40003" % sT0, "s_lshl_b32 s%d, s%d, 2" % (sT0, sT0), "s_add_u32 s%d, s%d, s%d" % (sT0, sT0, sWV), "s_mov_b64 exec, 0"]
    def ladder(lo, hi):
        if hi - lo == 1: return ["s_branch L_l2%s_%d" % (typ, lo % n)]
        mid = (lo + hi) // 2; lab = "L_ld%s_%d_%d" % (typ, mid, hi)
        return ["s_cmp_ge_u32 s%d, %d" % (sT0, mid), "s_cbranch_scc1 " + lab] + ladder(lo, mid) + [lab + ":"] + ladder(mid, hi)
    if n <= 32: ls.insert(3, "s_and_b32 s%d, s%d, 31" % (sT0, sT0))
    ls += ladder(0, 32 if n <= 32 else 64) + ["L_l2ret%s:" % typ, "s_mov_b64 exec, -1"]
    return Raw(ls, wr=["scc", "s%d" % sT0])

def add_pads(p, typ):
    sz = sizes(p)
    total = sum(sz)
    want = []
    for pg in range(1, total // 4096 + 1):
        for k, offs in enumerate(cfg.walk):
            want += [(4096 * pg + o, k) for o in offs]
    if cfg.l2n: want += [(total * (k + 1) // (cfg.l2n + 1) // 64 * 64 + 32, "l2") for k in range(cfg.l2n)]
    want.sort(key=lambda z: z[0])
    out = []; pos = 0; pads = {k: [] for k in list(range(len(cfg.walk))) + ["l2"]}
    for x, n in zip(p, sz):
        while want and pos >= want[0][0] and x.kind != "endpgm":
            o, k = want.pop(0)
            lab, br = I("L_x:"), I("s_cbranch_execz L_x")
            pads[k].append((lab, br)); out += [lab, br]; pos += 4
        out.append(x); pos += n
    for i, (lab, br) in enumerate(pads.pop("l2")): lab.text = "L_l2%s_%d:" % (typ, i); br.text = "s_cbranch_execz L_l2ret%s" % typ
    for k, lst in pads.items():
        assert len(lst) >= 4 or not lst
        for i, (lab, br) in enumerate(lst):
            lab.text = "L_pad%s%d_%d:" % (typ, k, i)
            br.text = "s_cbranch_execz " + ("L_pad%s%d_%d" % (typ, k, i + 4) if i + 4 < len(lst) else "L_ret%s%d" % (typ, k))
    print("  pads", {k: len(v) for k, v in pads.items()}, "bytes", pos)
    return out

def o212_defaults():
    cfg.o212 = True; cfg.pace = [8, 4, 6]; cfg.pacew = {}
    cfg.a_hh = 1; cfg.a_att2 = 14; cfg.h3 = 6; cfg.b_h0 = 14; cfg.b_att = 28
    cfg.b_ri = -24; cfg.b_rc = -6; cfg.b_li = 8; cfg.b_lc = 18
    cfg.p0 = 5; cfg.hstep0 = 9; cfg.p1 = 26; cfg.hstep1 = 5
    cfg.poll_lead = [12, 20, 12, 12, 12]
    cfg.hlA = cfg.hlB = [max(30 + 2 * (n - 12), 4 * (n - 5) + 1) for n in range(36)]
    cfg.w2at = cfg.w2atB = lambda m: m - 16
    cfg.w2pf = [(36, 16, 4), (40, 20, 4), (44, 24, 4), (48, 28, 4), (52, 32, 4)]

def generate(path):
    label_n[0] = 0
    import fw; fw.LOOSE = cfg.x_nodma or cfg.x_drop
    progs = {}; cut = {}
    for typ in "AB":
        nc, p = build_type(typ)
        mark = p[nc]
        if cfg.x_nodma:
            k0 = [i for i, x in enumerate(p) if getattr(x, "kind", "") == "barrier"][0]
            q = p[:k0]
            for x in p[k0:]:
                if getattr(x, "dma", False):
                    y = I("s_nop 0");
                    q.append(y)
                else: q.append(x)
            p = q
        if cfg.x_drop:
            q = []
            for x in p:
                t = getattr(x, "text", "")
                d = ("h" in cfg.x_drop and t.startswith("buffer_load_dwordx4 a[")) or \
                    ("s" in cfg.x_drop and t.startswith("buffer_store_dwordx4") and "s[28:31]" in t) or \
                    ("w" in cfg.x_drop and getattr(x, "dma", False) and ("s[20:23]" in t or "s[24:27]" in t)) or \
                    ("p" in cfg.x_drop and x.kind == "raw")
                if "m" in cfg.x_drop and x.kind == "mfma":
                    if t.endswith("]") and " a[" in t and "32x32" in t:
                        regs = [r for r in x.rd if r[0] == "a"]
                        y = I("s_nop 0"); y.rd = regs; y.kind = "salu"; q.append(y)
                    continue
                if "l" in cfg.x_drop and x.kind == "ds": continue
                q.append(I("s_nop 0") if d else x)
            p = q
        progs[typ] = finalize(p, typ)
        cut[typ] = (progs[typ].index(mark), [i for i, x in enumerate(progs[typ]) if x.kind == "label" and "main" in x.text][0])
    for t in "AB":
        k = [i for i, x in enumerate(progs[t]) if getattr(x, "gives", None) == "hs" + t][0]
        assert all(i > k for i, x in enumerate(progs[t]) if getattr(x, "after_hs", False)), "poll before the hand-shake"
    given = {("A", 0), ("B", 0)}; at = {"A": 0, "B": 0}; moved = True
    while moved:
        moved = False
        for t in "AB":
            while at[t] < len(progs[t]) and all(w in given for w in getattr(progs[t][at[t]], "waits", [])):
                g = getattr(progs[t][at[t]], "gives", None)
                if g is not None: given.add((t, g))
                at[t] += 1; moved = True
    assert all(at[t] == len(progs[t]) for t in "AB"), ("circular wait", at, [getattr(progs[t][min(at[t], len(progs[t]) - 1)], "waits", None) for t in "AB"])
    def main(t):
        p = progs[t][cut[t][1]:]
        if cfg.fixpar: p = fix_parity(p, cfg.fixpar)
        if cfg.walk: return ".p2align 12\n" + emit(add_pads(p, t)) + "L_end%s:\n" % t
        return ".p2align 6\n" + emit(p[:1]) + "    s_nop 0\n" * cfg.shift[t == "B"] + emit(p[1:]) + "L_end%s:\n" % t
    body = emit(progs["A"][:cut["A"][1]]) + "L_proB:\n" + emit(progs["B"][cut["B"][0]:cut["B"][1]]) + "L_exit:\n    s_endpgm\n" + \
           main("A") + main("B")
    ref = open("parallel_sum__linear_kernel_hedgehog__glu_gated_bilinear__prompt.s.ref").read().split("\n")
    head = [x for x in ref if x.startswith(";") and "@launch" not in x and "Override" not in x and "grid=ceil" not in x]
    txt = "\n".join(head) + "\n; @launch grid=(256,1,1) block=(256,1,1) lds=%d\n" % LDS_BYTES
    txt += """.amdgcn_target "amdgcn-amd-amdhsa--gfx950"
.text
.globl {k}
.p2align 8
.type {k},@function
{k}:
""".format(k=KNAME) + body + """.section .rodata,"a"
.p2align 6
.amdhsa_kernel {k}
  .amdhsa_next_free_vgpr 512
  .amdhsa_next_free_sgpr 102
  .amdhsa_accum_offset 256
  .amdhsa_group_segment_fixed_size 0
  .amdhsa_kernarg_size 88
  .amdhsa_user_sgpr_count 2
  .amdhsa_user_sgpr_kernarg_segment_ptr 1
  .amdhsa_system_sgpr_workgroup_id_x 1
.end_amdhsa_kernel
""".format(k=KNAME)
    open(path, "w").write(txt)
    if cfg.stamps: open(path[:-2] + ".names", "w").write("\n".join(stamp_names))

if __name__ == "__main__":
    defaults()
    path = sys.argv[1]
    for kv in sys.argv[2:]:
        k, v = kv.split("=", 1)
        if k == "o212": o212_defaults()
        setattr(cfg, k, eval(v))
    generate(path)
```

```python
import sys, re
from fw import *

KNAME = "parallel_sum__linear_kernel_hedgehog__glu_gated_bilinear__prompt_kernel"

class Cfg:
    rot = True
    stamps = False
    codepf = False
    wpf = False
    w2pf = False
    spin = 200000
    dbgout = False
    x_drop = ''
    x_nostat = False; x_notask = False; x_nodma = False; x_nobar = False
cfg = Cfg()

PITCH = 8224
NSLOT = 16
WREG = NSLOT * PITCH
WREG_SZ = 5632
VOFF = 2304
STAT = WREG + 4 * WREG_SZ
CSP = STAT + 2048
CST = CSP + 3072
LDS_BYTES = 163840
WS_H = 0
WS_KVP = 0xC00000
WS_KVF = 0xA00000
WS_FL = 0xA40000
WS_ST = 0xB00000
OOB = 0x40000000

SX, SQ, SG, SU, SD, SO, SW, SOUT, SDBG, SPHI = 4, 8, 12, 16, 20, 24, 28, 32, 36, 40
def srd(b): return "s[%d:%d]" % (b, b + 3)
sWV, sTH, sGR, sRB, sQ, sT4, sAB, sI, sTT, sCT, sIDX, sXCD = range(44, 56)
sKX, sKQ, sKG = 56, 64, 72
sLX, sL2K, sL1K, sT0, sT1, sSPIN = 80, 81, 82, 83, 84, 85
sM1, sM2, sM3, sMB = 86, 88, 90, 92
sWDB, sWOB, sC2, sH2, sS = 94, 95, 96, 97, 3
sPB = 40
sMH = 54
sST = 98
SET0, SET1, WF = 0, 64, 128
SEL01, SEL23 = 144, 148
vPW, vPR, vVW, vVR0 = 152, 153, 154, 155
vKVL, vKRL, vKRS = 152, 153, 154
CSD = 156
MB = 160
CA = 168
vSL = 172
XR, WR1, WR3, XD, WR2 = 174, 178, 178, 182, 182
W2R = 174
WQD, WGD, WHD = 186, 188, 190
vHLD, vPOL = 186, 187
vCSA, vRS, vR2, vHST, vL, W2D = 191, 192, 194, 196, 197, 198
WPHI = 200
KVD = 208
TMP = 240
vFLG, vVR1, vKVA, vSTAMP = 252, 253, 254, 255
SQD2 = 88
RSD, SQD = 64, 68

def vr(b, n=1): return "v%d" % b if n == 1 else "v[%d:%d]" % (b, b + n - 1)
def ar(b, n): return "a[%d:%d]" % (b, b + n - 1)

stamp_names = []
def stamp(name):
    if cfg.stamps != True: return []
    if name not in stamp_names: stamp_names.append(name)
    k = stamp_names.index(name)
    return [I("s_memtime s[%d:%d]" % (sST, sST + 1)), I("v_writelane_b32 v%d, s%d, %d" % (vSTAMP, sST, k + 2))]

def addr_wfull(dst, n, att, swap, t0=TMP):
    a, b = vr(t0), vr(t0 + 1)
    s = """
    v_lshrrev_b32 {a}, 5, v{L}
    v_lshlrev_b32 {a}, 10, {a}
    v_bfe_u32 {b}, v{L}, 2, 2
    v_lshl_add_u32 {a}, {b}, 7, {a}
    v_and_b32 {b}, 3, v{L}
    v_lshl_add_u32 {a}, {b}, 3, {a}
    v_bfe_u32 {b}, v{L}, 3, 1
    v_xor_b32 {b}, s{gr}, {b}
    v_lshl_add_u32 {a}, {b}, 6, {a}
    v_bfe_u32 {b}, v{L}, 4, 1
    """.format(a=a, b=b, L=vL, gr=sGR)
    if att:
        if swap: s += "v_xor_b32 %s, s%d, %s\n" % (b, sTH, b)
        s += "v_lshl_add_u32 %s, %s, 5, %s\n" % (a, b, a)
    else:
        s += "v_mul_u32_u24 %s, %d, %s\nv_add_u32 %s, %s, %s\n" % (b, PITCH, b, a, a, b)
    return L(s) + wr_variants(dst, n, a, 12, 'Watt' if att else 'Wpair')

def wr_variants(dst, n, a, sh, role):
    s = "s_lshl_b32 s%d, s%d, %d\ns_xor_b32 s%d, s%d, %d\n" % (sT0, sS, sh, sT1, sT0, 1 << sh)
    k = dst
    if n == 4:
        s += "v_add_u32 v%d, s%d, %s\nv_add_u32 v%d, s%d, %s\n" % (k, sT0, a, k + 1, sT1, a)
        s += "v_add_u32 v%d, %d, v%d\nv_add_u32 v%d, %d, v%d\n" % (k + 2, 8 * PITCH, k, k + 3, 8 * PITCH, k + 1)
    else:
        s += "v_add_u32 %s, %d, %s\n" % (a, 8 * PITCH, a)
        s += "v_add_u32 v%d, s%d, %s\nv_add_u32 v%d, s%d, %s\n" % (k, sT0, a, k + 1, sT1, a)
    ins = L(s)
    return [defines(ins, **{role: range(dst, dst + n)})]

def addr_whalf(dst, t0=TMP):
    a, b = vr(t0), vr(t0 + 1)
    s = """
    v_lshrrev_b32 {a}, 5, v{L}
    v_lshlrev_b32 {a}, 9, {a}
    v_bfe_u32 {b}, v{L}, 2, 2
    v_lshl_add_u32 {a}, {b}, 6, {a}
    v_and_b32 {b}, 3, v{L}
    v_lshl_add_u32 {a}, {b}, 3, {a}
    v_bfe_u32 {b}, v{L}, 4, 1
    v_mul_u32_u24 {b}, 4128, {b}
    v_add_u32 {a}, {a}, {b}
    v_mov_b32 {b}, s{gr}
    v_lshl_add_u32 {a}, {b}, 5, {a}
    """.format(a=a, b=b, L=vL, gr=sGR)
    return L(s) + wr_variants(dst, 4, a, 11, 'Whalf')

def addr_cs(swap, t0=TMP):
    a = vr(t0)
    s = "s_lshl_b32 s%d, s%d, 8\ns_lshl_b32 s%d, s%d, 7\ns_add_u32 s%d, s%d, s%d\ns_add_u32 s%d, s%d, %d\n" % (sT0, sGR, sT1, sTH, sT0, sT0, sT1, sT0, sT0, CSP)
    s += "v_and_b32 %s, 31, v%d\n" % (a, vL)
    if swap: s += "s_lshl_b32 s%d, s%d, 4\nv_xor_b32 %s, s%d, %s\n" % (sT1, sTH, a, sT1, a)
    s += """
    v_lshl_add_u32 v{ca}, {a}, 2, s{t}
    v_lshrrev_b32 {a}, 5, v{L}
    v_lshl_add_u32 v{ca}, {a}, 9, v{ca}
    """.format(a=a, L=vL, ca=vCSA, t=sT0)
    return [defines(L(s), **{"CSs" if swap else "CS": vCSA})]

def addr_p2(t0=TMP):
    a, b = vr(t0), vr(t0 + 1)
    s = """
    v_lshrrev_b32 {a}, 5, v{L}
    v_lshlrev_b32 {a}, 9, {a}
    v_bfe_u32 {b}, v{L}, 2, 2
    v_lshl_add_u32 {a}, {b}, 7, {a}
    v_and_b32 {b}, 3, v{L}
    v_lshl_add_u32 {a}, {b}, 3, {a}
    v_bfe_u32 {b}, v{L}, 3, 1
    v_lshl_add_u32 {a}, {b}, 6, {a}
    v_bfe_u32 {b}, v{L}, 4, 1
    v_lshl_add_u32 {a}, {b}, 5, {a}
    v_xor_b32 {b}, 64, {a}
    v_add_u32 v{w0}, s{l2k}, {a}
    v_add_u32 v{w1}, s{l2k}, {b}
    v_add_u32 v{w2}, {hi}, v{w0}
    v_add_u32 v{w3}, {hi}, v{w1}
    """.format(a=a, b=b, L=vL, w0=W2R, w1=W2R + 1, w2=W2R + 2, w3=W2R + 3, l2k=sL2K, hi=8 * PITCH)
    ins = L(s)
    ins.append(L("""
    s_mul_i32 s{t0}, s{tt}, {a}
    s_mul_i32 s{t1}, s{wv}, {b}
    s_add_u32 s{t0}, s{t0}, s{t1}
    v_lshl_add_u32 v{h}, v{L}, 4, s{t0}
    """.format(t0=sT0, t1=sT1, tt=sTT, wv=sWV, a=144 * 2048, b=36 * 2048, h=vHLD, L=vL)))
    ins.append(L("""
    s_lshl_b32 s{t0}, s{tt}, 2
    s_add_u32 s{t0}, s{t0}, s{wv}
    s_lshl_b32 s{t0}, s{t0}, 7
    s_add_u32 s{t0}, s{t0}, {fl}
    v_and_b32 {a}, 7, v{L}
    v_lshl_add_u32 v{p}, {a}, 2, s{t0}
    """.format(t0=sT0, tt=sTT, wv=sWV, fl=WS_FL, a=a, L=vL, p=vPOL)))
    return defines(ins, W2R=range(W2R, W2R + 4), HLD=vHLD, POL=vPOL)

label_n = [0]
def poll(addr, res, need, sr=SW, cmp="gt"):
    label_n[0] += 1
    k = label_n[0]
    ld = "buffer_load_dword v%d, v%d, %s, 0 offen sc1" % (res, addr, srd(sr))
    c = "v_cmp_%s_u32 vcc, %s, v%d" % (cmp, need, res)
    chk = Raw([c, "s_nop 4", "s_cbranch_vccz L_ok%d" % k,
               "s_mov_b32 s%d, %d" % (sSPIN, cfg.spin),
               "L_re%d:" % k, "s_sleep 1", ld, "s_waitcnt vmcnt(0)", c, "s_sub_u32 s%d, s%d, 1" % (sSPIN, sSPIN),
               "s_cbranch_scc1 L_ok%d" % k, "s_nop 2", "s_cbranch_vccnz L_re%d" % k,
               "L_ok%d:" % k],
              rd=["v%d" % res, "v%d" % addr] + regs_of(need), wr=["vcc", "scc", "s%d" % sSPIN])
    chk.cost = 32
    return I(ld), chk

def class_poll(c, res, needr):
    na, nb = ([(0, 1), (1, 1), (1, 2), (2, 2), (2, 3)] if cfg.o212 else [(0, 1), (0, 2), (1, 2), (2, 2), (2, 3)])[c]
    iss, chk = poll(vPOL, res, "v%d" % needr)
    chk.waits = [("A", na), ("B", nb)]; iss.after_hs = True
    needs([iss, chk], POL=vPOL); defines([iss], **{"cp%d" % c: res}); needs([chk], **{"cp%d" % c: res})
    return iss, [I("v_cndmask_b32 v%d, %d, %d, s[%d:%d]" % (needr, na, nb, sMB, sMB + 1)), chk]

def set_flag(level, tag, t):
    if cfg.strict: tag = "vm0"
    mv = I("v_mov_b32 v%d, %d" % (t, level)); mv.gives = level
    return stamp("f%d_0" % level) + [Wait(tag)] + stamp("f%d_1" % level) + [mv, needs(I("buffer_store_dword v%d, v%d, %s, 0 offen sc1" % (t, vFLG, srd(SW))), FLG=vFLG)]

def t_stat_add():
    a, b = TMP, TMP + 1
    s = """
    s_lshl_b32 s{t0}, s{th}, 10
    s_add_u32 s{t0}, s{t0}, {st}
    v_and_b32 v{b}, 31, v{L}
    v_lshl_add_u32 v{b}, v{b}, 4, s{t0}
    s_lshl_b32 s{t1}, s{gr}, 3
    s_add_u32 s{t0}, s{t0}, s{t1}
    v_lshl_add_u32 v{a}, v{L}, 4, s{t0}
    """.format(t0=sT0, t1=sT1, th=sTH, gr=sGR, st=STAT, a=a, b=b, L=vL)
    pre = [L(s)]
    out = []
    for j in range(8): out += L("v_add_f32 v%d, v%d, v%d" % (SQD + j, SQD + j, SQD2 + j))
    for j, m in ((1, sM1), (2, sM2), (3, sM3)):
        for blk in range(2):
            q = SQD + 4 * blk
            out += L("v_cndmask_b32 v%d, v%d, v%d, s[%d:%d]" % (q, q, q + j, m, m + 1))
    out.append(L("v_permlane32_swap_b32 v%d, v%d\nv_add_f32 v%d, v%d, v%d" % (SQD, SQD + 4, RSD + 1, SQD, SQD + 4)))
    out += L("ds_write_b64 v%d, v[%d:%d]" % (a, RSD, RSD + 1))
    return pre, out

def t_cs_add(tile0, role="CS"):
    return needs(L("ds_write_b32 v%d, v%d offset:%d" % (vCSA, CSD, 512 * tile0)), **{role: vCSA})

def t_cs_tot(tile0, t):
    out = L("v_xor_b32 v%d, 0x80, v%d\nds_read_b32 v%d, v%d offset:%d" % (t, vCSA, t, t, 512 * tile0))
    out.append(Gap(2))
    out += L("""
    v_add_f32 v{t}, v{t}, v{cs}
    v_cvt_pk_bf16_f32 v{a}, v{t}, v{t}
    v_lshlrev_b32 v{a1}, 16, v{a}
    v_sub_f32 v{t}, v{t}, v{a1}
    v_cvt_pk_bf16_f32 v{a1}, v{t}, 0
    """.format(t=t, cs=CSD, a=CA, a1=CA + 1))
    return defines(out, **{"CA%d" % tile0: (CA, CA + 1)})

def t_corr(acc, T, tile0, bs=16, regs=None):
    out = []
    for j in range(T):
        for b in range(2):
            d = vr(regs[j][b] if regs else acc + 32 * j + bs * b, 16)
            x = I("v_mfma_f32_32x32x16_bf16 %s, %s, %s, %s" % (d, vr(CA, 4), vr(MB + 4 * b + 2 * j, 4), d)); x.cost = 24
            out.append(x)
    return needs(out, MB=range(MB, MB + 8), Z=(CA + 2, CA + 3), **{"CA%d" % tile0: (CA, CA + 1)})

def t_stat_fin():
    b = TMP + 1; t = TMP + 4
    out = L("ds_read_b128 v[%d:%d], v%d\nds_read_b128 v[%d:%d], v%d offset:512" % (t, t + 3, b, t + 4, t + 7, b))
    out.append(Gap(2))
    late = []
    for blk in range(2):
        r = t + 4 * blk; m = MB + 4 * blk
        out += L("""
        v_add_f32 v{r}, v{r}, v{r2}
        v_mul_f32 v{r}, 0xbb000000, v{r}
        v_cvt_pk_bf16_f32 v{m1}, v{r}, 0
        v_lshlrev_b32 v{r2}, 16, v{m1}
        v_sub_f32 v{r2}, v{r}, v{r2}
        v_cvt_pk_bf16_f32 v{m0}, v{r}, v{r2}
        v_cndmask_b32 v{m2}, 0, v{m0}, s[{h}:{h1}]
        v_cndmask_b32 v{m3}, 0, v{m1}, s[{h}:{h1}]
        v_cndmask_b32 v{m0}, v{m0}, 0, s[{h}:{h1}]
        v_cndmask_b32 v{m1}, v{m1}, 0, s[{h}:{h1}]
        """.format(r=r, r2=r + 2, m0=m, m1=m + 1, m2=m + 2, m3=m + 3, h=sMH, h1=sMH + 1))
        late += L("""
        v_add_f32 v{r1}, v{r1}, v{r3}
        v_mul_f32 v{r2}, v{r}, v{r}
        v_fma_f32 v{r1}, v{r1}, s{c}, -v{r2}
        v_max_f32 v{r1}, 0, v{r1}
        v_add_f32 v{r1}, 0x3727c5ac, v{r1}
        v_rsq_f32 v{rs}, v{r1}
        v_rcp_f32 v{rr}, v{r1}
        v_mul_f32 v{sl}, 0x3fb8aa3b, v{rs}
        """.format(r=r, r1=r + 1, r2=r + 2, r3=r + 3, rs=vRS + blk, rr=vR2 + blk, sl=vSL + blk, c=sC2))
    defines(out, MB=range(MB, MB + 8)); defines(late, R2=(vR2, vR2 + 1), RS=(vRS, vRS + 1), SL=(vSL, vSL + 1))
    return out, late

def t_hepi(acc, soff, imm, tag, bs=16):
    out = []
    for blk in range(2):
        g = acc + bs * blk
        for r in range(0, 8 if not cfg.x_notask else 0, 2):
            out += L("v_mul_f32 v%d, v%d, v%d\nv_mul_f32 v%d, v%d, v%d" % (g + r, vR2 + blk, g + r, g + r + 1, vR2 + blk, g + r + 1))
            out += L("v_mul_f32 v%d, v%d, v%d\nv_mul_f32 v%d, v%d, v%d" % (g + r, g + r, g + 8 + r, g + r + 1, g + r + 1, g + 9 + r))
            out += L("v_cvt_pk_bf16_f32 v%d, v%d, v%d" % (g + r // 2, g + r, g + r + 1))
        st = L("buffer_store_dwordx4 v[%d:%d], v%d, %s, s%d offen offset:%d sc1" % (g, g + 3, vHST, srd(SW), sT1, imm + 1024 * blk), tag=tag if blk else None)
        out.append(L(soff) + st)
    return needs(out, HST=vHST, R2=(vR2, vR2 + 1))

def phi_mfma(acc, TMP=TMP):
    out = []
    for j in range(8): out += L("v_cvt_pk_bf16_f32 v%d, v%d, v%d" % (TMP + j, acc + 2 * j, acc + 2 * j + 1))
    out += L("v_mfma_f32_32x32x16_bf16 v[%d:%d], v[%d:%d], v[%d:%d], 0" % (acc, acc + 15, WPHI, WPHI + 3, TMP, TMP + 3))
    out += L("v_mfma_f32_32x32x16_bf16 v[%d:%d], v[%d:%d], v[%d:%d], v[%d:%d]" % (acc, acc + 15, WPHI + 4, WPHI + 7, TMP + 4, TMP + 7, acc, acc + 15))
    out[-1].cost = 24; out[-2].cost = 24
    return needs(out, WPHI=range(WPHI, WPHI + 8))

def softmax2(p, blk, scale=None):
    e = TMP; a, b, c, d = TMP + 8, TMP + 9, TMP + 10, TMP + 11; sl = vSL + blk
    s = """
    v_max3_f32 v{a}, v{p0}, v{p1}, v{p2}
    v_min3_f32 v{b}, v{p0}, v{p1}, v{p2}
    v_max3_f32 v{a}, v{a}, v{p3}, v{p4}
    v_min3_f32 v{b}, v{b}, v{p3}, v{p4}
    v_max3_f32 v{a}, v{a}, v{p5}, v{p6}
    v_min3_f32 v{b}, v{b}, v{p5}, v{p6}
    v_max_f32 v{a}, v{a}, v{p7}
    v_max_f32_e64 v{b}, -v{b}, -v{p7}
    """.format(a=a, b=b, **{"p%d" % i: p + i for i in range(8)})
    out = L(s)
    out += L("v_permlane32_swap_b32 v{a}, v{b}\nv_max_f32 v{a}, v{a}, v{b}\nv_mul_f32_e64 v{a}, -v{a}, v{sl}\nv_mov_b32 v{b}, v{a}".format(a=a, b=b, sl=sl))
    out += L("v_permlane32_swap_b32 v{a}, v{b}".format(a=a, b=b))
    for i in range(8):
        out += L("v_fma_f32 v%d, v%d, v%d, v%d" % (e + i, p + i, sl, a))
        out += L("v_fma_f32 v%d, -v%d, v%d, v%d" % (p + i, p + i, sl, b))
        if i > 1: out += L("v_add_f32 v%d, v%d, v%d" % (c, c if i > 2 else e, e + i - 1))
        out += L("v_exp_f32 v%d, v%d" % (e + i, e + i))
        if i > 1: out += L("v_add_f32 v%d, v%d, v%d" % (d, d if i > 2 else p, p + i - 1))
        out += L("v_exp_f32 v%d, v%d" % (p + i, p + i))
    out += L("v_add_f32 v%d, v%d, v%d\nv_add_f32 v%d, v%d, v%d" % (c, c, e + 7, d, d, p + 7))
    out += L("v_permlane32_swap_b32 v{c}, v{d}\nv_add_f32 v{c}, v{c}, v{d}\nv_rcp_f32 v{c}, v{c}".format(c=c, d=d))
    if scale: out += L("v_mul_f32 v%d, v%d, v%d" % (c, scale, c))
    out += L("v_mov_b32 v{d}, v{c}".format(c=c, d=d))
    out += L("v_permlane32_swap_b32 v{c}, v{d}".format(c=c, d=d))
    for i in range(8):
        out += L("v_mul_f32 v%d, v%d, v%d" % (p + i, d, p + i))
        if i & 1: out += L("v_cvt_pk_bf16_f32 v%d, v%d, v%d" % (p + i // 2, p + i - 1, p + i))
    for i in range(8):
        out += L("v_mul_f32 v%d, v%d, v%d" % (e + i, c, e + i))
        if i & 1: out += L("v_cvt_pk_bf16_f32 v%d, v%d, v%d" % (p + 4 + i // 2, e + i - 1, e + i))
    return out

def v_out(va, blk):
    out = []
    if cfg.vfold:
        t = TMP + 8
        out += L("v_rcp_f32 v{t}, v{rs}\nv_cvt_pk_bf16_f32 v{t}, v{t}, v{t}\nds_write_b32 v{a}, v{t} offset:64".format(t=t, rs=vRS + blk, a=vVW))
    for r in range(0, 16, 2):
        if not cfg.vfold: out += L("v_mul_f32 v%d, v%d, v%d\nv_mul_f32 v%d, v%d, v%d" % (va + r, vRS + blk, va + r, va + r + 1, vRS + blk, va + r + 1))
        out += L("v_cvt_pk_bf16_f32 v%d, v%d, v%d" % (va + r // 2, va + r, va + r + 1))
        if r % 4 == 2: out += L("ds_write_b64 v%d, v[%d:%d] offset:%d" % (vVW, va + r // 2 - 1, va + r // 2, 4 * (r - 2)))
    return out

def weave(main, extra, pos):
    out = []; k = 0
    for n, x in enumerate(main):
        while k < len(extra) and pos[k] <= n: out.append(extra[k]); k += 1
        out.append(x)
    return out + extra[k:]

def t_att_k():
    out = []
    if cfg.x_notask: return [I("s_nop 0")]
    FR = 32
    rds, mms = [], []
    for blk in range(2):
        va = 32 + 16 * blk; ka = 16 * blk
        pm = phi_mfma(ka)
        out += weave(pm, rds, range(0, 8)); rds = []
        vo = v_out(va, blk)
        out += weave(vo, mms, (10, 18) if not cfg.vfold else (6, 12)); mms = []
        for hh in range(2):
            p = ka + 8 * hh
            sm = softmax2(p, blk, vRS + blk if cfg.vfold else None)
            n = len(sm)
            wr = [I("ds_write_b64 v%d, v[%d:%d] offset:%d" % (vPW, p + 2 * j, p + 1 + 2 * j, 32 + 16 * j)) for j in range(2)] + \
                 [I("ds_write_b64 v%d, v[%d:%d] offset:%d" % (vPW, p + 4 + 2 * j, p + 5 + 2 * j, 16 * j)) for j in range(2)]
            sm = weave(sm, rds + mms + wr, [2, 5, 8, 8, 12, 12, 16, 20][:len(rds)] + [44, 56][:len(mms)] + [n - 17, n - 11, n - 5, n])
            out += sm
            rds, mms = [], []
            for ks in range(2):
                for j in range(2):
                    rds += L("ds_read_b64_tr_b16 v[%d:%d], v%d offset:%d" % (FR + 8 * ks + 4 + 2 * j, FR + 8 * ks + 5 + 2 * j, (vVR0, vVR1)[hh], 1664 * ks + 416 * j))
                for j in range(2):
                    rds += L("ds_read_b64_tr_b16 v[%d:%d], v%d offset:%d" % (FR + 8 * ks + 2 * j, FR + 8 * ks + 2 * j + 1, vPR, 1152 * ks + 288 * j))
            d = KVD + 16 * hh
            for ks in range(2):
                c = "0" if (blk == 0 and ks == 0) else vr(d, 16)
                x = I("v_mfma_f32_32x32x16_bf16 %s, %s, %s, %s" % (vr(d, 16), vr(FR + 8 * ks, 4), vr(FR + 8 * ks + 4, 4), c)); x.cost = 24
                mms.append(x)
    for x in rds: x.cost = 8
    out += rds
    pend = mms
    out.append(L("""
    s_mul_i32 s{t0}, s{wv}, {wsz}
    s_add_u32 s{t0}, s{t0}, {wreg}
    v_lshl_add_u32 v{a}, v{L}, 4, s{t0}
    s_xor_b32 s{t0}, s{wv}, 1
    s_mul_i32 s{t0}, s{t0}, {wsz}
    s_add_u32 s{t0}, s{t0}, {wreg}
    v_lshl_add_u32 v{b}, v{L}, 4, s{t0}
    """.format(t0=sT0, wv=sWV, wsz=WREG_SZ, wreg=WREG, a=TMP, b=TMP + 1, L=vL)))
    out += [Gap(2)] + pend + [Gap(2)]
    for r4 in range(4): out += L("ds_write_b128 v%d, %s offset:%d" % (TMP, vr(KVD + 16 + 4 * r4, 4), 1024 * r4))
    defines(out, EXR=TMP + 1)
    return needs(out, PW=vPW, PR=vPR, VW=vVW, VR0=vVR0, VR1=vVR1, RS=(vRS, vRS + 1), SL=(vSL, vSL + 1))

def t_kv_pub():
    out = []
    for r4 in range(4): out += L("ds_read_b128 %s, v%d offset:%d" % (vr(KVD + 16 + 4 * r4, 4), TMP + 1, 1024 * r4))
    out.append(Gap(2))
    for r in range(16):
        out += L("v_add_f32 v%d, v%d, v%d" % (KVD + r, KVD + r, KVD + 16 + r))
        if r % 4 == 3: out += L("buffer_store_dwordx4 %s, v%d, %s, 0 offen offset:%d sc1" % (vr(KVD + r - 3, 4), vKVA, srd(SW), 136 * (r - 3)))
    out[-1].gives = "kvp"
    return needs(out, EXR=TMP + 1, KVA=vKVA)

def data_poll(loads, regs, t):
    label_n[0] += 1
    k = label_n[0]
    chk = ["v_max3_u32 v%d, v%d, v%d, v%d" % (t, regs[0], regs[1], regs[2])]
    rest = regs[3:]
    while len(rest) > 1:
        chk.append("v_max3_u32 v%d, v%d, v%d, v%d" % (t, t, rest[0], rest[1])); rest = rest[2:]
    if rest: chk.append("v_max_u32 v%d, v%d, v%d" % (t, t, rest[0]))
    fast = L("\n".join(chk))
    c = "v_cmp_eq_u32 vcc, -1, v%d" % t
    raw = Raw([c, "s_nop 4", "s_cbranch_vccz L_ok%d" % k, "s_mov_b32 s%d, %d" % (sSPIN, cfg.spin), "L_re%d:" % k, "s_sleep 1"] + loads +
              ["s_waitcnt vmcnt(0)"] + chk + [c, "s_sub_u32 s%d, s%d, 1" % (sSPIN, sSPIN), "s_cbranch_scc1 L_ok%d" % k, "s_nop 2",
               "s_cbranch_vccnz L_re%d" % k, "L_ok%d:" % k],
              rd=["v%d" % t], wr=["vcc", "scc", "s%d" % sSPIN, "s%d" % sT1] + ["v%d" % r for r in regs])
    raw.cost = 32
    return fast + [raw]

def t_kv_red(RR=80):
    ld = []
    for k in range(4):
        ld += ["s_mov_b32 s%d, %d" % (sT1, 8704 * k), "buffer_load_dwordx4 %s, v%d, %s, s%d offen sc1" % (vr(RR + 4 * k, 4), vKRL, srd(SW), sT1)]
    iss = [L("\n".join(ld[2 * k:2 * k + 2])) for k in range(4)]
    out = data_poll(ld, list(range(RR, RR + 16)), vKVA)
    for j in range(4):
        out += L("v_add_f32 v%d, v%d, v%d\nv_add_f32 v%d, v%d, v%d" % (RR + j, RR + j, RR + 4 + j, RR + 8 + j, RR + 8 + j, RR + 12 + j))
    for j in range(4): out += L("v_add_f32 v%d, v%d, v%d" % (RR + j, RR + j, RR + 8 + j))
    out += L("""
    v_permlane16_swap_b32 v{a}, v{b}
    v_permlane16_swap_b32 v{c}, v{d}
    v_add_f32 v{a}, v{a}, v{b}
    v_add_f32 v{c}, v{c}, v{d}
    v_permlane32_swap_b32 v{a}, v{c}
    v_add_f32 v{a}, v{a}, v{c}
    buffer_store_dword v{a}, v{s}, {sr}, 0 offen sc1
    """.format(a=RR, b=RR + 1, c=RR + 2, d=RR + 3, s=vKRS, sr=srd(SW)))
    needs(iss, KRL=vKRL); needs(out, KRS=vKRS); flat(iss)[1].after_hs = True
    out[-1].gives = "kvf"; [x for x in out if x.kind == "raw"][0].waits = [("A", "kvp")]
    return iss, out

def t_att_q(Q=SET0, T8=64):
    out = []
    if cfg.x_notask: return [I("s_nop 0")]
    out += phi_mfma(Q, T8) + phi_mfma(Q + 16, T8 + 8) + [Gap(1)] * (Q != SET0)
    out += softmax2(Q, 0) + softmax2(Q + 8, 0) + softmax2(Q + 16, 1) + softmax2(Q + 24, 1)
    return out

KR = 32
def t_kv_load():
    ld = []
    for hh in range(2):
        for r4 in range(4):
            ld += ["buffer_load_dwordx4 %s, v%d, %s, 0 offen offset:%d sc1" % (vr(KR + 16 * hh + 4 * r4, 4), vKVL, srd(SW), 2176 * hh + 544 * r4)]
    chk = data_poll(ld, list(range(KR, KR + 32)), vKVA); chk[-1].waits = [("B", "kvf")]
    return needs(L("\n".join(ld)), KVL=vKVL), chk

def t_o(Q=SET0, D=64):
    out = []
    for hh in range(2):
        for j in range(8): out += L("v_cvt_pk_bf16_f32 v%d, v%d, v%d" % (KR + 16 * hh + j, KR + 16 * hh + 2 * j, KR + 16 * hh + 2 * j + 1))
    seq = [(hh, blk) for hh in range(2) for blk in range(2)]
    def mm(k):
        hh, blk = seq[k]; d = D + 16 * (k & 1); p = Q + 16 * blk + 8 * hh
        return L("v_mfma_f32_32x32x16_bf16 %s, %s, %s, 0" % (vr(d, 16), vr(KR + 16 * hh, 4), vr(p + 4, 4))) + \
               L("v_mfma_f32_32x32x16_bf16 %s, %s, %s, %s" % (vr(d, 16), vr(KR + 16 * hh + 4, 4), vr(p, 4), vr(d, 16)))
    def fin(k):
        hh, blk = seq[k]; d = D + 16 * (k & 1)
        o = L("v_add_f32 v%d, 0x358637bd, v%d\nv_rcp_f32 v%d, v%d" % (d + 8, d + 8, d + 8, d + 8))
        for r in range(8):
            o += L("v_mul_f32 v%d, v%d, v%d" % (d + r, d + 8, d + r))
            if r & 1: o += L("v_cvt_pk_bf16_f32 v%d, v%d, v%d" % (d + r // 2, d + r - 1, d + r))
        st = L("s_mov_b32 s%d, %d" % (sT1, 28 * 2048)) + \
             L("buffer_store_dwordx4 %s, v%d, %s, s%d offen offset:%d sc1" % (vr(d, 4), vHST, srd(SW), sT1, 2048 * hh + 1024 * blk), tag="ost" if k == 3 else None)
        return o + [st]
    out += mm(0) + mm(1) + fin(0) + mm(2) + fin(1) + mm(3) + fin(2) + fin(3)
    return out

def dma(vo, sr, so, imm, tag=None):
    role = "XD" if sr == SX else "WQD" if sr == SQ else "W2D" if sr in (SD, SO) else "WHD" if vo == WHD else "WGD"
    return needs(dma_(vo, sr, so, imm, tag), **{role: vo})

def dma_(vo, sr, so, imm, tag=None):
    return L("buffer_load_dwordx4 v%d, %s, %s offen%s lds" % (vo, srd(sr), so, " offset:%d" % imm if imm else ""), tag=tag)

def m0set(base, lit): return L("s_add_u32 m0, s%d, %d" % (base, lit))

def dma_x(c, slot, tag):
    if not cfg.rot:
        g = m0set(sLX, slot * PITCH) + L("s_movk_i32 s%d, %d" % (sH2 + 0 if False else 79, 128 * c))
        return [g + dma(XD, SX, "s79", 0)] + [dma(XD + i, SX, "s79", 1024 * i, tag if i == 3 else None) for i in range(1, 4)]
    g = m0set(sLX, slot * PITCH)
    return [g + dma(XD, SX, "s%d" % (sKX + c), 0)] + [dma(XD + i, SX, "s%d" % (sKX + c), 1024 * i, tag if i == 3 else None) for i in range(1, 4)]

def dma_full(vo, sr, kreg, extra, slot, tag):
    g = m0set(sL2K, slot * PITCH)
    so = "s%d" % kreg
    if not cfg.rot:
        lit = extra + ((kreg - sKQ) * 64 * 3072 if kreg < sKG else (kreg - sKG) * 64 * 3584)
        g += L("s_mov_b32 s%d, %d" % (sT0, lit)); so = "s%d" % sT0
        return [g + dma(vo, sr, so, 0) + dma(vo + 1, sr, so, 1024, tag)]
    if extra:
        g += L("s_add_u32 s%d, s%d, %d" % (sT0, kreg, extra)); so = "s%d" % sT0
        return [g + dma(vo, sr, so, 0) + dma(vo + 1, sr, so, 1024, tag)]
    return [g + dma(vo, sr, so, 0) + dma(vo + 1, sr, so, 1024, tag)]

def dma_half(c, slot, tag):
    so = "s%d" % (sKG + c)
    if not cfg.rot:
        mv = lambda: L("s_mov_b32 s%d, %d" % (sT0, c * 64 * 3584)); so = "s%d" % sT0
        return [m0set(sL1K, slot * PITCH) + mv() + dma(WHD, SG, so, 0), m0set(sL1K, slot * PITCH + 4128) + mv() + dma(WHD, SU, so, 0, tag)]
    return [m0set(sL1K, slot * PITCH) + dma(WHD, SG, so, 0), m0set(sL1K, slot * PITCH + 4128) + dma(WHD, SU, so, 0, tag)]

def slice_src(n):
    return (SD, sWDB, 16 * n) if n < 28 else (SO, sWOB, 16 * (n - 28))

FIRST = [0, 8, 16, 24, 28, 36]
SMALL = [3]
sR2 = sKX
def cls_of(n):
    c = max(k for k in range(5) if FIRST[k] <= n)
    return c, n - FIRST[c]

def r2_table():
    out = [L("s_and_b32 s{a}, s{tt}, 3\ns_lshl_b32 s{a}, s{a}, 1\ns_add_u32 s{a}, s{a}, s{ct}\ns_and_b32 s{a}, s{a}, {m}\ns_lshl_b32 s{a}, s{a}, 11".format(a=sR2, tt=sTT, ct=sCT, m=7 if cfg.rot2 else 0))]
    for i in range(1, 8): out.append(L("s_add_u32 s{a}, s{p}, 2048\ns_and_b32 s{a}, s{a}, 0x3800".format(a=sR2 + i, p=sR2 + i - 1)))
    return defines(out, R2T=["s%d" % (sR2 + i) for i in range(8)])

def dma_w2(n, slot):
    sr, base, row = slice_src(n)
    c, i = cls_of(n)
    g = m0set(sL2K, slot * PITCH)
    if c == SMALL[0]: g += L("s_and_b32 s{t}, s{r}, 0x1800\ns_lshl3_add_u32 s{t}, s{t}, s{b}".format(t=sT0, r=sR2 + i, b=base))
    else: g += L("s_lshl3_add_u32 s{t}, s{r}, s{b}".format(t=sT0, r=sR2 + i, b=base))
    needs(g, R2T="s%d" % (sR2 + i))
    g += dma(W2D, sr, "s%d" % sT0, 0) + dma(W2D + 1, sr, "s%d" % sT0, 1024, "w2_%d" % n)
    if n + 1 in FIRST[1:4]: g += L("s_add_u32 s%d, s%d, %d" % (sWDB, sWDB, 16384 * (FIRST[c + 1] - FIRST[c])))
    return [g]

def h_load(n):
    c, i = cls_of(n)
    if c == SMALL[0]: g = L("s_and_b32 s{t}, s{r}, 0x1800\ns_add_u32 s{t}, s{t}, {l}".format(t=sT1, r=sR2 + i, l=FIRST[c] * 2048))
    else: g = L("s_add_u32 s%d, s%d, %d" % (sT1, sR2 + i, FIRST[c] * 2048))
    needs(g, R2T="s%d" % (sR2 + i))
    a = 8 * (n % 32)
    for b in range(2):
        g += L("buffer_load_dwordx4 %s, v%d, %s, s%d offen%s sc1" % (ar(a + 4 * b, 4), vHLD, srd(SW), sT1, " offset:1024" if b else ""))
    return needs(g, HLD=vHLD)

def build_type(typ):
    global vHLD, vPOL
    A = typ == "A"
    vHLD, vPOL = (186, 187) if A else (155, 253)
    passes = [("att2", 2, SET0, 0), ("pair", 2, SET1, 2), ("half", 1, SET0, 4)] if A else \
             [("pair", 2, SET0, 0), ("pair", 2, SET1, 2), ("q", 1, SET0, 4)]
    WRs = [WR1, WR2, WR3]
    ACC2 = [16, 32, 208, 224] if A else [96, 112, 208, 224]
    accr = lambda p, j, b: (0, 48)[b] if (A and p == 2) else passes[p][2] + 32 * j + 16 * b
    if cfg.o212:
        passes = [("att2", 2, SET0, 0), ("half", 1, SET1, 2), ("pair", 2, SET0, 4)] if A else \
                 [("pair", 2, SET0, 0), ("q", 1, SET1, 2), ("pair", 2, SET0, 4)]
        ACC2 = [16, 32, 64, 80] if A else [96, 112, 208, 224]
        accr = lambda p, j, b: ((96, 112), (0, 48))[j][b] if (A and p == 2) else passes[p][2] + 32 * j + 16 * b
        FIRST[:] = [0, 8, 12, 20, 28, 36]; SMALL[:] = [1]
    S = Sched()
    step_beat = {}
    nt = lambda g: passes[g // 32][1]
    wbuf = lambda g, j: WF + (8 * (g & 1) + 4 * j if nt(g) == 2 else 4 * (g & 3))

    slot_of = {}
    for c in range(8):
        slot_of[("x", c)] = 2 * (c % 4); slot_of[("w", 0, c)] = 8 + 2 * (c % 4)
    def item_dma(it):
        if it[0] == "x": return dma_x(it[1], slot_of[it], "x%d" % it[1])
        if it[0] == "s": return dma_w2(it[1], slot_of[it])
        _, p, c = it; kind = passes[p][0]; sl = slot_of[it]; tag = "w%d_%d" % (p, c)
        if kind == "att2": return dma_full(WQD, SQ, sKQ + c, 0, sl, None) + dma_full(WQD, SQ, sKQ + c, 1024, sl + 1, tag)
        if kind == "q": return dma_full(WQD, SQ, sKQ + c, 0, sl, tag)
        if kind == "half": return dma_half(c, sl, tag)
        ex = (384 if cfg.o212 else 256) if (not A and p > 0) else 0
        return dma_full(WGD, SG, sKG + c, ex, sl, None) + dma_full(WGD, SU, sKG + c, ex, sl + 1, tag)
    def item_slots(it):
        if it[0] == "x": return 2
        if it[0] == "s": return 1
        return 2 if passes[it[1]][0] in ("att2", "pair") else 1

    def m16(d, sel, src, first): S.beat(I("v_mfma_f32_16x16x32_bf16 %s, %s, %s, %s" % (vr(d, 4), vr(sel, 4), src, "0" if first else vr(d, 4))), 16)
    def row_stats(k):
        for h in range(2):
            for b in range(2):
                d = vr((SQD, SQD2)[h] + 4 * b, 4)
                S.beat(I("v_mfma_f32_4x4x4_16b_bf16 %s, %s, %s, %s" % (d, ar(8 * k + 4 * b + 2 * h, 2), ar(8 * k + 4 * b + 2 * h, 2), "0" if k == 0 else d)), 8)
        m16(RSD, SEL01, ar(8 * k, 4), k == 0); m16(RSD, SEL23, ar(8 * k + 4, 4), False)
    def col_stats(g):
        for j in range(nt(g)): m16(CSD, (SEL01, SEL23)[j], vr(wbuf(g, j), 4), g % 32 == 0 and j == 0)
    for g in range(96):
        p, c, t = g // 32, (g // 4) % 8, g % 4
        kind, T, acc, tile0 = passes[p]
        step_beat[g] = len(S.beats)
        k = g % 32
        if cfg.st_early and c == 7 and T == 2 and t == 1 and not cfg.x_nostat: col_stats(g)
        for j in range(T):
            for b in range(2):
                d = vr(accr(p, j, b), 16)
                S.beat(I("v_mfma_f32_32x32x16_bf16 %s, %s, %s, %s" % (d, vr(wbuf(g, j), 4), ar(8 * k + 4 * b, 4), "0" if k == 0 else d)))
        if t < 2 and not cfg.x_nostat:
            early = cfg.st_early and c == 7 and T == 2
            if p == 0:
                for kk in ([k] if not early else [k, k + 1] if t == 0 else []): row_stats(kk)
            if cfg.st_early and c == 7 and T == 1 and p == 1:
                if t == 0: col_stats(g); col_stats(g + 1)
            elif not (early and t == 1): col_stats(g)
    step_beat[96] = len(S.beats)
    sl_beat = {}
    for n in range(36):
        sl_beat[n] = len(S.beats)
        w = WF + 8 * (n & 1); a = 8 * (n % 32)
        for cb in range(2):
            for tb in range(2):
                d = vr(ACC2[2 * cb + tb], 16)
                S.beat(I("v_mfma_f32_32x32x16_bf16 %s, %s, %s, %s" % (d, vr(w + 4 * cb, 4), ar(a + 4 * tb, 4), "0" if n == 0 else d)), cfg.p2period)
    sl_beat[36] = len(S.beats)
    S.beat(None)

    bar_step = {}
    for cc in range(24):
        T = passes[cc // 8][1]
        bar_step[cc] = 4 * cc + (3 if (T == 2 or cc == 23) else 2)
    last_rd = {}
    def w_reads(g, j):
        p, c, t = g // 32, (g // 4) % 8, g % 4
        kind = passes[p][0]; sl = slot_of[("w", p, c)]
        if p == 0: base, off = WR1 + (t >> 1), (sl - 8) * PITCH
        else: base, off = WRs[p] + 2 * (sl >= 8) + (t >> 1), (sl % 8) * PITCH
        if kind == "att2": off += j * PITCH
        if kind == "pair": off += 32 * j
        st, js = (1024, 256) if kind == "half" else (2048, 512)
        off += (t & 1) * st
        w = wbuf(g, j)
        role = {"att2": "Watt", "q": "Watt", "pair": "Wpair", "half": "Whalf"}[kind]
        return needs([I("ds_read_b64_tr_b16 %s, v%d offset:%d" % (vr(w + 2 * e, 2), base, off + e * js)) for e in range(2)], **{role: base})
    def x_reads(g):
        c, t = g // 4, g % 4
        return needs([I("ds_read_b128 %s, v%d offset:%d" % (ar(8 * g + 4 * b, 4), XR + t, slot_of[("x", c)] * PITCH + 4096 * b)) for b in range(2)], XR=XR + t)
    def w2_reads(n):
        sl = slot_of[("s", n)]; w = WF + 8 * (n & 1)
        return needs([I("ds_read_b64_tr_b16 %s, v%d offset:%d" % (vr(w + 4 * cb + 2 * e, 2), W2R + 2 * (sl >= 8) + cb, (sl % 8) * PITCH + 1024 * e)) for cb in range(2) for e in range(2)], W2R=range(W2R, W2R + 4))

    queue = []
    for c in range(cfg.npro, 8): queue += [("x", c), ("w", 0, c)]
    queue += [("w", 1, c) for c in range(8)]
    if cfg.o212: queue += [("w", 2, c) for c in range(8)] + [("s", n) for n in range(36)]
    elif cfg.mix:
        for c in range(8): queue += [("w", 2, c), ("s", c)]
        queue += [("s", n) for n in range(8, 36)]
    else: queue += [("w", 2, c) for c in range(8)] + [("s", n) for n in range(36)]
    free = set()
    for c in range(cfg.npro, 4): free |= {2 * c, 2 * c + 1, 8 + 2 * c, 9 + 2 * c}
    issue_after = {}; held = []
    n_ins = lambda it: 4 if item_slots(it) == 2 else 2
    for cc in range(-1, 24):
        p, c = max(cc, 0) // 8, cc % 8
        T = passes[p][1] if cc >= 0 else 0
        rel = []
        budget = (cfg.pacew if A or cfg.pacewB is None else cfg.pacewB).get(cc, cfg.pace[p] if cc >= 0 else cfg.pace0)
        if T == 2 or cc == 23:
            rel.append(cc)
            if cc > 0 and passes[(cc - 1) // 8][1] == 1: rel.append(cc - 1)
        elif cc > 0 and passes[(cc - 1) // 8][1] == 1: rel.append(cc - 1)
        held += rel; rel = []
        if cc not in cfg.skipbar: rel, held = held, []
        for r in rel:
            it = ("w", r // 8, r % 8)
            free |= set(range(slot_of[it], slot_of[it] + item_slots(it)))
            if r < 8: free |= {slot_of[("x", r)], slot_of[("x", r)] + 1}
        got = []
        while queue:
            it = queue[0]; ns = item_slots(it)
            if it in slot_of: cand = [slot_of[it]] if all(slot_of[it] + i in free for i in range(ns)) else []
            elif ns == 2: cand = [s for s in sorted(free) if s % 2 == 0 and s + 1 in free]
            else: cand = sorted(free)
            if not cand or budget < n_ins(it): break
            budget -= n_ins(it)
            slot_of[it] = cand[0]
            for i in range(ns): free.discard(cand[0] + i)
            got.append(queue.pop(0))
        issue_after[cc] = (rel, got)
    p2_issue = {}
    for n in range(36):
        free.add(slot_of[("s", n)])
        for k in range(cfg.p2pace):
            if queue and free and n >= (cfg.w2at if A or not cfg.w2atB else cfg.w2atB)(queue[0][1]):
                it = queue.pop(0); slot_of[it] = min(free); free.discard(slot_of[it]); p2_issue.setdefault(n, []).append(it)
    print(typ, "prefetched slices before P2:", 36 - sum(len(x) for x in p2_issue.values()))

    where = {}
    for g in range(1, 96):
        T = nt(g); k = g % 32
        for j in range(T):
            if T == 2: at = g - 1 if not (k == 0 and nt(g - 1) == 1 and j == 0) else g - 2
            else: at = g - 2 if not (k < 2 and nt(g - k - 1) == 2) else g - k - 1
            where.setdefault(at, []).append(("w", g, j))
        if g < 32: where.setdefault(g - 1 if not cfg.x_early else g - (1, 1, 2, 2)[g % 4], []).append(("x", g))
    for at, lst in sorted(where.items()):
        ins = []
        for it in lst:
            r = w_reads(it[1], it[2]) if it[0] == "w" else x_reads(it[1])
            if it[1] % 4 == 3:
                r[-1].tag = "rd%d_%s%d" % (it[1] // 4, it[0], it[2] if it[0] == "w" else 0)
                last_rd[it[1] // 4] = r[-1].tag
            ins += r
        b0 = step_beat[at]; nb = 2 * nt(at)
        late_x = []
        if cfg.x_early and at < 32 and at % 4 < 2:
            k0 = 6 if at % 4 == 0 else 4
            ins, late_x = ins[:k0], ins[k0:]
            for x in late_x: x.tag = None
            for i, x in enumerate(late_x): S.put(b0 + 2 + i, x)
        if cfg.rd_early and len(ins) == 6: ins = [ins[0], ins[1], ins[4], ins[5], ins[2], ins[3]]
        if cfg.rd_early:
            tg = [x.tag for x in ins if x.tag]
            if tg:
                for x in ins: x.tag = None
                ins[-1].tag = last_rd[lst[0][1] // 4]
        if cfg.one_wait and nt(at) == 2 and at + 1 in step_beat and lst[0][1] == at + 1:
            if not ins[-1].tag: ins[-1].tag = "stp%d" % at
            S.put(step_beat[at + 1], Wait(ins[-1].tag), pre=True)
        nbb = 2 if cfg.rd_early else nb
        for i, x in enumerate(ins): S.put(b0 + min(nbb - 1, i * nbb // len(ins)), x)

    extra_pre = {}
    def place_barriers():
        for cc in range(24):
            b = step_beat[bar_step[cc]]
            if cc in cfg.skipbar:
                assert cc not in extra_pre and cc not in extra_wait
                continue
            pre = []
            for r in issue_after[cc][0]: pre.append(Wait(last_rd[r]))
            if cc in extra_pre: pre.append(Wait("lgkm0"))
            if cc in extra_wait: pre.append(Wait(extra_wait[cc]))
            if cc < 23:
                nx = cc + 1
                while nx in cfg.skipbar: nx += 1
                if nx < 8: pre.append(Wait("x%d" % nx))
                pre.append(Wait("w%d_%d" % (nx // 8, nx % 8)))
            pre.append(I("s_barrier"))
            S.beats[b]["pre"] = pre + S.beats[b]["pre"]
    bb = lambda cc: step_beat[bar_step[cc]]
    for cc in range(-1, 24):
        items = []
        for it in issue_after[cc][1]: items += item_dma(it)
        if items: S.spread(items, (bb(cc) + cfg.wdelay.get(cc, 0)) if cc >= 0 else cfg.w1_from, bb(cc + 1) if cc < 23 else sl_beat[0] + 2)

    r0 = w2_reads(0)
    S.put(step_beat[95], [Wait("w2_0")] );
    for i, x in enumerate(r0): S.put(step_beat[95] + min(i // 2, 2 * nt(95) - 1), x)
    for n in range(36):
        b = sl_beat[n]
        if n + 1 < 36:
            S.put(b, Wait("w2_%d" % (n + 1)))
            for i, x in enumerate(w2_reads(n + 1)): S.put(b + i, x)
        for k, it in enumerate(p2_issue.get(n, [])): S.put(b + 2 + k, dma_w2(it[1], slot_of[it])[0])

    sp = lambda g: step_beat[g]
    sl0 = sl_beat[0]
    def after(b, cyc):
        while cyc > 0: cyc -= max(S.beats[b]["period"], S.load(b)); b += 1
        return b
    def end_of(it):
        cc = [c for c in issue_after if it in issue_after[c][1]][0]
        return bb(cc + 1)
    def start_of(it):
        cc = [c for c in issue_after if it in issue_after[c][1]][0]
        return bb(cc)
    assert start_of(("w", 1, 0)) >= sp(cfg.setup_end) and end_of(("x", 7)) < sp(28)
    for cc in range(24):
        if cc not in cfg.skipbar:
            for k in range(cfg.quiet): S.beats[bb(cc) + k]["quiet"] = True
    setup = late_setup(A)
    pro_setup = []
    if cfg.pro_setup:
        setup = flat(setup)
        mem = [x for x in setup if x.kind == "vm"]
        pro_setup = [x for x in setup if x.kind != "vm"]
        S.spread(mem, sp(cfg.clr_at), sp(cfg.clr_at + 5))
    else: S.spread(setup, sp(1), sp(cfg.setup_end), "setup")
    if cfg.wpf: S.put(sp(cfg.wpf), w_touch(cfg.wpf1, 110))
    if not A and cfg.bt2: S.put(sp(cfg.bt2), b_touch2(120, 2, 4))
    if not A and cfg.bt3: S.put(sp(cfg.bt3), b_touch2(122, 6, 1) + b_touch3(124))
    if cfg.late_g: S.put(sp(cfg.late_g), w_touch([(SG, 14), (SU, 14), (SQ, 12)], 102))
    if cfg.late_d: S.put(sp(cfg.late_d), w_touch([(SD, 14), (SO, 4)], 120) + (p3_touch(124) if cfg.late_u else []))
    if cfg.p3t: S.put(sp(cfg.p3t), p3_touch(116))
    if cfg.wpfd: S.put(sp(cfg.wpfd), w_touch([(SD, 14), (SO, 4)], XR + 1))
    extra_wait = {4: "clr"}
    S.put(bb(4), needs(L("v_mov_b32 v%d, 1\nbuffer_atomic_add v%d, v%d, %s, 0 offen" % (KVD + 1, KVD + 1, KVD, srd(SDBG))), HSA=KVD))
    S.put(sp(21), wphi_finish())
    STASH = 120 - 16
    stash_pro = []
    def stash(ins, regs, at):
        ins = flat(ins); k0 = stash.n
        for k, r in enumerate(regs):
            for x in ins:
                role = getattr(x, "role", {}).get("v%d" % r)
                if "v%d" % r in x.rd + x.wr:
                    y = I(re.sub(r"\bv%d\b" % r, "v%d" % (STASH + k0 + k), x.text)); x.text, x.rd, x.wr = y.text, y.rd, y.wr
                if role:
                    del x.role["v%d" % r]
                    mv = I("v_mov_b32 v%d, v%d" % (r, STASH + k0 + k)); mv.role = {"v%d" % r: role}; S.put(at + k // 2, mv)
        stash.n += len(regs); assert stash.n <= 16
        stash_pro.extend(ins)
    stash.n = 0
    if cfg.stash:
        stash(addr_wfull(WR2, 4, False, False), range(WR2, WR2 + 4), max(end_of(("x", 7)), sp(26)))
        stash(addr_whalf(WR3) if A else addr_wfull(WR3, 4, True, False), range(WR3, WR3 + 4), sp(31))
        if A: stash(addr_cs(False), [vCSA], sp(31) + 3)
        if A: stash(addr_p2()[-2:], [vHLD, vPOL], sp(26))
        else: stash_pro.extend(flat(addr_p2()[-2:]))
    else: S.spread((addr_whalf(WR2, TMP + 8) if A else addr_wfull(WR2, 4, True, False, TMP + 8)) if cfg.o212 else addr_wfull(WR2, 4, False, False, TMP + 8), max(end_of(("x", 7)), sp(22)), sp(30))
    S.spread(r2_table(), max(end_of(("x", 7)), sp(22)), sp(30))
    pre, adds = t_stat_add()
    S.spread(pre, sp(26), sp(28))
    cs_pub = lambda tile0: [Gap(1)] + t_cs_add(tile0, 'CSs' if A and tile0 == 0 else 'CS')
    S.spread(adds + cs_pub(0)[1:], sp(29) + 2, sp(30) + 1) if cfg.st_early else S.spread(cs_pub(0) + adds, sp(30), sp(31)); extra_pre[7] = 1
    fin, late = t_stat_fin()
    S.spread(t_cs_tot(0, TMP + 2), sp(31), sp(32))
    S.spread(fin, sp(31), sp(32))
    hs_i, hs_c = poll(XR, XR + 1, "8" if cfg.dbgout else "4", SDBG, "gt")
    if cfg.dbgout: S.put(sp(36), L("v_and_b32 v%d, 31, v%d\nv_lshlrev_b32 v%d, 2, v%d\nv_add_u32 v%d, 64, v%d" % (XR, vL, XR, XR, XR, XR)) + [hs_i])
    else: S.put(sp(cfg.hs[0]), [I("v_lshlrev_b32 v%d, 2, v%d" % (XR, vL)), hs_i])
    hs_c.gives = "hs" + typ
    S.put(sp(cfg.hs[1]), stamp("hs0") + [hs_c] + stamp("hs1"))
    if cfg.stash and cfg.w2pf and not cfg.w2B:
        stash_pro.extend(defines(L("""
        s_and_b32 s{t0}, s{tt}, 3
        s_lshl_b32 s{t0}, s{t0}, 14
        s_lshl_b32 s{t1}, s{ct}, 7
        s_add_u32 s{t0}, s{t0}, s{t1}
        v_and_b32 v{x}, 15, v{L}
        v_lshl_add_u32 v{x}, v{x}, 10, s{t0}
        s_mul_i32 s{b}, s{wv}, {w}
        """.format(t0=sT0, t1=sT1, tt=sTT, ct=sCT, x=180, L=vL, b=sPB, wv=sWV, w=448 * 1024)), TCH0=180))
        mv = I("v_mov_b32 v%d, v180" % (XR + 3)); mv.role = {"v%d" % (XR + 3): "TCH"}; S.put(sp(30) + 3, needs(mv, TCH0=180))
    TA, TW = XR + 2, (56 if cfg.w2row else 52)
    if cfg.w2row: S.put(sp(30) + 2, w2_row_addr(XR + 3, None))
    for k, (st, n0, ns) in enumerate(cfg.w2pf):
        if cfg.w2row:
            S.put(sp(st) + 2, w2_row_touch(XR + 3, (WR1 + 2, WR1 + 3)[k & 1] if st < 50 else (WGD, WGD + 1)[k & 1], n0)); continue
        assert cfg.o212 or sp(st) >= end_of(("w", 1, 7))
        if cfg.o212:
            S.put(sp(st) + 1, w2_touch(XR + 2 + (k & 1), n0, ns)); continue
        if cfg.stash and not cfg.w2B:
            sr, base, row = slice_src(n0); assert ns == 4
            S.put(sp(st) + 2, needs(L("s_add_u32 s%d, s%d, %d\nbuffer_load_dword v%d, v%d, %s, s%d offen" % (sT0, sPB if sr == SD else sWOB, row * 1024, WGD + (k & 1), XR + 3, srd(sr), sT0)), TCH=XR + 3))
            continue
        if cfg.w2B and A: continue
        S.put(sp(st) + 2, w2_touch(WGD + (k & 1), n0, ns, cfg.w2B))
    if cfg.o212:
        S.spread(addr_wfull(WR3, 4, False, False, XR) + (addr_cs(False, XR) if A else []), sp(46), sp(56))
        S.spread(addr_p2(XR)[-2:], sp(56), sp(59))
        S.spread(cs_pub(2), sp(61), sp(62)); extra_pre[15] = 1
        S.spread(t_cs_tot(2, XR), sp(62), sp(64))
        S.spread(cs_pub(4), sp(94) - 3 * cfg.st_early, sp(95) - 3 * cfg.st_early); extra_pre[23] = 1
        S.spread(t_cs_tot(4, WR2 + 1), sp(95), sl0)
        S.spread(addr_p2(WR2 + 1)[:-2], sp(72), sp(88))
        so3 = "s_mov_b32 s%d, %d" % (sT1, (20 if A else 12) * 2048)
        r3 = [[accr(2, j, b) for b in range(2)] for j in range(2)]
        if A:
            att = t_corr(SET0, 2, 0) + late + t_att_k()
            busy = {"v%d" % r for r in list(range(16)) + list(range(48, 64))}
            k1 = 1 + max(k for k, it in enumerate(att) if not isinstance(it, Gap) and any(busy & set(x.rd + x.wr) for x in flat([it])))
            S.spread(att[:k1], sp(32), sp(64) + 1, "att_k 1")
            so = "s_mov_b32 s%d, s%d" % (sT1, sH2)
            eh = S.spread(t_corr(SET1, 1, 2) + [Gap(2)] + t_hepi(SET1, so, 0, "h1"), sp(64 + cfg.a_hh), sp(64 + cfg.a_hh + 4), "hepi half")
            S.put(after(eh, cfg.fd), set_flag(1, "h1", WR2 + 3))
            e = S.spread(att[k1:], sp(64) + 1, sp(64 + cfg.a_att2), "att_k 2")
            cb = min(cc for cc in range(8, 24) if bb(cc) > e and cc not in cfg.skipbar); extra_pre[cb] = 1
            print("  kv exchange barrier chunk", cb)
            e = S.spread(t_kv_pub(), bb(cb), min(bb(cb) + cfg.a_pub, sl0), "kv_pub")
            S.put(e, stamp("kvi"))
            e = S.spread(t_corr(0, 2, 4, regs=r3) + t_hepi(96, so3, 0, None) + t_hepi(0, so3, 2048, "h2", 48), sl0, sl0 + cfg.h3, "hepi pair")
            S.put(after(e, cfg.fd), set_flag(2, "h2", vPW))
            last_task = e
        else:
            so = "s_mov_b32 s%d, 0" % sT1
            e = S.spread(t_corr(SET0, 2, 0) + late + t_hepi(SET0, so, 0, None) + t_hepi(SET0 + 32, so, 2048, "h0"), sp(32), sp(32 + cfg.b_h0), "hepi0")
            assert e < sp(64)
            S.put(after(e, cfg.fd), set_flag(1, "h0", WHD))
            S.spread(t_corr(SET1, 1, 2) + [Gap(2)] + t_att_q(SET1, 96), sp(64), sp(64 + cfg.b_att), "att_q")
            e = S.spread(t_corr(SET0, 2, 4) + t_hepi(SET0, so3, 0, None) + t_hepi(SET0 + 32, so3, 2048, "h1"), sl0, sl0 + cfg.h3, "hepi pair")
            S.put(after(e, cfg.fd), set_flag(2, "h1", WHD))
            ri, rc = t_kv_red(112 if cfg.b_rc < 0 else 0)
            li, lc = t_kv_load()
            assert cfg.b_rc < 0 or sl0 + cfg.b_ri > e
            S.spread(ri, sl0 + cfg.b_ri, sl0 + cfg.b_ri + 2)
            S.put(sl0 + cfg.b_rc, stamp("kr0") + rc + stamp("kr1"))
            assert sl0 + cfg.b_li > e
            S.spread(li, sl0 + cfg.b_li, sl0 + cfg.b_li + 4)
            S.put(sl0 + cfg.b_lc, stamp("kp0") + lc + stamp("kp1"))
            e = S.spread(t_o(SET1, 0), sl0 + cfg.b_lc, sl0 + cfg.b_lc + cfg.b_o, "o")
            S.put(after(e, cfg.fd), set_flag(3, "ost", WHD))
            last_task = e
    else:
        S.spread(cs_pub(2), sp(62) - 3 * cfg.st_early, sp(63) - 3 * cfg.st_early); extra_pre[15] = 1
        S.spread(t_cs_tot(2, XR + 2), sp(63), sp(64))
        S.spread(cs_pub(4), sp(94), sp(95)); extra_pre[23] = 1
        S.spread(t_cs_tot(4, WR2 + 1), sp(95), sl0)
        x = addr_p2(WR2 + 1)
        if not cfg.stash: S.spread(addr_p2(XR + 2)[-2:], sp(62), sp(63))
        S.spread(x[:-2], sp(76), sp(90))
        so2 = "s_mov_b32 s%d, %d" % (sT1, (16 if A else 8) * 2048)
        if A:
            if not cfg.stash: S.spread(addr_whalf(WR3, TA) + addr_cs(False, TA), sp(TW), sp(TW + (8 if TW == 52 else 4)))
            att = t_corr(SET0, 2, 0) + late + t_att_k()
            h1 = t_hepi(SET1, so2, 0, None) + t_hepi(SET1 + 32, so2, 2048, "h1")
            if cfg.h1first:
                eh = S.spread(t_corr(SET1, 2, 2) + h1, sp(64), sp(64 + cfg.h1first), "hepi1")
                S.put(after(eh, cfg.fd), set_flag(1, "h1", WR2 + 3))
            else: S.spread(t_corr(SET1, 2, 2), sp(64), sp(68))
            e = S.spread(att, sp(32), sp(32 + cfg.a_att), "att_k")
            busy = {"v%d" % r for r in list(range(16)) + list(range(48, 64))}
            later = [x for b in range(sp(64), e + 1) for x in flat(S.beats[b]["post"])]
            assert not any(x in later and busy & set(x.rd + x.wr) for x in flat(att) if isinstance(x, I)), "pass-3 accumulators still in use"
            cb = min(cc for cc in range(8, 24) if bb(cc) > e and cc not in cfg.skipbar); extra_pre[cb] = 1
            print("  kv exchange barrier chunk", cb)
            e = S.spread(t_kv_pub(), bb(cb), min(bb(cb) + cfg.a_pub, sl0), "kv_pub")
            S.put(e, stamp("kvi"))
            if not cfg.h1first:
                b0 = e + 1
                e = S.spread(h1, b0, min(b0 + cfg.a_h1, sl0 + 4), "hepi1")
                S.put(after(e, cfg.fd), set_flag(1, "h1", vPW))
            so = "s_mov_b32 s%d, s%d" % (sT1, sH2)
            S.spread(t_corr(SET0, 1, 4, 48), sl0, sl0 + 1)
            b0 = max(e, sl0 + 2)
            e = S.spread(t_hepi(SET0, so, 0, "h2", 48), b0, b0 + cfg.a_h2, "hepi2")
            S.put(after(e, cfg.fd), set_flag(2, "h2", vPW))
            last_task = e
        else:
            so = "s_mov_b32 s%d, 0" % sT1
            e = S.spread(t_corr(SET0, 2, 0) + late + t_hepi(SET0, so, 0, None) + t_hepi(SET0 + 32, so, 2048, "h0"), sp(32), sp(32 + cfg.b_h0), "hepi0")
            S.put(after(e, cfg.fd), set_flag(1, "h0", WHD))
            if not cfg.stash: S.spread(addr_wfull(WR3, 4, True, False, TA), sp(TW), sp(TW + (8 if TW == 52 else 4)))
            e = S.spread(t_corr(SET1, 2, 2) + t_hepi(SET1, so2, 0, None) + t_hepi(SET1 + 32, so2, 2048, "h1"), sp(64), sp(64 + cfg.h1), "hepi1")
            S.put(after(e, cfg.fd), set_flag(2, "h1", WHD))
            att = t_corr(SET0, 1, 4) + [Gap(1)] + t_att_q()
            ri, rc = t_kv_red()
            li, lc = t_kv_load()
            e = S.spread(att, sl0, sl0 + cfg.b_att, "att_q")
            S.spread(ri, sl0 + cfg.b_ri, sl0 + cfg.b_ri + 2)
            S.put(sl0 + cfg.b_rc, stamp("kr0") + rc + stamp("kr1"))
            S.spread(li, sl0 + cfg.b_li, sl0 + cfg.b_li + 4)
            assert e <= sl0 + cfg.b_lc
            S.put(sl0 + cfg.b_lc, stamp("kp0") + lc + stamp("kp1"))
            e = S.spread(t_o(), sl0 + cfg.b_lc, sl0 + cfg.b_lc + cfg.b_o, "o")
            S.put(after(e, cfg.fd), set_flag(3, "ost", WHD))
            last_task = e
    place_barriers()
    if cfg.walk and len(cfg.walk) > 1: S.beats[bb(cfg.walk_at)]["pre"].insert(0, walk_call(typ, 1))
    def padder(T):
        return Raw(["v_readlane_b32 s100, v%d, 0" % vSTAMP, "L_padx%s:" % typ, "s_memrealtime s[98:99]", "s_waitcnt lgkmcnt(0)", "s_sub_u32 s98, s98, s100",
                    "s_cmp_lt_u32 s98, %d" % T, "s_cbranch_scc1 L_padx%s" % typ], wr=["scc"])
    if cfg.pad_at and cfg.pad_at[0] >= 0: S.beats[sp(cfg.pad_at[0])]["pre"].insert(0, padder(cfg.pad_at[1]))
    first = FIRST
    hl = cfg.hlA if A else cfg.hlB
    for c in range(5):
        iss, chk = class_poll(c, WR2, WHD if A else WQD) if cfg.o212 else class_poll(c, (WGD, WR2)[c & 1], WGD + 1)
        pos = [sp(64 + cfg.p0) + i * cfg.hstep0 if c == 0 else sp(64 + cfg.p1) + i * cfg.hstep1 if (c == 1 and cfg.o212) else sl0 + hl[first[c] + i] for i in range(first[c + 1] - first[c])]
        S.put(pos[0] - cfg.poll_lead[c], iss)
        S.put(pos[0], stamp("cp%d_0" % c) + chk + stamp("cp%d_1" % c))
        for i, b in enumerate(pos):
            n = first[c] + i
            if b < sl0: assert b >= sp(64 + n + 1)
            assert b < sl_beat[n], (c, n)
            S.put(b, h_load(n))
    RES = TMP
    rb_ = max(last_task + 2, sl_beat[24])
    S.put(rb_, L("""
    s_lshl_b32 s{t0}, s{tt}, 2
    s_add_u32 s{t0}, s{t0}, s{wv}
    s_lshl_b32 s{t0}, s{t0}, 14
    s_lshl_b32 s{t1}, s{ct}, 7
    s_add_u32 s{t0}, s{t0}, s{t1}
    v_lshrrev_b32 v{a}, 3, v{L}
    v_lshlrev_b32 v{a}, 10, v{a}
    v_and_b32 v{b}, 7, v{L}
    v_lshl_add_u32 v{a}, v{b}, 4, v{a}
    v_add_u32 v{o}, s{t0}, v{a}
    """.format(t0=sT0, t1=sT1, tt=sTT, wv=sWV, ct=sCT, a=TMP + 8, b=TMP + 9, o=WQD - 1, L=vL)))
    vOUT = WQD - 1; vOUT_ = 6
    S.put(rb_ + 15, I("v_mov_b32 v6, v%d" % vOUT))
    S.put(rb_ + 1, L("s_mov_b32 s%d, 8192\nbuffer_load_dwordx4 %s, v%d, %s, 0 offen\nbuffer_load_dwordx4 %s, v%d, %s, s%d offen" % (sT1, vr(RES, 4), vOUT, srd(SX), vr(RES + 4, 4), vOUT, srd(SX), sT1)))
    S.spread(L("""
    v_bfe_u32 v8, v{L}, 3, 2
    v_mul_u32_u24 v8, {P}, v8
    v_and_b32 v9, 7, v{L}
    v_lshl_add_u32 v8, v9, 8, v8
    v_add_u32 v8, s{l2k}, v8
    v_lshrrev_b32 v10, 5, v{L}
    v_xor_b32 v10, v10, v9
    v_lshl_add_u32 v0, v10, 4, v8
    v_xor_b32 v11, 2, v10
    v_lshl_add_u32 v1, v11, 4, v8
    v_xor_b32 v11, 4, v10
    v_lshl_add_u32 v2, v11, 4, v8
    v_xor_b32 v11, 6, v10
    v_lshl_add_u32 v3, v11, 4, v8
    v_lshrrev_b32 v8, 3, v{L}
    v_and_b32 v10, 3, v{L}
    v_lshlrev_b32 v10, 1, v10
    v_xor_b32 v10, v10, v8
    v_bfe_u32 v11, v{L}, 2, 1
    v_lshlrev_b32 v11, 7, v11
    v_lshl_add_u32 v11, v8, 8, v11
    v_mov_b32 v9, s{wv}
    v_mul_u32_u24 v9, {P2}, v9
    v_add_u32 v11, v11, v9
    v_lshl_add_u32 v4, v10, 4, v11
    v_xor_b32 v10, 1, v10
    v_lshl_add_u32 v5, v10, 4, v11
    """.format(L=vL, P=PITCH, P2=2 * PITCH, l2k=sL2K, wv=sWV)), rb_ + 2, rb_ + 14)
    if cfg.stamps == 2:
        pts = [("b%d" % cc, bb(cc)) for cc in range(24)] + [("s%d" % n, sl_beat[n]) for n in range(0, 37) if n not in (34, 35)]
        prev = ("iss", 0)
        for k, (nm, b) in enumerate(pts):
            for x in (prev[0], nm):
                if x not in stamp_names: stamp_names.append(x)
            cur = sST + 2 * ((k + 1) & 1); old = sST + 2 * (k & 1)
            rd = I("v_writelane_b32 v%d, s%d, %d" % (vSTAMP, old, stamp_names.index(prev[0]) + 2))
            mt = I("s_memtime s[%d:%d]" % (cur, cur + 1))
            if nm[0] == "b" and int(nm[1:]) not in cfg.skipbar:
                pre = S.beats[b]["pre"]; pre.insert(len(pre) - 1, rd); pre.append(mt)
            else: S.beats[b]["pre"] = [rd, mt] + S.beats[b]["pre"]
            prev = (nm, b)
        last_stamp = I("v_writelane_b32 v%d, s%d, %d" % (vSTAMP, cur, stamp_names.index(prev[0]) + 2))
    if cfg.stamps == 3:
        lane = 2
        fine = []
        for cc in range(cfg.fine0, cfg.fine0 + 8):
            b0_, b1_ = bb(cc), bb(cc + 1)
            pts = [b0_ + (b1_ - b0_) * k // 7 for k in range(7)]
            rd = []
            for k, b in enumerate(pts):
                pr = ((40, 42, 86, 88, 90, 98, 100) if cfg.fine0 >= 8 else (40, 42, 32, 24, 20, 98, 100))[k]
                mt = I("s_memtime s[%d:%d]" % (pr, pr + 1))
                S.beats[b]["pre"].append(mt)
                rd.append(I("v_writelane_b32 v%d, s%d, %d" % (vSTAMP, pr, lane))); lane += 1
                fine.append(mt)
            pre = S.beats[b1_]["pre"]
            k = [i for i, x in enumerate(pre) if getattr(x, "kind", "") == "barrier"][0]
            S.beats[b1_]["pre"] = pre[:k] + rd + pre[k:]
        if "f0" not in stamp_names: stamp_names.extend("f%d" % k for k in range(56))
    if cfg.stamps == True:
        for nm, b in (("p1", sp(32)), ("p2", sp(64)), ("p3", sl_beat[0]), ("s8", sl_beat[8]), ("s16", sl_beat[16]), ("s20", sl_beat[20]), ("s28", sl_beat[28]), ("s36", sl_beat[36]),
                      ("c1", sp(4)), ("c2", sp(8)), ("c4", sp(16))):
            S.put(b, stamp(nm), pre=True)

    pro = entry_x(item_dma)
    n_common = len(pro)
    if A:
        pro += L("s_lshl_b32 s{t0}, s{i}, 7\ns_add_u32 s{t0}, s{t0}, 1024".format(t0=sT0, i=sI))
        pro += wdma_addr(WQD, 3072, sT0)
    else:
        pro += L("s_mul_i32 s{t0}, s{q}, 896\ns_lshl_b32 s{t1}, s{ab}, 7\ns_add_u32 s{t0}, s{t0}, s{t1}".format(t0=sT0, t1=sT1, q=sQ, ab=sAB))
        pro += wdma_addr(WGD, 3584, sT0)
    pro += flat(item_dma(("w", 0, 0))) + stamp("iw0")
    pro += entry_rest()
    order = cfg.order if A or not cfg.orderB else cfg.orderB
    for k, w in enumerate(order):
        if w in "123": pro += flat(item_dma(("x", int(w)))) + flat(item_dma(("w", 0, int(w))))
        elif w == "p": pro += p1_touch(112)
        elif w == "g": pro += w_touch([(SG, 14), (SU, 14), (SQ, 12)], 102)
        elif w == "d": pro += w_touch([(SD, 14), (SO, 4)], 108)
        elif w == "r": pro += L("".join(rot_regs(c) for c in range(cfg.npro, 8)))
        elif w == "W": pro += [walk_call(typ, 0)]
        elif w == "L": pro += [l2_walk(typ)]
        elif w == "i": pro += b_index()
        elif w == "P": pro += b_touch1(104)
        elif w == "G": pro += b_touch2(120, 2, 4)
        elif w == "u": pro += p3_touch(116)
        elif w == "t": pro += tlb_touch(120)
        elif w == "f": pro += wphi_setup(A)
        elif w == "c": pro += code_touch()
        elif w == "C": pro += code_touch(typ)
        elif w == "s": pro += early_setup() + flat(addr_wfull(WR1, 2, A, A))
        elif w == "j": pro += [I("s_branch L_main%s" % typ), I("L_main%s:" % typ)]
    pro += pro_setup + stash_pro
    assert cfg.npro == 1 + sum(w in "123" for w in order)
    pro += stamp("iss")
    if cfg.stamps == 2: pro += [I("s_memtime s[%d:%d]" % (sST, sST + 1))]
    if cfg.pad_at and cfg.pad_at[0] == -1: pro += [padder(cfg.pad_at[1])]
    pro += [Wait("x0"), Wait("w0_0"), I("s_barrier")]
    pro += stamp("data")
    pro += x_reads(0) + w_reads(0, 0) + w_reads(0, 1)

    RF = (208 if cfg.o212 else 96) if A else 64
    unp = []
    for k in range(8): unp += L("v_lshlrev_b32 v%d, 16, v%d\nv_and_b32 v%d, 0xffff0000, v%d" % (RF + 2 * k, RES + k, RF + 2 * k + 1, RES + k))
    S.spread(unp, sl_beat[31], sl_beat[34])
    tail = []
    wr = lambda tb, cb: [I("ds_write_b128 v%d, %s offset:%d" % (r4, vr(ACC2[2 * cb + tb] + 4 * r4, 4), 128 * cb + 4 * PITCH * tb)) for r4 in range(4)]
    if cfg.qmajor:
        ms = [S.beats[b]["main"] for b in range(sl_beat[34], sl_beat[36])]
        for k, q in enumerate((0, 4, 2, 6, 1, 5, 3, 7)): S.beats[sl_beat[34] + k]["main"] = ms[q]
        for k in range(1, 4): S.beats[sl_beat[34]]["post"] += S.beats[sl_beat[34] + k]["post"]; S.beats[sl_beat[34] + k]["post"] = []
        S.beats[sl_beat[34]]["pre"] += S.beats[sl_beat[34]]["post"]; S.beats[sl_beat[34]]["post"] = []
        w = wr(0, 0) + wr(0, 1) + wr(1, 0)
        for k, b in enumerate((4, 4, 5, 5, 5, 6, 6, 7)): S.put(sl_beat[34] + b, w[k])
        tail += w[8:] + wr(1, 1)
    else: tail += wr(0, 0) + wr(0, 1) + wr(1, 0) + wr(1, 1)
    tail += [Wait("lgkm0"), I("s_barrier")]
    RD = 128
    for i in range(2):
        for e in range(2):
            for w in range(4):
                tail += L("ds_read_b128 %s, v%d offset:%d" % (vr(RD + 32 * i + 16 * e + 4 * w, 4), 4 + e, 2048 * w + PITCH * i))
    pk = lambda d, a, b: I("v_pk_add_f32 %s, %s, %s" % (vr(d, 2), vr(a, 2), vr(b, 2)))
    for i in range(2):
        for e in range(2):
            b = RD + 32 * i + 16 * e; r = RF + 8 * i + 4 * e
            tail += [pk(r, r, b), pk(r + 2, r + 2, b + 2), pk(b + 4, b + 4, b + 8), pk(b + 6, b + 6, b + 10), pk(r, r, b + 12), pk(r + 2, r + 2, b + 14),
                     pk(r, r, b + 4), pk(r + 2, r + 2, b + 6)]
            tail += L("v_cvt_pk_bf16_f32 v%d, v%d, v%d\nv_cvt_pk_bf16_f32 v%d, v%d, v%d" % (8 + 4 * i + 2 * e, r, r + 1, 9 + 4 * i + 2 * e, r + 2, r + 3))
        tail += L("s_mov_b32 s%d, %d\nbuffer_store_dwordx4 %s, v%d, %s, s%d offen" % (sT1, 8192 * i, vr(8 + 4 * i, 4), vOUT_, srd(SOUT), sT1) + cfg.outfl)
    if cfg.stamps:
        tail += stamp("end")
        if cfg.stamps == 4: tail += L("s_getpc_b64 s[56:57]\nv_writelane_b32 v%d, s56, 3\nv_writelane_b32 v%d, s57, 4" % (vSTAMP, vSTAMP))
        if cfg.stamps == 4: tail += [I("s_memtime s[%d:%d]" % (sST, sST + 1)), I("v_writelane_b32 v%d, s%d, 2" % (vSTAMP, sST))]
        if cfg.stamps == 2:
            if "end" not in stamp_names: stamp_names.append("end")
            tail += [last_stamp, I("s_memtime s[%d:%d]" % (sST, sST + 1)), I("v_writelane_b32 v%d, s%d, %d" % (vSTAMP, sST, stamp_names.index("end") + 2))]
        tail += L("""
        s_memrealtime s[{a}:{b}]
        v_writelane_b32 v{st}, s{a}, 1
        s_lshl_b32 s{t0}, s2, 2
        s_add_u32 s{t0}, s{t0}, s{wv}
        s_lshl_b32 s{t0}, s{t0}, 8
        s_add_u32 s{t0}, s{t0}, {o}
        v_lshl_add_u32 v0, v{L}, 2, s{t0}
        buffer_store_dword v{st}, v0, {sr}, 0 offen
        """.format(a=sST, b=sST + 1, st=vSTAMP, t0=sT0, wv=sWV, o=WS_ST, L=vL, sr=srd(SW)))
    if cfg.dbgout:
        ix = lambda n: stamp_names.index(n) + 2
        t = """
        v_readlane_b32 s56, v{st}, 0
        v_readlane_b32 s57, v{st}, 1
        v_readlane_b32 s58, v{st}, {iss}
        s_nop 4
        v_mov_b32 v2, {oob}
        v_mov_b32 v1, 0
        v_writelane_b32 v2, 32, 0
        v_writelane_b32 v2, 40, 1
        v_writelane_b32 v2, 36, 2
        v_writelane_b32 v1, s57, 0
        v_writelane_b32 v1, s56, 1
        s_not_b32 s59, s56
        v_writelane_b32 v1, s59, 2
        buffer_atomic_umax v1, v2, {sd}, 0 offen
        s_sub_u32 s57, s57, s56
        v_mov_b32 v3, 0
        v_writelane_b32 v3, s57, 0
        """.format(st=vSTAMP, iss=ix("iss"), oob=OOB, sd=srd(SDBG))
        for k, nm in enumerate(("b0", "b3", "b7", "b15", "s0", "s28", "end")):
            t += "v_readlane_b32 s59, v%d, %d\ns_nop 4\ns_sub_u32 s59, s59, s58\nv_writelane_b32 v3, s59, %d\n" % (vSTAMP, ix(nm), k + 1)
        t += """
        v_lshlrev_b32 v2, 2, v{L}
        v_mov_b32 v4, {oob}
        v_cmp_gt_u32 vcc, 8, v{L}
        v_cndmask_b32 v2, v4, v2, vcc
        s_or_b32 s59, s2, s{wv}
        s_cmp_eq_u32 s59, 0
        s_cselect_b32 s59, 0, {oob}
        buffer_store_dword v3, v2, {sd}, s59 offen
        """.format(L=vL, oob=OOB, wv=sWV, sd=srd(SDBG))
        tail += L(t)
    if cfg.padto:
        tail.append(Raw(["v_readlane_b32 s56, v%d, 0" % vSTAMP, "L_pad%s:" % typ, "s_memrealtime s[58:59]", "s_waitcnt lgkmcnt(0)", "s_sub_u32 s58, s58, s56",
                         "s_cmp_lt_u32 s58, %d" % cfg.padto, "s_cbranch_scc1 L_pad%s" % typ]))
    tail += L("s_endpgm")
    est = sum(max(bt["period"], S.load(i)) for i, bt in enumerate(S.beats[:sl_beat[0]]))
    print("  P1 issue-model cycles:", est, " P2:", sum(max(32, S.load(i)) for i in range(sl_beat[0], sl_beat[36])))
    return n_common, pro + S.flat() + tail

def code_touch(typ=None):
    ins = L("""
    s_getpc_b64 s[{a}:{b}]
    {far}
    s_bfe_u32 s{t0}, s2, 0x40003
    s_lshl_b32 s{t0}, s{t0}, 2
    s_add_u32 s{t0}, s{t0}, s{wv}
    s_lshl_b32 s{t0}, s{t0}, 9
    v_and_b32 v{x}, 3, v{L}
    v_lshl_add_u32 v{x}, v{x}, 7, s{t0}
    v_min_u32 v{x}, {lim}, v{x}
    v_mov_b32 v{y}, s{b}
    v_add_co_u32 v{x}, vcc, s{a}, v{x}
    v_addc_co_u32 v{y}, vcc, 0, v{y}, vcc
    global_load_dword v{z}, v[{x}:{y}], off
    """.format(a=sM1, b=sM1 + 1, t0=sT0, wv=sWV, x=76, y=77, z=78, L=vL, lim="L_end%s-L_main%s-4" % (typ, typ),
               far=("L_pc%s:\ns_add_u32 s%d, s%d, L_main%s-L_pc%s\ns_addc_u32 s%d, s%d, 0" % (typ, sM1, sM1, typ, typ, sM1 + 1, sM1 + 1)) if typ else ""))
    return ins

def w_touch(which, d0):
    s = "s_lshl_b32 s{t0}, s2, 2\ns_add_u32 s{t0}, s{t0}, s{wv}\n".format(t0=sT0, wv=sWV)
    last = None
    for k, (sr, n) in enumerate(which):
        if n != last:
            s += "s_mul_i32 s{t1}, s{t0}, {b}\nv_min_u32 v{a}, {m}, v{L}\nv_lshl_add_u32 v{a}, v{a}, 7, s{t1}\n".format(t0=sT0, t1=sT1, b=128 * n, a=d0, m=n - 1, L=vL)
            last = n
        s += "buffer_load_dword v%d, v%d, %s, 0 offen\n" % (d0 + 1 + k, d0, srd(sr))
    return L(s)

def tlb_touch(d0):
    s = "v_and_b32 v{a}, 15, v{L}\nv_lshlrev_b32 v{a}, 20, v{a}\nv_add_u32 v{a}, 0x7ff00, v{a}\n".format(a=d0, L=vL)
    for k, sr in enumerate((SD, SO, SW, SOUT, SG, SU, SQ)):
        s += "buffer_load_dword v%d, v%d, %s, 0 offen\n" % (d0 + 1 + k, d0, srd(sr))
    return L(s)

def p3_touch(d0):
    return L("""
    s_lshl_b32 s{t0}, s2, 2
    s_add_u32 s{t0}, s{t0}, s{wv}
    s_lshr_b32 s{t1}, s{t0}, 1
    s_and_b32 s{t0}, s{t0}, 1
    v_and_b32 v{b}, 3, v{L}
    v_lshl_add_u32 v{b}, s{t0}, 2, v{b}
    v_and_b32 v{c}, 1, v{L}
    v_lshl_add_u32 v{c}, s{t0}, 1, v{c}
    s_mul_i32 s{t0}, s{t1}, 3072
    v_lshl_add_u32 v{b}, v{b}, 7, s{t0}
    buffer_load_dword v{b}, v{b}, {q}, 0 offen
    s_mul_i32 s{t0}, s{t1}, 3584
    s_add_u32 s{t0}, s{t0}, {uo}
    v_mul_u32_u24 v{c}, 896, v{c}
    v_add_u32 v{c}, s{t0}, v{c}
    buffer_load_dword v{r2}, v{c}, {g}, 0 offen
    buffer_load_dword v{c}, v{c}, {u}, 0 offen
    """.format(t0=sT0, t1=sT1, wv=sWV, L=vL, b=d0, c=d0 + 1, r2=d0 + 2, q=srd(SQ), g=srd(SG), u=srd(SU), uo=256 if cfg.o212 else 768))

sWB = sH2
def b_index():
    return L("""
    s_and_b32 s{t0}, s2, 7
    s_lshl_b32 s{t0}, s{t0}, 4
    s_bfe_u32 s{t1}, s2, 0x40003
    s_add_u32 s{t0}, s{t0}, s{t1}
    s_lshl_b32 s{t0}, s{t0}, 2
    s_add_u32 s{w}, s{t0}, s{wv}
    """.format(t0=sT0, t1=sT1, w=sWB, wv=sWV))

def b_touch1(d0):
    a, b, c = d0, d0 + 1, d0 + 2
    ins = L("""
    v_bfe_u32 v{a}, v{L}, 1, 2
    v_lshlrev_b32 v{a}, 10, v{a}
    v_and_b32 v{c}, 1, v{L}
    v_lshl_add_u32 v{a}, v{c}, 7, v{a}
    s_lshl_b32 s{t0}, s{w}, 12
    v_add_u32 v{a}, s{t0}, v{a}
    s_lshr_b32 s{t0}, s{w}, 2
    s_and_b32 s{t1}, s{w}, 3
    v_and_b32 v{b}, 3, v{L}
    v_lshl_add_u32 v{b}, s{t1}, 2, v{b}
    s_mul_i32 s{t1}, s{t1}, 896
    v_lshl_add_u32 v{c}, v{c}, 7, s{t1}
    s_mul_i32 s{t1}, s{t0}, 3072
    s_add_u32 s{t1}, s{t1}, 1024
    v_lshl_add_u32 v{b}, v{b}, 7, s{t1}
    s_mul_i32 s{t1}, s{t0}, 3584
    v_add_u32 v{c}, s{t1}, v{c}
    """.format(a=a, b=b, c=c, L=vL, t0=sT0, t1=sT1, w=sWB))
    r = d0 + 3
    for g in range(1, 4):
        ins += L("buffer_load_dword v%d, v%d, %s, 0 offen offset:%d" % (r, a, srd(SX), 256 * g)); r += 1
        ins += L("s_mov_b32 s%d, %d\nbuffer_load_dword v%d, v%d, %s, s%d offen" % (sT0, 128 * 3072 * g, r, b, srd(SQ), sT0)); r += 1
        ins += L("s_mov_b32 s%d, %d\nbuffer_load_dword v%d, v%d, %s, s%d offen\nbuffer_load_dword v%d, v%d, %s, s%d offen" % (sT0, 128 * 3584 * g, r, c, srd(SG), sT0, r + 1, c, srd(SU), sT0)); r += 2
    return ins

def b_touch2(d0, u0, nu):
    a, b = d0, d0 + 1
    return L("""
    v_and_b32 v{a}, 3, v{L}
    v_mul_u32_u24 v{a}, 896, v{a}
    v_lshrrev_b32 v{b}, 2, v{L}
    v_min_u32 v{b}, {m}, v{b}
    v_lshl_add_u32 v{a}, v{b}, 7, v{a}
    s_mul_i32 s{t0}, s{w}, 3584
    s_add_u32 s{t0}, s{t0}, {o}
    buffer_load_dword v{b}, v{a}, {g}, s{t0} offen
    buffer_load_dword v{a}, v{a}, {u}, s{t0} offen
    """.format(a=a, b=b, L=vL, m=nu - 1, t0=sT0, w=sWB, o=128 * u0, g=srd(SG), u=srd(SU)))

def b_touch3(d0):
    a = d0
    return L("""
    v_min_u32 v{a}, 7, v{L}
    v_lshlrev_b32 v{a}, 7, v{a}
    s_mul_i32 s{t0}, s{w}, 3072
    s_lshl_b32 s{t1}, s{w}, 10
    buffer_load_dword v{r0}, v{a}, {q}, s{t0} offen
    buffer_load_dword v{r1}, v{a}, {o}, s{t1} offen
    v_min_u32 v{a}, 27, v{L}
    v_lshlrev_b32 v{a}, 7, v{a}
    s_mul_i32 s{t0}, s{w}, 3584
    buffer_load_dword v{a}, v{a}, {d}, s{t0} offen
    """.format(a=a, r0=a + 1, r1=a + 2, L=vL, t0=sT0, t1=sT1, w=sWB, q=srd(SQ), o=srd(SO), d=srd(SD)))

def p1_touch(d0):
    return L("""
    s_lshl_b32 s{t0}, s2, 2
    s_add_u32 s{t0}, s{t0}, s{wv}
    s_lshl_b32 s{t1}, s{t0}, 11
    v_and_b32 v{a}, 15, v{L}
    v_lshl_add_u32 v{a}, v{a}, 7, s{t1}
    buffer_load_dword v{r0}, v{a}, {x}, 0 offen
    s_lshr_b32 s{t1}, s{t0}, 1
    s_and_b32 s{t0}, s{t0}, 1
    s_mul_i32 s{sp}, s{t1}, 3072
    s_lshl_b32 s{m}, s{t0}, 10
    s_add_u32 s{sp}, s{sp}, s{m}
    s_add_u32 s{sp}, s{sp}, 1024
    v_and_b32 v{b}, 7, v{L}
    v_lshl_add_u32 v{b}, v{b}, 7, s{sp}
    buffer_load_dword v{r1}, v{b}, {q}, 0 offen
    s_mul_i32 s{sp}, s{t1}, 3584
    s_mul_i32 s{m}, s{t0}, 1792
    s_add_u32 s{sp}, s{sp}, s{m}
    v_bfe_u32 v{c}, v{L}, 1, 1
    v_mul_u32_u24 v{c}, 896, v{c}
    v_and_b32 v{d}, 1, v{L}
    v_lshl_add_u32 v{c}, v{d}, 8, v{c}
    v_add_u32 v{c}, s{sp}, v{c}
    buffer_load_dword v{r2}, v{c}, {g}, 0 offen
    buffer_load_dword v{r3}, v{c}, {u}, 0 offen
    """.format(t0=sT0, t1=sT1, sp=sH2, m=sM2, wv=sWV, L=vL, a=d0, b=d0 + 1, c=d0 + 2, d=d0 + 3, r0=d0 + 4, r1=d0 + 5, r2=d0 + 6, r3=d0 + 7,
               x=srd(SX), q=srd(SQ), g=srd(SG), u=srd(SU)))

def w2_row_addr(d, t):
    return defines(L("""
    s_lshr_b32 s{t0}, s2, 3
    s_lshl_b32 s{t0}, s{t0}, 11
    v_and_b32 v{d}, 15, v{L}
    v_lshl_add_u32 v{d}, v{d}, 7, s{t0}
    s_mul_i32 s{b}, s{wv}, {w}
    """.format(t0=sT0, d=d, L=vL, b=sPB, wv=sWV, w=448 * 1024)), TCH=d)

def w2_row_touch(d, res, n0):
    sr, base, row = slice_src(n0)
    return needs(L("s_add_u32 s%d, s%d, %d\nbuffer_load_dword v%d, v%d, %s, s%d offen" % (sT0, sPB if sr == SD else sWOB, row * 1024, res, d, srd(sr), sT0)), TCH=d)

def w2_touch(t, n0, ns, both=False):
    sr, base, row = slice_src(n0)
    nr = 4 * ns
    return L("""
    s_and_b32 s{t0}, s{tt}, 3
    s_mul_i32 s{t1}, s{t0}, {a}
    s_mul_i32 s{t0}, s{wv}, {wb}
    s_add_u32 s{t1}, s{t1}, s{t0}
    s_lshl_b32 s{t0}, s{ct}, 7
    s_add_u32 s{t1}, s{t1}, s{t0}
    s_add_u32 s{t1}, s{t1}, {b}
    {lane}
    buffer_load_dword v{x}, v{x}, {d}, 0 offen
    """.format(lane=("v_min_u32 v{x}, {m}, v{L}\nv_lshl_add_u32 v{x}, v{x}, 10, s{t1}" if not both else
                     "v_lshrrev_b32 v{x}, 1, v{L}\nv_min_u32 v{x}, {m}, v{x}\nv_lshl_add_u32 v{x}, v{x}, 10, s{t1}\nv_and_b32 v{y}, 1, v{L}\nv_lshlrev_b32 v{y}, 9, v{y}\nv_sub_u32 v{x}, v{x}, v{y}"
                     ).format(x=t, y=WHD, m=nr - 1, L=vL, t1=sT1), t0=sT0, t1=sT1, tt=sTT, ct=sCT, wv=sWV, wb=(448 if sr == SD else 128) * 1024, a=nr * 1024, b=row * 1024, x=t, m=nr - 1, L=vL, d=srd(sr)))

def flat(x):
    o = []
    for y in x: o += y if isinstance(y, list) else [y]
    return o

def groups(ins):
    out = []; cur = []
    tmp = {"s%d" % sT0, "s%d" % sT1, "vcc", "scc"}
    for k, x in enumerate(ins):
        cur.append(x)
        live = set()
        written = {r for y in ins[:k + 1] for r in y.wr} & tmp
        seen = set()
        for y in ins[k + 1:]:
            live |= (set(y.rd) & written) - seen
            seen |= set(y.wr)
        if not live: out.append(cur); cur = []
    if cur: out.append(cur)
    return out

def late_setup(A):
    ins = []
    if A:
        ins += L("s_mul_i32 s{t0}, s{q}, 896\ns_lshl_b32 s{t1}, s{ab}, 7\ns_add_u32 s{t0}, s{t0}, s{t1}\ns_add_u32 s{t0}, s{t0}, {o}".format(t0=sT0, t1=sT1, q=sQ, ab=sAB, o=640 if cfg.o212 else 512))
        ins += wdma_addr(WGD, 3584, sT0)
    ins += clear_store(A) + common_setup() + flat(addr_cs(A))
    if A:
        ins += L("""
        v_lshrrev_b32 v{a}, 2, v{L}
        v_mul_u32_u24 v{a}, 3584, v{a}
        v_and_b32 v{b}, 3, v{L}
        v_lshl_add_u32 v{a}, v{b}, 4, v{a}
        s_mul_i32 s{t0}, s{q}, 896
        s_lshl_b32 s{t1}, s{ab}, 6
        s_add_u32 s{t0}, s{t0}, s{t1}
        s_add_u32 s{t0}, s{t0}, {ho}
        s_mul_i32 s{t1}, s{wv}, {w}
        s_add_u32 s{t0}, s{t0}, s{t1}
        v_add_u32 v{d}, s{t0}, v{a}
        s_lshl_b32 s{t0}, s{ab}, 1
        s_add_u32 s{t0}, s{t0}, s{gr}
        s_sub_u32 s{h2}, {hn}, s{t0}
        s_lshl_b32 s{h2}, s{h2}, 11
        """.format(t0=sT0, t1=sT1, q=sQ, ab=sAB, wv=sWV, gr=sGR, w=16 * 3584, a=TMP, b=TMP + 1, d=WHD, L=vL, h2=sH2, ho=256 if cfg.o212 else 768, hn=8 if cfg.o212 else 24))
        ins += att_setup()
    else:
        ins += L("s_lshl_b32 s{t0}, s{i}, 7".format(t0=sT0, i=sI))
        ins += wdma_addr(WQD, 3072, sT0)
        ins += o_setup()
    defines(ins, FLG=vFLG, HST=vHST, W2D=(W2D, W2D + 1), Z=(CA + 2, CA + 3), HSA=KVD)
    if A: defines(ins, WHD=WHD, KVA=vKVA, PW=vPW, PR=vPR, VW=vVW, VR0=vVR0, VR1=vVR1)
    else: defines(ins, KRL=vKRL, KRS=vKRS, KVL=vKVL)
    return groups(ins)

def wdma_addr(dst, stride, scol):
    return defines(L("""
    s_mul_i32 s{t1}, s{wv}, {w}
    s_add_u32 s{t1}, s{t1}, s{c}
    v_lshrrev_b32 v{a}, 3, v{L}
    v_mul_u32_u24 v{a}, {st}, v{a}
    v_bfe_u32 v{b}, v{L}, 4, 1
    v_lshlrev_b32 v{b}, 2, v{b}
    v_xor_b32 v{b}, v{b}, v{L}
    v_and_b32 v{b}, 7, v{b}
    v_lshl_add_u32 v{a}, v{b}, 4, v{a}
    v_add_u32 v{d}, s{t1}, v{a}
    v_add_u32 v{d1}, {nx}, v{d}
    """.format(t1=sT1, wv=sWV, w=16 * stride, c=scol, a=TMP, b=TMP + 1, L=vL, st=stride, d=dst, d1=dst + 1, nx=8 * stride - 1024)), **{'WQD' if dst == WQD else 'WGD': (dst, dst + 1)})

def clear_store(A):
    z = 96
    s = """
    s_lshl_b32 s{t0}, s{rb}, 1
    s_add_u32 s{t0}, s{t0}, s{th}
    s_lshl_b32 s{t1}, s{t0}, 2
    s_add_u32 s{t1}, s{t1}, s{q}
    s_lshl_b32 s{t1}, s{t1}, 4
    s_add_u32 s{t1}, s{t1}, s{t4}
    s_lshl_b32 s{t1}, s{t1}, 1
    s_add_u32 s{t1}, s{t1}, s{gr}
    s_lshl_b32 s{t1}, s{t1}, 2
    s_add_u32 s{t1}, s{t1}, {fl}
    v_mov_b32 v{f}, {oob}
    v_writelane_b32 v{f}, s{t1}, 0
    v_mov_b32 v{z}, 0
    buffer_store_dword v{z}, v{f}, {sr}, 0 offen sc1
    s_lshl_b32 s{t0}, s{i}, 2
    s_lshl_b32 s{t1}, s{gr}, 1
    s_add_u32 s{t0}, s{t0}, s{t1}
    s_add_u32 s{t0}, s{t0}, s{th}
    """.format(t0=sT0, t1=sT1, rb=sRB, th=sTH, q=sQ, t4=sT4, gr=sGR, fl=WS_FL, f=vFLG, oob=OOB, z=z, sr=srd(SW), i=sI)
    if A:
        s += """
        s_lshl_b32 s{t0}, s{t0}, 4
        s_add_u32 s{t0}, s{t0}, s{rb}
        s_mul_i32 s{t0}, s{t0}, 2176
        s_add_u32 s{t0}, s{t0}, {kvp}
        """.format(t0=sT0, rb=sRB, kvp=WS_KVP) + kv_lane(vKVA, True)
        z += 2
        for j in range(4): s += "v_mov_b32 v%d, -1\n" % (z + j)
        ins = L(s)
        for j in range(4): ins += L("buffer_store_dwordx4 %s, v%d, %s, 0 offen offset:%d sc1" % (vr(z, 4), vKVA, srd(SW), 544 * j), tag="clr" if j == 3 else None)
        return ins
    s += """
    s_mul_i32 s{t1}, s{t0}, 34816
    s_mul_i32 s{t0}, s{t0}, 2176
    s_add_u32 s{t0}, s{t0}, {kvf}
    s_add_u32 s{t1}, s{t1}, {kvp}
    v_and_b32 v{a}, 15, v{L}
    v_lshl_add_u32 v{a}, s{rb}, 4, v{a}
    v_cmp_gt_u32 vcc, 0x88, v{a}
    v_lshlrev_b32 v{a}, 4, v{a}
    v_mov_b32 v{b}, {oob}
    v_cndmask_b32 v{a}, v{b}, v{a}, vcc
    v_lshrrev_b32 v{b}, 4, v{L}
    v_lshl_add_u32 v{rs}, v{b}, 2, v{a}
    v_add_u32 v{rs}, s{t0}, v{rs}
    v_mul_u32_u24 v{b}, 2176, v{b}
    v_add3_u32 v{rl}, v{b}, v{a}, s{t1}
    v_mov_b32 v{z}, -1
    """.format(t0=sT0, t1=sT1, rb=sRB, kvf=WS_KVF, kvp=WS_KVP, a=TMP, b=TMP + 1, L=vL, rs=vKRS, rl=vKRL, z=z + 1, oob=OOB)
    return L(s) + L("buffer_store_dword v%d, v%d, %s, 0 offen sc1" % (z + 1, vKRS, srd(SW)), tag="clr")

def kv_lane(dst, mask):
    a, b, c = TMP, TMP + 1, TMP + 2
    s = """
    v_and_b32 v{a}, 31, v{L}
    v_lshrrev_b32 v{b}, 5, v{L}
    v_lshl_add_u32 v{c}, v{b}, 4, v{a}
    v_add_u32 v{b}, 32, v{b}
    v_cmp_gt_u32 vcc, 16, v{a}
    v_cndmask_b32 v{c}, v{b}, v{c}, vcc
    v_lshl_add_u32 v{d}, v{c}, 4, s{t0}
    """.format(a=a, b=b, c=c, L=vL, d=dst, t0=sT0)
    if mask: s += "v_mov_b32 v{b}, {oob}\nv_cmp_gt_u32 vcc, 17, v{a}\nv_cndmask_b32 v{d}, v{b}, v{d}, vcc\n".format(a=a, b=b, d=dst, oob=OOB)
    return s

def early_setup():
    a, b, c = TMP, TMP + 1, TMP + 2
    s = """
    v_lshrrev_b32 v{a}, 5, v{L}
    v_bfe_u32 v{b}, v{L}, 1, 3
    v_xor_b32 v{a}, v{a}, v{b}
    v_lshlrev_b32 v{a}, 4, v{a}
    v_and_b32 v{b}, 31, v{L}
    v_lshl_add_u32 v{a}, v{b}, 7, v{a}
    s_lshl_b32 s{t0}, s{s}, 6
    v_xor_b32 v{a}, s{t0}, v{a}
    s_mul_i32 s{t1}, s{th}, {P}
    v_add_u32 v{x0}, s{t1}, v{a}
    v_xor_b32 v{b}, 32, v{a}
    v_add_u32 v{x1}, s{t1}, v{b}
    v_xor_b32 v{b}, 64, v{a}
    v_add_u32 v{x2}, s{t1}, v{b}
    v_xor_b32 v{b}, 0x60, v{a}
    v_add_u32 v{x3}, s{t1}, v{b}
    v_and_b32 v{a}, 31, v{L}
    v_mov_b32 v{b}, 0x3f803f80
    v_cmp_eq_u32 vcc, 0, v{a}
    v_cndmask_b32 v{s0}, 0, v{b}, vcc
    v_cmp_eq_u32 vcc, 20, v{a}
    v_cndmask_b32 v{s0}, v{s0}, v{b}, vcc
    v_cmp_eq_u32 vcc, 8, v{a}
    v_cndmask_b32 v{s2}, 0, v{b}, vcc
    v_cmp_eq_u32 vcc, 28, v{a}
    v_cndmask_b32 v{s2}, v{s2}, v{b}, vcc
    """.format(a=a, b=b, L=vL, t0=sT0, t1=sT1, s=sS, th=sTH, P=PITCH, x0=XR, x1=XR + 1, x2=XR + 2, x3=XR + 3, s0=SEL01, s2=SEL23)
    for j in range(1, 4): s += "v_mov_b32 v%d, v%d\nv_mov_b32 v%d, v%d\n" % (SEL01 + j, SEL01, SEL23 + j, SEL23)
    return defines(L(s), XR=range(XR, XR + 4))

def common_setup():
    a, b, c = TMP, TMP + 1, TMP + 2
    s = "s_mov_b32 s%d, 0\ns_mov_b32 s%d, -1\nv_mov_b32 v%d, 0\nv_mov_b32 v%d, 0\n" % (sMH, sMH + 1, CA + 2, CA + 3)
    s += """
    v_and_b32 v{a}, 3, v{L}
    v_cmp_eq_u32 s[{m1}:{m1b}], 1, v{a}
    v_cmp_eq_u32 s[{m2}:{m2b}], 2, v{a}
    v_cmp_eq_u32 s[{m3}:{m3b}], 3, v{a}
    v_and_b32 v{a}, 4, v{L}
    v_cmp_eq_u32 s[{mb}:{mbb}], 4, v{a}
    s_mul_i32 s{wd}, s{wv}, {wdv}
    s_lshl_b32 s{wo}, s{wv}, 17
    s_mov_b32 s{c2}, 0x3b000000
    """.format(a=a, L=vL, m1=sM1, m1b=sM1 + 1, m2=sM2, m2b=sM2 + 1, m3=sM3, m3b=sM3 + 1, mb=sMB, mbb=sMB + 1,
               wd=sWDB, wo=sWOB, wv=sWV, wdv=448 * 1024, c2=sC2)
    s += """
    s_lshl_b32 s{t0}, s{rb}, 1
    s_add_u32 s{t0}, s{t0}, s{th}
    s_mul_i32 s{t0}, s{t0}, 144
    s_mul_i32 s{t1}, s{q}, 36
    s_add_u32 s{t0}, s{t0}, s{t1}
    s_lshl_b32 s{t1}, s{ab}, 2
    s_add_u32 s{t0}, s{t0}, s{t1}
    s_lshl_b32 s{t1}, s{gr}, 1
    s_add_u32 s{t0}, s{t0}, s{t1}
    s_lshl_b32 s{t0}, s{t0}, 11
    v_lshl_add_u32 v{h}, v{L}, 4, s{t0}
    v_lshrrev_b32 v{a}, 3, v{L}
    v_lshlrev_b32 v{a}, 10, v{a}
    v_bfe_u32 v{b}, v{L}, 4, 1
    v_lshlrev_b32 v{b}, 2, v{b}
    v_xor_b32 v{b}, v{b}, v{L}
    v_and_b32 v{b}, 7, v{b}
    v_lshl_add_u32 v{a}, v{b}, 4, v{a}
    s_lshl_b32 s{t0}, s{ct}, 7
    v_add_u32 v{w}, s{t0}, v{a}
    v_add_u32 v{w1}, 7168, v{w}
    s_and_b32 s{t0}, s2, {hm}
    s_lshl_b32 s{t0}, s{t0}, 2
    s_add_u32 s{t0}, s{t0}, {ho}
    s_cmp_eq_u32 s{wv}, 0
    s_cselect_b32 s{t0}, s{t0}, {oob}
    v_mov_b32 v{hs}, {oob}
    v_writelane_b32 v{hs}, s{t0}, 0
    """.format(t0=sT0, t1=sT1, rb=sRB, th=sTH, q=sQ, ab=sAB, gr=sGR, h=vHST, L=vL, a=a, b=b, ct=sCT, w=W2D, w1=W2D + 1, wv=sWV, oob=OOB, hs=KVD, hm=31 if cfg.dbgout else 63, ho=64 if cfg.dbgout else 0)
    return L(s)

def att_setup():
    a, b, c = TMP, TMP + 1, TMP + 2
    s = """
    s_mul_i32 s{t0}, s{wv}, {wsz}
    s_add_u32 s{t0}, s{t0}, {wreg}
    v_and_b32 v{a}, 31, v{L}
    v_lshrrev_b32 v{b}, 5, v{L}
    v_mul_u32_u24 v{c}, 72, v{a}
    v_lshl_add_u32 v{c}, v{b}, 3, v{c}
    v_add_u32 v{pw}, s{t0}, v{c}
    v_mul_u32_u24 v{c}, 104, v{a}
    v_lshl_add_u32 v{c}, v{b}, 3, v{c}
    s_add_u32 s{t1}, s{t0}, {voff}
    v_add_u32 v{vw}, s{t1}, v{c}
    v_lshl_add_u32 v{c}, v{b}, 3, v{vw}
    v_mov_b32 v{o0}, 0x3f803f80
    v_mov_b32 v{o1}, 0x3f803f80
    ds_write_b64 v{c}, v[{o0}:{o1}] offset:64
    ds_write_b64 v{c}, v[{o0}:{o1}] offset:72
    v_bfe_u32 v{a}, v{L}, 2, 2
    v_lshl_add_u32 v{a}, v{b}, 3, v{a}
    v_and_b32 v{b}, 3, v{L}
    v_mul_u32_u24 v{c}, 72, v{a}
    v_lshl_add_u32 v{c}, v{b}, 3, v{c}
    v_bfe_u32 v{o0}, v{L}, 4, 1
    v_lshl_add_u32 v{c}, v{o0}, 5, v{c}
    v_add_u32 v{pr}, s{t0}, v{c}
    v_mul_u32_u24 v{c}, 104, v{a}
    v_lshl_add_u32 v{c}, v{b}, 3, v{c}
    v_add_u32 v{c}, s{t1}, v{c}
    v_lshl_add_u32 v{v0}, v{o0}, 6, v{c}
    v_add_u32 v{o0}, 1, v{o0}
    v_lshl_add_u32 v{v1}, v{o0}, 5, v{c}
    """.format(t0=sT0, t1=sT1, wv=sWV, wsz=WREG_SZ, wreg=WREG, a=a, b=b, c=c, L=vL, pw=vPW, vw=vVW, voff=VOFF, o0=TMP + 8, o1=TMP + 9,
               pr=vPR, v0=vVR0, v1=vVR1, i=sI, gr=sGR, th=sTH)
    if cfg.vfold: s = "\n".join(x for x in s.split("\n") if "0x3f803f80" not in x and "ds_write" not in x)
    return L(s)

def o_setup():
    return L("""
    s_lshl_b32 s{t0}, s{i}, 1
    s_add_u32 s{t0}, s{t0}, s{gr}
    s_mul_i32 s{t0}, s{t0}, 4352
    s_add_u32 s{t0}, s{t0}, {kvf}
    """.format(t0=sT0, i=sI, gr=sGR, kvf=WS_KVF) + kv_lane(vKVL, False))

def wphi_setup(A):
    a, b = TMP, TMP + 1; t = 64 + 16
    s = """
    s_lshl_b32 s{t0}, s{i}, 2
    s_lshl_b32 s{t1}, s{gr}, 1
    s_add_u32 s{t0}, s{t0}, s{t1}
    s_lshl_b32 s{t0}, s{t0}, 9
    v_bfe_u32 v{a}, v{L}, 4, 1
    """.format(t0=sT0, t1=sT1, i=sI, gr=sGR, a=a, L=vL)
    if A: s += "v_xor_b32 v%d, s%d, v%d\n" % (a, sTH, a)
    s += """
    v_lshlrev_b32 v{a}, 9, v{a}
    v_lshrrev_b32 v{b}, 5, v{L}
    v_lshl_add_u32 v{a}, v{b}, 7, v{a}
    v_and_b32 v{b}, 15, v{L}
    v_lshl_add_u32 v{a}, v{b}, 1, v{a}
    v_add_u32 v{a}, s{t0}, v{a}
    """.format(a=a, b=b, L=vL, t0=sT0)
    for j in range(8):
        s += "buffer_load_ushort v%d, v%d, %s, 0 offen offset:%d\n" % (t + j, a, srd(SPHI), 32 * ((j & 3) + 8 * (j >> 2)))
    return L(s)

def wphi_finish():
    t = 64 + 16
    out = L("v_and_b32 v%d, 16, v%d\nv_cmp_eq_u32 vcc, 0, v%d" % (TMP + 8, vL, TMP + 8))
    g = []
    for j in range(4):
        g += L("v_lshl_or_b32 v{x}, v{y}, 16, v{x}\nv_cndmask_b32 v{a0}, 0, v{x}, vcc\nv_cndmask_b32 v{a1}, v{x}, 0, vcc".format(x=t + 2 * j, y=t + 2 * j + 1, a0=WPHI + j, a1=WPHI + 4 + j))
    return defines(out + g, WPHI=range(WPHI, WPHI + 8))

def rot_regs(c):
    if cfg.rot == "z":
        if c < cfg.nfix: return "s_mov_b32 s%d, %d\ns_mov_b32 s%d, %d\ns_mov_b32 s%d, %d\n" % (sKX + c, 128 * c, sKQ + c, 64 * 3072 * c, sKG + c, 64 * 3584 * c)
        return "s_add_u32 s{t1}, s{r}, {c}\ns_sub_u32 s{t0}, s{t1}, {m}\ns_cmp_gt_u32 s{t1}, 7\ns_cselect_b32 s{t1}, s{t0}, s{t1}\ns_lshl_b32 s{kx}, s{t1}, 7\ns_mul_i32 s{kq}, s{t1}, {a}\ns_mul_i32 s{kg}, s{t1}, {b}\n".format(
            m=8 - cfg.nfix, r=sSPIN, t0=sT0, t1=sT1, c=c, kx=sKX + c, kq=sKQ + c, kg=sKG + c, a=64 * 3072, b=64 * 3584)
    return "s_add_u32 s{t1}, s{r}, {c}\ns_and_b32 s{t1}, s{t1}, 7\ns_lshl_b32 s{kx}, s{t1}, 7\ns_mul_i32 s{kq}, s{t1}, {a}\ns_mul_i32 s{kg}, s{t1}, {b}\n".format(
        r=sSPIN, t1=sT1, c=c, kx=sKX + c, kq=sKQ + c, kg=sKG + c, a=64 * 3072, b=64 * 3584)

def srd_consts(lst):
    return "".join("s_mov_b32 s%d, 0x%x\ns_mov_b32 s%d, 0x20000\n" % (reg + 2, sz, reg + 3) for reg, sz in lst)

def entry_x(item_dma):
    s = """
    s_cmp_ge_u32 s2, 256
    s_cbranch_scc1 L_exit
    """
    if cfg.idmap == 1: s += "s_xor_b32 s2, s2, 0x80\n"
    if cfg.idmap == 2: s += "s_xor_b32 s2, s2, 0x60\n"
    if cfg.idmap == 3:
        s += "s_lshr_b32 s3, s2, 4\ns_xor_b32 s3, s3, s2\ns_and_b32 s3, s3, 8\ns_mul_i32 s3, s3, 17\ns_xor_b32 s2, s2, s3\n"
    if cfg.idmap == 4:
        s += "s_lshr_b32 s3, s2, 3\ns_xor_b32 s3, s3, s2\ns_and_b32 s3, s3, 16\ns_mul_i32 s3, s3, 9\ns_xor_b32 s2, s2, s3\n"
    for reg, off in ((SX, 0), (SQ, 8), (SG, 40), (SU, 48), (SW, 80), (SPHI, 16), (SO, 24), (SD, 56), (SOUT, 64), (SDBG, 72)):
        s += "s_load_dwordx2 s[%d:%d], s[0:1], %d\n" % (reg, reg + 1, off)
    if cfg.stamps:
        s += "s_memrealtime s[%d:%d]\ns_memtime s[%d:%d]\nv_mov_b32 v%d, 0\n" % (sST, sST + 1, sST + 2, sST + 3, vSTAMP)
    s += """
    v_lshrrev_b32 v1, 6, v0
    v_and_b32 v{L}, 63, v0
    v_readfirstlane_b32 s{wv}, v1
    s_and_b32 s{xcd}, s2, 7
    s_lshr_b32 s{idx}, s2, 3
    s_and_b32 s{rb}, s{xcd}, 1
    s_lshl_b32 s{rb}, s{rb}, 3
    s_and_b32 s{t0}, s{idx}, 7
    s_add_u32 s{rb}, s{rb}, s{t0}
    s_lshr_b32 s{q}, s{xcd}, 1
    s_lshr_b32 s{t4}, s{idx}, 3
    s_and_b32 s{ab}, s{t4}, 1
    s_lshl_b32 s{i}, s{q}, 1
    s_add_u32 s{i}, s{i}, s{ab}
    {rotc}    s_and_b32 s{th}, s{wv}, 1
    s_lshr_b32 s{gr}, s{wv}, 1
    s_xor_b32 s{s}, s{th}, s{gr}
    s_lshl_b32 s{l2k}, s{wv}, 11
    s_mul_i32 s{lx}, s{gr}, {P}
    s_lshl_b32 s{t1}, s{th}, 12
    s_add_u32 s{lx}, s{lx}, s{t1}
    """.format(L=vL, wv=sWV, xcd=sXCD, idx=sIDX, rb=sRB, t0=sT0, t1=sT1, q=sQ, t4=sT4, ab=sAB, i=sI, th=sTH, gr=sGR, s=sS, l2k=sL2K, lx=sLX, P=PITCH,
               rotc=("s_lshl_b32 s%d, s%d, 1\ns_add_u32 s%d, s%d, s%d\ns_and_b32 s%d, s%d, %d\n" % (sT1, sT4, sSPIN, sT0, sT1, sSPIN, sSPIN, 7 if cfg.rot is True else int(cfg.rot))) if cfg.rot and cfg.rot != "z" else "")
    if cfg.rot: s += rot_regs(0)
    s += """
    s_lshl_b32 s{t0}, s{rb}, 2
    s_add_u32 s{t0}, s{t0}, s{wv}
    s_lshl_b32 s{t0}, s{t0}, 15
    v_lshrrev_b32 v2, 3, v{L}
    v_lshlrev_b32 v2, 10, v2
    v_add_u32 v2, s{t0}, v2
    v_lshrrev_b32 v3, 4, v{L}
    v_xor_b32 v3, v3, v{L}
    v_and_b32 v3, 7, v3
    v_lshl_add_u32 v{x0}, v3, 4, v2
    v_add_u32 v{x2}, {d2}, v{x0}
    v_xor_b32 v3, 4, v3
    v_lshl_add_u32 v{x1}, v3, 4, v2
    v_add_u32 v{x1}, 7168, v{x1}
    v_add_u32 v{x3}, {d2}, v{x1}
    """.format(t0=sT0, rb=sRB, wv=sWV, L=vL, x0=XD, x1=XD + 1, x2=XD + 2, x3=XD + 3, d2=2 * 7168)
    s += srd_consts(((SX, 0x200000), (SQ, 0x180000), (SG, 0x1C0000), (SU, 0x1C0000)))
    if cfg.walk_entry: s += "s_nop 15\n"
    s += "s_waitcnt lgkmcnt(0)\n"
    if cfg.stamps: s += "v_writelane_b32 v%d, s%d, 0\nv_writelane_b32 v%d, s%d, 63\n" % (vSTAMP, sST, vSTAMP, sST + 2)
    ins = L(s)
    for x in ins:
        if x.kind == "smem": x.nowait = True
    if cfg.walk_entry:
        k = [i for i, x in enumerate(ins) if x.text == "s_nop 15"][0]
        a, b = walk_call("A", 0).lines, walk_call("B", 0).lines
        ins[k] = Raw(a[:1] + ["s_cmp_ge_u32 s%d, 2" % sT4, "s_cbranch_scc1 L_walkB"] + a[1:-2] + ["L_walkB:"] + b[1:-2] + [a[-2], b[-2], a[-1]], wr=["scc"])
    defines(ins, XD=range(XD, XD + 4))
    ins += stamp("karg") + flat(item_dma(("x", 0)))
    ins += L("s_cmp_ge_u32 s%d, 2\ns_cbranch_scc1 L_proB" % sT4)
    return ins

def entry_rest():
    s = ""
    if cfg.rot == "z":
        s += """
        s_lshl_b32 s{t0}, s{q}, 1
        s_add_u32 s{t0}, s{t0}, s{t4}
        s_lshl_b32 s{t0}, s{t0}, 1
        s_add_u32 s{t0}, s{t0}, s{rb}
        s_mul_i32 s{t1}, s{t0}, {mg}
        s_lshr_b32 s{t1}, s{t1}, 8
        s_mul_i32 s{t1}, s{t1}, {m}
        s_sub_u32 s{r}, s{t0}, s{t1}
        """.format(m=8 - cfg.nfix, mg={7: 37, 6: 43, 5: 52}[8 - cfg.nfix], t0=sT0, t1=sT1, q=sQ, t4=sT4, rb=sRB, r=sSPIN)
    s += "".join(rot_regs(c) for c in range(1, cfg.npro)) if cfg.rot else ""
    s += """
    s_lshl_b32 s{l1k}, s{wv}, 10
    s_lshl_b32 s{tt}, s{xcd}, 2
    s_and_b32 s{t0}, s{idx}, 3
    s_add_u32 s{tt}, s{tt}, s{t0}
    s_lshr_b32 s{ct}, s{idx}, 2
    s_xor_b32 s{ct}, s{ct}, {cx}
    """.format(t0=sT0, wv=sWV, tt=sTT, xcd=sXCD, idx=sIDX, ct=sCT, l1k=sL1K, cx=cfg.ctx)
    s += srd_consts(((SD, 0x1C0000), (SO, 0x80000), (SW, 0x10000000), (SOUT, 0x200000), (SDBG, 256), (SPHI, 16384)))
    return L(s)

def defaults():
    cfg.code_lim = 20480
    cfg.fixpar = 0; cfg.shift = (0, 0); cfg.qmajor = True; cfg.outfl = ' sc1'; cfg.clr_at = 12; cfg.late_u = True; cfg.late_g = 0; cfg.padto = 0; cfg.pad_at = None; cfg.late_d = 7; cfg.orderB = None; cfg.pacewB = None; cfg.bt2 = 0; cfg.bt3 = 0; cfg.strict = False; cfg.skipbar = (); cfg.quiet = 0; cfg.p3t = 0; cfg.pacew = {8: 8}; cfg.wpfd = 0; cfg.npro = 2; cfg.pace0 = 8; cfg.pace = [8, 4, 4]; cfg.p2pace = 1; cfg.w2at = lambda m: (m - 16) * 30 // 19
    cfg.order = 'CWf1jrs'; cfg.rot = 'z'; cfg.wpf0 = None; cfg.wpf = 0; cfg.wpf1 = [(SD, 14), (SO, 4)]; cfg.codepf = 1; cfg.w2pf = [(40, 8, 4), (43, 12, 4), (46, 16, 4), (49, 20, 4), (52, 24, 4), (55, 28, 4), (58, 32, 4)]; cfg.l2n = 0; cfg.walk_entry = False; cfg.w2row = False; cfg.idmap = 0; cfg.ctx = 0; cfg.o212 = False; cfg.hs = (40, 63); cfg.w2atB = lambda m: max(m - 16, (m - 16) * 30 // 19 - 3); cfg.walk = [[0], [128, 256]]; cfg.walk_at = 0; cfg.nfix = 1; cfg.w1_from = 0; cfg.wdelay = {}; cfg.rot2 = True; cfg.w2B = False; cfg.mix = True
    cfg.p2period = 72; cfg.rd_early = True; cfg.one_wait = True; cfg.x_early = True; cfg.st_early = True; cfg.stash = False; cfg.vfold = True; cfg.pro_setup = True; cfg.setup_end = 14
    cfg.fd = 1100; cfg.h1first = 10; cfg.a_att = 23; cfg.a_h1 = 26; cfg.a_pub = 8; cfg.a_kvflag = 30; cfg.h1 = 12; cfg.a_h2 = 3
    cfg.b_h0 = 12; cfg.b_att = 14; cfg.b_ri = -10; cfg.b_rc = 2; cfg.b_li = 12; cfg.b_lc = 20; cfg.b_o = 5
    cfg.flag_delay = 28; cfg.flag_delay2 = 14
    cfg.p0 = 6; cfg.hstep0 = 5
    cfg.hlA = [4 * (n - 4) + 1 for n in range(36)]; cfg.hlB = [(6 + 2 * (n - 8) if n < 16 else 4 * (n - 5) + 1) for n in range(36)]; cfg.poll_lead = [16, 10, 16, 16, 12]

def walk_call(typ, k):
    ls = ["s_mov_b64 exec, 0"]
    for w in range(3): ls += ["s_cmp_eq_u32 s%d, %d" % (sWV, w), "s_cbranch_scc1 L_pad%s%d_%d" % (typ, k, w)]
    ls += ["s_branch L_pad%s%d_3" % (typ, k), "L_ret%s%d:" % (typ, k), "s_mov_b64 exec, -1"]
    return Raw(ls, wr=["scc"])

def l2_walk(typ):
    n = cfg.l2n
    ls = ["s_bfe_u32 s%d, s2, 0x40003" % sT0, "s_lshl_b32 s%d, s%d, 2" % (sT0, sT0), "s_add_u32 s%d, s%d, s%d" % (sT0, sT0, sWV), "s_mov_b64 exec, 0"]
    def ladder(lo, hi):
        if hi - lo == 1: return ["s_branch L_l2%s_%d" % (typ, lo % n)]
        mid = (lo + hi) // 2; lab = "L_ld%s_%d_%d" % (typ, mid, hi)
        return ["s_cmp_ge_u32 s%d, %d" % (sT0, mid), "s_cbranch_scc1 " + lab] + ladder(lo, mid) + [lab + ":"] + ladder(mid, hi)
    if n <= 32: ls.insert(3, "s_and_b32 s%d, s%d, 31" % (sT0, sT0))
    ls += ladder(0, 32 if n <= 32 else 64) + ["L_l2ret%s:" % typ, "s_mov_b64 exec, -1"]
    return Raw(ls, wr=["scc", "s%d" % sT0])

def add_pads(p, typ):
    sz = sizes(p)
    total = sum(sz)
    want = []
    for pg in range(1, total // 4096 + 1):
        for k, offs in enumerate(cfg.walk):
            want += [(4096 * pg + o, k) for o in offs]
    if cfg.l2n: want += [(total * (k + 1) // (cfg.l2n + 1) // 64 * 64 + 32, "l2") for k in range(cfg.l2n)]
    want.sort(key=lambda z: z[0])
    out = []; pos = 0; pads = {k: [] for k in list(range(len(cfg.walk))) + ["l2"]}
    for x, n in zip(p, sz):
        while want and pos >= want[0][0] and x.kind != "endpgm":
            o, k = want.pop(0)
            lab, br = I("L_x:"), I("s_cbranch_execz L_x")
            pads[k].append((lab, br)); out += [lab, br]; pos += 4
        out.append(x); pos += n
    for i, (lab, br) in enumerate(pads.pop("l2")): lab.text = "L_l2%s_%d:" % (typ, i); br.text = "s_cbranch_execz L_l2ret%s" % typ
    for k, lst in pads.items():
        assert len(lst) >= 4 or not lst
        for i, (lab, br) in enumerate(lst):
            lab.text = "L_pad%s%d_%d:" % (typ, k, i)
            br.text = "s_cbranch_execz " + ("L_pad%s%d_%d" % (typ, k, i + 4) if i + 4 < len(lst) else "L_ret%s%d" % (typ, k))
    print("  pads", {k: len(v) for k, v in pads.items()}, "bytes", pos)
    return out

def o212_defaults():
    cfg.o212 = True; cfg.pace = [8, 4, 6]; cfg.pacew = {}
    cfg.a_hh = 1; cfg.a_att2 = 14; cfg.h3 = 6; cfg.b_h0 = 14; cfg.b_att = 28
    cfg.b_ri = -24; cfg.b_rc = -6; cfg.b_li = 8; cfg.b_lc = 18
    cfg.p0 = 5; cfg.hstep0 = 9; cfg.p1 = 26; cfg.hstep1 = 5
    cfg.poll_lead = [12, 20, 12, 12, 12]
    cfg.hlA = cfg.hlB = [max(30 + 2 * (n - 12), 4 * (n - 5) + 1) for n in range(36)]
    cfg.w2at = cfg.w2atB = lambda m: m - 16
    cfg.w2pf = [(36, 16, 4), (40, 20, 4), (44, 24, 4), (48, 28, 4), (52, 32, 4)]

def generate(path):
    label_n[0] = 0
    import fw; fw.LOOSE = cfg.x_nodma or cfg.x_drop
    progs = {}; cut = {}
    for typ in "AB":
        nc, p = build_type(typ)
        mark = p[nc]
        if cfg.x_nodma:
            k0 = [i for i, x in enumerate(p) if getattr(x, "kind", "") == "barrier"][0]
            q = p[:k0]
            for x in p[k0:]:
                if getattr(x, "dma", False):
                    y = I("s_nop 0");
                    q.append(y)
                else: q.append(x)
            p = q
        if cfg.x_drop:
            q = []
            for x in p:
                t = getattr(x, "text", "")
                d = ("h" in cfg.x_drop and t.startswith("buffer_load_dwordx4 a[")) or \
                    ("s" in cfg.x_drop and t.startswith("buffer_store_dwordx4") and "s[28:31]" in t) or \
                    ("w" in cfg.x_drop and getattr(x, "dma", False) and ("s[20:23]" in t or "s[24:27]" in t)) or \
                    ("p" in cfg.x_drop and x.kind == "raw")
                if "m" in cfg.x_drop and x.kind == "mfma":
                    if t.endswith("]") and " a[" in t and "32x32" in t:
                        regs = [r for r in x.rd if r[0] == "a"]
                        y = I("s_nop 0"); y.rd = regs; y.kind = "salu"; q.append(y)
                    continue
                if "l" in cfg.x_drop and x.kind == "ds": continue
                q.append(I("s_nop 0") if d else x)
            p = q
        progs[typ] = finalize(p, typ)
        cut[typ] = (progs[typ].index(mark), [i for i, x in enumerate(progs[typ]) if x.kind == "label" and "main" in x.text][0])
    for t in "AB":
        k = [i for i, x in enumerate(progs[t]) if getattr(x, "gives", None) == "hs" + t][0]
        assert all(i > k for i, x in enumerate(progs[t]) if getattr(x, "after_hs", False)), "poll before the hand-shake"
    given = {("A", 0), ("B", 0)}; at = {"A": 0, "B": 0}; moved = True
    while moved:
        moved = False
        for t in "AB":
            while at[t] < len(progs[t]) and all(w in given for w in getattr(progs[t][at[t]], "waits", [])):
                g = getattr(progs[t][at[t]], "gives", None)
                if g is not None: given.add((t, g))
                at[t] += 1; moved = True
    assert all(at[t] == len(progs[t]) for t in "AB"), ("circular wait", at, [getattr(progs[t][min(at[t], len(progs[t]) - 1)], "waits", None) for t in "AB"])
    def main(t):
        p = progs[t][cut[t][1]:]
        if cfg.fixpar: p = fix_parity(p, cfg.fixpar)
        if cfg.walk: return ".p2align 12\n" + emit(add_pads(p, t)) + "L_end%s:\n" % t
        return ".p2align 6\n" + emit(p[:1]) + "    s_nop 0\n" * cfg.shift[t == "B"] + emit(p[1:]) + "L_end%s:\n" % t
    body = emit(progs["A"][:cut["A"][1]]) + "L_proB:\n" + emit(progs["B"][cut["B"][0]:cut["B"][1]]) + "L_exit:\n    s_endpgm\n" + \
           main("A") + main("B")
    ref = open("parallel_sum__linear_kernel_hedgehog__glu_gated_bilinear__prompt.s.ref").read().split("\n")
    head = [x for x in ref if x.startswith(";") and "@launch" not in x and "Override" not in x and "grid=ceil" not in x]
    txt = "\n".join(head) + "\n; @launch grid=(256,1,1) block=(256,1,1) lds=%d\n" % LDS_BYTES
    txt += """.amdgcn_target "amdgcn-amd-amdhsa--gfx950"
.text
.globl {k}
.p2align 8
.type {k},@function
{k}:
""".format(k=KNAME) + body + """.section .rodata,"a"
.p2align 6
.amdhsa_kernel {k}
  .amdhsa_next_free_vgpr 512
  .amdhsa_next_free_sgpr 102
  .amdhsa_accum_offset 256
  .amdhsa_group_segment_fixed_size 0
  .amdhsa_kernarg_size 88
  .amdhsa_user_sgpr_count 2
  .amdhsa_user_sgpr_kernarg_segment_ptr 1
  .amdhsa_system_sgpr_workgroup_id_x 1
.end_amdhsa_kernel
""".format(k=KNAME)
    open(path, "w").write(txt)
    if cfg.stamps: open(path[:-2] + ".names", "w").write("\n".join(stamp_names))

if __name__ == "__main__":
    defaults()
    path = sys.argv[1]
    for kv in sys.argv[2:]:
        k, v = kv.split("=", 1)
        if k == "o212": o212_defaults()
        setattr(cfg, k, eval(v))
    generate(path)
```

```python
import sys, re
from fw import *

KNAME = "parallel_sum__linear_kernel_hedgehog__glu_gated_bilinear__prompt_kernel"

class Cfg:
    rot = True
    stamps = False
    codepf = False
    wpf = False
    w2pf = False
    spin = 200000
    dbgout = False
    x_drop = ''
    x_nostat = False; x_notask = False; x_nodma = False; x_nobar = False
cfg = Cfg()

PITCH = 8224
NSLOT = 16
WREG = NSLOT * PITCH
WREG_SZ = 5632
VOFF = 2304
STAT = WREG + 4 * WREG_SZ
CSP = STAT + 2304
CST = CSP + 3072
LDS_BYTES = 163840
WS_H = 0
WS_KVP = 0xC00000
WS_KVF = 0xA00000
WS_FL = 0xA40000
WS_ST = 0xB00000
OOB = 0x40000000

SX, SQ, SG, SU, SD, SO, SW, SOUT, SDBG, SPHI = 4, 8, 12, 16, 20, 24, 28, 32, 36, 40
def srd(b): return "s[%d:%d]" % (b, b + 3)
sWV, sTH, sGR, sRB, sQ, sT4, sAB, sI, sTT, sCT, sIDX, sXCD = range(44, 56)
sKX, sKQ, sKG = 56, 64, 72
sLX, sL2K, sL1K, sT0, sT1, sSPIN = 80, 81, 82, 83, 84, 85
sM1, sM2, sM3, sMB = 86, 88, 90, 92
sWDB, sWOB, sC2, sH2, sS = 94, 95, 96, 97, 3
sPB = 40
sMH = 54
sST = 98
SET0, SET1, WF = 0, 64, 128
SEL01, SEL23 = 144, 148
vPW, vPR, vVW, vVR0 = 152, 153, 154, 155
vKVL, vKRL, vKRS = 152, 153, 154
CSD = 156
MB = 160
CA = 168
vSL = 172
XR, WR1, WR3, XD, WR2 = 174, 178, 178, 182, 182
W2R = 174
WQD, WGD, WHD = 186, 188, 190
vHLD, vPOL = 186, 187
vCSA, vRS, vR2, vHST, vL, W2D = 191, 192, 194, 196, 197, 198
WPHI = 200
KVD = 208
TMP = 240
vFLG, vVR1, vKVA, vSTAMP = 252, 253, 254, 255
SQD2 = 88
RSD, SQD = 64, 68

def vr(b, n=1): return "v%d" % b if n == 1 else "v[%d:%d]" % (b, b + n - 1)
def ar(b, n): return "a[%d:%d]" % (b, b + n - 1)

stamp_names = []
def stamp(name):
    if cfg.stamps != True: return []
    if name not in stamp_names: stamp_names.append(name)
    k = stamp_names.index(name)
    return [I("s_memtime s[%d:%d]" % (sST, sST + 1)), I("v_writelane_b32 v%d, s%d, %d" % (vSTAMP, sST, k + 2))]

def addr_wfull(dst, n, att, swap, t0=TMP):
    a, b = vr(t0), vr(t0 + 1)
    s = """
    v_lshrrev_b32 {a}, 5, v{L}
    v_lshlrev_b32 {a}, 10, {a}
    v_bfe_u32 {b}, v{L}, 2, 2
    v_lshl_add_u32 {a}, {b}, 7, {a}
    v_and_b32 {b}, 3, v{L}
    v_lshl_add_u32 {a}, {b}, 3, {a}
    v_bfe_u32 {b}, v{L}, 3, 1
    v_xor_b32 {b}, s{gr}, {b}
    v_lshl_add_u32 {a}, {b}, 6, {a}
    v_bfe_u32 {b}, v{L}, 4, 1
    """.format(a=a, b=b, L=vL, gr=sGR)
    if att:
        if swap: s += "v_xor_b32 %s, s%d, %s\n" % (b, sTH, b)
        s += "v_lshl_add_u32 %s, %s, 5, %s\n" % (a, b, a)
    else:
        s += "v_mul_u32_u24 %s, %d, %s\nv_add_u32 %s, %s, %s\n" % (b, PITCH, b, a, a, b)
    return L(s) + wr_variants(dst, n, a, 12, 'Watt' if att else 'Wpair')

def wr_variants(dst, n, a, sh, role):
    s = "s_lshl_b32 s%d, s%d, %d\ns_xor_b32 s%d, s%d, %d\n" % (sT0, sS, sh, sT1, sT0, 1 << sh)
    k = dst
    if n == 4:
        s += "v_add_u32 v%d, s%d, %s\nv_add_u32 v%d, s%d, %s\n" % (k, sT0, a, k + 1, sT1, a)
        s += "v_add_u32 v%d, %d, v%d\nv_add_u32 v%d, %d, v%d\n" % (k + 2, 8 * PITCH, k, k + 3, 8 * PITCH, k + 1)
    else:
        s += "v_add_u32 %s, %d, %s\n" % (a, 8 * PITCH, a)
        s += "v_add_u32 v%d, s%d, %s\nv_add_u32 v%d, s%d, %s\n" % (k, sT0, a, k + 1, sT1, a)
    ins = L(s)
    return [defines(ins, **{role: range(dst, dst + n)})]

def addr_whalf(dst, t0=TMP):
    a, b = vr(t0), vr(t0 + 1)
    s = """
    v_lshrrev_b32 {a}, 5, v{L}
    v_lshlrev_b32 {a}, 9, {a}
    v_bfe_u32 {b}, v{L}, 2, 2
    v_lshl_add_u32 {a}, {b}, 6, {a}
    v_and_b32 {b}, 3, v{L}
    v_lshl_add_u32 {a}, {b}, 3, {a}
    v_bfe_u32 {b}, v{L}, 4, 1
    v_mul_u32_u24 {b}, 4128, {b}
    v_add_u32 {a}, {a}, {b}
    v_mov_b32 {b}, s{gr}
    v_lshl_add_u32 {a}, {b}, 5, {a}
    """.format(a=a, b=b, L=vL, gr=sGR)
    return L(s) + wr_variants(dst, 4, a, 11, 'Whalf')

def addr_cs(swap, t0=TMP):
    a = vr(t0)
    s = "s_lshl_b32 s%d, s%d, 8\ns_lshl_b32 s%d, s%d, 7\ns_add_u32 s%d, s%d, s%d\ns_add_u32 s%d, s%d, %d\n" % (sT0, sGR, sT1, sTH, sT0, sT0, sT1, sT0, sT0, CSP)
    s += "v_and_b32 %s, 31, v%d\n" % (a, vL)
    if swap: s += "s_lshl_b32 s%d, s%d, 4\nv_xor_b32 %s, s%d, %s\n" % (sT1, sTH, a, sT1, a)
    s += """
    v_lshl_add_u32 v{ca}, {a}, 2, s{t}
    v_lshrrev_b32 {a}, 5, v{L}
    v_lshl_add_u32 v{ca}, {a}, 9, v{ca}
    """.format(a=a, L=vL, ca=vCSA, t=sT0)
    return [defines(L(s), **{"CSs" if swap else "CS": vCSA})]

def addr_p2(t0=TMP):
    a, b = vr(t0), vr(t0 + 1)
    s = """
    v_lshrrev_b32 {a}, 5, v{L}
    v_lshlrev_b32 {a}, 9, {a}
    v_bfe_u32 {b}, v{L}, 2, 2
    v_lshl_add_u32 {a}, {b}, 7, {a}
    v_and_b32 {b}, 3, v{L}
    v_lshl_add_u32 {a}, {b}, 3, {a}
    v_bfe_u32 {b}, v{L}, 3, 1
    v_lshl_add_u32 {a}, {b}, 6, {a}
    v_bfe_u32 {b}, v{L}, 4, 1
    v_lshl_add_u32 {a}, {b}, 5, {a}
    v_xor_b32 {b}, 64, {a}
    v_add_u32 v{w0}, s{l2k}, {a}
    v_add_u32 v{w1}, s{l2k}, {b}
    v_add_u32 v{w2}, {hi}, v{w0}
    v_add_u32 v{w3}, {hi}, v{w1}
    """.format(a=a, b=b, L=vL, w0=W2R, w1=W2R + 1, w2=W2R + 2, w3=W2R + 3, l2k=sL2K, hi=8 * PITCH)
    ins = L(s)
    ins.append(L("""
    s_mul_i32 s{t0}, s{tt}, {a}
    s_mul_i32 s{t1}, s{wv}, {b}
    s_add_u32 s{t0}, s{t0}, s{t1}
    v_lshl_add_u32 v{h}, v{L}, 4, s{t0}
    """.format(t0=sT0, t1=sT1, tt=sTT, wv=sWV, a=144 * 2048, b=36 * 2048, h=vHLD, L=vL)))
    ins.append(L("""
    s_lshl_b32 s{t0}, s{tt}, 2
    s_add_u32 s{t0}, s{t0}, s{wv}
    s_lshl_b32 s{t0}, s{t0}, 7
    s_add_u32 s{t0}, s{t0}, {fl}
    v_and_b32 {a}, 7, v{L}
    v_lshl_add_u32 v{p}, {a}, 2, s{t0}
    """.format(t0=sT0, tt=sTT, wv=sWV, fl=WS_FL, a=a, L=vL, p=vPOL)))
    return defines(ins, W2R=range(W2R, W2R + 4), HLD=vHLD, POL=vPOL)

label_n = [0]
def poll(addr, res, need, sr=SW, cmp="gt"):
    label_n[0] += 1
    k = label_n[0]
    ld = "buffer_load_dword v%d, v%d, %s, 0 offen sc1" % (res, addr, srd(sr))
    c = "v_cmp_%s_u32 vcc, %s, v%d" % (cmp, need, res)
    chk = Raw([c, "s_nop 4", "s_cbranch_vccz L_ok%d" % k,
               "s_mov_b32 s%d, %d" % (sSPIN, cfg.spin),
               "L_re%d:" % k, "s_sleep 1", ld, "s_waitcnt vmcnt(0)", c, "s_sub_u32 s%d, s%d, 1" % (sSPIN, sSPIN),
               "s_cbranch_scc1 L_ok%d" % k, "s_nop 2", "s_cbranch_vccnz L_re%d" % k,
               "L_ok%d:" % k],
              rd=["v%d" % res, "v%d" % addr] + regs_of(need), wr=["vcc", "scc", "s%d" % sSPIN])
    chk.cost = 32
    return I(ld), chk

def class_poll(c, res, needr):
    na, nb = ([(0, 1), (1, 1), (1, 2), (2, 2), (2, 3)] if cfg.o212 else [(0, 1), (0, 2), (1, 2), (2, 2), (2, 3)])[c]
    iss, chk = poll(vPOL, res, "v%d" % needr)
    chk.waits = [("A", na), ("B", nb)]; iss.after_hs = True
    needs([iss, chk], POL=vPOL); defines([iss], **{"cp%d" % c: res}); needs([chk], **{"cp%d" % c: res})
    return iss, [I("v_cndmask_b32 v%d, %d, %d, s[%d:%d]" % (needr, na, nb, sMB, sMB + 1)), chk]

def set_flag(level, tag, t):
    if cfg.strict: tag = "vm0"
    mv = I("v_mov_b32 v%d, %d" % (t, level)); mv.gives = level
    return stamp("f%d_0" % level) + [Wait(tag)] + stamp("f%d_1" % level) + [mv, needs(I("buffer_store_dword v%d, v%d, %s, 0 offen sc1" % (t, vFLG, srd(SW))), FLG=vFLG)]

def t_stat_add():
    a, b = TMP, TMP + 1
    s = """
    s_lshl_b32 s{t0}, s{th}, 10
    s_add_u32 s{t0}, s{t0}, {st}
    v_and_b32 v{b}, 31, v{L}
    v_lshl_add_u32 v{b}, v{b}, 4, s{t0}
    s_lshl_b32 s{t1}, s{gr}, 3
    s_add_u32 s{t0}, s{t0}, s{t1}
    v_lshl_add_u32 v{a}, v{L}, 4, s{t0}
    """.format(t0=sT0, t1=sT1, th=sTH, gr=sGR, st=STAT, a=a, b=b, L=vL)
    pre = [L(s)]
    out = []
    for j in range(8): out += L("v_add_f32 v%d, v%d, v%d" % (SQD + j, SQD + j, SQD2 + j))
    for j, m in ((1, sM1), (2, sM2), (3, sM3)):
        for blk in range(2):
            q = SQD + 4 * blk
            out += L("v_cndmask_b32 v%d, v%d, v%d, s[%d:%d]" % (q, q, q + j, m, m + 1))
    out.append(L("v_permlane32_swap_b32 v%d, v%d\nv_add_f32 v%d, v%d, v%d" % (SQD, SQD + 4, RSD + 1, SQD, SQD + 4)))
    out += L("ds_write_b64 v%d, v[%d:%d]" % (a, RSD, RSD + 1))
    return pre, out

def t_cs_add(tile0, role="CS"):
    return needs(L("ds_write_b32 v%d, v%d offset:%d" % (vCSA, CSD, 512 * tile0)), **{role: vCSA})

def t_cs_tot(tile0, t):
    out = L("v_xor_b32 v%d, 0x80, v%d\nds_read_b32 v%d, v%d offset:%d" % (t, vCSA, t, t, 512 * tile0))
    out.append(Gap(2))
    out += L("""
    v_add_f32 v{t}, v{t}, v{cs}
    v_cvt_pk_bf16_f32 v{a}, v{t}, v{t}
    v_lshlrev_b32 v{a1}, 16, v{a}
    v_sub_f32 v{t}, v{t}, v{a1}
    v_cvt_pk_bf16_f32 v{a1}, v{t}, 0
    """.format(t=t, cs=CSD, a=CA, a1=CA + 1))
    return defines(out, **{"CA%d" % tile0: (CA, CA + 1)})

def t_corr(acc, T, tile0, bs=16, regs=None):
    out = []
    for j in range(T):
        for b in range(2):
            d = vr(regs[j][b] if regs else acc + 32 * j + bs * b, 16)
            x = I("v_mfma_f32_32x32x16_bf16 %s, %s, %s, %s" % (d, vr(CA, 4), vr(MB + 4 * b + 2 * j, 4), d)); x.cost = 24
            out.append(x)
    return needs(out, MB=range(MB, MB + 8), Z=(CA + 2, CA + 3), **{"CA%d" % tile0: (CA, CA + 1)})

def t_stat_fin():
    b = TMP + 1; t = TMP + 4
    out = L("ds_read_b128 v[%d:%d], v%d\nds_read_b128 v[%d:%d], v%d offset:512" % (t, t + 3, b, t + 4, t + 7, b))
    out.append(Gap(2))
    late = []
    for blk in range(2):
        r = t + 4 * blk; m = MB + 4 * blk
        out += L("""
        v_add_f32 v{r}, v{r}, v{r2}
        v_mul_f32 v{r}, 0xbb000000, v{r}
        v_cvt_pk_bf16_f32 v{m1}, v{r}, 0
        v_lshlrev_b32 v{r2}, 16, v{m1}
        v_sub_f32 v{r2}, v{r}, v{r2}
        v_cvt_pk_bf16_f32 v{m0}, v{r}, v{r2}
        v_cndmask_b32 v{m2}, 0, v{m0}, s[{h}:{h1}]
        v_cndmask_b32 v{m3}, 0, v{m1}, s[{h}:{h1}]
        v_cndmask_b32 v{m0}, v{m0}, 0, s[{h}:{h1}]
        v_cndmask_b32 v{m1}, v{m1}, 0, s[{h}:{h1}]
        """.format(r=r, r2=r + 2, m0=m, m1=m + 1, m2=m + 2, m3=m + 3, h=sMH, h1=sMH + 1))
        late += L("""
        v_add_f32 v{r1}, v{r1}, v{r3}
        v_mul_f32 v{r2}, v{r}, v{r}
        v_fma_f32 v{r1}, v{r1}, s{c}, -v{r2}
        v_max_f32 v{r1}, 0, v{r1}
        v_add_f32 v{r1}, 0x3727c5ac, v{r1}
        v_rsq_f32 v{rs}, v{r1}
        v_rcp_f32 v{rr}, v{r1}
        v_mul_f32 v{sl}, 0x3fb8aa3b, v{rs}
        """.format(r=r, r1=r + 1, r2=r + 2, r3=r + 3, rs=vRS + blk, rr=vR2 + blk, sl=vSL + blk, c=sC2))
    defines(out, MB=range(MB, MB + 8)); defines(late, R2=(vR2, vR2 + 1), RS=(vRS, vRS + 1), SL=(vSL, vSL + 1))
    return out, late

def t_hepi(acc, soff, imm, tag, bs=16):
    out = []
    for blk in range(2):
        g = acc + bs * blk
        for r in range(0, 8 if not cfg.x_notask else 0, 2):
            out += L("v_mul_f32 v%d, v%d, v%d\nv_mul_f32 v%d, v%d, v%d" % (g + r, vR2 + blk, g + r, g + r + 1, vR2 + blk, g + r + 1))
            out += L("v_mul_f32 v%d, v%d, v%d\nv_mul_f32 v%d, v%d, v%d" % (g + r, g + r, g + 8 + r, g + r + 1, g + r + 1, g + 9 + r))
            out += L("v_cvt_pk_bf16_f32 v%d, v%d, v%d" % (g + r // 2, g + r, g + r + 1))
        st = L("buffer_store_dwordx4 v[%d:%d], v%d, %s, s%d offen offset:%d sc1" % (g, g + 3, vHST, srd(SW), sT1, imm + 1024 * blk), tag=tag if blk else None)
        out.append(L(soff) + st)
    return needs(out, HST=vHST, R2=(vR2, vR2 + 1))

def phi_mfma(acc, TMP=TMP):
    out = []
    for j in range(8): out += L("v_cvt_pk_bf16_f32 v%d, v%d, v%d" % (TMP + j, acc + 2 * j, acc + 2 * j + 1))
    out += L("v_mfma_f32_32x32x16_bf16 v[%d:%d], v[%d:%d], v[%d:%d], 0" % (acc, acc + 15, WPHI, WPHI + 3, TMP, TMP + 3))
    out += L("v_mfma_f32_32x32x16_bf16 v[%d:%d], v[%d:%d], v[%d:%d], v[%d:%d]" % (acc, acc + 15, WPHI + 4, WPHI + 7, TMP + 4, TMP + 7, acc, acc + 15))
    out[-1].cost = 24; out[-2].cost = 24
    return needs(out, WPHI=range(WPHI, WPHI + 8))

def softmax2(p, blk, scale=None):
    e = TMP; a, b, c, d = TMP + 8, TMP + 9, TMP + 10, TMP + 11; sl = vSL + blk
    s = """
    v_max3_f32 v{a}, v{p0}, v{p1}, v{p2}
    v_min3_f32 v{b}, v{p0}, v{p1}, v{p2}
    v_max3_f32 v{a}, v{a}, v{p3}, v{p4}
    v_min3_f32 v{b}, v{b}, v{p3}, v{p4}
    v_max3_f32 v{a}, v{a}, v{p5}, v{p6}
    v_min3_f32 v{b}, v{b}, v{p5}, v{p6}
    v_max_f32 v{a}, v{a}, v{p7}
    v_max_f32_e64 v{b}, -v{b}, -v{p7}
    """.format(a=a, b=b, **{"p%d" % i: p + i for i in range(8)})
    out = L(s)
    out += L("v_permlane32_swap_b32 v{a}, v{b}\nv_max_f32 v{a}, v{a}, v{b}\nv_mul_f32_e64 v{a}, -v{a}, v{sl}\nv_mov_b32 v{b}, v{a}".format(a=a, b=b, sl=sl))
    out += L("v_permlane32_swap_b32 v{a}, v{b}".format(a=a, b=b))
    for i in range(8):
        out += L("v_fma_f32 v%d, v%d, v%d, v%d" % (e + i, p + i, sl, a))
        out += L("v_fma_f32 v%d, -v%d, v%d, v%d" % (p + i, p + i, sl, b))
        if i > 1: out += L("v_add_f32 v%d, v%d, v%d" % (c, c if i > 2 else e, e + i - 1))
        out += L("v_exp_f32 v%d, v%d" % (e + i, e + i))
        if i > 1: out += L("v_add_f32 v%d, v%d, v%d" % (d, d if i > 2 else p, p + i - 1))
        out += L("v_exp_f32 v%d, v%d" % (p + i, p + i))
    out += L("v_add_f32 v%d, v%d, v%d\nv_add_f32 v%d, v%d, v%d" % (c, c, e + 7, d, d, p + 7))
    out += L("v_permlane32_swap_b32 v{c}, v{d}\nv_add_f32 v{c}, v{c}, v{d}\nv_rcp_f32 v{c}, v{c}".format(c=c, d=d))
    if scale: out += L("v_mul_f32 v%d, v%d, v%d" % (c, scale, c))
    out += L("v_mov_b32 v{d}, v{c}".format(c=c, d=d))
    out += L("v_permlane32_swap_b32 v{c}, v{d}".format(c=c, d=d))
    for i in range(8):
        out += L("v_mul_f32 v%d, v%d, v%d" % (p + i, d, p + i))
        if i & 1: out += L("v_cvt_pk_bf16_f32 v%d, v%d, v%d" % (p + i // 2, p + i - 1, p + i))
    for i in range(8):
        out += L("v_mul_f32 v%d, v%d, v%d" % (e + i, c, e + i))
        if i & 1: out += L("v_cvt_pk_bf16_f32 v%d, v%d, v%d" % (p + 4 + i // 2, e + i - 1, e + i))
    return out

def v_out(va, blk):
    out = []
    if cfg.vfold:
        t = TMP + 8
        out += L("v_rcp_f32 v{t}, v{rs}\nv_cvt_pk_bf16_f32 v{t}, v{t}, v{t}\nds_write_b32 v{a}, v{t} offset:64".format(t=t, rs=vRS + blk, a=vVW))
    for r in range(0, 16, 2):
        if not cfg.vfold: out += L("v_mul_f32 v%d, v%d, v%d\nv_mul_f32 v%d, v%d, v%d" % (va + r, vRS + blk, va + r, va + r + 1, vRS + blk, va + r + 1))
        out += L("v_cvt_pk_bf16_f32 v%d, v%d, v%d" % (va + r // 2, va + r, va + r + 1))
        if r % 4 == 2: out += L("ds_write_b64 v%d, v[%d:%d] offset:%d" % (vVW, va + r // 2 - 1, va + r // 2, 4 * (r - 2)))
    return out

def weave(main, extra, pos):
    out = []; k = 0
    for n, x in enumerate(main):
        while k < len(extra) and pos[k] <= n: out.append(extra[k]); k += 1
        out.append(x)
    return out + extra[k:]

def t_att_k():
    out = []
    if cfg.x_notask: return [I("s_nop 0")]
    FR = 32
    rds, mms = [], []
    for blk in range(2):
        va = 32 + 16 * blk; ka = 16 * blk
        pm = phi_mfma(ka)
        out += weave(pm, rds, range(0, 8)); rds = []
        vo = v_out(va, blk)
        out += weave(vo, mms, (10, 18) if not cfg.vfold else (6, 12)); mms = []
        for hh in range(2):
            p = ka + 8 * hh
            sm = softmax2(p, blk, vRS + blk if cfg.vfold else None)
            n = len(sm)
            wr = [I("ds_write_b64 v%d, v[%d:%d] offset:%d" % (vPW, p + 2 * j, p + 1 + 2 * j, 32 + 16 * j)) for j in range(2)] + \
                 [I("ds_write_b64 v%d, v[%d:%d] offset:%d" % (vPW, p + 4 + 2 * j, p + 5 + 2 * j, 16 * j)) for j in range(2)]
            sm = weave(sm, rds + mms + wr, [2, 5, 8, 8, 12, 12, 16, 20][:len(rds)] + [44, 56][:len(mms)] + [n - 17, n - 11, n - 5, n])
            out += sm
            rds, mms = [], []
            for ks in range(2):
                for j in range(2):
                    rds += L("ds_read_b64_tr_b16 v[%d:%d], v%d offset:%d" % (FR + 8 * ks + 4 + 2 * j, FR + 8 * ks + 5 + 2 * j, (vVR0, vVR1)[hh], 1664 * ks + 416 * j))
                for j in range(2):
                    rds += L("ds_read_b64_tr_b16 v[%d:%d], v%d offset:%d" % (FR + 8 * ks + 2 * j, FR + 8 * ks + 2 * j + 1, vPR, 1152 * ks + 288 * j))
            d = KVD + 16 * hh
            for ks in range(2):
                c = "0" if (blk == 0 and ks == 0) else vr(d, 16)
                x = I("v_mfma_f32_32x32x16_bf16 %s, %s, %s, %s" % (vr(d, 16), vr(FR + 8 * ks, 4), vr(FR + 8 * ks + 4, 4), c)); x.cost = 24
                mms.append(x)
    for x in rds: x.cost = 8
    out += rds
    pend = mms
    out.append(L("""
    s_mul_i32 s{t0}, s{wv}, {wsz}
    s_add_u32 s{t0}, s{t0}, {wreg}
    v_lshl_add_u32 v{a}, v{L}, 4, s{t0}
    s_xor_b32 s{t0}, s{wv}, 1
    s_mul_i32 s{t0}, s{t0}, {wsz}
    s_add_u32 s{t0}, s{t0}, {wreg}
    v_lshl_add_u32 v{b}, v{L}, 4, s{t0}
    """.format(t0=sT0, wv=sWV, wsz=WREG_SZ, wreg=WREG, a=TMP, b=TMP + 1, L=vL)))
    out += [Gap(2)] + pend + [Gap(2)]
    for r4 in range(4): out += L("ds_write_b128 v%d, %s offset:%d" % (TMP, vr(KVD + 16 + 4 * r4, 4), 1024 * r4))
    defines(out, EXR=TMP + 1)
    return needs(out, PW=vPW, PR=vPR, VW=vVW, VR0=vVR0, VR1=vVR1, RS=(vRS, vRS + 1), SL=(vSL, vSL + 1))

def t_kv_pub():
    out = []
    for r4 in range(4): out += L("ds_read_b128 %s, v%d offset:%d" % (vr(KVD + 16 + 4 * r4, 4), TMP + 1, 1024 * r4))
    out.append(Gap(2))
    for r in range(16):
        out += L("v_add_f32 v%d, v%d, v%d" % (KVD + r, KVD + r, KVD + 16 + r))
        if r % 4 == 3: out += L("buffer_store_dwordx4 %s, v%d, %s, 0 offen offset:%d sc1" % (vr(KVD + r - 3, 4), vKVA, srd(SW), 136 * (r - 3)))
    out[-1].gives = "kvp"
    return needs(out, EXR=TMP + 1, KVA=vKVA)

def data_poll(loads, regs, t):
    label_n[0] += 1
    k = label_n[0]
    chk = ["v_max3_u32 v%d, v%d, v%d, v%d" % (t, regs[0], regs[1], regs[2])]
    rest = regs[3:]
    while len(rest) > 1:
        chk.append("v_max3_u32 v%d, v%d, v%d, v%d" % (t, t, rest[0], rest[1])); rest = rest[2:]
    if rest: chk.append("v_max_u32 v%d, v%d, v%d" % (t, t, rest[0]))
    fast = L("\n".join(chk))
    c = "v_cmp_eq_u32 vcc, -1, v%d" % t
    raw = Raw([c, "s_nop 4", "s_cbranch_vccz L_ok%d" % k, "s_mov_b32 s%d, %d" % (sSPIN, cfg.spin), "L_re%d:" % k, "s_sleep 1"] + loads +
              ["s_waitcnt vmcnt(0)"] + chk + [c, "s_sub_u32 s%d, s%d, 1" % (sSPIN, sSPIN), "s_cbranch_scc1 L_ok%d" % k, "s_nop 2",
               "s_cbranch_vccnz L_re%d" % k, "L_ok%d:" % k],
              rd=["v%d" % t, "v%d" % vKRL, "v%d" % vKVL], wr=["vcc", "scc", "s%d" % sSPIN, "s%d" % sT1] + ["v%d" % r for r in regs])
    raw.cost = 32
    needs(raw, KRL=vKRL, KVL=vKVL)
    return fast + [raw]

def t_kv_red(RR=80):
    ld = []
    for k in range(4):
        ld += ["s_mov_b32 s%d, %d" % (sT1, 8704 * k), "buffer_load_dwordx4 %s, v%d, %s, s%d offen sc1" % (vr(RR + 4 * k, 4), vKRL, srd(SW), sT1)]
    iss = [L("\n".join(ld[2 * k:2 * k + 2])) for k in range(4)]
    out = data_poll(ld, list(range(RR, RR + 16)), vKVA)
    for j in range(4):
        out += L("v_add_f32 v%d, v%d, v%d\nv_add_f32 v%d, v%d, v%d" % (RR + j, RR + j, RR + 4 + j, RR + 8 + j, RR + 8 + j, RR + 12 + j))
    for j in range(4): out += L("v_add_f32 v%d, v%d, v%d" % (RR + j, RR + j, RR + 8 + j))
    out += L("""
    v_permlane16_swap_b32 v{a}, v{b}
    v_permlane16_swap_b32 v{c}, v{d}
    v_add_f32 v{a}, v{a}, v{b}
    v_add_f32 v{c}, v{c}, v{d}
    v_permlane32_swap_b32 v{a}, v{c}
    v_add_f32 v{a}, v{a}, v{c}
    buffer_store_dword v{a}, v{s}, {sr}, 0 offen sc1
    """.format(a=RR, b=RR + 1, c=RR + 2, d=RR + 3, s=vKRS, sr=srd(SW)))
    needs(iss, KRL=vKRL); needs(out, KRS=vKRS); flat(iss)[1].after_hs = True
    out[-1].gives = "kvf"; [x for x in out if x.kind == "raw"][0].waits = [("A", "kvp")]
    return iss, out

def t_att_q(Q=SET0, T8=64):
    out = []
    if cfg.x_notask: return [I("s_nop 0")]
    out += phi_mfma(Q, T8) + phi_mfma(Q + 16, T8 + 8) + [Gap(1)] * (Q != SET0)
    out += softmax2(Q, 0) + softmax2(Q + 8, 0) + softmax2(Q + 16, 1) + softmax2(Q + 24, 1)
    return out

KR = 32
def t_kv_load():
    ld = []
    for hh in range(2):
        for r4 in range(4):
            ld += ["buffer_load_dwordx4 %s, v%d, %s, 0 offen offset:%d sc1" % (vr(KR + 16 * hh + 4 * r4, 4), vKVL, srd(SW), 2176 * hh + 544 * r4)]
    chk = data_poll(ld, list(range(KR, KR + 32)), vKVA); chk[-1].waits = [("B", "kvf")]
    return needs(L("\n".join(ld)), KVL=vKVL), chk

def t_o(Q=SET0, D=64):
    out = []
    for hh in range(2):
        for j in range(8): out += L("v_cvt_pk_bf16_f32 v%d, v%d, v%d" % (KR + 16 * hh + j, KR + 16 * hh + 2 * j, KR + 16 * hh + 2 * j + 1))
    seq = [(hh, blk) for hh in range(2) for blk in range(2)]
    def mm(k):
        hh, blk = seq[k]; d = D + 16 * (k & 1); p = Q + 16 * blk + 8 * hh
        return L("v_mfma_f32_32x32x16_bf16 %s, %s, %s, 0" % (vr(d, 16), vr(KR + 16 * hh, 4), vr(p + 4, 4))) + \
               L("v_mfma_f32_32x32x16_bf16 %s, %s, %s, %s" % (vr(d, 16), vr(KR + 16 * hh + 4, 4), vr(p, 4), vr(d, 16)))
    def fin(k):
        hh, blk = seq[k]; d = D + 16 * (k & 1)
        o = L("v_add_f32 v%d, 0x358637bd, v%d\nv_rcp_f32 v%d, v%d" % (d + 8, d + 8, d + 8, d + 8))
        for r in range(8):
            o += L("v_mul_f32 v%d, v%d, v%d" % (d + r, d + 8, d + r))
            if r & 1: o += L("v_cvt_pk_bf16_f32 v%d, v%d, v%d" % (d + r // 2, d + r - 1, d + r))
        st = L("s_mov_b32 s%d, %d" % (sT1, 28 * 2048)) + \
             L("buffer_store_dwordx4 %s, v%d, %s, s%d offen offset:%d sc1" % (vr(d, 4), vHST, srd(SW), sT1, 2048 * hh + 1024 * blk), tag="ost" if k == 3 else None)
        return o + [st]
    out += mm(0) + mm(1) + fin(0) + mm(2) + fin(1) + mm(3) + fin(2) + fin(3)
    return out

def dma(vo, sr, so, imm, tag=None):
    role = "XD" if sr == SX else "WQD" if sr == SQ else "W2D" if sr in (SD, SO) else "WHD" if vo == WHD else "WGD"
    return needs(dma_(vo, sr, so, imm, tag), **{role: vo})

def dma_(vo, sr, so, imm, tag=None):
    return L("buffer_load_dwordx4 v%d, %s, %s offen%s lds" % (vo, srd(sr), so, " offset:%d" % imm if imm else ""), tag=tag)

def m0set(base, lit): return L("s_add_u32 m0, s%d, %d" % (base, lit))

def dma_x(c, slot, tag):
    if not cfg.rot:
        g = m0set(sLX, slot * PITCH) + L("s_movk_i32 s%d, %d" % (sH2 + 0 if False else 79, 128 * c))
        return [g + dma(XD, SX, "s79", 0)] + [dma(XD + i, SX, "s79", 1024 * i, tag if i == 3 else None) for i in range(1, 4)]
    g = m0set(sLX, slot * PITCH)
    return [g + dma(XD, SX, "s%d" % (sKX + c), 0)] + [dma(XD + i, SX, "s%d" % (sKX + c), 1024 * i, tag if i == 3 else None) for i in range(1, 4)]

def dma_full(vo, sr, kreg, extra, slot, tag):
    g = m0set(sL2K, slot * PITCH)
    so = "s%d" % kreg
    if not cfg.rot:
        lit = extra + ((kreg - sKQ) * 64 * 3072 if kreg < sKG else (kreg - sKG) * 64 * 3584)
        g += L("s_mov_b32 s%d, %d" % (sT0, lit)); so = "s%d" % sT0
        return [g + dma(vo, sr, so, 0) + dma(vo + 1, sr, so, 1024, tag)]
    if extra:
        g += L("s_add_u32 s%d, s%d, %d" % (sT0, kreg, extra)); so = "s%d" % sT0
        return [g + dma(vo, sr, so, 0) + dma(vo + 1, sr, so, 1024, tag)]
    return [g + dma(vo, sr, so, 0) + dma(vo + 1, sr, so, 1024, tag)]

def dma_half(c, slot, tag):
    so = "s%d" % (sKG + c)
    if not cfg.rot:
        mv = lambda: L("s_mov_b32 s%d, %d" % (sT0, c * 64 * 3584)); so = "s%d" % sT0
        return [m0set(sL1K, slot * PITCH) + mv() + dma(WHD, SG, so, 0), m0set(sL1K, slot * PITCH + 4128) + mv() + dma(WHD, SU, so, 0, tag)]
    return [m0set(sL1K, slot * PITCH) + dma(WHD, SG, so, 0), m0set(sL1K, slot * PITCH + 4128) + dma(WHD, SU, so, 0, tag)]

def slice_src(n):
    return (SD, sWDB, 16 * n) if n < 28 else (SO, sWOB, 16 * (n - 28))

FIRST = [0, 8, 16, 24, 28, 36]
SMALL = [3]
sR2 = sKX
def cls_of(n):
    c = max(k for k in range(5) if FIRST[k] <= n)
    return c, n - FIRST[c]

def r2_table():
    out = [L("s_and_b32 s{a}, s{tt}, 3\ns_lshl_b32 s{a}, s{a}, 1\ns_add_u32 s{a}, s{a}, s{ct}\ns_and_b32 s{a}, s{a}, {m}\ns_lshl_b32 s{a}, s{a}, 11".format(a=sR2, tt=sTT, ct=sCT, m=7 if cfg.rot2 else 0))]
    for i in range(1, 8): out.append(L("s_add_u32 s{a}, s{p}, 2048\ns_and_b32 s{a}, s{a}, 0x3800".format(a=sR2 + i, p=sR2 + i - 1)))
    return defines(out, R2T=["s%d" % (sR2 + i) for i in range(8)])

def dma_w2(n, slot):
    sr, base, row = slice_src(n)
    c, i = cls_of(n)
    g = m0set(sL2K, slot * PITCH)
    if c == SMALL[0]: g += L("s_and_b32 s{t}, s{r}, 0x1800\ns_lshl3_add_u32 s{t}, s{t}, s{b}".format(t=sT0, r=sR2 + i, b=base))
    else: g += L("s_lshl3_add_u32 s{t}, s{r}, s{b}".format(t=sT0, r=sR2 + i, b=base))
    needs(g, R2T="s%d" % (sR2 + i))
    g += dma(W2D, sr, "s%d" % sT0, 0) + dma(W2D + 1, sr, "s%d" % sT0, 1024, "w2_%d" % n)
    if n + 1 in FIRST[1:4]: g += L("s_add_u32 s%d, s%d, %d" % (sWDB, sWDB, 16384 * (FIRST[c + 1] - FIRST[c])))
    return [g]

def h_load(n):
    c, i = cls_of(n)
    if c == SMALL[0]: g = L("s_and_b32 s{t}, s{r}, 0x1800\ns_add_u32 s{t}, s{t}, {l}".format(t=sT1, r=sR2 + i, l=FIRST[c] * 2048))
    else: g = L("s_add_u32 s%d, s%d, %d" % (sT1, sR2 + i, FIRST[c] * 2048))
    needs(g, R2T="s%d" % (sR2 + i))
    a = 8 * (n % 32)
    for b in range(2):
        g += L("buffer_load_dwordx4 %s, v%d, %s, s%d offen%s sc1" % (ar(a + 4 * b, 4), vHLD, srd(SW), sT1, " offset:1024" if b else ""))
    return needs(g, HLD=vHLD)

def build_type(typ):
    global vHLD, vPOL
    A = typ == "A"
    if not A:
        for k, v in cfg.B.items(): setattr(cfg, k, v)
    o2 = cfg.o212 is True or (cfg.o212 == "B" and not A)
    vHLD, vPOL = (186, 187) if A else (155, 253)
    passes = [("att2", 2, SET0, 0), ("pair", 2, SET1, 2), ("half", 1, SET0, 4)] if A else \
             [("pair", 2, SET0, 0), ("pair", 2, SET1, 2), ("q", 1, SET0, 4)]
    WRs = [WR1, WR2, WR3]
    ACC2 = [16, 32, 208, 224] if A else [96, 112, 208, 224]
    accr = lambda p, j, b: (0, 48)[b] if (A and p == 2) else passes[p][2] + 32 * j + 16 * b
    if o2:
        passes = [("att2", 2, SET0, 0), ("half", 1, SET1, 2), ("pair", 2, SET0, 4)] if A else \
                 [("pair", 2, SET0, 0), ("q", 1, SET1, 2), ("pair", 2, SET0, 4)]
        ACC2 = [16, 32, 64, 80] if A else [96, 112, 208, 224]
        accr = lambda p, j, b: ((96, 112), (0, 48))[j][b] if (A and p == 2) else passes[p][2] + 32 * j + 16 * b
        if cfg.o212 is True: FIRST[:] = [0, 8, 12, 20, 28, 36]; SMALL[:] = [1]
    S = Sched()
    step_beat = {}
    nt = lambda g: passes[g // 32][1]
    wbuf = lambda g, j: WF + (8 * (g & 1) + 4 * j if nt(g) == 2 else 4 * (g & 3))

    slot_of = {}
    for c in range(8):
        slot_of[("x", c)] = 2 * (c % 4); slot_of[("w", 0, c)] = 8 + 2 * (c % 4)
    def item_dma(it):
        if it[0] == "x": return dma_x(it[1], slot_of[it], "x%d" % it[1])
        if it[0] == "s": return dma_w2(it[1], slot_of[it])
        _, p, c = it; kind = passes[p][0]; sl = slot_of[it]; tag = "w%d_%d" % (p, c)
        if kind == "att2": return dma_full(WQD, SQ, sKQ + c, 0, sl, None) + dma_full(WQD, SQ, sKQ + c, 1024, sl + 1, tag)
        if kind == "q": return dma_full(WQD, SQ, sKQ + c, 0, sl, tag)
        if kind == "half": return dma_half(c, sl, tag)
        ex = {True: 384, 'B': 512, False: 256}[cfg.o212] if (not A and p > 0) else 0
        return dma_full(WGD, SG, sKG + c, ex, sl, None) + dma_full(WGD, SU, sKG + c, ex, sl + 1, tag)
    def item_slots(it):
        if it[0] == "x": return 2
        if it[0] == "s": return 1
        return 2 if passes[it[1]][0] in ("att2", "pair") else 1

    def m16(d, sel, src, first): S.beat(I("v_mfma_f32_16x16x32_bf16 %s, %s, %s, %s" % (vr(d, 4), vr(sel, 4), src, "0" if first else vr(d, 4))), 16)
    def row_stats(k):
        for h in range(2):
            for b in range(2):
                d = vr((SQD, SQD2)[h] + 4 * b, 4)
                S.beat(I("v_mfma_f32_4x4x4_16b_bf16 %s, %s, %s, %s" % (d, ar(8 * k + 4 * b + 2 * h, 2), ar(8 * k + 4 * b + 2 * h, 2), "0" if k == 0 else d)), 8)
        m16(RSD, SEL01, ar(8 * k, 4), k == 0); m16(RSD, SEL23, ar(8 * k + 4, 4), False)
    def col_stats(g):
        for j in range(nt(g)): m16(CSD, (SEL01, SEL23)[j], vr(wbuf(g, j), 4), g % 32 == 0 and j == 0)
    for g in range(96):
        p, c, t = g // 32, (g // 4) % 8, g % 4
        kind, T, acc, tile0 = passes[p]
        step_beat[g] = len(S.beats)
        k = g % 32
        if cfg.st_early and c == 7 and T == 2 and t == 1 and not cfg.x_nostat: col_stats(g)
        for j in range(T):
            for b in range(2):
                d = vr(accr(p, j, b), 16)
                S.beat(I("v_mfma_f32_32x32x16_bf16 %s, %s, %s, %s" % (d, vr(wbuf(g, j), 4), ar(8 * k + 4 * b, 4), "0" if k == 0 else d)))
        if t < 2 and not cfg.x_nostat:
            early = cfg.st_early and c == 7 and T == 2
            if p == 0:
                for kk in ([k] if not early else [k, k + 1] if t == 0 else []): row_stats(kk)
            if cfg.st_early and c == 7 and T == 1 and p == 1:
                if t == 0: col_stats(g); col_stats(g + 1)
            elif not (early and t == 1): col_stats(g)
    step_beat[96] = len(S.beats)
    sl_beat = {}
    for n in range(36):
        sl_beat[n] = len(S.beats)
        w = WF + 8 * (n & 1); a = 8 * (n % 32)
        for cb in range(2):
            for tb in range(2):
                d = vr(ACC2[2 * cb + tb], 16)
                S.beat(I("v_mfma_f32_32x32x16_bf16 %s, %s, %s, %s" % (d, vr(w + 4 * cb, 4), ar(a + 4 * tb, 4), "0" if n == 0 else d)), cfg.p2period)
    sl_beat[36] = len(S.beats)
    S.beat(None)

    bar_step = {}
    for cc in range(24):
        T = passes[cc // 8][1]
        bar_step[cc] = 4 * cc + (3 if (T == 2 or cc == 23) else 2)
    last_rd = {}
    def w_reads(g, j):
        p, c, t = g // 32, (g // 4) % 8, g % 4
        kind = passes[p][0]; sl = slot_of[("w", p, c)]
        if p == 0: base, off = WR1 + (t >> 1), (sl - 8) * PITCH
        else: base, off = WRs[p] + 2 * (sl >= 8) + (t >> 1), (sl % 8) * PITCH
        if kind == "att2": off += j * PITCH
        if kind == "pair": off += 32 * j
        st, js = (1024, 256) if kind == "half" else (2048, 512)
        off += (t & 1) * st
        w = wbuf(g, j)
        role = {"att2": "Watt", "q": "Watt", "pair": "Wpair", "half": "Whalf"}[kind]
        return needs([I("ds_read_b64_tr_b16 %s, v%d offset:%d" % (vr(w + 2 * e, 2), base, off + e * js)) for e in range(2)], **{role: base})
    def x_reads(g):
        c, t = g // 4, g % 4
        return needs([I("ds_read_b128 %s, v%d offset:%d" % (ar(8 * g + 4 * b, 4), XR + t, slot_of[("x", c)] * PITCH + 4096 * b)) for b in range(2)], XR=XR + t)
    def w2_reads(n):
        sl = slot_of[("s", n)]; w = WF + 8 * (n & 1)
        return needs([I("ds_read_b64_tr_b16 %s, v%d offset:%d" % (vr(w + 4 * cb + 2 * e, 2), (W2R + 2 * (sl >= 8) if sl < 16 else WR3) + cb, (sl % 8) * PITCH + 1024 * e)) for cb in range(2) for e in range(2)], W2R=range(W2R, W2R + 4), W2X=(WR3, WR3 + 1))

    queue = []
    for c in range(cfg.npro, 8): queue += [("x", c), ("w", 0, c)]
    queue += [("w", 1, c) for c in range(8)]
    if o2: queue += [("w", 2, c) for c in range(8)] + [("s", n) for n in range(36)]
    elif cfg.mix:
        for c in range(8): queue += [("w", 2, c), ("s", c)]
        queue += [("s", n) for n in range(8, 36)]
    else: queue += [("w", 2, c) for c in range(8)] + [("s", n) for n in range(36)]
    free = set()
    for c in range(cfg.npro, 4): free |= {2 * c, 2 * c + 1, 8 + 2 * c, 9 + 2 * c}
    issue_after = {}; held = []; xfree = set()
    n_ins = lambda it: 4 if item_slots(it) == 2 else 2
    for cc in range(-1, 24):
        p, c = max(cc, 0) // 8, cc % 8
        T = passes[p][1] if cc >= 0 else 0
        rel = []
        budget = (cfg.pacew if A or cfg.pacewB is None else cfg.pacewB).get(cc, cfg.pace[p] if cc >= 0 else cfg.pace0)
        if T == 2 or cc == 23:
            rel.append(cc)
            if cc > 0 and passes[(cc - 1) // 8][1] == 1: rel.append(cc - 1)
        elif cc > 0 and passes[(cc - 1) // 8][1] == 1: rel.append(cc - 1)
        held += rel; rel = []
        if cc not in cfg.skipbar: rel, held = held, []
        for r in rel:
            it = ("w", r // 8, r % 8)
            free |= set(range(slot_of[it], slot_of[it] + item_slots(it)))
            if r < 8: free |= {slot_of[("x", r)], slot_of[("x", r)] + 1}
        got = []
        if cfg.xslots and cc == (cfg.a_cb + 1 if A else 8): xfree |= {16, 17, 18}
        while xfree and budget >= 2 + 4 * (cc < 16):
            it = [q_ for q_ in queue if q_[0] == "s"][0]
            k_ = queue.index(it)
            if k_ > 1: break
            slot_of[it] = min(xfree); xfree.discard(slot_of[it]); budget -= 2; got.append(queue.pop(k_))
        while queue:
            it = queue[0]; ns = item_slots(it)
            if it in slot_of: cand = [slot_of[it]] if all(slot_of[it] + i in free for i in range(ns)) else []
            elif ns == 2: cand = [s for s in sorted(free) if s % 2 == 0 and s + 1 in free]
            else: cand = sorted(free)
            if not cand or budget < n_ins(it): break
            budget -= n_ins(it)
            slot_of[it] = cand[0]
            for i in range(ns): free.discard(cand[0] + i)
            got.append(queue.pop(0))
        issue_after[cc] = (rel, got)
    p2_issue = {}
    for n in range(36):
        free.add(slot_of[("s", n)])
        for k in range(cfg.p2pace):
            if queue and free and n >= (cfg.w2at if A or not cfg.w2atB else cfg.w2atB)(queue[0][1]):
                it = queue.pop(0); slot_of[it] = min(free); free.discard(slot_of[it]); p2_issue.setdefault(n, []).append(it)
    print(typ, "prefetched slices before P2:", 36 - sum(len(x) for x in p2_issue.values()))

    where = {}
    for g in range(1, 96):
        T = nt(g); k = g % 32
        for j in range(T):
            if T == 2: at = g - 1 if not (k == 0 and nt(g - 1) == 1 and j == 0) else g - 2
            else: at = g - 2 if not (k < 2 and nt(g - k - 1) == 2) else g - k - 1
            where.setdefault(at, []).append(("w", g, j))
        if g < 32: where.setdefault(g - 1 if not cfg.x_early else g - (1, 1, 2, 2)[g % 4], []).append(("x", g))
    for at, lst in sorted(where.items()):
        ins = []
        for it in lst:
            r = w_reads(it[1], it[2]) if it[0] == "w" else x_reads(it[1])
            if it[1] % 4 == 3:
                r[-1].tag = "rd%d_%s%d" % (it[1] // 4, it[0], it[2] if it[0] == "w" else 0)
                last_rd[it[1] // 4] = r[-1].tag
            ins += r
        b0 = step_beat[at]; nb = 2 * nt(at)
        late_x = []
        if cfg.x_early and at < 32 and at % 4 < 2:
            k0 = 6 if at % 4 == 0 else 4
            ins, late_x = ins[:k0], ins[k0:]
            for x in late_x: x.tag = None
            for i, x in enumerate(late_x): S.put(b0 + 2 + i, x)
        if cfg.rd_early and len(ins) == 6: ins = [ins[0], ins[1], ins[4], ins[5], ins[2], ins[3]]
        if cfg.rd_early:
            tg = [x.tag for x in ins if x.tag]
            if tg:
                for x in ins: x.tag = None
                ins[-1].tag = last_rd[lst[0][1] // 4]
        if cfg.one_wait and nt(at) == 2 and at + 1 in step_beat and lst[0][1] == at + 1:
            if not ins[-1].tag: ins[-1].tag = "stp%d" % at
            S.put(step_beat[at + 1], Wait(ins[-1].tag), pre=True)
        nbb = 2 if cfg.rd_early else nb
        for i, x in enumerate(ins): S.put(b0 + min(nbb - 1, i * nbb // len(ins)), x)

    extra_pre = {}
    def place_barriers():
        for cc in range(24):
            b = step_beat[bar_step[cc]]
            if cc in cfg.skipbar:
                assert cc not in extra_pre and cc not in extra_wait
                continue
            pre = []
            for r in issue_after[cc][0]: pre.append(Wait(last_rd[r]))
            if cc in extra_pre: pre.append(Wait("lgkm0"))
            if cc in extra_wait: pre.append(Wait(extra_wait[cc]))
            if cc < 23:
                nx = cc + 1
                while nx in cfg.skipbar: nx += 1
                if nx < 8: pre.append(Wait("x%d" % nx))
                pre.append(Wait("w%d_%d" % (nx // 8, nx % 8)))
            pre.append(I("s_barrier"))
            S.beats[b]["pre"] = pre + S.beats[b]["pre"]
    bb = lambda cc: step_beat[bar_step[cc]]
    for cc in range(-1, 24):
        items = []
        for it in issue_after[cc][1]: items += item_dma(it)
        if items: S.spread(items, (bb(cc) + cfg.wdelay.get(cc, 0)) if cc >= 0 else cfg.w1_from, bb(cc + 1) if cc < 23 else sl_beat[0] + 2)

    r0 = w2_reads(0)
    S.put(step_beat[95], [Wait("w2_0")] );
    for i, x in enumerate(r0): S.put(step_beat[95] + min(i // 2, 2 * nt(95) - 1), x)
    for n in range(36):
        b = sl_beat[n]
        if n + 1 < 36:
            S.put(b, Wait("w2_%d" % (n + 1)))
            for i, x in enumerate(w2_reads(n + 1)): S.put(b + i, x)
        for k, it in enumerate(p2_issue.get(n, [])): S.put(b + 2 + k, dma_w2(it[1], slot_of[it])[0])

    sp = lambda g: step_beat[g]
    sl0 = sl_beat[0]
    def after(b, cyc):
        while cyc > 0: cyc -= max(S.beats[b]["period"], S.load(b)); b += 1
        return b
    def end_of(it):
        cc = [c for c in issue_after if it in issue_after[c][1]][0]
        return bb(cc + 1)
    def start_of(it):
        cc = [c for c in issue_after if it in issue_after[c][1]][0]
        return bb(cc)
    assert start_of(("w", 1, 0)) >= sp(cfg.setup_end) and end_of(("x", 7)) < sp(28)
    for cc in range(24):
        if cc not in cfg.skipbar:
            for k in range(cfg.quiet): S.beats[bb(cc) + k]["quiet"] = True
    setup = late_setup(A)
    pro_setup = []
    if cfg.pro_setup:
        setup = flat(setup)
        mem = [x for x in setup if x.kind == "vm"]
        pro_setup = [x for x in setup if x.kind != "vm"]
        S.spread(mem, sp(cfg.clr_at), sp(cfg.clr_at + 5))
    else: S.spread(setup, sp(1), sp(cfg.setup_end), "setup")
    if cfg.wpf: S.put(sp(cfg.wpf), w_touch(cfg.wpf1, 110))
    if not A and cfg.bt2: S.put(sp(cfg.bt2), b_touch2(120, 2, 4))
    if not A and cfg.bt3: S.put(sp(cfg.bt3), b_touch2(122, 6, 1) + b_touch3(124))
    for k, (st, kind) in enumerate(cfg.trickle): S.put(sp(st) + 2, trickle(kind, 104 + 3 * k))
    if cfg.late_g: S.put(sp(cfg.late_g), w_touch([(SG, 14), (SU, 14), (SQ, 12)], 102))
    if cfg.late_d: S.put(sp(cfg.late_d), w_touch([(SD, 14), (SO, 4)], 120) + (p3_touch(124) if cfg.late_u else []))
    if cfg.p3t: S.put(sp(cfg.p3t), p3_touch(116))
    if cfg.wpfd: S.put(sp(cfg.wpfd), w_touch([(SD, 14), (SO, 4)], XR + 1))
    extra_wait = {4: "clr"}
    S.put(bb(4), needs(L("v_mov_b32 v%d, 1\nbuffer_atomic_add v%d, v%d, %s, 0 offen" % (KVD + 1, KVD + 1, KVD, srd(SDBG))), HSA=KVD))
    S.put(sp(21), wphi_finish())
    STASH = 120 - 16
    stash_pro = []
    def stash(ins, regs, at):
        ins = flat(ins); k0 = stash.n
        for k, r in enumerate(regs):
            for x in ins:
                role = getattr(x, "role", {}).get("v%d" % r)
                if "v%d" % r in x.rd + x.wr:
                    y = I(re.sub(r"\bv%d\b" % r, "v%d" % (STASH + k0 + k), x.text)); x.text, x.rd, x.wr = y.text, y.rd, y.wr
                if role:
                    del x.role["v%d" % r]
                    mv = I("v_mov_b32 v%d, v%d" % (r, STASH + k0 + k)); mv.role = {"v%d" % r: role}; S.put(at + k // 2, mv)
        stash.n += len(regs); assert stash.n <= 16
        stash_pro.extend(ins)
    stash.n = 0
    if cfg.stash:
        stash(addr_wfull(WR2, 4, False, False), range(WR2, WR2 + 4), max(end_of(("x", 7)), sp(26)))
        stash(addr_whalf(WR3) if A else addr_wfull(WR3, 4, True, False), range(WR3, WR3 + 4), sp(31))
        if A: stash(addr_cs(False), [vCSA], sp(31) + 3)
        if A: stash(addr_p2()[-2:], [vHLD, vPOL], sp(26))
        else: stash_pro.extend(flat(addr_p2()[-2:]))
    else: S.spread((addr_whalf(WR2, TMP + 8) if A else addr_wfull(WR2, 4, True, False, TMP + 8)) if o2 else addr_wfull(WR2, 4, False, False, TMP + 8), max(end_of(("x", 7)), sp(22)), sp(30))
    S.spread(r2_table(), max(end_of(("x", 7)), sp(22)), sp(30))
    pre, adds = t_stat_add()
    S.spread(pre, sp(26), sp(28))
    cs_pub = lambda tile0: [Gap(1)] + t_cs_add(tile0, 'CSs' if A and tile0 == 0 else 'CS')
    S.spread(adds + cs_pub(0)[1:], sp(29) + 2, sp(30) + 1) if cfg.st_early else S.spread(cs_pub(0) + adds, sp(30), sp(31)); extra_pre[7] = 1
    fin, late = t_stat_fin()
    S.spread(t_cs_tot(0, TMP + 2), sp(31), sp(32))
    S.spread(fin, sp(31), sp(32))
    hs_i, hs_c = poll(XR, XR + 1, "8" if cfg.dbgout else "4", SDBG, "gt")
    if cfg.dbgout: S.put(sp(36), L("v_and_b32 v%d, 31, v%d\nv_lshlrev_b32 v%d, 2, v%d\nv_add_u32 v%d, 64, v%d" % (XR, vL, XR, XR, XR, XR)) + [hs_i])
    else: S.put(sp(cfg.hs[0]), defines([I("v_lshlrev_b32 v%d, 2, v%d" % (XR, vL)), hs_i], HSa=XR, HSr=XR + 1)); needs(hs_c, HSa=XR, HSr=XR + 1)
    hs_c.gives = "hs" + typ
    S.put(sp(cfg.hs[1]), stamp("hs0") + [hs_c] + stamp("hs1"))
    if cfg.stash and cfg.w2pf and not cfg.w2B:
        stash_pro.extend(defines(L("""
        s_and_b32 s{t0}, s{tt}, 3
        s_lshl_b32 s{t0}, s{t0}, 14
        s_lshl_b32 s{t1}, s{ct}, 7
        s_add_u32 s{t0}, s{t0}, s{t1}
        v_and_b32 v{x}, 15, v{L}
        v_lshl_add_u32 v{x}, v{x}, 10, s{t0}
        s_mul_i32 s{b}, s{wv}, {w}
        """.format(t0=sT0, t1=sT1, tt=sTT, ct=sCT, x=180, L=vL, b=sPB, wv=sWV, w=448 * 1024)), TCH0=180))
        mv = I("v_mov_b32 v%d, v180" % (XR + 3)); mv.role = {"v%d" % (XR + 3): "TCH"}; S.put(sp(30) + 3, needs(mv, TCH0=180))
    TA, TW = XR + 2, (56 if cfg.w2row else 52)
    if cfg.w2row: S.put(sp(30) + 2, w2_row_addr(XR + 3, None))
    for k, (st, n0, ns) in enumerate(cfg.w2pf):
        if cfg.w2row:
            S.put(sp(st) + 2, w2_row_touch(XR + 3, (WR1 + 2, WR1 + 3)[k & 1] if st < 50 else (WGD, WGD + 1)[k & 1], n0)); continue
        if cfg.w2B and A: continue
        assert o2 or sp(st) >= end_of(("w", 1, 7))
        if o2:
            S.put(sp(st) + 1, w2_touch(XR + 2 + (k & 1), n0, ns, cfg.w2B)); continue
        if cfg.stash and not cfg.w2B:
            sr, base, row = slice_src(n0); assert ns == 4
            S.put(sp(st) + 2, needs(L("s_add_u32 s%d, s%d, %d\nbuffer_load_dword v%d, v%d, %s, s%d offen" % (sT0, sPB if sr == SD else sWOB, row * 1024, WGD + (k & 1), XR + 3, srd(sr), sT0)), TCH=XR + 3))
            continue
        if cfg.w2B and A: continue
        S.put(sp(st) + 2, w2_touch(WGD + (k & 1), n0, ns, cfg.w2B))
    if o2:
        S.spread(addr_wfull(WR3, 4, False, False, XR) + (addr_cs(False, XR) if A else []), sp(46), sp(56))
        S.spread(addr_p2(XR)[-2:], sp(56), sp(59))
        S.spread(cs_pub(2), sp(61), sp(62)); extra_pre[15] = 1
        S.spread(t_cs_tot(2, XR), sp(62), sp(64))
        S.spread(cs_pub(4), sp(94) - 3 * cfg.st_early, sp(95) - 3 * cfg.st_early); extra_pre[23] = 1
        S.spread(t_cs_tot(4, WR2 + 1), sp(95), sl0)
        S.spread(addr_p2(WR2 + 1)[:-2], sp(72), sp(88))
        so3 = "s_mov_b32 s%d, %d" % (sT1, (16 if cfg.o212 == 'B' else 20 if A else 12) * 2048)
        r3 = [[accr(2, j, b) for b in range(2)] for j in range(2)]
        if A:
            att = t_corr(SET0, 2, 0) + late + t_att_k()
            busy = {"v%d" % r for r in list(range(16)) + list(range(48, 64))}
            k1 = 1 + max(k for k, it in enumerate(att) if not isinstance(it, Gap) and any(busy & set(x.rd + x.wr) for x in flat([it])))
            S.spread(att[:k1], sp(32), sp(64) + 1, "att_k 1")
            so = "s_mov_b32 s%d, s%d" % (sT1, sH2)
            eh = S.spread(t_corr(SET1, 1, 2) + [Gap(2)] + t_hepi(SET1, so, 0, "h1"), sp(64 + cfg.a_hh), sp(64 + cfg.a_hh + 4), "hepi half")
            S.put(after(eh, cfg.fd), set_flag(1, "h1", WR2 + 3))
            e = S.spread(att[k1:], sp(64) + 1, sp(64 + cfg.a_att2), "att_k 2")
            cb = min(cc for cc in range(8, 24) if bb(cc) > e and cc not in cfg.skipbar); extra_pre[cb] = 1
            print("  kv exchange barrier chunk", cb)
            e = S.spread(t_kv_pub(), bb(cb), min(bb(cb) + cfg.a_pub, sl0), "kv_pub")
            S.put(e, stamp("kvi"))
            e = S.spread(t_corr(0, 2, 4, regs=r3) + t_hepi(96, so3, 0, None) + t_hepi(0, so3, 2048, "h2", 48), sl0, sl0 + cfg.h3, "hepi pair")
            S.put(after(e, cfg.fd), set_flag(2, "h2", vPW))
            last_task = e
        else:
            so = "s_mov_b32 s%d, 0" % sT1
            e = S.spread(t_corr(SET0, 2, 0) + late + t_hepi(SET0, so, 0, None) + t_hepi(SET0 + 32, so, 2048, "h0"), sp(32), sp(32 + cfg.b_h0), "hepi0")
            assert e < sp(64)
            S.put(after(e, cfg.fd), set_flag(1, "h0", WHD))
            S.spread(t_corr(SET1, 1, 2) + [Gap(2)] + t_att_q(SET1, 96), sp(64), sp(64 + cfg.b_att), "att_q")
            e = S.spread(t_corr(SET0, 2, 4) + t_hepi(SET0, so3, 0, None) + t_hepi(SET0 + 32, so3, 2048, "h1"), sl0, sl0 + cfg.h3, "hepi pair")
            S.put(after(e, cfg.fd), set_flag(2, "h1", WHD))
            ri, rc = t_kv_red(112 if cfg.b_rc < 0 else 0)
            li, lc = t_kv_load()
            assert cfg.b_rc < 0 or sl0 + cfg.b_ri > e
            S.spread(ri, sl0 + cfg.b_ri, sl0 + cfg.b_ri + 2)
            S.put(sl0 + cfg.b_rc, stamp("kr0") + rc + stamp("kr1"))
            assert sl0 + cfg.b_li > e
            S.spread(li, sl0 + cfg.b_li, sl0 + cfg.b_li + 4)
            S.put(sl0 + cfg.b_lc, stamp("kp0") + lc + stamp("kp1"))
            e = S.spread(t_o(SET1, 0), sl0 + cfg.b_lc, sl0 + cfg.b_lc + cfg.b_o, "o")
            S.put(after(e, cfg.fd), set_flag(3, "ost", WHD))
            last_task = e
    else:
        S.spread(cs_pub(2), sp(62) - 3 * cfg.st_early, sp(63) - 3 * cfg.st_early); extra_pre[15] = 1
        S.spread(t_cs_tot(2, XR + 2), sp(63), sp(64))
        S.spread(cs_pub(4), sp(94), sp(95)); extra_pre[23] = 1
        S.spread(t_cs_tot(4, WR2 + 1), sp(95), sl0)
        x = addr_p2(WR2 + 1)
        if not cfg.stash: S.spread(addr_p2(XR + 2)[-2:], sp(62), sp(63))
        S.spread(x[:-2], sp(76), sp(90))
        so2 = "s_mov_b32 s%d, %d" % (sT1, (8 if cfg.o212 == 'B' else 16 if A else 8) * 2048)
        if A:
            if not cfg.stash: S.spread(addr_whalf(WR3, TA) + addr_cs(False, TA), sp(TW), sp(TW + (8 if TW == 52 else 4)))
            att = t_corr(SET0, 2, 0) + late + t_att_k()
            h1 = t_hepi(SET1, so2, 0, None) + t_hepi(SET1 + 32, so2, 2048, "h1")
            if cfg.h1first:
                eh = S.spread(t_corr(SET1, 2, 2) + h1, sp(64), sp(64 + cfg.h1first), "hepi1")
                S.put(after(eh, cfg.fd), set_flag(1, "h1", WR2 + 3))
            else: S.spread(t_corr(SET1, 2, 2), sp(64), sp(68))
            e = S.spread(att, sp(32), sp(32 + cfg.a_att), "att_k")
            busy = {"v%d" % r for r in list(range(16)) + list(range(48, 64))}
            later = [x for b in range(sp(64), e + 1) for x in flat(S.beats[b]["post"])]
            assert not any(x in later and busy & set(x.rd + x.wr) for x in flat(att) if isinstance(x, I)), "pass-3 accumulators still in use"
            cb = min(cc for cc in range(8, 24) if bb(cc) > e and cc not in cfg.skipbar); extra_pre[cb] = 1
            print("  kv exchange barrier chunk", cb)
            e = S.spread(t_kv_pub(), bb(cb), min(bb(cb) + cfg.a_pub, sl0), "kv_pub")
            S.put(e, stamp("kvi"))
            if not cfg.h1first:
                b0 = e + 1
                e = S.spread(h1, b0, min(b0 + cfg.a_h1, sl0 + 4), "hepi1")
                S.put(after(e, cfg.fd), set_flag(1, "h1", vPW))
            so = "s_mov_b32 s%d, s%d" % (sT1, sH2)
            S.spread(t_corr(SET0, 1, 4, 48), sl0, sl0 + 1)
            b0 = max(e, sl0 + 2)
            e = S.spread(t_hepi(SET0, so, 0, "h2", 48), b0, b0 + cfg.a_h2, "hepi2")
            S.put(after(e, cfg.fd), set_flag(2, "h2", vPW))
            last_task = e
        else:
            so = "s_mov_b32 s%d, 0" % sT1
            e = S.spread(t_corr(SET0, 2, 0) + late + t_hepi(SET0, so, 0, None) + t_hepi(SET0 + 32, so, 2048, "h0"), sp(32), sp(32 + cfg.b_h0), "hepi0")
            S.put(after(e, cfg.fd), set_flag(1, "h0", WHD))
            if not cfg.stash: S.spread(addr_wfull(WR3, 4, True, False, TA), sp(TW), sp(TW + (8 if TW == 52 else 4)))
            e = S.spread(t_corr(SET1, 2, 2) + t_hepi(SET1, so2, 0, None) + t_hepi(SET1 + 32, so2, 2048, "h1"), sp(64), sp(64 + cfg.h1), "hepi1")
            S.put(after(e, cfg.fd), set_flag(2, "h1", WHD))
            att = t_corr(SET0, 1, 4) + [Gap(1)] + t_att_q()
            ri, rc = t_kv_red()
            li, lc = t_kv_load()
            e = S.spread(att, sl0, sl0 + cfg.b_att, "att_q")
            S.spread(ri, sl0 + cfg.b_ri, sl0 + cfg.b_ri + 2)
            S.put(sl0 + cfg.b_rc, stamp("kr0") + rc + stamp("kr1"))
            S.spread(li, sl0 + cfg.b_li, sl0 + cfg.b_li + 4)
            assert e <= sl0 + cfg.b_lc
            S.put(sl0 + cfg.b_lc, stamp("kp0") + lc + stamp("kp1"))
            e = S.spread(t_o(), sl0 + cfg.b_lc, sl0 + cfg.b_lc + cfg.b_o, "o")
            S.put(after(e, cfg.fd), set_flag(3, "ost", WHD))
            last_task = e
    assert not xfree
    if cfg.xslots:
        assert not A or cb == cfg.a_cb
        S.put(sp(94) + 1, defines(needs(L("v_add_u32 v%d, %d, v%d\nv_add_u32 v%d, %d, v%d" % (WR3, 16 * PITCH, W2R, WR3 + 1, 16 * PITCH, W2R + 1)), W2R=(W2R, W2R + 1)), W2X=(WR3, WR3 + 1)))
    place_barriers()
    if cfg.walk and len(cfg.walk) > 1: S.beats[bb(cfg.walk_at)]["pre"].insert(0, walk_call(typ, 1))
    def padder(T):
        return Raw(["v_readlane_b32 s100, v%d, 0" % vSTAMP, "L_padx%s:" % typ, "s_memrealtime s[98:99]", "s_waitcnt lgkmcnt(0)", "s_sub_u32 s98, s98, s100",
                    "s_cmp_lt_u32 s98, %d" % T, "s_cbranch_scc1 L_padx%s" % typ], wr=["scc"])
    if cfg.pad_at and cfg.pad_at[0] >= 0: S.beats[sp(cfg.pad_at[0])]["pre"].insert(0, padder(cfg.pad_at[1]))
    first = FIRST
    hl = cfg.hlA if A else cfg.hlB
    for c in range(5):
        iss, chk = class_poll(c, WR2, WHD if A else WQD) if o2 else class_poll(c, (WGD, WR2)[c & 1], WGD + 1)
        pos = [sp(64 + cfg.p0) + i * cfg.hstep0 if c == 0 else sp(64 + cfg.p1) + i * cfg.hstep1 if (c == 1 and cfg.o212 is True) else sl0 + hl[first[c] + i] for i in range(first[c + 1] - first[c])]
        S.put(pos[0] - cfg.poll_lead[c], iss)
        S.put(pos[0], stamp("cp%d_0" % c) + chk + stamp("cp%d_1" % c))
        for i, b in enumerate(pos):
            n = first[c] + i
            if b < sl0: assert b >= sp(64 + n + 1)
            assert b < sl_beat[n], (c, n)
            S.put(b, h_load(n))
    RES = TMP
    rb_ = max(last_task + 2, sl_beat[24])
    S.put(rb_, L("""
    s_lshl_b32 s{t0}, s{tt}, 2
    s_add_u32 s{t0}, s{t0}, s{wv}
    s_lshl_b32 s{t0}, s{t0}, 14
    s_lshl_b32 s{t1}, s{ct}, 7
    s_add_u32 s{t0}, s{t0}, s{t1}
    v_lshrrev_b32 v{a}, 3, v{L}
    v_lshlrev_b32 v{a}, 10, v{a}
    v_and_b32 v{b}, 7, v{L}
    v_lshl_add_u32 v{a}, v{b}, 4, v{a}
    v_add_u32 v{o}, s{t0}, v{a}
    """.format(t0=sT0, t1=sT1, tt=sTT, wv=sWV, ct=sCT, a=TMP + 8, b=TMP + 9, o=WQD - 1, L=vL)))
    vOUT = WQD - 1; vOUT_ = 6
    S.put(rb_ + 15, I("v_mov_b32 v6, v%d" % vOUT))
    S.put(rb_ + 1, L("s_mov_b32 s%d, 8192\nbuffer_load_dwordx4 %s, v%d, %s, 0 offen\nbuffer_load_dwordx4 %s, v%d, %s, s%d offen" % (sT1, vr(RES, 4), vOUT, srd(SX), vr(RES + 4, 4), vOUT, srd(SX), sT1)))
    S.spread(L("""
    v_bfe_u32 v8, v{L}, 3, 2
    v_mul_u32_u24 v8, {P}, v8
    v_and_b32 v9, 7, v{L}
    v_lshl_add_u32 v8, v9, 8, v8
    v_add_u32 v8, s{l2k}, v8
    v_lshrrev_b32 v10, 5, v{L}
    v_xor_b32 v10, v10, v9
    v_lshl_add_u32 v0, v10, 4, v8
    v_xor_b32 v11, 2, v10
    v_lshl_add_u32 v1, v11, 4, v8
    v_xor_b32 v11, 4, v10
    v_lshl_add_u32 v2, v11, 4, v8
    v_xor_b32 v11, 6, v10
    v_lshl_add_u32 v3, v11, 4, v8
    v_lshrrev_b32 v8, 3, v{L}
    v_and_b32 v10, 3, v{L}
    v_lshlrev_b32 v10, 1, v10
    v_xor_b32 v10, v10, v8
    v_bfe_u32 v11, v{L}, 2, 1
    v_lshlrev_b32 v11, 7, v11
    v_lshl_add_u32 v11, v8, 8, v11
    v_mov_b32 v9, s{wv}
    v_mul_u32_u24 v9, {P2}, v9
    v_add_u32 v11, v11, v9
    v_lshl_add_u32 v4, v10, 4, v11
    v_xor_b32 v10, 1, v10
    v_lshl_add_u32 v5, v10, 4, v11
    """.format(L=vL, P=PITCH, P2=2 * PITCH, l2k=sL2K, wv=sWV)), rb_ + 2, rb_ + 14)
    if cfg.stamps == 2:
        pts = [("b%d" % cc, bb(cc)) for cc in range(24)] + [("s%d" % n, sl_beat[n]) for n in range(0, 37) if n not in (34, 35)]
        prev = ("iss", 0)
        for k, (nm, b) in enumerate(pts):
            for x in (prev[0], nm):
                if x not in stamp_names: stamp_names.append(x)
            cur = sST + 2 * ((k + 1) & 1); old = sST + 2 * (k & 1)
            rd = I("v_writelane_b32 v%d, s%d, %d" % (vSTAMP, old, stamp_names.index(prev[0]) + 2))
            mt = I("s_memtime s[%d:%d]" % (cur, cur + 1))
            if nm[0] == "b" and int(nm[1:]) not in cfg.skipbar:
                pre = S.beats[b]["pre"]; pre.insert(len(pre) - 1, rd); pre.append(mt)
            else: S.beats[b]["pre"] = [rd, mt] + S.beats[b]["pre"]
            prev = (nm, b)
        last_stamp = I("v_writelane_b32 v%d, s%d, %d" % (vSTAMP, cur, stamp_names.index(prev[0]) + 2))
    if cfg.stamps == 3:
        lane = 2
        fine = []
        for cc in range(cfg.fine0, cfg.fine0 + 8):
            b0_, b1_ = bb(cc), bb(cc + 1)
            pts = [b0_ + (b1_ - b0_) * k // 7 for k in range(7)]
            rd = []
            for k, b in enumerate(pts):
                pr = ((40, 42, 86, 88, 90, 98, 100) if cfg.fine0 >= 8 else (40, 42, 32, 24, 20, 98, 100))[k]
                mt = I("s_memtime s[%d:%d]" % (pr, pr + 1))
                S.beats[b]["pre"].append(mt)
                rd.append(I("v_writelane_b32 v%d, s%d, %d" % (vSTAMP, pr, lane))); lane += 1
                fine.append(mt)
            pre = S.beats[b1_]["pre"]
            k = [i for i, x in enumerate(pre) if getattr(x, "kind", "") == "barrier"][0]
            S.beats[b1_]["pre"] = pre[:k] + rd + pre[k:]
        if "f0" not in stamp_names: stamp_names.extend("f%d" % k for k in range(56))
    if cfg.stamps == True:
        for nm, b in (("p1", sp(32)), ("p2", sp(64)), ("p3", sl_beat[0]), ("s8", sl_beat[8]), ("s16", sl_beat[16]), ("s20", sl_beat[20]), ("s28", sl_beat[28]), ("s36", sl_beat[36]),
                      ("c1", sp(4)), ("c2", sp(8)), ("c4", sp(16))):
            S.put(b, stamp(nm), pre=True)

    pro = entry_x(item_dma)
    n_common = len(pro)
    if A:
        pro += L("s_lshl_b32 s{t0}, s{i}, 7\ns_add_u32 s{t0}, s{t0}, 1024".format(t0=sT0, i=sI))
        pro += wdma_addr(WQD, 3072, sT0)
    else:
        pro += L("s_mul_i32 s{t0}, s{q}, 896\ns_lshl_b32 s{t1}, s{ab}, 7\ns_add_u32 s{t0}, s{t0}, s{t1}".format(t0=sT0, t1=sT1, q=sQ, ab=sAB))
        pro += wdma_addr(WGD, 3584, sT0)
    pro += flat(item_dma(("w", 0, 0))) + stamp("iw0")
    pro += entry_rest()
    order = cfg.order if A or not cfg.orderB else cfg.orderB
    for k, w in enumerate(order):
        if w in "123": pro += flat(item_dma(("x", int(w)))) + flat(item_dma(("w", 0, int(w))))
        elif w == "p": pro += p1_touch(112)
        elif w == "g": pro += w_touch([(SG, 14), (SU, 14), (SQ, 12)], 102)
        elif w == "d": pro += w_touch([(SD, 14), (SO, 4)], 108)
        elif w == "r": pro += L("".join(rot_regs(c) for c in range(cfg.npro, 8)))
        elif w == "W": pro += [walk_call(typ, 0)]
        elif w == "L": pro += [l2_walk(typ)]
        elif w == "i": pro += b_index()
        elif w == "P": pro += b_touch1(104)
        elif w == "G": pro += b_touch2(120, 2, 4)
        elif w == "u": pro += p3_touch(116)
        elif w == "t": pro += tlb_touch(120)
        elif w == "f": pro += wphi_setup(A)
        elif w == "c": pro += code_touch()
        elif w == "C": pro += code_touch(typ)
        elif w == "s": pro += early_setup() + flat(addr_wfull(WR1, 2, A, A))
        elif w == "j": pro += [I("s_branch L_main%s" % typ), I("L_main%s:" % typ)]
    pro += pro_setup + stash_pro
    assert cfg.npro == 1 + sum(w in "123" for w in order)
    pro += stamp("iss")
    if cfg.stamps == 2: pro += [I("s_memtime s[%d:%d]" % (sST, sST + 1))]
    if cfg.pad_at and cfg.pad_at[0] == -1: pro += [padder(cfg.pad_at[1])]
    pro += [Wait("x0"), Wait("w0_0"), I("s_barrier")]
    pro += stamp("data")
    pro += x_reads(0) + w_reads(0, 0) + w_reads(0, 1)

    RF = (208 if o2 else 96) if A else 64
    unp = []
    for k in range(8): unp += L("v_lshlrev_b32 v%d, 16, v%d\nv_and_b32 v%d, 0xffff0000, v%d" % (RF + 2 * k, RES + k, RF + 2 * k + 1, RES + k))
    S.spread(unp, sl_beat[31], sl_beat[34])
    tail = []
    wr = lambda tb, cb: [I("ds_write_b128 v%d, %s offset:%d" % (r4, vr(ACC2[2 * cb + tb] + 4 * r4, 4), 128 * cb + 4 * PITCH * tb)) for r4 in range(4)]
    if cfg.qmajor:
        ms = [S.beats[b]["main"] for b in range(sl_beat[34], sl_beat[36])]
        for k, q in enumerate((0, 4, 2, 6, 1, 5, 3, 7)): S.beats[sl_beat[34] + k]["main"] = ms[q]
        for k in range(1, 4): S.beats[sl_beat[34]]["post"] += S.beats[sl_beat[34] + k]["post"]; S.beats[sl_beat[34] + k]["post"] = []
        S.beats[sl_beat[34]]["pre"] += S.beats[sl_beat[34]]["post"]; S.beats[sl_beat[34]]["post"] = []
        w = wr(0, 0) + wr(0, 1) + wr(1, 0)
        for k, b in enumerate((4, 4, 5, 5, 5, 6, 6, 7)): S.put(sl_beat[34] + b, w[k])
        tail += w[8:] + wr(1, 1)
    else: tail += wr(0, 0) + wr(0, 1) + wr(1, 0) + wr(1, 1)
    tail += [Wait("lgkm0"), I("s_barrier")]
    RD = 128
    for i in range(2):
        for e in range(2):
            for w in range(4):
                tail += L("ds_read_b128 %s, v%d offset:%d" % (vr(RD + 32 * i + 16 * e + 4 * w, 4), 4 + e, 2048 * w + PITCH * i))
    pk = lambda d, a, b: I("v_pk_add_f32 %s, %s, %s" % (vr(d, 2), vr(a, 2), vr(b, 2)))
    for i in range(2):
        for e in range(2):
            b = RD + 32 * i + 16 * e; r = RF + 8 * i + 4 * e
            tail += [pk(r, r, b), pk(r + 2, r + 2, b + 2), pk(b + 4, b + 4, b + 8), pk(b + 6, b + 6, b + 10), pk(r, r, b + 12), pk(r + 2, r + 2, b + 14),
                     pk(r, r, b + 4), pk(r + 2, r + 2, b + 6)]
            tail += L("v_cvt_pk_bf16_f32 v%d, v%d, v%d\nv_cvt_pk_bf16_f32 v%d, v%d, v%d" % (8 + 4 * i + 2 * e, r, r + 1, 9 + 4 * i + 2 * e, r + 2, r + 3))
        tail += L("s_mov_b32 s%d, %d\nbuffer_store_dwordx4 %s, v%d, %s, s%d offen" % (sT1, 8192 * i, vr(8 + 4 * i, 4), vOUT_, srd(SOUT), sT1) + cfg.outfl)
    if cfg.stamps:
        tail += stamp("end")
        if cfg.stamps == 4: tail += L("s_getpc_b64 s[56:57]\nv_writelane_b32 v%d, s56, 3\nv_writelane_b32 v%d, s57, 4" % (vSTAMP, vSTAMP))
        if cfg.stamps == 4: tail += [I("s_memtime s[%d:%d]" % (sST, sST + 1)), I("v_writelane_b32 v%d, s%d, 2" % (vSTAMP, sST))]
        if cfg.stamps == 2:
            if "end" not in stamp_names: stamp_names.append("end")
            tail += [last_stamp, I("s_memtime s[%d:%d]" % (sST, sST + 1)), I("v_writelane_b32 v%d, s%d, %d" % (vSTAMP, sST, stamp_names.index("end") + 2))]
        tail += L("""
        s_memrealtime s[{a}:{b}]
        v_writelane_b32 v{st}, s{a}, 1
        s_lshl_b32 s{t0}, s2, 2
        s_add_u32 s{t0}, s{t0}, s{wv}
        s_lshl_b32 s{t0}, s{t0}, 8
        s_add_u32 s{t0}, s{t0}, {o}
        v_lshl_add_u32 v0, v{L}, 2, s{t0}
        buffer_store_dword v{st}, v0, {sr}, 0 offen
        """.format(a=sST, b=sST + 1, st=vSTAMP, t0=sT0, wv=sWV, o=WS_ST, L=vL, sr=srd(SW)))
    if cfg.dbgout:
        ix = lambda n: stamp_names.index(n) + 2
        t = """
        v_readlane_b32 s56, v{st}, 0
        v_readlane_b32 s57, v{st}, 1
        v_readlane_b32 s58, v{st}, {iss}
        s_nop 4
        v_mov_b32 v2, {oob}
        v_mov_b32 v1, 0
        v_writelane_b32 v2, 32, 0
        v_writelane_b32 v2, 40, 1
        v_writelane_b32 v2, 36, 2
        v_writelane_b32 v1, s57, 0
        v_writelane_b32 v1, s56, 1
        s_not_b32 s59, s56
        v_writelane_b32 v1, s59, 2
        buffer_atomic_umax v1, v2, {sd}, 0 offen
        s_sub_u32 s57, s57, s56
        v_mov_b32 v3, 0
        v_writelane_b32 v3, s57, 0
        """.format(st=vSTAMP, iss=ix("iss"), oob=OOB, sd=srd(SDBG))
        for k, nm in enumerate(("b0", "b3", "b7", "b15", "s0", "s28", "end")):
            t += "v_readlane_b32 s59, v%d, %d\ns_nop 4\ns_sub_u32 s59, s59, s58\nv_writelane_b32 v3, s59, %d\n" % (vSTAMP, ix(nm), k + 1)
        t += """
        v_lshlrev_b32 v2, 2, v{L}
        v_mov_b32 v4, {oob}
        v_cmp_gt_u32 vcc, 8, v{L}
        v_cndmask_b32 v2, v4, v2, vcc
        s_or_b32 s59, s2, s{wv}
        s_cmp_eq_u32 s59, 0
        s_cselect_b32 s59, 0, {oob}
        buffer_store_dword v3, v2, {sd}, s59 offen
        """.format(L=vL, oob=OOB, wv=sWV, sd=srd(SDBG))
        tail += L(t)
    if cfg.padto:
        tail.append(Raw(["v_readlane_b32 s56, v%d, 0" % vSTAMP, "L_pad%s:" % typ, "s_memrealtime s[58:59]", "s_waitcnt lgkmcnt(0)", "s_sub_u32 s58, s58, s56",
                         "s_cmp_lt_u32 s58, %d" % cfg.padto, "s_cbranch_scc1 L_pad%s" % typ]))
    tail += L("s_endpgm")
    est = sum(max(bt["period"], S.load(i)) for i, bt in enumerate(S.beats[:sl_beat[0]]))
    print("  P1 issue-model cycles:", est, " P2:", sum(max(32, S.load(i)) for i in range(sl_beat[0], sl_beat[36])))
    return n_common, pro + S.flat() + tail

def code_touch(typ=None):
    ins = L("""
    s_getpc_b64 s[{a}:{b}]
    {far}
    s_bfe_u32 s{t0}, s2, 0x40003
    s_lshl_b32 s{t0}, s{t0}, 2
    s_add_u32 s{t0}, s{t0}, s{wv}
    s_lshl_b32 s{t0}, s{t0}, 9
    v_and_b32 v{x}, 3, v{L}
    v_lshl_add_u32 v{x}, v{x}, 7, s{t0}
    v_min_u32 v{x}, {lim}, v{x}
    v_mov_b32 v{y}, s{b}
    v_add_co_u32 v{x}, vcc, s{a}, v{x}
    v_addc_co_u32 v{y}, vcc, 0, v{y}, vcc
    global_load_dword v{z}, v[{x}:{y}], off
    """.format(a=sM1, b=sM1 + 1, t0=sT0, wv=sWV, x=76, y=77, z=78, L=vL, lim="L_end%s-L_main%s-4" % (typ, typ),
               far=("L_pc%s:\ns_add_u32 s%d, s%d, L_main%s-L_pc%s\ns_addc_u32 s%d, s%d, 0" % (typ, sM1, sM1, typ, typ, sM1 + 1, sM1 + 1)) if typ else ""))
    return ins

def w_touch(which, d0):
    s = "s_lshl_b32 s{t0}, s2, 2\ns_add_u32 s{t0}, s{t0}, s{wv}\n".format(t0=sT0, wv=sWV)
    last = None
    for k, (sr, n) in enumerate(which):
        if n != last:
            s += "s_mul_i32 s{t1}, s{t0}, {b}\nv_min_u32 v{a}, {m}, v{L}\nv_lshl_add_u32 v{a}, v{a}, 7, s{t1}\n".format(t0=sT0, t1=sT1, b=128 * n, a=d0, m=n - 1, L=vL)
            last = n
        s += "buffer_load_dword v%d, v%d, %s, 0 offen\n" % (d0 + 1 + k, d0, srd(sr))
    return L(s)

def tlb_touch(d0):
    s = "v_and_b32 v{a}, 15, v{L}\nv_lshlrev_b32 v{a}, 20, v{a}\nv_add_u32 v{a}, 0x7ff00, v{a}\n".format(a=d0, L=vL)
    for k, sr in enumerate((SD, SO, SW, SOUT, SG, SU, SQ)):
        s += "buffer_load_dword v%d, v%d, %s, 0 offen\n" % (d0 + 1 + k, d0, srd(sr))
    return L(s)

def trickle(kind, d):
    s = "s_lshl_b32 s{t0}, s2, 2\ns_add_u32 s{t0}, s{t0}, s{wv}\n".format(t0=sT0, wv=sWV)
    if kind in "GU":
        s += """
        s_lshr_b32 s{t1}, s{t0}, 1
        s_mul_i32 s{t1}, s{t1}, 3584
        s_and_b32 s{t0}, s{t0}, 1
        s_mul_i32 s{t0}, s{t0}, 1792
        s_add_u32 s{t0}, s{t0}, s{t1}
        s_add_u32 s{t0}, s{t0}, 256
        v_bfe_u32 v{a}, v{L}, 2, 1
        v_mul_u32_u24 v{a}, 7, v{a}
        v_and_b32 v{b}, 3, v{L}
        v_add_lshl_u32 v{a}, v{a}, v{b}, 7
        buffer_load_dword v{a}, v{a}, {sr}, s{t0} offen
        """.format(t0=sT0, t1=sT1, a=d, b=d + 1, L=vL, sr=srd(SG if kind == "G" else SU))
    elif kind in "ab":
        s += "s_mul_i32 s{t0}, s{t0}, 1792\ns_add_u32 s{t0}, s{t0}, {o}\nv_min_u32 v{a}, 6, v{L}\nv_lshlrev_b32 v{a}, 7, v{a}\nbuffer_load_dword v{a}, v{a}, {sr}, s{t0} offen\n".format(
            t0=sT0, o=896 * (kind == "b"), a=d, L=vL, sr=srd(SD))
    elif kind == "o":
        s += "s_lshl_b32 s{t0}, s{t0}, 9\nv_and_b32 v{a}, 3, v{L}\nv_lshlrev_b32 v{a}, 7, v{a}\nbuffer_load_dword v{a}, v{a}, {sr}, s{t0} offen\n".format(t0=sT0, a=d, L=vL, sr=srd(SO))
    else: return p3_touch(d)
    return L(s)

def p3_touch(d0):
    return L("""
    s_lshl_b32 s{t0}, s2, 2
    s_add_u32 s{t0}, s{t0}, s{wv}
    s_lshr_b32 s{t1}, s{t0}, 1
    s_and_b32 s{t0}, s{t0}, 1
    v_and_b32 v{b}, 3, v{L}
    v_lshl_add_u32 v{b}, s{t0}, 2, v{b}
    v_and_b32 v{c}, 1, v{L}
    v_lshl_add_u32 v{c}, s{t0}, 1, v{c}
    s_mul_i32 s{t0}, s{t1}, 3072
    v_lshl_add_u32 v{b}, v{b}, 7, s{t0}
    buffer_load_dword v{b}, v{b}, {q}, 0 offen
    s_mul_i32 s{t0}, s{t1}, 3584
    s_add_u32 s{t0}, s{t0}, {uo}
    v_mul_u32_u24 v{c}, 896, v{c}
    v_add_u32 v{c}, s{t0}, v{c}
    buffer_load_dword v{r2}, v{c}, {g}, 0 offen
    buffer_load_dword v{c}, v{c}, {u}, 0 offen
    """.format(t0=sT0, t1=sT1, wv=sWV, L=vL, b=d0, c=d0 + 1, r2=d0 + 2, q=srd(SQ), g=srd(SG), u=srd(SU), uo=256 if cfg.o212 is True else 768))

sWB = sH2
def b_index():
    return L("""
    s_and_b32 s{t0}, s2, 7
    s_lshl_b32 s{t0}, s{t0}, 4
    s_bfe_u32 s{t1}, s2, 0x40003
    s_add_u32 s{t0}, s{t0}, s{t1}
    s_lshl_b32 s{t0}, s{t0}, 2
    s_add_u32 s{w}, s{t0}, s{wv}
    """.format(t0=sT0, t1=sT1, w=sWB, wv=sWV))

def b_touch1(d0):
    a, b, c = d0, d0 + 1, d0 + 2
    ins = L("""
    v_bfe_u32 v{a}, v{L}, 1, 2
    v_lshlrev_b32 v{a}, 10, v{a}
    v_and_b32 v{c}, 1, v{L}
    v_lshl_add_u32 v{a}, v{c}, 7, v{a}
    s_lshl_b32 s{t0}, s{w}, 12
    v_add_u32 v{a}, s{t0}, v{a}
    s_lshr_b32 s{t0}, s{w}, 2
    s_and_b32 s{t1}, s{w}, 3
    v_and_b32 v{b}, 3, v{L}
    v_lshl_add_u32 v{b}, s{t1}, 2, v{b}
    s_mul_i32 s{t1}, s{t1}, 896
    v_lshl_add_u32 v{c}, v{c}, 7, s{t1}
    s_mul_i32 s{t1}, s{t0}, 3072
    s_add_u32 s{t1}, s{t1}, 1024
    v_lshl_add_u32 v{b}, v{b}, 7, s{t1}
    s_mul_i32 s{t1}, s{t0}, 3584
    v_add_u32 v{c}, s{t1}, v{c}
    """.format(a=a, b=b, c=c, L=vL, t0=sT0, t1=sT1, w=sWB))
    r = d0 + 3
    for g in range(1, 4):
        ins += L("buffer_load_dword v%d, v%d, %s, 0 offen offset:%d" % (r, a, srd(SX), 256 * g)); r += 1
        ins += L("s_mov_b32 s%d, %d\nbuffer_load_dword v%d, v%d, %s, s%d offen" % (sT0, 128 * 3072 * g, r, b, srd(SQ), sT0)); r += 1
        ins += L("s_mov_b32 s%d, %d\nbuffer_load_dword v%d, v%d, %s, s%d offen\nbuffer_load_dword v%d, v%d, %s, s%d offen" % (sT0, 128 * 3584 * g, r, c, srd(SG), sT0, r + 1, c, srd(SU), sT0)); r += 2
    return ins

def b_touch2(d0, u0, nu):
    a, b = d0, d0 + 1
    return L("""
    v_and_b32 v{a}, 3, v{L}
    v_mul_u32_u24 v{a}, 896, v{a}
    v_lshrrev_b32 v{b}, 2, v{L}
    v_min_u32 v{b}, {m}, v{b}
    v_lshl_add_u32 v{a}, v{b}, 7, v{a}
    s_mul_i32 s{t0}, s{w}, 3584
    s_add_u32 s{t0}, s{t0}, {o}
    buffer_load_dword v{b}, v{a}, {g}, s{t0} offen
    buffer_load_dword v{a}, v{a}, {u}, s{t0} offen
    """.format(a=a, b=b, L=vL, m=nu - 1, t0=sT0, w=sWB, o=128 * u0, g=srd(SG), u=srd(SU)))

def b_touch3(d0):
    a = d0
    return L("""
    v_min_u32 v{a}, 7, v{L}
    v_lshlrev_b32 v{a}, 7, v{a}
    s_mul_i32 s{t0}, s{w}, 3072
    s_lshl_b32 s{t1}, s{w}, 10
    buffer_load_dword v{r0}, v{a}, {q}, s{t0} offen
    buffer_load_dword v{r1}, v{a}, {o}, s{t1} offen
    v_min_u32 v{a}, 27, v{L}
    v_lshlrev_b32 v{a}, 7, v{a}
    s_mul_i32 s{t0}, s{w}, 3584
    buffer_load_dword v{a}, v{a}, {d}, s{t0} offen
    """.format(a=a, r0=a + 1, r1=a + 2, L=vL, t0=sT0, t1=sT1, w=sWB, q=srd(SQ), o=srd(SO), d=srd(SD)))

def p1_touch(d0):
    return L("""
    s_lshl_b32 s{t0}, s2, 2
    s_add_u32 s{t0}, s{t0}, s{wv}
    s_lshl_b32 s{t1}, s{t0}, 11
    v_and_b32 v{a}, 15, v{L}
    v_lshl_add_u32 v{a}, v{a}, 7, s{t1}
    buffer_load_dword v{r0}, v{a}, {x}, 0 offen
    s_lshr_b32 s{t1}, s{t0}, 1
    s_and_b32 s{t0}, s{t0}, 1
    s_mul_i32 s{sp}, s{t1}, 3072
    s_lshl_b32 s{m}, s{t0}, 10
    s_add_u32 s{sp}, s{sp}, s{m}
    s_add_u32 s{sp}, s{sp}, 1024
    v_and_b32 v{b}, 7, v{L}
    v_lshl_add_u32 v{b}, v{b}, 7, s{sp}
    buffer_load_dword v{r1}, v{b}, {q}, 0 offen
    s_mul_i32 s{sp}, s{t1}, 3584
    s_mul_i32 s{m}, s{t0}, 1792
    s_add_u32 s{sp}, s{sp}, s{m}
    v_bfe_u32 v{c}, v{L}, 1, 1
    v_mul_u32_u24 v{c}, 896, v{c}
    v_and_b32 v{d}, 1, v{L}
    v_lshl_add_u32 v{c}, v{d}, 8, v{c}
    v_add_u32 v{c}, s{sp}, v{c}
    buffer_load_dword v{r2}, v{c}, {g}, 0 offen
    buffer_load_dword v{r3}, v{c}, {u}, 0 offen
    """.format(t0=sT0, t1=sT1, sp=sH2, m=sM2, wv=sWV, L=vL, a=d0, b=d0 + 1, c=d0 + 2, d=d0 + 3, r0=d0 + 4, r1=d0 + 5, r2=d0 + 6, r3=d0 + 7,
               x=srd(SX), q=srd(SQ), g=srd(SG), u=srd(SU)))

def w2_row_addr(d, t):
    return defines(L("""
    s_lshr_b32 s{t0}, s2, 3
    s_lshl_b32 s{t0}, s{t0}, 11
    v_and_b32 v{d}, 15, v{L}
    v_lshl_add_u32 v{d}, v{d}, 7, s{t0}
    s_mul_i32 s{b}, s{wv}, {w}
    """.format(t0=sT0, d=d, L=vL, b=sPB, wv=sWV, w=448 * 1024)), TCH=d)

def w2_row_touch(d, res, n0):
    sr, base, row = slice_src(n0)
    return needs(L("s_add_u32 s%d, s%d, %d\nbuffer_load_dword v%d, v%d, %s, s%d offen" % (sT0, sPB if sr == SD else sWOB, row * 1024, res, d, srd(sr), sT0)), TCH=d)

def w2_touch(t, n0, ns, both=False):
    sr, base, row = slice_src(n0)
    nr = 4 * ns
    return L("""
    s_and_b32 s{t0}, s{tt}, 3
    s_mul_i32 s{t1}, s{t0}, {a}
    s_mul_i32 s{t0}, s{wv}, {wb}
    s_add_u32 s{t1}, s{t1}, s{t0}
    s_lshl_b32 s{t0}, s{ct}, 7
    s_add_u32 s{t1}, s{t1}, s{t0}
    s_add_u32 s{t1}, s{t1}, {b}
    {lane}
    buffer_load_dword v{x}, v{x}, {d}, 0 offen
    """.format(lane=("v_min_u32 v{x}, {m}, v{L}\nv_lshl_add_u32 v{x}, v{x}, 10, s{t1}" if not both else
                     "v_lshrrev_b32 v{x}, 1, v{L}\nv_min_u32 v{x}, {m}, v{x}\nv_lshl_add_u32 v{x}, v{x}, 10, s{t1}\nv_and_b32 v{y}, 1, v{L}\nv_lshlrev_b32 v{y}, 9, v{y}\nv_sub_u32 v{x}, v{x}, v{y}"
                     ).format(x=t, y=WHD, m=nr - 1, L=vL, t1=sT1), t0=sT0, t1=sT1, tt=sTT, ct=sCT, wv=sWV, wb=(448 if sr == SD else 128) * 1024, a=nr * 1024, b=row * 1024, x=t, m=nr - 1, L=vL, d=srd(sr)))

def flat(x):
    o = []
    for y in x: o += y if isinstance(y, list) else [y]
    return o

def groups(ins):
    out = []; cur = []
    tmp = {"s%d" % sT0, "s%d" % sT1, "vcc", "scc"}
    for k, x in enumerate(ins):
        cur.append(x)
        live = set()
        written = {r for y in ins[:k + 1] for r in y.wr} & tmp
        seen = set()
        for y in ins[k + 1:]:
            live |= (set(y.rd) & written) - seen
            seen |= set(y.wr)
        if not live: out.append(cur); cur = []
    if cur: out.append(cur)
    return out

def late_setup(A):
    ins = []
    if A:
        ins += L("s_mul_i32 s{t0}, s{q}, 896\ns_lshl_b32 s{t1}, s{ab}, 7\ns_add_u32 s{t0}, s{t0}, s{t1}\ns_add_u32 s{t0}, s{t0}, {o}".format(t0=sT0, t1=sT1, q=sQ, ab=sAB, o={True: 640, 'B': 256, False: 512}[cfg.o212]))
        ins += wdma_addr(WGD, 3584, sT0)
    ins += clear_store(A) + common_setup() + flat(addr_cs(A))
    if A:
        ins += L("""
        v_lshrrev_b32 v{a}, 2, v{L}
        v_mul_u32_u24 v{a}, 3584, v{a}
        v_and_b32 v{b}, 3, v{L}
        v_lshl_add_u32 v{a}, v{b}, 4, v{a}
        s_mul_i32 s{t0}, s{q}, 896
        s_lshl_b32 s{t1}, s{ab}, 6
        s_add_u32 s{t0}, s{t0}, s{t1}
        s_add_u32 s{t0}, s{t0}, {ho}
        s_mul_i32 s{t1}, s{wv}, {w}
        s_add_u32 s{t0}, s{t0}, s{t1}
        v_add_u32 v{d}, s{t0}, v{a}
        s_lshl_b32 s{t0}, s{ab}, 1
        s_add_u32 s{t0}, s{t0}, s{gr}
        s_sub_u32 s{h2}, {hn}, s{t0}
        s_lshl_b32 s{h2}, s{h2}, 11
        """.format(t0=sT0, t1=sT1, q=sQ, ab=sAB, wv=sWV, gr=sGR, w=16 * 3584, a=TMP, b=TMP + 1, d=WHD, L=vL, h2=sH2, ho=256 if cfg.o212 is True else 768, hn=8 if cfg.o212 is True else 24))
        ins += att_setup()
    else:
        ins += L("s_lshl_b32 s{t0}, s{i}, 7".format(t0=sT0, i=sI))
        ins += wdma_addr(WQD, 3072, sT0)
        ins += o_setup()
    defines(ins, FLG=vFLG, HST=vHST, W2D=(W2D, W2D + 1), Z=(CA + 2, CA + 3), HSA=KVD)
    if A: defines(ins, WHD=WHD, KVA=vKVA, PW=vPW, PR=vPR, VW=vVW, VR0=vVR0, VR1=vVR1)
    else: defines(ins, KRL=vKRL, KRS=vKRS, KVL=vKVL)
    return groups(ins)

def wdma_addr(dst, stride, scol):
    return defines(L("""
    s_mul_i32 s{t1}, s{wv}, {w}
    s_add_u32 s{t1}, s{t1}, s{c}
    v_lshrrev_b32 v{a}, 3, v{L}
    v_mul_u32_u24 v{a}, {st}, v{a}
    v_bfe_u32 v{b}, v{L}, 4, 1
    v_lshlrev_b32 v{b}, 2, v{b}
    v_xor_b32 v{b}, v{b}, v{L}
    v_and_b32 v{b}, 7, v{b}
    v_lshl_add_u32 v{a}, v{b}, 4, v{a}
    v_add_u32 v{d}, s{t1}, v{a}
    v_add_u32 v{d1}, {nx}, v{d}
    """.format(t1=sT1, wv=sWV, w=16 * stride, c=scol, a=TMP, b=TMP + 1, L=vL, st=stride, d=dst, d1=dst + 1, nx=8 * stride - 1024)), **{'WQD' if dst == WQD else 'WGD': (dst, dst + 1)})

def clear_store(A):
    z = 96
    s = """
    s_lshl_b32 s{t0}, s{rb}, 1
    s_add_u32 s{t0}, s{t0}, s{th}
    s_lshl_b32 s{t1}, s{t0}, 2
    s_add_u32 s{t1}, s{t1}, s{q}
    s_lshl_b32 s{t1}, s{t1}, 4
    s_add_u32 s{t1}, s{t1}, s{t4}
    s_lshl_b32 s{t1}, s{t1}, 1
    s_add_u32 s{t1}, s{t1}, s{gr}
    s_lshl_b32 s{t1}, s{t1}, 2
    s_add_u32 s{t1}, s{t1}, {fl}
    v_mov_b32 v{f}, {oob}
    v_writelane_b32 v{f}, s{t1}, 0
    v_mov_b32 v{z}, 0
    buffer_store_dword v{z}, v{f}, {sr}, 0 offen sc1
    s_lshl_b32 s{t0}, s{i}, 2
    s_lshl_b32 s{t1}, s{gr}, 1
    s_add_u32 s{t0}, s{t0}, s{t1}
    s_add_u32 s{t0}, s{t0}, s{th}
    """.format(t0=sT0, t1=sT1, rb=sRB, th=sTH, q=sQ, t4=sT4, gr=sGR, fl=WS_FL, f=vFLG, oob=OOB, z=z, sr=srd(SW), i=sI)
    if A:
        s += """
        s_lshl_b32 s{t0}, s{t0}, 4
        s_add_u32 s{t0}, s{t0}, s{rb}
        s_mul_i32 s{t0}, s{t0}, 2176
        s_add_u32 s{t0}, s{t0}, {kvp}
        """.format(t0=sT0, rb=sRB, kvp=WS_KVP) + kv_lane(vKVA, True)
        z += 2
        for j in range(4): s += "v_mov_b32 v%d, -1\n" % (z + j)
        ins = L(s)
        for j in range(4): ins += L("buffer_store_dwordx4 %s, v%d, %s, 0 offen offset:%d sc1" % (vr(z, 4), vKVA, srd(SW), 544 * j), tag="clr" if j == 3 else None)
        return ins
    s += """
    s_mul_i32 s{t1}, s{t0}, 34816
    s_mul_i32 s{t0}, s{t0}, 2176
    s_add_u32 s{t0}, s{t0}, {kvf}
    s_add_u32 s{t1}, s{t1}, {kvp}
    v_and_b32 v{a}, 15, v{L}
    v_lshl_add_u32 v{a}, s{rb}, 4, v{a}
    v_cmp_gt_u32 vcc, 0x88, v{a}
    v_lshlrev_b32 v{a}, 4, v{a}
    v_mov_b32 v{b}, {oob}
    v_cndmask_b32 v{a}, v{b}, v{a}, vcc
    v_lshrrev_b32 v{b}, 4, v{L}
    v_lshl_add_u32 v{rs}, v{b}, 2, v{a}
    v_add_u32 v{rs}, s{t0}, v{rs}
    v_mul_u32_u24 v{b}, 2176, v{b}
    v_add3_u32 v{rl}, v{b}, v{a}, s{t1}
    v_mov_b32 v{z}, -1
    """.format(t0=sT0, t1=sT1, rb=sRB, kvf=WS_KVF, kvp=WS_KVP, a=TMP, b=TMP + 1, L=vL, rs=vKRS, rl=vKRL, z=z + 1, oob=OOB)
    return L(s) + L("buffer_store_dword v%d, v%d, %s, 0 offen sc1" % (z + 1, vKRS, srd(SW)), tag="clr")

def kv_lane(dst, mask):
    a, b, c = TMP, TMP + 1, TMP + 2
    s = """
    v_and_b32 v{a}, 31, v{L}
    v_lshrrev_b32 v{b}, 5, v{L}
    v_lshl_add_u32 v{c}, v{b}, 4, v{a}
    v_add_u32 v{b}, 32, v{b}
    v_cmp_gt_u32 vcc, 16, v{a}
    v_cndmask_b32 v{c}, v{b}, v{c}, vcc
    v_lshl_add_u32 v{d}, v{c}, 4, s{t0}
    """.format(a=a, b=b, c=c, L=vL, d=dst, t0=sT0)
    if mask: s += "v_mov_b32 v{b}, {oob}\nv_cmp_gt_u32 vcc, 17, v{a}\nv_cndmask_b32 v{d}, v{b}, v{d}, vcc\n".format(a=a, b=b, d=dst, oob=OOB)
    return s

def early_setup():
    a, b, c = TMP, TMP + 1, TMP + 2
    s = """
    v_lshrrev_b32 v{a}, 5, v{L}
    v_bfe_u32 v{b}, v{L}, 1, 3
    v_xor_b32 v{a}, v{a}, v{b}
    v_lshlrev_b32 v{a}, 4, v{a}
    v_and_b32 v{b}, 31, v{L}
    v_lshl_add_u32 v{a}, v{b}, 7, v{a}
    s_lshl_b32 s{t0}, s{s}, 6
    v_xor_b32 v{a}, s{t0}, v{a}
    s_mul_i32 s{t1}, s{th}, {P}
    v_add_u32 v{x0}, s{t1}, v{a}
    v_xor_b32 v{b}, 32, v{a}
    v_add_u32 v{x1}, s{t1}, v{b}
    v_xor_b32 v{b}, 64, v{a}
    v_add_u32 v{x2}, s{t1}, v{b}
    v_xor_b32 v{b}, 0x60, v{a}
    v_add_u32 v{x3}, s{t1}, v{b}
    v_and_b32 v{a}, 31, v{L}
    v_mov_b32 v{b}, 0x3f803f80
    v_cmp_eq_u32 vcc, 0, v{a}
    v_cndmask_b32 v{s0}, 0, v{b}, vcc
    v_cmp_eq_u32 vcc, 20, v{a}
    v_cndmask_b32 v{s0}, v{s0}, v{b}, vcc
    v_cmp_eq_u32 vcc, 8, v{a}
    v_cndmask_b32 v{s2}, 0, v{b}, vcc
    v_cmp_eq_u32 vcc, 28, v{a}
    v_cndmask_b32 v{s2}, v{s2}, v{b}, vcc
    """.format(a=a, b=b, L=vL, t0=sT0, t1=sT1, s=sS, th=sTH, P=PITCH, x0=XR, x1=XR + 1, x2=XR + 2, x3=XR + 3, s0=SEL01, s2=SEL23)
    for j in range(1, 4): s += "v_mov_b32 v%d, v%d\nv_mov_b32 v%d, v%d\n" % (SEL01 + j, SEL01, SEL23 + j, SEL23)
    return defines(L(s), XR=range(XR, XR + 4))

def common_setup():
    a, b, c = TMP, TMP + 1, TMP + 2
    s = "s_mov_b32 s%d, 0\ns_mov_b32 s%d, -1\nv_mov_b32 v%d, 0\nv_mov_b32 v%d, 0\n" % (sMH, sMH + 1, CA + 2, CA + 3)
    s += """
    v_and_b32 v{a}, 3, v{L}
    v_cmp_eq_u32 s[{m1}:{m1b}], 1, v{a}
    v_cmp_eq_u32 s[{m2}:{m2b}], 2, v{a}
    v_cmp_eq_u32 s[{m3}:{m3b}], 3, v{a}
    v_and_b32 v{a}, 4, v{L}
    v_cmp_eq_u32 s[{mb}:{mbb}], 4, v{a}
    s_mul_i32 s{wd}, s{wv}, {wdv}
    s_lshl_b32 s{wo}, s{wv}, 17
    s_mov_b32 s{c2}, 0x3b000000
    """.format(a=a, L=vL, m1=sM1, m1b=sM1 + 1, m2=sM2, m2b=sM2 + 1, m3=sM3, m3b=sM3 + 1, mb=sMB, mbb=sMB + 1,
               wd=sWDB, wo=sWOB, wv=sWV, wdv=448 * 1024, c2=sC2)
    s += """
    s_lshl_b32 s{t0}, s{rb}, 1
    s_add_u32 s{t0}, s{t0}, s{th}
    s_mul_i32 s{t0}, s{t0}, 144
    s_mul_i32 s{t1}, s{q}, 36
    s_add_u32 s{t0}, s{t0}, s{t1}
    s_lshl_b32 s{t1}, s{ab}, 2
    s_add_u32 s{t0}, s{t0}, s{t1}
    s_lshl_b32 s{t1}, s{gr}, 1
    s_add_u32 s{t0}, s{t0}, s{t1}
    s_lshl_b32 s{t0}, s{t0}, 11
    v_lshl_add_u32 v{h}, v{L}, 4, s{t0}
    v_lshrrev_b32 v{a}, 3, v{L}
    v_lshlrev_b32 v{a}, 10, v{a}
    v_bfe_u32 v{b}, v{L}, 4, 1
    v_lshlrev_b32 v{b}, 2, v{b}
    v_xor_b32 v{b}, v{b}, v{L}
    v_and_b32 v{b}, 7, v{b}
    v_lshl_add_u32 v{a}, v{b}, 4, v{a}
    s_lshl_b32 s{t0}, s{ct}, 7
    v_add_u32 v{w}, s{t0}, v{a}
    v_add_u32 v{w1}, 7168, v{w}
    s_and_b32 s{t0}, s2, {hm}
    s_lshl_b32 s{t0}, s{t0}, 2
    s_add_u32 s{t0}, s{t0}, {ho}
    s_cmp_eq_u32 s{wv}, 0
    s_cselect_b32 s{t0}, s{t0}, {oob}
    v_mov_b32 v{hs}, {oob}
    v_writelane_b32 v{hs}, s{t0}, 0
    """.format(t0=sT0, t1=sT1, rb=sRB, th=sTH, q=sQ, ab=sAB, gr=sGR, h=vHST, L=vL, a=a, b=b, ct=sCT, w=W2D, w1=W2D + 1, wv=sWV, oob=OOB, hs=KVD, hm=31 if cfg.dbgout else 63, ho=64 if cfg.dbgout else 0)
    return L(s)

def att_setup():
    a, b, c = TMP, TMP + 1, TMP + 2
    s = """
    s_mul_i32 s{t0}, s{wv}, {wsz}
    s_add_u32 s{t0}, s{t0}, {wreg}
    v_and_b32 v{a}, 31, v{L}
    v_lshrrev_b32 v{b}, 5, v{L}
    v_mul_u32_u24 v{c}, 72, v{a}
    v_lshl_add_u32 v{c}, v{b}, 3, v{c}
    v_add_u32 v{pw}, s{t0}, v{c}
    v_mul_u32_u24 v{c}, 104, v{a}
    v_lshl_add_u32 v{c}, v{b}, 3, v{c}
    s_add_u32 s{t1}, s{t0}, {voff}
    v_add_u32 v{vw}, s{t1}, v{c}
    v_lshl_add_u32 v{c}, v{b}, 3, v{vw}
    v_mov_b32 v{o0}, 0x3f803f80
    v_mov_b32 v{o1}, 0x3f803f80
    ds_write_b64 v{c}, v[{o0}:{o1}] offset:64
    ds_write_b64 v{c}, v[{o0}:{o1}] offset:72
    v_bfe_u32 v{a}, v{L}, 2, 2
    v_lshl_add_u32 v{a}, v{b}, 3, v{a}
    v_and_b32 v{b}, 3, v{L}
    v_mul_u32_u24 v{c}, 72, v{a}
    v_lshl_add_u32 v{c}, v{b}, 3, v{c}
    v_bfe_u32 v{o0}, v{L}, 4, 1
    v_lshl_add_u32 v{c}, v{o0}, 5, v{c}
    v_add_u32 v{pr}, s{t0}, v{c}
    v_mul_u32_u24 v{c}, 104, v{a}
    v_lshl_add_u32 v{c}, v{b}, 3, v{c}
    v_add_u32 v{c}, s{t1}, v{c}
    v_lshl_add_u32 v{v0}, v{o0}, 6, v{c}
    v_add_u32 v{o0}, 1, v{o0}
    v_lshl_add_u32 v{v1}, v{o0}, 5, v{c}
    """.format(t0=sT0, t1=sT1, wv=sWV, wsz=WREG_SZ, wreg=WREG, a=a, b=b, c=c, L=vL, pw=vPW, vw=vVW, voff=VOFF, o0=TMP + 8, o1=TMP + 9,
               pr=vPR, v0=vVR0, v1=vVR1, i=sI, gr=sGR, th=sTH)
    if cfg.vfold: s = "\n".join(x for x in s.split("\n") if "0x3f803f80" not in x and "ds_write" not in x)
    return L(s)

def o_setup():
    return L("""
    s_lshl_b32 s{t0}, s{i}, 1
    s_add_u32 s{t0}, s{t0}, s{gr}
    s_mul_i32 s{t0}, s{t0}, 4352
    s_add_u32 s{t0}, s{t0}, {kvf}
    """.format(t0=sT0, i=sI, gr=sGR, kvf=WS_KVF) + kv_lane(vKVL, False))

def wphi_setup(A):
    a, b = TMP, TMP + 1; t = 64 + 16
    s = """
    s_lshl_b32 s{t0}, s{i}, 2
    s_lshl_b32 s{t1}, s{gr}, 1
    s_add_u32 s{t0}, s{t0}, s{t1}
    s_lshl_b32 s{t0}, s{t0}, 9
    v_bfe_u32 v{a}, v{L}, 4, 1
    """.format(t0=sT0, t1=sT1, i=sI, gr=sGR, a=a, L=vL)
    if A: s += "v_xor_b32 v%d, s%d, v%d\n" % (a, sTH, a)
    s += """
    v_lshlrev_b32 v{a}, 9, v{a}
    v_lshrrev_b32 v{b}, 5, v{L}
    v_lshl_add_u32 v{a}, v{b}, 7, v{a}
    v_and_b32 v{b}, 15, v{L}
    v_lshl_add_u32 v{a}, v{b}, 1, v{a}
    v_add_u32 v{a}, s{t0}, v{a}
    """.format(a=a, b=b, L=vL, t0=sT0)
    for j in range(8):
        s += "buffer_load_ushort v%d, v%d, %s, 0 offen offset:%d\n" % (t + j, a, srd(SPHI), 32 * ((j & 3) + 8 * (j >> 2)))
    return L(s)

def wphi_finish():
    t = 64 + 16
    out = L("v_and_b32 v%d, 16, v%d\nv_cmp_eq_u32 vcc, 0, v%d" % (TMP + 8, vL, TMP + 8))
    g = []
    for j in range(4):
        g += L("v_lshl_or_b32 v{x}, v{y}, 16, v{x}\nv_cndmask_b32 v{a0}, 0, v{x}, vcc\nv_cndmask_b32 v{a1}, v{x}, 0, vcc".format(x=t + 2 * j, y=t + 2 * j + 1, a0=WPHI + j, a1=WPHI + 4 + j))
    return defines(out + g, WPHI=range(WPHI, WPHI + 8))

def rot_regs(c):
    if cfg.rot == "z":
        if c < cfg.nfix: return "s_mov_b32 s%d, %d\ns_mov_b32 s%d, %d\ns_mov_b32 s%d, %d\n" % (sKX + c, 128 * c, sKQ + c, 64 * 3072 * c, sKG + c, 64 * 3584 * c)
        return "s_add_u32 s{t1}, s{r}, {c}\ns_sub_u32 s{t0}, s{t1}, {m}\ns_cmp_gt_u32 s{t1}, 7\ns_cselect_b32 s{t1}, s{t0}, s{t1}\ns_lshl_b32 s{kx}, s{t1}, 7\ns_mul_i32 s{kq}, s{t1}, {a}\ns_mul_i32 s{kg}, s{t1}, {b}\n".format(
            m=8 - cfg.nfix, r=sSPIN, t0=sT0, t1=sT1, c=c, kx=sKX + c, kq=sKQ + c, kg=sKG + c, a=64 * 3072, b=64 * 3584)
    return "s_add_u32 s{t1}, s{r}, {c}\ns_and_b32 s{t1}, s{t1}, 7\ns_lshl_b32 s{kx}, s{t1}, 7\ns_mul_i32 s{kq}, s{t1}, {a}\ns_mul_i32 s{kg}, s{t1}, {b}\n".format(
        r=sSPIN, t1=sT1, c=c, kx=sKX + c, kq=sKQ + c, kg=sKG + c, a=64 * 3072, b=64 * 3584)

def srd_consts(lst):
    return "".join("s_mov_b32 s%d, 0x%x\ns_mov_b32 s%d, 0x20000\n" % (reg + 2, sz, reg + 3) for reg, sz in lst)

def entry_x(item_dma):
    s = """
    s_cmp_ge_u32 s2, 256
    s_cbranch_scc1 L_exit
    """
    if cfg.idmap == 1: s += "s_xor_b32 s2, s2, 0x80\n"
    if cfg.idmap == 2: s += "s_xor_b32 s2, s2, 0x60\n"
    if cfg.idmap == 3:
        s += "s_lshr_b32 s3, s2, 4\ns_xor_b32 s3, s3, s2\ns_and_b32 s3, s3, 8\ns_mul_i32 s3, s3, 17\ns_xor_b32 s2, s2, s3\n"
    if cfg.idmap == 4:
        s += "s_lshr_b32 s3, s2, 3\ns_xor_b32 s3, s3, s2\ns_and_b32 s3, s3, 16\ns_mul_i32 s3, s3, 9\ns_xor_b32 s2, s2, s3\n"
    for reg, off in ((SX, 0), (SQ, 8), (SG, 40), (SU, 48), (SW, 80), (SPHI, 16), (SO, 24), (SD, 56), (SOUT, 64), (SDBG, 72)):
        s += "s_load_dwordx2 s[%d:%d], s[0:1], %d\n" % (reg, reg + 1, off)
    if cfg.stamps:
        s += "s_memrealtime s[%d:%d]\ns_memtime s[%d:%d]\nv_mov_b32 v%d, 0\n" % (sST, sST + 1, sST + 2, sST + 3, vSTAMP)
    s += """
    v_lshrrev_b32 v1, 6, v0
    v_and_b32 v{L}, 63, v0
    v_readfirstlane_b32 s{wv}, v1
    s_and_b32 s{xcd}, s2, 7
    s_lshr_b32 s{idx}, s2, 3
    s_and_b32 s{rb}, s{xcd}, 1
    s_lshl_b32 s{rb}, s{rb}, 3
    s_and_b32 s{t0}, s{idx}, 7
    s_add_u32 s{rb}, s{rb}, s{t0}
    s_lshr_b32 s{q}, s{xcd}, 1
    s_lshr_b32 s{t4}, s{idx}, 3
    s_and_b32 s{ab}, s{t4}, 1
    s_lshl_b32 s{i}, s{q}, 1
    s_add_u32 s{i}, s{i}, s{ab}
    {rotc}    s_and_b32 s{th}, s{wv}, 1
    s_lshr_b32 s{gr}, s{wv}, 1
    s_xor_b32 s{s}, s{th}, s{gr}
    s_lshl_b32 s{l2k}, s{wv}, 11
    s_mul_i32 s{lx}, s{gr}, {P}
    s_lshl_b32 s{t1}, s{th}, 12
    s_add_u32 s{lx}, s{lx}, s{t1}
    """.format(L=vL, wv=sWV, xcd=sXCD, idx=sIDX, rb=sRB, t0=sT0, t1=sT1, q=sQ, t4=sT4, ab=sAB, i=sI, th=sTH, gr=sGR, s=sS, l2k=sL2K, lx=sLX, P=PITCH,
               rotc=("s_lshl_b32 s%d, s%d, 1\ns_add_u32 s%d, s%d, s%d\ns_and_b32 s%d, s%d, %d\n" % (sT1, sT4, sSPIN, sT0, sT1, sSPIN, sSPIN, 7 if cfg.rot is True else int(cfg.rot))) if cfg.rot and cfg.rot != "z" else "")
    if cfg.rot: s += rot_regs(0)
    s += """
    s_lshl_b32 s{t0}, s{rb}, 2
    s_add_u32 s{t0}, s{t0}, s{wv}
    s_lshl_b32 s{t0}, s{t0}, 15
    v_lshrrev_b32 v2, 3, v{L}
    v_lshlrev_b32 v2, 10, v2
    v_add_u32 v2, s{t0}, v2
    v_lshrrev_b32 v3, 4, v{L}
    v_xor_b32 v3, v3, v{L}
    v_and_b32 v3, 7, v3
    v_lshl_add_u32 v{x0}, v3, 4, v2
    v_add_u32 v{x2}, {d2}, v{x0}
    v_xor_b32 v3, 4, v3
    v_lshl_add_u32 v{x1}, v3, 4, v2
    v_add_u32 v{x1}, 7168, v{x1}
    v_add_u32 v{x3}, {d2}, v{x1}
    """.format(t0=sT0, rb=sRB, wv=sWV, L=vL, x0=XD, x1=XD + 1, x2=XD + 2, x3=XD + 3, d2=2 * 7168)
    s += srd_consts(((SX, 0x200000), (SQ, 0x180000), (SG, 0x1C0000), (SU, 0x1C0000)))
    if cfg.walk_entry: s += "s_nop 15\n"
    s += "s_waitcnt lgkmcnt(0)\n"
    if cfg.stamps: s += "v_writelane_b32 v%d, s%d, 0\nv_writelane_b32 v%d, s%d, 63\n" % (vSTAMP, sST, vSTAMP, sST + 2)
    ins = L(s)
    for x in ins:
        if x.kind == "smem": x.nowait = True
    if cfg.walk_entry:
        k = [i for i, x in enumerate(ins) if x.text == "s_nop 15"][0]
        a, b = walk_call("A", 0).lines, walk_call("B", 0).lines
        if cfg.walk_entry == "L":
            a, b = l2_walk("A").lines, l2_walk("B").lines
            n0 = a.index("s_mov_b64 exec, 0")
            a, b = ["\n    ".join(a[:n0 + 1])] + a[n0 + 1:], [""] + b[n0 + 1:]
        ins[k] = Raw(a[:1] + ["s_cmp_ge_u32 s%d, 2" % sT4, "s_cbranch_scc1 L_walkB"] + a[1:-2] + ["L_walkB:"] + b[1:-2] + [a[-2], b[-2], a[-1]], wr=["scc"])
    defines(ins, XD=range(XD, XD + 4))
    ins += stamp("karg") + flat(item_dma(("x", 0)))
    ins += L("s_cmp_ge_u32 s%d, 2\ns_cbranch_scc1 L_proB" % sT4)
    return ins

def entry_rest():
    s = ""
    if cfg.rot == "z":
        s += """
        s_lshl_b32 s{t0}, s{q}, 1
        s_add_u32 s{t0}, s{t0}, s{t4}
        s_lshl_b32 s{t0}, s{t0}, 1
        s_add_u32 s{t0}, s{t0}, s{rb}
        s_mul_i32 s{t1}, s{t0}, {mg}
        s_lshr_b32 s{t1}, s{t1}, 8
        s_mul_i32 s{t1}, s{t1}, {m}
        s_sub_u32 s{r}, s{t0}, s{t1}
        """.format(m=8 - cfg.nfix, mg={7: 37, 6: 43, 5: 52}[8 - cfg.nfix], t0=sT0, t1=sT1, q=sQ, t4=sT4, rb=sRB, r=sSPIN)
    s += "".join(rot_regs(c) for c in range(1, cfg.npro)) if cfg.rot else ""
    s += """
    s_lshl_b32 s{l1k}, s{wv}, 10
    s_lshl_b32 s{tt}, s{xcd}, 2
    s_and_b32 s{t0}, s{idx}, 3
    s_add_u32 s{tt}, s{tt}, s{t0}
    s_lshr_b32 s{ct}, s{idx}, 2
    s_xor_b32 s{ct}, s{ct}, {cx}
    """.format(t0=sT0, wv=sWV, tt=sTT, xcd=sXCD, idx=sIDX, ct=sCT, l1k=sL1K, cx=cfg.ctx)
    s += srd_consts(((SD, 0x1C0000), (SO, 0x80000), (SW, 0x10000000), (SOUT, 0x200000), (SDBG, 256), (SPHI, 16384)))
    return L(s)

def defaults():
    cfg.code_lim = 20480
    cfg.fixpar = 0; cfg.shift = (0, 0); cfg.qmajor = True; cfg.outfl = ' sc1'; cfg.clr_at = 12; cfg.late_u = True; cfg.late_g = 0; cfg.padto = 0; cfg.pad_at = None; cfg.late_d = 7; cfg.orderB = None; cfg.pacewB = None; cfg.bt2 = 0; cfg.bt3 = 0; cfg.strict = False; cfg.skipbar = (); cfg.quiet = 0; cfg.p3t = 0; cfg.pacew = {8: 8}; cfg.wpfd = 0; cfg.npro = 2; cfg.pace0 = 8; cfg.pace = [8, 4, 4]; cfg.p2pace = 1; cfg.w2at = lambda m: (m - 16) * 30 // 19
    cfg.order = 'CWf1jrs'; cfg.rot = 'z'; cfg.wpf0 = None; cfg.wpf = 0; cfg.wpf1 = [(SD, 14), (SO, 4)]; cfg.codepf = 1; cfg.w2pf = [(40, 8, 4), (43, 12, 4), (46, 16, 4), (49, 20, 4), (52, 24, 4), (55, 28, 4), (58, 32, 4)]; cfg.l2n = 0; cfg.walk_from = 2048; cfg.trickle = []; cfg.xslots = False; cfg.a_cb = 13; cfg.walk_entry = False; cfg.w2row = False; cfg.idmap = 0; cfg.ctx = 0; cfg.o212 = False; cfg.B = {}; cfg.hs = (40, 63); cfg.w2atB = lambda m: max(m - 16, (m - 16) * 30 // 19 - 3); cfg.walk = [[0], [1024, 2048, 3072]]; cfg.walk_at = 0; cfg.nfix = 1; cfg.w1_from = 0; cfg.wdelay = {}; cfg.rot2 = True; cfg.w2B = False; cfg.mix = True
    cfg.p2period = 72; cfg.rd_early = True; cfg.one_wait = True; cfg.x_early = True; cfg.st_early = True; cfg.stash = False; cfg.vfold = True; cfg.pro_setup = True; cfg.setup_end = 14
    cfg.fd = 1100; cfg.h1first = 10; cfg.a_att = 23; cfg.a_h1 = 26; cfg.a_pub = 8; cfg.a_kvflag = 30; cfg.h1 = 12; cfg.a_h2 = 3
    cfg.b_h0 = 12; cfg.b_att = 14; cfg.b_ri = -10; cfg.b_rc = 2; cfg.b_li = 12; cfg.b_lc = 20; cfg.b_o = 5
    cfg.flag_delay = 28; cfg.flag_delay2 = 14
    cfg.p0 = 6; cfg.hstep0 = 5
    cfg.hlA = [4 * (n - 4) + 1 for n in range(36)]; cfg.hlB = [(6 + 2 * (n - 8) if n < 16 else 4 * (n - 5) + 1) for n in range(36)]; cfg.poll_lead = [16, 10, 16, 16, 12]

def walk_call(typ, k):
    ls = ["s_mov_b64 exec, 0"]
    for w in range(3): ls += ["s_cmp_eq_u32 s%d, %d" % (sWV, w), "s_cbranch_scc1 L_pad%s%d_%d" % (typ, k, w)]
    ls += ["s_branch L_pad%s%d_3" % (typ, k), "L_ret%s%d:" % (typ, k), "s_mov_b64 exec, -1"]
    return Raw(ls, wr=["scc"])

def l2_walk(typ):
    n = cfg.l2n
    ls = ["s_bfe_u32 s%d, s2, 0x40003" % sT0, "s_lshl_b32 s%d, s%d, 2" % (sT0, sT0), "s_add_u32 s%d, s%d, s%d" % (sT0, sT0, sWV), "s_mov_b64 exec, 0"]
    def ladder(lo, hi):
        if hi - lo == 1: return ["s_branch L_l2%s_%d" % (typ, lo % n)]
        mid = (lo + hi) // 2; lab = "L_ld%s_%d_%d" % (typ, mid, hi)
        return ["s_cmp_ge_u32 s%d, %d" % (sT0, mid), "s_cbranch_scc1 " + lab] + ladder(lo, mid) + [lab + ":"] + ladder(mid, hi)
    if n <= 32: ls.insert(3, "s_and_b32 s%d, s%d, 31" % (sT0, sT0))
    ls += ladder(0, 32 if n <= 32 else 64) + ["L_l2ret%s:" % typ, "s_mov_b64 exec, -1"]
    return Raw(ls, wr=["scc", "s%d" % sT0])

def add_pads(p, typ):
    sz = sizes(p)
    total = sum(sz)
    want = []
    for pg in range(0, total // 4096 + 1):
        for k, offs in enumerate(cfg.walk):
            want += [(4096 * pg + o, k) for o in offs if cfg.walk_from <= 4096 * pg + o < total - 64]
    if cfg.l2n: want += [(1024 * (k + 1), "l2") for k in range(cfg.l2n)]
    want.sort(key=lambda z: z[0])
    out = []; pos = 0; pads = {k: [] for k in list(range(len(cfg.walk))) + ["l2"]}
    for x, n in zip(p, sz):
        while want and pos >= want[0][0] and x.kind != "endpgm":
            o, k = want.pop(0)
            lab, br = I("L_x:"), I("s_cbranch_execz L_x")
            pads[k].append((lab, br)); out += [lab, br]; pos += 4
        out.append(x); pos += n
    for i, (lab, br) in enumerate(pads.pop("l2")): lab.text = "L_l2%s_%d:" % (typ, i); br.text = "s_cbranch_execz L_l2ret%s" % typ
    for k, lst in pads.items():
        assert len(lst) >= 4 or not lst
        for i, (lab, br) in enumerate(lst):
            lab.text = "L_pad%s%d_%d:" % (typ, k, i)
            br.text = "s_cbranch_execz " + ("L_pad%s%d_%d" % (typ, k, i + 4) if i + 4 < len(lst) else "L_ret%s%d" % (typ, k))
    print("  pads", {k: len(v) for k, v in pads.items()}, "bytes", pos)
    return out

def o212_defaults():
    cfg.o212 = True; cfg.pace = [8, 4, 6]; cfg.pacew = {}
    cfg.a_hh = 1; cfg.a_att2 = 14; cfg.h3 = 6; cfg.b_h0 = 14; cfg.b_att = 28
    cfg.b_ri = -24; cfg.b_rc = -6; cfg.b_li = 8; cfg.b_lc = 18
    cfg.p0 = 5; cfg.hstep0 = 9; cfg.p1 = 26; cfg.hstep1 = 5
    cfg.poll_lead = [12, 20, 12, 12, 12]
    cfg.hlA = cfg.hlB = [max(30 + 2 * (n - 12), 4 * (n - 5) + 1) for n in range(36)]
    cfg.w2at = cfg.w2atB = lambda m: m - 16
    cfg.w2pf = [(36, 16, 4), (40, 20, 4), (44, 24, 4), (48, 28, 4), (52, 32, 4)]

def generate(path):
    label_n[0] = 0
    import fw
    if cfg.x_notask: fw.check_roles = lambda *a: None
    import fw; fw.LOOSE = cfg.x_nodma or cfg.x_drop
    progs = {}; cut = {}
    for typ in "AB":
        nc, p = build_type(typ)
        mark = p[nc]
        if cfg.x_nodma:
            k0 = [i for i, x in enumerate(p) if getattr(x, "kind", "") == "barrier"][0]
            q = p[:k0]
            for x in p[k0:]:
                if getattr(x, "dma", False):
                    y = I("s_nop 0");
                    q.append(y)
                else: q.append(x)
            p = q
        if cfg.x_drop:
            q = []
            for x in p:
                t = getattr(x, "text", "")
                d = ("h" in cfg.x_drop and t.startswith("buffer_load_dwordx4 a[")) or \
                    ("s" in cfg.x_drop and t.startswith("buffer_store_dwordx4") and "s[28:31]" in t) or \
                    ("w" in cfg.x_drop and getattr(x, "dma", False) and ("s[20:23]" in t or "s[24:27]" in t)) or \
                    ("p" in cfg.x_drop and x.kind == "raw" and "exec" not in x.lines[0])
                if "m" in cfg.x_drop and x.kind == "mfma":
                    if t.endswith("]") and " a[" in t and "32x32" in t:
                        regs = [r for r in x.rd if r[0] == "a"]
                        y = I("s_nop 0"); y.rd = regs; y.kind = "salu"; q.append(y)
                    continue
                if "l" in cfg.x_drop and x.kind == "ds": continue
                q.append(I("s_nop 0") if d else x)
            p = q
        progs[typ] = finalize(p, typ)
        cut[typ] = (progs[typ].index(mark), [i for i, x in enumerate(progs[typ]) if x.kind == "label" and "main" in x.text][0])
    for t in "AB" if not cfg.x_drop else "":
        k = [i for i, x in enumerate(progs[t]) if getattr(x, "gives", None) == "hs" + t][0]
        assert all(i > k for i, x in enumerate(progs[t]) if getattr(x, "after_hs", False)), "poll before the hand-shake"
    given = {("A", 0), ("B", 0)}; at = {"A": 0, "B": 0}; moved = True
    while moved:
        moved = False
        for t in "AB":
            while at[t] < len(progs[t]) and all(w in given for w in getattr(progs[t][at[t]], "waits", [])):
                g = getattr(progs[t][at[t]], "gives", None)
                if g is not None: given.add((t, g))
                at[t] += 1; moved = True
    assert all(at[t] == len(progs[t]) for t in "AB"), ("circular wait", at, [getattr(progs[t][min(at[t], len(progs[t]) - 1)], "waits", None) for t in "AB"])
    def main(t):
        p = progs[t][cut[t][1]:]
        if cfg.fixpar: p = fix_parity(p, cfg.fixpar)
        if cfg.walk: return ".p2align 12\n" + emit(add_pads(p, t)) + "L_end%s:\n" % t
        return ".p2align 6\n" + emit(p[:1]) + "    s_nop 0\n" * cfg.shift[t == "B"] + emit(p[1:]) + "L_end%s:\n" % t
    body = emit(progs["A"][:cut["A"][1]]) + "L_proB:\n" + emit(progs["B"][cut["B"][0]:cut["B"][1]]) + "L_exit:\n    s_endpgm\n" + \
           main("A") + main("B")
    ref = open("parallel_sum__linear_kernel_hedgehog__glu_gated_bilinear__prompt.s.ref").read().split("\n")
    head = [x for x in ref if x.startswith(";") and "@launch" not in x and "Override" not in x and "grid=ceil" not in x]
    txt = "\n".join(head) + "\n; @launch grid=(256,1,1) block=(256,1,1) lds=%d\n" % LDS_BYTES
    txt += """.amdgcn_target "amdgcn-amd-amdhsa--gfx950"
.text
.globl {k}
.p2align 8
.type {k},@function
{k}:
""".format(k=KNAME) + body + """.section .rodata,"a"
.p2align 6
.amdhsa_kernel {k}
  .amdhsa_next_free_vgpr 512
  .amdhsa_next_free_sgpr 102
  .amdhsa_accum_offset 256
  .amdhsa_group_segment_fixed_size 0
  .amdhsa_kernarg_size 88
  .amdhsa_user_sgpr_count 2
  .amdhsa_user_sgpr_kernarg_segment_ptr 1
  .amdhsa_system_sgpr_workgroup_id_x 1
.end_amdhsa_kernel
""".format(k=KNAME)
    open(path, "w").write(txt)
    if cfg.stamps: open(path[:-2] + ".names", "w").write("\n".join(stamp_names))

if __name__ == "__main__":
    defaults()
    path = sys.argv[1]
    for kv in sys.argv[2:]:
        k, v = kv.split("=", 1)
        if k == "o212" and v == "True": o212_defaults()
        if k == "o212" and v == "'B'":
            cfg.B = dict(hs=(34, 45), pace=[8, 4, 6], pacew={}, h3=5, b_h0=14, b_att=28, b_ri=-16, b_rc=-2, b_li=14, b_lc=24, p0=5, hstep0=9,
                         poll_lead=[12, 10, 12, 12, 12], hlB=[max(22 + 2 * (n - 8), 4 * (n - 5) + 1) for n in range(36)], w2atB=lambda m: max(m - 16, (m - 16) * 30 // 19 - 4),
                         w2pf=[(34, 8, 4), (38, 12, 4), (42, 16, 4), (46, 20, 4), (50, 24, 4), (54, 28, 4), (58, 32, 4)])
        if k.startswith("B."): cfg.B[k[2:]] = eval(v); continue
        setattr(cfg, k, eval(v))
    generate(path)
```
